```python
import torch

def _softmax(x, axis=-1):
    return torch.softmax(x, dim=axis)
def _gelu(x):
    return torch.nn.functional.gelu(x, approximate="tanh")
def _silu(x):
    return torch.nn.functional.silu(x)
def _sigmoid(x):
    return torch.sigmoid(x)
def _layernorm(x, axis=-1, eps=1e-5):
    m = x.mean(dim=axis, keepdim=True)
    v = x.var(dim=axis, keepdim=True, unbiased=False)
    return (x - m) / torch.sqrt(v + eps)
def _scatter_add(tgt, idx, src, axis=0):
    return tgt.clone().index_add_(axis, idx, src)
def _segment_sum(src, seg, n):
    out = torch.zeros((n,) + src.shape[1:], dtype=src.dtype)
    return out.index_add_(0, seg, src)
def _pad(x, pw):
    flat = tuple(v for pair in reversed(pw) for v in pair)
    return torch.nn.functional.pad(x, flat)

kernel_name = 'sequential_preLN__mha_block__glu_gated_glu__prompt'

def setup_inputs():

    _w = (lambda a: (lambda t: t.to(torch.bfloat16) if t.is_floating_point() else t)(torch.as_tensor(a)))
    def _A_setup():
        B, S, D, H = 1, 2048, 1024, 32
        return {
            "x": _w((lambda *s: torch.randn(*s, dtype=torch.bfloat16) * 0.05)(B, S, D)),
            "wqkv": _w((lambda *s: torch.randn(*s, dtype=torch.bfloat16) * 0.05)(D, 3 * D)),
            "wo": _w((lambda *s: torch.randn(*s, dtype=torch.bfloat16) * 0.05)(D, D)),
        }
    _A_in = _A_setup()

    def _B_setup():
        B, S, D, F = 1, 2048, 1024, 3584
        return {
            "x": _w((lambda *s: torch.randn(*s, dtype=torch.bfloat16) * 0.05)(B, S, D)),
            "w_gate": _w((lambda *s: torch.randn(*s, dtype=torch.bfloat16) * 0.05)(D, F)),
            "w_up": _w((lambda *s: torch.randn(*s, dtype=torch.bfloat16) * 0.05)(D, F)),
            "w_down": _w((lambda *s: torch.randn(*s, dtype=torch.bfloat16) * 0.05)(F, D)),
        }
    _B_in = _B_setup()

    return {
        "A_x": _A_in["x"],
        "A_wqkv": _A_in["wqkv"],
        "A_wo": _A_in["wo"],
        "B_x": _B_in["x"],
        "B_w_gate": _B_in["w_gate"],
        "B_w_up": _B_in["w_up"],
        "B_w_down": _B_in["w_down"],
    }

def reference(A_x, A_wqkv, A_wo, B_x, B_w_gate, B_w_up, B_w_down):
    def _A_ref(x, wqkv, wo):
        B, S, D = x.shape
        H = 32
        Dh = D // H
        qkv = (lambda x, *d: x.permute(*d))((x @ wqkv).reshape(B, S, 3, H, Dh), 2, 0, 3, 1, 4)
        q, k, v = qkv[0], qkv[1], qkv[2]
        scores = torch.einsum("bhqd,bhkd->bhqk", q, k) * (Dh ** -0.5)
        p = _softmax(scores, axis=-1)
        o = torch.einsum("bhqk,bhkd->bhqd", p, v)
        return (lambda x, *d: x.permute(*d))(o, 0, 2, 1, 3).reshape(B, S, D) @ wo

    def _B_ref(x, w_gate, w_up, w_down):
        g = torch.einsum("bsd,df->bsf", x, w_gate)
        u = torch.einsum("bsd,df->bsf", x, w_up)
        h = _sigmoid(g) * u
        return torch.einsum("bsf,fd->bsd", h, w_down)

    x = A_x
    h = x + _A_ref(_layernorm(x, axis=-1), A_wqkv, A_wo)
    h2 = h + _B_ref(_layernorm(h, axis=-1), B_w_gate, B_w_up, B_w_down)
    return h2
```

```python
class Asm:
    def __init__(self):
        self.lines = []
        self.uid = 0
    def __call__(self, s, *a):
        self.lines.append("    " + s)
    def label(self, l):
        self.lines.append(l + ":")
    def raw(self, s):
        self.lines.append(s)
    def comment(self, s):
        self.lines.append("    ; " + s)
    def newlabel(self, p):
        self.uid += 1
        return f"{p}_{self.uid}"
    def text(self):
        return "\n".join(self.lines) + "\n"

def v(i, n=1):
    return f"v{i}" if n == 1 else f"v[{i}:{i+n-1}]"
def s(i, n=1):
    return f"s{i}" if n == 1 else f"s[{i}:{i+n-1}]"
def a(i, n=1):
    return f"a{i}" if n == 1 else f"a[{i}:{i+n-1}]"

def kernel_begin(A, name):
    A.raw(f".globl {name}")
    A.raw(".p2align 8")
    A.raw(f".type {name},@function")
    A.label(name)
    import os
    if int(os.environ.get("PROF", "0")):
        A("s_memrealtime s[78:79]")

def kernel_desc(name, nvgpr, nsgpr=96, accum=None):
    if accum is None:
        accum = (nvgpr + 3) // 4 * 4
    return f""".p2align 6
.amdhsa_kernel {name}
  .amdhsa_next_free_vgpr {nvgpr}
  .amdhsa_next_free_sgpr {nsgpr}
  .amdhsa_accum_offset {accum}
  .amdhsa_group_segment_fixed_size 0
  .amdhsa_kernarg_size 80
  .amdhsa_user_sgpr_count 2
  .amdhsa_user_sgpr_kernarg_segment_ptr 1
  .amdhsa_system_sgpr_workgroup_id_x 1
.end_amdhsa_kernel
"""

def srd(A, d, base, off, size):
    if off:
        A(f"s_add_u32 {s(d)}, {s(base)}, {hex(off)}")
        A(f"s_addc_u32 {s(d+1)}, {s(base+1)}, 0")
    else:
        A(f"s_mov_b32 {s(d)}, {s(base)}")
        A(f"s_mov_b32 {s(d+1)}, {s(base+1)}")
    A(f"s_mov_b32 {s(d+2)}, {hex(size)}")
    A(f"s_mov_b32 {s(d+3)}, 0x20000")

def interleave(main, fillers, start=0, end=None):
    n = len(main)
    if end is None: end = n
    slots = [[] for _ in range(n)]
    m = len(fillers)
    span = end - start
    for i, g in enumerate(fillers):
        pos = start + (i * span) // m if m else 0
        slots[min(pos, n - 1)].extend(g)
    out = []
    for i in range(n):
        out.append(main[i])
        out.extend(slots[i])
    return out
```

```python
from gen import *

def k_attn(A):
    name = "attn_kernel"
    R, SLOT = 4, 32768
    kernel_begin(A, name)
    A("s_cmp_ge_u32 s2, 256")
    A("s_cbranch_scc1 attn_end")
    A(f"s_load_dwordx2 s[6:7], s[0:1], {KA_WS}")
    wave_id(A, 20)
    A("v_and_b32 v1, 63, v0")
    A("v_lshlrev_b32 v2, 4, v1")
    A("s_and_b32 s21, s2, 7")
    A("s_lshl_b32 s21, s21, 2")
    A("s_bfe_u32 s28, s2, 0x20003")
    A("s_add_u32 s21, s21, s28")
    A("s_lshr_b32 s22, s2, 5")
    A("s_lshl_b32 s28, s21, 17")
    A("s_waitcnt lgkmcnt(0)")
    A("s_add_u32 s4, s6, s28")
    A("s_addc_u32 s5, s7, 0")
    srd(A, 8, 4, WS_K, 131072)
    srd(A, 12, 4, WS_VT, 131072)
    srd(A, 16, 4, WS_Q, 131072)
    srd(A, 36, 6, WS_O, 4*MB)
    sRd, sWr, sGo, sCnt, sM = 23, 24, 25, 27, 26
    Q, NEGM, S0, S1, P, KF, VF, O, L, ONES = 8, 16, 32, 48, 64, 80, 96, 112, 128, 132
    S_ = [S0, S1]
    A("s_lshl_b32 s28, s22, 3")
    A("s_add_u32 s28, s28, s20")
    A("s_lshl_b32 s28, s28, 11")
    A(f"buffer_load_dwordx4 {v(Q,4)}, v2, s[16:19], s28 offen")
    A(f"buffer_load_dwordx4 {v(Q+4,4)}, v2, s[16:19], s28 offen offset:1024")
    A(f"s_lshl_b32 {s(sGo)}, s20, 11")
    A(f"s_lshl_b32 {s(sM)}, s20, 11")
    def dma_groups():
        return [[f"s_add_u32 m0, {s(sWr)}, {s(sM)}", "s_nop 0",
                 f"buffer_load_dwordx4 v2, s[8:11], {s(sGo)} offen lds"],
                [f"buffer_load_dwordx4 v2, s[8:11], {s(sGo)} offen offset:1024 lds"],
                [f"s_add_u32 m0, m0, 16384", "s_nop 0",
                 f"buffer_load_dwordx4 v2, s[12:15], {s(sGo)} offen lds"],
                [f"buffer_load_dwordx4 v2, s[12:15], {s(sGo)} offen offset:1024 lds",
                 f"s_add_u32 {s(sGo)}, {s(sGo)}, 16384"]]
    for st in range(R - 1):
        A(f"s_mov_b32 {s(sWr)}, {st*SLOT}")
        for g in dma_groups():
            for i in g: A(i)
    A(f"s_mov_b32 {s(sWr)}, {(R-1)*SLOT}")
    A("v_lshrrev_b32 v3, 2, v1")
    A("v_lshrrev_b32 v4, 4, v1")
    A("v_xor_b32 v3, v3, v4")
    A("v_and_b32 v3, 1, v3")
    A("v_cmp_eq_u32 vcc, 0, v3")
    A("v_mov_b32 v4, 0x3f803f80")
    A("s_nop 1")
    for i in range(4):
        A(f"v_cndmask_b32 {v(ONES+i)}, 0, v4, vcc")
    for i in range(16): A(f"v_mov_b32 {v(O+i)}, 0")
    for i in range(4): A(f"v_mov_b32 {v(L+i)}, 0")
    A("v_mov_b32 v3, v2")
    A(f"v_add_u32 v4, {SLOT}, v2")
    A(f"s_mov_b32 {s(sRd)}, {SLOT}")
    A(f"s_waitcnt vmcnt({4*(R-2)})")
    A("s_barrier")
    def kread(t, buf):
        a_ = 3 if t < 8 else 4
        return [f"ds_read_b128 {v(KF+8*buf+4*j,4)}, {v(a_)} offset:{(t%8)*2048+j*1024}" for j in range(2)]
    def vread(t, buf):
        a_ = 3 if t < 8 else 4
        return [f"ds_read_b128 {v(VF+8*buf+4*j,4)}, {v(a_)} offset:{16384+(t%8)*2048+j*1024}" for j in range(2)]
    for i in kread(0, 0): A(i)
    for i in kread(1, 1): A(i)
    for i in vread(0, 0): A(i)
    A("s_waitcnt lgkmcnt(4)")
    A(mf32(S0, KF, Q, "0"))
    A(mf32(S0, KF+4, Q+4))
    A("s_nop 15")
    A("s_nop 3")
    A(f"v_max3_f32 v5, {v(S0)}, {v(S0+1)}, {v(S0+2)}")
    for i in range(3, 15, 2):
        A(f"v_max3_f32 v5, v5, {v(S0+i)}, {v(S0+i+1)}")
    A(f"v_max_f32 v5, v5, {v(S0+15)}")
    A("v_mov_b32 v6, v5")
    A("s_nop 1")
    A("v_permlane32_swap_b32 v6, v5")
    A("s_nop 1")
    A("v_max_f32 v5, v5, v6")
    for i in range(16):
        A(f"v_sub_f32 {v(NEGM+i)}, 0, v5")
    for i in range(16):
        A(f"v_sub_f32 {v(S0+i)}, {v(S0+i)}, v5")
    A(f"s_mov_b32 {s(sCnt)}, 8")
    A.raw(".p2align 6")
    A.label("attn_loop")
    for t in range(8):
        c, n = S_[t % 2], S_[1 - t % 2]
        kb = (t + 1) % 2
        vb = t % 2
        Pb = P + 8 * (t % 2)
        ex = lambda i: f"v_exp_f32 {v(c+i)}, {v(c+i)}"
        cv = lambda i: f"v_cvt_pk_bf16_f32 {v(Pb+i)}, {v(c+2*i)}, {v(c+2*i+1)}"
        if t == 6:
            A(f"s_waitcnt vmcnt({4*(R-3)}) lgkmcnt(0)")
            A("s_barrier")
        else:
            A("s_waitcnt lgkmcnt(0)")
        D = dma_groups() if t == 6 else [[], [], [], []]
        kr = kread(t + 2, t % 2)
        vr = vread(t + 1, (t + 1) % 2)
        A(mf32(n, KF+8*kb, Q, v(NEGM, 16)))
        A(kr[0]); A(kr[1])
        for i in range(4): A(ex(i))
        A(mf32(n, KF+8*kb+4, Q+4))
        A(vr[0]); A(vr[1])
        for i in range(4, 8): A(ex(i))
        A(cv(0)); A(cv(1)); A(cv(2)); A(cv(3))
        for i in D[0]: A(i)
        A(ex(8)); A(ex(9))
        A(mf32(O, VF+8*vb, Pb))
        for i in D[1]: A(i)
        A(ex(10)); A(ex(11)); A(ex(12)); A(ex(13))
        A(mf16(L, ONES, Pb))
        for i in D[2]: A(i)
        A(ex(14)); A(ex(15))
        A(cv(4)); A(cv(5)); A(cv(6)); A(cv(7))
        for i in D[3]: A(i)
        if t == 7:
            A(f"s_add_u32 {s(sWr)}, {s(sWr)}, {SLOT}")
            A(f"s_and_b32 {s(sWr)}, {s(sWr)}, {SLOT*R-1}")
            A(f"s_add_u32 {s(sRd)}, {s(sRd)}, {SLOT}")
            A(f"s_and_b32 {s(sRd)}, {s(sRd)}, {SLOT*R-1}")
            A("v_mov_b32 v3, v4")
            A(f"v_add_u32 v4, {s(sRd)}, v2")
        else:
            A("s_nop 1")
        A(mf32(O, VF+8*vb+4, Pb+4))
        A(mf16(L, ONES, Pb+4))
    A(f"s_sub_u32 {s(sCnt)}, {s(sCnt)}, 1")
    A(f"s_cmp_lg_u32 {s(sCnt)}, 0")
    A("s_cbranch_scc1 attn_loop")
    A("s_waitcnt lgkmcnt(0)")
    A("s_nop 15")
    A(f"v_add_f32 v5, |{v(O)}|, {v(L)}")
    for i in range(1, 16):
        A(f"v_add_f32 v5, |{v(O+i)}|, v5")
    A(f"v_mov_b32 v6, {f32(2.0**120)}")
    A("v_cmp_nlt_f32 vcc, v5, v6")
    A("s_nop 1")
    A("s_cmp_eq_u64 vcc, 0")
    A("s_cbranch_scc0 attn_slow")
    A.label("attn_fin")
    A(f"v_rcp_f32 v5, {v(L)}")
    A("s_nop 0")
    for i in range(16):
        A(f"v_mul_f32 {v(O+i)}, {v(O+i)}, v5")
    for pc in range(2):
        for hh in range(2):
            run = pc + 2 * hh
            for j in range(2):
                A(f"v_cvt_pk_bf16_f32 {v(P+4*pc+2*hh+j)}, {v(O+4*run+2*j)}, {v(O+4*run+2*j+1)}")
    A("v_bfe_u32 v5, v1, 3, 1")
    A("v_lshlrev_b32 v5, 10, v5")
    A("v_bfe_u32 v6, v1, 4, 1")
    A("v_lshl_add_u32 v5, v6, 7, v5")
    A("v_and_b32 v6, 7, v1")
    A("v_lshl_add_u32 v5, v6, 4, v5")
    A("v_lshrrev_b32 v6, 5, v1")
    A("v_lshl_add_u32 v5, v6, 8, v5")
    A("s_lshl_b32 s28, s22, 3")
    A("s_add_u32 s28, s28, s20")
    A("s_lshl_b32 s28, s28, 11")
    A("s_lshl_b32 s29, s21, 17")
    A("s_add_u32 s28, s28, s29")
    A(f"buffer_store_dwordx4 {v(P,4)}, v5, s[36:39], s28 offen")
    A(f"buffer_store_dwordx4 {v(P+4,4)}, v5, s[36:39], s28 offen offset:512")
    A.label("attn_end")
    A("s_endpgm")
    A.label("attn_slow")
    A("s_waitcnt vmcnt(0)")
    A("v_mov_b32 v5, 0xff800000")
    A("s_mov_b32 s28, 0")
    A.label("attn_slow1")
    A(f"buffer_load_dwordx4 {v(KF,4)}, v2, s[8:11], s28 offen")
    A(f"buffer_load_dwordx4 {v(KF+4,4)}, v2, s[8:11], s28 offen offset:1024")
    A("s_waitcnt vmcnt(0)")
    A(mf32(S0, KF, Q, "0"))
    A(mf32(S0, KF+4, Q+4))
    A("s_nop 15")
    A("s_nop 3")
    for i in range(0, 16, 2):
        A(f"v_max3_f32 v5, v5, {v(S0+i)}, {v(S0+i+1)}")
    A("s_add_u32 s28, s28, 2048")
    A("s_cmp_lt_u32 s28, 131072")
    A("s_cbranch_scc1 attn_slow1")
    A("v_mov_b32 v6, v5")
    A("s_nop 1")
    A("v_permlane32_swap_b32 v6, v5")
    A("s_nop 1")
    A("v_max_f32 v5, v5, v6")
    for i in range(16): A(f"v_sub_f32 {v(NEGM+i)}, 0, v5")
    for i in range(16): A(f"v_mov_b32 {v(O+i)}, 0")
    for i in range(4): A(f"v_mov_b32 {v(L+i)}, 0")
    A("s_mov_b32 s28, 0")
    A.label("attn_slow2")
    A(f"buffer_load_dwordx4 {v(KF,4)}, v2, s[8:11], s28 offen")
    A(f"buffer_load_dwordx4 {v(KF+4,4)}, v2, s[8:11], s28 offen offset:1024")
    A(f"buffer_load_dwordx4 {v(VF,4)}, v2, s[12:15], s28 offen")
    A(f"buffer_load_dwordx4 {v(VF+4,4)}, v2, s[12:15], s28 offen offset:1024")
    A("s_waitcnt vmcnt(0)")
    A(mf32(S0, KF, Q, v(NEGM, 16)))
    A(mf32(S0, KF+4, Q+4))
    A("s_nop 15")
    A("s_nop 3")
    for i in range(16): A(f"v_exp_f32 {v(S0+i)}, {v(S0+i)}")
    A("s_nop 0")
    for i in range(8): A(f"v_cvt_pk_bf16_f32 {v(P+i)}, {v(S0+2*i)}, {v(S0+2*i+1)}")
    A("s_nop 1")
    A(mf32(O, VF, P))
    A(mf32(O, VF+4, P+4))
    A(mf16(L, ONES, P))
    A(mf16(L, ONES, P+4))
    A("s_nop 15")
    A("s_add_u32 s28, s28, 2048")
    A("s_cmp_lt_u32 s28, 131072")
    A("s_cbranch_scc1 attn_slow2")
    A("s_nop 15")
    A("s_branch attn_fin")
    return name, kernel_desc(name, 136, 48), (256, 512, R*SLOT)

def k_proj(A, name, K, ws_x, ka_w, is_wo):
    R, SLOT, NST = 6, 24576, K // 64
    STATS_LDS = R * SLOT
    kernel_begin(A, name)
    A("s_cmp_ge_u32 s2, 256")
    A(f"s_cbranch_scc1 {name}_end")
    A(f"s_load_dwordx2 s[4:5], s[0:1], {ka_w}")
    A(f"s_load_dwordx2 s[6:7], s[0:1], {KA_WS}")
    A(f"s_load_dwordx2 s[40:41], s[0:1], {KA_X if is_wo else KA_OUT}")
    wave_id(A, 20)
    lane_decomp(A)
    A("s_and_b32 s21, s2, 3")
    A("s_lshl_b32 s21, s21, 2")
    A("s_bfe_u32 s28, s2, 0x20003")
    A("s_add_u32 s21, s21, s28")
    A("s_bfe_u32 s22, s2, 0x10002")
    A("s_lshl_b32 s22, s22, 3")
    A("s_lshr_b32 s28, s2, 5")
    A("s_add_u32 s22, s22, s28")
    sRd, sWr, sXo, sWo, sCnt, sMX, sMW = 23, 24, 25, 26, 27, 30, 31
    A("s_lshr_b32 s28, s20, 2")
    A("s_lshl_b32 s28, s28, 7")
    A("s_lshl_b32 s29, s21, 3")
    A("s_add_u32 s28, s28, s29")
    A("s_and_b32 s29, s20, 3")
    A("s_lshl_b32 s29, s29, 1")
    A("s_add_u32 s28, s28, s29")
    A(f"s_lshl_b32 {s(sXo)}, s28, 10")
    A("s_lshl_b32 s28, s20, 14")
    A("s_lshl_b32 s29, s22, 7")
    A(f"s_add_u32 {s(sWo)}, s28, s29")
    A(f"s_lshl_b32 {s(sMX)}, s20, 11")
    A(f"s_lshl_b32 {s(sMW)}, s20, 10")
    A(f"s_add_u32 {s(sMW)}, {s(sMW)}, 16384")
    A("v_lshlrev_b32 v6, 4, v1")
    A("v_lshrrev_b32 v7, 3, v1")
    A("v_lshlrev_b32 v7, 11, v7")
    A("v_and_b32 v8, 7, v1")
    A("v_lshlrev_b32 v9, 1, v2")
    A("v_xor_b32 v8, v8, v9")
    A("v_lshl_add_u32 v7, v8, 4, v7")
    A("s_and_b32 s32, s20, 3")
    A("s_lshr_b32 s33, s20, 2")
    A("s_lshl_b32 s34, s22, 1")
    A("s_add_u32 s34, s34, s33")
    A("s_lshl_b32 s34, s34, 7")
    A("s_lshl_b32 s35, s21, 3")
    A("s_add_u32 s34, s34, s35")
    A("s_lshl_b32 s35, s32, 1")
    A("s_add_u32 s34, s34, s35")
    A("s_lshl_b32 s34, s34, 10")
    A("s_lshl_b32 s35, s21, 18")
    A("s_lshl_b32 s36, s32, 16")
    A("s_add_u32 s35, s35, s36")
    A("s_lshl_b32 s36, s22, 7")
    A("s_add_u32 s35, s35, s36")
    A("s_lshl_b32 s36, s33, 6")
    A("s_add_u32 s35, s35, s36")
    A("s_add_u32 s36, s35, 32768")
    A("s_waitcnt lgkmcnt(0)")
    srd(A, 8, 6, ws_x, 2048*K*2)
    srd(A, 12, 4, 0, K*2048)
    srd(A, 16, 6, WS_H, 4*MB)
    srd(A, 44, 40, 0, 4*MB)
    ACC = 32
    def acc(f, i): return ACC + (i * 2 + f) * 4
    SET = [48, 80]
    def xf(p, kk, i): return SET[p] + (kk * 2 + i) * 4
    def wf(p, kk, f): return SET[p] + 16 + (kk * 2 + f) * 4
    RES = 112
    if is_wo:
        A("v_lshlrev_b32 v8, 11, v5")
        A("v_lshl_add_u32 v8, v2, 3, v8")
        for i in range(2):
            for f in range(2):
                A(f"buffer_load_dwordx2 {v(RES+4*i+2*f,2)}, v8, s[44:47], {s(35+i)} offen offset:{f*32}")
        nres = 4
    else:
        for i in range(2):
            A(f"buffer_load_dwordx4 {v(RES+4*i,4)}, v6, s[16:19], s34 offen offset:{i*1024}")
        nres = 2
    def dma_groups():
        return [[f"s_add_u32 m0, {s(sWr)}, {s(sMX)}", "s_nop 0",
                 f"buffer_load_dwordx4 v6, s[8:11], {s(sXo)} offen lds"],
                [f"buffer_load_dwordx4 v6, s[8:11], {s(sXo)} offen offset:1024 lds",
                 f"s_add_u32 {s(sXo)}, {s(sXo)}, 0x40000"],
                [f"s_add_u32 m0, {s(sWr)}, {s(sMW)}", "s_nop 0",
                 f"buffer_load_dwordx4 v7, s[12:15], {s(sWo)} offen lds",
                 f"s_add_u32 {s(sWo)}, {s(sWo)}, {64*2048}"]]
    for st in range(R):
        A(f"s_mov_b32 {s(sWr)}, {st*SLOT}")
        for g in dma_groups():
            for i in g: A(i)
    A("s_lshl_b32 s28, s32, 11")
    A("v_add_u32 v10, s28, v6")
    A("v_lshl_add_u32 v11, v2, 2, v3")
    A("v_lshlrev_b32 v11, 7, v11")
    A("v_lshl_add_u32 v11, v4, 3, v11")
    A("v_add_u32 v11, 16384, v11")
    A("v_bfe_u32 v12, v1, 3, 2")
    A("s_lshl_b32 s29, s33, 1")
    A("v_xor_b32 v13, s29, v12")
    A("v_lshl_add_u32 v13, v13, 5, v11")
    A("v_xor_b32 v14, 32, v13")
    A(f"s_waitcnt vmcnt({3*R})")
    for i in range(2):
        for f in range(2):
            for h in range(2):
                src = RES + 4*i + 2*f + h
                A(f"v_lshlrev_b32 {v(acc(f,i)+2*h)}, 16, {v(src)}")
                A(f"v_and_b32 {v(acc(f,i)+2*h+1)}, 0xffff0000, {v(src)}")
    def reads(p):
        out = []
        for kk in range(2):
            for f in range(2):
                for t in range(2):
                    out.append([f"ds_read_b64_tr_b16 {v(wf(p,kk,f)+2*t,2)}, {v(17+f)} offset:{kk*4096+t*2048}"])
            for i in range(2):
                out.append([f"ds_read_b128 {v(xf(p,kk,i),4)}, v16 offset:{kk*8192+i*1024}"])
        return out
    def addr_upd():
        return [f"v_add_u32 v16, {s(sRd)}, v10", f"v_add_u32 v17, {s(sRd)}, v13", f"v_add_u32 v18, {s(sRd)}, v14"]
    A(f"s_mov_b32 {s(sRd)}, 0")
    for i in addr_upd(): A(i)
    A(f"s_waitcnt vmcnt({3*(R-1)})")
    A("s_barrier")
    for g in reads(0):
        for i in g: A(i)
    for i in ring_advance(A, sRd, sWr, SLOT, R): A(i)
    for i in addr_upd(): A(i)
    A(f"s_mov_b32 {s(sCnt)}, {NST//2}")
    A.raw(".p2align 6")
    A.label(f"{name}_loop")
    for p in range(2):
        A(f"s_waitcnt vmcnt({3*(R-2)}) lgkmcnt(0)")
        A("s_barrier")
        M = []
        for kk in range(2):
            for f in range(2):
                for i in range(2):
                    M.append(mf16(acc(f, i), wf(p, kk, f), xf(p, kk, i)))
        D = dma_groups()
        for g in D:
            for i in g: A(i)
        seq = interleave(M, reads(1 - p), 0, 6)
        for i in seq: A(i)
        for i in ring_advance(A, sRd, sWr, SLOT, R): A(i)
        for i in addr_upd(): A(i)
    A(f"s_sub_u32 {s(sCnt)}, {s(sCnt)}, 1")
    A(f"s_cmp_lg_u32 {s(sCnt)}, 0")
    A(f"s_cbranch_scc1 {name}_loop")
    A("s_waitcnt lgkmcnt(0)")
    A("s_nop 7")
    T = 112
    for i in range(2):
        for f in range(2):
            for h in range(2):
                A(f"v_cvt_pk_bf16_f32 {v(T+4*i+2*f+h)}, {v(acc(f,i)+2*h)}, {v(acc(f,i)+2*h+1)}")
    if is_wo:
        for i in range(2):
            A(f"buffer_store_dwordx4 {v(T+4*i,4)}, v6, s[16:19], s34 offen offset:{i*1024}")
        for i in range(2):
            sm, sq = 20 + 2*i, 21 + 2*i
            b = acc(0, i)
            A(f"v_add_f32 {v(sm)}, {v(b)}, {v(b+1)}")
            A(f"v_mul_f32 {v(sq)}, {v(b)}, {v(b)}")
            A(f"v_fmac_f32 {v(sq)}, {v(b+1)}, {v(b+1)}")
            for j in range(2, 8):
                A(f"v_add_f32 {v(sm)}, {v(sm)}, {v(b+j)}")
                A(f"v_fmac_f32 {v(sq)}, {v(b+j)}, {v(b+j)}")
        for j in range(4):
            reduce_rows16_32(A, 20 + j, 24)
        A("s_lshl_b32 s28, s32, 9")
        A("s_lshl_b32 s29, s33, 3")
        A("s_add_u32 s28, s28, s29")
        A(f"s_add_u32 s28, s28, {STATS_LDS}")
        A("v_lshlrev_b32 v24, 4, v5")
        A("v_add_u32 v24, s28, v24")
        A("ds_write_b64 v24, v[20:21]")
        A("ds_write_b64 v24, v[22:23] offset:256")
        A("s_waitcnt lgkmcnt(0)")
        A("s_barrier")
        A("s_cmp_ge_u32 s20, 2")
        A(f"s_cbranch_scc1 {name}_end")
        A("v_lshlrev_b32 v24, 4, v0")
        A(f"v_add_u32 v24, {STATS_LDS}, v24")
        A("ds_read_b128 v[20:23], v24")
        srd(A, 8, 6, WS_ST, 2048*128)
        A("v_lshlrev_b32 v24, 7, v0")
        A("s_lshl_b32 s28, s21, 14")
        A("s_lshl_b32 s29, s22, 3")
        A("s_add_u32 s28, s28, s29")
        A("s_waitcnt lgkmcnt(0)")
        A("v_add_f32 v20, v20, v22")
        A("v_add_f32 v21, v21, v23")
        A("buffer_store_dwordx2 v[20:21], v24, s[8:11], s28 offen")
    else:
        A("v_lshlrev_b32 v8, 11, v5")
        A("v_and_b32 v9, 1, v2")
        A("v_lshl_add_u32 v8, v9, 5, v8")
        A("v_lshrrev_b32 v9, 1, v2")
        A("v_lshl_add_u32 v8, v9, 4, v8")
        for i in range(2):
            A(f"v_permlane16_swap_b32 {v(T+4*i)}, {v(T+4*i+2)}")
            A(f"v_permlane16_swap_b32 {v(T+4*i+1)}, {v(T+4*i+3)}")
        A("s_nop 1")
        for i in range(2):
            A(f"buffer_store_dwordx4 {v(T+4*i,4)}, v8, s[44:47], {s(35+i)} offen")
    A.label(f"{name}_end")
    A("s_endpgm")
    return name, kernel_desc(name, 120, 48), (256, 512, R*SLOT + 2048)

def k_wo(A): return k_proj(A, "wo_kernel", 1024, WS_O, KA_WO, True)
def k_down(A): return k_proj(A, "down_kernel", 3584, WS_HACT, KA_WD, False)

def k_gu(A):
    name = "gu_kernel"
    R, SLOT, NST = 5, 30720, 32
    STATS_LDS = R * SLOT
    kernel_begin(A, name)
    A("s_cmp_ge_u32 s2, 256")
    A("s_cbranch_scc1 gu_end")
    A(f"s_load_dwordx4 s[40:43], s[0:1], {KA_WG}")
    A(f"s_load_dwordx2 s[6:7], s[0:1], {KA_WS}")
    wave_id(A, 20)
    lane_decomp(A)
    A("s_and_b32 s21, s2, 1")
    A("s_lshl_b32 s21, s21, 2")
    A("s_bfe_u32 s28, s2, 0x20003")
    A("s_add_u32 s21, s21, s28")
    A("s_bfe_u32 s22, s2, 0x20001")
    A("s_lshl_b32 s22, s22, 3")
    A("s_lshr_b32 s28, s2, 5")
    A("s_add_u32 s22, s22, s28")
    sRd, sWr, sXo, sWo, sCnt, sMX, sMW = 23, 24, 25, 26, 27, 30, 31
    A("s_lshl_b32 s28, s21, 4")
    A("s_lshl_b32 s29, s20, 1")
    A("s_add_u32 s28, s28, s29")
    A(f"s_lshl_b32 {s(sXo)}, s28, 10")
    A(f"s_mul_i32 s28, s20, {4*7168}")
    A("s_mul_i32 s29, s22, 224")
    A(f"s_add_u32 {s(sWo)}, s28, s29")
    A(f"s_lshl_b32 {s(sMX)}, s20, 11")
    A(f"s_mul_i32 {s(sMW)}, s20, 896")
    A(f"s_add_u32 {s(sMW)}, {s(sMW)}, 16384")
    A("v_lshlrev_b32 v6, 4, v1")
    A("v_mul_u32_u24 v7, 4682, v1")
    A("v_lshrrev_b32 v7, 16, v7")
    A("v_mul_u32_u24 v8, 14, v7")
    A("v_sub_u32 v8, v1, v8")
    A("v_mul_u32_u24 v7, 7168, v7")
    A("v_lshl_add_u32 v7, v8, 4, v7")
    A("s_mov_b32 s34, -1")
    A("s_mov_b32 s35, 0x00ffffff")
    A("s_waitcnt lgkmcnt(0)")
    srd(A, 8, 6, WS_H, 4*MB)
    srd(A, 12, 40, 0, 7*MB)
    srd(A, 16, 42, 0, 7*MB)
    srd(A, 44, 6, WS_ST, 2048*128)
    srd(A, 48, 6, WS_CS, 7168*4)
    srd(A, 52, 6, WS_HACT, 2048*3584*2)
    A("v_lshlrev_b32 v8, 6, v0")
    A("s_lshl_b32 s28, s21, 15")
    for j in range(4):
        A(f"buffer_load_dwordx4 {v(200+4*j,4)}, v8, s[44:47], s28 offen offset:{16*j}")
    A("s_and_b32 s36, s22, 1")
    A("s_cmp_eq_u32 s36, 1")
    A("s_cselect_b32 s37, 3, 0")
    A("s_cselect_b32 s38, 1, 4")
    A("s_cselect_b32 s39, 0, 6")
    A("s_cmp_ge_u32 s20, 4")
    A("s_cselect_b32 s37, s38, s37")
    A("s_mul_i32 s28, s22, 448")
    A("s_lshl_b32 s29, s37, 6")
    A("s_add_u32 s56, s28, s29")
    A(f"s_add_u32 s57, s56, {3584*4}")
    A("s_lshl_b32 s29, s39, 6")
    A("s_add_u32 s58, s28, s29")
    A(f"s_add_u32 s59, s58, {3584*4}")
    A("v_lshlrev_b32 v9, 4, v2")
    CSR = 160
    def dma_groups():
        return [[f"s_add_u32 m0, {s(sWr)}, {s(sMX)}", "s_nop 0",
                 f"buffer_load_dwordx4 v6, s[8:11], {s(sXo)} offen lds"],
                [f"buffer_load_dwordx4 v6, s[8:11], {s(sXo)} offen offset:1024 lds",
                 f"s_add_u32 {s(sXo)}, {s(sXo)}, 0x20000"],
                [f"s_add_u32 m0, {s(sWr)}, {s(sMW)}", "s_mov_b64 exec, s[34:35]",
                 f"buffer_load_dwordx4 v7, s[12:15], {s(sWo)} offen lds",
                 "s_mov_b64 exec, -1"],
                [f"s_add_u32 m0, m0, 7168", "s_mov_b64 exec, s[34:35]",
                 f"buffer_load_dwordx4 v7, s[16:19], {s(sWo)} offen lds",
                 "s_mov_b64 exec, -1",
                 f"s_add_u32 {s(sWo)}, {s(sWo)}, {32*7168}"]]
    A("s_and_b32 s32, s20, 3")
    A("s_lshl_b32 s28, s32, 12")
    A("v_add_u32 v10, s28, v6")
    A("v_lshl_add_u32 v11, v2, 2, v3")
    A("v_mul_u32_u24 v11, 224, v11")
    A("v_lshl_add_u32 v11, v4, 3, v11")
    A("v_add_u32 v11, 16384, v11")
    A("s_lshl_b32 s28, s39, 5")
    A("v_add_u32 v12, s28, v11")
    A("s_lshl_b32 s28, s37, 5")
    A("v_add_u32 v11, s28, v11")
    A("s_cmp_ge_u32 s20, 4")
    A("s_cbranch_scc1 gu_B")

    def body(nf, tag):
        def wsrc(j):
            if nf == 3 and j == 2: return 18, 0
            return 17, j * 32
        def cssrc(j):
            if nf == 3 and j == 2: return 58, 0
            return 56, j * 64
        ACC = 24
        def acc(j, gu, i): return ACC + ((j * 2 + gu) * 4 + i) * 4
        NS = 16 + nf * 8
        SET = [ACC + nf * 32, ACC + nf * 32 + NS]
        def xf(p, i): return SET[p] + i * 4
        def wf(p, j, gu): return SET[p] + 16 + (j * 2 + gu) * 4
        for j in range(nf):
            for gu in range(2):
                sb, imm = cssrc(j)
                A(f"buffer_load_dwordx4 {v(CSR+(j*2+gu)*4,4)}, v9, s[48:51], {s(sb+gu)} offen offset:{imm}")
        for st in range(R):
            A(f"s_mov_b32 {s(sWr)}, {st*SLOT}")
            for g in dma_groups():
                for i in g: A(i)
        A(f"s_waitcnt vmcnt({4*R + 2*nf})")
        A("v_add_f32 v200, v200, v202")
        A("v_add_f32 v201, v201, v203")
        for j in range(2, 8):
            A(f"v_add_f32 v200, v200, {v(200+2*j)}")
            A(f"v_add_f32 v201, v201, {v(201+2*j)}")
        A("s_nop 1")
        A("v_add_f32_dpp v200, v200, v200 quad_perm:[1,0,3,2] row_mask:0xf bank_mask:0xf")
        A("v_add_f32_dpp v201, v201, v201 quad_perm:[1,0,3,2] row_mask:0xf bank_mask:0xf")
        A(f"v_mul_f32 v200, {f32(1/1024)}, v200")
        A(f"v_mul_f32 v201, {f32(1/1024)}, v201")
        A("v_fma_f32 v201, -v200, v200, v201")
        A("v_max_f32 v201, 0, v201")
        A(f"v_add_f32 v201, {f32(1e-5)}, v201")
        A("v_sqrt_f32 v201, v201")
        A("v_sub_f32 v200, 0, v200")
        A("v_lshrrev_b32 v202, 1, v0")
        A("v_lshlrev_b32 v202, 3, v202")
        A(f"v_add_u32 v202, {STATS_LDS}, v202")
        A("ds_write_b64 v202, v[200:201]")
        A("s_waitcnt lgkmcnt(0)")
        A("s_barrier")
        A("s_lshl_b32 s28, s32, 9")
        A(f"s_add_u32 s28, s28, {STATS_LDS}")
        A("v_lshlrev_b32 v202, 3, v5")
        A("v_add_u32 v202, s28, v202")
        ST = 248
        for i in range(4):
            A(f"ds_read_b64 {v(ST+2*i,2)}, v202 offset:{i*128}")
        A(f"s_waitcnt vmcnt({4*R}) lgkmcnt(0)")
        for j in range(nf):
            for gu in range(2):
                for i in range(4):
                    for r in range(4):
                        A(f"v_mul_f32 {v(acc(j,gu,i)+r)}, {v(ST+2*i)}, {v(CSR+(j*2+gu)*4+r)}")
        def reads(p):
            out = []
            for i in range(4):
                out.append([f"ds_read_b128 {v(xf(p,i),4)}, v16 offset:{i*1024}"])
            for j in range(nf):
                ar, imm = wsrc(j)
                for gu in range(2):
                    for t in range(2):
                        out.append([f"ds_read_b64_tr_b16 {v(wf(p,j,gu)+2*t,2)}, {v(ar)} offset:{imm+gu*7168+t*3584}"])
            return out
        def addr_upd():
            o = [f"v_add_u32 v16, {s(sRd)}, v10", f"v_add_u32 v17, {s(sRd)}, v11"]
            if nf == 3: o.append(f"v_add_u32 v18, {s(sRd)}, v12")
            return o
        A(f"s_mov_b32 {s(sRd)}, 0")
        for i in addr_upd(): A(i)
        A(f"s_waitcnt vmcnt({4*(R-1)})")
        A("s_barrier")
        for g in reads(0):
            for i in g: A(i)
        for i in ring_advance(A, sRd, sWr, SLOT, R): A(i)
        for i in addr_upd(): A(i)
        A(f"s_mov_b32 {s(sCnt)}, {NST//2}")
        A.raw(".p2align 6")
        A.label(f"gu_loop{tag}")
        for p in range(2):
            A(f"s_waitcnt vmcnt({4*(R-2)}) lgkmcnt(0)")
            A("s_barrier")
            M = []
            for j in range(nf):
                for gu in range(2):
                    for i in range(4):
                        M.append(mf16(acc(j, gu, i), wf(p, j, gu), xf(p, i)))
            Rd = reads(1 - p)
            D = dma_groups()
            fill = []
            di = 0
            for j, r in enumerate(Rd):
                if j % 4 == 0 and di < len(D):
                    fill.append(D[di]); di += 1
                fill.append(r)
            seq = interleave(M, fill, 0, len(M) - 4)
            for i in seq: A(i)
            for i in ring_advance(A, sRd, sWr, SLOT, R): A(i)
            for i in addr_upd(): A(i)
        A(f"s_sub_u32 {s(sCnt)}, {s(sCnt)}, 1")
        A(f"s_cmp_lg_u32 {s(sCnt)}, 0")
        A(f"s_cbranch_scc1 gu_loop{tag}")
        A("s_waitcnt lgkmcnt(0)")
        for i in range(4):
            A(f"v_rcp_f32 {v(ST+2*i)}, {v(ST+2*i+1)}")
        A("s_nop 0")
        for i in range(4):
            A(f"v_mul_f32 {v(ST+2*i)}, {f32(-math.log2(math.e))}, {v(ST+2*i)}")
        A("s_mul_i32 s28, s22, 7")
        A("s_add_u32 s29, s28, s37")
        A("s_lshr_b32 s29, s29, 1")
        A("s_lshl_b32 s29, s29, 17")
        A("s_lshl_b32 s33, s21, 4")
        A("s_lshl_b32 s36, s32, 2")
        A("s_add_u32 s33, s33, s36")
        A("s_lshl_b32 s33, s33, 10")
        A("s_add_u32 s56, s29, s33")
        A("s_add_u32 s57, s56, 0x20000")
        A("s_add_u32 s29, s28, s39")
        A("s_and_b32 s36, s29, 1")
        A("s_lshl_b32 s36, s36, 3")
        A("s_lshr_b32 s29, s29, 1")
        A("s_lshl_b32 s29, s29, 17")
        A("s_add_u32 s58, s29, s33")
        A("s_add_u32 s58, s58, s36")
        T = SET[0]
        tix = 0
        for jp in range(2):
            js = [2*jp, 2*jp+1] if 2*jp+1 < nf else [2*jp]
            for i in range(4):
                dst = T + 4 * (tix % 8); tix += 1
                for jj, j in enumerate(js):
                    g_, u_ = acc(j, 0, i), acc(j, 1, i)
                    for r in range(4): A(f"v_mul_f32 {v(g_+r)}, {v(ST+2*i)}, {v(g_+r)}")
                    for r in range(4): A(f"v_exp_f32 {v(g_+r)}, {v(g_+r)}")
                    for r in range(4): A(f"v_fma_f32 {v(g_+r)}, {v(g_+r)}, {v(ST+2*i+1)}, {v(ST+2*i+1)}")
                    for r in range(4): A(f"v_rcp_f32 {v(g_+r)}, {v(g_+r)}")
                    for r in range(4): A(f"v_mul_f32 {v(u_+r)}, {v(u_+r)}, {v(g_+r)}")
                    for h in range(2):
                        A(f"v_cvt_pk_bf16_f32 {v(dst+2*jj+h)}, {v(u_+2*h)}, {v(u_+2*h+1)}")
                if len(js) == 2:
                    A(f"buffer_store_dwordx4 {v(dst,4)}, v6, s[52:55], {s(56+jp)} offen offset:{i*1024}")
                else:
                    A(f"buffer_store_dwordx2 {v(dst,2)}, v6, s[52:55], s58 offen offset:{i*1024}")
        A("s_endpgm")
    body(4, "A")
    A.label("gu_B")
    body(3, "B")
    A.label("gu_end")
    A("s_endpgm")
    return name, kernel_desc(name, 256, 64), (256, 512, R*SLOT + 2048)
```

```python
import sys, math
from asmlib import *

MB = 1 << 20
WS_XN, WS_Q, WS_K, WS_VT, WS_O, WS_H, WS_ST, WS_CS, WS_HACT = 0, 4*MB, 8*MB, 12*MB, 16*MB, 20*MB, 24*MB, 25*MB, 32*MB
KA_X, KA_WQKV, KA_WO, KA_BX, KA_WG, KA_WU, KA_WD, KA_OUT, KA_DBG, KA_WS = 0, 8, 16, 24, 32, 40, 48, 56, 64, 72
import struct
def f32(x):
    return hex(struct.unpack("<I", struct.pack("<f", x))[0])

QSCALE = math.log2(math.e) / math.sqrt(32.0)

def mf16(d, A_, B_, c=None):
    c = v(d, 4) if c is None else c
    return f"v_mfma_f32_16x16x32_bf16 {v(d,4)}, {v(A_,4)}, {v(B_,4)}, {c}"
def mf32(d, A_, B_, c=None):
    c = v(d, 16) if c is None else c
    return f"v_mfma_f32_32x32x16_bf16 {v(d,16)}, {v(A_,4)}, {v(B_,4)}, {c}"

def wave_id(A, sd, vt=1):
    A(f"v_lshrrev_b32 {v(vt)}, 6, v0")
    A("s_nop 0")
    A(f"v_readfirstlane_b32 {s(sd)}, {v(vt)}")

def reduce_rows16_32(A, x, t):
    A(f"v_mov_b32 {v(t)}, {v(x)}")
    A("s_nop 1")
    A(f"v_permlane16_swap_b32 {v(t)}, {v(x)}")
    A("s_nop 1")
    A(f"v_add_f32 {v(x)}, {v(x)}, {v(t)}")
    A(f"v_mov_b32 {v(t)}, {v(x)}")
    A("s_nop 1")
    A(f"v_permlane32_swap_b32 {v(t)}, {v(x)}")
    A("s_nop 1")
    A(f"v_add_f32 {v(x)}, {v(x)}, {v(t)}")

def k_ln(A):
    name = "ln_kernel"
    kernel_begin(A, name)
    A("s_cmp_ge_u32 s2, 480")
    A("s_cbranch_scc1 ln_end")
    A(f"s_load_dwordx2 s[4:5], s[0:1], {KA_X}")
    A(f"s_load_dwordx2 s[6:7], s[0:1], {KA_WS}")
    A(f"s_load_dwordx4 s[20:23], s[0:1], {KA_WG}")
    A("v_and_b32 v1, 63, v0")
    A("v_lshrrev_b32 v2, 6, v0")
    A("s_cmp_ge_u32 s2, 256")
    A("s_cbranch_scc1 ln_colsum")
    A("v_and_b32 v3, 7, v1")
    A("v_bfe_u32 v4, v1, 3, 2")
    A("v_lshrrev_b32 v5, 5, v1")
    A("v_lshlrev_b32 v6, 11, v3")
    A("v_lshl_add_u32 v6, v2, 9, v6")
    A("v_lshl_add_u32 v6, v5, 6, v6")
    A("v_lshl_add_u32 v6, v4, 3, v6")
    A("s_lshl_b32 s3, s2, 14")
    A("s_waitcnt lgkmcnt(0)")
    srd(A, 8, 4, 0, 4*MB)
    srd(A, 12, 6, WS_XN, 4*MB)
    for i in range(4):
        A(f"buffer_load_dwordx2 {v(8+4*i,2)}, v6, s[8:11], s3 offen offset:{i*128}")
        A(f"buffer_load_dwordx2 {v(10+4*i,2)}, v6, s[8:11], s3 offen offset:{i*128+32}")
    A("v_lshl_add_u32 v7, v2, 3, v5")
    A("v_lshlrev_b32 v7, 17, v7")
    A("v_lshl_add_u32 v7, v3, 4, v7")
    A("v_lshl_add_u32 v7, v4, 8, v7")
    A("s_lshr_b32 s16, s2, 1")
    A("s_lshl_b32 s16, s16, 10")
    A("s_and_b32 s17, s2, 1")
    A("s_lshl_b32 s17, s17, 7")
    A("s_add_u32 s16, s16, s17")
    A("s_add_u32 s17, s16, 0x40000")
    A("s_add_u32 s18, s16, 0x80000")
    A("s_add_u32 s19, s16, 0xc0000")
    A("v_mov_b32 v24, 0")
    A("v_mov_b32 v25, 0")
    for j in range(16):
        if j % 2 == 0:
            A(f"s_waitcnt vmcnt({7 - j//2})")
        A(f"v_lshlrev_b32 {v(32+2*j)}, 16, {v(8+j)}")
        A(f"v_and_b32 {v(33+2*j)}, 0xffff0000, {v(8+j)}")
        A(f"v_add_f32 v24, v24, {v(32+2*j)}")
        A(f"v_fmac_f32 v25, {v(32+2*j)}, {v(32+2*j)}")
        A(f"v_add_f32 v24, v24, {v(33+2*j)}")
        A(f"v_fmac_f32 v25, {v(33+2*j)}, {v(33+2*j)}")
    A("s_nop 1")
    A("v_add_f32_dpp v24, v24, v24 row_ror:8 row_mask:0xf bank_mask:0xf")
    A("v_add_f32_dpp v25, v25, v25 row_ror:8 row_mask:0xf bank_mask:0xf")
    reduce_rows16_32(A, 24, 26)
    reduce_rows16_32(A, 25, 27)
    A("v_lshlrev_b32 v26, 5, v3")
    A("v_lshl_add_u32 v27, v2, 3, v26")
    A("ds_write_b64 v27, v[24:25]")
    A("s_waitcnt lgkmcnt(0)")
    A("s_barrier")
    A("ds_read_b128 v[64:67], v26")
    A("ds_read_b128 v[68:71], v26 offset:16")
    A("s_waitcnt lgkmcnt(0)")
    A("v_add_f32 v24, v64, v66")
    A("v_add_f32 v25, v65, v67")
    A("v_add_f32 v26, v68, v70")
    A("v_add_f32 v27, v69, v71")
    A("v_add_f32 v24, v24, v26")
    A("v_add_f32 v25, v25, v27")
    A(f"v_mul_f32 v24, {f32(1/1024)}, v24")
    A(f"v_mul_f32 v25, {f32(1/1024)}, v25")
    A("v_fma_f32 v25, -v24, v24, v25")
    A("v_max_f32 v25, 0, v25")
    A(f"v_add_f32 v25, {f32(1e-5)}, v25")
    A("v_rsq_f32 v25, v25")
    A("s_nop 0")
    A("v_mul_f32 v24, v24, v25")
    for j in range(16):
        A(f"v_fma_f32 {v(32+2*j)}, {v(32+2*j)}, v25, -v24")
        A(f"v_fma_f32 {v(33+2*j)}, {v(33+2*j)}, v25, -v24")
        A(f"v_cvt_pk_bf16_f32 {v(8+j)}, {v(32+2*j)}, {v(33+2*j)}")
        if j % 4 == 3:
            A(f"buffer_store_dwordx4 {v(8+j-3,4)}, v7, s[12:15], {s(16+j//4)} offen")
    A("s_endpgm")
    A.label("ln_colsum")
    A("s_sub_u32 s3, s2, 256")
    A("s_waitcnt lgkmcnt(0)")
    A("s_cmp_ge_u32 s3, 112")
    A("s_cselect_b32 s8, s22, s20")
    A("s_cselect_b32 s9, s23, s21")
    A(f"s_mov_b32 s10, {7*MB}")
    A("s_mov_b32 s11, 0x20000")
    A("s_cselect_b32 s16, 112, 0")
    A("s_sub_u32 s16, s3, s16")
    A("s_lshl_b32 s16, s16, 6")
    srd(A, 12, 6, WS_CS, 7168*4)
    A("v_lshrrev_b32 v3, 2, v0")
    A("v_and_b32 v4, 3, v0")
    A("s_mov_b32 s17, 7168")
    A("v_mul_lo_u32 v5, v3, s17")
    A("v_lshl_add_u32 v5, v4, 4, v5")
    for i in range(16):
        A(f"buffer_load_dwordx4 {v(8+4*i,4)}, v5, s[8:11], s16 offen")
        A(f"s_add_u32 s16, s16, {64*7168}")
    for j in range(8):
        A(f"v_mov_b32 {v(80+j)}, 0")
    for i in range(16):
        A(f"s_waitcnt vmcnt({15-i})")
        for j in range(4):
            A(f"v_lshlrev_b32 v6, 16, {v(8+4*i+j)}")
            A(f"v_and_b32 v7, 0xffff0000, {v(8+4*i+j)}")
            A(f"v_add_f32 {v(80+2*j)}, {v(80+2*j)}, v6")
            A(f"v_add_f32 {v(81+2*j)}, {v(81+2*j)}, v7")
    A("s_nop 1")
    for j in range(8):
        A(f"v_add_f32_dpp {v(80+j)}, {v(80+j)}, {v(80+j)} row_ror:4 row_mask:0xf bank_mask:0xf")
    for j in range(8):
        A(f"v_add_f32_dpp {v(80+j)}, {v(80+j)}, {v(80+j)} row_ror:8 row_mask:0xf bank_mask:0xf")
    for j in range(8):
        reduce_rows16_32(A, 80+j, 6)
    A("v_lshlrev_b32 v6, 7, v2")
    A("v_lshl_add_u32 v6, v4, 5, v6")
    A("ds_write_b128 v6, v[80:83]")
    A("ds_write_b128 v6, v[84:87] offset:16")
    A("s_waitcnt lgkmcnt(0)")
    A("s_barrier")
    A("v_and_b32 v6, 31, v0")
    A("v_lshlrev_b32 v6, 2, v6")
    for w in range(4):
        A(f"ds_read_b32 {v(8+w)}, v6 offset:{w*128}")
    A("s_waitcnt lgkmcnt(0)")
    A("v_add_f32 v8, v8, v9")
    A("v_add_f32 v10, v10, v11")
    A("v_add_f32 v8, v8, v10")
    A("s_lshl_b32 s3, s3, 7")
    A("v_cmp_gt_u32 vcc, 32, v0")
    A("s_and_saveexec_b64 s[18:19], vcc")
    A("s_cbranch_execz ln_end")
    A("buffer_store_dword v8, v6, s[12:15], s3 offen")
    A.label("ln_end")
    A("s_endpgm")
    return name, kernel_desc(name, 96, 32), (480, 256, 1024)

def lane_decomp(A):
    A("v_and_b32 v1, 63, v0")
    A("v_lshrrev_b32 v2, 4, v1")
    A("v_bfe_u32 v3, v1, 2, 2")
    A("v_and_b32 v4, 3, v1")
    A("v_and_b32 v5, 15, v1")

def ring_advance(A, sRd, sWr, slot, R):
    return [f"s_mov_b32 {s(sWr)}, {s(sRd)}",
            f"s_add_u32 {s(sRd)}, {s(sRd)}, {slot}",
            f"s_cmp_eq_u32 {s(sRd)}, {slot*R}",
            f"s_cselect_b32 {s(sRd)}, 0, {s(sRd)}"]

def k_qkv(A):
    name = "qkv_kernel"
    R, SLOT, NST = 4, 40960, 16
    kernel_begin(A, name)
    A("s_cmp_ge_u32 s2, 256")
    A("s_cbranch_scc1 qkv_end")
    A(f"s_load_dwordx2 s[4:5], s[0:1], {KA_WQKV}")
    A(f"s_load_dwordx2 s[6:7], s[0:1], {KA_WS}")
    wave_id(A, 20)
    lane_decomp(A)
    A("s_and_b32 s21, s2, 1")
    A("s_lshl_b32 s21, s21, 3")
    A("s_bfe_u32 s28, s2, 0x30003")
    A("s_add_u32 s21, s21, s28")
    A("s_bfe_u32 s22, s2, 0x20001")
    A("s_lshl_b32 s22, s22, 2")
    A("s_lshr_b32 s28, s2, 6")
    A("s_add_u32 s22, s22, s28")
    sW, sRd, sWr, sXo, sWo, sCnt, sMX, sMW = 20, 23, 24, 25, 26, 27, 30, 31
    A("s_lshr_b32 s28, s20, 2")
    A("s_lshl_b32 s28, s28, 7")
    A("s_lshl_b32 s29, s21, 3")
    A("s_add_u32 s28, s28, s29")
    A("s_and_b32 s29, s20, 3")
    A("s_lshl_b32 s29, s29, 1")
    A("s_add_u32 s28, s28, s29")
    A(f"s_lshl_b32 {s(sXo)}, s28, 10")
    A("s_mul_i32 s28, s20, 49152")
    A("s_lshl_b32 s29, s22, 7")
    A(f"s_add_u32 {s(sWo)}, s28, s29")
    A(f"s_lshl_b32 {s(sMX)}, s20, 11")
    A(f"s_lshl_b32 {s(sMW)}, s20, 10")
    A(f"s_add_u32 {s(sMW)}, {s(sMW)}, 16384")
    A("v_lshlrev_b32 v6, 4, v1")
    A("v_lshrrev_b32 v7, 3, v1")
    A("v_mul_u32_u24 v7, 6144, v7")
    A("v_and_b32 v8, 7, v1")
    A("v_lshlrev_b32 v9, 1, v2")
    A("v_xor_b32 v8, v8, v9")
    A("v_lshl_add_u32 v7, v8, 4, v7")
    A("v_add_u32 v8, 2048, v7")
    A("v_add_u32 v9, 4096, v7")
    A("s_waitcnt lgkmcnt(0)")
    srd(A, 8, 6, WS_XN, 4*MB)
    srd(A, 12, 4, 0, 6*MB)
    srd(A, 16, 6, WS_Q, 12*MB)
    def dma_groups(wr_expr_s):
        g = []
        g.append([f"s_add_u32 m0, {s(wr_expr_s)}, {s(sMX)}", "s_nop 0",
                  f"buffer_load_dwordx4 v6, s[8:11], {s(sXo)} offen lds"])
        g.append([f"buffer_load_dwordx4 v6, s[8:11], {s(sXo)} offen offset:1024 lds",
                  f"s_add_u32 {s(sXo)}, {s(sXo)}, 0x40000"])
        g.append([f"s_add_u32 m0, {s(wr_expr_s)}, {s(sMW)}", "s_nop 0",
                  f"buffer_load_dwordx4 v7, s[12:15], {s(sWo)} offen lds"])
        g.append([f"s_add_u32 m0, m0, 8192", "s_nop 0",
                  f"buffer_load_dwordx4 v8, s[12:15], {s(sWo)} offen lds"])
        g.append([f"s_add_u32 m0, m0, 8192", "s_nop 0",
                  f"buffer_load_dwordx4 v9, s[12:15], {s(sWo)} offen lds",
                  f"s_add_u32 {s(sWo)}, {s(sWo)}, {64*6144}"])
        return g
    for st in range(R):
        A(f"s_mov_b32 {s(sWr)}, {st*SLOT}")
        for g in dma_groups(sWr):
            for i in g: A(i)
    A("s_and_b32 s28, s20, 1")
    A("s_lshl_b32 s28, s28, 12")
    A("v_add_u32 v10, s28, v6")
    A("v_lshl_add_u32 v11, v2, 2, v3")
    A("v_lshlrev_b32 v11, 7, v11")
    A("v_lshl_add_u32 v11, v4, 3, v11")
    A("v_add_u32 v11, 16384, v11")
    A("v_bfe_u32 v12, v1, 3, 2")
    A("s_lshr_b32 s28, s20, 1")
    A("s_and_b32 s29, s28, 1")
    A("s_lshl_b32 s29, s29, 1")
    A("s_lshr_b32 s32, s28, 1")
    A("s_lshl_b32 s32, s32, 13")
    A("v_xor_b32 v13, s29, v12")
    A("v_lshl_add_u32 v13, v13, 5, v11")
    A("v_add_u32 v13, s32, v13")
    A("v_xor_b32 v14, 32, v13")
    A("v_xor_b32 v15, s28, v12")
    A("v_lshl_add_u32 v15, v15, 5, v11")
    A("v_add_u32 v15, 16384, v15")
    ACC = 64
    def acc(f, i): return ACC + (f * 4 + i) * 4
    SET = [112, 168]
    def xf(p, kk, i): return SET[p] + (kk * 4 + i) * 4
    def wf(p, kk, f): return SET[p] + 32 + (kk * 3 + f) * 4
    for i in range(48):
        A(f"v_mov_b32 {v(ACC+i)}, 0")
    def reads(p):
        out = []
        for kk in range(2):
            for f in range(3):
                for t in range(2):
                    out.append([f"ds_read_b64_tr_b16 {v(wf(p,kk,f)+2*t,2)}, {v(17+f)} offset:{kk*4096+t*2048}"])
            for i in range(4):
                out.append([f"ds_read_b128 {v(xf(p,kk,i),4)}, v16 offset:{kk*8192+i*1024}"])
        return out
    def addr_upd():
        return [f"v_add_u32 v16, {s(sRd)}, v10", f"v_add_u32 v17, {s(sRd)}, v13",
                f"v_add_u32 v18, {s(sRd)}, v14", f"v_add_u32 v19, {s(sRd)}, v15"]
    A(f"s_mov_b32 {s(sRd)}, 0")
    for i in addr_upd(): A(i)
    A(f"s_waitcnt vmcnt({5*(R-1)})")
    A("s_barrier")
    for g in reads(0):
        for i in g: A(i)
    for i in ring_advance(A, sRd, sWr, SLOT, R): A(i)
    for i in addr_upd(): A(i)
    A(f"s_mov_b32 {s(sCnt)}, {NST//2}")
    A.raw(".p2align 6")
    A.label("qkv_loop")
    for p in range(2):
        A(f"s_waitcnt vmcnt({5*(R-2)}) lgkmcnt(0)")
        A("s_barrier")
        M = []
        for kk in range(2):
            for f in range(3):
                for i in range(4):
                    if f < 2: M.append(mf16(acc(f, i), wf(p, kk, f), xf(p, kk, i)))
                    else:     M.append(mf16(acc(f, i), xf(p, kk, i), wf(p, kk, f)))
        Rd = reads(1 - p)
        D = dma_groups(sWr)
        fill = []
        di = 0
        for j, r in enumerate(Rd):
            if j % 4 == 0 and di < len(D):
                fill.append(D[di]); di += 1
            fill.append(r)
        seq = interleave(M, fill, 0, 20)
        for i in seq: A(i)
        for i in ring_advance(A, sRd, sWr, SLOT, R): A(i)
        for i in addr_upd(): A(i)
    A(f"s_sub_u32 {s(sCnt)}, {s(sCnt)}, 1")
    A(f"s_cmp_lg_u32 {s(sCnt)}, 0")
    A("s_cbranch_scc1 qkv_loop")
    A("s_waitcnt lgkmcnt(0)")
    A("v_lshlrev_b32 v6, 9, v2")
    A("v_lshrrev_b32 v7, 3, v5")
    A("v_lshl_add_u32 v7, v7, 8, v6")
    A("v_and_b32 v8, 7, v5")
    A("v_lshl_add_u32 v7, v8, 4, v7")
    A("v_lshl_add_u32 v8, v5, 4, v6")
    A("s_lshr_b32 s28, s20, 1")
    A("s_and_b32 s29, s28, 1")
    A("s_lshr_b32 s32, s28, 1")
    A("s_and_b32 s33, s20, 1")
    A("s_lshl_b32 s34, s21, 2")
    A("s_lshl_b32 s33, s33, 1")
    A("s_add_u32 s34, s34, s33")
    A("s_lshl_b32 s34, s34, 11")
    A("s_lshl_b32 s35, s22, 1")
    A("s_add_u32 s36, s35, s29")
    A("s_lshl_b32 s36, s36, 17")
    A("s_add_u32 s36, s36, s34")
    A("s_lshl_b32 s37, s32, 22")
    A("s_add_u32 s36, s36, s37")
    A("s_add_u32 s38, s35, s32")
    A("s_lshl_b32 s38, s38, 17")
    A("s_add_u32 s38, s38, s34")
    A("s_lshl_b32 s37, s29, 8")
    A("s_add_u32 s38, s38, s37")
    A(f"s_add_u32 s38, s38, {8*MB}")
    A("s_cmp_eq_u32 s32, 0")
    A(f"s_cselect_b32 s39, {f32(QSCALE)}, 1.0")
    A("s_nop 4")
    T = 112
    for i in range(4):
        for f in range(2):
            for r in range(4):
                A(f"v_mul_f32 {v(acc(f,i)+r)}, s39, {v(acc(f,i)+r)}")
        for f in range(2):
            for h in range(2):
                A(f"v_cvt_pk_bf16_f32 {v(T+4*i+2*f+h)}, {v(acc(f,i)+2*h)}, {v(acc(f,i)+2*h+1)}")
        A(f"buffer_store_dwordx4 {v(T+4*i,4)}, v7, s[16:19], s36 offen offset:{(i>>1)*2048+(i&1)*128}")
    T = 128
    for pr in range(2):
        for ii in range(2):
            for h in range(2):
                A(f"v_cvt_pk_bf16_f32 {v(T+4*pr+2*ii+h)}, {v(acc(2,2*pr+ii)+2*h)}, {v(acc(2,2*pr+ii)+2*h+1)}")
        A(f"buffer_store_dwordx4 {v(T+4*pr,4)}, v8, s[16:19], s38 offen offset:{pr*2048}")
    A.label("qkv_end")
    A("s_endpgm")
    return name, kernel_desc(name, 224, 48), (256, 512, R*SLOT)

HEADER = open("sequential_preLN__mha_block__glu_gated_glu__prompt.s.ref").read().split("; Override launch")[0]

def build(kernels, path):
    A = Asm()
    infos = [k(A) for k in kernels]
    out = HEADER
    for name, _, (g, b, lds) in infos:
        out += f"; @launch kernel={name} grid=({g},1,1) block=({b},1,1) lds={lds}\n"
    out += '.amdgcn_target "amdgcn-amd-amdhsa--gfx950"\n.text\n'
    out += A.text()
    out += '.section .rodata,"a"\n'
    for _, kd, _ in infos:
        out += kd
    open(path, "w").write(out)

if __name__ == "__main__":
    from gen2 import k_attn, k_wo, k_gu, k_down
    build([k_ln, k_qkv, k_attn, k_wo, k_gu, k_down], sys.argv[1] if len(sys.argv) > 1 else "sequential_preLN__mha_block__glu_gated_glu__prompt.s")
```

```python
from g import *

def k_proj(A, name, K, ws_x, ka_w, is_wo):
    R, SLOT, NST = 6, 24576, K // 64
    STATS_LDS = R * SLOT
    kernel_begin(A, name)
    A("s_cmp_ge_u32 s2, 256")
    A(f"s_cbranch_scc1 {name}_end")
    A(f"s_load_dwordx2 s[4:5], s[0:1], {ka_w}")
    A(f"s_load_dwordx2 s[6:7], s[0:1], {KA_WS}")
    A(f"s_load_dwordx2 s[40:41], s[0:1], {KA_X if is_wo else KA_OUT}")
    wave_id(A, 20)
    lane_decomp(A)
    A("s_and_b32 s21, s2, 3")
    A("s_lshl_b32 s21, s21, 2")
    A("s_bfe_u32 s28, s2, 0x20003")
    A("s_add_u32 s21, s21, s28")
    A("s_bfe_u32 s22, s2, 0x10002")
    A("s_lshl_b32 s22, s22, 3")
    A("s_lshr_b32 s28, s2, 5")
    A("s_add_u32 s22, s22, s28")
    A("s_lshr_b32 s28, s20, 2")
    A("s_lshl_b32 s28, s28, 7")
    A("s_lshl_b32 s29, s21, 3")
    A("s_add_u32 s28, s28, s29")
    A("s_and_b32 s29, s20, 3")
    A("s_lshl_b32 s29, s29, 1")
    A("s_add_u32 s28, s28, s29")
    A(f"s_lshl_b32 {s(sXo)}, s28, 10")
    A("s_lshl_b32 s28, s20, 14")
    A("s_lshl_b32 s29, s22, 7")
    A(f"s_add_u32 {s(sWo)}, s28, s29")
    A(f"s_lshl_b32 {s(sMX)}, s20, 11")
    A(f"s_lshl_b32 {s(sMW)}, s20, 10")
    A(f"s_add_u32 {s(sMW)}, {s(sMW)}, 16384")
    A("v_lshlrev_b32 v6, 4, v1")
    A("v_lshrrev_b32 v7, 3, v1")
    A("v_lshlrev_b32 v7, 11, v7")
    A("v_and_b32 v8, 7, v1")
    A("v_lshlrev_b32 v9, 1, v2")
    A("v_xor_b32 v8, v8, v9")
    A("v_lshl_add_u32 v7, v8, 4, v7")
    A("s_waitcnt lgkmcnt(0)")
    stamp(A, 0)
    srd(A, 8, 6, ws_x, 2048*K*2)
    srd(A, 12, 4, 0, K*2048)
    ACC = 32
    def acc(f, i): return ACC + (i * 2 + f) * 4
    SET = [48, 80]
    def xf(p, kk, i): return SET[p] + (kk * 2 + i) * 4
    def wf(p, kk, f): return SET[p] + 16 + (kk * 2 + f) * 4
    RES = 112
    nres = 4 if is_wo else 2
    def dma_groups():
        return [[f"s_add_u32 m0, {s(sWr)}, {s(sMX)}", "s_nop 0",
                 f"buffer_load_dwordx4 v6, s[8:11], {s(sXo)} offen lds"],
                [f"buffer_load_dwordx4 v6, s[8:11], {s(sXo)} offen offset:1024 lds",
                 f"s_add_u32 m0, {s(sWr)}, {s(sMW)}", f"s_add_u32 {s(sXo)}, {s(sXo)}, 0x40000"],
                [f"buffer_load_dwordx4 v7, s[12:15], {s(sWo)} offen lds",
                 f"s_add_u32 {s(sWo)}, {s(sWo)}, {64*2048}"]]
    def setup():
        A("s_and_b32 s32, s20, 3")
        A("s_lshr_b32 s33, s20, 2")
        A("s_lshl_b32 s34, s22, 1")
        A("s_add_u32 s34, s34, s33")
        A("s_lshl_b32 s34, s34, 7")
        A("s_lshl_b32 s35, s21, 3")
        A("s_add_u32 s34, s34, s35")
        A("s_lshl_b32 s35, s32, 1")
        A("s_add_u32 s34, s34, s35")
        A("s_lshl_b32 s34, s34, 10")
        A("s_lshl_b32 s35, s21, 18")
        A("s_lshl_b32 s36, s32, 16")
        A("s_add_u32 s35, s35, s36")
        A("s_lshl_b32 s36, s22, 7")
        A("s_add_u32 s35, s35, s36")
        A("s_lshl_b32 s36, s33, 6")
        A("s_add_u32 s35, s35, s36")
        A("s_add_u32 s36, s35, 32768")
        srd(A, 16, 6, WS_H, 4*MB)
        srd(A, 44, 40, 0, 4*MB)
        if is_wo:
            A("v_lshlrev_b32 v8, 11, v5")
            A("v_lshl_add_u32 v8, v2, 3, v8")
            for i in range(2):
                for f in range(2):
                    A(f"buffer_load_dwordx2 {v(RES+4*i+2*f,2)}, v8, s[44:47], {s(35+i)} offen offset:{f*32}")
        else:
            for i in range(2):
                A(f"buffer_load_dwordx4 {v(RES+4*i,4)}, v6, s[16:19], s34 offen offset:{i*1024}")
        A("s_lshl_b32 s28, s32, 11")
        A("v_add_u32 v10, s28, v6")
        A("v_lshl_add_u32 v11, v2, 2, v3")
        A("v_lshlrev_b32 v11, 7, v11")
        A("v_lshl_add_u32 v11, v4, 3, v11")
        A("v_add_u32 v11, 16384, v11")
        A("v_bfe_u32 v12, v1, 3, 2")
        A("s_lshl_b32 s29, s33, 1")
        A("v_xor_b32 v13, s29, v12")
        A("v_lshl_add_u32 v13, v13, 5, v11")
        A("v_xor_b32 v14, 32, v13")
    gemm_prologue_dma(A, R, SLOT, dma_groups, {0: setup})
    A(f"s_waitcnt vmcnt({3*(R-1)})")
    for i in range(2):
        for f in range(2):
            for h in range(2):
                src = RES + 4*i + 2*f + h
                A(f"v_lshlrev_b32 {v(acc(f,i)+2*h)}, 16, {v(src)}")
                A(f"v_and_b32 {v(acc(f,i)+2*h+1)}, 0xffff0000, {v(src)}")
    def reads(p):
        out = []
        for kk in range(2):
            for f in range(2):
                for t in range(2):
                    out.append([f"ds_read_b64_tr_b16 {v(wf(p,kk,f)+2*t,2)}, {v(17+f)} offset:{kk*4096+t*2048}"])
            for i in range(2):
                out.append([f"ds_read_b128 {v(xf(p,kk,i),4)}, v16 offset:{kk*8192+i*1024}"])
        return out
    def addr_upd():
        return [f"v_add_u32 v16, {s(sRd)}, v10", f"v_add_u32 v17, {s(sRd)}, v13", f"v_add_u32 v18, {s(sRd)}, v14"]
    def mfmas(p):
        return [mf16(acc(f, i), wf(p, kk, f), xf(p, kk, i)) for kk in range(2) for f in range(2) for i in range(2)]
    A("s_cmp_ge_u32 s20, 4")
    A(f"s_cbranch_scc1 {name}_B")
    gemm_loop(A, f"{name}_loopA", "A", R, SLOT, NST, 3, mfmas, reads, dma_groups, addr_upd)
    A(f"s_branch {name}_epi")
    A.label(f"{name}_B")
    gemm_loop(A, f"{name}_loopB", "B", R, SLOT, NST, 3, mfmas, reads, dma_groups, addr_upd)
    A.label(f"{name}_epi")
    A("s_nop 7")
    T = 112
    for i in range(2):
        for f in range(2):
            for h in range(2):
                A(f"v_cvt_pk_bf16_f32 {v(T+4*i+2*f+h)}, {v(acc(f,i)+2*h)}, {v(acc(f,i)+2*h+1)}")
    if is_wo:
        for i in range(2):
            A(f"buffer_store_dwordx4 {v(T+4*i,4)}, v6, s[16:19], s34 offen offset:{i*1024}{STF}")
        for i in range(2):
            sm, sq = 20 + 2*i, 21 + 2*i
            b = acc(0, i)
            A(f"v_add_f32 {v(sm)}, {v(b)}, {v(b+1)}")
            A(f"v_mul_f32 {v(sq)}, {v(b)}, {v(b)}")
            A(f"v_fmac_f32 {v(sq)}, {v(b+1)}, {v(b+1)}")
            for j in range(2, 8):
                A(f"v_add_f32 {v(sm)}, {v(sm)}, {v(b+j)}")
                A(f"v_fmac_f32 {v(sq)}, {v(b+j)}, {v(b+j)}")
        reduce_rows16_32(A, [20, 21, 22, 23], [24, 25, 26, 27])
        A("s_lshl_b32 s28, s32, 9")
        A("s_lshl_b32 s29, s33, 3")
        A("s_add_u32 s28, s28, s29")
        A(f"s_add_u32 s28, s28, {STATS_LDS}")
        A("v_lshlrev_b32 v24, 4, v5")
        A("v_add_u32 v24, s28, v24")
        A("ds_write_b64 v24, v[20:21]")
        A("ds_write_b64 v24, v[22:23] offset:256")
        A("s_waitcnt lgkmcnt(0)")
        A("s_barrier")
        A("s_cmp_ge_u32 s20, 2")
        A(f"s_cbranch_scc1 {name}_end2")
        A("v_lshlrev_b32 v24, 4, v0")
        A(f"v_add_u32 v24, {STATS_LDS}, v24")
        A("ds_read_b128 v[20:23], v24")
        srd(A, 8, 6, WS_ST, 2048*128)
        A("v_lshlrev_b32 v24, 3, v0")
        A("s_lshl_b32 s28, s21, 10")
        A("s_lshl_b32 s29, s22, 14")
        A("s_add_u32 s28, s28, s29")
        A("s_waitcnt lgkmcnt(0)")
        A("v_add_f32 v20, v20, v22")
        A("v_add_f32 v21, v21, v23")
        A(f"buffer_store_dwordx2 v[20:21], v24, s[8:11], s28 offen{STF}")
    else:
        A("v_lshlrev_b32 v8, 11, v5")
        A("v_and_b32 v9, 1, v2")
        A("v_lshl_add_u32 v8, v9, 5, v8")
        A("v_lshrrev_b32 v9, 1, v2")
        A("v_lshl_add_u32 v8, v9, 4, v8")
        for i in range(2):
            A(f"v_permlane16_swap_b32 {v(T+4*i)}, {v(T+4*i+2)}")
            A(f"v_permlane16_swap_b32 {v(T+4*i+1)}, {v(T+4*i+3)}")
        A("s_nop 1")
        for i in range(2):
            A(f"buffer_store_dwordx4 {v(T+4*i,4)}, v8, s[44:47], {s(35+i)} offen")
    A.label(f"{name}_end2")
    stamp_flush(A, 3 if is_wo else 5, 4)
    A.label(f"{name}_end")
    A("s_endpgm")
    return name, kernel_desc(name, 120, NSG(48)), (256, 512, R*SLOT + 2048)

def k_wo(A): return k_proj(A, "wo_kernel", 1024, WS_O, KA_WO, True)
def k_down(A): return k_proj(A, "down_kernel", 3584, WS_HACT, KA_WD, False)

def k_gu(A):
    name = "gu_kernel"
    R, SLOT, NST = 5, 30720, 32
    SL = R * SLOT
    kernel_begin(A, name)
    A("s_cmp_ge_u32 s2, 256")
    A("s_cbranch_scc1 gu_end")
    A(f"s_load_dwordx4 s[40:43], s[0:1], {KA_WG}")
    A(f"s_load_dwordx2 s[6:7], s[0:1], {KA_WS}")
    wave_id(A, 20)
    lane_decomp(A)
    A("s_and_b32 s21, s2, 1")
    A("s_lshl_b32 s21, s21, 2")
    A("s_bfe_u32 s28, s2, 0x20003")
    A("s_add_u32 s21, s21, s28")
    A("s_bfe_u32 s22, s2, 0x20001")
    A("s_lshl_b32 s22, s22, 3")
    A("s_lshr_b32 s28, s2, 5")
    A("s_add_u32 s22, s22, s28")
    A("s_lshl_b32 s28, s21, 4")
    A("s_lshl_b32 s29, s20, 1")
    A("s_add_u32 s28, s28, s29")
    A(f"s_lshl_b32 {s(sXo)}, s28, 10")
    A(f"s_mul_i32 s28, s20, {4*7168}")
    A("s_mul_i32 s29, s22, 224")
    A(f"s_add_u32 {s(sWo)}, s28, s29")
    A(f"s_lshl_b32 {s(sMX)}, s20, 11")
    A(f"s_mul_i32 {s(sMW)}, s20, 896")
    A(f"s_add_u32 {s(sMW)}, {s(sMW)}, 16384")
    A("v_lshlrev_b32 v6, 4, v1")
    A("v_mul_u32_u24 v7, 4682, v1")
    A("v_lshrrev_b32 v7, 16, v7")
    A("v_mul_u32_u24 v8, 14, v7")
    A("v_sub_u32 v8, v1, v8")
    A("v_mul_u32_u24 v7, 7168, v7")
    A("v_lshl_add_u32 v7, v8, 4, v7")
    A("s_mov_b32 s34, -1")
    A("s_mov_b32 s35, 0x00ffffff")
    A("v_and_b32 v8, 255, v0")
    A("v_lshlrev_b32 v8, 3, v8")
    A("v_lshrrev_b32 v9, 8, v0")
    A("v_lshl_add_u32 v8, v9, 17, v8")
    A("s_lshl_b32 s56, s21, 11")
    A("v_lshlrev_b32 v9, 2, v0")
    A(f"v_add_u32 v10, {(3584-112)*4}, v9")
    A("v_cmp_gt_u32 vcc, 112, v0")
    A("v_mov_b32 v11, 0x7fffffff")
    A("s_mul_i32 s57, s22, 448")
    A("v_cndmask_b32 v9, v10, v9, vcc")
    A("v_cmp_gt_u32 vcc, 224, v0")
    A("s_nop 1")
    A("v_cndmask_b32 v9, v11, v9, vcc")
    A("s_waitcnt lgkmcnt(0)")
    stamp(A, 0)
    srd(A, 44, 6, WS_ST, 2048*128)
    srd(A, 48, 6, WS_CS, 4*7168*4)
    for j in range(8):
        A(f"buffer_load_dwordx2 {v(200+2*j,2)}, v8, s[44:47], s56 offen")
        A("s_add_u32 s56, s56, 16384")
    for j in range(4):
        A(f"buffer_load_dword {v(216+j)}, v9, s[48:51], s57 offen")
        A(f"s_add_u32 s57, s57, {7168*4}")
    srd(A, 8, 6, WS_H, 4*MB)
    srd(A, 12, 40, 0, 7*MB)
    srd(A, 16, 42, 0, 7*MB)
    def dma_groups():
        return [[f"s_add_u32 m0, {s(sWr)}, {s(sMX)}", "s_nop 0",
                 f"buffer_load_dwordx4 v6, s[8:11], {s(sXo)} offen lds"],
                [f"buffer_load_dwordx4 v6, s[8:11], {s(sXo)} offen offset:1024 lds",
                 f"s_add_u32 {s(sXo)}, {s(sXo)}, 0x20000"],
                [f"s_add_u32 m0, {s(sWr)}, {s(sMW)}", "s_mov_b64 exec, s[34:35]",
                 f"buffer_load_dwordx4 v7, s[12:15], {s(sWo)} offen lds",
                 "s_mov_b64 exec, -1"],
                [f"s_add_u32 m0, m0, 7168", "s_mov_b64 exec, s[34:35]",
                 f"buffer_load_dwordx4 v7, s[16:19], {s(sWo)} offen lds",
                 "s_mov_b64 exec, -1",
                 f"s_add_u32 {s(sWo)}, {s(sWo)}, {32*7168}"]]
    def setup():
        srd(A, 52, 6, WS_HACT, 2048*3584*2)
        A("s_and_b32 s36, s22, 1")
        A("s_cmp_eq_u32 s36, 1")
        A("s_cselect_b32 s37, 3, 0")
        A("s_cselect_b32 s38, 1, 4")
        A("s_cselect_b32 s39, 0, 6")
        A("s_cmp_ge_u32 s20, 4")
        A("s_cselect_b32 s37, s38, s37")
        A("s_and_b32 s32, s20, 3")
        A("s_lshl_b32 s28, s32, 12")
        A("v_add_u32 v10, s28, v6")
        A("v_lshl_add_u32 v11, v2, 2, v3")
        A("v_mul_u32_u24 v11, 224, v11")
        A("v_lshl_add_u32 v11, v4, 3, v11")
        A("v_add_u32 v11, 16384, v11")
        A("s_lshl_b32 s28, s39, 5")
        A("v_add_u32 v12, s28, v11")
        A("s_lshl_b32 s28, s37, 5")
        A("v_add_u32 v11, s28, v11")
    def stats1():
        A("s_waitcnt vmcnt(8)")
        for j in range(1, 8):
            A(f"v_pk_add_f32 v[200:201], v[200:201], {v(200+2*j,2)}")
        A("v_add_f32 v216, v216, v217")
        A("v_add_f32 v218, v218, v219")
        A("v_add_f32 v216, v216, v218")
        A("v_and_b32 v8, 255, v0")
        A("v_lshlrev_b32 v8, 4, v8")
        A("v_lshrrev_b32 v9, 8, v0")
        A("v_lshl_add_u32 v8, v9, 3, v8")
        A(f"v_add_u32 v8, {SL}, v8")
        A("ds_write_b64 v8, v[200:201]")
        A("v_lshlrev_b32 v9, 2, v0")
        A(f"v_add_u32 v9, {SL+4096}, v9")
        A("ds_write_b32 v9, v216")
        A("s_waitcnt lgkmcnt(0)")
    gemm_prologue_dma(A, R, SLOT, dma_groups, {0: setup, 1: stats1})
    A("s_lshl_b32 s28, s32, 10")
    A(f"s_add_u32 s28, s28, {SL}")
    A("v_lshlrev_b32 v8, 4, v5")
    A("v_add_u32 v8, s28, v8")
    for i in range(4):
        A(f"ds_read_b128 {v(200+4*i,4)}, v8 offset:{i*256}")
    A("v_lshlrev_b32 v9, 4, v2")
    A("s_lshl_b32 s28, s37, 6")
    A(f"s_add_u32 s28, s28, {SL+4096}")
    A("v_add_u32 v8, s28, v9")
    A("s_lshl_b32 s28, s39, 6")
    A(f"s_add_u32 s28, s28, {SL+4096}")
    A("v_add_u32 v9, s28, v9")
    ST = 248
    A("s_waitcnt lgkmcnt(0)")
    for i in range(4):
        A(f"v_pk_add_f32 {v(200+4*i,2)}, {v(200+4*i,2)}, {v(202+4*i,2)}")
    for i in range(4):
        b = 200 + 4*i
        A(f"v_mul_f32 {v(b)}, {f32(-1/1024)}, {v(b)}")
        A(f"v_mul_f32 {v(b+1)}, {f32(1/1024)}, {v(b+1)}")
        A(f"v_fma_f32 {v(b+1)}, -{v(b)}, {v(b)}, {v(b+1)}")
        A(f"v_max_f32 {v(b+1)}, 0, {v(b+1)}")
        A(f"v_add_f32 {v(b+1)}, {f32(1e-5)}, {v(b+1)}")
        A(f"v_sqrt_f32 {v(ST+2*i+1)}, {v(b+1)}")
        A(f"v_rsq_f32 {v(ST+2*i)}, {v(b+1)}")
    A("s_nop 0")
    for i in range(4):
        A(f"v_mul_f32 {v(ST+2*i)}, {f32(-LOG2E)}, {v(ST+2*i)}")
    A("s_cmp_ge_u32 s20, 4")
    A("s_cbranch_scc1 gu_B")
    CSR = 160
    def body(nf, tag):
        def wsrc(j):
            if nf == 3 and j == 2: return 18, 0
            return 17, j * 32
        ACC = 24
        def acc(j, gu, i): return ACC + ((j * 2 + gu) * 4 + i) * 4
        NS = 16 + nf * 8
        SET = [ACC + nf * 32, ACC + nf * 32 + NS]
        def xf(p, i): return SET[p] + i * 4
        def wf(p, j, gu): return SET[p] + 16 + (j * 2 + gu) * 4
        for j in range(nf):
            for gu in range(2):
                ar, imm = (9, 0) if (nf == 3 and j == 2) else (8, j * 64)
                A(f"ds_read_b128 {v(CSR+(j*2+gu)*4,4)}, {v(ar)} offset:{imm+gu*448}")
        A("s_waitcnt lgkmcnt(0)")
        for j in range(nf):
            for gu in range(2):
                for i in range(4):
                    for h in range(2):
                        A(f"v_pk_mul_f32 {v(acc(j,gu,i)+2*h,2)}, {v(CSR+(j*2+gu)*4+2*h,2)}, {v(200+4*i,2)} op_sel_hi:[1,0]")
        def reads(p):
            out = []
            for i in range(4):
                out.append([f"ds_read_b128 {v(xf(p,i),4)}, v16 offset:{i*1024}"])
            for j in range(nf):
                ar, imm = wsrc(j)
                for gu in range(2):
                    for t in range(2):
                        out.append([f"ds_read_b64_tr_b16 {v(wf(p,j,gu)+2*t,2)}, {v(ar)} offset:{imm+gu*7168+t*3584}"])
            return out
        def addr_upd():
            o = [f"v_add_u32 v16, {s(sRd)}, v10", f"v_add_u32 v17, {s(sRd)}, v11"]
            if nf == 3: o.append(f"v_add_u32 v18, {s(sRd)}, v12")
            return o
        def mfmas(p):
            return [mf16(acc(j, gu, i), wf(p, j, gu), xf(p, i)) for j in range(nf) for gu in range(2) for i in range(4)]
        gemm_loop(A, f"gu_loop{tag}", tag, R, SLOT, NST, 4, mfmas, reads, dma_groups, addr_upd)
        A("s_mul_i32 s28, s22, 7")
        A("s_add_u32 s29, s28, s37")
        A("s_lshr_b32 s29, s29, 1")
        A("s_lshl_b32 s29, s29, 17")
        A("s_lshl_b32 s33, s21, 4")
        A("s_lshl_b32 s36, s32, 2")
        A("s_add_u32 s33, s33, s36")
        A("s_lshl_b32 s33, s33, 10")
        A("s_add_u32 s56, s29, s33")
        A("s_add_u32 s57, s56, 0x20000")
        A("s_add_u32 s29, s28, s39")
        A("s_and_b32 s36, s29, 1")
        A("s_lshl_b32 s36, s36, 3")
        A("s_lshr_b32 s29, s29, 1")
        A("s_lshl_b32 s29, s29, 17")
        A("s_add_u32 s58, s29, s33")
        A("s_add_u32 s58, s58, s36")
        T = SET[0]
        tix = 0
        for jp in range(2):
            js = [2*jp, 2*jp+1] if 2*jp+1 < nf else [2*jp]
            for i in range(4):
                dst = T + 4 * (tix % 8); tix += 1
                c1, sg = v(ST+2*i, 2), v(ST+2*i, 2)
                for j in js:
                    g_ = acc(j, 0, i)
                    for h in range(2): A(f"v_pk_mul_f32 {v(g_+2*h,2)}, {v(g_+2*h,2)}, {c1} op_sel_hi:[1,0]")
                for j in js:
                    g_ = acc(j, 0, i)
                    for r in range(4): A(f"v_exp_f32 {v(g_+r)}, {v(g_+r)}")
                if len(js) == 1: A("s_nop 0")
                for j in js:
                    g_ = acc(j, 0, i)
                    for h in range(2): A(f"v_pk_fma_f32 {v(g_+2*h,2)}, {v(g_+2*h,2)}, {sg}, {sg} op_sel:[0,1,1] op_sel_hi:[1,1,1]")
                for j in js:
                    g_ = acc(j, 0, i)
                    for r in range(4): A(f"v_rcp_f32 {v(g_+r)}, {v(g_+r)}")
                if len(js) == 1: A("s_nop 0")
                for j in js:
                    g_, u_ = acc(j, 0, i), acc(j, 1, i)
                    for h in range(2): A(f"v_pk_mul_f32 {v(u_+2*h,2)}, {v(u_+2*h,2)}, {v(g_+2*h,2)}")
                for jj, j in enumerate(js):
                    u_ = acc(j, 1, i)
                    for h in range(2):
                        A(f"v_cvt_pk_bf16_f32 {v(dst+2*jj+h)}, {v(u_+2*h)}, {v(u_+2*h+1)}")
                if len(js) == 2:
                    A(f"buffer_store_dwordx4 {v(dst,4)}, v6, s[52:55], {s(56+jp)} offen offset:{i*1024}{STF}")
                else:
                    A(f"buffer_store_dwordx2 {v(dst,2)}, v6, s[52:55], s58 offen offset:{i*1024}{STF}")
        stamp_flush(A, 4, 4)
        A("s_endpgm")
    body(4, "A")
    A.label("gu_B")
    body(3, "B")
    A.label("gu_end")
    A("s_endpgm")
    return name, kernel_desc(name, 256, NSG(64)), (256, 512, SL + 4096 + 2048)
```

```python
import sys, math, os, struct
from asmlib import *

MB = 1 << 20
WS_XN, WS_Q, WS_K, WS_VT, WS_O, WS_H, WS_ST, WS_CS, WS_HACT = 0, 4*MB, 8*MB, 12*MB, 16*MB, 20*MB, 24*MB, 25*MB, 32*MB
WS_DBG = 48*MB
KA_X, KA_WQKV, KA_WO, KA_BX, KA_WG, KA_WU, KA_WD, KA_OUT, KA_DBG, KA_WS = 0, 8, 16, 24, 32, 40, 48, 56, 64, 72
LOG2E = math.log2(math.e)
QSCALE = LOG2E / math.sqrt(32.0)
def f32(x): return hex(struct.unpack("<I", struct.pack("<f", x))[0])
def OPT(name, default): return int(os.environ.get(name, str(default)))
def SOPT(name, default): return os.environ.get(name, default)
PROF = OPT("PROF", 0)
STF = SOPT("STF", " sc1")

def stamp(A, i):
    if not PROF: return
    A(f"s_memrealtime {s(64+2*i,2)}")
    A(f"s_memtime {s(80+2*i,2)}")
    A("s_waitcnt lgkmcnt(0)")
def stamp_flush(A, kidx, n, wsreg=6):
    if not PROF: return
    A("s_waitcnt vmcnt(0)")
    stamp(A, n)
    A("s_mov_b64 exec, 1")
    srd(A, 96, wsreg, WS_DBG, 16*MB)
    A(f"s_add_u32 s3, s2, {kidx*512}")
    A("s_lshl_b32 s3, s3, 4")
    A("s_add_u32 s3, s3, s20")
    A("s_lshl_b32 s3, s3, 6")
    A("v_mov_b32 v0, 0")
    A("v_mov_b32 v1, s78")
    A("buffer_store_dword v1, v0, s[96:99], s3 offen offset:28")
    A("s_nop 1")
    for i in range(n + 1):
        A(f"v_mov_b32 v1, {s(64+2*i)}")
        A(f"buffer_store_dword v1, v0, s[96:99], s3 offen offset:{4*i}")
        A(f"v_mov_b32 v2, {s(80+2*i)}")
        A(f"buffer_store_dword v2, v0, s[96:99], s3 offen offset:{32+4*i}")
        A("s_nop 1")
def NSG(n): return 102 if PROF else n

def mf16(d, A_, B_, c=None):
    c = v(d, 4) if c is None else c
    return f"v_mfma_f32_16x16x32_bf16 {v(d,4)}, {v(A_,4)}, {v(B_,4)}, {c}"
def mf32(d, A_, B_, c=None):
    c = v(d, 16) if c is None else c
    return f"v_mfma_f32_32x32x16_bf16 {v(d,16)}, {v(A_,4)}, {v(B_,4)}, {c}"
def wave_id(A, sd, vt=1):
    A(f"v_lshrrev_b32 {v(vt)}, 6, v0")
    A("s_nop 0")
    A(f"v_readfirstlane_b32 {s(sd)}, {v(vt)}")
def reduce_rows16_32(A, xs, ts):
    for op in ("v_permlane16_swap_b32", "v_permlane32_swap_b32"):
        for x, t in zip(xs, ts): A(f"v_mov_b32 {v(t)}, {v(x)}")
        A("s_nop 1")
        for x, t in zip(xs, ts): A(f"{op} {v(t)}, {v(x)}")
        A("s_nop 1")
        for x, t in zip(xs, ts): A(f"v_add_f32 {v(x)}, {v(x)}, {v(t)}")
def lane_decomp(A):
    A("v_and_b32 v1, 63, v0")
    A("v_lshrrev_b32 v2, 4, v1")
    A("v_bfe_u32 v3, v1, 2, 2")
    A("v_and_b32 v4, 3, v1")
    A("v_and_b32 v5, 15, v1")
def emit(A, L):
    for i in L:
        if isinstance(i, list): emit(A, i)
        else: A(i)

def k_ln(A):
    name = "ln_kernel"
    kernel_begin(A, name)
    A("s_cmp_ge_u32 s2, 256")
    A("s_cbranch_scc1 ln_end")
    A(f"s_load_dwordx4 s[4:7], s[0:1], {KA_X}")
    A(f"s_load_dwordx2 s[22:23], s[0:1], {KA_WS}")
    A("v_and_b32 v1, 63, v0")
    A("v_lshrrev_b32 v2, 6, v0")
    A("v_and_b32 v3, 7, v1")
    A("v_bfe_u32 v4, v1, 3, 2")
    A("v_lshrrev_b32 v5, 5, v1")
    A("v_lshlrev_b32 v6, 11, v3")
    A("v_lshl_add_u32 v6, v2, 9, v6")
    A("v_lshl_add_u32 v6, v5, 6, v6")
    A("v_lshl_add_u32 v6, v4, 3, v6")
    A("s_lshl_b32 s3, s2, 14")
    A("v_lshlrev_b32 v28, 7, v0")
    A("v_cmp_gt_u32 vcc, 192, v0")
    A("v_mov_b32 v29, 0x7fffffff")
    A("s_mul_i32 s24, s2, 24576")
    A("v_cndmask_b32 v28, v29, v28, vcc")
    A("s_waitcnt lgkmcnt(0)")
    stamp(A, 0)
    srd(A, 8, 4, 0, 4*MB)
    srd(A, 12, 22, WS_XN, 4*MB)
    for i in range(4):
        A(f"buffer_load_dwordx2 {v(8+4*i,2)}, v6, s[8:11], s3 offen offset:{i*128}")
        A(f"buffer_load_dwordx2 {v(10+4*i,2)}, v6, s[8:11], s3 offen offset:{i*128+32}")
    srd(A, 28, 6, 0, 6*MB)
    PF = OPT("LN_PF", 1)
    if PF: A("buffer_load_dword v29, v28, s[28:31], s24 offen")
    A("v_lshl_add_u32 v7, v2, 3, v5")
    A("v_lshlrev_b32 v7, 17, v7")
    A("v_lshl_add_u32 v7, v3, 4, v7")
    A("v_lshl_add_u32 v7, v4, 8, v7")
    A("s_lshr_b32 s16, s2, 1")
    A("s_lshl_b32 s16, s16, 10")
    A("s_and_b32 s17, s2, 1")
    A("s_lshl_b32 s17, s17, 7")
    A("s_add_u32 s16, s16, s17")
    A("s_add_u32 s17, s16, 0x40000")
    A("s_add_u32 s18, s16, 0x80000")
    A("s_add_u32 s19, s16, 0xc0000")
    A("v_mov_b32 v24, 0")
    A("v_mov_b32 v25, 0")
    for j in range(16):
        if j % 2 == 0:
            A(f"s_waitcnt vmcnt({7 - j//2 + PF})")
        A(f"v_lshlrev_b32 {v(32+2*j)}, 16, {v(8+j)}")
        A(f"v_and_b32 {v(33+2*j)}, 0xffff0000, {v(8+j)}")
        A(f"v_add_f32 v24, v24, {v(32+2*j)}")
        A(f"v_fmac_f32 v25, {v(32+2*j)}, {v(32+2*j)}")
        A(f"v_add_f32 v24, v24, {v(33+2*j)}")
        A(f"v_fmac_f32 v25, {v(33+2*j)}, {v(33+2*j)}")
    A("s_nop 1")
    A("v_add_f32_dpp v24, v24, v24 row_ror:8 row_mask:0xf bank_mask:0xf")
    A("v_add_f32_dpp v25, v25, v25 row_ror:8 row_mask:0xf bank_mask:0xf")
    reduce_rows16_32(A, [24, 25], [26, 27])
    A("v_lshlrev_b32 v26, 5, v3")
    A("v_lshl_add_u32 v27, v2, 3, v26")
    A("ds_write_b64 v27, v[24:25]")
    A("s_waitcnt lgkmcnt(0)")
    A("s_barrier")
    A("ds_read_b128 v[64:67], v26")
    A("ds_read_b128 v[68:71], v26 offset:16")
    A("s_waitcnt lgkmcnt(0)")
    A("v_add_f32 v24, v64, v66")
    A("v_add_f32 v25, v65, v67")
    A("v_add_f32 v26, v68, v70")
    A("v_add_f32 v27, v69, v71")
    A("v_add_f32 v24, v24, v26")
    A("v_add_f32 v25, v25, v27")
    A(f"v_mul_f32 v24, {f32(1/1024)}, v24")
    A(f"v_mul_f32 v25, {f32(1/1024)}, v25")
    A("v_fma_f32 v25, -v24, v24, v25")
    A("v_max_f32 v25, 0, v25")
    A(f"v_add_f32 v25, {f32(1e-5)}, v25")
    A("v_rsq_f32 v25, v25")
    A("s_nop 0")
    A("v_mul_f32 v24, v24, v25")
    for j in range(16):
        A(f"v_fma_f32 {v(32+2*j)}, {v(32+2*j)}, v25, -v24")
        A(f"v_fma_f32 {v(33+2*j)}, {v(33+2*j)}, v25, -v24")
        A(f"v_cvt_pk_bf16_f32 {v(8+j)}, {v(32+2*j)}, {v(33+2*j)}")
        if j % 4 == 3:
            A(f"buffer_store_dwordx4 {v(8+j-3,4)}, v7, s[12:15], {s(16+j//4)} offen{STF}")
    if PROF: A("v_readfirstlane_b32 s20, v2")
    stamp_flush(A, 0, 1, 22)
    A.label("ln_end")
    A("s_endpgm")
    return name, kernel_desc(name, 72, NSG(32)), (256, 256, 1024)

sRd, sWr, sXo, sWo, sCnt, sMX, sMW = 23, 24, 25, 26, 27, 30, 31
def ring_advance(slot, R):
    return [f"s_mov_b32 {s(sWr)}, {s(sRd)}",
            f"s_add_u32 {s(sRd)}, {s(sRd)}, {slot}",
            f"s_cmp_eq_u32 {s(sRd)}, {slot*R}",
            f"s_cselect_b32 {s(sRd)}, 0, {s(sRd)}"]

def gemm_prologue_dma(A, R, SLOT, dma_groups, between=None):
    for st in range(R):
        A(f"s_mov_b32 {s(sWr)}, {st*SLOT}")
        emit(A, dma_groups())
        if between and st in between: between[st]()
        if st < R - 1: A("s_barrier")

def gemm_loop(A, label, role, R, SLOT, NST, ndma, mfmas, reads, dma_groups, addr_upd, extra_vm=0):
    A(f"s_mov_b32 {s(sRd)}, 0")
    emit(A, addr_upd())
    stamp(A, 1)
    A(f"s_waitcnt vmcnt({ndma*(R-1)})")
    A("s_barrier")
    stamp(A, 2)
    emit(A, reads(0))
    emit(A, ring_advance(SLOT, R))
    emit(A, addr_upd())
    A(f"s_mov_b32 {s(sCnt)}, {NST//2}")
    A.raw(".p2align 6")
    A.label(label)
    for p in range(2):
        M = mfmas(p); Rd = reads(1 - p); D = dma_groups()
        A(f"s_waitcnt vmcnt({ndma*(R-2)}) lgkmcnt(0)")
        A("s_barrier")
        mode = OPT("SCHED_" + label.split("_")[0].upper(), OPT("SCHED", 2))
        nm = len(M)
        if mode == 1:
            fill = []; di = 0
            step = max(1, len(Rd) // len(D))
            for j, r in enumerate(Rd):
                if j % step == 0 and di < len(D):
                    fill.append(D[di]); di += 1
                fill.append(r)
            emit(A, interleave(M, fill, 0, max(1, nm - nm // 6)))
        elif mode == 2:
            if role == "A":
                emit(A, interleave(M, Rd, 0, max(1, nm - 2)))
                emit(A, D)
            else:
                emit(A, D)
                emit(A, interleave(M, Rd, 0, max(1, (2 * nm) // 3)))
        elif mode == 3:
            if role == "A":
                h = nm // 2
                emit(A, interleave(M[:h], Rd[:len(Rd)*2//3]))
                fill = []
                rest = Rd[len(Rd)*2//3:]
                for j in range(max(len(rest), len(D))):
                    if j < len(rest): fill.append(rest[j])
                    if j < len(D) - 2: fill.append(D[j])
                emit(A, interleave(M[h:], fill))
                emit(A, D[len(D)-2:])
            else:
                emit(A, D[:2])
                fill = []
                for j, r in enumerate(Rd):
                    if j % 3 == 2 and 2 + j // 3 < len(D): fill.append(D[2 + j // 3])
                    fill.append(r)
                emit(A, interleave(M, fill, 0, max(1, (3 * nm) // 4)))
        elif mode == 4:
            emit(A, Rd)
            if role == "A":
                emit(A, M); emit(A, D)
            else:
                emit(A, D); emit(A, M)
        emit(A, ring_advance(SLOT, R))
        emit(A, addr_upd())
    A(f"s_sub_u32 {s(sCnt)}, {s(sCnt)}, 1")
    A(f"s_cmp_lg_u32 {s(sCnt)}, 0")
    A(f"s_cbranch_scc1 {label}")
    A("s_waitcnt lgkmcnt(0)")
    stamp(A, 3)

def k_qkv(A):
    name = "qkv_kernel"
    R, SLOT, NST = 4, 40960, 16
    kernel_begin(A, name)
    A("s_cmp_ge_u32 s2, 256")
    A("s_cbranch_scc1 qkv_end")
    A(f"s_load_dwordx2 s[4:5], s[0:1], {KA_WQKV}")
    A(f"s_load_dwordx2 s[6:7], s[0:1], {KA_WS}")
    wave_id(A, 20)
    lane_decomp(A)
    A("s_and_b32 s21, s2, 1")
    A("s_lshl_b32 s21, s21, 3")
    A("s_bfe_u32 s28, s2, 0x30003")
    A("s_add_u32 s21, s21, s28")
    A("s_bfe_u32 s22, s2, 0x20001")
    A("s_lshl_b32 s22, s22, 2")
    A("s_lshr_b32 s28, s2, 6")
    A("s_add_u32 s22, s22, s28")
    A("s_lshr_b32 s28, s20, 2")
    A("s_lshl_b32 s28, s28, 7")
    A("s_lshl_b32 s29, s21, 3")
    A("s_add_u32 s28, s28, s29")
    A("s_and_b32 s29, s20, 3")
    A("s_lshl_b32 s29, s29, 1")
    A("s_add_u32 s28, s28, s29")
    A(f"s_lshl_b32 {s(sXo)}, s28, 10")
    A("s_mul_i32 s28, s20, 49152")
    A("s_lshl_b32 s29, s22, 7")
    A(f"s_add_u32 {s(sWo)}, s28, s29")
    A(f"s_lshl_b32 {s(sMX)}, s20, 11")
    A(f"s_lshl_b32 {s(sMW)}, s20, 10")
    A(f"s_add_u32 {s(sMW)}, {s(sMW)}, 16384")
    A("v_lshlrev_b32 v6, 4, v1")
    A("v_lshrrev_b32 v7, 3, v1")
    A("v_mul_u32_u24 v7, 6144, v7")
    A("v_and_b32 v8, 7, v1")
    A("v_lshlrev_b32 v9, 1, v2")
    A("v_xor_b32 v8, v8, v9")
    A("v_lshl_add_u32 v7, v8, 4, v7")
    A("v_add_u32 v8, 2048, v7")
    A("v_add_u32 v9, 4096, v7")
    A("s_waitcnt lgkmcnt(0)")
    stamp(A, 0)
    srd(A, 8, 6, WS_XN, 4*MB)
    srd(A, 12, 4, 0, 6*MB)
    def dma_groups():
        return [[f"s_add_u32 m0, {s(sWr)}, {s(sMX)}", "s_nop 0",
                 f"buffer_load_dwordx4 v6, s[8:11], {s(sXo)} offen lds"],
                [f"buffer_load_dwordx4 v6, s[8:11], {s(sXo)} offen offset:1024 lds",
                 f"s_add_u32 m0, {s(sWr)}, {s(sMW)}", f"s_add_u32 {s(sXo)}, {s(sXo)}, 0x40000"],
                [f"buffer_load_dwordx4 v7, s[12:15], {s(sWo)} offen lds",
                 f"s_add_u32 m0, m0, 8192", "s_nop 0"],
                [f"buffer_load_dwordx4 v8, s[12:15], {s(sWo)} offen lds",
                 f"s_add_u32 m0, m0, 8192", "s_nop 0"],
                [f"buffer_load_dwordx4 v9, s[12:15], {s(sWo)} offen lds",
                 f"s_add_u32 {s(sWo)}, {s(sWo)}, {64*6144}"]]
    ACC = 64
    def acc(f, i): return ACC + (f * 4 + i) * 4
    SET = [112, 168]
    def xf(p, kk, i): return SET[p] + (kk * 4 + i) * 4
    def wf(p, kk, f): return SET[p] + 32 + (kk * 3 + f) * 4
    def setup():
        srd(A, 16, 6, WS_Q, 12*MB)
        A("s_and_b32 s28, s20, 1")
        A("s_lshl_b32 s28, s28, 12")
        A("v_add_u32 v10, s28, v6")
        A("v_lshl_add_u32 v11, v2, 2, v3")
        A("v_lshlrev_b32 v11, 7, v11")
        A("v_lshl_add_u32 v11, v4, 3, v11")
        A("v_add_u32 v11, 16384, v11")
        A("v_bfe_u32 v12, v1, 3, 2")
        A("s_lshr_b32 s28, s20, 1")
        A("s_and_b32 s29, s28, 1")
        A("s_lshl_b32 s29, s29, 1")
        A("s_lshr_b32 s32, s28, 1")
        A("s_lshl_b32 s32, s32, 13")
        A("v_xor_b32 v13, s29, v12")
        A("v_lshl_add_u32 v13, v13, 5, v11")
        A("v_add_u32 v13, s32, v13")
        A("v_xor_b32 v14, 32, v13")
        A("v_xor_b32 v15, s28, v12")
        A("v_lshl_add_u32 v15, v15, 5, v11")
        A("v_add_u32 v15, 16384, v15")
        for i in range(48): A(f"v_mov_b32 {v(ACC+i)}, 0")
    gemm_prologue_dma(A, R, SLOT, dma_groups, {0: setup})
    def reads(p):
        out = []
        for kk in range(2):
            for f in range(3):
                for t in range(2):
                    out.append([f"ds_read_b64_tr_b16 {v(wf(p,kk,f)+2*t,2)}, {v(17+f)} offset:{kk*4096+t*2048}"])
            for i in range(4):
                out.append([f"ds_read_b128 {v(xf(p,kk,i),4)}, v16 offset:{kk*8192+i*1024}"])
        return out
    def addr_upd():
        return [f"v_add_u32 v16, {s(sRd)}, v10", f"v_add_u32 v17, {s(sRd)}, v13",
                f"v_add_u32 v18, {s(sRd)}, v14", f"v_add_u32 v19, {s(sRd)}, v15"]
    def mfmas(p):
        M = []
        for kk in range(2):
            for f in range(3):
                for i in range(4):
                    if f < 2: M.append(mf16(acc(f, i), wf(p, kk, f), xf(p, kk, i)))
                    else:     M.append(mf16(acc(f, i), xf(p, kk, i), wf(p, kk, f)))
        return M
    A("s_cmp_ge_u32 s20, 4")
    A("s_cbranch_scc1 qkv_B")
    gemm_loop(A, "qkv_loopA", "A", R, SLOT, NST, 5, mfmas, reads, dma_groups, addr_upd)
    A("s_branch qkv_epi")
    A.label("qkv_B")
    gemm_loop(A, "qkv_loopB", "B", R, SLOT, NST, 5, mfmas, reads, dma_groups, addr_upd)
    A.label("qkv_epi")
    A("v_lshlrev_b32 v6, 9, v2")
    A("v_lshrrev_b32 v7, 3, v5")
    A("v_lshl_add_u32 v7, v7, 8, v6")
    A("v_and_b32 v8, 7, v5")
    A("v_lshl_add_u32 v7, v8, 4, v7")
    A("v_lshl_add_u32 v8, v5, 4, v6")
    A("s_lshr_b32 s28, s20, 1")
    A("s_and_b32 s29, s28, 1")
    A("s_lshr_b32 s32, s28, 1")
    A("s_and_b32 s33, s20, 1")
    A("s_lshl_b32 s34, s21, 2")
    A("s_lshl_b32 s33, s33, 1")
    A("s_add_u32 s34, s34, s33")
    A("s_lshl_b32 s34, s34, 11")
    A("s_lshl_b32 s35, s22, 1")
    A("s_add_u32 s36, s35, s29")
    A("s_lshl_b32 s36, s36, 17")
    A("s_add_u32 s36, s36, s34")
    A("s_lshl_b32 s37, s32, 22")
    A("s_add_u32 s36, s36, s37")
    A("s_add_u32 s38, s35, s32")
    A("s_lshl_b32 s38, s38, 17")
    A("s_add_u32 s38, s38, s34")
    A("s_lshl_b32 s37, s29, 8")
    A("s_add_u32 s38, s38, s37")
    A(f"s_add_u32 s38, s38, {8*MB}")
    A("s_cmp_eq_u32 s32, 0")
    A(f"s_cselect_b32 s39, {f32(QSCALE)}, 1.0")
    A("v_mov_b32 v20, s39")
    T = 128
    for pr in range(2):
        for ii in range(2):
            for h in range(2):
                A(f"v_cvt_pk_bf16_f32 {v(T+4*pr+2*ii+h)}, {v(acc(2,2*pr+ii)+2*h)}, {v(acc(2,2*pr+ii)+2*h+1)}")
        A(f"buffer_store_dwordx4 {v(T+4*pr,4)}, v8, s[16:19], s38 offen offset:{pr*2048}{STF}")
    T = 112
    for i in range(4):
        for f in range(2):
            for h in range(2):
                A(f"v_pk_mul_f32 {v(acc(f,i)+2*h,2)}, {v(acc(f,i)+2*h,2)}, v[20:21] op_sel_hi:[1,0]")
        for f in range(2):
            for h in range(2):
                A(f"v_cvt_pk_bf16_f32 {v(T+4*i+2*f+h)}, {v(acc(f,i)+2*h)}, {v(acc(f,i)+2*h+1)}")
        A(f"buffer_store_dwordx4 {v(T+4*i,4)}, v7, s[16:19], s36 offen offset:{(i>>1)*2048+(i&1)*128}{STF}")
    stamp_flush(A, 1, 4)
    A.label("qkv_end")
    A("s_endpgm")
    return name, kernel_desc(name, 224, NSG(48)), (256, 512, R*SLOT)

def k_attn(A):
    name = "attn_kernel"
    R, SLOT = 3, 32768
    WL = R * SLOT
    kernel_begin(A, name)
    A("s_cmp_ge_u32 s2, 256")
    A("s_cbranch_scc1 attn_end")
    A(f"s_load_dwordx2 s[6:7], s[0:1], {KA_WS}")
    A(f"s_load_dwordx2 s[40:41], s[0:1], {KA_WO}")
    A(f"s_load_dwordx4 s[44:47], s[0:1], {KA_WG}")
    A(f"s_load_dwordx2 s[42:43], s[0:1], {KA_WD}")
    wave_id(A, 20)
    A("v_and_b32 v1, 63, v0")
    A("v_lshlrev_b32 v2, 4, v1")
    A("s_and_b32 s21, s2, 7")
    A("s_lshl_b32 s21, s21, 2")
    A("s_bfe_u32 s28, s2, 0x20003")
    A("s_add_u32 s21, s21, s28")
    A("s_lshr_b32 s22, s2, 5")
    A("s_lshl_b32 s28, s21, 17")
    sGo, sM, sCo, sCM = 25, 26, 30, 31
    Q, NEGM, S0, S1, P, KF, VF, O, L, ONES = 8, 16, 32, 48, 64, 72, 80, 88, 104, 108
    S_ = [S0, S1]
    A("s_lshl_b32 s29, s22, 3")
    A("s_add_u32 s29, s29, s20")
    A("s_lshl_b32 s29, s29, 11")
    A(f"s_lshl_b32 {s(sGo)}, s20, 11")
    A(f"s_lshl_b32 {s(sM)}, s20, 11")
    A("s_waitcnt lgkmcnt(0)")
    stamp(A, 0)
    A("s_add_u32 s4, s6, s28")
    A("s_addc_u32 s5, s7, 0")
    srd(A, 8, 4, WS_K, 131072)
    srd(A, 12, 4, WS_VT, 131072)
    srd(A, 16, 4, WS_Q, 131072)
    def dma_groups():
        return [[f"s_add_u32 m0, {s(sWr)}, {s(sM)}", "s_nop 0",
                 f"buffer_load_dwordx4 v2, s[8:11], {s(sGo)} offen lds"],
                [f"buffer_load_dwordx4 v2, s[8:11], {s(sGo)} offen offset:1024 lds",
                 f"s_add_u32 m0, m0, 16384", "s_nop 0"],
                [f"buffer_load_dwordx4 v2, s[12:15], {s(sGo)} offen lds"],
                [f"buffer_load_dwordx4 v2, s[12:15], {s(sGo)} offen offset:1024 lds",
                 f"s_add_u32 {s(sGo)}, {s(sGo)}, 16384"]]
    def cs_dma():
        return [f"s_mov_b32 m0, {s(sCM)}", f"s_add_u32 {s(sCM)}, {s(sCM)}, 8192",
                f"buffer_load_dwordx4 v7, s[48:51], {s(sCo)} offen lds",
                f"s_add_u32 {s(sCo)}, {s(sCo)}, {64*7168}"]
    A(f"buffer_load_dwordx4 {v(Q,4)}, v2, s[16:19], s29 offen")
    A(f"buffer_load_dwordx4 {v(Q+4,4)}, v2, s[16:19], s29 offen offset:1024")
    A(f"s_mov_b32 {s(sWr)}, 0")
    emit(A, dma_groups())
    A("s_barrier")
    A(f"s_mov_b32 {s(sWr)}, {SLOT}")
    emit(A, dma_groups())
    A(f"s_mov_b32 {s(sWr)}, {2*SLOT}")
    srd(A, 36, 6, WS_O, 4*MB)
    A("s_lshr_b32 s32, s2, 1")
    A("s_and_b32 s33, s2, 1")
    A("s_cmp_ge_u32 s32, 56")
    A("s_cselect_b32 s48, s46, s44")
    A("s_cselect_b32 s49, s47, s45")
    A("s_cselect_b32 s34, 56, 0")
    A("s_sub_u32 s34, s32, s34")
    A("s_mov_b32 s51, 0x20000")
    A("s_lshl_b32 s34, s34, 7")
    A(f"s_mul_i32 s35, s33, {512*7168}")
    A("s_add_u32 s34, s34, s35")
    A(f"s_add_u32 s35, s35, {512*7168}")
    A("s_cmp_lt_u32 s2, 224")
    A(f"s_cselect_b32 s50, s35, 0")
    A(f"s_mul_i32 s35, s20, {8*7168}")
    A(f"s_add_u32 {s(sCo)}, s34, s35")
    A(f"s_lshl_b32 {s(sCM)}, s20, 10")
    A(f"s_add_u32 {s(sCM)}, {s(sCM)}, {WL}")
    A("v_lshrrev_b32 v7, 3, v1")
    A("v_mul_u32_u24 v7, 7168, v7")
    A("v_and_b32 v5, 7, v1")
    A("v_lshrrev_b32 v6, 4, v1")
    A("v_lshlrev_b32 v6, 1, v6")
    A("v_xor_b32 v5, v5, v6")
    A("v_lshl_add_u32 v7, v5, 4, v7")
    srd(A, 52, 40, 0, 2*MB)
    srd(A, 56, 42, 0, 7*MB)
    A("s_lshl_b32 s34, s2, 3")
    A("s_add_u32 s34, s34, s20")
    A("s_lshl_b32 s60, s34, 10")
    A("s_mul_i32 s61, s34, 3584")
    A("v_lshlrev_b32 v5, 7, v1")
    A("v_mov_b32 v6, 0x7fffffff")
    A("v_cmp_gt_u32 vcc, 8, v1")
    A("s_nop 1")
    A("v_cndmask_b32 v112, v6, v5, vcc")
    A("v_cmp_gt_u32 vcc, 28, v1")
    A("s_nop 1")
    A("v_cndmask_b32 v113, v6, v5, vcc")
    A("v_lshrrev_b32 v3, 2, v1")
    A("v_lshrrev_b32 v4, 4, v1")
    A("v_xor_b32 v3, v3, v4")
    A("v_and_b32 v3, 1, v3")
    A("v_cmp_eq_u32 vcc, 0, v3")
    A("v_mov_b32 v4, 0x3f803f80")
    A("s_nop 1")
    for i in range(4): A(f"v_cndmask_b32 {v(ONES+i)}, 0, v4, vcc")
    for i in range(16): A(f"v_mov_b32 {v(O+i)}, 0")
    for i in range(4): A(f"v_mov_b32 {v(L+i)}, 0")
    for i in range(4): A(f"v_mov_b32 {v(P+4+i)}, 0")
    for i in range(4): A(f"v_mov_b32 {v(VF+4+i)}, 0")
    A("v_mov_b32 v3, v2")
    A(f"v_add_u32 v4, {SLOT}, v2")
    A(f"s_mov_b32 {s(sRd)}, {SLOT}")
    stamp(A, 1)
    A("s_waitcnt vmcnt(4)")
    A("s_barrier")
    stamp(A, 2)
    def kread(t, j, dst=None):
        a_ = 3 if t < 8 else 4
        return f"ds_read_b128 {v(KF+4*j if dst is None else dst,4)}, {v(a_)} offset:{(t%8)*2048+j*1024}"
    def vread(t, j):
        a_ = 3 if t < 8 else 4
        return f"ds_read_b128 {v(VF+4*j,4)}, {v(a_)} offset:{16384+(t%8)*2048+j*1024}"
    A(kread(0, 0, S1)); A(kread(0, 1, S1+4))
    A(kread(1, 0))
    A(kread(1, 1))
    A(vread(0, 0))
    if not OPT("AT_PF", 1):
        A("s_mov_b32 s54, 0")
        A("s_mov_b32 s58, 0")
    A("buffer_load_dword v114, v112, s[52:55], s60 offen")
    emit(A, cs_dma())
    A("s_waitcnt lgkmcnt(3)")
    A(mf32(S0, S1, Q, "0"))
    A(mf32(S0, S1+4, Q+4))
    A("s_nop 15")
    A("s_nop 3")
    A(f"v_max3_f32 v5, {v(S0)}, {v(S0+1)}, {v(S0+2)}")
    for i in range(3, 15, 2):
        A(f"v_max3_f32 v5, v5, {v(S0+i)}, {v(S0+i+1)}")
    A(f"v_max_f32 v5, v5, {v(S0+15)}")
    A("v_mov_b32 v6, v5")
    A("s_nop 1")
    A("v_permlane32_swap_b32 v6, v5")
    A("s_nop 1")
    A("v_max_f32 v5, v5, v6")
    for i in range(16): A(f"v_sub_f32 {v(NEGM+i)}, 0, v5")
    for i in range(16): A(f"v_sub_f32 {v(S0+i)}, {v(S0+i)}, v5")
    A(f"s_mov_b32 {s(sCnt)}, 8")
    A("s_waitcnt lgkmcnt(0)")
    A.raw(".p2align 6")
    A.label("attn_loop")
    for t in range(8):
        c, n = S_[t % 2], S_[1 - t % 2]
        E = lambda i: f"v_exp_f32 {v(c+i)}, {v(c+i)}"
        C = lambda i: f"v_cvt_pk_bf16_f32 {v(P+i)}, {v(c+2*i)}, {v(c+2*i+1)}"
        D = dma_groups() + [cs_dma() + ["buffer_load_dword v115, v113, s[56:59], s61 offen", "s_mov_b32 s58, 0"]] if t == 6 else [[]] * 5
        if t == 6:
            A("s_waitcnt vmcnt(2)")
            A("s_barrier")
        A("s_waitcnt lgkmcnt(2)")
        A(mf32(n, KF, Q, v(NEGM, 16)))
        A(kread(t + 2, 0))
        emit(A, [E(0), E(1), E(2)])
        A(mf32(O, VF+4, P+4))
        A(vread(t, 1))
        emit(A, D[0])
        emit(A, [E(3), E(4), E(5), E(6)])
        A("s_waitcnt lgkmcnt(2)")
        A(mf32(n, KF+4, Q+4))
        A(kread(t + 2, 1))
        emit(A, D[1])
        emit(A, [E(7), C(0), C(1), C(2), C(3), E(8)])
        A(mf16(L, ONES, P+4))
        emit(A, D[2])
        emit(A, [E(9), E(10)])
        A(mf32(O, VF, P))
        A(vread(t + 1, 0))
        emit(A, D[3])
        emit(A, [E(11), E(12), E(13), E(14)])
        A(mf16(L, ONES, P))
        emit(A, D[4])
        if t == 7:
            A(f"s_add_u32 {s(sWr)}, {s(sWr)}, {SLOT}")
            A(f"s_cmp_eq_u32 {s(sWr)}, {SLOT*R}")
            A(f"s_cselect_b32 {s(sWr)}, 0, {s(sWr)}")
            A(f"s_add_u32 {s(sRd)}, {s(sRd)}, {SLOT}")
            A(f"s_cmp_eq_u32 {s(sRd)}, {SLOT*R}")
            A(f"s_cselect_b32 {s(sRd)}, 0, {s(sRd)}")
            A("v_mov_b32 v3, v4")
            A(f"v_add_u32 v4, {s(sRd)}, v2")
            A(f"s_sub_u32 {s(sCnt)}, {s(sCnt)}, 1")
            A(f"s_cmp_lg_u32 {s(sCnt)}, 0")
        emit(A, [E(15), C(4), C(5), C(6), C(7)])
    A("s_cbranch_scc1 attn_loop")
    A("s_waitcnt lgkmcnt(0)")
    A(mf32(O, VF+4, P+4))
    A(mf16(L, ONES, P+4))
    stamp(A, 3)
    A("s_waitcnt vmcnt(0)")
    A("s_barrier")
    A("v_lshrrev_b32 v5, 2, v1")
    A("v_lshlrev_b32 v5, 7, v5")
    A("v_and_b32 v6, 3, v1")
    A("v_lshl_add_u32 v5, v6, 3, v5")
    A("v_bfe_u32 v6, v1, 3, 2")
    A("s_and_b32 s28, s20, 3")
    A("v_xor_b32 v6, s28, v6")
    A("v_lshl_add_u32 v5, v6, 5, v5")
    A("s_lshr_b32 s29, s20, 2")
    A("s_lshl_b32 s34, s29, 15")
    A(f"s_add_u32 s34, s34, {WL}")
    A("v_add_u32 v5, s34, v5")
    CSW = S0
    for ks in range(8):
        for t in range(2):
            A(f"ds_read_b64_tr_b16 {v(CSW+4*ks+2*t,2)}, v5 offset:{ks*4096+t*2048}")
    A("v_mov_b32 v116, 0x3f803f80")
    A("v_mov_b32 v117, 0x3f803f80")
    A("v_mov_b32 v118, 0x3f803f80")
    A("v_mov_b32 v119, 0x3f803f80")
    A(f"v_add_f32 v5, |{v(O)}|, {v(L)}")
    for i in range(1, 16): A(f"v_add_f32 v5, |{v(O+i)}|, v5")
    A(f"v_mov_b32 v6, {f32(2.0**120)}")
    A("v_cmp_nlt_f32 vcc, v5, v6")
    A("s_waitcnt lgkmcnt(0)")
    for ks in range(8):
        A(mf16(120, CSW+4*ks, 116, "0" if ks == 0 else None))
    srd(A, 48, 6, WS_CS, 4*7168*4)
    A("s_lshl_b32 s33, s33, 1")
    A("s_add_u32 s33, s33, s29")
    A(f"s_mul_i32 s33, s33, {7168*4}")
    A("s_lshl_b32 s34, s32, 8")
    A("s_add_u32 s33, s33, s34")
    A("s_lshl_b32 s34, s28, 6")
    A("s_add_u32 s33, s33, s34")
    A("v_and_b32 v6, 15, v1")
    A("v_cmp_ne_u32 s[34:35], 0, v6")
    A("v_mov_b32 v6, 0x7fffffff")
    A("s_cmp_lt_u32 s2, 224")
    A(f"s_cselect_b32 s50, {4*7168*4}, 0")
    A("v_cndmask_b32 v6, v1, v6, s[34:35]")
    A("s_nop 4")
    A(f"buffer_store_dwordx4 v[120:123], v6, s[48:51], s33 offen{STF}")
    A("s_cmp_eq_u64 vcc, 0")
    A("s_cbranch_scc0 attn_slow")
    A.label("attn_fin")
    A(f"v_rcp_f32 v5, {v(L)}")
    A("s_nop 0")
    for i in range(16): A(f"v_mul_f32 {v(O+i)}, {v(O+i)}, v5")
    for pc in range(2):
        for hh in range(2):
            run = pc + 2 * hh
            for j in range(2):
                A(f"v_cvt_pk_bf16_f32 {v(P+4*pc+2*hh+j)}, {v(O+4*run+2*j)}, {v(O+4*run+2*j+1)}")
    A("v_bfe_u32 v5, v1, 3, 1")
    A("v_lshlrev_b32 v5, 10, v5")
    A("v_bfe_u32 v6, v1, 4, 1")
    A("v_lshl_add_u32 v5, v6, 7, v5")
    A("v_and_b32 v6, 7, v1")
    A("v_lshl_add_u32 v5, v6, 4, v5")
    A("v_lshrrev_b32 v6, 5, v1")
    A("v_lshl_add_u32 v5, v6, 8, v5")
    A("s_lshl_b32 s28, s22, 3")
    A("s_add_u32 s28, s28, s20")
    A("s_lshl_b32 s28, s28, 11")
    A("s_lshl_b32 s29, s21, 17")
    A("s_add_u32 s28, s28, s29")
    A(f"buffer_store_dwordx4 {v(P,4)}, v5, s[36:39], s28 offen{STF}")
    A(f"buffer_store_dwordx4 {v(P+4,4)}, v5, s[36:39], s28 offen offset:512{STF}")
    stamp_flush(A, 2, 4)
    A.label("attn_end")
    A("s_endpgm")
    A.label("attn_slow")
    A("v_mov_b32 v5, 0xff800000")
    A("s_mov_b32 s28, 0")
    A.label("attn_slow1")
    A(f"buffer_load_dwordx4 {v(KF,4)}, v2, s[8:11], s28 offen")
    A(f"buffer_load_dwordx4 {v(KF+4,4)}, v2, s[8:11], s28 offen offset:1024")
    A("s_waitcnt vmcnt(0)")
    A(mf32(S0, KF, Q, "0"))
    A(mf32(S0, KF+4, Q+4))
    A("s_nop 15")
    A("s_nop 3")
    for i in range(0, 16, 2): A(f"v_max3_f32 v5, v5, {v(S0+i)}, {v(S0+i+1)}")
    A("s_add_u32 s28, s28, 2048")
    A("s_cmp_lt_u32 s28, 131072")
    A("s_cbranch_scc1 attn_slow1")
    A("v_mov_b32 v6, v5")
    A("s_nop 1")
    A("v_permlane32_swap_b32 v6, v5")
    A("s_nop 1")
    A("v_max_f32 v5, v5, v6")
    for i in range(16): A(f"v_sub_f32 {v(NEGM+i)}, 0, v5")
    for i in range(16): A(f"v_mov_b32 {v(O+i)}, 0")
    for i in range(4): A(f"v_mov_b32 {v(L+i)}, 0")
    A("s_mov_b32 s28, 0")
    A.label("attn_slow2")
    A(f"buffer_load_dwordx4 {v(KF,4)}, v2, s[8:11], s28 offen")
    A(f"buffer_load_dwordx4 {v(KF+4,4)}, v2, s[8:11], s28 offen offset:1024")
    A(f"buffer_load_dwordx4 {v(VF,4)}, v2, s[12:15], s28 offen")
    A(f"buffer_load_dwordx4 {v(VF+4,4)}, v2, s[12:15], s28 offen offset:1024")
    A("s_waitcnt vmcnt(0)")
    A(mf32(S0, KF, Q, v(NEGM, 16)))
    A(mf32(S0, KF+4, Q+4))
    A("s_nop 15")
    A("s_nop 3")
    for i in range(16): A(f"v_exp_f32 {v(S0+i)}, {v(S0+i)}")
    A("s_nop 0")
    for i in range(8): A(f"v_cvt_pk_bf16_f32 {v(P+i)}, {v(S0+2*i)}, {v(S0+2*i+1)}")
    A("s_nop 1")
    A(mf32(O, VF, P))
    A(mf32(O, VF+4, P+4))
    A(mf16(L, ONES, P))
    A(mf16(L, ONES, P+4))
    A("s_nop 15")
    A("s_add_u32 s28, s28, 2048")
    A("s_cmp_lt_u32 s28, 131072")
    A("s_cbranch_scc1 attn_slow2")
    A("s_nop 15")
    A("s_branch attn_fin")
    return name, kernel_desc(name, 128, NSG(64)), (256, 512, WL + 65536)

HEADER = open("sequential_preLN__mha_block__glu_gated_glu__prompt.s.ref").read().split("; Override launch")[0]

def build(kernels, path):
    A = Asm()
    infos = [k(A) for k in kernels]
    out = HEADER
    for name, _, (g, b, lds) in infos:
        out += f"; @launch kernel={name} grid=({g},1,1) block=({b},1,1) lds={lds}\n"
    out += '.amdgcn_target "amdgcn-amd-amdhsa--gfx950"\n.text\n'
    out += A.text()
    out += '.section .rodata,"a"\n'
    for _, kd, _ in infos:
        out += kd
    open(path, "w").write(out)

if __name__ == "__main__":
    from g2 import k_wo, k_gu, k_down
    build([k_ln, k_qkv, k_attn, k_wo, k_gu, k_down], sys.argv[1] if len(sys.argv) > 1 else "sequential_preLN__mha_block__glu_gated_glu__prompt.s")
```

```python
from mk import *

def ph_proj(A, ph, is_wo):
    name = "wo" if is_wo else "dn"
    K = 1024 if is_wo else 3584
    ws_x = WS_O if is_wo else WS_HACT
    wp = 40 if is_wo else 42
    R, SLOT, NST = 6, 24576, K // 64
    STATS_LDS = R * SLOT
    A("s_and_b32 s21, s2, 3")
    A("s_lshl_b32 s21, s21, 2")
    A("s_bfe_u32 s28, s2, 0x20003")
    A("s_add_u32 s21, s21, s28")
    A("s_bfe_u32 s22, s2, 0x10002")
    A("s_lshl_b32 s22, s22, 3")
    A("s_lshr_b32 s28, s2, 5")
    A("s_add_u32 s22, s22, s28")
    PSC = OPT("WSC", 0) if is_wo else OPT("DSC", 4)
    PG = min(4, OPT("PG", 4))
    if PSC:
        A("s_add_u32 s39, s21, s22")
        A(f"s_and_b32 s39, s39, {PG-1}")
        A(f"s_mul_i32 s39, s39, {PSC//PG}")
    def wdma():
        if not is_wo:
            return [[f"s_add_u32 m0, {s(sWr)}, {s(sM)}", "s_nop 0",
                     f"buffer_load_dwordx4 v6, s[12:15], {s(sGo)} offen{LDF} lds"],
                    [f"buffer_load_dwordx4 v6, s[12:15], {s(sGo)} offen offset:1024{LDF} lds",
                     ] + adv(8192, PSC)]
        return [[f"s_add_u32 m0, {s(sWr)}, {s(sM)}", "s_nop 0",
                 f"buffer_load_dwordx4 v7, s[12:15], {s(sGo)} offen lds"],
                [f"buffer_load_dwordx4 v8, s[12:15], {s(sGo)} offen offset:1024 lds",
                 ] + adv(64*2048, PSC)]
    DX = 0x40000
    ACC = 32
    def acc(f, i): return ACC + (i * 2 + f) * 4
    SET = [48, 80]
    def xf(p, kk, i): return SET[p] + (kk * 2 + i) * 4
    def wf(p, kk, f): return SET[p] + 16 + (kk * 2 + f) * 4
    RES = 112
    A("s_lshr_b32 s33, s20, 2")
    A("s_lshl_b32 s34, s22, 1")
    A("s_add_u32 s34, s34, s33")
    A("s_lshl_b32 s34, s34, 7")
    A("s_lshl_b32 s35, s21, 3")
    A("s_add_u32 s34, s34, s35")
    A("s_lshl_b32 s35, s31, 1")
    A("s_add_u32 s34, s34, s35")
    A("s_lshl_b32 s34, s34, 10")
    A("s_lshl_b32 s35, s21, 18")
    A("s_lshl_b32 s36, s31, 16")
    A("s_add_u32 s35, s35, s36")
    A("s_lshl_b32 s36, s22, 7")
    A("s_add_u32 s35, s35, s36")
    A("s_lshl_b32 s36, s33, 6")
    A("s_add_u32 s35, s35, s36")
    A("s_add_u32 s36, s35, 32768")
    srd(A, 16, 6, WS_H, 4*MB)
    srd(A, 48, 44, 0, 4*MB)
    if is_wo:
        srd(A, 12, wp, 0, K*2048)
    else:
        A(f"s_mul_i32 s28, s22, {3584*128}")
        A("s_add_u32 s4, s6, s28")
        A("s_addc_u32 s5, s7, 0")
        srd(A, 12, 4, WS_WD, 3584*128)
    srd(A, 8, 6, ws_x, 2048*K*2)
    if is_wo:
        A("v_lshlrev_b32 v9, 11, v5")
        A("v_lshl_add_u32 v9, v2, 3, v9")
        for i in range(2):
            for f in range(2):
                A(f"buffer_load_dwordx2 {v(RES+4*i+2*f,2)}, v9, s[48:51], {s(35+i)} offen offset:{f*32}")
    else:
        for i in range(2):
            A(f"buffer_load_dwordx4 {v(RES+4*i,4)}, v6, s[16:19], s34 offen offset:{i*1024}{LDF}")
    A("s_cmp_lt_u32 s20, 4")
    A(f"s_cbranch_scc1 {name}_A0")
    if is_wo:
        w_swz_voff(A, 7, 2048)
        A(f"v_add_u32 v8, {8*2048-1024}, v7")
        A("s_lshl_b32 s28, s31, 15")
        A("s_lshl_b32 s29, s22, 7")
        A(f"s_add_u32 {s(sGo)}, s28, s29")
    else:
        A(f"s_lshl_b32 {s(sGo)}, s31, 11")
    if PSC: rot_init(A, 64*2048 if is_wo else 8192, PSC)
    A(f"s_lshl_b32 {s(sM)}, s31, 11")
    A(f"s_add_u32 {s(sM)}, {s(sM)}, 16384")
    fill_ring(A, R, SLOT, wdma)
    A(f"s_waitcnt vmcnt({2*R})")
    A(f"s_branch {name}_C0")
    A.label(f"{name}_A0")
    A("s_lshr_b32 s28, s31, 1")
    A("s_lshl_b32 s28, s28, 7")
    A("s_lshl_b32 s29, s21, 3")
    A("s_add_u32 s28, s28, s29")
    A("s_and_b32 s29, s31, 1")
    A("s_lshl_b32 s29, s29, 2")
    A("s_add_u32 s28, s28, s29")
    A(f"s_lshl_b32 {s(sGo)}, s28, 10")
    if PSC: rot_init(A, DX, PSC)
    A(f"s_lshl_b32 {s(sM)}, s31, 12")
    A.label(f"{name}_C0")
    A("s_lshl_b32 s28, s31, 11")
    A("v_add_u32 v10, s28, v6")
    A("v_lshl_add_u32 v11, v2, 2, v3")
    A("v_lshlrev_b32 v11, 7, v11")
    A("v_lshl_add_u32 v11, v4, 3, v11")
    A("v_add_u32 v11, 16384, v11")
    A("v_bfe_u32 v12, v1, 3, 2")
    A("s_lshl_b32 s29, s33, 1")
    A("v_xor_b32 v13, s29, v12")
    A("v_lshl_add_u32 v13, v13, 5, v11")
    A("v_xor_b32 v14, 32, v13")
    A("s_lshr_b32 s32, s21, 1")
    stamp(A, ph, 0)
    wait_flags(A, ph - 1, 32, 32)
    stamp(A, ph, 1)
    def accinit():
        for i in range(2):
            for f in range(2):
                for h in range(2):
                    src = RES + 4*i + 2*f + h
                    A(f"v_lshlrev_b32 {v(acc(f,i)+2*h)}, 16, {v(src)}")
                    A(f"v_and_b32 {v(acc(f,i)+2*h+1)}, 0xffff0000, {v(src)}")
    def reads(p):
        out = []
        for kk in range(2):
            for f in range(2):
                for t in range(2):
                    out.append([f"ds_read_b64_tr_b16 {v(wf(p,kk,f)+2*t,2)}, {v(17+f)} offset:{kk*4096+t*2048}"])
            for i in range(2):
                out.append([f"ds_read_b128 {v(xf(p,kk,i),4)}, v16 offset:{kk*8192+i*1024}"])
        return out
    def addr_upd():
        return [f"v_add_u32 v16, {s(sRd)}, v10", f"v_add_u32 v17, {s(sRd)}, v13", f"v_add_u32 v18, {s(sRd)}, v14"]
    def mfmas(p):
        return [mf16(acc(f, i), wf(p, kk, f), xf(p, kk, i)) for kk in range(2) for f in range(2) for i in range(2)]
    A("s_cmp_ge_u32 s20, 4")
    A(f"s_cbranch_scc1 {name}_B")
    fill_ring(A, R, SLOT, lambda: xdma(DX, PSC), bar=True)
    A(f"s_waitcnt vmcnt({4*R})")
    accinit()
    gemm_loop(A, ph, f"{name}_loopA", "A", R, SLOT, NST, 4, mfmas, reads, lambda: xdma(DX, PSC), addr_upd)
    A(f"s_branch {name}_epi")
    A.label(f"{name}_B")
    accinit()
    fill_ring(A, R, SLOT, None, bar=True)
    gemm_loop(A, ph, f"{name}_loopB", "B", R, SLOT, NST, 2, mfmas, reads, wdma, addr_upd)
    A.label(f"{name}_epi")
    A("s_nop 7")
    T = 112
    for i in range(2):
        for f in range(2):
            for h in range(2):
                A(f"v_cvt_pk_bf16_f32 {v(T+4*i+2*f+h)}, {v(acc(f,i)+2*h)}, {v(acc(f,i)+2*h+1)}")
    if is_wo:
        for i in range(2):
            A(f"buffer_store_dwordx4 {v(T+4*i,4)}, v6, s[16:19], s34 offen offset:{i*1024}{STF}")
        for i in range(2):
            sm, sq = 20 + 2*i, 21 + 2*i
            b = acc(0, i)
            A(f"v_add_f32 {v(sm)}, {v(b)}, {v(b+1)}")
            A(f"v_mul_f32 {v(sq)}, {v(b)}, {v(b)}")
            A(f"v_fmac_f32 {v(sq)}, {v(b+1)}, {v(b+1)}")
            for j in range(2, 8):
                A(f"v_add_f32 {v(sm)}, {v(sm)}, {v(b+j)}")
                A(f"v_fmac_f32 {v(sq)}, {v(b+j)}, {v(b+j)}")
        reduce_rows16_32(A, [20, 21, 22, 23], [24, 25, 26, 27])
        A("s_lshl_b32 s28, s31, 9")
        A("s_lshl_b32 s29, s33, 3")
        A("s_add_u32 s28, s28, s29")
        A(f"s_add_u32 s28, s28, {STATS_LDS}")
        A("v_lshlrev_b32 v24, 4, v5")
        A("v_add_u32 v24, s28, v24")
        A("ds_write_b64 v24, v[20:21]")
        A("ds_write_b64 v24, v[22:23] offset:256")
        A(f"s_load_dwordx4 s[44:47], s[0:1], {KA_WG}")
        A("s_waitcnt lgkmcnt(0)")
        A("s_barrier")
        A("s_cmp_ge_u32 s20, 2")
        A(f"s_cbranch_scc1 {name}_end2")
        A("v_lshlrev_b32 v24, 4, v0")
        A(f"v_add_u32 v24, {STATS_LDS}, v24")
        A("ds_read_b128 v[20:23], v24")
        srd(A, 8, 6, WS_ST, 2048*128)
        A("v_lshlrev_b32 v24, 3, v0")
        A("s_lshl_b32 s28, s21, 10")
        A("s_lshl_b32 s29, s22, 14")
        A("s_add_u32 s28, s28, s29")
        A("s_waitcnt lgkmcnt(0)")
        A("v_add_f32 v20, v20, v22")
        A("v_add_f32 v21, v21, v23")
        A(f"buffer_store_dwordx2 v[20:21], v24, s[8:11], s28 offen{STF}")
        A.label(f"{name}_end2")
        A("s_and_b32 s38, s21, 1")
        A("s_lshl_b32 s38, s38, 4")
        A("s_add_u32 s38, s38, s22")
        A("s_waitcnt vmcnt(0)")
        stamp(A, ph, 4)
        publish(A, ph, 32, 38, drained=True)
    else:
        A("v_lshlrev_b32 v8, 11, v5")
        A("v_and_b32 v9, 1, v2")
        A("v_lshl_add_u32 v8, v9, 5, v8")
        A("v_lshrrev_b32 v9, 1, v2")
        A("v_lshl_add_u32 v8, v9, 4, v8")
        for i in range(2):
            A(f"v_permlane16_swap_b32 {v(T+4*i)}, {v(T+4*i+2)}")
            A(f"v_permlane16_swap_b32 {v(T+4*i+1)}, {v(T+4*i+3)}")
        A("s_nop 1")
        for i in range(2):
            A(f"buffer_store_dwordx4 {v(T+4*i,4)}, v8, s[48:51], {s(35+i)} offen{OUTF}")
        if PROF:
            A("s_waitcnt vmcnt(0)")
            stamp(A, ph, 4)

def ph_gu(A):
    ph = 4
    R, SLOT, NST = 5, 30720, 32
    SL = R * SLOT
    A("s_and_b32 s21, s2, 1")
    A("s_lshl_b32 s21, s21, 2")
    A("s_bfe_u32 s28, s2, 0x20003")
    A("s_add_u32 s21, s21, s28")
    A("s_bfe_u32 s22, s2, 0x20001")
    A("s_lshl_b32 s22, s22, 3")
    A("s_lshr_b32 s28, s2, 5")
    A("s_add_u32 s22, s22, s28")
    def wdma():
        return [[f"s_add_u32 m0, {s(sWr)}, {s(sM)}", "s_mov_b64 exec, s[34:35]",
                 f"buffer_load_dwordx4 v7, s[12:15], {s(sGo)} offen lds",
                 f"buffer_load_dwordx4 v8, s[12:15], {s(sGo)} offen offset:896 lds",
                 f"s_add_u32 m0, m0, 7168", "s_nop 0",
                 f"buffer_load_dwordx4 v7, s[16:19], {s(sGo)} offen lds",
                 f"buffer_load_dwordx4 v8, s[16:19], {s(sGo)} offen offset:896 lds",
                 "s_mov_b64 exec, -1",
                 f"s_add_u32 {s(sGo)}, {s(sGo)}, {32*7168}"]]
    srd(A, 12, 44, 0, 7*MB)
    srd(A, 16, 46, 0, 7*MB)
    srd(A, 8, 6, WS_H, 4*MB)
    A("s_cmp_lt_u32 s20, 4")
    A("s_cbranch_scc1 gu_A0")
    if OPT("CT", 1) >= 2: code_touch(A, 255)
    A("v_mul_u32_u24 v7, 4682, v1")
    A("v_lshrrev_b32 v7, 16, v7")
    A("v_mul_u32_u24 v8, 14, v7")
    A("v_sub_u32 v8, v1, v8")
    A("v_mul_u32_u24 v7, 7168, v7")
    A("v_lshl_add_u32 v7, v8, 4, v7")
    A(f"v_add_u32 v8, {4*7168-896}, v7")
    A("s_mov_b32 s34, -1")
    A("s_mov_b32 s35, 0x00ffffff")
    A(f"s_mul_i32 s28, s31, {8*7168}")
    A("s_mul_i32 s29, s22, 224")
    A(f"s_add_u32 {s(sGo)}, s28, s29")
    A(f"s_mul_i32 {s(sM)}, s31, 1792")
    A(f"s_add_u32 {s(sM)}, {s(sM)}, 16384")
    fill_ring(A, R, SLOT, wdma)
    A("s_branch gu_C0")
    A.label("gu_A0")
    A("s_lshl_b32 s28, s21, 4")
    A("s_lshl_b32 s29, s31, 2")
    A("s_add_u32 s28, s28, s29")
    A(f"s_lshl_b32 {s(sGo)}, s28, 10")
    A(f"s_lshl_b32 {s(sM)}, s31, 12")
    A.label("gu_C0")
    srd(A, 44, 6, WS_ST, 2048*128)
    srd(A, 48, 6, WS_CS, 4*7168*4)
    srd(A, 52, 6, WS_HACT, 2048*3584*2)
    A("s_and_b32 s36, s22, 1")
    A("s_cmp_eq_u32 s36, 1")
    A("s_cselect_b32 s37, 3, 0")
    A("s_cselect_b32 s38, 1, 4")
    A("s_cselect_b32 s39, 0, 6")
    A("s_cmp_ge_u32 s20, 4")
    A("s_cselect_b32 s37, s38, s37")
    A("s_lshl_b32 s28, s31, 12")
    A("v_add_u32 v10, s28, v6")
    A("v_lshl_add_u32 v11, v2, 2, v3")
    A("v_mul_u32_u24 v11, 224, v11")
    A("v_lshl_add_u32 v11, v4, 3, v11")
    A("v_add_u32 v11, 16384, v11")
    A("s_lshl_b32 s28, s39, 5")
    A("v_add_u32 v12, s28, v11")
    A("s_lshl_b32 s28, s37, 5")
    A("v_add_u32 v11, s28, v11")
    A("v_and_b32 v13, 255, v0")
    A("v_lshlrev_b32 v14, 3, v13")
    A("s_lshl_b32 s32, s21, 11")
    A("v_lshlrev_b32 v15, 2, v13")
    A(f"v_add_u32 v9, {(3584-112)*4}, v15")
    A("v_cmp_gt_u32 vcc, 112, v13")
    A("v_mov_b32 v19, 0x7fffffff")
    A("s_mul_i32 s33, s22, 448")
    A("v_cndmask_b32 v15, v9, v15, vcc")
    A("v_cmp_gt_u32 vcc, 224, v13")
    A("s_nop 1")
    A("v_cndmask_b32 v15, v19, v15, vcc")
    for i in range(32, 152): A(f"v_mov_b32 {v(i)}, 0")
    stamp(A, ph, 0)
    wait_flags(A, 3, 21, 32, also_all=2)
    for i in range(24, 32): A(f"v_mov_b32 {v(i)}, 0")
    stamp(A, ph, 1)
    def body(nf, tag):
        def wsrc(j):
            if nf == 3 and j == 2: return 18, 0
            return 17, j * 32
        ACC = 24
        def acc(j, gu, i): return ACC + ((j * 2 + gu) * 4 + i) * 4
        NS = 16 + nf * 8
        SET = [ACC + nf * 32, ACC + nf * 32 + NS]
        def xf(p, i): return SET[p] + i * 4
        def wf(p, j, gu): return SET[p] + 16 + (j * 2 + gu) * 4
        if tag == "A":
            fill_ring(A, R, SLOT, lambda: xdma(0x20000), bar=True)
        else:
            for j in range(16):
                A(f"buffer_load_dwordx2 {v(200+2*j,2)}, v14, s[44:47], s32 offen{LDF}")
                A("s_add_u32 s32, s32, 16384")
            for j in range(4):
                A(f"buffer_load_dword {v(232+j)}, v15, s[48:51], s33 offen{LDF}")
                A(f"s_add_u32 s33, s33, {7168*4}")
            fill_ring(A, R, SLOT, None, bar=True)
            A("s_waitcnt vmcnt(0)")
            for j in range(1, 8):
                A(f"v_pk_add_f32 v[200:201], v[200:201], {v(200+2*j,2)}")
                A(f"v_pk_add_f32 v[216:217], v[216:217], {v(216+2*j,2)}")
            A("v_pk_add_f32 v[200:201], v[200:201], v[216:217]")
            A("v_add_f32 v232, v232, v233")
            A("v_add_f32 v234, v234, v235")
            A("v_add_f32 v232, v232, v234")
            A(f"v_mul_f32 v200, {f32(-1/1024)}, v200")
            A(f"v_mul_f32 v201, {f32(1/1024)}, v201")
            A("v_fma_f32 v201, -v200, v200, v201")
            A("v_max_f32 v201, 0, v201")
            A(f"v_add_f32 v201, {f32(1e-5)}, v201")
            A("v_rsq_f32 v202, v201")
            A("v_sqrt_f32 v203, v201")
            A("v_mov_b32 v201, v200")
            A(f"v_mul_f32 v202, {f32(-LOG2E)}, v202")
            A("v_lshlrev_b32 v14, 4, v13")
            A(f"v_add_u32 v14, {SL}, v14")
            A("ds_write_b128 v14, v[200:203]")
            A("v_lshlrev_b32 v15, 2, v13")
            A(f"v_add_u32 v15, {SL+4096}, v15")
            A("ds_write_b32 v15, v232")
            A("s_waitcnt lgkmcnt(0)")
        def reads(p):
            out = []
            for i in range(4):
                out.append([f"ds_read_b128 {v(xf(p,i),4)}, v16 offset:{i*1024}"])
            for j in range(nf):
                ar, imm = wsrc(j)
                for gu in range(2):
                    for t in range(2):
                        out.append([f"ds_read_b64_tr_b16 {v(wf(p,j,gu)+2*t,2)}, {v(ar)} offset:{imm+gu*7168+t*3584}"])
            return out
        def addr_upd():
            o = [f"v_add_u32 v16, {s(sRd)}, v10", f"v_add_u32 v17, {s(sRd)}, v11"]
            if nf == 3: o.append(f"v_add_u32 v18, {s(sRd)}, v12")
            return o
        def mfmas(p):
            return [mf16(acc(j, gu, i), wf(p, j, gu), xf(p, i)) for j in range(nf) for gu in range(2) for i in range(4)]
        gemm_loop(A, ph, f"gu_loop{tag}", tag, R, SLOT, NST, 4, mfmas, reads, (lambda: xdma(0x20000)) if tag == "A" else wdma, addr_upd)
        STR = 232
        CSR = 200
        A("s_lshl_b32 s28, s31, 10")
        A(f"s_add_u32 s28, s28, {SL}")
        A("v_lshlrev_b32 v14, 4, v5")
        A("v_add_u32 v14, s28, v14")
        for i in range(4):
            A(f"ds_read_b128 {v(STR+4*i,4)}, v14 offset:{i*256}")
        A("v_lshlrev_b32 v9, 4, v2")
        A("s_lshl_b32 s28, s37, 6")
        A(f"s_add_u32 s28, s28, {SL+4096}")
        A("v_add_u32 v14, s28, v9")
        A("s_lshl_b32 s28, s39, 6")
        A(f"s_add_u32 s28, s28, {SL+4096}")
        A("v_add_u32 v15, s28, v9")
        for j in range(nf):
            for gu in range(2):
                ar, imm = (15, 0) if (nf == 3 and j == 2) else (14, j * 64)
                A(f"ds_read_b128 {v(CSR+(j*2+gu)*4,4)}, {v(ar)} offset:{imm+gu*448}")
        A("s_mul_i32 s28, s22, 7")
        A("s_add_u32 s29, s28, s37")
        A("s_lshr_b32 s29, s29, 1")
        A("s_lshl_b32 s29, s29, 17")
        A("s_lshl_b32 s33, s21, 4")
        A("s_lshl_b32 s36, s31, 2")
        A("s_add_u32 s33, s33, s36")
        A("s_lshl_b32 s33, s33, 10")
        A("s_add_u32 s56, s29, s33")
        A("s_add_u32 s57, s56, 0x20000")
        A("s_add_u32 s29, s28, s39")
        A("s_and_b32 s36, s29, 1")
        A("s_lshl_b32 s36, s36, 3")
        A("s_lshr_b32 s29, s29, 1")
        A("s_lshl_b32 s29, s29, 17")
        A("s_add_u32 s58, s29, s33")
        A("s_add_u32 s58, s58, s36")
        T = SET[0]
        tix = 0
        A("s_waitcnt lgkmcnt(0)")
        for jp in range(2):
            js = [2*jp, 2*jp+1] if 2*jp+1 < nf else [2*jp]
            for i in range(4):
                dst = T + 4 * (tix % 8); tix += 1
                c1 = v(STR+4*i+2, 2)
                nm_ = v(STR+4*i, 2)
                for j in js:
                    for gu in range(2):
                        a_ = acc(j, gu, i)
                        for h in range(2): A(f"v_pk_fma_f32 {v(a_+2*h,2)}, {v(CSR+(j*2+gu)*4+2*h,2)}, {nm_}, {v(a_+2*h,2)}")
                for j in js:
                    g_ = acc(j, 0, i)
                    for h in range(2): A(f"v_pk_mul_f32 {v(g_+2*h,2)}, {v(g_+2*h,2)}, {c1} op_sel_hi:[1,0]")
                for j in js:
                    g_ = acc(j, 0, i)
                    for r in range(4): A(f"v_exp_f32 {v(g_+r)}, {v(g_+r)}")
                if len(js) == 1: A("s_nop 0")
                for j in js:
                    g_ = acc(j, 0, i)
                    for h in range(2): A(f"v_pk_fma_f32 {v(g_+2*h,2)}, {v(g_+2*h,2)}, {c1}, {c1} op_sel:[0,1,1] op_sel_hi:[1,1,1]")
                for j in js:
                    g_ = acc(j, 0, i)
                    for r in range(4): A(f"v_rcp_f32 {v(g_+r)}, {v(g_+r)}")
                if len(js) == 1: A("s_nop 0")
                for j in js:
                    g_, u_ = acc(j, 0, i), acc(j, 1, i)
                    for h in range(2): A(f"v_pk_mul_f32 {v(u_+2*h,2)}, {v(u_+2*h,2)}, {v(g_+2*h,2)}")
                for jj, j in enumerate(js):
                    u_ = acc(j, 1, i)
                    for h in range(2):
                        A(f"v_cvt_pk_bf16_f32 {v(dst+2*jj+h)}, {v(u_+2*h)}, {v(u_+2*h+1)}")
                if len(js) == 2:
                    A(f"buffer_store_dwordx4 {v(dst,4)}, v6, s[52:55], {s(56+jp)} offen offset:{i*1024}{STF}")
                else:
                    A(f"buffer_store_dwordx2 {v(dst,2)}, v6, s[52:55], s58 offen offset:{i*1024}{STF}")
    A("s_cmp_ge_u32 s20, 4")
    A("s_cbranch_scc1 gu_B")
    body(4, "A")
    A("s_branch gu_end")
    A.label("gu_B")
    body(3, "B")
    A.label("gu_end")
    A(f"s_load_dwordx2 s[44:45], s[0:1], {KA_OUT}")
    A("s_waitcnt vmcnt(0) lgkmcnt(0)")
    stamp(A, ph, 4)
    publish(A, ph, 21, 22, drained=True)
```

```python
import sys, math, os, struct
from asmlib import *

MB = 1 << 20
WS_XN, WS_Q, WS_K, WS_VT, WS_O, WS_H, WS_ST, WS_CS, WS_FL, WS_HACT = 0, 4*MB, 8*MB, 12*MB, 16*MB, 20*MB, 24*MB, 25*MB, 26*MB, 32*MB
WS_DBG = 48*MB
WS_WD = 64*MB
KA_X, KA_WQKV, KA_WO, KA_BX, KA_WG, KA_WU, KA_WD, KA_OUT, KA_DBG, KA_WS = 0, 8, 16, 24, 32, 40, 48, 56, 64, 72
LOG2E = math.log2(math.e)
QSCALE = LOG2E / math.sqrt(32.0)
def f32(x): return hex(struct.unpack("<I", struct.pack("<f", x))[0])
def OPT(name, default): return int(os.environ.get(name, str(default)))
def SOPT(name, default): return os.environ.get(name, default)
PROF = OPT("PROF", 0)
STF = " sc1"
LDF = SOPT("LDF", " sc1")
OUTF = SOPT("OUTF", "")
NAME = "sequential_preLN__mha_block__glu_gated_glu__prompt_kernel"

sNON = 62
def stamp(A, ph, i):
    if not PROF: return
    A("s_memrealtime s[64:65]")
    A("s_waitcnt lgkmcnt(0)")
    A(f"s_mov_b32 {s(66+ph*6+i)}, s64")
def cyc(A, ph, end):
    if not PROF: return
    A("s_memtime s[64:65]")
    A("s_waitcnt lgkmcnt(0)")
    if not end: A(f"s_mov_b32 {s(66+ph*6+5)}, s64")
    else: A(f"s_sub_u32 {s(66+ph*6+5)}, s64, {s(66+ph*6+5)}")
def stamp_flush(A):
    if not PROF: return
    A("s_mov_b64 exec, 1")
    srd(A, 8, 6, WS_DBG, 16*MB)
    A("s_lshl_b32 s3, s2, 3")
    A("s_add_u32 s3, s3, s20")
    A("s_lshl_b32 s3, s3, 8")
    A("v_mov_b32 v0, 0")
    for i in range(36):
        A(f"v_mov_b32 {v(1+i)}, {s(66+i)}")
    for i in range(36):
        A(f"buffer_store_dword {v(1+i)}, v0, s[8:11], s3 offen offset:{4*i}")

def mf16(d, A_, B_, c=None):
    c = v(d, 4) if c is None else c
    return f"v_mfma_f32_16x16x32_bf16 {v(d,4)}, {v(A_,4)}, {v(B_,4)}, {c}"
def mf32(d, A_, B_, c=None):
    c = v(d, 16) if c is None else c
    return f"v_mfma_f32_32x32x16_bf16 {v(d,16)}, {v(A_,4)}, {v(B_,4)}, {c}"
def reduce_rows16_32(A, xs, ts):
    for op in ("v_permlane16_swap_b32", "v_permlane32_swap_b32"):
        for x, t in zip(xs, ts): A(f"v_mov_b32 {v(t)}, {v(x)}")
        A("s_nop 1")
        for x, t in zip(xs, ts): A(f"{op} {v(t)}, {v(x)}")
        A("s_nop 1")
        for x, t in zip(xs, ts): A(f"v_add_f32 {v(x)}, {v(x)}, {v(t)}")
def lane_decomp(A):
    A("v_and_b32 v1, 63, v0")
    A("v_lshrrev_b32 v2, 4, v1")
    A("v_bfe_u32 v3, v1, 2, 2")
    A("v_and_b32 v4, 3, v1")
    A("v_and_b32 v5, 15, v1")
    A("v_lshlrev_b32 v6, 4, v1")
def emit(A, L):
    for i in L:
        if isinstance(i, list): emit(A, i)
        else: A(i)

SPIN_MAX = 1 << 18
def publish(A, ph, sg, sj, drained=False):
    if not drained: A("s_waitcnt vmcnt(0)")
    A("s_barrier")
    skip = A.newlabel("pub_skip")
    A("s_cmp_lg_u32 s20, 0")
    A(f"s_cbranch_scc1 {skip}")
    srd(A, 56, 6, WS_FL + ph * 4096, 4096)
    A(f"s_lshl_b32 s3, {s(sg)}, 8")
    A(f"s_lshl_b32 s28, {s(sj)}, 3")
    A("s_add_u32 s3, s3, s28")
    A(f"v_mov_b32 v20, {s(sNON)}")
    A(f"v_mov_b32 v21, {s(sNON+1)}")
    A("v_mov_b32 v22, 0")
    A("s_mov_b64 exec, 1")
    A("buffer_store_dwordx2 v[20:21], v22, s[56:59], s3 offen sc1")
    A("s_mov_b64 exec, -1")
    A.label(skip)

def wait_flags(A, ph, sg, n, also_all=None):
    skip = A.newlabel("wf_skip"); loop = A.newlabel("wf_loop"); done = A.newlabel("wf_done")
    A("s_cmp_lg_u32 s20, 0")
    A(f"s_cbranch_scc1 {skip}")
    srd(A, 56, 6, WS_FL, 6 * 4096)
    A(f"s_lshl_b32 s3, {s(sg)}, 8")
    A(f"s_add_u32 s3, s3, {ph*4096}")
    A(f"v_and_b32 v22, {n-1}, v0")
    A("v_lshlrev_b32 v22, 3, v22")
    A("v_lshlrev_b32 v23, 3, v0")
    if also_all is not None: A(f"s_mov_b32 s29, {also_all*4096}")
    A(f"s_mov_b32 s28, {SPIN_MAX}")
    A.label(loop)
    A("buffer_load_dwordx2 v[20:21], v22, s[56:59], s3 offen sc1")
    if also_all is not None:
        for j in range(4):
            A(f"buffer_load_dwordx2 {v(24+2*j,2)}, v23, s[56:59], s29 offen offset:{j*512} sc1")
    A("s_waitcnt vmcnt(0)")
    A(f"v_cmp_ne_u64 vcc, {s(sNON,2)}, v[20:21]")
    if also_all is not None:
        for j in range(4):
            A(f"v_cmp_ne_u64 s[60:61], {s(sNON,2)}, {v(24+2*j,2)}")
            A("s_nop 1")
            A("s_or_b64 vcc, vcc, s[60:61]")
    A("s_nop 1")
    A("s_cmp_eq_u64 vcc, 0")
    A(f"s_cbranch_scc1 {skip}")
    A(f"s_sleep {OPT('SLEEP', 1)}")
    A("s_sub_u32 s28, s28, 1")
    A("s_cmp_lg_u32 s28, 0")
    A(f"s_cbranch_scc1 {loop}")
    A.label(skip)
    A("s_barrier")

sRd, sWr, sGo, sCnt, sM = 23, 24, 25, 27, 30
def ring_advance(slot, R):
    return [f"s_mov_b32 {s(sWr)}, {s(sRd)}",
            f"s_add_u32 {s(sRd)}, {s(sRd)}, {slot}",
            f"s_cmp_eq_u32 {s(sRd)}, {slot*R}",
            f"s_cselect_b32 {s(sRd)}, 0, {s(sRd)}"]

def adv(d, SC=0):
    if not SC: return [f"s_add_u32 {s(sGo)}, {s(sGo)}, {hex(d)}"]
    return ["s_add_u32 s38, s38, 1",
            "s_add_u32 s3, s38, s39",
            f"s_and_b32 s3, s3, {SC-1}",
            f"s_andn2_b32 {s(sGo)}, s38, {SC-1}",
            f"s_or_b32 s3, s3, {s(sGo)}",
            f"s_mul_i32 s3, s3, {hex(d)}",
            f"s_add_u32 {s(sGo)}, s3, s37"]
def rot_init(A, d, SC):
    A(f"s_mov_b32 s37, {s(sGo)}")
    A("s_mov_b32 s38, -1")
    emit(A, adv(d, SC))

def xdma(dX, SC=0):
    g = [[f"s_add_u32 m0, {s(sWr)}, {s(sM)}", "s_nop 0",
          f"buffer_load_dwordx4 v6, s[8:11], {s(sGo)} offen{LDF} lds"]]
    for j in range(1, 4):
        g.append([f"buffer_load_dwordx4 v6, s[8:11], {s(sGo)} offen offset:{j*1024}{LDF} lds"])
    g[-1] += adv(dX, SC)
    return g

def fill_ring(A, R, SLOT, dma, lo=0, hi=None, bar=False):
    for st in range(lo, R if hi is None else hi):
        if dma is not None:
            A(f"s_mov_b32 {s(sWr)}, {st*SLOT}")
            emit(A, dma())
        if bar and st < R - 1: A("s_barrier")

def gemm_loop(A, ph, label, role, R, SLOT, NST, ndma, mfmas, reads, dma_groups, addr_upd):
    A(f"s_mov_b32 {s(sRd)}, 0")
    emit(A, addr_upd())
    A(f"s_waitcnt vmcnt({ndma*(R-1)})")
    A("s_barrier")
    stamp(A, ph, 2); cyc(A, ph, 0)
    emit(A, reads(0))
    emit(A, ring_advance(SLOT, R))
    emit(A, addr_upd())
    A(f"s_mov_b32 {s(sCnt)}, {NST//2}")
    A.raw(".p2align 6")
    A.label(label)
    for p in range(2):
        M = mfmas(p); Rd = reads(1 - p); D = dma_groups()
        nm = len(M)
        A(f"s_waitcnt vmcnt({ndma*(R-2)}) lgkmcnt(0)")
        A("s_barrier")
        if role == "A":
            emit(A, interleave(M, Rd, 0, max(1, nm - 2)))
            emit(A, D)
        else:
            emit(A, D)
            emit(A, interleave(M, Rd, 0, max(1, (2 * nm) // 3)))
        emit(A, ring_advance(SLOT, R))
        emit(A, addr_upd())
    A(f"s_sub_u32 {s(sCnt)}, {s(sCnt)}, 1")
    A(f"s_cmp_lg_u32 {s(sCnt)}, 0")
    A(f"s_cbranch_scc1 {label}")
    A("s_waitcnt lgkmcnt(0)")
    cyc(A, ph, 1); stamp(A, ph, 3)

def w_swz_voff(A, dst, rowstride):
    A(f"v_lshrrev_b32 {v(dst)}, 3, v1")
    A(f"v_mul_u32_u24 {v(dst)}, {rowstride}, {v(dst)}")
    A("v_and_b32 v20, 7, v1")
    A("v_lshlrev_b32 v21, 1, v2")
    A("v_xor_b32 v20, v20, v21")
    A(f"v_lshl_add_u32 {v(dst)}, v20, 4, {v(dst)}")

def ph_ln_qkv(A):
    R, SLOT, NST = 4, 40960, 16
    A(f"s_load_dwordx4 s[40:43], s[0:1], {KA_X}")
    A(f"s_load_dwordx4 s[4:7], s[0:1], {KA_DBG}")
    A("s_memrealtime s[62:63]")
    A("v_lshrrev_b32 v1, 6, v0")
    A("s_nop 0")
    A("v_readfirstlane_b32 s20, v1")
    lane_decomp(A)
    A("s_and_b32 s21, s2, 1")
    A("s_lshl_b32 s21, s21, 3")
    A("s_bfe_u32 s28, s2, 0x30003")
    A("s_add_u32 s21, s21, s28")
    A("s_bfe_u32 s22, s2, 0x20001")
    A("s_lshl_b32 s22, s22, 2")
    A("s_lshr_b32 s28, s2, 6")
    A("s_add_u32 s22, s22, s28")
    A("s_and_b32 s31, s20, 3")
    QSC = OPT("QSC", 16)
    A("s_and_b32 s39, s21, 3")
    A(f"s_mul_i32 s39, s39, {QSC//4}")
    A("s_cmp_ge_u32 s20, 4")
    A("s_cbranch_scc1 p0_B")
    A("v_and_b32 v7, 7, v1")
    A("v_bfe_u32 v8, v1, 3, 2")
    A("v_lshrrev_b32 v9, 5, v1")
    A("v_lshlrev_b32 v10, 11, v7")
    A("v_lshl_add_u32 v10, v9, 6, v10")
    A("v_lshl_add_u32 v10, v8, 3, v10")
    A("s_lshl_b32 s3, s2, 14")
    A("s_lshl_b32 s28, s20, 9")
    A("s_add_u32 s3, s3, s28")
    A("s_waitcnt lgkmcnt(0)")
    if PROF: A("s_mov_b32 s66, s62")
    srd(A, 8, 40, 0, 4*MB)
    for i in range(4):
        A(f"buffer_load_dwordx2 {v(32+4*i,2)}, v10, s[8:11], s3 offen offset:{i*128}")
        A(f"buffer_load_dwordx2 {v(34+4*i,2)}, v10, s[8:11], s3 offen offset:{i*128+32}")
    srd(A, 16, 4, 0, 256)
    A("s_or_b32 s28, s2, s20")
    A("s_cmp_lg_u32 s28, 0")
    A("s_cbranch_scc1 p0_nopub")
    A("s_or_b32 s62, s62, 1")
    A("v_mov_b32 v20, s62")
    A("v_mov_b32 v21, s63")
    A("v_mov_b32 v22, 0")
    A("s_mov_b64 exec, 1")
    A("buffer_store_dwordx2 v[20:21], v22, s[16:19], 0 offen sc1")
    A("s_mov_b64 exec, -1")
    A("s_waitcnt vmcnt(0)")
    A.label("p0_nopub")
    srd(A, 12, 6, WS_XN, 4*MB)
    A("v_lshlrev_b32 v11, 17, v9")
    A("v_lshl_add_u32 v11, v7, 4, v11")
    A("v_lshl_add_u32 v11, v8, 8, v11")
    A("s_lshr_b32 s32, s2, 1")
    A("s_lshl_b32 s32, s32, 10")
    A("s_and_b32 s33, s2, 1")
    A("s_lshl_b32 s33, s33, 7")
    A("s_add_u32 s32, s32, s33")
    A("s_lshl_b32 s33, s20, 20")
    A("s_add_u32 s32, s32, s33")
    A("s_add_u32 s33, s32, 0x40000")
    A("s_add_u32 s34, s32, 0x80000")
    A("s_add_u32 s35, s32, 0xc0000")
    A("v_mov_b32 v24, 0")
    A("v_mov_b32 v25, 0")
    U = 64
    for j in range(16):
        if j % 2 == 0: A(f"s_waitcnt vmcnt({7 - j//2})")
        A(f"v_lshlrev_b32 {v(U+2*j)}, 16, {v(32+j)}")
        A(f"v_and_b32 {v(U+1+2*j)}, 0xffff0000, {v(32+j)}")
        A(f"v_add_f32 v24, v24, {v(U+2*j)}")
        A(f"v_fmac_f32 v25, {v(U+2*j)}, {v(U+2*j)}")
        A(f"v_add_f32 v24, v24, {v(U+1+2*j)}")
        A(f"v_fmac_f32 v25, {v(U+1+2*j)}, {v(U+1+2*j)}")
    A("v_mov_b32 v22, 0")
    A("buffer_load_dwordx2 v[28:29], v22, s[16:19], 0 offen sc1")
    A("v_add_f32_dpp v24, v24, v24 row_ror:8 row_mask:0xf bank_mask:0xf")
    A("v_add_f32_dpp v25, v25, v25 row_ror:8 row_mask:0xf bank_mask:0xf")
    reduce_rows16_32(A, [24, 25], [26, 27])
    A("v_lshlrev_b32 v26, 5, v7")
    A("s_lshl_b32 s28, s20, 3")
    A("v_add_u32 v27, s28, v26")
    A("ds_write_b64 v27, v[24:25]")
    A("s_waitcnt lgkmcnt(0)")
    A("s_barrier")
    A("ds_read_b128 v[100:103], v26")
    A("ds_read_b128 v[104:107], v26 offset:16")
    A("s_waitcnt lgkmcnt(0)")
    A("v_pk_add_f32 v[24:25], v[100:101], v[102:103]")
    A("v_pk_add_f32 v[26:27], v[104:105], v[106:107]")
    A("v_pk_add_f32 v[24:25], v[24:25], v[26:27]")
    A(f"v_mul_f32 v24, {f32(1/1024)}, v24")
    A(f"v_mul_f32 v25, {f32(1/1024)}, v25")
    A("v_fma_f32 v25, -v24, v24, v25")
    A("v_max_f32 v25, 0, v25")
    A(f"v_add_f32 v25, {f32(1e-5)}, v25")
    A("v_rsq_f32 v25, v25")
    A("s_nop 0")
    A("v_mul_f32 v24, v24, v25")
    for j in range(16):
        A(f"v_fma_f32 {v(U+2*j)}, {v(U+2*j)}, v25, -v24")
        A(f"v_fma_f32 {v(U+1+2*j)}, {v(U+1+2*j)}, v25, -v24")
        A(f"v_cvt_pk_bf16_f32 {v(32+j)}, {v(U+2*j)}, {v(U+1+2*j)}")
        if j % 4 == 3:
            A(f"buffer_store_dwordx4 {v(32+j-3,4)}, v11, s[12:15], {s(32+j//4)} offen{STF}")
    stamp(A, 0, 3)
    A(f"s_mov_b32 s28, {SPIN_MAX}")
    A.label("p0_nonce")
    A("s_waitcnt vmcnt(0)")
    A("v_readfirstlane_b32 s62, v28")
    A("v_readfirstlane_b32 s63, v29")
    A("s_nop 1")
    A("s_cmp_lg_u32 s62, 0")
    A("s_cbranch_scc1 p0_gotnonce")
    A("buffer_load_dwordx2 v[28:29], v22, s[16:19], 0 offen sc1")
    A("s_sub_u32 s28, s28, 1")
    A("s_cmp_lg_u32 s28, 0")
    A("s_cbranch_scc1 p0_nonce")
    A.label("p0_gotnonce")
    stamp(A, 0, 4)
    A("s_lshr_b32 s32, s2, 4")
    A("s_and_b32 s33, s2, 15")
    publish(A, 0, 32, 33, drained=True)
    A("v_mov_b32 v12, 0")
    A("s_lshr_b32 s28, s31, 1")
    A("s_lshl_b32 s28, s28, 7")
    A("s_lshl_b32 s29, s21, 3")
    A("s_add_u32 s28, s28, s29")
    A("s_and_b32 s29, s31, 1")
    A("s_lshl_b32 s29, s29, 2")
    A("s_add_u32 s28, s28, s29")
    A(f"s_lshl_b32 {s(sGo)}, s28, 10")
    if QSC: rot_init(A, 0x40000, QSC)
    A(f"s_lshl_b32 {s(sM)}, s31, 12")
    A("s_branch p1_common")
    A.label("p0_B")
    w_swz_voff(A, 7, 6144)
    A(f"v_add_u32 v8, {8*6144-1024}, v7")
    A("v_add_u32 v9, 2048, v7")
    A("v_add_u32 v10, 2048, v8")
    A("v_add_u32 v11, 4096, v7")
    A("v_add_u32 v12, 4096, v8")
    A(f"s_mul_i32 s28, s31, {16*6144}")
    A("s_lshl_b32 s29, s22, 7")
    A(f"s_add_u32 {s(sGo)}, s28, s29")
    if QSC: rot_init(A, 64*6144, QSC)
    A(f"s_lshl_b32 {s(sM)}, s31, 11")
    A(f"s_add_u32 {s(sM)}, {s(sM)}, 16384")
    A("v_and_b32 v13, 31, v1")
    A("v_mul_u32_u24 v13, 6144, v13")
    A("v_lshrrev_b32 v14, 5, v1")
    A("v_lshl_add_u32 v15, v14, 11, v13")
    A("v_lshl_add_u32 v13, v14, 30, v13")
    A("v_add_u32 v13, 4096, v13")
    A("s_and_b32 s28, s21, 7")
    A("s_lshl_b32 s28, s28, 2")
    A("s_add_u32 s28, s28, s31")
    A(f"s_mul_i32 s28, s28, {32*6144}")
    A("s_add_u32 s28, s28, s29")
    A("s_waitcnt lgkmcnt(0)")
    if PROF: A("s_mov_b32 s66, s62")
    srd(A, 12, 42, 0, 6*MB)
    def wdma():
        g = []
        for seg in range(3):
            g.append([f"s_add_u32 m0, {s(sWr)}, {s(sM)}" if seg == 0 else "s_add_u32 m0, m0, 8192", "s_nop 0",
                      f"buffer_load_dwordx4 {v(7+2*seg)}, s[12:15], {s(sGo)} offen lds"])
            g.append([f"buffer_load_dwordx4 {v(8+2*seg)}, s[12:15], {s(sGo)} offen offset:1024 lds"])
        g[-1] += adv(64*6144, QSC)
        return g
    P0M = OPT("P0M", 6)
    def touches():
        A("buffer_load_dword v24, v15, s[12:15], s28 offen")
        A("buffer_load_dword v25, v13, s[12:15], s28 offen")
    if P0M == 0:
        touches()
        fill_ring(A, R, SLOT, wdma, 0, 2)
        A("s_barrier")
        fill_ring(A, R, SLOT, wdma, 2, 4)
        A("s_barrier")
    elif P0M == 1:
        A("s_barrier")
        touches()
        fill_ring(A, R, SLOT, wdma, 0, 2)
        A("s_barrier")
        fill_ring(A, R, SLOT, wdma, 2, 4)
    elif P0M == 2:
        fill_ring(A, R, SLOT, wdma, 0, 2)
        A("s_barrier")
        touches()
        fill_ring(A, R, SLOT, wdma, 2, 4)
        A("s_barrier")
        A("s_waitcnt vmcnt(0)")
    elif P0M == 4:
        A("s_barrier")
        fill_ring(A, R, SLOT, wdma, 0, 2)
        A("s_barrier")
        fill_ring(A, R, SLOT, wdma, 2, 4)
    elif P0M == 5:
        fill_ring(A, R, SLOT, wdma, 0, 4)
        A("s_barrier")
        A("s_barrier")
    elif P0M == 6:
        fill_ring(A, R, SLOT, wdma, 0, 2)
        A("s_barrier")
        A("s_barrier")
        fill_ring(A, R, SLOT, wdma, 2, 4)
    elif P0M == 3:
        fill_ring(A, R, SLOT, wdma, 0, 2)
        A("s_barrier")
        fill_ring(A, R, SLOT, wdma, 2, 4)
        A("s_barrier")

    A.label("p1_common")
    ACC = 64
    def acc(f, i): return ACC + (f * 4 + i) * 4
    SET = [112, 168]
    def xf(p, kk, i): return SET[p] + (kk * 4 + i) * 4
    def wf(p, kk, f): return SET[p] + 32 + (kk * 3 + f) * 4
    srd(A, 8, 6, WS_XN, 4*MB)
    srd(A, 12, 42, 0, 6*MB)
    srd(A, 16, 6, WS_Q, 12*MB)
    A("s_and_b32 s28, s20, 1")
    A("s_lshl_b32 s28, s28, 12")
    A("v_add_u32 v32, s28, v6")
    A("v_lshl_add_u32 v33, v2, 2, v3")
    A("v_lshlrev_b32 v33, 7, v33")
    A("v_lshl_add_u32 v33, v4, 3, v33")
    A("v_add_u32 v33, 16384, v33")
    A("v_bfe_u32 v34, v1, 3, 2")
    A("s_lshr_b32 s28, s20, 1")
    A("s_and_b32 s29, s28, 1")
    A("s_lshl_b32 s29, s29, 1")
    A("s_lshr_b32 s32, s28, 1")
    A("s_lshl_b32 s32, s32, 13")
    A("v_xor_b32 v35, s29, v34")
    A("v_lshl_add_u32 v35, v35, 5, v33")
    A("v_add_u32 v35, s32, v35")
    A("v_xor_b32 v36, 32, v35")
    A("v_xor_b32 v37, s28, v34")
    A("v_lshl_add_u32 v37, v37, 5, v33")
    A("v_add_u32 v37, 16384, v37")
    for i in range(48): A(f"v_mov_b32 {v(ACC+i)}, 0")
    stamp(A, 1, 0)
    wait_flags(A, 0, 21, 16)
    stamp(A, 1, 1)
    def reads(p):
        out = []
        for kk in range(2):
            for f in range(3):
                for t in range(2):
                    out.append([f"ds_read_b64_tr_b16 {v(wf(p,kk,f)+2*t,2)}, {v(17+f)} offset:{kk*4096+t*2048}"])
            for i in range(4):
                out.append([f"ds_read_b128 {v(xf(p,kk,i),4)}, v16 offset:{kk*8192+i*1024}"])
        return out
    def addr_upd():
        return [f"v_add_u32 v16, {s(sRd)}, v32", f"v_add_u32 v17, {s(sRd)}, v35",
                f"v_add_u32 v18, {s(sRd)}, v36", f"v_add_u32 v19, {s(sRd)}, v37"]
    def mfmas(p):
        M = []
        for kk in range(2):
            for f in range(3):
                for i in range(4):
                    if f < 2: M.append(mf16(acc(f, i), wf(p, kk, f), xf(p, kk, i)))
                    else:     M.append(mf16(acc(f, i), xf(p, kk, i), wf(p, kk, f)))
        return M
    A("s_cmp_ge_u32 s20, 4")
    A("s_cbranch_scc1 qkv_B")
    fill_ring(A, R, SLOT, lambda: xdma(0x40000, QSC), bar=True)
    gemm_loop(A, 1, "qkv_loopA", "A", R, SLOT, NST, 4, mfmas, reads, lambda: xdma(0x40000, QSC), addr_upd)
    A("s_branch qkv_epi")
    A.label("qkv_B")
    fill_ring(A, R, SLOT, None, bar=True)
    gemm_loop(A, 1, "qkv_loopB", "B", R, SLOT, NST, 6, mfmas, reads, wdma, addr_upd)
    A.label("qkv_epi")
    A("v_lshlrev_b32 v9, 9, v2")
    A("v_lshrrev_b32 v7, 3, v5")
    A("v_lshl_add_u32 v7, v7, 8, v9")
    A("v_and_b32 v8, 7, v5")
    A("v_lshl_add_u32 v7, v8, 4, v7")
    A("v_lshl_add_u32 v8, v5, 4, v9")
    A("s_lshr_b32 s28, s20, 1")
    A("s_and_b32 s29, s28, 1")
    A("s_lshr_b32 s32, s28, 1")
    A("s_and_b32 s33, s20, 1")
    A("s_lshl_b32 s34, s21, 2")
    A("s_lshl_b32 s33, s33, 1")
    A("s_add_u32 s34, s34, s33")
    A("s_lshl_b32 s34, s34, 11")
    A("s_lshl_b32 s35, s22, 1")
    A("s_add_u32 s36, s35, s29")
    A("s_lshl_b32 s36, s36, 17")
    A("s_add_u32 s36, s36, s34")
    A("s_lshl_b32 s37, s32, 22")
    A("s_add_u32 s36, s36, s37")
    A("s_add_u32 s38, s35, s32")
    A("s_lshl_b32 s38, s38, 17")
    A("s_add_u32 s38, s38, s34")
    A("s_lshl_b32 s37, s29, 8")
    A("s_add_u32 s38, s38, s37")
    A(f"s_add_u32 s38, s38, {8*MB}")
    A("s_cmp_eq_u32 s32, 0")
    A(f"s_cselect_b32 s39, {f32(QSCALE)}, 1.0")
    A("v_mov_b32 v20, s39")
    T = 128
    for pr in range(2):
        for ii in range(2):
            for h in range(2):
                A(f"v_cvt_pk_bf16_f32 {v(T+4*pr+2*ii+h)}, {v(acc(2,2*pr+ii)+2*h)}, {v(acc(2,2*pr+ii)+2*h+1)}")
        A(f"buffer_store_dwordx4 {v(T+4*pr,4)}, v8, s[16:19], s38 offen offset:{pr*2048}{STF}")
    T = 112
    for i in range(4):
        for f in range(2):
            for h in range(2):
                A(f"v_pk_mul_f32 {v(acc(f,i)+2*h,2)}, {v(acc(f,i)+2*h,2)}, v[20:21] op_sel_hi:[1,0]")
        for f in range(2):
            for h in range(2):
                A(f"v_cvt_pk_bf16_f32 {v(T+4*i+2*f+h)}, {v(acc(f,i)+2*h)}, {v(acc(f,i)+2*h+1)}")
        A(f"buffer_store_dwordx4 {v(T+4*i,4)}, v7, s[16:19], s36 offen offset:{(i>>1)*2048+(i&1)*128}{STF}")
    A(f"s_load_dwordx2 s[40:41], s[0:1], {KA_WO}")
    A(f"s_load_dwordx4 s[44:47], s[0:1], {KA_WG}")
    A(f"s_load_dwordx2 s[42:43], s[0:1], {KA_WD}")
    A("s_waitcnt vmcnt(0) lgkmcnt(0)")
    stamp(A, 1, 4)
    publish(A, 1, 22, 21, drained=True)

def ph_attn(A):
    R, SLOT = 3, 32768
    WL = R * SLOT
    Q, NEGM, S0, S1, P, KF, VF, O, L, ONES = 8, 32, 48, 64, 80, 88, 96, 104, 120, 124
    S_ = [S0, S1]
    A("s_and_b32 s21, s2, 7")
    A("s_lshl_b32 s21, s21, 2")
    A("s_bfe_u32 s28, s2, 0x20003")
    A("s_add_u32 s21, s21, s28")
    A("s_lshr_b32 s22, s2, 5")
    A("s_lshr_b32 s32, s2, 1")
    A("s_and_b32 s33, s2, 1")
    sCo, sCM = 26, 29
    A("s_cmp_ge_u32 s32, 56")
    A("s_cselect_b32 s48, s46, s44")
    A("s_cselect_b32 s49, s47, s45")
    A("s_cselect_b32 s34, 56, 0")
    A("s_sub_u32 s34, s32, s34")
    A("s_mov_b32 s51, 0x20000")
    A("s_lshl_b32 s34, s34, 7")
    A(f"s_mul_i32 s35, s33, {512*7168}")
    A("s_add_u32 s34, s34, s35")
    A(f"s_add_u32 s35, s35, {512*7168}")
    A("s_cmp_lt_u32 s2, 224")
    A("s_cselect_b32 s50, s35, 0")
    A(f"s_mul_i32 s35, s31, {16*7168}")
    A(f"s_add_u32 {s(sCo)}, s34, s35")
    w_swz_voff(A, 7, 7168)
    A(f"v_add_u32 v129, {8*7168-1024}, v7")
    srd(A, 52, 40, 0, 2*MB)
    srd(A, 44, 42, 0, 7*MB)
    A("s_lshl_b32 s35, s2, 2")
    A("s_add_u32 s35, s35, s31")
    A("v_lshlrev_b32 v8, 7, v1")
    A("v_mov_b32 v9, 0x7fffffff")
    A("s_lshl_b32 s34, s35, 11")
    A("v_add_u32 v130, s34, v8")
    A("v_cmp_gt_u32 vcc, 16, v1")
    A("s_lshl_b32 s60, s35, 10")
    A("s_nop 0")
    A("v_cndmask_b32 v130, v9, v130, vcc")
    A("s_and_b32 s34, s35, 1")
    A("s_lshl_b32 s34, s34, 3")
    A("v_lshrrev_b32 v8, 3, v1")
    A("v_add_u32 v8, s34, v8")
    A(f"v_mul_u32_u24 v8, {3584*128}, v8")
    A("s_bfe_u32 s34, s35, 0x20002")
    A("s_lshl_b32 s34, s34, 1")
    A("v_and_b32 v9, 7, v1")
    A("v_xor_b32 v9, s34, v9")
    A("v_lshl_add_u32 v131, v9, 4, v8")
    A("s_lshr_b32 s61, s35, 1")
    A("s_lshl_b32 s61, s61, 7")
    A(f"s_sub_u32 s61, s61, {512*128}")
    CP = 140
    def cp_load():
        return [f"buffer_load_dwordx4 {v(CP,4)}, v6, s[44:47], s60 offen", f"s_add_u32 s60, s60, {MB}"]
    def cp_store():
        return [f"s_cmp_lt_u32 s61, {3584*128}", f"s_cselect_b32 s58, {7*MB}, 0",
                f"buffer_store_dwordx4 {v(CP,4)}, v131, s[56:59], s61 offen{STF}", f"s_add_u32 s61, s61, {512*128}"]
    def cs_dma(j):
        if j == 0:
            return [f"s_mov_b32 m0, {s(sCM)}", f"s_add_u32 {s(sCM)}, {s(sCM)}, 8192",
                    f"buffer_load_dwordx4 v7, s[48:51], {s(sCo)} offen lds"]
        return [f"buffer_load_dwordx4 v129, s[48:51], {s(sCo)} offen offset:1024 lds",
                f"s_add_u32 {s(sCo)}, {s(sCo)}, {64*7168}"]
    A("s_lshl_b32 s28, s21, 17")
    A("s_add_u32 s4, s6, s28")
    A("s_addc_u32 s5, s7, 0")
    srd(A, 8, 4, WS_K, 131072)
    srd(A, 12, 4, WS_VT, 131072)
    srd(A, 16, 4, WS_Q, 131072)
    srd(A, 36, 6, WS_O, 4*MB)
    A(f"s_lshl_b32 {s(sGo)}, s31, 12")
    A(f"s_lshl_b32 {s(sM)}, s31, 12")
    A("v_lshrrev_b32 v16, 2, v1")
    A("v_xor_b32 v16, v16, v2")
    A("v_and_b32 v16, 1, v16")
    A("v_cmp_eq_u32 vcc, 0, v16")
    A("v_mov_b32 v17, 0x3f803f80")
    A("s_nop 1")
    for i in range(4): A(f"v_cndmask_b32 {v(ONES+i)}, 0, v17, vcc")
    for i in range(16): A(f"v_mov_b32 {v(O+i)}, 0")
    for i in range(4): A(f"v_mov_b32 {v(L+i)}, 0")
    for i in range(4): A(f"v_mov_b32 {v(P+4+i)}, 0")
    for i in range(4): A(f"v_mov_b32 {v(VF+4+i)}, 0")
    A("v_mov_b32 v16, v6")
    A(f"v_add_u32 v17, {SLOT}, v6")
    A(f"s_mov_b32 {s(sRd)}, {SLOT}")
    A("s_lshr_b32 s34, s21, 1")
    A("s_lshl_b32 s35, s22, 3")
    A("s_add_u32 s35, s35, s20")
    A("s_lshl_b32 s35, s35, 11")
    stamp(A, 2, 0)
    wait_flags(A, 1, 34, 16)
    stamp(A, 2, 1)
    def kv(j):
        o = []
        if j % 4 == 0: o = [f"s_add_u32 m0, {s(sWr)}, {16384 if j >= 4 else 0}", "s_nop 0"]
        o += [f"buffer_load_dwordx4 v6, {'s[8:11]' if j < 4 else 's[12:15]'}, {s(sGo)} offen offset:{(j&3)*1024}{LDF} lds"]
        if j == 7:
            o += [f"s_add_u32 {s(sGo)}, {s(sGo)}, 16384",
                  f"s_add_u32 {s(sWr)}, {s(sWr)}, {SLOT}",
                  f"s_cmp_ge_u32 {s(sWr)}, {SLOT*R}",
                  f"s_cselect_b32 {s(sWr)}, {s(sM)}, {s(sWr)}"]
        return o
    srd(A, 56, 6, WS_WD, 7*MB)
    A(f"s_mov_b32 {s(sWr)}, {s(sM)}")
    A(f"s_lshl_b32 {s(sCM)}, s31, 11")
    A(f"s_add_u32 {s(sCM)}, {s(sCM)}, {WL}")
    A("s_cmp_ge_u32 s20, 4")
    A("s_cbranch_scc1 at_B0")
    for j in range(4): emit(A, kv(j))
    A("s_branch at_C0")
    A.label("at_B0")
    for j in range(4, 7): emit(A, kv(j))
    emit(A, kv(7)[:1])
    A.label("at_C0")
    A(f"buffer_load_dwordx4 {v(Q,4)}, v6, s[16:19], s35 offen{LDF}")
    A(f"buffer_load_dwordx4 {v(Q+4,4)}, v6, s[16:19], s35 offen offset:1024{LDF}")
    emit(A, kv(7)[1:])
    A("s_waitcnt vmcnt(0)")
    A("s_barrier")
    stamp(A, 2, 2); cyc(A, 2, 0)
    def kread(t, j, dst=None):
        a_ = 16 if t < 8 else 17
        return f"ds_read_b128 {v(KF+4*j if dst is None else dst,4)}, {v(a_)} offset:{(t%8)*2048+j*1024}"
    def vread(t, j):
        a_ = 16 if t < 8 else 17
        return f"ds_read_b128 {v(VF+4*j,4)}, {v(a_)} offset:{16384+(t%8)*2048+j*1024}"
    A(kread(0, 0, S1)); A(kread(0, 1, S1+4))
    A(kread(1, 0)); A(kread(1, 1)); A(vread(0, 0))
    A("s_cmp_ge_u32 s20, 4")
    A("s_cbranch_scc1 at_C1")
    for j in range(4): emit(A, kv(j))
    A("buffer_load_dword v128, v130, s[52:55], 0 offen")
    emit(A, cs_dma(0)); emit(A, cs_dma(1))
    A.label("at_C1")
    A("s_waitcnt lgkmcnt(3)")
    A(mf32(S0, S1, Q, "0"))
    A(mf32(S0, S1+4, Q+4))
    A("s_nop 15")
    A("s_nop 3")
    A(f"v_max3_f32 v18, {v(S0)}, {v(S0+1)}, {v(S0+2)}")
    for i in range(3, 15, 2): A(f"v_max3_f32 v18, v18, {v(S0+i)}, {v(S0+i+1)}")
    A(f"v_max_f32 v18, v18, {v(S0+15)}")
    A("v_mov_b32 v19, v18")
    A("s_nop 1")
    A("v_permlane32_swap_b32 v19, v18")
    A("s_nop 1")
    A("v_max_f32 v18, v18, v19")
    for i in range(16): A(f"v_sub_f32 {v(NEGM+i)}, 0, v18")
    for i in range(16): A(f"v_sub_f32 {v(S0+i)}, {v(S0+i)}, v18")
    A(f"s_mov_b32 {s(sCnt)}, 8")
    A("s_waitcnt lgkmcnt(0)")
    def loop(role):
        A.raw(".p2align 6")
        A.label(f"attn_loop{role}")
        for t in range(8):
            c, n = S_[t % 2], S_[1 - t % 2]
            E = lambda i: f"v_exp_f32 {v(c+i)}, {v(c+i)}"
            C = lambda i: f"v_cvt_pk_bf16_f32 {v(P+i)}, {v(c+2*i)}, {v(c+2*i+1)}"
            X = {6: (kv(0), kv(1)), 7: (kv(2), kv(3)), 0: (kv(4), kv(5)), 1: (kv(6), kv(7)),
                 2: (["s_waitcnt vmcnt(10)"] + cp_store(), cp_load()), 3: (cs_dma(0), cs_dma(1)), 4: ([], []), 5: ([], [])}[t]
            if role == "B": X = ([], [])
            if t == 6:
                if role == "A": A("s_waitcnt vmcnt(4)")
                A("s_barrier")
            A("s_waitcnt lgkmcnt(2)")
            A(mf32(n, KF, Q, v(NEGM, 16)))
            A(kread(t + 2, 0))
            emit(A, [E(0), E(1), E(2)])
            A(mf32(O, VF+4, P+4))
            A(vread(t, 1))
            emit(A, X[0])
            emit(A, [E(3), E(4), E(5), E(6)])
            A("s_waitcnt lgkmcnt(2)")
            A(mf32(n, KF+4, Q+4))
            A(kread(t + 2, 1))
            emit(A, [E(7), C(0), C(1), C(2), C(3), E(8)])
            A(mf16(L, ONES, P+4))
            emit(A, [E(9), E(10)])
            A(mf32(O, VF, P))
            A(vread(t + 1, 0))
            emit(A, X[1])
            emit(A, [E(11), E(12), E(13), E(14)])
            A(mf16(L, ONES, P))
            if t == 7:
                A(f"s_add_u32 {s(sRd)}, {s(sRd)}, {SLOT}")
                A(f"s_cmp_eq_u32 {s(sRd)}, {SLOT*R}")
                A(f"s_cselect_b32 {s(sRd)}, 0, {s(sRd)}")
                A("v_mov_b32 v16, v17")
                A(f"v_add_u32 v17, {s(sRd)}, v6")
                A(f"s_sub_u32 {s(sCnt)}, {s(sCnt)}, 1")
                A(f"s_cmp_lg_u32 {s(sCnt)}, 0")
            emit(A, [E(15), C(4), C(5), C(6), C(7)])
        A(f"s_cbranch_scc1 attn_loop{role}")
    A("s_cmp_ge_u32 s20, 4")
    A("s_cbranch_scc1 attn_loopB")
    loop("A")
    A("s_branch attn_post")
    loop("B")
    A.label("attn_post")
    A("s_waitcnt lgkmcnt(0)")
    A("s_nop 0")
    A(mf32(O, VF+4, P+4))
    A(mf16(L, ONES, P+4))
    cyc(A, 2, 1); stamp(A, 2, 3)
    A("s_waitcnt vmcnt(0)")
    A("s_barrier")
    A("v_lshrrev_b32 v18, 2, v1")
    A("v_lshlrev_b32 v18, 7, v18")
    A("v_lshl_add_u32 v18, v4, 3, v18")
    A("v_bfe_u32 v19, v1, 3, 2")
    A("v_xor_b32 v19, s31, v19")
    A("v_lshl_add_u32 v18, v19, 5, v18")
    A("s_lshr_b32 s29, s20, 2")
    A("s_lshl_b32 s34, s29, 15")
    A(f"s_add_u32 s34, s34, {WL}")
    A("v_add_u32 v18, s34, v18")
    CSW = S0
    for ks in range(8):
        for t in range(2):
            A(f"ds_read_b64_tr_b16 {v(CSW+4*ks+2*t,2)}, v18 offset:{ks*4096+t*2048}")
    for i in range(4): A(f"v_mov_b32 {v(132+i)}, 0x3f803f80")
    A(f"v_add_f32 v18, |{v(O)}|, {v(L)}")
    for i in range(1, 16): A(f"v_add_f32 v18, |{v(O+i)}|, v18")
    A(f"v_mov_b32 v19, {f32(2.0**120)}")
    A("v_cmp_nlt_f32 vcc, v18, v19")
    A("s_waitcnt lgkmcnt(0)")
    for ks in range(8):
        A(mf16(136, CSW+4*ks, 132, "0" if ks == 0 else None))
    A("s_cmp_eq_u64 vcc, 0")
    A("s_cbranch_scc0 attn_slow")
    A.label("attn_fin")
    A(f"v_rcp_f32 v18, {v(L)}")
    A("s_nop 0")
    for i in range(16): A(f"v_mul_f32 {v(O+i)}, {v(O+i)}, v18")
    for pc in range(2):
        for hh in range(2):
            run = pc + 2 * hh
            for j in range(2):
                A(f"v_cvt_pk_bf16_f32 {v(P+4*pc+2*hh+j)}, {v(O+4*run+2*j)}, {v(O+4*run+2*j+1)}")
    A("v_bfe_u32 v18, v1, 3, 1")
    A("v_lshlrev_b32 v18, 10, v18")
    A("v_bfe_u32 v19, v1, 4, 1")
    A("v_lshl_add_u32 v18, v19, 7, v18")
    A("v_and_b32 v19, 7, v1")
    A("v_lshl_add_u32 v18, v19, 4, v18")
    A("v_lshrrev_b32 v19, 5, v1")
    A("v_lshl_add_u32 v18, v19, 8, v18")
    A("s_lshl_b32 s28, s21, 17")
    A("s_add_u32 s28, s28, s35")
    A(f"buffer_store_dwordx4 {v(P,4)}, v18, s[36:39], s28 offen{STF}")
    A(f"buffer_store_dwordx4 {v(P+4,4)}, v18, s[36:39], s28 offen offset:512{STF}")
    srd(A, 48, 6, WS_CS, 4*7168*4)
    A("s_lshl_b32 s33, s33, 1")
    A("s_add_u32 s33, s33, s29")
    A(f"s_mul_i32 s33, s33, {7168*4}")
    A("s_lshl_b32 s34, s32, 8")
    A("s_add_u32 s33, s33, s34")
    A("s_lshl_b32 s34, s31, 6")
    A("s_add_u32 s33, s33, s34")
    A("v_cmp_ne_u32 vcc, 0, v5")
    A("v_mov_b32 v19, 0x7fffffff")
    A("s_cmp_lt_u32 s2, 224")
    A(f"s_cselect_b32 s50, {4*7168*4}, 0")
    A("v_cndmask_b32 v19, v1, v19, vcc")
    A(f"buffer_store_dwordx4 v[136:139], v19, s[48:51], s33 offen{STF}")
    A(f"s_load_dwordx2 s[44:45], s[0:1], {KA_X}")
    A("s_waitcnt vmcnt(0) lgkmcnt(0)")
    stamp(A, 2, 4)
    publish(A, 2, 22, 21, drained=True)
    def slow():
        A.label("attn_slow")
        A("v_mov_b32 v18, 0xff800000")
        A("s_mov_b32 s28, 0")
        A.label("attn_slow1")
        A(f"buffer_load_dwordx4 {v(KF,4)}, v6, s[8:11], s28 offen{LDF}")
        A(f"buffer_load_dwordx4 {v(KF+4,4)}, v6, s[8:11], s28 offen offset:1024{LDF}")
        A("s_waitcnt vmcnt(0)")
        A("s_nop 15")
        A(mf32(S0, KF, Q, "0"))
        A(mf32(S0, KF+4, Q+4))
        A("s_nop 15")
        A("s_nop 3")
        for i in range(0, 16, 2): A(f"v_max3_f32 v18, v18, {v(S0+i)}, {v(S0+i+1)}")
        A("s_add_u32 s28, s28, 2048")
        A("s_cmp_lt_u32 s28, 131072")
        A("s_cbranch_scc1 attn_slow1")
        A("v_mov_b32 v19, v18")
        A("s_nop 1")
        A("v_permlane32_swap_b32 v19, v18")
        A("s_nop 1")
        A("v_max_f32 v18, v18, v19")
        for i in range(16): A(f"v_sub_f32 {v(NEGM+i)}, 0, v18")
        for i in range(16): A(f"v_mov_b32 {v(O+i)}, 0")
        for i in range(4): A(f"v_mov_b32 {v(L+i)}, 0")
        A("s_mov_b32 s28, 0")
        A.label("attn_slow2")
        A(f"buffer_load_dwordx4 {v(KF,4)}, v6, s[8:11], s28 offen{LDF}")
        A(f"buffer_load_dwordx4 {v(KF+4,4)}, v6, s[8:11], s28 offen offset:1024{LDF}")
        A(f"buffer_load_dwordx4 {v(VF,4)}, v6, s[12:15], s28 offen{LDF}")
        A(f"buffer_load_dwordx4 {v(VF+4,4)}, v6, s[12:15], s28 offen offset:1024{LDF}")
        A("s_waitcnt vmcnt(0)")
        A(mf32(S0, KF, Q, v(NEGM, 16)))
        A(mf32(S0, KF+4, Q+4))
        A("s_nop 15")
        A("s_nop 3")
        for i in range(16): A(f"v_exp_f32 {v(S0+i)}, {v(S0+i)}")
        A("s_nop 0")
        for i in range(8): A(f"v_cvt_pk_bf16_f32 {v(P+i)}, {v(S0+2*i)}, {v(S0+2*i+1)}")
        A("s_nop 1")
        A(mf32(O, VF, P))
        A(mf32(O, VF+4, P+4))
        A(mf16(L, ONES, P))
        A(mf16(L, ONES, P+4))
        A("s_nop 15")
        A("s_add_u32 s28, s28, 2048")
        A("s_cmp_lt_u32 s28, 131072")
        A("s_cbranch_scc1 attn_slow2")
        A("s_nop 15")
        A("s_branch attn_fin")
    return slow

HEADER = open("sequential_preLN__mha_block__glu_gated_glu__prompt.s.ref").read().split("; Override launch")[0]

def build(path):
    from mk2 import ph_proj, ph_gu
    A = Asm()
    A.raw(f".globl {NAME}"); A.raw(".p2align 8"); A.raw(f".type {NAME},@function"); A.label(NAME)
    A("s_cmp_ge_u32 s2, 256")
    A("s_cbranch_scc1 the_end")
    ph_ln_qkv(A)
    slow = ph_attn(A)
    ph_proj(A, 3, True)
    ph_gu(A)
    ph_proj(A, 5, False)
    stamp_flush(A)
    A.label("the_end")
    A("s_endpgm")
    slow()
    out = HEADER
    out += "; @launch grid=(256,1,1) block=(512,1,1) lds=163840\n"
    out += '.amdgcn_target "amdgcn-amd-amdhsa--gfx950"\n.text\n'
    out += A.text()
    out += '.section .rodata,"a"\n'
    out += kernel_desc(NAME, 256, 102 if PROF else 64)
    open(path, "w").write(out)

if __name__ == "__main__":
    build(sys.argv[1] if len(sys.argv) > 1 else "sequential_preLN__mha_block__glu_gated_glu__prompt.s")
```

```python
import sys, math, os, struct
from asmlib import *

MB = 1 << 20
WS_XN, WS_Q, WS_K, WS_VT, WS_O, WS_H, WS_ST, WS_CS, WS_FL, WS_HACT = 0, 4*MB, 8*MB, 12*MB, 16*MB, 20*MB, 24*MB, 25*MB, 26*MB, 32*MB
WS_DBG = 48*MB
WS_WD = 64*MB
KA_X, KA_WQKV, KA_WO, KA_BX, KA_WG, KA_WU, KA_WD, KA_OUT, KA_DBG, KA_WS = 0, 8, 16, 24, 32, 40, 48, 56, 64, 72
LOG2E = math.log2(math.e)
QSCALE = LOG2E / math.sqrt(32.0)
def f32(x): return hex(struct.unpack("<I", struct.pack("<f", x))[0])
def OPT(name, default): return int(os.environ.get(name, str(default)))
def SOPT(name, default): return os.environ.get(name, default)
PROF = OPT("PROF", 0)
STF = " sc1"
LDF = SOPT("LDF", " sc1")
OUTF = SOPT("OUTF", "")
NAME = "sequential_preLN__mha_block__glu_gated_glu__prompt_kernel"

sNON = 62
def stamp(A, ph, i):
    if not PROF: return
    A("s_memrealtime s[64:65]")
    A("s_waitcnt lgkmcnt(0)")
    A(f"s_mov_b32 {s(66+ph*6+i)}, s64")
def cyc(A, ph, end):
    if not PROF: return
    A("s_memtime s[64:65]")
    A("s_waitcnt lgkmcnt(0)")
    if not end: A(f"s_mov_b32 {s(66+ph*6+5)}, s64")
    else: A(f"s_sub_u32 {s(66+ph*6+5)}, s64, {s(66+ph*6+5)}")
def stamp_flush(A):
    if not PROF: return
    A("s_mov_b64 exec, 1")
    srd(A, 8, 6, WS_DBG, 16*MB)
    A("s_lshl_b32 s3, s2, 3")
    A("s_add_u32 s3, s3, s20")
    A("s_lshl_b32 s3, s3, 8")
    A("v_mov_b32 v0, 0")
    for i in range(36):
        A(f"v_mov_b32 {v(1+i)}, {s(66+i)}")
    for i in range(36):
        A(f"buffer_store_dword {v(1+i)}, v0, s[8:11], s3 offen offset:{4*i}")

def mf16(d, A_, B_, c=None):
    c = v(d, 4) if c is None else c
    return f"v_mfma_f32_16x16x32_bf16 {v(d,4)}, {v(A_,4)}, {v(B_,4)}, {c}"
def mf32(d, A_, B_, c=None):
    c = v(d, 16) if c is None else c
    return f"v_mfma_f32_32x32x16_bf16 {v(d,16)}, {v(A_,4)}, {v(B_,4)}, {c}"
def reduce_rows16_32(A, xs, ts):
    for op in ("v_permlane16_swap_b32", "v_permlane32_swap_b32"):
        for x, t in zip(xs, ts): A(f"v_mov_b32 {v(t)}, {v(x)}")
        A("s_nop 1")
        for x, t in zip(xs, ts): A(f"{op} {v(t)}, {v(x)}")
        A("s_nop 1")
        for x, t in zip(xs, ts): A(f"v_add_f32 {v(x)}, {v(x)}, {v(t)}")
def lane_decomp(A):
    A("v_and_b32 v1, 63, v0")
    A("v_lshrrev_b32 v2, 4, v1")
    A("v_bfe_u32 v3, v1, 2, 2")
    A("v_and_b32 v4, 3, v1")
    A("v_and_b32 v5, 15, v1")
    A("v_lshlrev_b32 v6, 4, v1")
def emit(A, L):
    for i in L:
        if isinstance(i, list): emit(A, i)
        else: A(i)

SPIN_MAX = 1 << 18
def publish(A, ph, sg, sj, drained=False):
    if not drained: A("s_waitcnt vmcnt(0)")
    A("s_barrier")
    skip = A.newlabel("pub_skip")
    A("s_cmp_lg_u32 s20, 0")
    A(f"s_cbranch_scc1 {skip}")
    srd(A, 56, 6, WS_FL + ph * 4096, 4096)
    A(f"s_lshl_b32 s3, {s(sg)}, 8")
    A(f"s_lshl_b32 s28, {s(sj)}, 3")
    A("s_add_u32 s3, s3, s28")
    A(f"v_mov_b32 v20, {s(sNON)}")
    A(f"v_mov_b32 v21, {s(sNON+1)}")
    A("v_mov_b32 v22, 0")
    A("s_mov_b64 exec, 1")
    A("buffer_store_dwordx2 v[20:21], v22, s[56:59], s3 offen sc1")
    A("s_mov_b64 exec, -1")
    A.label(skip)

def wait_flags(A, ph, sg, n, also_all=None):
    skip = A.newlabel("wf_skip"); loop = A.newlabel("wf_loop"); done = A.newlabel("wf_done")
    A("s_cmp_lg_u32 s20, 0")
    A(f"s_cbranch_scc1 {skip}")
    srd(A, 56, 6, WS_FL, 6 * 4096)
    A(f"s_lshl_b32 s3, {s(sg)}, 8")
    A(f"s_add_u32 s3, s3, {ph*4096}")
    A(f"v_and_b32 v22, {n-1}, v0")
    A("v_lshlrev_b32 v22, 3, v22")
    A("v_lshlrev_b32 v23, 3, v0")
    if also_all is not None: A(f"s_mov_b32 s29, {also_all*4096}")
    A(f"s_mov_b32 s28, {SPIN_MAX}")
    A.label(loop)
    A("buffer_load_dwordx2 v[20:21], v22, s[56:59], s3 offen sc1")
    if also_all is not None:
        for j in range(4):
            A(f"buffer_load_dwordx2 {v(24+2*j,2)}, v23, s[56:59], s29 offen offset:{j*512} sc1")
    A("s_waitcnt vmcnt(0)")
    A(f"v_cmp_ne_u64 vcc, {s(sNON,2)}, v[20:21]")
    if also_all is not None:
        for j in range(4):
            A(f"v_cmp_ne_u64 s[60:61], {s(sNON,2)}, {v(24+2*j,2)}")
            A("s_nop 1")
            A("s_or_b64 vcc, vcc, s[60:61]")
    A("s_nop 1")
    A("s_cmp_eq_u64 vcc, 0")
    A(f"s_cbranch_scc1 {skip}")
    A(f"s_sleep {OPT('SLEEP', 1)}")
    A("s_sub_u32 s28, s28, 1")
    A("s_cmp_lg_u32 s28, 0")
    A(f"s_cbranch_scc1 {loop}")
    A.label(skip)
    A("s_barrier")

sRd, sWr, sGo, sCnt, sM = 23, 24, 25, 27, 30
def ring_advance(slot, R):
    return [f"s_mov_b32 {s(sWr)}, {s(sRd)}",
            f"s_add_u32 {s(sRd)}, {s(sRd)}, {slot}",
            f"s_cmp_eq_u32 {s(sRd)}, {slot*R}",
            f"s_cselect_b32 {s(sRd)}, 0, {s(sRd)}"]

def adv(d, SC=0):
    if not SC: return [f"s_add_u32 {s(sGo)}, {s(sGo)}, {hex(d)}"]
    return ["s_add_u32 s38, s38, 1",
            "s_add_u32 s3, s38, s39",
            f"s_and_b32 s3, s3, {SC-1}",
            f"s_andn2_b32 {s(sGo)}, s38, {SC-1}",
            f"s_or_b32 s3, s3, {s(sGo)}",
            f"s_mul_i32 s3, s3, {hex(d)}",
            f"s_add_u32 {s(sGo)}, s3, s37"]
def rot_init(A, d, SC):
    A(f"s_mov_b32 s37, {s(sGo)}")
    A("s_mov_b32 s38, -1")
    emit(A, adv(d, SC))

def xdma(dX, SC=0):
    g = [[f"s_add_u32 m0, {s(sWr)}, {s(sM)}", "s_nop 0",
          f"buffer_load_dwordx4 v6, s[8:11], {s(sGo)} offen{LDF} lds"]]
    for j in range(1, 4):
        g.append([f"buffer_load_dwordx4 v6, s[8:11], {s(sGo)} offen offset:{j*1024}{LDF} lds"])
    g[-1] += adv(dX, SC)
    return g

def fill_ring(A, R, SLOT, dma, lo=0, hi=None, bar=False):
    for st in range(lo, R if hi is None else hi):
        if dma is not None:
            A(f"s_mov_b32 {s(sWr)}, {st*SLOT}")
            emit(A, dma())
        if bar and st < R - 1: A("s_barrier")

def gemm_loop(A, ph, label, role, R, SLOT, NST, ndma, mfmas, reads, dma_groups, addr_upd):
    A(f"s_mov_b32 {s(sRd)}, 0")
    emit(A, addr_upd())
    A(f"s_waitcnt vmcnt({ndma*(R-1)})")
    A("s_barrier")
    stamp(A, ph, 2); cyc(A, ph, 0)
    emit(A, reads(0))
    emit(A, ring_advance(SLOT, R))
    emit(A, addr_upd())
    A(f"s_mov_b32 {s(sCnt)}, {NST//2}")
    A.raw(".p2align 6")
    A.label(label)
    for p in range(2):
        M = mfmas(p); Rd = reads(1 - p); D = dma_groups()
        nm = len(M)
        A(f"s_waitcnt vmcnt({ndma*(R-2)}) lgkmcnt(0)")
        A("s_barrier")
        if role == "A":
            emit(A, interleave(M, Rd, 0, max(1, nm - 2)))
            emit(A, D)
        else:
            emit(A, D)
            emit(A, interleave(M, Rd, 0, max(1, (2 * nm) // 3)))
        emit(A, ring_advance(SLOT, R))
        emit(A, addr_upd())
    A(f"s_sub_u32 {s(sCnt)}, {s(sCnt)}, 1")
    A(f"s_cmp_lg_u32 {s(sCnt)}, 0")
    A(f"s_cbranch_scc1 {label}")
    A("s_waitcnt lgkmcnt(0)")
    cyc(A, ph, 1); stamp(A, ph, 3)

def code_touch(A, vd=26):
    if not OPT("CT", 1): return
    l = A.newlabel("ct")
    A("s_getpc_b64 s[56:57]")
    A.label(l)
    A(f"s_sub_u32 s56, s56, {l}-{NAME}")
    A("s_subb_u32 s57, s57, 0")
    A(f"s_mov_b32 s58, code_end-{NAME}")
    A("s_mov_b32 s59, 0x20000")
    A("v_lshlrev_b32 v20, 7, v1")
    A("s_lshl_b32 s28, s31, 13")
    A(f"buffer_load_dword {v(vd)}, v20, s[56:59], s28 offen")

def w_swz_voff(A, dst, rowstride):
    A(f"v_lshrrev_b32 {v(dst)}, 3, v1")
    A(f"v_mul_u32_u24 {v(dst)}, {rowstride}, {v(dst)}")
    A("v_and_b32 v20, 7, v1")
    A("v_lshlrev_b32 v21, 1, v2")
    A("v_xor_b32 v20, v20, v21")
    A(f"v_lshl_add_u32 {v(dst)}, v20, 4, {v(dst)}")

def ph_ln_qkv(A):
    R, SLOT, NST = 4, 40960, 16
    A(f"s_load_dwordx4 s[40:43], s[0:1], {KA_X}")
    A(f"s_load_dwordx4 s[4:7], s[0:1], {KA_DBG}")
    A("s_memrealtime s[62:63]")
    A("v_lshrrev_b32 v1, 6, v0")
    A("s_nop 0")
    A("v_readfirstlane_b32 s20, v1")
    lane_decomp(A)
    A("s_and_b32 s21, s2, 1")
    A("s_lshl_b32 s21, s21, 3")
    A("s_bfe_u32 s28, s2, 0x30003")
    A("s_add_u32 s21, s21, s28")
    A("s_bfe_u32 s22, s2, 0x20001")
    A("s_lshl_b32 s22, s22, 2")
    A("s_lshr_b32 s28, s2, 6")
    A("s_add_u32 s22, s22, s28")
    A("s_and_b32 s31, s20, 3")
    QSC = OPT("QSC", 16)
    A("s_and_b32 s39, s21, 3")
    A(f"s_mul_i32 s39, s39, {QSC//4}")
    A("s_cmp_ge_u32 s20, 4")
    A("s_cbranch_scc1 p0_B")
    A("v_and_b32 v7, 7, v1")
    A("v_bfe_u32 v8, v1, 3, 2")
    A("v_lshrrev_b32 v9, 5, v1")
    A("v_lshlrev_b32 v10, 11, v7")
    A("v_lshl_add_u32 v10, v9, 6, v10")
    A("v_lshl_add_u32 v10, v8, 3, v10")
    A("s_lshl_b32 s3, s2, 14")
    A("s_lshl_b32 s28, s20, 9")
    A("s_add_u32 s3, s3, s28")
    A("s_waitcnt lgkmcnt(0)")
    if PROF: A("s_mov_b32 s66, s62")
    srd(A, 8, 40, 0, 4*MB)
    for i in range(4):
        A(f"buffer_load_dwordx2 {v(32+4*i,2)}, v10, s[8:11], s3 offen offset:{i*128}")
        A(f"buffer_load_dwordx2 {v(34+4*i,2)}, v10, s[8:11], s3 offen offset:{i*128+32}")
    srd(A, 16, 4, 0, 256)
    A("s_or_b32 s28, s2, s20")
    A("s_cmp_lg_u32 s28, 0")
    A("s_cbranch_scc1 p0_nopub")
    A("s_or_b32 s62, s62, 1")
    A("v_mov_b32 v20, s62")
    A("v_mov_b32 v21, s63")
    A("v_mov_b32 v22, 0")
    A("s_mov_b64 exec, 1")
    A("buffer_store_dwordx2 v[20:21], v22, s[16:19], 0 offen sc1")
    A("s_mov_b64 exec, -1")
    A("s_waitcnt vmcnt(0)")
    A.label("p0_nopub")
    srd(A, 12, 6, WS_XN, 4*MB)
    A("v_lshlrev_b32 v11, 17, v9")
    A("v_lshl_add_u32 v11, v7, 4, v11")
    A("v_lshl_add_u32 v11, v8, 8, v11")
    A("s_lshr_b32 s32, s2, 1")
    A("s_lshl_b32 s32, s32, 10")
    A("s_and_b32 s33, s2, 1")
    A("s_lshl_b32 s33, s33, 7")
    A("s_add_u32 s32, s32, s33")
    A("s_lshl_b32 s33, s20, 20")
    A("s_add_u32 s32, s32, s33")
    A("s_add_u32 s33, s32, 0x40000")
    A("s_add_u32 s34, s32, 0x80000")
    A("s_add_u32 s35, s32, 0xc0000")
    A("v_mov_b32 v24, 0")
    A("v_mov_b32 v25, 0")
    U = 64
    for j in range(16):
        if j % 2 == 0: A(f"s_waitcnt vmcnt({7 - j//2})")
        A(f"v_lshlrev_b32 {v(U+2*j)}, 16, {v(32+j)}")
        A(f"v_and_b32 {v(U+1+2*j)}, 0xffff0000, {v(32+j)}")
        A(f"v_add_f32 v24, v24, {v(U+2*j)}")
        A(f"v_fmac_f32 v25, {v(U+2*j)}, {v(U+2*j)}")
        A(f"v_add_f32 v24, v24, {v(U+1+2*j)}")
        A(f"v_fmac_f32 v25, {v(U+1+2*j)}, {v(U+1+2*j)}")
    A("v_mov_b32 v22, 0")
    A("buffer_load_dwordx2 v[28:29], v22, s[16:19], 0 offen sc1")
    A("v_add_f32_dpp v24, v24, v24 row_ror:8 row_mask:0xf bank_mask:0xf")
    A("v_add_f32_dpp v25, v25, v25 row_ror:8 row_mask:0xf bank_mask:0xf")
    reduce_rows16_32(A, [24, 25], [26, 27])
    A("v_lshlrev_b32 v26, 5, v7")
    A("s_lshl_b32 s28, s20, 3")
    A("v_add_u32 v27, s28, v26")
    A("ds_write_b64 v27, v[24:25]")
    A("s_waitcnt lgkmcnt(0)")
    A("s_barrier")
    A("ds_read_b128 v[100:103], v26")
    A("ds_read_b128 v[104:107], v26 offset:16")
    A("s_waitcnt lgkmcnt(0)")
    A("v_pk_add_f32 v[24:25], v[100:101], v[102:103]")
    A("v_pk_add_f32 v[26:27], v[104:105], v[106:107]")
    A("v_pk_add_f32 v[24:25], v[24:25], v[26:27]")
    A(f"v_mul_f32 v24, {f32(1/1024)}, v24")
    A(f"v_mul_f32 v25, {f32(1/1024)}, v25")
    A("v_fma_f32 v25, -v24, v24, v25")
    A("v_max_f32 v25, 0, v25")
    A(f"v_add_f32 v25, {f32(1e-5)}, v25")
    A("v_rsq_f32 v25, v25")
    A("s_nop 0")
    A("v_mul_f32 v24, v24, v25")
    for j in range(16):
        A(f"v_fma_f32 {v(U+2*j)}, {v(U+2*j)}, v25, -v24")
        A(f"v_fma_f32 {v(U+1+2*j)}, {v(U+1+2*j)}, v25, -v24")
        A(f"v_cvt_pk_bf16_f32 {v(32+j)}, {v(U+2*j)}, {v(U+1+2*j)}")
        if j % 4 == 3:
            A(f"buffer_store_dwordx4 {v(32+j-3,4)}, v11, s[12:15], {s(32+j//4)} offen{STF}")
    stamp(A, 0, 3)
    A(f"s_mov_b32 s28, {SPIN_MAX}")
    A.label("p0_nonce")
    A("s_waitcnt vmcnt(0)")
    A("v_readfirstlane_b32 s62, v28")
    A("v_readfirstlane_b32 s63, v29")
    A("s_nop 1")
    A("s_cmp_lg_u32 s62, 0")
    A("s_cbranch_scc1 p0_gotnonce")
    A("buffer_load_dwordx2 v[28:29], v22, s[16:19], 0 offen sc1")
    A("s_sub_u32 s28, s28, 1")
    A("s_cmp_lg_u32 s28, 0")
    A("s_cbranch_scc1 p0_nonce")
    A.label("p0_gotnonce")
    stamp(A, 0, 4)
    A("s_lshr_b32 s32, s2, 4")
    A("s_and_b32 s33, s2, 15")
    publish(A, 0, 32, 33, drained=True)
    A("v_mov_b32 v12, 0")
    A("s_lshr_b32 s28, s31, 1")
    A("s_lshl_b32 s28, s28, 7")
    A("s_lshl_b32 s29, s21, 3")
    A("s_add_u32 s28, s28, s29")
    A("s_and_b32 s29, s31, 1")
    A("s_lshl_b32 s29, s29, 2")
    A("s_add_u32 s28, s28, s29")
    A(f"s_lshl_b32 {s(sGo)}, s28, 10")
    if QSC: rot_init(A, 0x40000, QSC)
    A(f"s_lshl_b32 {s(sM)}, s31, 12")
    A("s_branch p1_common")
    A.label("p0_B")
    code_touch(A)
    w_swz_voff(A, 7, 6144)
    A(f"v_add_u32 v8, {8*6144-1024}, v7")
    A("v_add_u32 v9, 2048, v7")
    A("v_add_u32 v10, 2048, v8")
    A("v_add_u32 v11, 4096, v7")
    A("v_add_u32 v12, 4096, v8")
    A(f"s_mul_i32 s28, s31, {16*6144}")
    A("s_lshl_b32 s29, s22, 7")
    A(f"s_add_u32 {s(sGo)}, s28, s29")
    if QSC: rot_init(A, 64*6144, QSC)
    A(f"s_lshl_b32 {s(sM)}, s31, 11")
    A(f"s_add_u32 {s(sM)}, {s(sM)}, 16384")
    A("v_and_b32 v13, 31, v1")
    A("v_mul_u32_u24 v13, 6144, v13")
    A("v_lshrrev_b32 v14, 5, v1")
    A("v_lshl_add_u32 v15, v14, 11, v13")
    A("v_lshl_add_u32 v13, v14, 30, v13")
    A("v_add_u32 v13, 4096, v13")
    A("s_and_b32 s28, s21, 7")
    A("s_lshl_b32 s28, s28, 2")
    A("s_add_u32 s28, s28, s31")
    A(f"s_mul_i32 s28, s28, {32*6144}")
    A("s_add_u32 s28, s28, s29")
    A("s_waitcnt lgkmcnt(0)")
    if PROF: A("s_mov_b32 s66, s62")
    srd(A, 12, 42, 0, 6*MB)
    def wdma():
        g = []
        for seg in range(3):
            g.append([f"s_add_u32 m0, {s(sWr)}, {s(sM)}" if seg == 0 else "s_add_u32 m0, m0, 8192", "s_nop 0",
                      f"buffer_load_dwordx4 {v(7+2*seg)}, s[12:15], {s(sGo)} offen lds"])
            g.append([f"buffer_load_dwordx4 {v(8+2*seg)}, s[12:15], {s(sGo)} offen offset:1024 lds"])
        g[-1] += adv(64*6144, QSC)
        return g
    P0M = OPT("P0M", 6)
    def touches():
        A("buffer_load_dword v24, v15, s[12:15], s28 offen")
        A("buffer_load_dword v25, v13, s[12:15], s28 offen")
    if P0M == 0:
        touches()
        fill_ring(A, R, SLOT, wdma, 0, 2)
        A("s_barrier")
        fill_ring(A, R, SLOT, wdma, 2, 4)
        A("s_barrier")
    elif P0M == 1:
        A("s_barrier")
        touches()
        fill_ring(A, R, SLOT, wdma, 0, 2)
        A("s_barrier")
        fill_ring(A, R, SLOT, wdma, 2, 4)
    elif P0M == 2:
        fill_ring(A, R, SLOT, wdma, 0, 2)
        A("s_barrier")
        touches()
        fill_ring(A, R, SLOT, wdma, 2, 4)
        A("s_barrier")
        A("s_waitcnt vmcnt(0)")
    elif P0M == 4:
        A("s_barrier")
        fill_ring(A, R, SLOT, wdma, 0, 2)
        A("s_barrier")
        fill_ring(A, R, SLOT, wdma, 2, 4)
    elif P0M == 5:
        fill_ring(A, R, SLOT, wdma, 0, 4)
        A("s_barrier")
        A("s_barrier")
    elif P0M == 6:
        fill_ring(A, R, SLOT, wdma, 0, 2)
        A("s_barrier")
        A("s_barrier")
        fill_ring(A, R, SLOT, wdma, 2, 4)
    elif P0M == 3:
        fill_ring(A, R, SLOT, wdma, 0, 2)
        A("s_barrier")
        fill_ring(A, R, SLOT, wdma, 2, 4)
        A("s_barrier")

    A.label("p1_common")
    ACC = 64
    def acc(f, i): return ACC + (f * 4 + i) * 4
    SET = [112, 168]
    def xf(p, kk, i): return SET[p] + (kk * 4 + i) * 4
    def wf(p, kk, f): return SET[p] + 32 + (kk * 3 + f) * 4
    srd(A, 8, 6, WS_XN, 4*MB)
    srd(A, 12, 42, 0, 6*MB)
    srd(A, 16, 6, WS_Q, 12*MB)
    A("s_and_b32 s28, s20, 1")
    A("s_lshl_b32 s28, s28, 12")
    A("v_add_u32 v32, s28, v6")
    A("v_lshl_add_u32 v33, v2, 2, v3")
    A("v_lshlrev_b32 v33, 7, v33")
    A("v_lshl_add_u32 v33, v4, 3, v33")
    A("v_add_u32 v33, 16384, v33")
    A("v_bfe_u32 v34, v1, 3, 2")
    A("s_lshr_b32 s28, s20, 1")
    A("s_and_b32 s29, s28, 1")
    A("s_lshl_b32 s29, s29, 1")
    A("s_lshr_b32 s32, s28, 1")
    A("s_lshl_b32 s32, s32, 13")
    A("v_xor_b32 v35, s29, v34")
    A("v_lshl_add_u32 v35, v35, 5, v33")
    A("v_add_u32 v35, s32, v35")
    A("v_xor_b32 v36, 32, v35")
    A("v_xor_b32 v37, s28, v34")
    A("v_lshl_add_u32 v37, v37, 5, v33")
    A("v_add_u32 v37, 16384, v37")
    for i in range(48): A(f"v_mov_b32 {v(ACC+i)}, 0")
    stamp(A, 1, 0)
    wait_flags(A, 0, 21, 16)
    stamp(A, 1, 1)
    def reads(p):
        out = []
        for kk in range(2):
            for f in range(3):
                for t in range(2):
                    out.append([f"ds_read_b64_tr_b16 {v(wf(p,kk,f)+2*t,2)}, {v(17+f)} offset:{kk*4096+t*2048}"])
            for i in range(4):
                out.append([f"ds_read_b128 {v(xf(p,kk,i),4)}, v16 offset:{kk*8192+i*1024}"])
        return out
    def addr_upd():
        return [f"v_add_u32 v16, {s(sRd)}, v32", f"v_add_u32 v17, {s(sRd)}, v35",
                f"v_add_u32 v18, {s(sRd)}, v36", f"v_add_u32 v19, {s(sRd)}, v37"]
    def mfmas(p):
        M = []
        for kk in range(2):
            for f in range(3):
                for i in range(4):
                    if f < 2: M.append(mf16(acc(f, i), wf(p, kk, f), xf(p, kk, i)))
                    else:     M.append(mf16(acc(f, i), xf(p, kk, i), wf(p, kk, f)))
        return M
    A("s_cmp_ge_u32 s20, 4")
    A("s_cbranch_scc1 qkv_B")
    fill_ring(A, R, SLOT, lambda: xdma(0x40000, QSC), bar=True)
    gemm_loop(A, 1, "qkv_loopA", "A", R, SLOT, NST, 4, mfmas, reads, lambda: xdma(0x40000, QSC), addr_upd)
    A("s_branch qkv_epi")
    A.label("qkv_B")
    fill_ring(A, R, SLOT, None, bar=True)
    gemm_loop(A, 1, "qkv_loopB", "B", R, SLOT, NST, 6, mfmas, reads, wdma, addr_upd)
    A.label("qkv_epi")
    A("v_lshlrev_b32 v9, 9, v2")
    A("v_lshrrev_b32 v7, 3, v5")
    A("v_lshl_add_u32 v7, v7, 8, v9")
    A("v_and_b32 v8, 7, v5")
    A("v_lshl_add_u32 v7, v8, 4, v7")
    A("v_lshl_add_u32 v8, v5, 4, v9")
    A("s_lshr_b32 s28, s20, 1")
    A("s_and_b32 s29, s28, 1")
    A("s_lshr_b32 s32, s28, 1")
    A("s_and_b32 s33, s20, 1")
    A("s_lshl_b32 s34, s21, 2")
    A("s_lshl_b32 s33, s33, 1")
    A("s_add_u32 s34, s34, s33")
    A("s_lshl_b32 s34, s34, 11")
    A("s_lshl_b32 s35, s22, 1")
    A("s_add_u32 s36, s35, s29")
    A("s_lshl_b32 s36, s36, 17")
    A("s_add_u32 s36, s36, s34")
    A("s_lshl_b32 s37, s32, 22")
    A("s_add_u32 s36, s36, s37")
    A("s_add_u32 s38, s35, s32")
    A("s_lshl_b32 s38, s38, 17")
    A("s_add_u32 s38, s38, s34")
    A("s_lshl_b32 s37, s29, 8")
    A("s_add_u32 s38, s38, s37")
    A(f"s_add_u32 s38, s38, {8*MB}")
    A("s_cmp_eq_u32 s32, 0")
    A(f"s_cselect_b32 s39, {f32(QSCALE)}, 1.0")
    A("v_mov_b32 v20, s39")
    T = 128
    for pr in range(2):
        for ii in range(2):
            for h in range(2):
                A(f"v_cvt_pk_bf16_f32 {v(T+4*pr+2*ii+h)}, {v(acc(2,2*pr+ii)+2*h)}, {v(acc(2,2*pr+ii)+2*h+1)}")
        A(f"buffer_store_dwordx4 {v(T+4*pr,4)}, v8, s[16:19], s38 offen offset:{pr*2048}{STF}")
    T = 112
    for i in range(4):
        for f in range(2):
            for h in range(2):
                A(f"v_pk_mul_f32 {v(acc(f,i)+2*h,2)}, {v(acc(f,i)+2*h,2)}, v[20:21] op_sel_hi:[1,0]")
        for f in range(2):
            for h in range(2):
                A(f"v_cvt_pk_bf16_f32 {v(T+4*i+2*f+h)}, {v(acc(f,i)+2*h)}, {v(acc(f,i)+2*h+1)}")
        A(f"buffer_store_dwordx4 {v(T+4*i,4)}, v7, s[16:19], s36 offen offset:{(i>>1)*2048+(i&1)*128}{STF}")
    A(f"s_load_dwordx2 s[40:41], s[0:1], {KA_WO}")
    A(f"s_load_dwordx4 s[44:47], s[0:1], {KA_WG}")
    A(f"s_load_dwordx2 s[42:43], s[0:1], {KA_WD}")
    A("s_waitcnt vmcnt(0) lgkmcnt(0)")
    stamp(A, 1, 4)
    publish(A, 1, 22, 21, drained=True)

def ph_attn(A):
    R, SLOT = 3, 32768
    WL = R * SLOT
    Q, NEGM, S0, S1, P, KF, VF, O, L, ONES = 8, 32, 48, 64, 80, 88, 96, 104, 120, 124
    S_ = [S0, S1]
    A("s_and_b32 s21, s2, 7")
    A("s_lshl_b32 s21, s21, 2")
    A("s_bfe_u32 s28, s2, 0x20003")
    A("s_add_u32 s21, s21, s28")
    A("s_lshr_b32 s22, s2, 5")
    A("s_lshr_b32 s32, s2, 1")
    A("s_and_b32 s33, s2, 1")
    sCo, sCM = 26, 29
    A("s_cmp_ge_u32 s32, 56")
    A("s_cselect_b32 s48, s46, s44")
    A("s_cselect_b32 s49, s47, s45")
    A("s_cselect_b32 s34, 56, 0")
    A("s_sub_u32 s34, s32, s34")
    A("s_mov_b32 s51, 0x20000")
    A("s_lshl_b32 s34, s34, 7")
    A(f"s_mul_i32 s35, s33, {512*7168}")
    A("s_add_u32 s34, s34, s35")
    A(f"s_add_u32 s35, s35, {512*7168}")
    A("s_cmp_lt_u32 s2, 224")
    A("s_cselect_b32 s50, s35, 0")
    A(f"s_mul_i32 s35, s31, {16*7168}")
    A(f"s_add_u32 {s(sCo)}, s34, s35")
    w_swz_voff(A, 7, 7168)
    A(f"v_add_u32 v129, {8*7168-1024}, v7")
    srd(A, 52, 40, 0, 2*MB)
    srd(A, 44, 42, 0, 7*MB)
    A("s_lshl_b32 s35, s2, 2")
    A("s_add_u32 s35, s35, s31")
    A("v_lshlrev_b32 v8, 7, v1")
    A("v_mov_b32 v9, 0x7fffffff")
    A("s_lshl_b32 s34, s35, 11")
    A("v_add_u32 v130, s34, v8")
    A("v_cmp_gt_u32 vcc, 16, v1")
    A("s_lshl_b32 s60, s35, 10")
    A("s_nop 0")
    A("v_cndmask_b32 v130, v9, v130, vcc")
    A("s_and_b32 s34, s35, 1")
    A("s_lshl_b32 s34, s34, 3")
    A("v_lshrrev_b32 v8, 3, v1")
    A("v_add_u32 v8, s34, v8")
    A(f"v_mul_u32_u24 v8, {3584*128}, v8")
    A("s_bfe_u32 s34, s35, 0x20002")
    A("s_lshl_b32 s34, s34, 1")
    A("v_and_b32 v9, 7, v1")
    A("v_xor_b32 v9, s34, v9")
    A("v_lshl_add_u32 v131, v9, 4, v8")
    A("s_lshr_b32 s61, s35, 1")
    A("s_lshl_b32 s61, s61, 7")
    A(f"s_sub_u32 s61, s61, {512*128}")
    CP = 140
    def cp_load():
        return [f"buffer_load_dwordx4 {v(CP,4)}, v6, s[44:47], s60 offen", f"s_add_u32 s60, s60, {MB}"]
    def cp_store():
        return [f"s_cmp_lt_u32 s61, {3584*128}", f"s_cselect_b32 s58, {7*MB}, 0",
                f"buffer_store_dwordx4 {v(CP,4)}, v131, s[56:59], s61 offen{STF}", f"s_add_u32 s61, s61, {512*128}"]
    def cs_dma(j):
        if j == 0:
            return [f"s_mov_b32 m0, {s(sCM)}", f"s_add_u32 {s(sCM)}, {s(sCM)}, 8192",
                    f"buffer_load_dwordx4 v7, s[48:51], {s(sCo)} offen lds"]
        return [f"buffer_load_dwordx4 v129, s[48:51], {s(sCo)} offen offset:1024 lds",
                f"s_add_u32 {s(sCo)}, {s(sCo)}, {64*7168}"]
    A("s_lshl_b32 s28, s21, 17")
    A("s_add_u32 s4, s6, s28")
    A("s_addc_u32 s5, s7, 0")
    srd(A, 8, 4, WS_K, 131072)
    srd(A, 12, 4, WS_VT, 131072)
    srd(A, 16, 4, WS_Q, 131072)
    srd(A, 36, 6, WS_O, 4*MB)
    A(f"s_lshl_b32 {s(sGo)}, s31, 12")
    A(f"s_lshl_b32 {s(sM)}, s31, 12")
    A("v_lshrrev_b32 v16, 2, v1")
    A("v_xor_b32 v16, v16, v2")
    A("v_and_b32 v16, 1, v16")
    A("v_cmp_eq_u32 vcc, 0, v16")
    A("v_mov_b32 v17, 0x3f803f80")
    A("s_nop 1")
    for i in range(4): A(f"v_cndmask_b32 {v(ONES+i)}, 0, v17, vcc")
    for i in range(16): A(f"v_mov_b32 {v(O+i)}, 0")
    for i in range(4): A(f"v_mov_b32 {v(L+i)}, 0")
    for i in range(4): A(f"v_mov_b32 {v(P+4+i)}, 0")
    for i in range(4): A(f"v_mov_b32 {v(VF+4+i)}, 0")
    A("v_mov_b32 v16, v6")
    A(f"v_add_u32 v17, {SLOT}, v6")
    A(f"s_mov_b32 {s(sRd)}, {SLOT}")
    A("s_lshr_b32 s34, s21, 1")
    A("s_lshl_b32 s35, s22, 3")
    A("s_add_u32 s35, s35, s20")
    A("s_lshl_b32 s35, s35, 11")
    stamp(A, 2, 0)
    wait_flags(A, 1, 34, 16)
    stamp(A, 2, 1)
    def kv(j):
        o = []
        if j % 4 == 0: o = [f"s_add_u32 m0, {s(sWr)}, {16384 if j >= 4 else 0}", "s_nop 0"]
        o += [f"buffer_load_dwordx4 v6, {'s[8:11]' if j < 4 else 's[12:15]'}, {s(sGo)} offen offset:{(j&3)*1024}{LDF} lds"]
        if j == 7:
            o += [f"s_add_u32 {s(sGo)}, {s(sGo)}, 16384",
                  f"s_add_u32 {s(sWr)}, {s(sWr)}, {SLOT}",
                  f"s_cmp_ge_u32 {s(sWr)}, {SLOT*R}",
                  f"s_cselect_b32 {s(sWr)}, {s(sM)}, {s(sWr)}"]
        return o
    srd(A, 56, 6, WS_WD, 7*MB)
    A(f"s_mov_b32 {s(sWr)}, {s(sM)}")
    A(f"s_lshl_b32 {s(sCM)}, s31, 11")
    A(f"s_add_u32 {s(sCM)}, {s(sCM)}, {WL}")
    A("s_cmp_ge_u32 s20, 4")
    A("s_cbranch_scc1 at_B0")
    for j in range(4): emit(A, kv(j))
    A("s_branch at_C0")
    A.label("at_B0")
    for j in range(4, 7): emit(A, kv(j))
    emit(A, kv(7)[:1])
    A.label("at_C0")
    A(f"buffer_load_dwordx4 {v(Q,4)}, v6, s[16:19], s35 offen{LDF}")
    A(f"buffer_load_dwordx4 {v(Q+4,4)}, v6, s[16:19], s35 offen offset:1024{LDF}")
    emit(A, kv(7)[1:])
    A("s_waitcnt vmcnt(0)")
    A("s_barrier")
    stamp(A, 2, 2); cyc(A, 2, 0)
    def kread(t, j, dst=None):
        a_ = 16 if t < 8 else 17
        return f"ds_read_b128 {v(KF+4*j if dst is None else dst,4)}, {v(a_)} offset:{(t%8)*2048+j*1024}"
    def vread(t, j):
        a_ = 16 if t < 8 else 17
        return f"ds_read_b128 {v(VF+4*j,4)}, {v(a_)} offset:{16384+(t%8)*2048+j*1024}"
    A(kread(0, 0, S1)); A(kread(0, 1, S1+4))
    A(kread(1, 0)); A(kread(1, 1)); A(vread(0, 0))
    A("s_cmp_ge_u32 s20, 4")
    A("s_cbranch_scc1 at_C1")
    for j in range(4): emit(A, kv(j))
    A("buffer_load_dword v128, v130, s[52:55], 0 offen")
    emit(A, cs_dma(0)); emit(A, cs_dma(1))
    if OPT("CT", 1) >= 2:
        A("s_branch at_C2")
    A.label("at_C1")
    if OPT("CT", 1) >= 2:
        code_touch(A, 128)
        srd(A, 56, 6, WS_WD, 7*MB)
        A.label("at_C2")
    A("s_waitcnt lgkmcnt(3)")
    A(mf32(S0, S1, Q, "0"))
    A(mf32(S0, S1+4, Q+4))
    A("s_nop 15")
    A("s_nop 3")
    A(f"v_max3_f32 v18, {v(S0)}, {v(S0+1)}, {v(S0+2)}")
    for i in range(3, 15, 2): A(f"v_max3_f32 v18, v18, {v(S0+i)}, {v(S0+i+1)}")
    A(f"v_max_f32 v18, v18, {v(S0+15)}")
    A("v_mov_b32 v19, v18")
    A("s_nop 1")
    A("v_permlane32_swap_b32 v19, v18")
    A("s_nop 1")
    A("v_max_f32 v18, v18, v19")
    for i in range(16): A(f"v_sub_f32 {v(NEGM+i)}, 0, v18")
    for i in range(16): A(f"v_sub_f32 {v(S0+i)}, {v(S0+i)}, v18")
    A(f"s_mov_b32 {s(sCnt)}, 8")
    A("s_waitcnt lgkmcnt(0)")
    def loop(role):
        A.raw(".p2align 6")
        A.label(f"attn_loop{role}")
        for t in range(8):
            c, n = S_[t % 2], S_[1 - t % 2]
            E = lambda i: f"v_exp_f32 {v(c+i)}, {v(c+i)}"
            C = lambda i: f"v_cvt_pk_bf16_f32 {v(P+i)}, {v(c+2*i)}, {v(c+2*i+1)}"
            X = {6: (kv(0), kv(1)), 7: (kv(2), kv(3)), 0: (kv(4), kv(5)), 1: (kv(6), kv(7)),
                 2: (["s_waitcnt vmcnt(10)"] + cp_store(), cp_load()), 3: (cs_dma(0), cs_dma(1)), 4: ([], []), 5: ([], [])}[t]
            if role == "B": X = ([], [])
            if t == 6:
                if role == "A": A("s_waitcnt vmcnt(4)")
                A("s_barrier")
            A("s_waitcnt lgkmcnt(2)")
            A(mf32(n, KF, Q, v(NEGM, 16)))
            A(kread(t + 2, 0))
            emit(A, [E(0), E(1), E(2)])
            A(mf32(O, VF+4, P+4))
            A(vread(t, 1))
            emit(A, X[0])
            emit(A, [E(3), E(4), E(5), E(6)])
            A("s_waitcnt lgkmcnt(2)")
            A(mf32(n, KF+4, Q+4))
            A(kread(t + 2, 1))
            emit(A, [E(7), C(0), C(1), C(2), C(3), E(8)])
            A(mf16(L, ONES, P+4))
            emit(A, [E(9), E(10)])
            A(mf32(O, VF, P))
            A(vread(t + 1, 0))
            emit(A, X[1])
            emit(A, [E(11), E(12), E(13), E(14)])
            A(mf16(L, ONES, P))
            if t == 7:
                A(f"s_add_u32 {s(sRd)}, {s(sRd)}, {SLOT}")
                A(f"s_cmp_eq_u32 {s(sRd)}, {SLOT*R}")
                A(f"s_cselect_b32 {s(sRd)}, 0, {s(sRd)}")
                A("v_mov_b32 v16, v17")
                A(f"v_add_u32 v17, {s(sRd)}, v6")
                A(f"s_sub_u32 {s(sCnt)}, {s(sCnt)}, 1")
                A(f"s_cmp_lg_u32 {s(sCnt)}, 0")
            emit(A, [E(15), C(4), C(5), C(6), C(7)])
        A(f"s_cbranch_scc1 attn_loop{role}")
    A("s_cmp_ge_u32 s20, 4")
    A("s_cbranch_scc1 attn_loopB")
    loop("A")
    A("s_branch attn_post")
    loop("B")
    A.label("attn_post")
    A("s_waitcnt lgkmcnt(0)")
    A("s_nop 0")
    A(mf32(O, VF+4, P+4))
    A(mf16(L, ONES, P+4))
    cyc(A, 2, 1); stamp(A, 2, 3)
    A("s_waitcnt vmcnt(0)")
    A("s_barrier")
    A("v_lshrrev_b32 v18, 2, v1")
    A("v_lshlrev_b32 v18, 7, v18")
    A("v_lshl_add_u32 v18, v4, 3, v18")
    A("v_bfe_u32 v19, v1, 3, 2")
    A("v_xor_b32 v19, s31, v19")
    A("v_lshl_add_u32 v18, v19, 5, v18")
    A("s_lshr_b32 s29, s20, 2")
    A("s_lshl_b32 s34, s29, 15")
    A(f"s_add_u32 s34, s34, {WL}")
    A("v_add_u32 v18, s34, v18")
    CSW = S0
    for ks in range(8):
        for t in range(2):
            A(f"ds_read_b64_tr_b16 {v(CSW+4*ks+2*t,2)}, v18 offset:{ks*4096+t*2048}")
    for i in range(4): A(f"v_mov_b32 {v(132+i)}, 0x3f803f80")
    A(f"v_add_f32 v18, |{v(O)}|, {v(L)}")
    for i in range(1, 16): A(f"v_add_f32 v18, |{v(O+i)}|, v18")
    A(f"v_mov_b32 v19, {f32(2.0**120)}")
    A("v_cmp_nlt_f32 vcc, v18, v19")
    A("s_waitcnt lgkmcnt(0)")
    for ks in range(8):
        A(mf16(136, CSW+4*ks, 132, "0" if ks == 0 else None))
    A("s_cmp_eq_u64 vcc, 0")
    A("s_cbranch_scc0 attn_slow")
    A.label("attn_fin")
    A(f"v_rcp_f32 v18, {v(L)}")
    A("s_nop 0")
    for i in range(16): A(f"v_mul_f32 {v(O+i)}, {v(O+i)}, v18")
    for pc in range(2):
        for hh in range(2):
            run = pc + 2 * hh
            for j in range(2):
                A(f"v_cvt_pk_bf16_f32 {v(P+4*pc+2*hh+j)}, {v(O+4*run+2*j)}, {v(O+4*run+2*j+1)}")
    A("v_bfe_u32 v18, v1, 3, 1")
    A("v_lshlrev_b32 v18, 10, v18")
    A("v_bfe_u32 v19, v1, 4, 1")
    A("v_lshl_add_u32 v18, v19, 7, v18")
    A("v_and_b32 v19, 7, v1")
    A("v_lshl_add_u32 v18, v19, 4, v18")
    A("v_lshrrev_b32 v19, 5, v1")
    A("v_lshl_add_u32 v18, v19, 8, v18")
    A("s_lshl_b32 s28, s21, 17")
    A("s_add_u32 s28, s28, s35")
    A(f"buffer_store_dwordx4 {v(P,4)}, v18, s[36:39], s28 offen{STF}")
    A(f"buffer_store_dwordx4 {v(P+4,4)}, v18, s[36:39], s28 offen offset:512{STF}")
    srd(A, 48, 6, WS_CS, 4*7168*4)
    A("s_lshl_b32 s33, s33, 1")
    A("s_add_u32 s33, s33, s29")
    A(f"s_mul_i32 s33, s33, {7168*4}")
    A("s_lshl_b32 s34, s32, 8")
    A("s_add_u32 s33, s33, s34")
    A("s_lshl_b32 s34, s31, 6")
    A("s_add_u32 s33, s33, s34")
    A("v_cmp_ne_u32 vcc, 0, v5")
    A("v_mov_b32 v19, 0x7fffffff")
    A("s_cmp_lt_u32 s2, 224")
    A(f"s_cselect_b32 s50, {4*7168*4}, 0")
    A("v_cndmask_b32 v19, v1, v19, vcc")
    A(f"buffer_store_dwordx4 v[136:139], v19, s[48:51], s33 offen{STF}")
    A(f"s_load_dwordx2 s[44:45], s[0:1], {KA_X}")
    A("s_waitcnt vmcnt(0) lgkmcnt(0)")
    stamp(A, 2, 4)
    publish(A, 2, 22, 21, drained=True)
    def slow():
        A.label("attn_slow")
        A("v_mov_b32 v18, 0xff800000")
        A("s_mov_b32 s28, 0")
        A.label("attn_slow1")
        A(f"buffer_load_dwordx4 {v(KF,4)}, v6, s[8:11], s28 offen{LDF}")
        A(f"buffer_load_dwordx4 {v(KF+4,4)}, v6, s[8:11], s28 offen offset:1024{LDF}")
        A("s_waitcnt vmcnt(0)")
        A("s_nop 15")
        A(mf32(S0, KF, Q, "0"))
        A(mf32(S0, KF+4, Q+4))
        A("s_nop 15")
        A("s_nop 3")
        for i in range(0, 16, 2): A(f"v_max3_f32 v18, v18, {v(S0+i)}, {v(S0+i+1)}")
        A("s_add_u32 s28, s28, 2048")
        A("s_cmp_lt_u32 s28, 131072")
        A("s_cbranch_scc1 attn_slow1")
        A("v_mov_b32 v19, v18")
        A("s_nop 1")
        A("v_permlane32_swap_b32 v19, v18")
        A("s_nop 1")
        A("v_max_f32 v18, v18, v19")
        for i in range(16): A(f"v_sub_f32 {v(NEGM+i)}, 0, v18")
        for i in range(16): A(f"v_mov_b32 {v(O+i)}, 0")
        for i in range(4): A(f"v_mov_b32 {v(L+i)}, 0")
        A("s_mov_b32 s28, 0")
        A.label("attn_slow2")
        A(f"buffer_load_dwordx4 {v(KF,4)}, v6, s[8:11], s28 offen{LDF}")
        A(f"buffer_load_dwordx4 {v(KF+4,4)}, v6, s[8:11], s28 offen offset:1024{LDF}")
        A(f"buffer_load_dwordx4 {v(VF,4)}, v6, s[12:15], s28 offen{LDF}")
        A(f"buffer_load_dwordx4 {v(VF+4,4)}, v6, s[12:15], s28 offen offset:1024{LDF}")
        A("s_waitcnt vmcnt(0)")
        A(mf32(S0, KF, Q, v(NEGM, 16)))
        A(mf32(S0, KF+4, Q+4))
        A("s_nop 15")
        A("s_nop 3")
        for i in range(16): A(f"v_exp_f32 {v(S0+i)}, {v(S0+i)}")
        A("s_nop 0")
        for i in range(8): A(f"v_cvt_pk_bf16_f32 {v(P+i)}, {v(S0+2*i)}, {v(S0+2*i+1)}")
        A("s_nop 1")
        A(mf32(O, VF, P))
        A(mf32(O, VF+4, P+4))
        A(mf16(L, ONES, P))
        A(mf16(L, ONES, P+4))
        A("s_nop 15")
        A("s_add_u32 s28, s28, 2048")
        A("s_cmp_lt_u32 s28, 131072")
        A("s_cbranch_scc1 attn_slow2")
        A("s_nop 15")
        A("s_branch attn_fin")
    return slow

HEADER = open("sequential_preLN__mha_block__glu_gated_glu__prompt.s.ref").read().split("; Override launch")[0]

def build(path):
    from mk2 import ph_proj, ph_gu
    A = Asm()
    A.raw(f".globl {NAME}"); A.raw(".p2align 8"); A.raw(f".type {NAME},@function"); A.label(NAME)
    A("s_cmp_ge_u32 s2, 256")
    A("s_cbranch_scc1 the_end")
    ph_ln_qkv(A)
    slow = ph_attn(A)
    ph_proj(A, 3, True)
    ph_gu(A)
    ph_proj(A, 5, False)
    stamp_flush(A)
    A.label("the_end")
    A("s_endpgm")
    slow()
    A.label("code_end")
    out = HEADER
    out += "; @launch grid=(256,1,1) block=(512,1,1) lds=163840\n"
    out += '.amdgcn_target "amdgcn-amd-amdhsa--gfx950"\n.text\n'
    out += A.text()
    out += '.section .rodata,"a"\n'
    out += kernel_desc(NAME, 256, 102 if PROF else 64)
    open(path, "w").write(out)

if __name__ == "__main__":
    build(sys.argv[1] if len(sys.argv) > 1 else "sequential_preLN__mha_block__glu_gated_glu__prompt.s")
```

```python
from mk import *

def ph_proj(A, ph, is_wo):
    name = "wo" if is_wo else "dn"
    K = 1024 if is_wo else 3584
    ws_x = WS_O if is_wo else WS_HACT
    wp = 40 if is_wo else 42
    R, SLOT, NST = 6, 24576, K // 64
    STATS_LDS = R * SLOT
    A("s_and_b32 s21, s2, 3")
    A("s_lshl_b32 s21, s21, 2")
    A("s_bfe_u32 s28, s2, 0x20003")
    A("s_add_u32 s21, s21, s28")
    A("s_bfe_u32 s22, s2, 0x10002")
    A("s_lshl_b32 s22, s22, 3")
    A("s_lshr_b32 s28, s2, 5")
    A("s_add_u32 s22, s22, s28")
    PSC = OPT("WSC", 0) if is_wo else OPT("DSC", 4)
    PG = min(4, OPT("PG", 4))
    if PSC:
        A("s_add_u32 s39, s21, s22")
        A(f"s_and_b32 s39, s39, {PG-1}")
        A(f"s_mul_i32 s39, s39, {PSC//PG}")
    def wdma():
        if not is_wo:
            return [[f"s_add_u32 m0, {s(sWr)}, {s(sM)}", "s_nop 0",
                     f"buffer_load_dwordx4 v6, s[12:15], {s(sGo)} offen{LDF} lds"],
                    [f"buffer_load_dwordx4 v6, s[12:15], {s(sGo)} offen offset:1024{LDF} lds",
                     ] + adv(8192, PSC)]
        return [[f"s_add_u32 m0, {s(sWr)}, {s(sM)}", "s_nop 0",
                 f"buffer_load_dwordx4 v7, s[12:15], {s(sGo)} offen lds"],
                [f"buffer_load_dwordx4 v8, s[12:15], {s(sGo)} offen offset:1024 lds",
                 ] + adv(64*2048, PSC)]
    DX = 0x40000
    ACC = 32
    def acc(f, i): return ACC + (i * 2 + f) * 4
    SET = [48, 80]
    def xf(p, kk, i): return SET[p] + (kk * 2 + i) * 4
    def wf(p, kk, f): return SET[p] + 16 + (kk * 2 + f) * 4
    RES = 240
    NRES = 4 if is_wo else 2
    A("s_lshr_b32 s33, s20, 2")
    A("s_lshl_b32 s34, s22, 1")
    A("s_add_u32 s34, s34, s33")
    A("s_lshl_b32 s34, s34, 7")
    A("s_lshl_b32 s35, s21, 3")
    A("s_add_u32 s34, s34, s35")
    A("s_lshl_b32 s35, s31, 1")
    A("s_add_u32 s34, s34, s35")
    A("s_lshl_b32 s34, s34, 10")
    A("s_lshl_b32 s35, s21, 18")
    A("s_lshl_b32 s36, s31, 16")
    A("s_add_u32 s35, s35, s36")
    A("s_lshl_b32 s36, s22, 7")
    A("s_add_u32 s35, s35, s36")
    A("s_lshl_b32 s36, s33, 6")
    A("s_add_u32 s35, s35, s36")
    A("s_add_u32 s36, s35, 32768")
    srd(A, 16, 6, WS_H, 4*MB)
    srd(A, 48, 44, 0, 4*MB)
    if is_wo:
        srd(A, 12, wp, 0, K*2048)
    else:
        A(f"s_mul_i32 s28, s22, {3584*128}")
        A("s_add_u32 s4, s6, s28")
        A("s_addc_u32 s5, s7, 0")
        srd(A, 12, 4, WS_WD, 3584*128)
    srd(A, 8, 6, ws_x, 2048*K*2)
    def resload():
        if is_wo:
            for i in range(2):
                A(f"buffer_load_dwordx4 {v(RES+4*i,4)}, v9, s[48:51], {s(35+i)} offen")
        else:
            for i in range(2):
                A(f"buffer_load_dwordx4 {v(RES+4*i,4)}, v6, s[16:19], s34 offen offset:{i*1024}{LDF}")
    A("v_lshlrev_b32 v9, 11, v5")
    A("v_and_b32 v15, 1, v2")
    A("v_lshl_add_u32 v9, v15, 5, v9")
    A("v_lshrrev_b32 v15, 1, v2")
    A("v_lshl_add_u32 v9, v15, 4, v9")
    A("s_lshl_b32 s28, s31, 11")
    A("v_add_u32 v10, s28, v6")
    A("v_lshl_add_u32 v11, v2, 2, v3")
    A("v_lshlrev_b32 v11, 7, v11")
    A("v_lshl_add_u32 v11, v4, 3, v11")
    A("v_add_u32 v11, 16384, v11")
    A("v_bfe_u32 v12, v1, 3, 2")
    A("s_lshl_b32 s29, s33, 1")
    A("v_xor_b32 v13, s29, v12")
    A("v_lshl_add_u32 v13, v13, 5, v11")
    A("v_xor_b32 v14, 32, v13")
    A("s_lshr_b32 s32, s21, 1")
    A("s_cmp_lt_u32 s20, 4")
    A(f"s_cbranch_scc1 {name}_A0")
    if is_wo:
        w_swz_voff(A, 7, 2048)
        A(f"v_add_u32 v8, {8*2048-1024}, v7")
        A("s_lshl_b32 s28, s31, 15")
        A("s_lshl_b32 s29, s22, 7")
        A(f"s_add_u32 {s(sGo)}, s28, s29")
    else:
        A(f"s_lshl_b32 {s(sGo)}, s31, 11")
    if PSC: rot_init(A, 64*2048 if is_wo else 8192, PSC)
    A(f"s_lshl_b32 {s(sM)}, s31, 11")
    A(f"s_add_u32 {s(sM)}, {s(sM)}, 16384")
    if not OPT("PUBFIRST", 1):
        A("s_waitcnt vmcnt(0)")
        stamp(A, ph - 1, 4)
    publish(A)
    resload()
    fill_ring(A, R, SLOT, wdma)
    A(f"s_branch {name}_C0")
    A.label(f"{name}_A0")
    A("s_lshr_b32 s28, s31, 1")
    A("s_lshl_b32 s28, s28, 7")
    A("s_lshl_b32 s29, s21, 3")
    A("s_add_u32 s28, s28, s29")
    A("s_and_b32 s29, s31, 1")
    A("s_lshl_b32 s29, s29, 2")
    A("s_add_u32 s28, s28, s29")
    A(f"s_lshl_b32 {s(sGo)}, s28, 10")
    if PSC: rot_init(A, DX, PSC)
    A(f"s_lshl_b32 {s(sM)}, s31, 12")
    if not OPT("PUBFIRST", 1):
        A("s_waitcnt vmcnt(0)")
        stamp(A, ph - 1, 4)
    publish(A)
    resload()
    A.label(f"{name}_C0")
    stamp(A, ph, 0)
    wait_flags(A, ph - 1, 32, 32)
    stamp(A, ph, 1)
    def accinit():
        if is_wo:
            for i in range(2):
                A(f"v_permlane16_swap_b32 {v(RES+4*i)}, {v(RES+4*i+2)}")
                A(f"v_permlane16_swap_b32 {v(RES+4*i+1)}, {v(RES+4*i+3)}")
            A("s_nop 1")
        for i in range(2):
            for f in range(2):
                for h in range(2):
                    src = RES + 4*i + 2*f + h
                    A(f"v_lshlrev_b32 {v(acc(f,i)+2*h)}, 16, {v(src)}")
                    A(f"v_and_b32 {v(acc(f,i)+2*h+1)}, 0xffff0000, {v(src)}")
    def reads(p):
        out = []
        for kk in range(2):
            for f in range(2):
                for t in range(2):
                    out.append([f"ds_read_b64_tr_b16 {v(wf(p,kk,f)+2*t,2)}, {v(17+f)} offset:{kk*4096+t*2048}"])
            for i in range(2):
                out.append([f"ds_read_b128 {v(xf(p,kk,i),4)}, v16 offset:{kk*8192+i*1024}"])
        return out
    def addr_upd():
        return [f"v_add_u32 v16, {s(sRd)}, v10", f"v_add_u32 v17, {s(sRd)}, v13", f"v_add_u32 v18, {s(sRd)}, v14"]
    def mfmas(p):
        return [mf16(acc(f, i), wf(p, kk, f), xf(p, kk, i)) for kk in range(2) for f in range(2) for i in ((0, 1) if (f == 0 or not OPT("SNAKE", 1)) else (1, 0))]
    A("s_cmp_ge_u32 s20, 4")
    A(f"s_cbranch_scc1 {name}_B")
    fill_ring(A, R, SLOT, lambda: xdma(DX, PSC), bar=True)
    A(f"s_waitcnt vmcnt({4*R})")
    accinit()
    gemm_loop(A, ph, f"{name}_loopA", "A", R, SLOT, NST, 4, mfmas, reads, lambda: xdma(DX, PSC), addr_upd,
              {6: code_touch_list(A, f"{name}_epi", 251, 252), ('x', 5): 1, ('x', 4): 1, ('x', 3): 1, ('x', 2): 1} if OPT("CTW", 1) else None)
    A(f"s_branch {name}_epi")
    A.label(f"{name}_B")
    A(f"s_waitcnt vmcnt({2*R})")
    accinit()
    fill_ring(A, R, SLOT, None, bar=True)
    gemm_loop(A, ph, f"{name}_loopB", "B", R, SLOT, NST, 2, mfmas, reads, wdma, addr_upd)
    A.label(f"{name}_epi")
    T = 112
    for i in range(2):
        for f in range(2):
            for h in range(2):
                A(f"v_cvt_pk_bf16_f32 {v(T+4*i+2*f+h)}, {v(acc(f,i)+2*h)}, {v(acc(f,i)+2*h+1)}")
    if is_wo:
        for i in range(2):
            A(f"buffer_store_dwordx4 {v(T+4*i,4)}, v6, s[16:19], s34 offen offset:{i*1024}{STF}")
        for i in range(2):
            sm, sq = 20 + 2*i, 21 + 2*i
            b = acc(0, i)
            A(f"v_add_f32 {v(sm)}, {v(b)}, {v(b+1)}")
            A(f"v_mul_f32 {v(sq)}, {v(b)}, {v(b)}")
            A(f"v_fmac_f32 {v(sq)}, {v(b+1)}, {v(b+1)}")
            for j in range(2, 8):
                A(f"v_add_f32 {v(sm)}, {v(sm)}, {v(b+j)}")
                A(f"v_fmac_f32 {v(sq)}, {v(b+j)}, {v(b+j)}")
        reduce_rows16_32(A, [20, 21, 22, 23], [24, 25, 26, 27])
        A("s_lshl_b32 s28, s31, 9")
        A("s_lshl_b32 s29, s33, 3")
        A("s_add_u32 s28, s28, s29")
        A(f"s_add_u32 s28, s28, {STATS_LDS}")
        A("v_lshlrev_b32 v24, 4, v5")
        A("v_add_u32 v24, s28, v24")
        A("ds_write_b64 v24, v[20:21]")
        A("ds_write_b64 v24, v[22:23] offset:256")
        A(f"s_load_dwordx4 s[44:47], s[0:1], {KA_WG}")
        A("s_waitcnt lgkmcnt(0)")
        A("s_barrier")
        A("s_cmp_ge_u32 s20, 2")
        A(f"s_cbranch_scc1 {name}_end2")
        A("v_lshlrev_b32 v24, 4, v0")
        A(f"v_add_u32 v24, {STATS_LDS}, v24")
        A("ds_read_b128 v[20:23], v24")
        srd(A, 8, 6, WS_ST, 2048*128)
        A("v_lshlrev_b32 v24, 3, v0")
        A("s_lshl_b32 s28, s21, 10")
        A("s_lshl_b32 s29, s22, 14")
        A("s_add_u32 s28, s28, s29")
        A("s_waitcnt lgkmcnt(0)")
        A("v_add_f32 v20, v20, v22")
        A("v_add_f32 v21, v21, v23")
        A(f"buffer_store_dwordx2 v[20:21], v24, s[8:11], s28 offen{STF}")
        A.label(f"{name}_end2")
        A("s_and_b32 s38, s21, 1")
        A("s_lshl_b32 s38, s38, 4")
        A("s_add_u32 s38, s38, s22")
        pub_prep(A, ph, 32, 38)
    else:
        A("s_nop 1")
        for i in range(2):
            A(f"v_permlane16_swap_b32 {v(T+4*i)}, {v(T+4*i+2)}")
            A(f"v_permlane16_swap_b32 {v(T+4*i+1)}, {v(T+4*i+3)}")
        A("s_nop 1")
        for i in range(2):
            A(f"buffer_store_dwordx4 {v(T+4*i,4)}, v9, s[48:51], {s(35+i)} offen{OUTF}")
        if PROF:
            A("s_waitcnt vmcnt(0)")
            stamp(A, ph, 4)

def ph_gu(A):
    ph = 4
    R, SLOT, NST = 5, 30720, 32
    SL = R * SLOT
    A("s_and_b32 s21, s2, 1")
    A("s_lshl_b32 s21, s21, 2")
    A("s_bfe_u32 s28, s2, 0x20003")
    A("s_add_u32 s21, s21, s28")
    A("s_bfe_u32 s22, s2, 0x20001")
    A("s_lshl_b32 s22, s22, 3")
    A("s_lshr_b32 s28, s2, 5")
    A("s_add_u32 s22, s22, s28")
    def wdma():
        return [[f"s_add_u32 m0, {s(sWr)}, {s(sM)}", "s_mov_b64 exec, s[34:35]",
                 f"buffer_load_dwordx4 v7, s[12:15], {s(sGo)} offen lds",
                 f"buffer_load_dwordx4 v8, s[12:15], {s(sGo)} offen offset:896 lds",
                 f"s_add_u32 m0, m0, 7168", "s_nop 0",
                 f"buffer_load_dwordx4 v7, s[16:19], {s(sGo)} offen lds",
                 f"buffer_load_dwordx4 v8, s[16:19], {s(sGo)} offen offset:896 lds",
                 "s_mov_b64 exec, -1",
                 f"s_add_u32 {s(sGo)}, {s(sGo)}, {32*7168}"]]
    srd(A, 12, 44, 0, 7*MB)
    srd(A, 16, 46, 0, 7*MB)
    srd(A, 8, 6, WS_H, 4*MB)
    A("s_cmp_lt_u32 s20, 4")
    A("s_cbranch_scc1 gu_A0")
    if OPT("CT", 1) >= 2: code_touch(A, 255)
    A("v_mul_u32_u24 v7, 4682, v1")
    A("v_lshrrev_b32 v7, 16, v7")
    A("v_mul_u32_u24 v8, 14, v7")
    A("v_sub_u32 v8, v1, v8")
    A("v_mul_u32_u24 v7, 7168, v7")
    A("v_lshl_add_u32 v7, v8, 4, v7")
    A(f"v_add_u32 v8, {4*7168-896}, v7")
    A("s_mov_b32 s34, -1")
    A("s_mov_b32 s35, 0x00ffffff")
    A(f"s_mul_i32 s28, s31, {8*7168}")
    A("s_mul_i32 s29, s22, 224")
    A(f"s_add_u32 {s(sGo)}, s28, s29")
    A(f"s_mul_i32 {s(sM)}, s31, 1792")
    A(f"s_add_u32 {s(sM)}, {s(sM)}, 16384")
    GE = OPT("GE", 0)
    fill_ring(A, R, SLOT, wdma, 0, GE)
    if not OPT("PUBFIRST", 1):
        A(f"s_waitcnt vmcnt({4*GE})")
        stamp(A, 3, 4)
    publish(A)
    fill_ring(A, R, SLOT, wdma, GE, R)
    A("s_branch gu_C0")
    A.label("gu_A0")
    A("s_lshl_b32 s28, s21, 4")
    A("s_lshl_b32 s29, s31, 2")
    A("s_add_u32 s28, s28, s29")
    A(f"s_lshl_b32 {s(sGo)}, s28, 10")
    A(f"s_lshl_b32 {s(sM)}, s31, 12")
    for i in range(32, 152): A(f"v_mov_b32 {v(i)}, 0")
    if not OPT("PUBFIRST", 1):
        A("s_waitcnt vmcnt(0)")
        stamp(A, 3, 4)
    publish(A)
    A.label("gu_C0")
    srd(A, 44, 6, WS_ST, 2048*128)
    srd(A, 48, 6, WS_CS, 4*7168*4)
    srd(A, 52, 6, WS_HACT, 2048*3584*2)
    A("s_and_b32 s36, s22, 1")
    A("s_cmp_eq_u32 s36, 1")
    A("s_cselect_b32 s37, 3, 0")
    A("s_cselect_b32 s38, 1, 4")
    A("s_cselect_b32 s39, 0, 6")
    A("s_cmp_ge_u32 s20, 4")
    A("s_cselect_b32 s37, s38, s37")
    A("s_lshl_b32 s28, s31, 12")
    A("v_add_u32 v10, s28, v6")
    A("v_lshl_add_u32 v11, v2, 2, v3")
    A("v_mul_u32_u24 v11, 224, v11")
    A("v_lshl_add_u32 v11, v4, 3, v11")
    A("v_add_u32 v11, 16384, v11")
    A("s_lshl_b32 s28, s39, 5")
    A("v_add_u32 v12, s28, v11")
    A("s_lshl_b32 s28, s37, 5")
    A("v_add_u32 v11, s28, v11")
    A("v_and_b32 v13, 255, v0")
    A("v_lshlrev_b32 v14, 3, v13")
    A("s_lshl_b32 s32, s21, 11")
    A("v_lshlrev_b32 v15, 2, v13")
    A(f"v_add_u32 v9, {(3584-112)*4}, v15")
    A("v_cmp_gt_u32 vcc, 112, v13")
    A("v_mov_b32 v19, 0x7fffffff")
    A("s_mul_i32 s33, s22, 448")
    A("v_cndmask_b32 v15, v9, v15, vcc")
    A("v_cmp_gt_u32 vcc, 224, v13")
    A("s_nop 1")
    A("v_cndmask_b32 v15, v19, v15, vcc")
    A("s_cmp_lt_u32 s20, 4")
    A("s_cbranch_scc1 gu_Z")
    for i in range(32, 120): A(f"v_mov_b32 {v(i)}, 0")
    A.label("gu_Z")
    stamp(A, ph, 0)
    wait_flags(A, 3, 21, 32, also_all=2)
    for i in range(24, 32): A(f"v_mov_b32 {v(i)}, 0")
    stamp(A, ph, 1)
    def body(nf, tag):
        def wsrc(j):
            if nf == 3 and j == 2: return 18, 0
            return 17, j * 32
        ACC = 24
        def acc(j, gu, i): return ACC + ((j * 2 + gu) * 4 + i) * 4
        NS = 16 + nf * 8
        SET = [ACC + nf * 32, ACC + nf * 32 + NS]
        def xf(p, i): return SET[p] + i * 4
        def wf(p, j, gu): return SET[p] + 16 + (j * 2 + gu) * 4
        if tag == "A":
            fill_ring(A, R, SLOT, lambda: xdma(0x20000), bar=True)
        else:
            fill_ring(A, R, SLOT, None, bar=True)
        hook = None
        if tag == "A" and OPT("CTG", 1):
            hook = {5: code_touch_list(A, "gu_epiA", 251, 252), ('x', 4): 1, ('x', 3): 1, ('x', 2): 1}
        if tag == "B":
            h1 = []
            for j in range(16):
                h1 += [f"buffer_load_dwordx2 {v(200+2*j,2)}, v14, s[44:47], s32 offen{LDF}", "s_add_u32 s32, s32, 16384"]
            for j in range(4):
                h1 += [f"buffer_load_dword {v(232+j)}, v15, s[48:51], s33 offen{LDF}", f"s_add_u32 s33, s33, {7168*4}"]
            hook = ["s_waitcnt vmcnt(0)"]
            for j in range(1, 8):
                hook.append(f"v_pk_add_f32 v[200:201], v[200:201], {v(200+2*j,2)}")
                hook.append(f"v_pk_add_f32 v[216:217], v[216:217], {v(216+2*j,2)}")
            hook += ["v_pk_add_f32 v[200:201], v[200:201], v[216:217]",
                "v_add_f32 v232, v232, v233", "v_add_f32 v234, v234, v235", "v_add_f32 v232, v232, v234",
                f"v_mul_f32 v200, {f32(-1/1024)}, v200", f"v_mul_f32 v201, {f32(1/1024)}, v201",
                "v_fma_f32 v201, -v200, v200, v201", "v_max_f32 v201, 0, v201", f"v_add_f32 v201, {f32(1e-5)}, v201",
                "v_rsq_f32 v202, v201", "v_sqrt_f32 v203, v201", "v_mov_b32 v201, v200",
                f"v_mul_f32 v202, {f32(-LOG2E)}, v202",
                "v_lshlrev_b32 v14, 4, v13", f"v_add_u32 v14, {SL}, v14", "ds_write_b128 v14, v[200:203]",
                "v_lshlrev_b32 v15, 2, v13", f"v_add_u32 v15, {SL+4096}, v15", "ds_write_b32 v15, v232"]
            hook = {5: h1, 3: hook, ('x', 4): 20, ('x', 3): 20}
        def reads(p):
            out = []
            for i in range(4):
                out.append([f"ds_read_b128 {v(xf(p,i),4)}, v16 offset:{i*1024}"])
            for j in range(nf):
                ar, imm = wsrc(j)
                for gu in range(2):
                    for t in range(2):
                        out.append([f"ds_read_b64_tr_b16 {v(wf(p,j,gu)+2*t,2)}, {v(ar)} offset:{imm+gu*7168+t*3584}"])
            return out
        def addr_upd():
            o = [f"v_add_u32 v16, {s(sRd)}, v10", f"v_add_u32 v17, {s(sRd)}, v11"]
            if nf == 3: o.append(f"v_add_u32 v18, {s(sRd)}, v12")
            return o
        def mfmas(p):
            return [mf16(acc(j, gu, i), wf(p, j, gu), xf(p, i)) for j in range(nf) for gu in range(2) for i in (range(4) if (gu == 0 or not OPT("SNAKE", 1)) else range(3, -1, -1))]
        gemm_loop(A, ph, f"gu_loop{tag}", tag, R, SLOT, NST, 4, mfmas, reads, (lambda: xdma(0x20000)) if tag == "A" else wdma, addr_upd, hook)
        A.label(f"gu_epi{tag}")
        A(f"s_load_dwordx2 s[44:45], s[0:1], {KA_OUT}")
        A(f"s_load_dwordx2 s[46:47], s[0:1], {KA_DBG}")
        STR = 232
        CSR = 200
        A("s_lshl_b32 s28, s31, 10")
        A(f"s_add_u32 s28, s28, {SL}")
        A("v_lshlrev_b32 v14, 4, v5")
        A("v_add_u32 v14, s28, v14")
        for i in range(4):
            A(f"ds_read_b128 {v(STR+4*i,4)}, v14 offset:{i*256}")
        A("v_lshlrev_b32 v9, 4, v2")
        A("s_lshl_b32 s28, s37, 6")
        A(f"s_add_u32 s28, s28, {SL+4096}")
        A("v_add_u32 v14, s28, v9")
        A("s_lshl_b32 s28, s39, 6")
        A(f"s_add_u32 s28, s28, {SL+4096}")
        A("v_add_u32 v15, s28, v9")
        for j in range(nf):
            for gu in range(2):
                ar, imm = (15, 0) if (nf == 3 and j == 2) else (14, j * 64)
                A(f"ds_read_b128 {v(CSR+(j*2+gu)*4,4)}, {v(ar)} offset:{imm+gu*448}")
        A("s_mul_i32 s28, s22, 7")
        A("s_add_u32 s29, s28, s37")
        A("s_lshr_b32 s29, s29, 1")
        A("s_lshl_b32 s29, s29, 17")
        A("s_lshl_b32 s33, s21, 4")
        A("s_lshl_b32 s36, s31, 2")
        A("s_add_u32 s33, s33, s36")
        A("s_lshl_b32 s33, s33, 10")
        A("s_add_u32 s56, s29, s33")
        A("s_add_u32 s57, s56, 0x20000")
        A("s_add_u32 s29, s28, s39")
        A("s_and_b32 s36, s29, 1")
        A("s_lshl_b32 s36, s36, 3")
        A("s_lshr_b32 s29, s29, 1")
        A("s_lshl_b32 s29, s29, 17")
        A("s_add_u32 s58, s29, s33")
        A("s_add_u32 s58, s58, s36")
        T = SET[0]
        tix = 0
        A("s_waitcnt lgkmcnt(0)")
        for jp in range(2):
            js = [2*jp, 2*jp+1] if 2*jp+1 < nf else [2*jp]
            for i in range(4):
                dst = T + 4 * (tix % 8); tix += 1
                c1 = v(STR+4*i+2, 2)
                nm_ = v(STR+4*i, 2)
                for j in js:
                    for gu in range(2):
                        a_ = acc(j, gu, i)
                        for h in range(2): A(f"v_pk_fma_f32 {v(a_+2*h,2)}, {v(CSR+(j*2+gu)*4+2*h,2)}, {nm_}, {v(a_+2*h,2)}")
                for j in js:
                    g_ = acc(j, 0, i)
                    for h in range(2): A(f"v_pk_mul_f32 {v(g_+2*h,2)}, {v(g_+2*h,2)}, {c1} op_sel_hi:[1,0]")
                for j in js:
                    g_ = acc(j, 0, i)
                    for r in range(4): A(f"v_exp_f32 {v(g_+r)}, {v(g_+r)}")
                if len(js) == 1: A("s_nop 0")
                for j in js:
                    g_ = acc(j, 0, i)
                    for h in range(2): A(f"v_pk_fma_f32 {v(g_+2*h,2)}, {v(g_+2*h,2)}, {c1}, {c1} op_sel:[0,1,1] op_sel_hi:[1,1,1]")
                for j in js:
                    g_ = acc(j, 0, i)
                    for r in range(4): A(f"v_rcp_f32 {v(g_+r)}, {v(g_+r)}")
                if len(js) == 1: A("s_nop 0")
                for j in js:
                    g_, u_ = acc(j, 0, i), acc(j, 1, i)
                    for h in range(2): A(f"v_pk_mul_f32 {v(u_+2*h,2)}, {v(u_+2*h,2)}, {v(g_+2*h,2)}")
                for jj, j in enumerate(js):
                    u_ = acc(j, 1, i)
                    for h in range(2):
                        A(f"v_cvt_pk_bf16_f32 {v(dst+2*jj+h)}, {v(u_+2*h)}, {v(u_+2*h+1)}")
                if len(js) == 2:
                    A(f"buffer_store_dwordx4 {v(dst,4)}, v6, s[52:55], {s(56+jp)} offen offset:{i*1024}{STF}")
                else:
                    A(f"buffer_store_dwordx2 {v(dst,2)}, v6, s[52:55], s58 offen offset:{i*1024}{STF}")
    A("s_cmp_ge_u32 s20, 4")
    A("s_cbranch_scc1 gu_B")
    body(4, "A")
    A("s_branch gu_end")
    A.label("gu_B")
    body(3, "B")
    A.label("gu_end")
    pub_prep(A, ph, 21, 22)


def ph_down2(A):
    ph = 5
    R, SLOT, NST = OPT("DR", 5), 32768, 28
    PSC = OPT("D2SC", 0)
    A("s_and_b32 s21, s2, 3")
    A("s_lshl_b32 s21, s21, 2")
    A("s_bfe_u32 s28, s2, 0x20003")
    A("s_add_u32 s21, s21, s28")
    A("s_lshr_b32 s22, s2, 5")
    A("s_bfe_u32 s26, s2, 0x10002")
    A("s_and_b32 s32, s20, 1")
    A("s_lshr_b32 s33, s20, 1")
    if PSC:
        A("s_add_u32 s39, s21, s22")
        A("s_and_b32 s39, s39, 3")
        A(f"s_mul_i32 s39, s39, {PSC//4}")
    srd(A, 12, 6, WS_WD, 7*MB)
    srd(A, 8, 6, WS_HACT, 2048*3584*2)
    wd = lambda: xdma(8192, PSC, 's[12:15]')
    xd = lambda: xdma(0x40000, PSC)
    A("s_cmp_lt_u32 s20, 4")
    A("s_cbranch_scc1 d2_A0")
    A("s_lshl_b32 s28, s22, 1")
    A("s_lshr_b32 s29, s31, 1")
    A("s_add_u32 s28, s28, s29")
    A(f"s_mul_i32 s28, s28, {3584*128}")
    A(f"s_mul_i32 s29, s26, {1792*128}")
    A("s_add_u32 s28, s28, s29")
    A("s_and_b32 s29, s31, 1")
    A("s_lshl_b32 s29, s29, 12")
    A(f"s_add_u32 {s(sGo)}, s28, s29")
    if PSC: rot_init(A, 8192, PSC)
    A(f"s_lshl_b32 {s(sM)}, s31, 12")
    A(f"s_add_u32 {s(sM)}, {s(sM)}, 16384")
    srd(A, 52, 46, 0, 256)
    A("v_mov_b32 v20, 0")
    A("buffer_load_dwordx2 v[248:249], v20, s[52:55], 0 offen sc1")
    fill_ring(A, R, SLOT, wd)
    A("s_branch d2_C0")
    A.label("d2_A0")
    A("s_mul_i32 s28, s26, 56")
    A("s_lshr_b32 s29, s31, 1")
    A("s_add_u32 s28, s28, s29")
    A("s_lshl_b32 s28, s28, 7")
    A("s_lshl_b32 s29, s21, 3")
    A("s_add_u32 s28, s28, s29")
    A("s_and_b32 s29, s31, 1")
    A("s_lshl_b32 s29, s29, 2")
    A("s_add_u32 s28, s28, s29")
    A(f"s_lshl_b32 {s(sGo)}, s28, 10")
    if PSC: rot_init(A, 0x40000, PSC)
    A(f"s_lshl_b32 {s(sM)}, s31, 12")
    A.label("d2_C0")
    ACC = 32
    def acc(f, i): return ACC + (i * 2 + f) * 4
    SET = [64, 112]
    def xf(p, kk, i): return SET[p] + (kk * 4 + i) * 4
    def wf(p, kk, f): return SET[p] + 32 + (kk * 2 + f) * 4
    RES = 240
    A("s_lshl_b32 s34, s22, 2")
    A("s_add_u32 s34, s34, s33")
    A("s_lshl_b32 s34, s34, 7")
    A("s_lshl_b32 s35, s21, 3")
    A("s_lshl_b32 s36, s32, 2")
    A("s_add_u32 s35, s35, s36")
    A("s_lshl_b32 s36, s26, 1")
    A("s_add_u32 s35, s35, s36")
    A("s_add_u32 s34, s34, s35")
    A("s_lshl_b32 s34, s34, 10")
    A("s_lshl_b32 s35, s35, 15")
    A("s_lshl_b32 s36, s22, 8")
    A("s_add_u32 s35, s35, s36")
    A("s_lshl_b32 s36, s33, 6")
    A("s_add_u32 s35, s35, s36")
    A("s_add_u32 s36, s35, 32768")
    srd(A, 16, 6, WS_H, 4*MB)
    srd(A, 48, 44, 0, 4*MB)
    A("v_lshlrev_b32 v9, 11, v5")
    A("v_and_b32 v15, 1, v2")
    A("v_lshl_add_u32 v9, v15, 5, v9")
    A("v_lshrrev_b32 v15, 1, v2")
    A("v_lshl_add_u32 v9, v15, 4, v9")
    A("s_lshl_b32 s28, s32, 12")
    A("s_lshl_b32 s29, s26, 11")
    A("s_add_u32 s3, s28, s29")
    A("v_add_u32 v10, s3, v6")
    A("s_xor_b32 s3, s3, 2048")
    A("v_add_u32 v15, s3, v6")
    A("v_lshl_add_u32 v11, v2, 2, v3")
    A("v_lshlrev_b32 v11, 7, v11")
    A("v_lshl_add_u32 v11, v4, 3, v11")
    A("s_lshr_b32 s28, s33, 1")
    A("s_lshl_b32 s28, s28, 13")
    A("s_add_u32 s28, s28, 16384")
    A("v_add_u32 v11, s28, v11")
    A("v_bfe_u32 v12, v1, 3, 2")
    A("s_and_b32 s29, s33, 1")
    A("s_lshl_b32 s29, s29, 1")
    A("v_xor_b32 v13, s29, v12")
    A("v_lshl_add_u32 v13, v13, 5, v11")
    A("v_xor_b32 v14, 32, v13")
    for i in range(16): A(f"v_mov_b32 {v(acc(0,2)+i)}, 0")
    A("s_lshr_b32 s40, s21, 1")
    A("s_lshl_b32 s41, s26, 7")
    stamp(A, ph, 0)
    wait_flags(A, 4, 40, 16, soff=41)
    stamp(A, ph, 1)
    for i in range(2):
        A(f"buffer_load_dwordx4 {v(RES+4*i,4)}, v6, s[16:19], s34 offen offset:{i*1024}{LDF}")
    def accinit():
        for i in range(2):
            for f in range(2):
                for h in range(2):
                    src = RES + 4*i + 2*f + h
                    A(f"v_lshlrev_b32 {v(acc(f,i)+2*h)}, 16, {v(src)}")
                    A(f"v_and_b32 {v(acc(f,i)+2*h+1)}, 0xffff0000, {v(src)}")
        A("s_movk_i32 s42, 0xfff")
        A("v_mov_b32 v244, v248")
        A("v_lshrrev_b32 v245, 12, v248")
        A("v_alignbit_b32 v246, v249, v248, 24")
        A("v_lshrrev_b32 v247, 4, v249")
    def reads(p):
        out = []
        for kk in range(2):
            for f in range(2):
                for t in range(2):
                    out.append([f"ds_read_b64_tr_b16 {v(wf(p,kk,f)+2*t,2)}, {v(17+f)} offset:{kk*4096+t*2048}"])
            for i in range(4):
                out.append([f"ds_read_b128 {v(xf(p,kk,i),4)}, {v(16 if i < 2 else 19)} offset:{kk*8192+(i&1)*1024}"])
        return out
    def addr_upd():
        return [f"v_add_u32 v16, {s(sRd)}, v10", f"v_add_u32 v17, {s(sRd)}, v13", f"v_add_u32 v18, {s(sRd)}, v14", f"v_add_u32 v19, {s(sRd)}, v15"]
    def mfmas(p):
        return [mf16(acc(f, i), wf(p, kk, f), xf(p, kk, i)) for ii in (2, 0) for kk in range(2) for f in range(2) for i in (ii, ii + 1)]
    A("s_cmp_ge_u32 s20, 4")
    A("s_cbranch_scc1 d2_B")
    fill_ring(A, R, SLOT, xd, bar=True)
    A(f"s_waitcnt vmcnt({4*R})")
    accinit()
    gemm_loop(A, ph, "d2_loopA", "A", R, SLOT, NST, 4, mfmas, reads, xd, addr_upd)
    A("s_branch d2_epi")
    A.label("d2_B")
    fill_ring(A, R, SLOT, None, bar=True)
    A("s_waitcnt vmcnt(0)")
    accinit()
    gemm_loop(A, ph, "d2_loopB", "B", R, SLOT, NST, 4, mfmas, reads, wd, addr_upd)
    A.label("d2_epi")
    srd(A, 8, 6, WS_Q if OPT('XBQ', 1) else WS_XB, 9*MB)
    A("s_lshl_b32 s28, s2, 3")
    A("s_add_u32 s28, s28, s20")
    A("s_xor_b32 s29, s28, 32")
    A("s_lshl_b32 s40, s28, 12")
    A("s_lshl_b32 s41, s29, 12")
    XTAG = OPT("XTAG", 1)
    if XTAG:
        for j in range(4):
            for r in range(4):
                A(f"v_bfi_b32 {v(acc(0,2)+4*j+r)}, s42, {v(244+r)}, {v(acc(0,2)+4*j+r)}")
            A(f"buffer_store_dwordx4 {v(acc(0,2)+4*j,4)}, v6, s[8:11], s40 offen offset:{j*1024} sc1")
        A(f"s_mov_b32 s28, {SPIN_MAX}")
        if OPT("XW", 1): A("s_waitcnt vmcnt(0)")
        if OPT("XDBG", 0): stamp(A, ph, 0)
        A.label("d2_poll")
        for j in range(4):
            A(f"buffer_load_dwordx4 {v(64+4*j,4)}, v6, s[8:11], s41 offen offset:{j*1024} sc1")
        for j in range(4):
            A(f"s_waitcnt vmcnt({3-j})")
            for r in range(4):
                A(f"v_xor_b32 {v(80+4*j+r)}, {v(244+r)}, {v(64+4*j+r)}")
            A(f"v_or3_b32 {v(80+4*j)}, {v(80+4*j)}, {v(81+4*j)}, {v(82+4*j)}")
            if j: A(f"v_or3_b32 {v(80+4*j)}, {v(80+4*j)}, {v(83+4*j)}, {v(76+4*j)}")
            else: A(f"v_or_b32 {v(80)}, {v(80)}, {v(83)}")
        A("v_and_b32 v92, s42, v92")
        A("v_cmp_ne_u32 vcc, 0, v92")
        A("s_nop 1")
        A("s_cmp_eq_u64 vcc, 0")
        A("s_cbranch_scc1 d2_got")
        A("s_sleep 1")
        A("s_sub_u32 s28, s28, 1")
        A("s_cmp_lg_u32 s28, 0")
        A("s_cbranch_scc1 d2_poll")
        A.label("d2_got")
        if OPT("XDBG", 0): stamp(A, ph, 1)
    else:
        for j in range(4):
            A(f"buffer_store_dwordx4 {v(acc(0,2)+4*j,4)}, v6, s[8:11], s40 offen offset:{j*1024} sc1")
        A(f"s_lshl_b32 s42, s28, {OPT('XFS', 6)}")
        A(f"s_add_u32 s42, s42, {8*MB}")
        A(f"s_lshl_b32 s43, s29, {OPT('XFS', 6)}")
        A(f"s_add_u32 s43, s43, {8*MB}")
        A("v_mov_b32 v20, 0")
        A(f"s_mov_b32 s28, {SPIN_MAX}")
        A("s_waitcnt vmcnt(0)")
        if OPT("XDBG", 0): stamp(A, ph, 0)
        A("s_mov_b64 exec, 1")
        A("buffer_store_dwordx2 v[248:249], v20, s[8:11], s42 offen sc1")
        A.label("d2_poll")
        A("buffer_load_dwordx2 v[22:23], v20, s[8:11], s43 offen sc1")
        A("s_waitcnt vmcnt(0)")
        A("v_cmp_ne_u64 vcc, v[248:249], v[22:23]")
        A("s_nop 1")
        A("s_cmp_eq_u64 vcc, 0")
        A("s_cbranch_scc1 d2_got")
        if OPT("XSLEEP", 0): A(f"s_sleep {OPT('XSLEEP', 0)}")
        A("s_sub_u32 s28, s28, 1")
        A("s_cmp_lg_u32 s28, 0")
        A("s_cbranch_scc1 d2_poll")
        A.label("d2_got")
        A("s_mov_b64 exec, -1")
        if OPT("XDBG", 0): stamp(A, ph, 1)
        for j in range(4):
            A(f"buffer_load_dwordx4 {v(64+4*j,4)}, v6, s[8:11], s41 offen offset:{j*1024} sc1")
    T = 112
    for i in range(2):
        if not XTAG: A(f"s_waitcnt vmcnt({2 - 2*i + i})")
        for q in range(4):
            A(f"v_pk_add_f32 {v(ACC+8*i+2*q,2)}, {v(ACC+8*i+2*q,2)}, {v(64+8*i+2*q,2)}")
        for f in range(2):
            for h in range(2):
                A(f"v_cvt_pk_bf16_f32 {v(T+4*i+2*f+h)}, {v(acc(f,i)+2*h)}, {v(acc(f,i)+2*h+1)}")
        A("s_nop 1")
        A(f"v_permlane16_swap_b32 {v(T+4*i)}, {v(T+4*i+2)}")
        A(f"v_permlane16_swap_b32 {v(T+4*i+1)}, {v(T+4*i+3)}")
        A("s_nop 1")
        A(f"buffer_store_dwordx4 {v(T+4*i,4)}, v9, s[48:51], {s(35+i)} offen{OUTF}")
    if PROF:
        A("s_waitcnt vmcnt(0)")
        stamp(A, ph, 4)


def ph_down3(A):
    ph = 5
    R, SLOT = OPT("DR", 5), 32768
    N0 = OPT("N0", 26)
    T = R + (R % 2)
    A("s_and_b32 s21, s2, 3")
    A("s_lshl_b32 s21, s21, 2")
    A("s_bfe_u32 s28, s2, 0x20003")
    A("s_add_u32 s21, s21, s28")
    A("s_lshr_b32 s22, s2, 5")
    A("s_bfe_u32 s26, s2, 0x10002")
    A("s_and_b32 s32, s20, 1")
    A("s_lshr_b32 s33, s20, 1")
    srd(A, 12, 6, WS_WD, 7*MB)
    srd(A, 8, 6, WS_HACT, 2048*3584*2)
    wd = lambda: xdma(8192, 0, 's[12:15]')
    xd = lambda: xdma(0x40000, 0)
    A("s_cmp_lt_u32 s20, 4")
    A("s_cbranch_scc1 d3_A0")
    A("s_lshl_b32 s28, s22, 1")
    A("s_lshr_b32 s29, s31, 1")
    A("s_add_u32 s28, s28, s29")
    A(f"s_mul_i32 s28, s28, {3584*128}")
    A(f"s_mul_i32 s29, s26, {N0*64*128}")
    A("s_add_u32 s28, s28, s29")
    A("s_and_b32 s29, s31, 1")
    A("s_lshl_b32 s29, s29, 12")
    A(f"s_add_u32 {s(sGo)}, s28, s29")
    A(f"s_lshl_b32 {s(sM)}, s31, 12")
    A(f"s_add_u32 {s(sM)}, {s(sM)}, 16384")
    srd(A, 52, 46, 0, 256)
    A("v_mov_b32 v20, 0")
    A("buffer_load_dwordx2 v[248:249], v20, s[52:55], 0 offen sc1")
    fill_ring(A, R, SLOT, wd)
    A("s_branch d3_C0")
    A.label("d3_A0")
    A(f"s_mul_i32 s28, s26, {2*N0}")
    A("s_lshr_b32 s29, s31, 1")
    A("s_add_u32 s28, s28, s29")
    A("s_lshl_b32 s28, s28, 7")
    A("s_lshl_b32 s29, s21, 3")
    A("s_add_u32 s28, s28, s29")
    A("s_and_b32 s29, s31, 1")
    A("s_lshl_b32 s29, s29, 2")
    A("s_add_u32 s28, s28, s29")
    A(f"s_lshl_b32 {s(sGo)}, s28, 10")
    A(f"s_lshl_b32 {s(sM)}, s31, 12")
    A.label("d3_C0")
    ACC = 32
    def acc(f, i): return ACC + (i * 2 + f) * 4
    SET = [64, 112]
    def xf(p, kk, i): return SET[p] + (kk * 4 + i) * 4
    def wf(p, kk, f): return SET[p] + 32 + (kk * 2 + f) * 4
    RES = 224
    A("s_lshl_b32 s34, s22, 2")
    A("s_add_u32 s34, s34, s33")
    A("s_lshl_b32 s34, s34, 7")
    A("s_lshl_b32 s35, s21, 3")
    A("s_lshl_b32 s36, s32, 2")
    A("s_add_u32 s35, s35, s36")
    A("s_add_u32 s34, s34, s35")
    A("s_lshl_b32 s34, s34, 10")
    A("s_lshl_b32 s35, s35, 15")
    A("s_lshl_b32 s36, s22, 8")
    A("s_add_u32 s35, s35, s36")
    A("s_lshl_b32 s36, s33, 6")
    A("s_add_u32 s35, s35, s36")
    A("s_add_u32 s36, s35, 32768")
    A("s_add_u32 s37, s36, 32768")
    A("s_add_u32 s38, s37, 32768")
    srd(A, 16, 6, WS_H, 4*MB)
    A("s_cmp_eq_u32 s26, 0")
    A(f"s_cselect_b32 s18, 0, {4*MB}")
    A(f"s_cselect_b32 s39, {(N0-T)//2}, {(56-N0-T)//2}")
    srd(A, 48, 44, 0, 4*MB)
    A("v_lshlrev_b32 v9, 11, v5")
    A("v_and_b32 v15, 1, v2")
    A("v_lshl_add_u32 v9, v15, 5, v9")
    A("v_lshrrev_b32 v15, 1, v2")
    A("v_lshl_add_u32 v9, v15, 4, v9")
    A("s_lshl_b32 s28, s32, 12")
    A("v_add_u32 v10, s28, v6")
    A("v_lshl_add_u32 v11, v2, 2, v3")
    A("v_lshlrev_b32 v11, 7, v11")
    A("v_lshl_add_u32 v11, v4, 3, v11")
    A("s_lshr_b32 s28, s33, 1")
    A("s_lshl_b32 s28, s28, 13")
    A("s_add_u32 s28, s28, 16384")
    A("v_add_u32 v11, s28, v11")
    A("v_bfe_u32 v12, v1, 3, 2")
    A("s_and_b32 s29, s33, 1")
    A("s_lshl_b32 s29, s29, 1")
    A("v_xor_b32 v13, s29, v12")
    A("v_lshl_add_u32 v13, v13, 5, v11")
    A("v_xor_b32 v14, 32, v13")
    A("s_lshr_b32 s28, s2, 3")
    A("s_lshl_b32 s28, s28, 2")
    A("s_and_b32 s29, s2, 3")
    A("s_add_u32 s28, s28, s29")
    A("s_lshl_b32 s28, s28, 3")
    A("s_add_u32 s28, s28, s20")
    A("s_lshl_b32 s41, s28, 13")
    A("s_add_u32 s42, s41, 4096")
    A("s_lshl_b32 s43, s28, 7")
    A(f"s_add_u32 s43, s43, {8*MB}")
    A("s_lshr_b32 s40, s21, 1")
    stamp(A, ph, 0)
    wait_flags(A, 4, 40, 32)
    stamp(A, ph, 1)
    for i in range(4):
        A(f"buffer_load_dwordx4 {v(RES+4*i,4)}, v6, s[16:19], s34 offen offset:{i*1024}{LDF}")
    def accinit():
        for i in range(4):
            for f in range(2):
                for h in range(2):
                    src = RES + 4*i + 2*f + h
                    A(f"v_lshlrev_b32 {v(acc(f,i)+2*h)}, 16, {v(src)}")
                    A(f"v_and_b32 {v(acc(f,i)+2*h+1)}, 0xffff0000, {v(src)}")
    def reads(p):
        out = []
        for kk in range(2):
            for f in range(2):
                for t in range(2):
                    out.append([f"ds_read_b64_tr_b16 {v(wf(p,kk,f)+2*t,2)}, {v(17+f)} offset:{kk*4096+t*2048}"])
            for i in range(4):
                out.append([f"ds_read_b128 {v(xf(p,kk,i),4)}, v16 offset:{kk*8192+i*1024}"])
        return out
    def addr_upd():
        return [f"v_add_u32 v16, {s(sRd)}, v10", f"v_add_u32 v17, {s(sRd)}, v13", f"v_add_u32 v18, {s(sRd)}, v14"]
    def mfmas(p):
        return [mf16(acc(f, i), wf(p, kk, f), xf(p, kk, i)) for kk in range(2) for f in range(2) for i in range(4)]
    A("s_cmp_ge_u32 s20, 4")
    A("s_cbranch_scc1 d3_B")
    fill_ring(A, R, SLOT, xd, bar=True)
    A(f"s_waitcnt vmcnt({4*R})")
    accinit()
    gemm_loop(A, ph, "d3_loopA", "A", R, SLOT, 28, 4, mfmas, reads, xd, addr_upd, cnt_sgpr=39)
    A("s_branch d3_epi")
    A.label("d3_B")
    fill_ring(A, R, SLOT, None, bar=True)
    A("s_waitcnt vmcnt(0)")
    accinit()
    gemm_loop(A, ph, "d3_loopB", "B", R, SLOT, 28, 4, mfmas, reads, wd, addr_upd, cnt_sgpr=39)
    A.label("d3_epi")
    srd(A, 8, 6, WS_Q, 9*MB)
    A("v_mov_b32 v20, 0")
    A("s_cmp_lg_u32 s26, 0")
    A("s_cbranch_scc1 d3_recv")
    for j in range(8):
        A(f"buffer_store_dwordx4 {v(ACC+4*j,4)}, v6, s[8:11], {s(41 + j//4)} offen offset:{(j%4)*1024} sc1")
    A("s_waitcnt vmcnt(0)")
    A("s_mov_b64 exec, 1")
    A("buffer_store_dwordx2 v[248:249], v20, s[8:11], s43 offen sc1")
    A("s_mov_b64 exec, -1")
    A("s_branch d3_end")
    A.label("d3_recv")
    A(f"s_mov_b32 s28, {SPIN_MAX}")
    A("s_mov_b64 exec, 1")
    A.label("d3_poll")
    A("buffer_load_dwordx2 v[22:23], v20, s[8:11], s43 offen sc1")
    A("s_waitcnt vmcnt(0)")
    A("v_cmp_ne_u64 vcc, v[248:249], v[22:23]")
    A("s_nop 1")
    A("s_cmp_eq_u64 vcc, 0")
    A("s_cbranch_scc1 d3_got")
    A("s_sleep 1")
    A("s_sub_u32 s28, s28, 1")
    A("s_cmp_lg_u32 s28, 0")
    A("s_cbranch_scc1 d3_poll")
    A.label("d3_got")
    A("s_mov_b64 exec, -1")
    for j in range(8):
        A(f"buffer_load_dwordx4 {v(64+4*j,4)}, v6, s[8:11], {s(41 + j//4)} offen offset:{(j%4)*1024} sc1")
    TT = 112
    for i in range(4):
        A(f"s_waitcnt vmcnt({6 - 2*i + i})")
        for q in range(4):
            A(f"v_pk_add_f32 {v(ACC+8*i+2*q,2)}, {v(ACC+8*i+2*q,2)}, {v(64+8*i+2*q,2)}")
        for f in range(2):
            for h in range(2):
                A(f"v_cvt_pk_bf16_f32 {v(TT+4*i+2*f+h)}, {v(acc(f,i)+2*h)}, {v(acc(f,i)+2*h+1)}")
        A("s_nop 1")
        A(f"v_permlane16_swap_b32 {v(TT+4*i)}, {v(TT+4*i+2)}")
        A(f"v_permlane16_swap_b32 {v(TT+4*i+1)}, {v(TT+4*i+3)}")
        A("s_nop 1")
        A(f"buffer_store_dwordx4 {v(TT+4*i,4)}, v9, s[48:51], {s(35+i)} offen{OUTF}")
    A.label("d3_end")
    if PROF:
        A("s_waitcnt vmcnt(0)")
        stamp(A, ph, 4)
```

```python
import sys, math, os, struct
from asmlib import *

MB = 1 << 20
WS_XN, WS_Q, WS_K, WS_VT, WS_O, WS_H, WS_ST, WS_CS, WS_FL, WS_HACT = 0, 4*MB, 8*MB, 12*MB, 16*MB, 20*MB, 24*MB, 25*MB, 26*MB, 32*MB
if int(os.environ.get('HACT0', '1')): WS_HACT = 0
WS_DBG = 48*MB
WS_XB = 72*MB
WS_WD = 64*MB
KA_X, KA_WQKV, KA_WO, KA_BX, KA_WG, KA_WU, KA_WD, KA_OUT, KA_DBG, KA_WS = 0, 8, 16, 24, 32, 40, 48, 56, 64, 72
LOG2E = math.log2(math.e)
QSCALE = LOG2E / math.sqrt(32.0)
def f32(x): return hex(struct.unpack("<I", struct.pack("<f", x))[0])
def OPT(name, default): return int(os.environ.get(name, str(default)))
def SOPT(name, default): return os.environ.get(name, default)
PROF = OPT("PROF", 0)
STF = " sc1"
LDF = SOPT("LDF", " sc1")
OUTF = SOPT("OUTF", "")
NAME = "sequential_preLN__mha_block__glu_gated_glu__prompt_kernel"

sNON = 62
def stamp(A, ph, i):
    if not PROF: return
    A("s_memrealtime s[64:65]")
    A("s_waitcnt lgkmcnt(0)")
    A(f"s_mov_b32 {s(66+ph*6+i)}, s64")
def cyc(A, ph, end):
    if not PROF: return
    A("s_memtime s[64:65]")
    A("s_waitcnt lgkmcnt(0)")
    if not end: A(f"s_mov_b32 {s(66+ph*6+5)}, s64")
    else: A(f"s_sub_u32 {s(66+ph*6+5)}, s64, {s(66+ph*6+5)}")
def stamp_flush(A):
    if not PROF: return
    A("s_mov_b64 exec, 1")
    srd(A, 8, 6, WS_DBG, 16*MB)
    A("s_lshl_b32 s3, s2, 3")
    A("s_add_u32 s3, s3, s20")
    A("s_lshl_b32 s3, s3, 8")
    A("v_mov_b32 v0, 0")
    for i in range(36):
        A(f"v_mov_b32 {v(1+i)}, {s(66+i)}")
    for i in range(36):
        A(f"buffer_store_dword {v(1+i)}, v0, s[8:11], s3 offen offset:{4*i}")

def mf16(d, A_, B_, c=None):
    c = v(d, 4) if c is None else c
    return f"v_mfma_f32_16x16x32_bf16 {v(d,4)}, {v(A_,4)}, {v(B_,4)}, {c}"
def mf32(d, A_, B_, c=None):
    c = v(d, 16) if c is None else c
    return f"v_mfma_f32_32x32x16_bf16 {v(d,16)}, {v(A_,4)}, {v(B_,4)}, {c}"
def reduce_rows16_32(A, xs, ts):
    for op in ("v_permlane16_swap_b32", "v_permlane32_swap_b32"):
        for x, t in zip(xs, ts): A(f"v_mov_b32 {v(t)}, {v(x)}")
        A("s_nop 1")
        for x, t in zip(xs, ts): A(f"{op} {v(t)}, {v(x)}")
        A("s_nop 1")
        for x, t in zip(xs, ts): A(f"v_add_f32 {v(x)}, {v(x)}, {v(t)}")
def lane_decomp(A):
    A("v_and_b32 v1, 63, v0")
    A("v_lshrrev_b32 v2, 4, v1")
    A("v_bfe_u32 v3, v1, 2, 2")
    A("v_and_b32 v4, 3, v1")
    A("v_and_b32 v5, 15, v1")
    A("v_lshlrev_b32 v6, 4, v1")
def emit(A, L):
    for i in L:
        if isinstance(i, list): emit(A, i)
        else: A(i)

SPIN_MAX = 1 << 18
def pub_prep(A, ph, sg, sj):
    A(f"s_lshl_b32 s3, {s(sg)}, 8")
    A(f"s_lshl_b32 s28, {s(sj)}, 3")
    A("s_add_u32 s3, s3, s28")
    A(f"s_add_u32 s3, s3, {ph*4096}")
    A("v_mov_b32 v250, s3")
    if OPT("PUBFIRST", 1) and ph > 0:
        A("s_waitcnt vmcnt(0)")
        stamp(A, ph, 4)
        publish(A, force=True)
def publish(A, force=False):
    if OPT("PUBFIRST", 1) and not force: return
    srd(A, 56, 6, WS_FL, 6 * 4096)
    A("s_barrier")
    skip = A.newlabel("pub_skip")
    A("s_cmp_lg_u32 s20, 0")
    A(f"s_cbranch_scc1 {skip}")
    A("s_mov_b64 exec, 1")
    A("buffer_store_dwordx2 v[248:249], v250, s[56:59], 0 offen sc1")
    A("s_mov_b64 exec, -1")
    A.label(skip)

def wait_flags(A, ph, sg, n, also_all=None, soff=None):
    skip = A.newlabel("wf_skip"); loop = A.newlabel("wf_loop"); done = A.newlabel("wf_done")
    A("s_cmp_lg_u32 s20, 0")
    A(f"s_cbranch_scc1 {skip}")
    srd(A, 56, 6, WS_FL, 6 * 4096)
    A(f"s_lshl_b32 s3, {s(sg)}, 8")
    A(f"s_add_u32 s3, s3, {ph*4096}")
    if soff is not None: A(f"s_add_u32 s3, s3, {s(soff)}")
    A(f"v_and_b32 v22, {n-1}, v0")
    A("v_lshlrev_b32 v22, 3, v22")
    A("v_lshlrev_b32 v23, 3, v0")
    if also_all is not None: A(f"s_mov_b32 s29, {also_all*4096}")
    A(f"s_mov_b32 s28, {SPIN_MAX}")
    A.label(loop)
    A("buffer_load_dwordx2 v[20:21], v22, s[56:59], s3 offen sc1")
    if also_all is not None:
        for j in range(4):
            A(f"buffer_load_dwordx2 {v(24+2*j,2)}, v23, s[56:59], s29 offen offset:{j*512} sc1")
    A("s_waitcnt vmcnt(0)")
    A(f"v_cmp_ne_u64 vcc, {s(sNON,2)}, v[20:21]")
    if also_all is not None:
        for j in range(4):
            A(f"v_cmp_ne_u64 s[60:61], {s(sNON,2)}, {v(24+2*j,2)}")
            A("s_nop 1")
            A("s_or_b64 vcc, vcc, s[60:61]")
    A("s_nop 1")
    A("s_cmp_eq_u64 vcc, 0")
    A(f"s_cbranch_scc1 {skip}")
    A(f"s_sleep {OPT('SLEEP', 1)}")
    A("s_sub_u32 s28, s28, 1")
    A("s_cmp_lg_u32 s28, 0")
    A(f"s_cbranch_scc1 {loop}")
    A.label(skip)
    A("s_barrier")

sRd, sWr, sGo, sCnt, sM = 23, 24, 25, 27, 30
def ring_advance(slot, R):
    return [f"s_mov_b32 {s(sWr)}, {s(sRd)}",
            f"s_add_u32 {s(sRd)}, {s(sRd)}, {slot}",
            f"s_cmp_eq_u32 {s(sRd)}, {slot*R}",
            f"s_cselect_b32 {s(sRd)}, 0, {s(sRd)}"]

def adv(d, SC=0):
    if not SC: return [f"s_add_u32 {s(sGo)}, {s(sGo)}, {hex(d)}"]
    return ["s_add_u32 s38, s38, 1",
            "s_add_u32 s3, s38, s39",
            f"s_and_b32 s3, s3, {SC-1}",
            f"s_andn2_b32 {s(sGo)}, s38, {SC-1}",
            f"s_or_b32 s3, s3, {s(sGo)}",
            f"s_mul_i32 s3, s3, {hex(d)}",
            f"s_add_u32 {s(sGo)}, s3, s37"]
def rot_init(A, d, SC):
    A(f"s_mov_b32 s37, {s(sGo)}")
    A("s_mov_b32 s38, -1")
    emit(A, adv(d, SC))

def xdma(dX, SC=0, srd_='s[8:11]'):
    g = [[f"s_add_u32 m0, {s(sWr)}, {s(sM)}", "s_nop 0",
          f"buffer_load_dwordx4 v6, {srd_}, {s(sGo)} offen{LDF} lds"]]
    for j in range(1, 4):
        g.append([f"buffer_load_dwordx4 v6, {srd_}, {s(sGo)} offen offset:{j*1024}{LDF} lds"])
    g[-1] += adv(dX, SC)
    return g

def fill_ring(A, R, SLOT, dma, lo=0, hi=None, bar=False):
    for st in range(lo, R if hi is None else hi):
        if dma is not None:
            A(f"s_mov_b32 {s(sWr)}, {st*SLOT}")
            emit(A, dma())
        if bar and st < R - 1: A("s_barrier")

def gemm_loop(A, ph, label, role, R, SLOT, NST, ndma, mfmas, reads, dma_groups, addr_upd, tail_hook=None, cnt_sgpr=None):
    T = R + (R % 2) if OPT("TAIL", 1) else 0
    A(f"s_mov_b32 {s(sRd)}, 0")
    emit(A, addr_upd())
    A(f"s_waitcnt vmcnt({ndma*(R-1)})")
    A("s_barrier")
    stamp(A, ph, 2); cyc(A, ph, 0)
    emit(A, reads(0))
    emit(A, ring_advance(SLOT, R))
    emit(A, addr_upd())
    A(f"s_mov_b32 {s(sCnt)}, {(NST-T)//2 if cnt_sgpr is None else s(cnt_sgpr)}")
    PRE = OPT("PRE_" + str(ph), OPT("PRE", 0))
    BK = OPT("BK", 1)
    def snake(M):
        return M
    def stage(p, dma, nout, last, hook=None, extra=0, loopend=False):
        M = mfmas(p); Rd = reads(1 - p); D = dma_groups() if dma else []
        if hook: D = D + [hook]
        nm = len(M)
        if last:
            A("s_waitcnt lgkmcnt(0)")
            emit(A, M)
            return
        book = ring_advance(SLOT, R) + addr_upd()
        cnt = [f"s_sub_u32 {s(sCnt)}, {s(sCnt)}, 1", f"s_cmp_lg_u32 {s(sCnt)}, 0"] if loopend else []
        if role == "A":
            pre = min(PRE, nm // 2)
            if pre:
                A("s_waitcnt lgkmcnt(0)")
                emit(A, M[:pre])
                A(f"s_waitcnt vmcnt({ndma*nout+extra})")
            else:
                A(f"s_waitcnt vmcnt({ndma*nout+extra}) lgkmcnt(0)")
            A("s_barrier")
            Mr = M[pre:]; nr = len(Mr)
            if BK and dma:
                m0set = D[0][0]; D = [D[0][2:]] + D[1:]
                emit(A, interleave(Mr, Rd, 0, max(1, nr - 2)))
                A(m0set)
                emit(A, book)
                emit(A, D)
                emit(A, cnt)
            else:
                emit(A, interleave(Mr, Rd, 0, max(1, nr - 2) if dma else max(1, (2 * nr) // 3)))
                emit(A, D)
                emit(A, book); emit(A, cnt)
        else:
            A(f"s_waitcnt vmcnt({ndma*nout+extra}) lgkmcnt(0)")
            A("s_barrier")
            emit(A, D)
            if BK:
                h = max(1, (2 * nm) // 3)
                emit(A, interleave(M[:h], Rd))
                emit(A, interleave(M[h:], [[x] for x in book[:2]] + [book[2:4]] + [[x] for x in book[4:]] + ([cnt] if cnt else []), 0, max(1, nm - h - 1)))
            else:
                emit(A, interleave(M, Rd, 0, max(1, (2 * nm) // 3)))
                emit(A, book); emit(A, cnt)
    A.raw(".p2align 6")
    A.label(label)
    for p in range(2): stage(p, True, R - 2, False, loopend=(p == 1))
    A(f"s_cbranch_scc1 {label}")
    for st in range(NST - T, NST):
        stage(st % 2, st + R < NST, min(R - 2, NST - 2 - st), st == NST - 1, (tail_hook or {}).get(NST - st), (tail_hook or {}).get(('x', NST - st), 0))
    if not T: A("s_waitcnt lgkmcnt(0)")
    A("s_nop 7")
    cyc(A, ph, 1); stamp(A, ph, 3)

def code_touch(A, vd=26):
    if not OPT("CT", 0): return
    l = A.newlabel("ct")
    A("s_getpc_b64 s[56:57]")
    A.label(l)
    A(f"s_sub_u32 s56, s56, {l}-{NAME}")
    A("s_subb_u32 s57, s57, 0")
    A(f"s_mov_b32 s58, code_end-{NAME}")
    A("s_mov_b32 s59, 0x20000")
    A("v_lshlrev_b32 v20, 7, v1")
    A("s_lshl_b32 s28, s31, 13")
    A(f"buffer_load_dword {v(vd)}, v20, s[56:59], s28 offen")

def code_touch_list(A, frm, vd, va):
    l = A.newlabel("ct")
    return ["s_getpc_b64 s[56:57]", f"{l}:",
            f"s_add_u32 s56, s56, {frm}-{l}", "s_addc_u32 s57, s57, 0",
            "s_and_b32 s56, s56, 0xffffff80",
            f"s_mov_b32 s58, code_end-{frm}", "s_mov_b32 s59, 0x20000",
            f"v_lshlrev_b32 {v(va)}, 7, v1", "s_lshl_b32 s28, s31, 13",
            f"buffer_load_dword {v(vd)}, {v(va)}, s[56:59], s28 offen"]

def w_swz_voff(A, dst, rowstride):
    A(f"v_lshrrev_b32 {v(dst)}, 3, v1")
    A(f"v_mul_u32_u24 {v(dst)}, {rowstride}, {v(dst)}")
    A("v_and_b32 v20, 7, v1")
    A("v_lshlrev_b32 v21, 1, v2")
    A("v_xor_b32 v20, v20, v21")
    A(f"v_lshl_add_u32 {v(dst)}, v20, 4, {v(dst)}")

def ph_ln_qkv(A):
    R, SLOT, NST = 4, 40960, 16
    A(f"s_load_dwordx4 s[40:43], s[0:1], {KA_X}")
    A(f"s_load_dwordx4 s[4:7], s[0:1], {KA_DBG}")
    A("s_memrealtime s[62:63]")
    A("v_lshrrev_b32 v1, 6, v0")
    A("s_nop 0")
    A("v_readfirstlane_b32 s20, v1")
    lane_decomp(A)
    A("s_and_b32 s21, s2, 1")
    A("s_lshl_b32 s21, s21, 3")
    A("s_bfe_u32 s28, s2, 0x30003")
    A("s_add_u32 s21, s21, s28")
    A("s_bfe_u32 s22, s2, 0x20001")
    A("s_lshl_b32 s22, s22, 2")
    A("s_lshr_b32 s28, s2, 6")
    A("s_add_u32 s22, s22, s28")
    A("s_and_b32 s31, s20, 3")
    QSC = OPT("QSC", 16)
    A("s_and_b32 s39, s21, 3")
    A(f"s_mul_i32 s39, s39, {QSC//4}")
    A("s_cmp_ge_u32 s20, 4")
    A("s_cbranch_scc1 p0_B")
    A("v_and_b32 v7, 7, v1")
    A("v_bfe_u32 v8, v1, 3, 2")
    A("v_lshrrev_b32 v9, 5, v1")
    A("v_lshlrev_b32 v10, 11, v7")
    A("v_lshl_add_u32 v10, v9, 6, v10")
    A("v_lshl_add_u32 v10, v8, 3, v10")
    A("s_lshl_b32 s3, s2, 14")
    A("s_lshl_b32 s28, s20, 9")
    A("s_add_u32 s3, s3, s28")
    A("s_waitcnt lgkmcnt(0)")
    if PROF: A("s_mov_b32 s66, s62")
    srd(A, 8, 40, 0, 4*MB)
    for i in range(4):
        A(f"buffer_load_dwordx2 {v(32+4*i,2)}, v10, s[8:11], s3 offen offset:{i*128}")
        A(f"buffer_load_dwordx2 {v(34+4*i,2)}, v10, s[8:11], s3 offen offset:{i*128+32}")
    srd(A, 16, 4, 0, 256)
    A("s_or_b32 s28, s2, s20")
    A("s_cmp_lg_u32 s28, 0")
    A("s_cbranch_scc1 p0_nopub")
    A("s_or_b32 s62, s62, 1")
    A("v_mov_b32 v20, s62")
    A("v_mov_b32 v21, s63")
    A("v_mov_b32 v22, 0")
    A("s_mov_b64 exec, 1")
    A("buffer_store_dwordx2 v[20:21], v22, s[16:19], 0 offen sc1")
    A("s_mov_b64 exec, -1")
    A("s_waitcnt vmcnt(0)")
    A.label("p0_nopub")
    srd(A, 12, 6, WS_XN, 4*MB)
    A("v_lshlrev_b32 v11, 17, v9")
    A("v_lshl_add_u32 v11, v7, 4, v11")
    A("v_lshl_add_u32 v11, v8, 8, v11")
    A("s_lshr_b32 s32, s2, 1")
    A("s_lshl_b32 s32, s32, 10")
    A("s_and_b32 s33, s2, 1")
    A("s_lshl_b32 s33, s33, 7")
    A("s_add_u32 s32, s32, s33")
    A("s_lshl_b32 s33, s20, 20")
    A("s_add_u32 s32, s32, s33")
    A("s_add_u32 s33, s32, 0x40000")
    A("s_add_u32 s34, s32, 0x80000")
    A("s_add_u32 s35, s32, 0xc0000")
    A("v_mov_b32 v24, 0")
    A("v_mov_b32 v25, 0")
    U = 64
    for j in range(16):
        if j % 2 == 0: A(f"s_waitcnt vmcnt({7 - j//2})")
        A(f"v_lshlrev_b32 {v(U+2*j)}, 16, {v(32+j)}")
        A(f"v_and_b32 {v(U+1+2*j)}, 0xffff0000, {v(32+j)}")
        A(f"v_add_f32 v24, v24, {v(U+2*j)}")
        A(f"v_fmac_f32 v25, {v(U+2*j)}, {v(U+2*j)}")
        A(f"v_add_f32 v24, v24, {v(U+1+2*j)}")
        A(f"v_fmac_f32 v25, {v(U+1+2*j)}, {v(U+1+2*j)}")
    A("v_mov_b32 v22, 0")
    A("buffer_load_dwordx2 v[28:29], v22, s[16:19], 0 offen sc1")
    A("v_add_f32_dpp v24, v24, v24 row_ror:8 row_mask:0xf bank_mask:0xf")
    A("v_add_f32_dpp v25, v25, v25 row_ror:8 row_mask:0xf bank_mask:0xf")
    reduce_rows16_32(A, [24, 25], [26, 27])
    A("v_lshlrev_b32 v26, 5, v7")
    A("s_lshl_b32 s28, s20, 3")
    A("v_add_u32 v27, s28, v26")
    A("ds_write_b64 v27, v[24:25]")
    A("s_waitcnt lgkmcnt(0)")
    A("s_barrier")
    A("ds_read_b128 v[100:103], v26")
    A("ds_read_b128 v[104:107], v26 offset:16")
    A("s_waitcnt lgkmcnt(0)")
    A("v_pk_add_f32 v[24:25], v[100:101], v[102:103]")
    A("v_pk_add_f32 v[26:27], v[104:105], v[106:107]")
    A("v_pk_add_f32 v[24:25], v[24:25], v[26:27]")
    A(f"v_mul_f32 v24, {f32(1/1024)}, v24")
    A(f"v_mul_f32 v25, {f32(1/1024)}, v25")
    A("v_fma_f32 v25, -v24, v24, v25")
    A("v_max_f32 v25, 0, v25")
    A(f"v_add_f32 v25, {f32(1e-5)}, v25")
    A("v_rsq_f32 v25, v25")
    A("s_nop 0")
    A("v_mul_f32 v24, v24, v25")
    for j in range(16):
        A(f"v_fma_f32 {v(U+2*j)}, {v(U+2*j)}, v25, -v24")
        A(f"v_fma_f32 {v(U+1+2*j)}, {v(U+1+2*j)}, v25, -v24")
        A(f"v_cvt_pk_bf16_f32 {v(32+j)}, {v(U+2*j)}, {v(U+1+2*j)}")
        if j % 4 == 3:
            A(f"buffer_store_dwordx4 {v(32+j-3,4)}, v11, s[12:15], {s(32+j//4)} offen{STF}")
    stamp(A, 0, 3)
    A("s_lshr_b32 s32, s2, 4")
    A("s_and_b32 s33, s2, 15")
    pub_prep(A, 0, 32, 33)
    A(f"s_mov_b32 s28, {SPIN_MAX}")
    A.label("p0_nonce")
    A("s_waitcnt vmcnt(0)")
    A("v_readfirstlane_b32 s62, v28")
    A("v_readfirstlane_b32 s63, v29")
    A("s_nop 1")
    A("s_cmp_lg_u32 s62, 0")
    A("s_cbranch_scc1 p0_gotnonce")
    A("buffer_load_dwordx2 v[28:29], v22, s[16:19], 0 offen sc1")
    A("s_sub_u32 s28, s28, 1")
    A("s_cmp_lg_u32 s28, 0")
    A("s_cbranch_scc1 p0_nonce")
    A.label("p0_gotnonce")
    A("v_mov_b32 v248, s62")
    A("v_mov_b32 v249, s63")
    stamp(A, 0, 4)
    publish(A, force=True)
    A("v_mov_b32 v12, 0")
    A("s_lshr_b32 s28, s31, 1")
    A("s_lshl_b32 s28, s28, 7")
    A("s_lshl_b32 s29, s21, 3")
    A("s_add_u32 s28, s28, s29")
    A("s_and_b32 s29, s31, 1")
    A("s_lshl_b32 s29, s29, 2")
    A("s_add_u32 s28, s28, s29")
    A(f"s_lshl_b32 {s(sGo)}, s28, 10")
    if QSC: rot_init(A, 0x40000, QSC)
    A(f"s_lshl_b32 {s(sM)}, s31, 12")
    A("s_branch p1_common")
    A.label("p0_B")
    code_touch(A)
    w_swz_voff(A, 7, 6144)
    A(f"v_add_u32 v8, {8*6144-1024}, v7")
    A("v_add_u32 v9, 2048, v7")
    A("v_add_u32 v10, 2048, v8")
    A("v_add_u32 v11, 4096, v7")
    A("v_add_u32 v12, 4096, v8")
    A(f"s_mul_i32 s28, s31, {16*6144}")
    A("s_lshl_b32 s29, s22, 7")
    A(f"s_add_u32 {s(sGo)}, s28, s29")
    if QSC: rot_init(A, 64*6144, QSC)
    A(f"s_lshl_b32 {s(sM)}, s31, 11")
    A(f"s_add_u32 {s(sM)}, {s(sM)}, 16384")
    A("v_and_b32 v13, 31, v1")
    A("v_mul_u32_u24 v13, 6144, v13")
    A("v_lshrrev_b32 v14, 5, v1")
    A("v_lshl_add_u32 v15, v14, 11, v13")
    A("v_lshl_add_u32 v13, v14, 30, v13")
    A("v_add_u32 v13, 4096, v13")
    A("s_and_b32 s28, s21, 7")
    A("s_lshl_b32 s28, s28, 2")
    A("s_add_u32 s28, s28, s31")
    A(f"s_mul_i32 s28, s28, {32*6144}")
    A("s_add_u32 s28, s28, s29")
    A("s_waitcnt lgkmcnt(0)")
    if PROF: A("s_mov_b32 s66, s62")
    srd(A, 12, 42, 0, 6*MB)
    def wdma():
        g = []
        for seg in range(3):
            g.append([f"s_add_u32 m0, {s(sWr)}, {s(sM)}" if seg == 0 else "s_add_u32 m0, m0, 8192", "s_nop 0",
                      f"buffer_load_dwordx4 {v(7+2*seg)}, s[12:15], {s(sGo)} offen lds"])
            g.append([f"buffer_load_dwordx4 {v(8+2*seg)}, s[12:15], {s(sGo)} offen offset:1024 lds"])
        g[-1] += adv(64*6144, QSC)
        return g
    P0M = OPT("P0M", 6)
    def touches():
        A("buffer_load_dword v24, v15, s[12:15], s28 offen")
        A("buffer_load_dword v25, v13, s[12:15], s28 offen")
    if P0M == 0:
        touches()
        fill_ring(A, R, SLOT, wdma, 0, 2)
        A("s_barrier")
        fill_ring(A, R, SLOT, wdma, 2, 4)
        A("s_barrier")
    elif P0M == 1:
        A("s_barrier")
        touches()
        fill_ring(A, R, SLOT, wdma, 0, 2)
        A("s_barrier")
        fill_ring(A, R, SLOT, wdma, 2, 4)
    elif P0M == 2:
        fill_ring(A, R, SLOT, wdma, 0, 2)
        A("s_barrier")
        touches()
        fill_ring(A, R, SLOT, wdma, 2, 4)
        A("s_barrier")
        A("s_waitcnt vmcnt(0)")
    elif P0M == 4:
        A("s_barrier")
        fill_ring(A, R, SLOT, wdma, 0, 2)
        A("s_barrier")
        fill_ring(A, R, SLOT, wdma, 2, 4)
    elif P0M == 5:
        fill_ring(A, R, SLOT, wdma, 0, 4)
        A("s_barrier")
        A("s_barrier")
    elif P0M == 6:
        fill_ring(A, R, SLOT, wdma, 0, 2)
        A("s_barrier")
        A("s_barrier")
        fill_ring(A, R, SLOT, wdma, 2, 4)
    elif P0M == 3:
        fill_ring(A, R, SLOT, wdma, 0, 2)
        A("s_barrier")
        fill_ring(A, R, SLOT, wdma, 2, 4)
        A("s_barrier")

    A.label("p1_common")
    ACC = 64
    def acc(f, i): return ACC + (f * 4 + i) * 4
    SET = [112, 168]
    def xf(p, kk, i): return SET[p] + (kk * 4 + i) * 4
    def wf(p, kk, f): return SET[p] + 32 + (kk * 3 + f) * 4
    srd(A, 8, 6, WS_XN, 4*MB)
    srd(A, 12, 42, 0, 6*MB)
    srd(A, 16, 6, WS_Q, 12*MB)
    A("s_and_b32 s28, s20, 1")
    A("s_lshl_b32 s28, s28, 12")
    A("v_add_u32 v32, s28, v6")
    A("v_lshl_add_u32 v33, v2, 2, v3")
    A("v_lshlrev_b32 v33, 7, v33")
    A("v_lshl_add_u32 v33, v4, 3, v33")
    A("v_add_u32 v33, 16384, v33")
    A("v_bfe_u32 v34, v1, 3, 2")
    A("s_lshr_b32 s28, s20, 1")
    A("s_and_b32 s29, s28, 1")
    A("s_lshl_b32 s29, s29, 1")
    A("s_lshr_b32 s32, s28, 1")
    A("s_lshl_b32 s32, s32, 13")
    A("v_xor_b32 v35, s29, v34")
    A("v_lshl_add_u32 v35, v35, 5, v33")
    A("v_add_u32 v35, s32, v35")
    A("v_xor_b32 v36, 32, v35")
    A("v_xor_b32 v37, s28, v34")
    A("v_lshl_add_u32 v37, v37, 5, v33")
    A("v_add_u32 v37, 16384, v37")
    for i in range(48): A(f"v_mov_b32 {v(ACC+i)}, 0")
    stamp(A, 1, 0)
    wait_flags(A, 0, 21, 16)
    stamp(A, 1, 1)
    def reads(p):
        out = []
        for kk in range(2):
            for f in range(3):
                for t in range(2):
                    out.append([f"ds_read_b64_tr_b16 {v(wf(p,kk,f)+2*t,2)}, {v(17+f)} offset:{kk*4096+t*2048}"])
            for i in range(4):
                out.append([f"ds_read_b128 {v(xf(p,kk,i),4)}, v16 offset:{kk*8192+i*1024}"])
        return out
    def addr_upd():
        return [f"v_add_u32 v16, {s(sRd)}, v32", f"v_add_u32 v17, {s(sRd)}, v35",
                f"v_add_u32 v18, {s(sRd)}, v36", f"v_add_u32 v19, {s(sRd)}, v37"]
    def mfmas(p):
        M = []
        for kk in range(2):
            for f in range(3):
                for i in (range(4) if (f % 2 == 0 or not OPT("SNAKE", 1)) else range(3, -1, -1)):
                    if f < 2: M.append(mf16(acc(f, i), wf(p, kk, f), xf(p, kk, i)))
                    else:     M.append(mf16(acc(f, i), xf(p, kk, i), wf(p, kk, f)))
        return M
    A("s_cmp_ge_u32 s20, 4")
    A("s_cbranch_scc1 qkv_B")
    fill_ring(A, R, SLOT, lambda: xdma(0x40000, QSC), bar=True)
    gemm_loop(A, 1, "qkv_loopA", "A", R, SLOT, NST, 4, mfmas, reads, lambda: xdma(0x40000, QSC), addr_upd,
              {4: code_touch_list(A, "qkv_epi", 251, 252), ('x', 3): 1, ('x', 2): 1} if OPT("CTQ", 0) else None)
    A("s_branch qkv_epi")
    A.label("qkv_B")
    fill_ring(A, R, SLOT, None, bar=True)
    gemm_loop(A, 1, "qkv_loopB", "B", R, SLOT, NST, 6, mfmas, reads, wdma, addr_upd)
    A.label("qkv_epi")
    A(f"s_load_dwordx2 s[40:41], s[0:1], {KA_WO}")
    A(f"s_load_dwordx4 s[44:47], s[0:1], {KA_WG}")
    A(f"s_load_dwordx2 s[42:43], s[0:1], {KA_WD}")
    A("v_lshlrev_b32 v9, 9, v2")
    A("v_lshrrev_b32 v7, 3, v5")
    A("v_lshl_add_u32 v7, v7, 8, v9")
    A("v_and_b32 v8, 7, v5")
    A("v_lshl_add_u32 v7, v8, 4, v7")
    A("v_lshl_add_u32 v8, v5, 4, v9")
    A("s_lshr_b32 s28, s20, 1")
    A("s_and_b32 s29, s28, 1")
    A("s_lshr_b32 s32, s28, 1")
    A("s_and_b32 s33, s20, 1")
    A("s_lshl_b32 s34, s21, 2")
    A("s_lshl_b32 s33, s33, 1")
    A("s_add_u32 s34, s34, s33")
    A("s_lshl_b32 s34, s34, 11")
    A("s_lshl_b32 s35, s22, 1")
    A("s_add_u32 s36, s35, s29")
    A("s_lshl_b32 s36, s36, 17")
    A("s_add_u32 s36, s36, s34")
    A("s_lshl_b32 s37, s32, 22")
    A("s_add_u32 s36, s36, s37")
    A("s_add_u32 s38, s35, s32")
    A("s_lshl_b32 s38, s38, 17")
    A("s_add_u32 s38, s38, s34")
    A("s_lshl_b32 s37, s29, 8")
    A("s_add_u32 s38, s38, s37")
    A(f"s_add_u32 s38, s38, {8*MB}")
    A("s_cmp_eq_u32 s32, 0")
    A(f"s_cselect_b32 s39, {f32(QSCALE)}, 1.0")
    A("v_mov_b32 v20, s39")
    T = 128
    for pr in range(2):
        for ii in range(2):
            for h in range(2):
                A(f"v_cvt_pk_bf16_f32 {v(T+4*pr+2*ii+h)}, {v(acc(2,2*pr+ii)+2*h)}, {v(acc(2,2*pr+ii)+2*h+1)}")
        A(f"buffer_store_dwordx4 {v(T+4*pr,4)}, v8, s[16:19], s38 offen offset:{pr*2048}{STF}")
    T = 112
    for i in range(4):
        for f in range(2):
            for h in range(2):
                A(f"v_pk_mul_f32 {v(acc(f,i)+2*h,2)}, {v(acc(f,i)+2*h,2)}, v[20:21] op_sel_hi:[1,0]")
        for f in range(2):
            for h in range(2):
                A(f"v_cvt_pk_bf16_f32 {v(T+4*i+2*f+h)}, {v(acc(f,i)+2*h)}, {v(acc(f,i)+2*h+1)}")
        A(f"buffer_store_dwordx4 {v(T+4*i,4)}, v7, s[16:19], s36 offen offset:{(i>>1)*2048+(i&1)*128}{STF}")
    pub_prep(A, 1, 22, 21)
    A("s_waitcnt lgkmcnt(0)")

def ph_attn(A):
    R, SLOT = 3, 32768
    WL = R * SLOT
    Q, NEGM, S0, S1, P, KF, VF, O, L, ONES = 8, 32, 48, 64, 80, 88, 96, 104, 120, 124
    S_ = [S0, S1]
    A("s_and_b32 s21, s2, 7")
    A("s_lshl_b32 s21, s21, 2")
    A("s_bfe_u32 s28, s2, 0x20003")
    A("s_add_u32 s21, s21, s28")
    A("s_lshr_b32 s22, s2, 5")
    A("s_lshr_b32 s32, s2, 1")
    A("s_and_b32 s33, s2, 1")
    sCo, sCM = 26, 29
    A("s_cmp_ge_u32 s32, 56")
    A("s_cselect_b32 s48, s46, s44")
    A("s_cselect_b32 s49, s47, s45")
    A("s_cselect_b32 s34, 56, 0")
    A("s_sub_u32 s34, s32, s34")
    A("s_mov_b32 s51, 0x20000")
    A("s_lshl_b32 s34, s34, 7")
    A(f"s_mul_i32 s35, s33, {512*7168}")
    A("s_add_u32 s34, s34, s35")
    A(f"s_add_u32 s35, s35, {512*7168}")
    A("s_cmp_lt_u32 s2, 224")
    A("s_cselect_b32 s50, s35, 0")
    A(f"s_mul_i32 s35, s31, {16*7168}")
    A(f"s_add_u32 {s(sCo)}, s34, s35")
    w_swz_voff(A, 7, 7168)
    A(f"v_add_u32 v129, {8*7168-1024}, v7")
    srd(A, 52, 40, 0, 2*MB)
    srd(A, 44, 42, 0, 7*MB)
    A("s_lshl_b32 s35, s2, 2")
    A("s_add_u32 s35, s35, s31")
    A("v_lshlrev_b32 v8, 7, v1")
    A("v_mov_b32 v9, 0x7fffffff")
    A("s_lshl_b32 s34, s35, 11")
    A("v_add_u32 v130, s34, v8")
    A("v_cmp_gt_u32 vcc, 16, v1")
    A("s_lshl_b32 s60, s35, 10")
    A("s_nop 0")
    A("v_cndmask_b32 v130, v9, v130, vcc")
    A("s_and_b32 s34, s35, 1")
    A("s_lshl_b32 s34, s34, 3")
    A("v_lshrrev_b32 v8, 3, v1")
    A("v_add_u32 v8, s34, v8")
    A(f"v_mul_u32_u24 v8, {3584*128}, v8")
    A("s_bfe_u32 s34, s35, 0x20002")
    A("s_lshl_b32 s34, s34, 1")
    A("v_and_b32 v9, 7, v1")
    A("v_xor_b32 v9, s34, v9")
    A("v_lshl_add_u32 v131, v9, 4, v8")
    A("s_lshr_b32 s61, s35, 1")
    A("s_lshl_b32 s61, s61, 7")
    A(f"s_sub_u32 s61, s61, {512*128}")
    CP = 140
    def cp_load():
        return [f"buffer_load_dwordx4 {v(CP,4)}, v6, s[44:47], s60 offen", f"s_add_u32 s60, s60, {MB}"]
    def cp_store():
        return [f"s_cmp_lt_u32 s61, {3584*128}", f"s_cselect_b32 s58, {7*MB}, 0",
                f"buffer_store_dwordx4 {v(CP,4)}, v131, s[56:59], s61 offen{STF}", f"s_add_u32 s61, s61, {512*128}"]
    def cs_dma(j):
        if j == 0:
            return [f"s_mov_b32 m0, {s(sCM)}", f"s_add_u32 {s(sCM)}, {s(sCM)}, 8192",
                    f"buffer_load_dwordx4 v7, s[48:51], {s(sCo)} offen lds"]
        return [f"buffer_load_dwordx4 v129, s[48:51], {s(sCo)} offen offset:1024 lds",
                f"s_add_u32 {s(sCo)}, {s(sCo)}, {64*7168}"]
    A("s_lshl_b32 s28, s21, 17")
    A("s_add_u32 s4, s6, s28")
    A("s_addc_u32 s5, s7, 0")
    srd(A, 8, 4, WS_K, 131072)
    srd(A, 12, 4, WS_VT, 131072)
    srd(A, 16, 4, WS_Q, 131072)
    srd(A, 36, 6, WS_O, 4*MB)
    A(f"s_lshl_b32 {s(sGo)}, s31, 12")
    A(f"s_lshl_b32 {s(sM)}, s31, 12")
    A("v_lshrrev_b32 v16, 2, v1")
    A("v_xor_b32 v16, v16, v2")
    A("v_and_b32 v16, 1, v16")
    A("v_cmp_eq_u32 vcc, 0, v16")
    A("v_mov_b32 v17, 0x3f803f80")
    A("s_nop 1")
    for i in range(4): A(f"v_cndmask_b32 {v(ONES+i)}, 0, v17, vcc")
    for i in range(16): A(f"v_mov_b32 {v(O+i)}, 0")
    for i in range(4): A(f"v_mov_b32 {v(L+i)}, 0")
    for i in range(4): A(f"v_mov_b32 {v(P+4+i)}, 0")
    for i in range(4): A(f"v_mov_b32 {v(VF+4+i)}, 0")
    A("v_mov_b32 v16, v6")
    A(f"v_add_u32 v17, {SLOT}, v6")
    A(f"s_mov_b32 {s(sRd)}, {SLOT}")
    A("s_lshr_b32 s34, s21, 1")
    A("s_lshl_b32 s35, s22, 3")
    A("s_add_u32 s35, s35, s20")
    A("s_lshl_b32 s35, s35, 11")
    if not OPT("PUBFIRST", 1):
        A("s_waitcnt vmcnt(0)")
        stamp(A, 1, 4)
    publish(A)
    stamp(A, 2, 0)
    wait_flags(A, 1, 34, 16)
    stamp(A, 2, 1)
    def kv(j):
        o = []
        if j % 4 == 0: o = [f"s_add_u32 m0, {s(sWr)}, {16384 if j >= 4 else 0}", "s_nop 0"]
        o += [f"buffer_load_dwordx4 v6, {'s[8:11]' if j < 4 else 's[12:15]'}, {s(sGo)} offen offset:{(j&3)*1024}{LDF} lds"]
        if j == 7:
            o += [f"s_add_u32 {s(sGo)}, {s(sGo)}, 16384",
                  f"s_add_u32 {s(sWr)}, {s(sWr)}, {SLOT}",
                  f"s_cmp_ge_u32 {s(sWr)}, {SLOT*R}",
                  f"s_cselect_b32 {s(sWr)}, {s(sM)}, {s(sWr)}"]
        return o
    srd(A, 56, 6, WS_WD, 7*MB)
    if OPT("NOSIDE", 0):
        A("s_mov_b32 s50, 0"); A("s_mov_b32 s46, 0"); A("s_mov_b32 s54, 0"); A("s_mov_b32 s61, 0x10000000")
    A(f"s_mov_b32 {s(sWr)}, {s(sM)}")
    A(f"s_lshl_b32 {s(sCM)}, s31, 11")
    A(f"s_add_u32 {s(sCM)}, {s(sCM)}, {WL}")
    A("s_cmp_ge_u32 s20, 4")
    A("s_cbranch_scc1 at_B0")
    for j in range(4): emit(A, kv(j))
    A("s_branch at_C0")
    A.label("at_B0")
    for j in range(4, 7): emit(A, kv(j))
    emit(A, kv(7)[:1])
    A.label("at_C0")
    A(f"buffer_load_dwordx4 {v(Q,4)}, v6, s[16:19], s35 offen{LDF}")
    A(f"buffer_load_dwordx4 {v(Q+4,4)}, v6, s[16:19], s35 offen offset:1024{LDF}")
    emit(A, kv(7)[1:])
    A("s_waitcnt vmcnt(0)")
    A("s_barrier")
    stamp(A, 2, 2); cyc(A, 2, 0)
    def kread(t, j, dst=None):
        a_ = 16 if t < 8 else 17
        return f"ds_read_b128 {v(KF+4*j if dst is None else dst,4)}, {v(a_)} offset:{(t%8)*2048+j*1024}"
    def vread(t, j):
        a_ = 16 if t < 8 else 17
        return f"ds_read_b128 {v(VF+4*j,4)}, {v(a_)} offset:{16384+(t%8)*2048+j*1024}"
    A(kread(0, 0, S1)); A(kread(0, 1, S1+4))
    A(kread(1, 0)); A(kread(1, 1)); A(vread(0, 0))
    A("s_cmp_ge_u32 s20, 4")
    A("s_cbranch_scc1 at_C1")
    for j in range(4): emit(A, kv(j))
    A("buffer_load_dword v128, v130, s[52:55], 0 offen")
    emit(A, cs_dma(0)); emit(A, cs_dma(1))
    if OPT("CT", 0) >= 2:
        A("s_branch at_C2")
    A.label("at_C1")
    if OPT("CT", 0) >= 2:
        code_touch(A, 128)
        srd(A, 56, 6, WS_WD, 7*MB)
        A.label("at_C2")
    A("s_waitcnt lgkmcnt(3)")
    A(mf32(S0, S1, Q, "0"))
    A(mf32(S0, S1+4, Q+4))
    A("s_nop 15")
    A("s_nop 3")
    A(f"v_max3_f32 v18, {v(S0)}, {v(S0+1)}, {v(S0+2)}")
    for i in range(3, 15, 2): A(f"v_max3_f32 v18, v18, {v(S0+i)}, {v(S0+i+1)}")
    A(f"v_max_f32 v18, v18, {v(S0+15)}")
    A("v_mov_b32 v19, v18")
    A("s_nop 1")
    A("v_permlane32_swap_b32 v19, v18")
    A("s_nop 1")
    A("v_max_f32 v18, v18, v19")
    for i in range(16): A(f"v_sub_f32 {v(NEGM+i)}, 0, v18")
    for i in range(16): A(f"v_sub_f32 {v(S0+i)}, {v(S0+i)}, v18")
    A(f"s_mov_b32 {s(sCnt)}, 8")
    A("s_waitcnt lgkmcnt(0)")
    def loop(role):
        A.raw(".p2align 6")
        A.label(f"attn_loop{role}")
        for t in range(8):
            c, n = S_[t % 2], S_[1 - t % 2]
            E = lambda i: f"v_exp_f32 {v(c+i)}, {v(c+i)}"
            C = lambda i: f"v_cvt_pk_bf16_f32 {v(P+i)}, {v(c+2*i)}, {v(c+2*i+1)}"
            X = {6: (kv(0), kv(1)), 7: (kv(2), kv(3)), 0: (kv(4), kv(5)), 1: (kv(6), kv(7)),
                 2: (["s_waitcnt vmcnt(10)"] + cp_store(), cp_load()), 3: (cs_dma(0), cs_dma(1)), 4: ([], []), 5: ([], [])}[t]
            if role == "B": X = ([], [])
            FAIR = OPT("FAIR", 0)
            if t == 6:
                if role == "A": A("s_waitcnt vmcnt(4)")
                A("s_barrier")
            elif FAIR == 1 and t == 2:
                A("s_barrier")
            elif FAIR == 2 and t % 2 == 0:
                A("s_barrier")
            if FAIR == 1: A(f"s_setprio {3 - (t + 2) % 4}")
            if FAIR == 3 and t % 2 == 0: A(f"s_setprio {3 - ((t + 2) % 8) // 2}")
            A("s_waitcnt lgkmcnt(2)")
            A(mf32(n, KF, Q, v(NEGM, 16)))
            A(kread(t + 2, 0))
            emit(A, [E(0), E(1), E(2)])
            A(mf32(O, VF+4, P+4))
            A(vread(t, 1))
            emit(A, X[0])
            emit(A, [E(3), E(4), E(5), E(6)])
            A("s_waitcnt lgkmcnt(2)")
            A(mf32(n, KF+4, Q+4))
            A(kread(t + 2, 1))
            emit(A, [E(7), C(0), C(1), C(2), C(3), E(8)])
            A(mf16(L, ONES, P+4))
            emit(A, [E(9), E(10)])
            A(mf32(O, VF, P))
            A(vread(t + 1, 0))
            emit(A, X[1])
            emit(A, [E(11), E(12), E(13), E(14)])
            A(mf16(L, ONES, P))
            if t == 7:
                A(f"s_add_u32 {s(sRd)}, {s(sRd)}, {SLOT}")
                A(f"s_cmp_eq_u32 {s(sRd)}, {SLOT*R}")
                A(f"s_cselect_b32 {s(sRd)}, 0, {s(sRd)}")
                A("v_mov_b32 v16, v17")
                A(f"v_add_u32 v17, {s(sRd)}, v6")
                A(f"s_sub_u32 {s(sCnt)}, {s(sCnt)}, 1")
                A(f"s_cmp_lg_u32 {s(sCnt)}, 0")
            emit(A, [E(15), C(4), C(5), C(6), C(7)])
        A(f"s_cbranch_scc1 attn_loop{role}")
    A("s_cmp_ge_u32 s20, 4")
    A("s_cbranch_scc1 attn_loopB")
    loop("A")
    A("s_branch attn_post")
    loop("B")
    A.label("attn_post")
    if OPT("FAIR", 0): A("s_setprio 0")
    A("s_waitcnt lgkmcnt(0)")
    A("s_nop 0")
    A(mf32(O, VF+4, P+4))
    A(mf16(L, ONES, P+4))
    cyc(A, 2, 1); stamp(A, 2, 3)
    A("s_waitcnt vmcnt(0)")
    A("s_barrier")
    A("v_lshrrev_b32 v18, 2, v1")
    A("v_lshlrev_b32 v18, 7, v18")
    A("v_lshl_add_u32 v18, v4, 3, v18")
    A("v_bfe_u32 v19, v1, 3, 2")
    A("v_xor_b32 v19, s31, v19")
    A("v_lshl_add_u32 v18, v19, 5, v18")
    A("s_lshr_b32 s29, s20, 2")
    A("s_lshl_b32 s34, s29, 15")
    A(f"s_add_u32 s34, s34, {WL}")
    A("v_add_u32 v18, s34, v18")
    CSW = S0
    for ks in range(8):
        for t in range(2):
            A(f"ds_read_b64_tr_b16 {v(CSW+4*ks+2*t,2)}, v18 offset:{ks*4096+t*2048}")
    for i in range(4): A(f"v_mov_b32 {v(132+i)}, 0x3f803f80")
    A(f"v_add_f32 v18, |{v(O)}|, {v(L)}")
    for i in range(1, 16): A(f"v_add_f32 v18, |{v(O+i)}|, v18")
    A(f"v_mov_b32 v19, {f32(2.0**120)}")
    A("v_cmp_nlt_f32 vcc, v18, v19")
    A("s_waitcnt lgkmcnt(0)")
    for ks in range(8):
        A(mf16(136, CSW+4*ks, 132, "0" if ks == 0 else None))
    A("s_cmp_eq_u64 vcc, 0")
    A("s_cbranch_scc0 attn_slow")
    A.label("attn_fin")
    A(f"s_load_dwordx2 s[44:45], s[0:1], {KA_X}")
    A(f"v_rcp_f32 v18, {v(L)}")
    A("s_nop 0")
    for i in range(16): A(f"v_mul_f32 {v(O+i)}, {v(O+i)}, v18")
    for pc in range(2):
        for hh in range(2):
            run = pc + 2 * hh
            for j in range(2):
                A(f"v_cvt_pk_bf16_f32 {v(P+4*pc+2*hh+j)}, {v(O+4*run+2*j)}, {v(O+4*run+2*j+1)}")
    A("v_bfe_u32 v18, v1, 3, 1")
    A("v_lshlrev_b32 v18, 10, v18")
    A("v_bfe_u32 v19, v1, 4, 1")
    A("v_lshl_add_u32 v18, v19, 7, v18")
    A("v_and_b32 v19, 7, v1")
    A("v_lshl_add_u32 v18, v19, 4, v18")
    A("v_lshrrev_b32 v19, 5, v1")
    A("v_lshl_add_u32 v18, v19, 8, v18")
    A("s_lshl_b32 s28, s21, 17")
    A("s_add_u32 s28, s28, s35")
    A(f"buffer_store_dwordx4 {v(P,4)}, v18, s[36:39], s28 offen{STF}")
    A(f"buffer_store_dwordx4 {v(P+4,4)}, v18, s[36:39], s28 offen offset:512{STF}")
    srd(A, 48, 6, WS_CS, 4*7168*4)
    A("s_lshl_b32 s33, s33, 1")
    A("s_add_u32 s33, s33, s29")
    A(f"s_mul_i32 s33, s33, {7168*4}")
    A("s_lshl_b32 s34, s32, 8")
    A("s_add_u32 s33, s33, s34")
    A("s_lshl_b32 s34, s31, 6")
    A("s_add_u32 s33, s33, s34")
    A("v_cmp_ne_u32 vcc, 0, v5")
    A("v_mov_b32 v19, 0x7fffffff")
    A("s_cmp_lt_u32 s2, 224")
    A(f"s_cselect_b32 s50, {4*7168*4}, 0")
    A("v_cndmask_b32 v19, v1, v19, vcc")
    A(f"buffer_store_dwordx4 v[136:139], v19, s[48:51], s33 offen{STF}")
    pub_prep(A, 2, 22, 21)
    A("s_waitcnt lgkmcnt(0)")
    def slow():
        A.label("attn_slow")
        A("v_mov_b32 v18, 0xff800000")
        A("s_mov_b32 s28, 0")
        A.label("attn_slow1")
        A(f"buffer_load_dwordx4 {v(KF,4)}, v6, s[8:11], s28 offen{LDF}")
        A(f"buffer_load_dwordx4 {v(KF+4,4)}, v6, s[8:11], s28 offen offset:1024{LDF}")
        A("s_waitcnt vmcnt(0)")
        A("s_nop 15")
        A(mf32(S0, KF, Q, "0"))
        A(mf32(S0, KF+4, Q+4))
        A("s_nop 15")
        A("s_nop 3")
        for i in range(0, 16, 2): A(f"v_max3_f32 v18, v18, {v(S0+i)}, {v(S0+i+1)}")
        A("s_add_u32 s28, s28, 2048")
        A("s_cmp_lt_u32 s28, 131072")
        A("s_cbranch_scc1 attn_slow1")
        A("v_mov_b32 v19, v18")
        A("s_nop 1")
        A("v_permlane32_swap_b32 v19, v18")
        A("s_nop 1")
        A("v_max_f32 v18, v18, v19")
        for i in range(16): A(f"v_sub_f32 {v(NEGM+i)}, 0, v18")
        for i in range(16): A(f"v_mov_b32 {v(O+i)}, 0")
        for i in range(4): A(f"v_mov_b32 {v(L+i)}, 0")
        A("s_mov_b32 s28, 0")
        A.label("attn_slow2")
        A(f"buffer_load_dwordx4 {v(KF,4)}, v6, s[8:11], s28 offen{LDF}")
        A(f"buffer_load_dwordx4 {v(KF+4,4)}, v6, s[8:11], s28 offen offset:1024{LDF}")
        A(f"buffer_load_dwordx4 {v(VF,4)}, v6, s[12:15], s28 offen{LDF}")
        A(f"buffer_load_dwordx4 {v(VF+4,4)}, v6, s[12:15], s28 offen offset:1024{LDF}")
        A("s_waitcnt vmcnt(0)")
        A(mf32(S0, KF, Q, v(NEGM, 16)))
        A(mf32(S0, KF+4, Q+4))
        A("s_nop 15")
        A("s_nop 3")
        for i in range(16): A(f"v_exp_f32 {v(S0+i)}, {v(S0+i)}")
        A("s_nop 0")
        for i in range(8): A(f"v_cvt_pk_bf16_f32 {v(P+i)}, {v(S0+2*i)}, {v(S0+2*i+1)}")
        A("s_nop 1")
        A(mf32(O, VF, P))
        A(mf32(O, VF+4, P+4))
        A(mf16(L, ONES, P))
        A(mf16(L, ONES, P+4))
        A("s_nop 15")
        A("s_add_u32 s28, s28, 2048")
        A("s_cmp_lt_u32 s28, 131072")
        A("s_cbranch_scc1 attn_slow2")
        A("s_nop 15")
        A("s_branch attn_fin")
    return slow

HEADER = open("sequential_preLN__mha_block__glu_gated_glu__prompt.s.ref").read().split("; Override launch")[0]

def build(path):
    from mk2 import ph_proj, ph_gu, ph_down2, ph_down3
    A = Asm()
    A.raw(f".globl {NAME}"); A.raw(".p2align 8"); A.raw(f".type {NAME},@function"); A.label(NAME)
    A("s_cmp_ge_u32 s2, 256")
    A("s_cbranch_scc1 the_end")
    ph_ln_qkv(A)
    slow = ph_attn(A)
    ph_proj(A, 3, True)
    ph_gu(A)
    if OPT("SPLITK", 0) == 2: ph_down3(A)
    elif OPT("SPLITK", 0) == 1: ph_down2(A)
    else: ph_proj(A, 5, False)
    stamp_flush(A)
    A.label("the_end")
    A("s_endpgm")
    slow()
    A.label("code_end")
    out = HEADER
    out += "; @launch grid=(256,1,1) block=(512,1,1) lds=163840\n"
    out += '.amdgcn_target "amdgcn-amd-amdhsa--gfx950"\n.text\n'
    out += A.text()
    out += '.section .rodata,"a"\n'
    out += kernel_desc(NAME, 256, 102 if PROF else 64)
    open(path, "w").write(out)

if __name__ == "__main__":
    build(sys.argv[1] if len(sys.argv) > 1 else "sequential_preLN__mha_block__glu_gated_glu__prompt.s")
```

```python
from mk import *

def ph_proj(A, ph, is_wo):
    name = "wo" if is_wo else "dn"
    K = 1024 if is_wo else 3584
    ws_x = WS_O if is_wo else WS_HACT
    wp = 40 if is_wo else 42
    R, SLOT, NST = 6, 24576, K // 64
    STATS_LDS = R * SLOT
    A("s_and_b32 s21, s2, 3")
    A("s_lshl_b32 s21, s21, 2")
    A("s_bfe_u32 s28, s2, 0x20003")
    A("s_add_u32 s21, s21, s28")
    A("s_bfe_u32 s22, s2, 0x10002")
    A("s_lshl_b32 s22, s22, 3")
    A("s_lshr_b32 s28, s2, 5")
    A("s_add_u32 s22, s22, s28")
    PSC = OPT("WSC", 0) if is_wo else OPT("DSC", 4)
    PG = min(4, OPT("PG", 4))
    if PSC:
        A("s_add_u32 s39, s21, s22")
        A(f"s_and_b32 s39, s39, {PG-1}")
        A(f"s_mul_i32 s39, s39, {PSC//PG}")
    def wdma():
        if not is_wo:
            return [[f"s_add_u32 m0, {s(sWr)}, {s(sM)}", "s_nop 0",
                     f"buffer_load_dwordx4 v6, s[12:15], {s(sGo)} offen{LDF} lds"],
                    [f"buffer_load_dwordx4 v6, s[12:15], {s(sGo)} offen offset:1024{LDF} lds",
                     ] + adv(8192, PSC)]
        return [[f"s_add_u32 m0, {s(sWr)}, {s(sM)}", "s_nop 0",
                 f"buffer_load_dwordx4 v7, s[12:15], {s(sGo)} offen lds"],
                [f"buffer_load_dwordx4 v8, s[12:15], {s(sGo)} offen offset:1024 lds",
                 ] + adv(64*2048, PSC)]
    DX = 0x40000
    ACC = 32
    def acc(f, i): return ACC + (i * 2 + f) * 4
    SET = [48, 80]
    def xf(p, kk, i): return SET[p] + (kk * 2 + i) * 4
    def wf(p, kk, f): return SET[p] + 16 + (kk * 2 + f) * 4
    RES = 240
    NRES = 4 if is_wo else 2
    A("s_lshr_b32 s33, s20, 2")
    A("s_lshl_b32 s34, s22, 1")
    A("s_add_u32 s34, s34, s33")
    A("s_lshl_b32 s34, s34, 7")
    A("s_lshl_b32 s35, s21, 3")
    A("s_add_u32 s34, s34, s35")
    A("s_lshl_b32 s35, s31, 1")
    A("s_add_u32 s34, s34, s35")
    A("s_lshl_b32 s34, s34, 10")
    A("s_lshl_b32 s35, s21, 18")
    A("s_lshl_b32 s36, s31, 16")
    A("s_add_u32 s35, s35, s36")
    A("s_lshl_b32 s36, s22, 7")
    A("s_add_u32 s35, s35, s36")
    A("s_lshl_b32 s36, s33, 6")
    A("s_add_u32 s35, s35, s36")
    A("s_add_u32 s36, s35, 32768")
    srd(A, 16, 6, WS_H, 4*MB)
    srd(A, 48, 44, 0, 4*MB)
    if is_wo:
        srd(A, 12, wp, 0, K*2048)
    else:
        A(f"s_mul_i32 s28, s22, {3584*128}")
        A("s_add_u32 s4, s6, s28")
        A("s_addc_u32 s5, s7, 0")
        srd(A, 12, 4, WS_WD, 3584*128)
    srd(A, 8, 6, ws_x, 2048*K*2)
    def resload():
        if is_wo:
            for i in range(2):
                A(f"buffer_load_dwordx4 {v(RES+4*i,4)}, v9, s[48:51], {s(35+i)} offen")
        else:
            for i in range(2):
                A(f"buffer_load_dwordx4 {v(RES+4*i,4)}, v6, s[16:19], s34 offen offset:{i*1024}{LDF}")
    A("v_lshlrev_b32 v9, 11, v5")
    A("v_and_b32 v15, 1, v2")
    A("v_lshl_add_u32 v9, v15, 5, v9")
    A("v_lshrrev_b32 v15, 1, v2")
    A("v_lshl_add_u32 v9, v15, 4, v9")
    A("s_lshl_b32 s28, s31, 11")
    A("v_add_u32 v10, s28, v6")
    A("v_lshl_add_u32 v11, v2, 2, v3")
    A("v_lshlrev_b32 v11, 7, v11")
    A("v_lshl_add_u32 v11, v4, 3, v11")
    A("v_add_u32 v11, 16384, v11")
    A("v_bfe_u32 v12, v1, 3, 2")
    A("s_lshl_b32 s29, s33, 1")
    A("v_xor_b32 v13, s29, v12")
    A("v_lshl_add_u32 v13, v13, 5, v11")
    A("v_xor_b32 v14, 32, v13")
    A("s_lshr_b32 s32, s21, 1")
    A("s_cmp_lt_u32 s20, 4")
    A(f"s_cbranch_scc1 {name}_A0")
    if is_wo:
        w_swz_voff(A, 7, 2048)
        A(f"v_add_u32 v8, {8*2048-1024}, v7")
        A("s_lshl_b32 s28, s31, 15")
        A("s_lshl_b32 s29, s22, 7")
        A(f"s_add_u32 {s(sGo)}, s28, s29")
    else:
        A(f"s_lshl_b32 {s(sGo)}, s31, 11")
    if PSC: rot_init(A, 64*2048 if is_wo else 8192, PSC)
    A(f"s_lshl_b32 {s(sM)}, s31, 11")
    A(f"s_add_u32 {s(sM)}, {s(sM)}, 16384")
    if not OPT("PUBFIRST", 1):
        A("s_waitcnt vmcnt(0)")
        stamp(A, ph - 1, 4)
    publish(A)
    resload()
    fill_ring(A, R, SLOT, wdma)
    A(f"s_branch {name}_C0")
    A.label(f"{name}_A0")
    A("s_lshr_b32 s28, s31, 1")
    A("s_lshl_b32 s28, s28, 7")
    A("s_lshl_b32 s29, s21, 3")
    A("s_add_u32 s28, s28, s29")
    A("s_and_b32 s29, s31, 1")
    A("s_lshl_b32 s29, s29, 2")
    A("s_add_u32 s28, s28, s29")
    A(f"s_lshl_b32 {s(sGo)}, s28, 10")
    if PSC: rot_init(A, DX, PSC)
    A(f"s_lshl_b32 {s(sM)}, s31, 12")
    if not OPT("PUBFIRST", 1):
        A("s_waitcnt vmcnt(0)")
        stamp(A, ph - 1, 4)
    publish(A)
    resload()
    A.label(f"{name}_C0")
    stamp(A, ph, 0)
    wait_flags(A, ph - 1, 32, 32)
    stamp(A, ph, 1)
    def accinit():
        if is_wo:
            for i in range(2):
                A(f"v_permlane16_swap_b32 {v(RES+4*i)}, {v(RES+4*i+2)}")
                A(f"v_permlane16_swap_b32 {v(RES+4*i+1)}, {v(RES+4*i+3)}")
            A("s_nop 1")
        for i in range(2):
            for f in range(2):
                for h in range(2):
                    src = RES + 4*i + 2*f + h
                    A(f"v_lshlrev_b32 {v(acc(f,i)+2*h)}, 16, {v(src)}")
                    A(f"v_and_b32 {v(acc(f,i)+2*h+1)}, 0xffff0000, {v(src)}")
    def reads(p):
        out = []
        for kk in range(2):
            for f in range(2):
                for t in range(2):
                    out.append([f"ds_read_b64_tr_b16 {v(wf(p,kk,f)+2*t,2)}, {v(17+f)} offset:{kk*4096+t*2048}"])
            for i in range(2):
                out.append([f"ds_read_b128 {v(xf(p,kk,i),4)}, v16 offset:{kk*8192+i*1024}"])
        return out
    def addr_upd():
        return [f"v_add_u32 v16, {s(sRd)}, v10", f"v_add_u32 v17, {s(sRd)}, v13", f"v_add_u32 v18, {s(sRd)}, v14"]
    def mfmas(p):
        return [mf16(acc(f, i), wf(p, kk, f), xf(p, kk, i)) for kk in range(2) for f in range(2) for i in ((0, 1) if (f == 0 or not OPT("SNAKE", 1)) else (1, 0))]
    A("s_cmp_ge_u32 s20, 4")
    A(f"s_cbranch_scc1 {name}_B")
    fill_ring(A, R, SLOT, lambda: xdma(DX, PSC), bar=True)
    A(f"s_waitcnt vmcnt({4*R})")
    accinit()
    gemm_loop(A, ph, f"{name}_loopA", "A", R, SLOT, NST, 4, mfmas, reads, lambda: xdma(DX, PSC), addr_upd,
              {6: code_touch_list(A, f"{name}_epi", 251, 252), ('x', 5): 1, ('x', 4): 1, ('x', 3): 1, ('x', 2): 1} if OPT("CTW", 1) else None)
    A(f"s_branch {name}_epi")
    A.label(f"{name}_B")
    A(f"s_waitcnt vmcnt({2*R})")
    accinit()
    fill_ring(A, R, SLOT, None, bar=True)
    gemm_loop(A, ph, f"{name}_loopB", "B", R, SLOT, NST, 2, mfmas, reads, wdma, addr_upd)
    A.label(f"{name}_epi")
    T = 112
    for i in range(2):
        for f in range(2):
            for h in range(2):
                A(f"v_cvt_pk_bf16_f32 {v(T+4*i+2*f+h)}, {v(acc(f,i)+2*h)}, {v(acc(f,i)+2*h+1)}")
    if is_wo:
        for i in range(2):
            A(f"buffer_store_dwordx4 {v(T+4*i,4)}, v6, s[16:19], s34 offen offset:{i*1024}{STF}")
        for i in range(2):
            sm, sq = 20 + 2*i, 21 + 2*i
            b = acc(0, i)
            A(f"v_add_f32 {v(sm)}, {v(b)}, {v(b+1)}")
            A(f"v_mul_f32 {v(sq)}, {v(b)}, {v(b)}")
            A(f"v_fmac_f32 {v(sq)}, {v(b+1)}, {v(b+1)}")
            for j in range(2, 8):
                A(f"v_add_f32 {v(sm)}, {v(sm)}, {v(b+j)}")
                A(f"v_fmac_f32 {v(sq)}, {v(b+j)}, {v(b+j)}")
        reduce_rows16_32(A, [20, 21, 22, 23], [24, 25, 26, 27])
        A("s_lshl_b32 s28, s31, 9")
        A("s_lshl_b32 s29, s33, 3")
        A("s_add_u32 s28, s28, s29")
        A(f"s_add_u32 s28, s28, {STATS_LDS}")
        A("v_lshlrev_b32 v24, 4, v5")
        A("v_add_u32 v24, s28, v24")
        A("ds_write_b64 v24, v[20:21]")
        A("ds_write_b64 v24, v[22:23] offset:256")
        A(f"s_load_dwordx4 s[44:47], s[0:1], {KA_WG}")
        A("s_waitcnt lgkmcnt(0)")
        A("s_barrier")
        A("s_cmp_ge_u32 s20, 2")
        A(f"s_cbranch_scc1 {name}_end2")
        A("v_lshlrev_b32 v24, 4, v0")
        A(f"v_add_u32 v24, {STATS_LDS}, v24")
        A("ds_read_b128 v[20:23], v24")
        srd(A, 8, 6, WS_ST, 2048*128)
        A("v_lshlrev_b32 v24, 3, v0")
        A("s_lshl_b32 s28, s21, 10")
        A("s_lshl_b32 s29, s22, 14")
        A("s_add_u32 s28, s28, s29")
        A("s_waitcnt lgkmcnt(0)")
        A("v_add_f32 v20, v20, v22")
        A("v_add_f32 v21, v21, v23")
        A(f"buffer_store_dwordx2 v[20:21], v24, s[8:11], s28 offen{STF}")
        A.label(f"{name}_end2")
        A("s_and_b32 s38, s21, 1")
        A("s_lshl_b32 s38, s38, 4")
        A("s_add_u32 s38, s38, s22")
        pub_prep(A, ph, 32, 38)
    else:
        A("s_nop 1")
        for i in range(2):
            A(f"v_permlane16_swap_b32 {v(T+4*i)}, {v(T+4*i+2)}")
            A(f"v_permlane16_swap_b32 {v(T+4*i+1)}, {v(T+4*i+3)}")
        A("s_nop 1")
        for i in range(2):
            A(f"buffer_store_dwordx4 {v(T+4*i,4)}, v9, s[48:51], {s(35+i)} offen{OUTF}")
        if PROF:
            A("s_waitcnt vmcnt(0)")
            stamp(A, ph, 4)

def ph_gu(A):
    ph = 4
    R, SLOT, NST = 5, 30720, 32
    SL = R * SLOT
    A("s_and_b32 s21, s2, 1")
    A("s_lshl_b32 s21, s21, 2")
    A("s_bfe_u32 s28, s2, 0x20003")
    A("s_add_u32 s21, s21, s28")
    A("s_bfe_u32 s22, s2, 0x20001")
    A("s_lshl_b32 s22, s22, 3")
    A("s_lshr_b32 s28, s2, 5")
    A("s_add_u32 s22, s22, s28")
    def wdma():
        return [[f"s_add_u32 m0, {s(sWr)}, {s(sM)}", "s_mov_b64 exec, s[34:35]",
                 f"buffer_load_dwordx4 v7, s[12:15], {s(sGo)} offen lds",
                 f"buffer_load_dwordx4 v8, s[12:15], {s(sGo)} offen offset:896 lds",
                 f"s_add_u32 m0, m0, 7168", "s_nop 0",
                 f"buffer_load_dwordx4 v7, s[16:19], {s(sGo)} offen lds",
                 f"buffer_load_dwordx4 v8, s[16:19], {s(sGo)} offen offset:896 lds",
                 "s_mov_b64 exec, -1",
                 f"s_add_u32 {s(sGo)}, {s(sGo)}, {32*7168}"]]
    srd(A, 12, 44, 0, 7*MB)
    srd(A, 16, 46, 0, 7*MB)
    srd(A, 8, 6, WS_H, 4*MB)
    A("s_cmp_lt_u32 s20, 4")
    A("s_cbranch_scc1 gu_A0")
    if OPT("CT", 1) >= 2: code_touch(A, 255)
    A("v_mul_u32_u24 v7, 4682, v1")
    A("v_lshrrev_b32 v7, 16, v7")
    A("v_mul_u32_u24 v8, 14, v7")
    A("v_sub_u32 v8, v1, v8")
    A("v_mul_u32_u24 v7, 7168, v7")
    A("v_lshl_add_u32 v7, v8, 4, v7")
    A(f"v_add_u32 v8, {4*7168-896}, v7")
    A("s_mov_b32 s34, -1")
    A("s_mov_b32 s35, 0x00ffffff")
    A(f"s_mul_i32 s28, s31, {8*7168}")
    A("s_mul_i32 s29, s22, 224")
    A(f"s_add_u32 {s(sGo)}, s28, s29")
    A(f"s_mul_i32 {s(sM)}, s31, 1792")
    A(f"s_add_u32 {s(sM)}, {s(sM)}, 16384")
    GE = OPT("GE", 0)
    fill_ring(A, R, SLOT, wdma, 0, GE)
    if not OPT("PUBFIRST", 1):
        A(f"s_waitcnt vmcnt({4*GE})")
        stamp(A, 3, 4)
    publish(A)
    fill_ring(A, R, SLOT, wdma, GE, R)
    A("s_branch gu_C0")
    A.label("gu_A0")
    A("s_lshl_b32 s28, s21, 4")
    A("s_lshl_b32 s29, s31, 2")
    A("s_add_u32 s28, s28, s29")
    A(f"s_lshl_b32 {s(sGo)}, s28, 10")
    A(f"s_lshl_b32 {s(sM)}, s31, 12")
    for i in range(32, 152): A(f"v_mov_b32 {v(i)}, 0")
    if not OPT("PUBFIRST", 1):
        A("s_waitcnt vmcnt(0)")
        stamp(A, 3, 4)
    publish(A)
    A.label("gu_C0")
    srd(A, 44, 6, WS_ST, 2048*128)
    srd(A, 48, 6, WS_CS, 4*7168*4)
    srd(A, 52, 6, WS_HACT, 2048*3584*2)
    A("s_and_b32 s36, s22, 1")
    A("s_cmp_eq_u32 s36, 1")
    A("s_cselect_b32 s37, 3, 0")
    A("s_cselect_b32 s38, 1, 4")
    A("s_cselect_b32 s39, 0, 6")
    A("s_cmp_ge_u32 s20, 4")
    A("s_cselect_b32 s37, s38, s37")
    A("s_lshl_b32 s28, s31, 12")
    A("v_add_u32 v10, s28, v6")
    A("v_lshl_add_u32 v11, v2, 2, v3")
    A("v_mul_u32_u24 v11, 224, v11")
    A("v_lshl_add_u32 v11, v4, 3, v11")
    A("v_add_u32 v11, 16384, v11")
    A("s_lshl_b32 s28, s39, 5")
    A("v_add_u32 v12, s28, v11")
    A("s_lshl_b32 s28, s37, 5")
    A("v_add_u32 v11, s28, v11")
    A("v_and_b32 v13, 255, v0")
    A("v_lshlrev_b32 v14, 3, v13")
    A("s_lshl_b32 s32, s21, 11")
    A("v_lshlrev_b32 v15, 2, v13")
    A(f"v_add_u32 v9, {(3584-112)*4}, v15")
    A("v_cmp_gt_u32 vcc, 112, v13")
    A("v_mov_b32 v19, 0x7fffffff")
    A("s_mul_i32 s33, s22, 448")
    A("v_cndmask_b32 v15, v9, v15, vcc")
    A("v_cmp_gt_u32 vcc, 224, v13")
    A("s_nop 1")
    A("v_cndmask_b32 v15, v19, v15, vcc")
    A("s_cmp_lt_u32 s20, 4")
    A("s_cbranch_scc1 gu_Z")
    for i in range(32, 120): A(f"v_mov_b32 {v(i)}, 0")
    A.label("gu_Z")
    stamp(A, ph, 0)
    wait_flags(A, 3, 21, 32, also_all=2)
    for i in range(24, 32): A(f"v_mov_b32 {v(i)}, 0")
    stamp(A, ph, 1)
    def body(nf, tag):
        def wsrc(j):
            if nf == 3 and j == 2: return 18, 0
            return 17, j * 32
        ACC = 24
        def acc(j, gu, i): return ACC + ((j * 2 + gu) * 4 + i) * 4
        NS = 16 + nf * 8
        SET = [ACC + nf * 32, ACC + nf * 32 + NS]
        def xf(p, i): return SET[p] + i * 4
        def wf(p, j, gu): return SET[p] + 16 + (j * 2 + gu) * 4
        if tag == "A":
            fill_ring(A, R, SLOT, lambda: xdma(0x20000), bar=True)
        else:
            fill_ring(A, R, SLOT, None, bar=True)
        hook = None
        if tag == "A" and OPT("CTG", 1):
            hook = {5: code_touch_list(A, "gu_epiA", 251, 252), ('x', 4): 1, ('x', 3): 1, ('x', 2): 1}
        if tag == "B":
            h1 = []
            for j in range(16):
                h1 += [f"buffer_load_dwordx2 {v(200+2*j,2)}, v14, s[44:47], s32 offen{LDF}", "s_add_u32 s32, s32, 16384"]
            for j in range(4):
                h1 += [f"buffer_load_dword {v(232+j)}, v15, s[48:51], s33 offen{LDF}", f"s_add_u32 s33, s33, {7168*4}"]
            hook = ["s_waitcnt vmcnt(0)"]
            for j in range(1, 8):
                hook.append(f"v_pk_add_f32 v[200:201], v[200:201], {v(200+2*j,2)}")
                hook.append(f"v_pk_add_f32 v[216:217], v[216:217], {v(216+2*j,2)}")
            hook += ["v_pk_add_f32 v[200:201], v[200:201], v[216:217]",
                "v_add_f32 v232, v232, v233", "v_add_f32 v234, v234, v235", "v_add_f32 v232, v232, v234",
                f"v_mul_f32 v200, {f32(-1/1024)}, v200", f"v_mul_f32 v201, {f32(1/1024)}, v201",
                "v_fma_f32 v201, -v200, v200, v201", "v_max_f32 v201, 0, v201", f"v_add_f32 v201, {f32(1e-5)}, v201",
                "v_rsq_f32 v202, v201", "v_sqrt_f32 v203, v201", "v_mov_b32 v201, v200",
                f"v_mul_f32 v202, {f32(-LOG2E)}, v202",
                "v_lshlrev_b32 v14, 4, v13", f"v_add_u32 v14, {SL}, v14", "ds_write_b128 v14, v[200:203]",
                "v_lshlrev_b32 v15, 2, v13", f"v_add_u32 v15, {SL+4096}, v15", "ds_write_b32 v15, v232"]
            hook = {5: h1, 3: hook, ('x', 4): 20, ('x', 3): 20}
        def reads(p):
            out = []
            for i in range(4):
                out.append([f"ds_read_b128 {v(xf(p,i),4)}, v16 offset:{i*1024}"])
            for j in range(nf):
                ar, imm = wsrc(j)
                for gu in range(2):
                    for t in range(2):
                        out.append([f"ds_read_b64_tr_b16 {v(wf(p,j,gu)+2*t,2)}, {v(ar)} offset:{imm+gu*7168+t*3584}"])
            return out
        def addr_upd():
            o = [f"v_add_u32 v16, {s(sRd)}, v10", f"v_add_u32 v17, {s(sRd)}, v11"]
            if nf == 3: o.append(f"v_add_u32 v18, {s(sRd)}, v12")
            return o
        def mfmas(p):
            return [mf16(acc(j, gu, i), wf(p, j, gu), xf(p, i)) for j in range(nf) for gu in range(2) for i in (range(4) if (gu == 0 or not OPT("SNAKE", 1)) else range(3, -1, -1))]
        gemm_loop(A, ph, f"gu_loop{tag}", tag, R, SLOT, NST, 4, mfmas, reads, (lambda: xdma(0x20000)) if tag == "A" else wdma, addr_upd, hook)
        A.label(f"gu_epi{tag}")
        A(f"s_load_dwordx2 s[44:45], s[0:1], {KA_OUT}")
        A(f"s_load_dwordx2 s[46:47], s[0:1], {KA_DBG}")
        STR = 232
        CSR = 200
        A("s_lshl_b32 s28, s31, 10")
        A(f"s_add_u32 s28, s28, {SL}")
        A("v_lshlrev_b32 v14, 4, v5")
        A("v_add_u32 v14, s28, v14")
        for i in range(4):
            A(f"ds_read_b128 {v(STR+4*i,4)}, v14 offset:{i*256}")
        A("v_lshlrev_b32 v9, 4, v2")
        A("s_lshl_b32 s28, s37, 6")
        A(f"s_add_u32 s28, s28, {SL+4096}")
        A("v_add_u32 v14, s28, v9")
        A("s_lshl_b32 s28, s39, 6")
        A(f"s_add_u32 s28, s28, {SL+4096}")
        A("v_add_u32 v15, s28, v9")
        for j in range(nf):
            for gu in range(2):
                ar, imm = (15, 0) if (nf == 3 and j == 2) else (14, j * 64)
                A(f"ds_read_b128 {v(CSR+(j*2+gu)*4,4)}, {v(ar)} offset:{imm+gu*448}")
        A("s_mul_i32 s28, s22, 7")
        A("s_add_u32 s29, s28, s37")
        A("s_lshr_b32 s29, s29, 1")
        A("s_lshl_b32 s29, s29, 17")
        A("s_lshl_b32 s33, s21, 4")
        A("s_lshl_b32 s36, s31, 2")
        A("s_add_u32 s33, s33, s36")
        A("s_lshl_b32 s33, s33, 10")
        A("s_add_u32 s56, s29, s33")
        A("s_add_u32 s57, s56, 0x20000")
        A("s_add_u32 s29, s28, s39")
        A("s_and_b32 s36, s29, 1")
        A("s_lshl_b32 s36, s36, 3")
        A("s_lshr_b32 s29, s29, 1")
        A("s_lshl_b32 s29, s29, 17")
        A("s_add_u32 s58, s29, s33")
        A("s_add_u32 s58, s58, s36")
        T = SET[0]
        tix = 0
        A("s_waitcnt lgkmcnt(0)")
        for jp in range(2):
            js = [2*jp, 2*jp+1] if 2*jp+1 < nf else [2*jp]
            for i in range(4):
                dst = T + 4 * (tix % 8); tix += 1
                c1 = v(STR+4*i+2, 2)
                nm_ = v(STR+4*i, 2)
                for j in js:
                    for gu in range(2):
                        a_ = acc(j, gu, i)
                        for h in range(2): A(f"v_pk_fma_f32 {v(a_+2*h,2)}, {v(CSR+(j*2+gu)*4+2*h,2)}, {nm_}, {v(a_+2*h,2)}")
                for j in js:
                    g_ = acc(j, 0, i)
                    for h in range(2): A(f"v_pk_mul_f32 {v(g_+2*h,2)}, {v(g_+2*h,2)}, {c1} op_sel_hi:[1,0]")
                for j in js:
                    g_ = acc(j, 0, i)
                    for r in range(4): A(f"v_exp_f32 {v(g_+r)}, {v(g_+r)}")
                if len(js) == 1: A("s_nop 0")
                for j in js:
                    g_ = acc(j, 0, i)
                    for h in range(2): A(f"v_pk_fma_f32 {v(g_+2*h,2)}, {v(g_+2*h,2)}, {c1}, {c1} op_sel:[0,1,1] op_sel_hi:[1,1,1]")
                for j in js:
                    g_ = acc(j, 0, i)
                    for r in range(4): A(f"v_rcp_f32 {v(g_+r)}, {v(g_+r)}")
                if len(js) == 1: A("s_nop 0")
                for j in js:
                    g_, u_ = acc(j, 0, i), acc(j, 1, i)
                    for h in range(2): A(f"v_pk_mul_f32 {v(u_+2*h,2)}, {v(u_+2*h,2)}, {v(g_+2*h,2)}")
                for jj, j in enumerate(js):
                    u_ = acc(j, 1, i)
                    for h in range(2):
                        A(f"v_cvt_pk_bf16_f32 {v(dst+2*jj+h)}, {v(u_+2*h)}, {v(u_+2*h+1)}")
                if len(js) == 2:
                    A(f"buffer_store_dwordx4 {v(dst,4)}, v6, s[52:55], {s(56+jp)} offen offset:{i*1024}{STF}")
                else:
                    A(f"buffer_store_dwordx2 {v(dst,2)}, v6, s[52:55], s58 offen offset:{i*1024}{STF}")
    A("s_cmp_ge_u32 s20, 4")
    A("s_cbranch_scc1 gu_B")
    body(4, "A")
    A("s_branch gu_end")
    A.label("gu_B")
    body(3, "B")
    A.label("gu_end")
    pub_prep(A, ph, 21, 22)


def ph_down2(A):
    ph = 5
    R, SLOT, NST = OPT("DR", 5), 32768, 28
    PSC = OPT("D2SC", 0)
    A("s_and_b32 s21, s2, 3")
    A("s_lshl_b32 s21, s21, 2")
    A("s_bfe_u32 s28, s2, 0x20003")
    A("s_add_u32 s21, s21, s28")
    A("s_lshr_b32 s22, s2, 5")
    A("s_bfe_u32 s26, s2, 0x10002")
    A("s_and_b32 s32, s20, 1")
    A("s_lshr_b32 s33, s20, 1")
    if PSC:
        A("s_add_u32 s39, s21, s22")
        A("s_and_b32 s39, s39, 3")
        A(f"s_mul_i32 s39, s39, {PSC//4}")
    srd(A, 12, 6, WS_WD, 7*MB)
    srd(A, 8, 6, WS_HACT, 2048*3584*2)
    wd = lambda: xdma(8192, PSC, 's[12:15]')
    xd = lambda: xdma(0x40000, PSC)
    A("s_cmp_lt_u32 s20, 4")
    A("s_cbranch_scc1 d2_A0")
    A("s_lshl_b32 s28, s22, 1")
    A("s_lshr_b32 s29, s31, 1")
    A("s_add_u32 s28, s28, s29")
    A(f"s_mul_i32 s28, s28, {3584*128}")
    A(f"s_mul_i32 s29, s26, {1792*128}")
    A("s_add_u32 s28, s28, s29")
    A("s_and_b32 s29, s31, 1")
    A("s_lshl_b32 s29, s29, 12")
    A(f"s_add_u32 {s(sGo)}, s28, s29")
    if PSC: rot_init(A, 8192, PSC)
    A(f"s_lshl_b32 {s(sM)}, s31, 12")
    A(f"s_add_u32 {s(sM)}, {s(sM)}, 16384")
    srd(A, 52, 46, 0, 256)
    A("v_mov_b32 v20, 0")
    A("buffer_load_dwordx2 v[248:249], v20, s[52:55], 0 offen sc1")
    fill_ring(A, R, SLOT, wd)
    A("s_branch d2_C0")
    A.label("d2_A0")
    A("s_mul_i32 s28, s26, 56")
    A("s_lshr_b32 s29, s31, 1")
    A("s_add_u32 s28, s28, s29")
    A("s_lshl_b32 s28, s28, 7")
    A("s_lshl_b32 s29, s21, 3")
    A("s_add_u32 s28, s28, s29")
    A("s_and_b32 s29, s31, 1")
    A("s_lshl_b32 s29, s29, 2")
    A("s_add_u32 s28, s28, s29")
    A(f"s_lshl_b32 {s(sGo)}, s28, 10")
    if PSC: rot_init(A, 0x40000, PSC)
    A(f"s_lshl_b32 {s(sM)}, s31, 12")
    A.label("d2_C0")
    ACC = 32
    def acc(f, i): return ACC + (i * 2 + f) * 4
    SET = [64, 112]
    def xf(p, kk, i): return SET[p] + (kk * 4 + i) * 4
    def wf(p, kk, f): return SET[p] + 32 + (kk * 2 + f) * 4
    RES = 240
    A("s_lshl_b32 s34, s22, 2")
    A("s_add_u32 s34, s34, s33")
    A("s_lshl_b32 s34, s34, 7")
    A("s_lshl_b32 s35, s21, 3")
    A("s_lshl_b32 s36, s32, 2")
    A("s_add_u32 s35, s35, s36")
    A("s_lshl_b32 s36, s26, 1")
    A("s_add_u32 s35, s35, s36")
    A("s_add_u32 s34, s34, s35")
    A("s_lshl_b32 s34, s34, 10")
    A("s_lshl_b32 s35, s35, 15")
    A("s_lshl_b32 s36, s22, 8")
    A("s_add_u32 s35, s35, s36")
    A("s_lshl_b32 s36, s33, 6")
    A("s_add_u32 s35, s35, s36")
    A("s_add_u32 s36, s35, 32768")
    srd(A, 16, 6, WS_H, 4*MB)
    srd(A, 48, 44, 0, 4*MB)
    A("v_lshlrev_b32 v9, 11, v5")
    A("v_and_b32 v15, 1, v2")
    A("v_lshl_add_u32 v9, v15, 5, v9")
    A("v_lshrrev_b32 v15, 1, v2")
    A("v_lshl_add_u32 v9, v15, 4, v9")
    A("s_lshl_b32 s28, s32, 12")
    A("s_lshl_b32 s29, s26, 11")
    A("s_add_u32 s3, s28, s29")
    A("v_add_u32 v10, s3, v6")
    A("s_xor_b32 s3, s3, 2048")
    A("v_add_u32 v15, s3, v6")
    A("v_lshl_add_u32 v11, v2, 2, v3")
    A("v_lshlrev_b32 v11, 7, v11")
    A("v_lshl_add_u32 v11, v4, 3, v11")
    A("s_lshr_b32 s28, s33, 1")
    A("s_lshl_b32 s28, s28, 13")
    A("s_add_u32 s28, s28, 16384")
    A("v_add_u32 v11, s28, v11")
    A("v_bfe_u32 v12, v1, 3, 2")
    A("s_and_b32 s29, s33, 1")
    A("s_lshl_b32 s29, s29, 1")
    A("v_xor_b32 v13, s29, v12")
    A("v_lshl_add_u32 v13, v13, 5, v11")
    A("v_xor_b32 v14, 32, v13")
    for i in range(16): A(f"v_mov_b32 {v(acc(0,2)+i)}, 0")
    A("s_lshr_b32 s40, s21, 1")
    A("s_lshl_b32 s41, s26, 7")
    stamp(A, ph, 0)
    wait_flags(A, 4, 40, 16, soff=41)
    stamp(A, ph, 1)
    for i in range(2):
        A(f"buffer_load_dwordx4 {v(RES+4*i,4)}, v6, s[16:19], s34 offen offset:{i*1024}{LDF}")
    def accinit():
        for i in range(2):
            for f in range(2):
                for h in range(2):
                    src = RES + 4*i + 2*f + h
                    A(f"v_lshlrev_b32 {v(acc(f,i)+2*h)}, 16, {v(src)}")
                    A(f"v_and_b32 {v(acc(f,i)+2*h+1)}, 0xffff0000, {v(src)}")
        A("s_movk_i32 s42, 0xfff")
        A("v_mov_b32 v244, v248")
        A("v_lshrrev_b32 v245, 12, v248")
        A("v_alignbit_b32 v246, v249, v248, 24")
        A("v_lshrrev_b32 v247, 4, v249")
    def reads(p):
        out = []
        for kk in range(2):
            for f in range(2):
                for t in range(2):
                    out.append([f"ds_read_b64_tr_b16 {v(wf(p,kk,f)+2*t,2)}, {v(17+f)} offset:{kk*4096+t*2048}"])
            for i in range(4):
                out.append([f"ds_read_b128 {v(xf(p,kk,i),4)}, {v(16 if i < 2 else 19)} offset:{kk*8192+(i&1)*1024}"])
        return out
    def addr_upd():
        return [f"v_add_u32 v16, {s(sRd)}, v10", f"v_add_u32 v17, {s(sRd)}, v13", f"v_add_u32 v18, {s(sRd)}, v14", f"v_add_u32 v19, {s(sRd)}, v15"]
    def mfmas(p):
        return [mf16(acc(f, i), wf(p, kk, f), xf(p, kk, i)) for ii in (2, 0) for kk in range(2) for f in range(2) for i in (ii, ii + 1)]
    A("s_cmp_ge_u32 s20, 4")
    A("s_cbranch_scc1 d2_B")
    fill_ring(A, R, SLOT, xd, bar=True)
    A(f"s_waitcnt vmcnt({4*R})")
    accinit()
    gemm_loop(A, ph, "d2_loopA", "A", R, SLOT, NST, 4, mfmas, reads, xd, addr_upd,
              {5: code_touch_list(A, "d2_epi", 251, 252), ('x', 4): 1, ('x', 3): 1, ('x', 2): 1} if OPT("CTD", 0) else None)
    A("s_branch d2_epi")
    A.label("d2_B")
    fill_ring(A, R, SLOT, None, bar=True)
    A("s_waitcnt vmcnt(0)")
    accinit()
    gemm_loop(A, ph, "d2_loopB", "B", R, SLOT, NST, 4, mfmas, reads, wd, addr_upd)
    A.label("d2_epi")
    srd(A, 8, 6, WS_Q if OPT('XBQ', 0) else WS_XB, 9*MB)
    A("s_lshl_b32 s28, s2, 3")
    A("s_add_u32 s28, s28, s20")
    A("s_xor_b32 s29, s28, 32")
    A("s_lshl_b32 s40, s28, 12")
    A("s_lshl_b32 s41, s29, 12")
    XTAG = OPT("XTAG", 0)
    if XTAG:
        for j in range(4):
            for r in range(4):
                A(f"v_bfi_b32 {v(acc(0,2)+4*j+r)}, s42, {v(244+r)}, {v(acc(0,2)+4*j+r)}")
            A(f"buffer_store_dwordx4 {v(acc(0,2)+4*j,4)}, v6, s[8:11], s40 offen offset:{j*1024} sc1")
        A(f"s_mov_b32 s28, {SPIN_MAX}")
        if OPT("XW", 1): A("s_waitcnt vmcnt(0)")
        if OPT("XDBG", 0): stamp(A, ph, 0)
        A.label("d2_poll")
        for j in range(4):
            A(f"buffer_load_dwordx4 {v(64+4*j,4)}, v6, s[8:11], s41 offen offset:{j*1024} sc1")
        for j in range(4):
            A(f"s_waitcnt vmcnt({3-j})")
            for r in range(4):
                A(f"v_xor_b32 {v(80+4*j+r)}, {v(244+r)}, {v(64+4*j+r)}")
            A(f"v_or3_b32 {v(80+4*j)}, {v(80+4*j)}, {v(81+4*j)}, {v(82+4*j)}")
            if j: A(f"v_or3_b32 {v(80+4*j)}, {v(80+4*j)}, {v(83+4*j)}, {v(76+4*j)}")
            else: A(f"v_or_b32 {v(80)}, {v(80)}, {v(83)}")
        A("v_and_b32 v92, s42, v92")
        A("v_cmp_ne_u32 vcc, 0, v92")
        A("s_nop 1")
        A("s_cmp_eq_u64 vcc, 0")
        A("s_cbranch_scc1 d2_got")
        A("s_sleep 1")
        A("s_sub_u32 s28, s28, 1")
        A("s_cmp_lg_u32 s28, 0")
        A("s_cbranch_scc1 d2_poll")
        A.label("d2_got")
        if OPT("XDBG", 0): stamp(A, ph, 1)
    else:
        for j in range(4):
            A(f"buffer_store_dwordx4 {v(acc(0,2)+4*j,4)}, v6, s[8:11], s40 offen offset:{j*1024} sc1")
        A(f"s_lshl_b32 s42, s28, {OPT('XFS', 6)}")
        A(f"s_add_u32 s42, s42, {8*MB}")
        A(f"s_lshl_b32 s43, s29, {OPT('XFS', 6)}")
        A(f"s_add_u32 s43, s43, {8*MB}")
        A("v_mov_b32 v20, 0")
        A(f"s_mov_b32 s28, {SPIN_MAX}")
        A("s_waitcnt vmcnt(0)")
        if OPT("XDBG", 0): stamp(A, ph, 0)
        A("s_mov_b64 exec, 1")
        A("buffer_store_dwordx2 v[248:249], v20, s[8:11], s42 offen sc1")
        A.label("d2_poll")
        A("buffer_load_dwordx2 v[22:23], v20, s[8:11], s43 offen sc1")
        A("s_waitcnt vmcnt(0)")
        A("v_cmp_ne_u64 vcc, v[248:249], v[22:23]")
        A("s_nop 1")
        A("s_cmp_eq_u64 vcc, 0")
        A("s_cbranch_scc1 d2_got")
        if OPT("XSLEEP", 0): A(f"s_sleep {OPT('XSLEEP', 0)}")
        A("s_sub_u32 s28, s28, 1")
        A("s_cmp_lg_u32 s28, 0")
        A("s_cbranch_scc1 d2_poll")
        A.label("d2_got")
        A("s_mov_b64 exec, -1")
        if OPT("XDBG", 0): stamp(A, ph, 1)
        for j in range(4):
            A(f"buffer_load_dwordx4 {v(64+4*j,4)}, v6, s[8:11], s41 offen offset:{j*1024} sc1")
    T = 112
    for i in range(2):
        if not XTAG: A(f"s_waitcnt vmcnt({2 - 2*i + i})")
        for q in range(4):
            A(f"v_pk_add_f32 {v(ACC+8*i+2*q,2)}, {v(ACC+8*i+2*q,2)}, {v(64+8*i+2*q,2)}")
        for f in range(2):
            for h in range(2):
                A(f"v_cvt_pk_bf16_f32 {v(T+4*i+2*f+h)}, {v(acc(f,i)+2*h)}, {v(acc(f,i)+2*h+1)}")
        A("s_nop 1")
        A(f"v_permlane16_swap_b32 {v(T+4*i)}, {v(T+4*i+2)}")
        A(f"v_permlane16_swap_b32 {v(T+4*i+1)}, {v(T+4*i+3)}")
        A("s_nop 1")
        A(f"buffer_store_dwordx4 {v(T+4*i,4)}, v9, s[48:51], {s(35+i)} offen{OUTF}")
    if PROF:
        A("s_waitcnt vmcnt(0)")
        stamp(A, ph, 4)


def ph_down3(A):
    ph = 5
    R, SLOT = OPT("DR", 5), 32768
    N0 = OPT("N0", 26)
    T = R + (R % 2)
    A("s_and_b32 s21, s2, 3")
    A("s_lshl_b32 s21, s21, 2")
    A("s_bfe_u32 s28, s2, 0x20003")
    A("s_add_u32 s21, s21, s28")
    A("s_lshr_b32 s22, s2, 5")
    A("s_bfe_u32 s26, s2, 0x10002")
    A("s_and_b32 s32, s20, 1")
    A("s_lshr_b32 s33, s20, 1")
    srd(A, 12, 6, WS_WD, 7*MB)
    srd(A, 8, 6, WS_HACT, 2048*3584*2)
    wd = lambda: xdma(8192, 0, 's[12:15]')
    xd = lambda: xdma(0x40000, 0)
    A("s_cmp_lt_u32 s20, 4")
    A("s_cbranch_scc1 d3_A0")
    A("s_lshl_b32 s28, s22, 1")
    A("s_lshr_b32 s29, s31, 1")
    A("s_add_u32 s28, s28, s29")
    A(f"s_mul_i32 s28, s28, {3584*128}")
    A(f"s_mul_i32 s29, s26, {N0*64*128}")
    A("s_add_u32 s28, s28, s29")
    A("s_and_b32 s29, s31, 1")
    A("s_lshl_b32 s29, s29, 12")
    A(f"s_add_u32 {s(sGo)}, s28, s29")
    A(f"s_lshl_b32 {s(sM)}, s31, 12")
    A(f"s_add_u32 {s(sM)}, {s(sM)}, 16384")
    srd(A, 52, 46, 0, 256)
    A("v_mov_b32 v20, 0")
    A("buffer_load_dwordx2 v[248:249], v20, s[52:55], 0 offen sc1")
    fill_ring(A, R, SLOT, wd)
    A("s_branch d3_C0")
    A.label("d3_A0")
    A(f"s_mul_i32 s28, s26, {2*N0}")
    A("s_lshr_b32 s29, s31, 1")
    A("s_add_u32 s28, s28, s29")
    A("s_lshl_b32 s28, s28, 7")
    A("s_lshl_b32 s29, s21, 3")
    A("s_add_u32 s28, s28, s29")
    A("s_and_b32 s29, s31, 1")
    A("s_lshl_b32 s29, s29, 2")
    A("s_add_u32 s28, s28, s29")
    A(f"s_lshl_b32 {s(sGo)}, s28, 10")
    A(f"s_lshl_b32 {s(sM)}, s31, 12")
    A.label("d3_C0")
    ACC = 32
    def acc(f, i): return ACC + (i * 2 + f) * 4
    SET = [64, 112]
    def xf(p, kk, i): return SET[p] + (kk * 4 + i) * 4
    def wf(p, kk, f): return SET[p] + 32 + (kk * 2 + f) * 4
    RES = 224
    A("s_lshl_b32 s34, s22, 2")
    A("s_add_u32 s34, s34, s33")
    A("s_lshl_b32 s34, s34, 7")
    A("s_lshl_b32 s35, s21, 3")
    A("s_lshl_b32 s36, s32, 2")
    A("s_add_u32 s35, s35, s36")
    A("s_add_u32 s34, s34, s35")
    A("s_lshl_b32 s34, s34, 10")
    A("s_lshl_b32 s35, s35, 15")
    A("s_lshl_b32 s36, s22, 8")
    A("s_add_u32 s35, s35, s36")
    A("s_lshl_b32 s36, s33, 6")
    A("s_add_u32 s35, s35, s36")
    A("s_add_u32 s36, s35, 32768")
    A("s_add_u32 s37, s36, 32768")
    A("s_add_u32 s38, s37, 32768")
    srd(A, 16, 6, WS_H, 4*MB)
    A("s_cmp_eq_u32 s26, 0")
    A(f"s_cselect_b32 s18, 0, {4*MB}")
    A(f"s_cselect_b32 s39, {(N0-T)//2}, {(56-N0-T)//2}")
    srd(A, 48, 44, 0, 4*MB)
    A("v_lshlrev_b32 v9, 11, v5")
    A("v_and_b32 v15, 1, v2")
    A("v_lshl_add_u32 v9, v15, 5, v9")
    A("v_lshrrev_b32 v15, 1, v2")
    A("v_lshl_add_u32 v9, v15, 4, v9")
    A("s_lshl_b32 s28, s32, 12")
    A("v_add_u32 v10, s28, v6")
    A("v_lshl_add_u32 v11, v2, 2, v3")
    A("v_lshlrev_b32 v11, 7, v11")
    A("v_lshl_add_u32 v11, v4, 3, v11")
    A("s_lshr_b32 s28, s33, 1")
    A("s_lshl_b32 s28, s28, 13")
    A("s_add_u32 s28, s28, 16384")
    A("v_add_u32 v11, s28, v11")
    A("v_bfe_u32 v12, v1, 3, 2")
    A("s_and_b32 s29, s33, 1")
    A("s_lshl_b32 s29, s29, 1")
    A("v_xor_b32 v13, s29, v12")
    A("v_lshl_add_u32 v13, v13, 5, v11")
    A("v_xor_b32 v14, 32, v13")
    A("s_lshr_b32 s28, s2, 3")
    A("s_lshl_b32 s28, s28, 2")
    A("s_and_b32 s29, s2, 3")
    A("s_add_u32 s28, s28, s29")
    A("s_lshl_b32 s28, s28, 3")
    A("s_add_u32 s28, s28, s20")
    A("s_lshl_b32 s41, s28, 13")
    A("s_add_u32 s42, s41, 4096")
    A("s_lshl_b32 s43, s28, 7")
    A(f"s_add_u32 s43, s43, {8*MB}")
    A("s_lshr_b32 s40, s21, 1")
    stamp(A, ph, 0)
    wait_flags(A, 4, 40, 32)
    stamp(A, ph, 1)
    for i in range(4):
        A(f"buffer_load_dwordx4 {v(RES+4*i,4)}, v6, s[16:19], s34 offen offset:{i*1024}{LDF}")
    def accinit():
        for i in range(4):
            for f in range(2):
                for h in range(2):
                    src = RES + 4*i + 2*f + h
                    A(f"v_lshlrev_b32 {v(acc(f,i)+2*h)}, 16, {v(src)}")
                    A(f"v_and_b32 {v(acc(f,i)+2*h+1)}, 0xffff0000, {v(src)}")
    def reads(p):
        out = []
        for kk in range(2):
            for f in range(2):
                for t in range(2):
                    out.append([f"ds_read_b64_tr_b16 {v(wf(p,kk,f)+2*t,2)}, {v(17+f)} offset:{kk*4096+t*2048}"])
            for i in range(4):
                out.append([f"ds_read_b128 {v(xf(p,kk,i),4)}, v16 offset:{kk*8192+i*1024}"])
        return out
    def addr_upd():
        return [f"v_add_u32 v16, {s(sRd)}, v10", f"v_add_u32 v17, {s(sRd)}, v13", f"v_add_u32 v18, {s(sRd)}, v14"]
    def mfmas(p):
        return [mf16(acc(f, i), wf(p, kk, f), xf(p, kk, i)) for kk in range(2) for f in range(2) for i in range(4)]
    A("s_cmp_ge_u32 s20, 4")
    A("s_cbranch_scc1 d3_B")
    fill_ring(A, R, SLOT, xd, bar=True)
    A(f"s_waitcnt vmcnt({4*R})")
    accinit()
    gemm_loop(A, ph, "d3_loopA", "A", R, SLOT, 28, 4, mfmas, reads, xd, addr_upd, cnt_sgpr=39)
    A("s_branch d3_epi")
    A.label("d3_B")
    fill_ring(A, R, SLOT, None, bar=True)
    A("s_waitcnt vmcnt(0)")
    accinit()
    gemm_loop(A, ph, "d3_loopB", "B", R, SLOT, 28, 4, mfmas, reads, wd, addr_upd, cnt_sgpr=39)
    A.label("d3_epi")
    srd(A, 8, 6, WS_Q, 9*MB)
    A("v_mov_b32 v20, 0")
    A("s_cmp_lg_u32 s26, 0")
    A("s_cbranch_scc1 d3_recv")
    for j in range(8):
        A(f"buffer_store_dwordx4 {v(ACC+4*j,4)}, v6, s[8:11], {s(41 + j//4)} offen offset:{(j%4)*1024} sc1")
    A("s_waitcnt vmcnt(0)")
    A("s_mov_b64 exec, 1")
    A("buffer_store_dwordx2 v[248:249], v20, s[8:11], s43 offen sc1")
    A("s_mov_b64 exec, -1")
    A("s_branch d3_end")
    A.label("d3_recv")
    A(f"s_mov_b32 s28, {SPIN_MAX}")
    A("s_mov_b64 exec, 1")
    A.label("d3_poll")
    A("buffer_load_dwordx2 v[22:23], v20, s[8:11], s43 offen sc1")
    A("s_waitcnt vmcnt(0)")
    A("v_cmp_ne_u64 vcc, v[248:249], v[22:23]")
    A("s_nop 1")
    A("s_cmp_eq_u64 vcc, 0")
    A("s_cbranch_scc1 d3_got")
    A("s_sleep 1")
    A("s_sub_u32 s28, s28, 1")
    A("s_cmp_lg_u32 s28, 0")
    A("s_cbranch_scc1 d3_poll")
    A.label("d3_got")
    A("s_mov_b64 exec, -1")
    for j in range(8):
        A(f"buffer_load_dwordx4 {v(64+4*j,4)}, v6, s[8:11], {s(41 + j//4)} offen offset:{(j%4)*1024} sc1")
    TT = 112
    for i in range(4):
        A(f"s_waitcnt vmcnt({6 - 2*i + i})")
        for q in range(4):
            A(f"v_pk_add_f32 {v(ACC+8*i+2*q,2)}, {v(ACC+8*i+2*q,2)}, {v(64+8*i+2*q,2)}")
        for f in range(2):
            for h in range(2):
                A(f"v_cvt_pk_bf16_f32 {v(TT+4*i+2*f+h)}, {v(acc(f,i)+2*h)}, {v(acc(f,i)+2*h+1)}")
        A("s_nop 1")
        A(f"v_permlane16_swap_b32 {v(TT+4*i)}, {v(TT+4*i+2)}")
        A(f"v_permlane16_swap_b32 {v(TT+4*i+1)}, {v(TT+4*i+3)}")
        A("s_nop 1")
        A(f"buffer_store_dwordx4 {v(TT+4*i,4)}, v9, s[48:51], {s(35+i)} offen{OUTF}")
    A.label("d3_end")
    if PROF:
        A("s_waitcnt vmcnt(0)")
        stamp(A, ph, 4)
```

```python
import sys, math, os, struct
from asmlib import *

MB = 1 << 20
WS_XN, WS_Q, WS_K, WS_VT, WS_O, WS_H, WS_ST, WS_CS, WS_FL, WS_HACT = 0, 4*MB, 8*MB, 12*MB, 16*MB, 20*MB, 24*MB, 25*MB, 26*MB, 32*MB
if int(os.environ.get('HACT0', '1')): WS_HACT = 0
WS_DBG = 48*MB
WS_XB = 72*MB
WS_WD = 64*MB
KA_X, KA_WQKV, KA_WO, KA_BX, KA_WG, KA_WU, KA_WD, KA_OUT, KA_DBG, KA_WS = 0, 8, 16, 24, 32, 40, 48, 56, 64, 72
LOG2E = math.log2(math.e)
QSCALE = LOG2E / math.sqrt(32.0)
def f32(x): return hex(struct.unpack("<I", struct.pack("<f", x))[0])
def OPT(name, default): return int(os.environ.get(name, str(default)))
def SOPT(name, default): return os.environ.get(name, default)
PROF = OPT("PROF", 0)
STF = " sc1"
LDF = SOPT("LDF", " sc1")
OUTF = SOPT("OUTF", "")
NAME = "sequential_preLN__mha_block__glu_gated_glu__prompt_kernel"

sNON = 62
def stamp(A, ph, i):
    if not PROF: return
    A("s_memrealtime s[64:65]")
    A("s_waitcnt lgkmcnt(0)")
    A(f"s_mov_b32 {s(66+ph*6+i)}, s64")
def cyc(A, ph, end):
    if not PROF: return
    A("s_memtime s[64:65]")
    A("s_waitcnt lgkmcnt(0)")
    if not end: A(f"s_mov_b32 {s(66+ph*6+5)}, s64")
    else: A(f"s_sub_u32 {s(66+ph*6+5)}, s64, {s(66+ph*6+5)}")
def stamp_flush(A):
    if not PROF: return
    A("s_mov_b64 exec, 1")
    srd(A, 8, 6, WS_DBG, 16*MB)
    A("s_lshl_b32 s3, s2, 3")
    A("s_add_u32 s3, s3, s20")
    A("s_lshl_b32 s3, s3, 8")
    A("v_mov_b32 v0, 0")
    for i in range(36):
        A(f"v_mov_b32 {v(1+i)}, {s(66+i)}")
    for i in range(36):
        A(f"buffer_store_dword {v(1+i)}, v0, s[8:11], s3 offen offset:{4*i}")

def mf16(d, A_, B_, c=None):
    c = v(d, 4) if c is None else c
    return f"v_mfma_f32_16x16x32_bf16 {v(d,4)}, {v(A_,4)}, {v(B_,4)}, {c}"
def mf32(d, A_, B_, c=None):
    c = v(d, 16) if c is None else c
    return f"v_mfma_f32_32x32x16_bf16 {v(d,16)}, {v(A_,4)}, {v(B_,4)}, {c}"
def reduce_rows16_32(A, xs, ts):
    for op in ("v_permlane16_swap_b32", "v_permlane32_swap_b32"):
        for x, t in zip(xs, ts): A(f"v_mov_b32 {v(t)}, {v(x)}")
        A("s_nop 1")
        for x, t in zip(xs, ts): A(f"{op} {v(t)}, {v(x)}")
        A("s_nop 1")
        for x, t in zip(xs, ts): A(f"v_add_f32 {v(x)}, {v(x)}, {v(t)}")
def lane_decomp(A):
    A("v_and_b32 v1, 63, v0")
    A("v_lshrrev_b32 v2, 4, v1")
    A("v_bfe_u32 v3, v1, 2, 2")
    A("v_and_b32 v4, 3, v1")
    A("v_and_b32 v5, 15, v1")
    A("v_lshlrev_b32 v6, 4, v1")
def emit(A, L):
    for i in L:
        if isinstance(i, list): emit(A, i)
        else: A(i)

SPIN_MAX = 1 << 18
def pub_prep(A, ph, sg, sj):
    A(f"s_lshl_b32 s3, {s(sg)}, 8")
    A(f"s_lshl_b32 s28, {s(sj)}, 3")
    A("s_add_u32 s3, s3, s28")
    A(f"s_add_u32 s3, s3, {ph*4096}")
    A("v_mov_b32 v250, s3")
    if OPT("PUBFIRST", 1) and ph > 0:
        A("s_waitcnt vmcnt(0)")
        stamp(A, ph, 4)
        publish(A, force=True)
def publish(A, force=False):
    if OPT("PUBFIRST", 1) and not force: return
    srd(A, 56, 6, WS_FL, 6 * 4096)
    A("s_barrier")
    skip = A.newlabel("pub_skip")
    A("s_cmp_lg_u32 s20, 0")
    A(f"s_cbranch_scc1 {skip}")
    A("s_mov_b64 exec, 1")
    A("buffer_store_dwordx2 v[248:249], v250, s[56:59], 0 offen sc1")
    A("s_mov_b64 exec, -1")
    A.label(skip)

def wait_flags(A, ph, sg, n, also_all=None, soff=None):
    skip = A.newlabel("wf_skip"); loop = A.newlabel("wf_loop"); done = A.newlabel("wf_done")
    A("s_cmp_lg_u32 s20, 0")
    A(f"s_cbranch_scc1 {skip}")
    srd(A, 56, 6, WS_FL, 6 * 4096)
    A(f"s_lshl_b32 s3, {s(sg)}, 8")
    A(f"s_add_u32 s3, s3, {ph*4096}")
    if soff is not None: A(f"s_add_u32 s3, s3, {s(soff)}")
    A(f"v_and_b32 v22, {n-1}, v0")
    A("v_lshlrev_b32 v22, 3, v22")
    A("v_lshlrev_b32 v23, 3, v0")
    if also_all is not None: A(f"s_mov_b32 s29, {also_all*4096}")
    A(f"s_mov_b32 s28, {SPIN_MAX}")
    A.label(loop)
    A("buffer_load_dwordx2 v[20:21], v22, s[56:59], s3 offen sc1")
    if also_all is not None:
        for j in range(4):
            A(f"buffer_load_dwordx2 {v(24+2*j,2)}, v23, s[56:59], s29 offen offset:{j*512} sc1")
    A("s_waitcnt vmcnt(0)")
    A(f"v_cmp_ne_u64 vcc, {s(sNON,2)}, v[20:21]")
    if also_all is not None:
        for j in range(4):
            A(f"v_cmp_ne_u64 s[60:61], {s(sNON,2)}, {v(24+2*j,2)}")
            A("s_nop 1")
            A("s_or_b64 vcc, vcc, s[60:61]")
    A("s_nop 1")
    A("s_cmp_eq_u64 vcc, 0")
    A(f"s_cbranch_scc1 {skip}")
    A(f"s_sleep {OPT('SLEEP', 1)}")
    A("s_sub_u32 s28, s28, 1")
    A("s_cmp_lg_u32 s28, 0")
    A(f"s_cbranch_scc1 {loop}")
    A.label(skip)
    A("s_barrier")

sRd, sWr, sGo, sCnt, sM = 23, 24, 25, 27, 30
def ring_advance(slot, R):
    return [f"s_mov_b32 {s(sWr)}, {s(sRd)}",
            f"s_add_u32 {s(sRd)}, {s(sRd)}, {slot}",
            f"s_cmp_eq_u32 {s(sRd)}, {slot*R}",
            f"s_cselect_b32 {s(sRd)}, 0, {s(sRd)}"]

def adv(d, SC=0):
    if not SC: return [f"s_add_u32 {s(sGo)}, {s(sGo)}, {hex(d)}"]
    return ["s_add_u32 s38, s38, 1",
            "s_add_u32 s3, s38, s39",
            f"s_and_b32 s3, s3, {SC-1}",
            f"s_andn2_b32 {s(sGo)}, s38, {SC-1}",
            f"s_or_b32 s3, s3, {s(sGo)}",
            f"s_mul_i32 s3, s3, {hex(d)}",
            f"s_add_u32 {s(sGo)}, s3, s37"]
def rot_init(A, d, SC):
    A(f"s_mov_b32 s37, {s(sGo)}")
    A("s_mov_b32 s38, -1")
    emit(A, adv(d, SC))

def xdma(dX, SC=0, srd_='s[8:11]'):
    g = [[f"s_add_u32 m0, {s(sWr)}, {s(sM)}", "s_nop 0",
          f"buffer_load_dwordx4 v6, {srd_}, {s(sGo)} offen{LDF} lds"]]
    for j in range(1, 4):
        g.append([f"buffer_load_dwordx4 v6, {srd_}, {s(sGo)} offen offset:{j*1024}{LDF} lds"])
    g[-1] += adv(dX, SC)
    return g

def fill_ring(A, R, SLOT, dma, lo=0, hi=None, bar=False):
    for st in range(lo, R if hi is None else hi):
        if dma is not None:
            A(f"s_mov_b32 {s(sWr)}, {st*SLOT}")
            emit(A, dma())
        if bar and st < R - 1: A("s_barrier")

def gemm_loop(A, ph, label, role, R, SLOT, NST, ndma, mfmas, reads, dma_groups, addr_upd, tail_hook=None, cnt_sgpr=None):
    T = R + (R % 2) if OPT("TAIL", 1) else 0
    A(f"s_mov_b32 {s(sRd)}, 0")
    emit(A, addr_upd())
    A(f"s_waitcnt vmcnt({ndma*(R-1)})")
    A("s_barrier")
    stamp(A, ph, 2); cyc(A, ph, 0)
    emit(A, reads(0))
    emit(A, ring_advance(SLOT, R))
    emit(A, addr_upd())
    A(f"s_mov_b32 {s(sCnt)}, {(NST-T)//2 if cnt_sgpr is None else s(cnt_sgpr)}")
    PRE = OPT("PRE_" + str(ph), OPT("PRE", 0))
    BK = OPT("BK", 1)
    def snake(M):
        return M
    def stage(p, dma, nout, last, hook=None, extra=0, loopend=False):
        M = mfmas(p); Rd = reads(1 - p); D = dma_groups() if dma else []
        if hook: D = D + [hook]
        nm = len(M)
        if last:
            A("s_waitcnt lgkmcnt(0)")
            emit(A, M)
            return
        book = ring_advance(SLOT, R) + addr_upd()
        cnt = [f"s_sub_u32 {s(sCnt)}, {s(sCnt)}, 1", f"s_cmp_lg_u32 {s(sCnt)}, 0"] if loopend else []
        if role == "A":
            pre = min(PRE, nm // 2)
            if pre:
                A("s_waitcnt lgkmcnt(0)")
                emit(A, M[:pre])
                A(f"s_waitcnt vmcnt({ndma*nout+extra})")
            else:
                A(f"s_waitcnt vmcnt({ndma*nout+extra}) lgkmcnt(0)")
            A("s_barrier")
            Mr = M[pre:]; nr = len(Mr)
            if BK and dma:
                m0set = D[0][0]; D = [D[0][2:]] + D[1:]
                emit(A, interleave(Mr, Rd, 0, max(1, nr - 2)))
                A(m0set)
                emit(A, book)
                emit(A, D)
                emit(A, cnt)
            else:
                emit(A, interleave(Mr, Rd, 0, max(1, nr - 2) if dma else max(1, (2 * nr) // 3)))
                emit(A, D)
                emit(A, book); emit(A, cnt)
        else:
            A(f"s_waitcnt vmcnt({ndma*nout+extra}) lgkmcnt(0)")
            A("s_barrier")
            emit(A, D)
            if BK:
                h = max(1, (2 * nm) // 3)
                emit(A, interleave(M[:h], Rd))
                emit(A, interleave(M[h:], [[x] for x in book[:2]] + [book[2:4]] + [[x] for x in book[4:]] + ([cnt] if cnt else []), 0, max(1, nm - h - 1)))
            else:
                emit(A, interleave(M, Rd, 0, max(1, (2 * nm) // 3)))
                emit(A, book); emit(A, cnt)
    A.raw(".p2align 6")
    A.label(label)
    for p in range(2): stage(p, True, R - 2, False, loopend=(p == 1))
    A(f"s_cbranch_scc1 {label}")
    for st in range(NST - T, NST):
        stage(st % 2, st + R < NST, min(R - 2, NST - 2 - st), st == NST - 1, (tail_hook or {}).get(NST - st), (tail_hook or {}).get(('x', NST - st), 0))
    if not T: A("s_waitcnt lgkmcnt(0)")
    A("s_nop 7")
    cyc(A, ph, 1); stamp(A, ph, 3)

def code_touch(A, vd=26):
    if not OPT("CT", 0): return
    l = A.newlabel("ct")
    A("s_getpc_b64 s[56:57]")
    A.label(l)
    A(f"s_sub_u32 s56, s56, {l}-{NAME}")
    A("s_subb_u32 s57, s57, 0")
    A(f"s_mov_b32 s58, code_end-{NAME}")
    A("s_mov_b32 s59, 0x20000")
    A("v_lshlrev_b32 v20, 7, v1")
    A("s_lshl_b32 s28, s31, 13")
    A(f"buffer_load_dword {v(vd)}, v20, s[56:59], s28 offen")

def code_touch_list(A, frm, vd, va):
    l = A.newlabel("ct")
    return ["s_getpc_b64 s[56:57]", f"{l}:",
            f"s_add_u32 s56, s56, {frm}-{l}", "s_addc_u32 s57, s57, 0",
            "s_and_b32 s56, s56, 0xffffff80",
            f"s_mov_b32 s58, code_end-{frm}", "s_mov_b32 s59, 0x20000",
            f"v_lshlrev_b32 {v(va)}, 7, v1", "s_lshl_b32 s28, s31, 13",
            f"buffer_load_dword {v(vd)}, {v(va)}, s[56:59], s28 offen"]

def w_swz_voff(A, dst, rowstride):
    A(f"v_lshrrev_b32 {v(dst)}, 3, v1")
    A(f"v_mul_u32_u24 {v(dst)}, {rowstride}, {v(dst)}")
    A("v_and_b32 v20, 7, v1")
    A("v_lshlrev_b32 v21, 1, v2")
    A("v_xor_b32 v20, v20, v21")
    A(f"v_lshl_add_u32 {v(dst)}, v20, 4, {v(dst)}")

def ph_ln_qkv(A):
    R, SLOT, NST = 4, 40960, 16
    A(f"s_load_dwordx4 s[40:43], s[0:1], {KA_X}")
    A(f"s_load_dwordx4 s[4:7], s[0:1], {KA_DBG}")
    A("s_memrealtime s[62:63]")
    A("v_lshrrev_b32 v1, 6, v0")
    A("s_nop 0")
    A("v_readfirstlane_b32 s20, v1")
    lane_decomp(A)
    A("s_and_b32 s21, s2, 1")
    A("s_lshl_b32 s21, s21, 3")
    A("s_bfe_u32 s28, s2, 0x30003")
    A("s_add_u32 s21, s21, s28")
    A("s_bfe_u32 s22, s2, 0x20001")
    A("s_lshl_b32 s22, s22, 2")
    A("s_lshr_b32 s28, s2, 6")
    A("s_add_u32 s22, s22, s28")
    A("s_and_b32 s31, s20, 3")
    QSC = OPT("QSC", 16)
    A("s_and_b32 s39, s21, 3")
    A(f"s_mul_i32 s39, s39, {QSC//4}")
    A("s_cmp_ge_u32 s20, 4")
    A("s_cbranch_scc1 p0_B")
    A("v_and_b32 v7, 7, v1")
    A("v_bfe_u32 v8, v1, 3, 2")
    A("v_lshrrev_b32 v9, 5, v1")
    A("v_lshlrev_b32 v10, 11, v7")
    A("v_lshl_add_u32 v10, v9, 6, v10")
    A("v_lshl_add_u32 v10, v8, 3, v10")
    A("s_lshl_b32 s3, s2, 14")
    A("s_lshl_b32 s28, s20, 9")
    A("s_add_u32 s3, s3, s28")
    A("s_waitcnt lgkmcnt(0)")
    if PROF: A("s_mov_b32 s66, s62")
    srd(A, 8, 40, 0, 4*MB)
    for i in range(4):
        A(f"buffer_load_dwordx2 {v(32+4*i,2)}, v10, s[8:11], s3 offen offset:{i*128}")
        A(f"buffer_load_dwordx2 {v(34+4*i,2)}, v10, s[8:11], s3 offen offset:{i*128+32}")
    srd(A, 16, 4, 0, 256)
    A("s_or_b32 s28, s2, s20")
    A("s_cmp_lg_u32 s28, 0")
    A("s_cbranch_scc1 p0_nopub")
    A("s_or_b32 s62, s62, 1")
    A("v_mov_b32 v20, s62")
    A("v_mov_b32 v21, s63")
    A("v_mov_b32 v22, 0")
    A("s_mov_b64 exec, 1")
    A("buffer_store_dwordx2 v[20:21], v22, s[16:19], 0 offen sc1")
    A("s_mov_b64 exec, -1")
    A("s_waitcnt vmcnt(0)")
    A.label("p0_nopub")
    srd(A, 12, 6, WS_XN, 4*MB)
    A("v_lshlrev_b32 v11, 17, v9")
    A("v_lshl_add_u32 v11, v7, 4, v11")
    A("v_lshl_add_u32 v11, v8, 8, v11")
    A("s_lshr_b32 s32, s2, 1")
    A("s_lshl_b32 s32, s32, 10")
    A("s_and_b32 s33, s2, 1")
    A("s_lshl_b32 s33, s33, 7")
    A("s_add_u32 s32, s32, s33")
    A("s_lshl_b32 s33, s20, 20")
    A("s_add_u32 s32, s32, s33")
    A("s_add_u32 s33, s32, 0x40000")
    A("s_add_u32 s34, s32, 0x80000")
    A("s_add_u32 s35, s32, 0xc0000")
    A("v_mov_b32 v24, 0")
    A("v_mov_b32 v25, 0")
    U = 64
    for j in range(16):
        if j % 2 == 0: A(f"s_waitcnt vmcnt({7 - j//2})")
        A(f"v_lshlrev_b32 {v(U+2*j)}, 16, {v(32+j)}")
        A(f"v_and_b32 {v(U+1+2*j)}, 0xffff0000, {v(32+j)}")
        A(f"v_add_f32 v24, v24, {v(U+2*j)}")
        A(f"v_fmac_f32 v25, {v(U+2*j)}, {v(U+2*j)}")
        A(f"v_add_f32 v24, v24, {v(U+1+2*j)}")
        A(f"v_fmac_f32 v25, {v(U+1+2*j)}, {v(U+1+2*j)}")
    A("v_mov_b32 v22, 0")
    A("buffer_load_dwordx2 v[28:29], v22, s[16:19], 0 offen sc1")
    A("v_add_f32_dpp v24, v24, v24 row_ror:8 row_mask:0xf bank_mask:0xf")
    A("v_add_f32_dpp v25, v25, v25 row_ror:8 row_mask:0xf bank_mask:0xf")
    reduce_rows16_32(A, [24, 25], [26, 27])
    A("v_lshlrev_b32 v26, 5, v7")
    A("s_lshl_b32 s28, s20, 3")
    A("v_add_u32 v27, s28, v26")
    A("ds_write_b64 v27, v[24:25]")
    A("s_waitcnt lgkmcnt(0)")
    A("s_barrier")
    A("ds_read_b128 v[100:103], v26")
    A("ds_read_b128 v[104:107], v26 offset:16")
    A("s_waitcnt lgkmcnt(0)")
    A("v_pk_add_f32 v[24:25], v[100:101], v[102:103]")
    A("v_pk_add_f32 v[26:27], v[104:105], v[106:107]")
    A("v_pk_add_f32 v[24:25], v[24:25], v[26:27]")
    A(f"v_mul_f32 v24, {f32(1/1024)}, v24")
    A(f"v_mul_f32 v25, {f32(1/1024)}, v25")
    A("v_fma_f32 v25, -v24, v24, v25")
    A("v_max_f32 v25, 0, v25")
    A(f"v_add_f32 v25, {f32(1e-5)}, v25")
    A("v_rsq_f32 v25, v25")
    A("s_nop 0")
    A("v_mul_f32 v24, v24, v25")
    for j in range(16):
        A(f"v_fma_f32 {v(U+2*j)}, {v(U+2*j)}, v25, -v24")
        A(f"v_fma_f32 {v(U+1+2*j)}, {v(U+1+2*j)}, v25, -v24")
        A(f"v_cvt_pk_bf16_f32 {v(32+j)}, {v(U+2*j)}, {v(U+1+2*j)}")
        if j % 4 == 3:
            A(f"buffer_store_dwordx4 {v(32+j-3,4)}, v11, s[12:15], {s(32+j//4)} offen{STF}")
    stamp(A, 0, 3)
    A("s_lshr_b32 s32, s2, 4")
    A("s_and_b32 s33, s2, 15")
    pub_prep(A, 0, 32, 33)
    A(f"s_mov_b32 s28, {SPIN_MAX}")
    A.label("p0_nonce")
    A("s_waitcnt vmcnt(0)")
    A("v_readfirstlane_b32 s62, v28")
    A("v_readfirstlane_b32 s63, v29")
    A("s_nop 1")
    A("s_cmp_lg_u32 s62, 0")
    A("s_cbranch_scc1 p0_gotnonce")
    A("buffer_load_dwordx2 v[28:29], v22, s[16:19], 0 offen sc1")
    A("s_sub_u32 s28, s28, 1")
    A("s_cmp_lg_u32 s28, 0")
    A("s_cbranch_scc1 p0_nonce")
    A.label("p0_gotnonce")
    A("v_mov_b32 v248, s62")
    A("v_mov_b32 v249, s63")
    stamp(A, 0, 4)
    publish(A, force=True)
    A("v_mov_b32 v12, 0")
    A("s_lshr_b32 s28, s31, 1")
    A("s_lshl_b32 s28, s28, 7")
    A("s_lshl_b32 s29, s21, 3")
    A("s_add_u32 s28, s28, s29")
    A("s_and_b32 s29, s31, 1")
    A("s_lshl_b32 s29, s29, 2")
    A("s_add_u32 s28, s28, s29")
    A(f"s_lshl_b32 {s(sGo)}, s28, 10")
    if QSC: rot_init(A, 0x40000, QSC)
    A(f"s_lshl_b32 {s(sM)}, s31, 12")
    A("s_branch p1_common")
    A.label("p0_B")
    code_touch(A)
    w_swz_voff(A, 7, 6144)
    A(f"v_add_u32 v8, {8*6144-1024}, v7")
    A("v_add_u32 v9, 2048, v7")
    A("v_add_u32 v10, 2048, v8")
    A("v_add_u32 v11, 4096, v7")
    A("v_add_u32 v12, 4096, v8")
    A(f"s_mul_i32 s28, s31, {16*6144}")
    A("s_lshl_b32 s29, s22, 7")
    A(f"s_add_u32 {s(sGo)}, s28, s29")
    if QSC: rot_init(A, 64*6144, QSC)
    A(f"s_lshl_b32 {s(sM)}, s31, 11")
    A(f"s_add_u32 {s(sM)}, {s(sM)}, 16384")
    A("v_and_b32 v13, 31, v1")
    A("v_mul_u32_u24 v13, 6144, v13")
    A("v_lshrrev_b32 v14, 5, v1")
    A("v_lshl_add_u32 v15, v14, 11, v13")
    A("v_lshl_add_u32 v13, v14, 30, v13")
    A("v_add_u32 v13, 4096, v13")
    A("s_and_b32 s28, s21, 7")
    A("s_lshl_b32 s28, s28, 2")
    A("s_add_u32 s28, s28, s31")
    A(f"s_mul_i32 s28, s28, {32*6144}")
    A("s_add_u32 s28, s28, s29")
    A("s_waitcnt lgkmcnt(0)")
    if PROF: A("s_mov_b32 s66, s62")
    srd(A, 12, 42, 0, 6*MB)
    def wdma():
        g = []
        for seg in range(3):
            g.append([f"s_add_u32 m0, {s(sWr)}, {s(sM)}" if seg == 0 else "s_add_u32 m0, m0, 8192", "s_nop 0",
                      f"buffer_load_dwordx4 {v(7+2*seg)}, s[12:15], {s(sGo)} offen lds"])
            g.append([f"buffer_load_dwordx4 {v(8+2*seg)}, s[12:15], {s(sGo)} offen offset:1024 lds"])
        g[-1] += adv(64*6144, QSC)
        return g
    P0M = OPT("P0M", 6)
    def touches():
        A("buffer_load_dword v24, v15, s[12:15], s28 offen")
        A("buffer_load_dword v25, v13, s[12:15], s28 offen")
    if P0M == 0:
        touches()
        fill_ring(A, R, SLOT, wdma, 0, 2)
        A("s_barrier")
        fill_ring(A, R, SLOT, wdma, 2, 4)
        A("s_barrier")
    elif P0M == 1:
        A("s_barrier")
        touches()
        fill_ring(A, R, SLOT, wdma, 0, 2)
        A("s_barrier")
        fill_ring(A, R, SLOT, wdma, 2, 4)
    elif P0M == 2:
        fill_ring(A, R, SLOT, wdma, 0, 2)
        A("s_barrier")
        touches()
        fill_ring(A, R, SLOT, wdma, 2, 4)
        A("s_barrier")
        A("s_waitcnt vmcnt(0)")
    elif P0M == 4:
        A("s_barrier")
        fill_ring(A, R, SLOT, wdma, 0, 2)
        A("s_barrier")
        fill_ring(A, R, SLOT, wdma, 2, 4)
    elif P0M == 5:
        fill_ring(A, R, SLOT, wdma, 0, 4)
        A("s_barrier")
        A("s_barrier")
    elif P0M == 6:
        fill_ring(A, R, SLOT, wdma, 0, 2)
        A("s_barrier")
        A("s_barrier")
        fill_ring(A, R, SLOT, wdma, 2, 4)
    elif P0M == 3:
        fill_ring(A, R, SLOT, wdma, 0, 2)
        A("s_barrier")
        fill_ring(A, R, SLOT, wdma, 2, 4)
        A("s_barrier")

    A.label("p1_common")
    ACC = 64
    def acc(f, i): return ACC + (f * 4 + i) * 4
    SET = [112, 168]
    def xf(p, kk, i): return SET[p] + (kk * 4 + i) * 4
    def wf(p, kk, f): return SET[p] + 32 + (kk * 3 + f) * 4
    srd(A, 8, 6, WS_XN, 4*MB)
    srd(A, 12, 42, 0, 6*MB)
    srd(A, 16, 6, WS_Q, 12*MB)
    A("s_and_b32 s28, s20, 1")
    A("s_lshl_b32 s28, s28, 12")
    A("v_add_u32 v32, s28, v6")
    A("v_lshl_add_u32 v33, v2, 2, v3")
    A("v_lshlrev_b32 v33, 7, v33")
    A("v_lshl_add_u32 v33, v4, 3, v33")
    A("v_add_u32 v33, 16384, v33")
    A("v_bfe_u32 v34, v1, 3, 2")
    A("s_lshr_b32 s28, s20, 1")
    A("s_and_b32 s29, s28, 1")
    A("s_lshl_b32 s29, s29, 1")
    A("s_lshr_b32 s32, s28, 1")
    A("s_lshl_b32 s32, s32, 13")
    A("v_xor_b32 v35, s29, v34")
    A("v_lshl_add_u32 v35, v35, 5, v33")
    A("v_add_u32 v35, s32, v35")
    A("v_xor_b32 v36, 32, v35")
    A("v_xor_b32 v37, s28, v34")
    A("v_lshl_add_u32 v37, v37, 5, v33")
    A("v_add_u32 v37, 16384, v37")
    for i in range(48): A(f"v_mov_b32 {v(ACC+i)}, 0")
    stamp(A, 1, 0)
    wait_flags(A, 0, 21, 16)
    stamp(A, 1, 1)
    def reads(p):
        out = []
        for kk in range(2):
            for f in range(3):
                for t in range(2):
                    out.append([f"ds_read_b64_tr_b16 {v(wf(p,kk,f)+2*t,2)}, {v(17+f)} offset:{kk*4096+t*2048}"])
            for i in range(4):
                out.append([f"ds_read_b128 {v(xf(p,kk,i),4)}, v16 offset:{kk*8192+i*1024}"])
        return out
    def addr_upd():
        return [f"v_add_u32 v16, {s(sRd)}, v32", f"v_add_u32 v17, {s(sRd)}, v35",
                f"v_add_u32 v18, {s(sRd)}, v36", f"v_add_u32 v19, {s(sRd)}, v37"]
    def mfmas(p):
        M = []
        for kk in range(2):
            for f in range(3):
                for i in (range(4) if (f % 2 == 0 or not OPT("SNAKE", 1)) else range(3, -1, -1)):
                    if f < 2: M.append(mf16(acc(f, i), wf(p, kk, f), xf(p, kk, i)))
                    else:     M.append(mf16(acc(f, i), xf(p, kk, i), wf(p, kk, f)))
        return M
    A("s_cmp_ge_u32 s20, 4")
    A("s_cbranch_scc1 qkv_B")
    fill_ring(A, R, SLOT, lambda: xdma(0x40000, QSC), bar=True)
    gemm_loop(A, 1, "qkv_loopA", "A", R, SLOT, NST, 4, mfmas, reads, lambda: xdma(0x40000, QSC), addr_upd,
              {4: code_touch_list(A, "qkv_epi", 251, 252), ('x', 3): 1, ('x', 2): 1} if OPT("CTQ", 1) else None)
    A("s_branch qkv_epi")
    A.label("qkv_B")
    fill_ring(A, R, SLOT, None, bar=True)
    gemm_loop(A, 1, "qkv_loopB", "B", R, SLOT, NST, 6, mfmas, reads, wdma, addr_upd)
    A.label("qkv_epi")
    A(f"s_load_dwordx2 s[40:41], s[0:1], {KA_WO}")
    A(f"s_load_dwordx4 s[44:47], s[0:1], {KA_WG}")
    A(f"s_load_dwordx2 s[42:43], s[0:1], {KA_WD}")
    A("v_lshlrev_b32 v9, 9, v2")
    A("v_lshrrev_b32 v7, 3, v5")
    A("v_lshl_add_u32 v7, v7, 8, v9")
    A("v_and_b32 v8, 7, v5")
    A("v_lshl_add_u32 v7, v8, 4, v7")
    A("v_lshl_add_u32 v8, v5, 4, v9")
    A("s_lshr_b32 s28, s20, 1")
    A("s_and_b32 s29, s28, 1")
    A("s_lshr_b32 s32, s28, 1")
    A("s_and_b32 s33, s20, 1")
    A("s_lshl_b32 s34, s21, 2")
    A("s_lshl_b32 s33, s33, 1")
    A("s_add_u32 s34, s34, s33")
    A("s_lshl_b32 s34, s34, 11")
    A("s_lshl_b32 s35, s22, 1")
    A("s_add_u32 s36, s35, s29")
    A("s_lshl_b32 s36, s36, 17")
    A("s_add_u32 s36, s36, s34")
    A("s_lshl_b32 s37, s32, 22")
    A("s_add_u32 s36, s36, s37")
    A("s_add_u32 s38, s35, s32")
    A("s_lshl_b32 s38, s38, 17")
    A("s_add_u32 s38, s38, s34")
    A("s_lshl_b32 s37, s29, 8")
    A("s_add_u32 s38, s38, s37")
    A(f"s_add_u32 s38, s38, {8*MB}")
    A("s_cmp_eq_u32 s32, 0")
    A(f"s_cselect_b32 s39, {f32(QSCALE)}, 1.0")
    A("v_mov_b32 v20, s39")
    T = 128
    for pr in range(2):
        for ii in range(2):
            for h in range(2):
                A(f"v_cvt_pk_bf16_f32 {v(T+4*pr+2*ii+h)}, {v(acc(2,2*pr+ii)+2*h)}, {v(acc(2,2*pr+ii)+2*h+1)}")
        A(f"buffer_store_dwordx4 {v(T+4*pr,4)}, v8, s[16:19], s38 offen offset:{pr*2048}{STF}")
    T = 112
    for i in range(4):
        for f in range(2):
            for h in range(2):
                A(f"v_pk_mul_f32 {v(acc(f,i)+2*h,2)}, {v(acc(f,i)+2*h,2)}, v[20:21] op_sel_hi:[1,0]")
        for f in range(2):
            for h in range(2):
                A(f"v_cvt_pk_bf16_f32 {v(T+4*i+2*f+h)}, {v(acc(f,i)+2*h)}, {v(acc(f,i)+2*h+1)}")
        A(f"buffer_store_dwordx4 {v(T+4*i,4)}, v7, s[16:19], s36 offen offset:{(i>>1)*2048+(i&1)*128}{STF}")
    pub_prep(A, 1, 22, 21)
    A("s_waitcnt lgkmcnt(0)")

def ph_attn(A):
    R, SLOT = 3, 32768
    WL = R * SLOT
    Q, NEGM, S0, S1, P, KF, VF, O, L, ONES = 8, 32, 48, 64, 80, 88, 96, 104, 120, 124
    S_ = [S0, S1]
    A("s_and_b32 s21, s2, 7")
    A("s_lshl_b32 s21, s21, 2")
    A("s_bfe_u32 s28, s2, 0x20003")
    A("s_add_u32 s21, s21, s28")
    A("s_lshr_b32 s22, s2, 5")
    A("s_lshr_b32 s32, s2, 1")
    A("s_and_b32 s33, s2, 1")
    sCo, sCM = 26, 29
    A("s_cmp_ge_u32 s32, 56")
    A("s_cselect_b32 s48, s46, s44")
    A("s_cselect_b32 s49, s47, s45")
    A("s_cselect_b32 s34, 56, 0")
    A("s_sub_u32 s34, s32, s34")
    A("s_mov_b32 s51, 0x20000")
    A("s_lshl_b32 s34, s34, 7")
    A(f"s_mul_i32 s35, s33, {512*7168}")
    A("s_add_u32 s34, s34, s35")
    A(f"s_add_u32 s35, s35, {512*7168}")
    A("s_cmp_lt_u32 s2, 224")
    A("s_cselect_b32 s50, s35, 0")
    A(f"s_mul_i32 s35, s31, {16*7168}")
    A(f"s_add_u32 {s(sCo)}, s34, s35")
    w_swz_voff(A, 7, 7168)
    A(f"v_add_u32 v129, {8*7168-1024}, v7")
    srd(A, 52, 40, 0, 2*MB)
    srd(A, 44, 42, 0, 7*MB)
    A("s_lshl_b32 s35, s2, 2")
    A("s_add_u32 s35, s35, s31")
    A("v_lshlrev_b32 v8, 7, v1")
    A("v_mov_b32 v9, 0x7fffffff")
    A("s_lshl_b32 s34, s35, 11")
    A("v_add_u32 v130, s34, v8")
    A("v_cmp_gt_u32 vcc, 16, v1")
    A("s_lshl_b32 s60, s35, 10")
    A("s_nop 0")
    A("v_cndmask_b32 v130, v9, v130, vcc")
    A("s_and_b32 s34, s35, 1")
    A("s_lshl_b32 s34, s34, 3")
    A("v_lshrrev_b32 v8, 3, v1")
    A("v_add_u32 v8, s34, v8")
    A(f"v_mul_u32_u24 v8, {3584*128}, v8")
    A("s_bfe_u32 s34, s35, 0x20002")
    A("s_lshl_b32 s34, s34, 1")
    A("v_and_b32 v9, 7, v1")
    A("v_xor_b32 v9, s34, v9")
    A("v_lshl_add_u32 v131, v9, 4, v8")
    A("s_lshr_b32 s61, s35, 1")
    A("s_lshl_b32 s61, s61, 7")
    A(f"s_sub_u32 s61, s61, {512*128}")
    CP = 140
    def cp_load():
        return [f"buffer_load_dwordx4 {v(CP,4)}, v6, s[44:47], s60 offen", f"s_add_u32 s60, s60, {MB}"]
    def cp_store():
        return [f"s_cmp_lt_u32 s61, {3584*128}", f"s_cselect_b32 s58, {7*MB}, 0",
                f"buffer_store_dwordx4 {v(CP,4)}, v131, s[56:59], s61 offen{STF}", f"s_add_u32 s61, s61, {512*128}"]
    def cs_dma(j):
        if j == 0:
            return [f"s_mov_b32 m0, {s(sCM)}", f"s_add_u32 {s(sCM)}, {s(sCM)}, 8192",
                    f"buffer_load_dwordx4 v7, s[48:51], {s(sCo)} offen lds"]
        return [f"buffer_load_dwordx4 v129, s[48:51], {s(sCo)} offen offset:1024 lds",
                f"s_add_u32 {s(sCo)}, {s(sCo)}, {64*7168}"]
    A("s_lshl_b32 s28, s21, 17")
    A("s_add_u32 s4, s6, s28")
    A("s_addc_u32 s5, s7, 0")
    srd(A, 8, 4, WS_K, 131072)
    srd(A, 12, 4, WS_VT, 131072)
    srd(A, 16, 4, WS_Q, 131072)
    srd(A, 36, 6, WS_O, 4*MB)
    A(f"s_lshl_b32 {s(sGo)}, s31, 12")
    A(f"s_lshl_b32 {s(sM)}, s31, 12")
    A("v_lshrrev_b32 v16, 2, v1")
    A("v_xor_b32 v16, v16, v2")
    A("v_and_b32 v16, 1, v16")
    A("v_cmp_eq_u32 vcc, 0, v16")
    A("v_mov_b32 v17, 0x3f803f80")
    A("s_nop 1")
    for i in range(4): A(f"v_cndmask_b32 {v(ONES+i)}, 0, v17, vcc")
    for i in range(16): A(f"v_mov_b32 {v(O+i)}, 0")
    for i in range(4): A(f"v_mov_b32 {v(L+i)}, 0")
    for i in range(4): A(f"v_mov_b32 {v(P+4+i)}, 0")
    for i in range(4): A(f"v_mov_b32 {v(VF+4+i)}, 0")
    A("v_mov_b32 v16, v6")
    A(f"v_add_u32 v17, {SLOT}, v6")
    A(f"s_mov_b32 {s(sRd)}, {SLOT}")
    A("s_lshr_b32 s34, s21, 1")
    A("s_lshl_b32 s35, s22, 3")
    A("s_add_u32 s35, s35, s20")
    A("s_lshl_b32 s35, s35, 11")
    if not OPT("PUBFIRST", 1):
        A("s_waitcnt vmcnt(0)")
        stamp(A, 1, 4)
    publish(A)
    stamp(A, 2, 0)
    wait_flags(A, 1, 34, 16)
    stamp(A, 2, 1)
    def kv(j):
        o = []
        if j % 4 == 0: o = [f"s_add_u32 m0, {s(sWr)}, {16384 if j >= 4 else 0}", "s_nop 0"]
        o += [f"buffer_load_dwordx4 v6, {'s[8:11]' if j < 4 else 's[12:15]'}, {s(sGo)} offen offset:{(j&3)*1024}{LDF} lds"]
        if j == 7:
            o += [f"s_add_u32 {s(sGo)}, {s(sGo)}, 16384",
                  f"s_add_u32 {s(sWr)}, {s(sWr)}, {SLOT}",
                  f"s_cmp_ge_u32 {s(sWr)}, {SLOT*R}",
                  f"s_cselect_b32 {s(sWr)}, {s(sM)}, {s(sWr)}"]
        return o
    srd(A, 56, 6, WS_WD, 7*MB)
    if OPT("NOSIDE", 0):
        A("s_mov_b32 s50, 0"); A("s_mov_b32 s46, 0"); A("s_mov_b32 s54, 0"); A("s_mov_b32 s61, 0x10000000")
    A(f"s_mov_b32 {s(sWr)}, {s(sM)}")
    A(f"s_lshl_b32 {s(sCM)}, s31, 11")
    A(f"s_add_u32 {s(sCM)}, {s(sCM)}, {WL}")
    A("s_cmp_ge_u32 s20, 4")
    A("s_cbranch_scc1 at_B0")
    for j in range(4): emit(A, kv(j))
    A("s_branch at_C0")
    A.label("at_B0")
    for j in range(4, 7): emit(A, kv(j))
    emit(A, kv(7)[:1])
    A.label("at_C0")
    A(f"buffer_load_dwordx4 {v(Q,4)}, v6, s[16:19], s35 offen{LDF}")
    A(f"buffer_load_dwordx4 {v(Q+4,4)}, v6, s[16:19], s35 offen offset:1024{LDF}")
    emit(A, kv(7)[1:])
    A("s_waitcnt vmcnt(0)")
    A("s_barrier")
    stamp(A, 2, 2); cyc(A, 2, 0)
    def kread(t, j, dst=None):
        a_ = 16 if t < 8 else 17
        return f"ds_read_b128 {v(KF+4*j if dst is None else dst,4)}, {v(a_)} offset:{(t%8)*2048+j*1024}"
    def vread(t, j):
        a_ = 16 if t < 8 else 17
        return f"ds_read_b128 {v(VF+4*j,4)}, {v(a_)} offset:{16384+(t%8)*2048+j*1024}"
    A(kread(0, 0, S1)); A(kread(0, 1, S1+4))
    A(kread(1, 0)); A(kread(1, 1)); A(vread(0, 0))
    A("s_cmp_ge_u32 s20, 4")
    A("s_cbranch_scc1 at_C1")
    for j in range(4): emit(A, kv(j))
    A("buffer_load_dword v128, v130, s[52:55], 0 offen")
    emit(A, cs_dma(0)); emit(A, cs_dma(1))
    if OPT("CT", 0) >= 2:
        A("s_branch at_C2")
    A.label("at_C1")
    if OPT("CT", 0) >= 2:
        code_touch(A, 128)
        srd(A, 56, 6, WS_WD, 7*MB)
        A.label("at_C2")
    A("s_waitcnt lgkmcnt(3)")
    A(mf32(S0, S1, Q, "0"))
    A(mf32(S0, S1+4, Q+4))
    A("s_nop 15")
    A("s_nop 3")
    A(f"v_max3_f32 v18, {v(S0)}, {v(S0+1)}, {v(S0+2)}")
    for i in range(3, 15, 2): A(f"v_max3_f32 v18, v18, {v(S0+i)}, {v(S0+i+1)}")
    A(f"v_max_f32 v18, v18, {v(S0+15)}")
    A("v_mov_b32 v19, v18")
    A("s_nop 1")
    A("v_permlane32_swap_b32 v19, v18")
    A("s_nop 1")
    A("v_max_f32 v18, v18, v19")
    for i in range(16): A(f"v_sub_f32 {v(NEGM+i)}, 0, v18")
    for i in range(16): A(f"v_sub_f32 {v(S0+i)}, {v(S0+i)}, v18")
    A(f"s_mov_b32 {s(sCnt)}, 8")
    A("s_waitcnt lgkmcnt(0)")
    def loop(role):
        A.raw(".p2align 6")
        A.label(f"attn_loop{role}")
        for t in range(8):
            c, n = S_[t % 2], S_[1 - t % 2]
            E = lambda i: f"v_exp_f32 {v(c+i)}, {v(c+i)}"
            C = lambda i: f"v_cvt_pk_bf16_f32 {v(P+i)}, {v(c+2*i)}, {v(c+2*i+1)}"
            X = {6: (kv(0), kv(1)), 7: (kv(2), kv(3)), 0: (kv(4), kv(5)), 1: (kv(6), kv(7)),
                 2: (["s_waitcnt vmcnt(10)"] + cp_store(), cp_load()), 3: (cs_dma(0), cs_dma(1)), 4: ([], []), 5: ([], [])}[t]
            if role == "B":
                X = ([], [])
                if OPT("CTA", 0) and t == 7: X = (["buffer_load_dword v251, v252, s[56:59], s60 offen"], [])
            FAIR = OPT("FAIR", 0)
            if t == 6:
                if role == "A": A("s_waitcnt vmcnt(4)")
                A("s_barrier")
            elif FAIR == 1 and t == 2:
                A("s_barrier")
            elif FAIR == 2 and t % 2 == 0:
                A("s_barrier")
            if FAIR == 1: A(f"s_setprio {3 - (t + 2) % 4}")
            if FAIR == 3 and t % 2 == 0: A(f"s_setprio {3 - ((t + 2) % 8) // 2}")
            A("s_waitcnt lgkmcnt(2)")
            A(mf32(n, KF, Q, v(NEGM, 16)))
            A(kread(t + 2, 0))
            emit(A, [E(0), E(1), E(2)])
            A(mf32(O, VF+4, P+4))
            A(vread(t, 1))
            emit(A, X[0])
            emit(A, [E(3), E(4), E(5), E(6)])
            A("s_waitcnt lgkmcnt(2)")
            A(mf32(n, KF+4, Q+4))
            A(kread(t + 2, 1))
            emit(A, [E(7), C(0), C(1), C(2), C(3), E(8)])
            A(mf16(L, ONES, P+4))
            emit(A, [E(9), E(10)])
            A(mf32(O, VF, P))
            A(vread(t + 1, 0))
            emit(A, X[1])
            emit(A, [E(11), E(12), E(13), E(14)])
            A(mf16(L, ONES, P))
            if t == 7:
                A(f"s_add_u32 {s(sRd)}, {s(sRd)}, {SLOT}")
                A(f"s_cmp_eq_u32 {s(sRd)}, {SLOT*R}")
                A(f"s_cselect_b32 {s(sRd)}, 0, {s(sRd)}")
                A("v_mov_b32 v16, v17")
                A(f"v_add_u32 v17, {s(sRd)}, v6")
                A(f"s_sub_u32 {s(sCnt)}, {s(sCnt)}, 1")
                A(f"s_cmp_lg_u32 {s(sCnt)}, 0")
            emit(A, [E(15), C(4), C(5), C(6), C(7)])
        A(f"s_cbranch_scc1 attn_loop{role}")
    A("s_cmp_ge_u32 s20, 4")
    A("s_cbranch_scc1 attn_preB")
    loop("A")
    A("s_branch attn_post")
    A.label("attn_preB")
    if OPT("CTA", 0):
        emit(A, code_touch_list(A, "attn_post", 251, 252)[:-1])
        A("s_mov_b32 s60, s28")
    loop("B")
    A.label("attn_post")
    if OPT("FAIR", 0): A("s_setprio 0")
    A("s_waitcnt lgkmcnt(0)")
    A("s_nop 0")
    A(mf32(O, VF+4, P+4))
    A(mf16(L, ONES, P+4))
    cyc(A, 2, 1); stamp(A, 2, 3)
    A("s_waitcnt vmcnt(0)")
    A("s_barrier")
    A("v_lshrrev_b32 v18, 2, v1")
    A("v_lshlrev_b32 v18, 7, v18")
    A("v_lshl_add_u32 v18, v4, 3, v18")
    A("v_bfe_u32 v19, v1, 3, 2")
    A("v_xor_b32 v19, s31, v19")
    A("v_lshl_add_u32 v18, v19, 5, v18")
    A("s_lshr_b32 s29, s20, 2")
    A("s_lshl_b32 s34, s29, 15")
    A(f"s_add_u32 s34, s34, {WL}")
    A("v_add_u32 v18, s34, v18")
    CSW = S0
    for ks in range(8):
        for t in range(2):
            A(f"ds_read_b64_tr_b16 {v(CSW+4*ks+2*t,2)}, v18 offset:{ks*4096+t*2048}")
    for i in range(4): A(f"v_mov_b32 {v(132+i)}, 0x3f803f80")
    A(f"v_add_f32 v18, |{v(O)}|, {v(L)}")
    for i in range(1, 16): A(f"v_add_f32 v18, |{v(O+i)}|, v18")
    A(f"v_mov_b32 v19, {f32(2.0**120)}")
    A("v_cmp_nlt_f32 vcc, v18, v19")
    A("s_waitcnt lgkmcnt(0)")
    for ks in range(8):
        A(mf16(136, CSW+4*ks, 132, "0" if ks == 0 else None))
    A("s_cmp_eq_u64 vcc, 0")
    A("s_cbranch_scc0 attn_slow")
    A.label("attn_fin")
    A(f"s_load_dwordx2 s[44:45], s[0:1], {KA_X}")
    A(f"v_rcp_f32 v18, {v(L)}")
    A("s_nop 0")
    for i in range(16): A(f"v_mul_f32 {v(O+i)}, {v(O+i)}, v18")
    for pc in range(2):
        for hh in range(2):
            run = pc + 2 * hh
            for j in range(2):
                A(f"v_cvt_pk_bf16_f32 {v(P+4*pc+2*hh+j)}, {v(O+4*run+2*j)}, {v(O+4*run+2*j+1)}")
    A("v_bfe_u32 v18, v1, 3, 1")
    A("v_lshlrev_b32 v18, 10, v18")
    A("v_bfe_u32 v19, v1, 4, 1")
    A("v_lshl_add_u32 v18, v19, 7, v18")
    A("v_and_b32 v19, 7, v1")
    A("v_lshl_add_u32 v18, v19, 4, v18")
    A("v_lshrrev_b32 v19, 5, v1")
    A("v_lshl_add_u32 v18, v19, 8, v18")
    A("s_lshl_b32 s28, s21, 17")
    A("s_add_u32 s28, s28, s35")
    A(f"buffer_store_dwordx4 {v(P,4)}, v18, s[36:39], s28 offen{STF}")
    A(f"buffer_store_dwordx4 {v(P+4,4)}, v18, s[36:39], s28 offen offset:512{STF}")
    srd(A, 48, 6, WS_CS, 4*7168*4)
    A("s_lshl_b32 s33, s33, 1")
    A("s_add_u32 s33, s33, s29")
    A(f"s_mul_i32 s33, s33, {7168*4}")
    A("s_lshl_b32 s34, s32, 8")
    A("s_add_u32 s33, s33, s34")
    A("s_lshl_b32 s34, s31, 6")
    A("s_add_u32 s33, s33, s34")
    A("v_cmp_ne_u32 vcc, 0, v5")
    A("v_mov_b32 v19, 0x7fffffff")
    A("s_cmp_lt_u32 s2, 224")
    A(f"s_cselect_b32 s50, {4*7168*4}, 0")
    A("v_cndmask_b32 v19, v1, v19, vcc")
    A(f"buffer_store_dwordx4 v[136:139], v19, s[48:51], s33 offen{STF}")
    pub_prep(A, 2, 22, 21)
    A("s_waitcnt lgkmcnt(0)")
    def slow():
        A.label("attn_slow")
        A("v_mov_b32 v18, 0xff800000")
        A("s_mov_b32 s28, 0")
        A.label("attn_slow1")
        A(f"buffer_load_dwordx4 {v(KF,4)}, v6, s[8:11], s28 offen{LDF}")
        A(f"buffer_load_dwordx4 {v(KF+4,4)}, v6, s[8:11], s28 offen offset:1024{LDF}")
        A("s_waitcnt vmcnt(0)")
        A("s_nop 15")
        A(mf32(S0, KF, Q, "0"))
        A(mf32(S0, KF+4, Q+4))
        A("s_nop 15")
        A("s_nop 3")
        for i in range(0, 16, 2): A(f"v_max3_f32 v18, v18, {v(S0+i)}, {v(S0+i+1)}")
        A("s_add_u32 s28, s28, 2048")
        A("s_cmp_lt_u32 s28, 131072")
        A("s_cbranch_scc1 attn_slow1")
        A("v_mov_b32 v19, v18")
        A("s_nop 1")
        A("v_permlane32_swap_b32 v19, v18")
        A("s_nop 1")
        A("v_max_f32 v18, v18, v19")
        for i in range(16): A(f"v_sub_f32 {v(NEGM+i)}, 0, v18")
        for i in range(16): A(f"v_mov_b32 {v(O+i)}, 0")
        for i in range(4): A(f"v_mov_b32 {v(L+i)}, 0")
        A("s_mov_b32 s28, 0")
        A.label("attn_slow2")
        A(f"buffer_load_dwordx4 {v(KF,4)}, v6, s[8:11], s28 offen{LDF}")
        A(f"buffer_load_dwordx4 {v(KF+4,4)}, v6, s[8:11], s28 offen offset:1024{LDF}")
        A(f"buffer_load_dwordx4 {v(VF,4)}, v6, s[12:15], s28 offen{LDF}")
        A(f"buffer_load_dwordx4 {v(VF+4,4)}, v6, s[12:15], s28 offen offset:1024{LDF}")
        A("s_waitcnt vmcnt(0)")
        A(mf32(S0, KF, Q, v(NEGM, 16)))
        A(mf32(S0, KF+4, Q+4))
        A("s_nop 15")
        A("s_nop 3")
        for i in range(16): A(f"v_exp_f32 {v(S0+i)}, {v(S0+i)}")
        A("s_nop 0")
        for i in range(8): A(f"v_cvt_pk_bf16_f32 {v(P+i)}, {v(S0+2*i)}, {v(S0+2*i+1)}")
        A("s_nop 1")
        A(mf32(O, VF, P))
        A(mf32(O, VF+4, P+4))
        A(mf16(L, ONES, P))
        A(mf16(L, ONES, P+4))
        A("s_nop 15")
        A("s_add_u32 s28, s28, 2048")
        A("s_cmp_lt_u32 s28, 131072")
        A("s_cbranch_scc1 attn_slow2")
        A("s_nop 15")
        A("s_branch attn_fin")
    return slow

HEADER = open("sequential_preLN__mha_block__glu_gated_glu__prompt.s.ref").read().split("; Override launch")[0]

def build(path):
    from mk2 import ph_proj, ph_gu, ph_down2, ph_down3
    A = Asm()
    A.raw(f".globl {NAME}"); A.raw(".p2align 8"); A.raw(f".type {NAME},@function"); A.label(NAME)
    A("s_cmp_ge_u32 s2, 256")
    A("s_cbranch_scc1 the_end")
    ph_ln_qkv(A)
    slow = ph_attn(A)
    ph_proj(A, 3, True)
    ph_gu(A)
    if OPT("SPLITK", 1) == 2: ph_down3(A)
    elif OPT("SPLITK", 1) == 1: ph_down2(A)
    else: ph_proj(A, 5, False)
    stamp_flush(A)
    A.label("the_end")
    A("s_endpgm")
    slow()
    A.label("code_end")
    out = HEADER
    out += "; @launch grid=(256,1,1) block=(512,1,1) lds=163840\n"
    out += '.amdgcn_target "amdgcn-amd-amdhsa--gfx950"\n.text\n'
    out += A.text()
    out += '.section .rodata,"a"\n'
    out += kernel_desc(NAME, 256, 102 if PROF else 64)
    open(path, "w").write(out)

if __name__ == "__main__":
    build(sys.argv[1] if len(sys.argv) > 1 else "sequential_preLN__mha_block__glu_gated_glu__prompt.s")
```

```python
from mk import *

def ph_proj(A, ph, is_wo):
    name = "wo" if is_wo else "dn"
    K = 1024 if is_wo else 3584
    ws_x = WS_O if is_wo else WS_HACT
    wp = 40 if is_wo else 42
    R, SLOT, NST = 6, 24576, K // 64
    STATS_LDS = R * SLOT
    A("s_and_b32 s21, s2, 3")
    A("s_lshl_b32 s21, s21, 2")
    A("s_bfe_u32 s28, s2, 0x20003")
    A("s_add_u32 s21, s21, s28")
    A("s_bfe_u32 s22, s2, 0x10002")
    A("s_lshl_b32 s22, s22, 3")
    A("s_lshr_b32 s28, s2, 5")
    A("s_add_u32 s22, s22, s28")
    PSC = OPT("WSC", 0) if is_wo else OPT("DSC", 4)
    PG = min(4, OPT("PG", 4))
    if PSC:
        A("s_add_u32 s39, s21, s22")
        A(f"s_and_b32 s39, s39, {PG-1}")
        A(f"s_mul_i32 s39, s39, {PSC//PG}")
    def wdma():
        if not is_wo:
            return [[f"s_add_u32 m0, {s(sWr)}, {s(sM)}", "s_nop 0",
                     f"buffer_load_dwordx4 v6, s[12:15], {s(sGo)} offen{LDF} lds"],
                    [f"buffer_load_dwordx4 v6, s[12:15], {s(sGo)} offen offset:1024{LDF} lds",
                     ] + adv(8192, PSC)]
        return [[f"s_add_u32 m0, {s(sWr)}, {s(sM)}", "s_nop 0",
                 f"buffer_load_dwordx4 v7, s[12:15], {s(sGo)} offen lds"],
                [f"buffer_load_dwordx4 v8, s[12:15], {s(sGo)} offen offset:1024 lds",
                 ] + adv(64*2048, PSC)]
    DX = 0x40000
    ACC = 32
    def acc(f, i): return ACC + (i * 2 + f) * 4
    SET = [48, 80]
    def xf(p, kk, i): return SET[p] + (kk * 2 + i) * 4
    def wf(p, kk, f): return SET[p] + 16 + (kk * 2 + f) * 4
    RES = 240
    NRES = 4 if is_wo else 2
    A("s_lshr_b32 s33, s20, 2")
    A("s_lshl_b32 s34, s22, 1")
    A("s_add_u32 s34, s34, s33")
    A("s_lshl_b32 s34, s34, 7")
    A("s_lshl_b32 s35, s21, 3")
    A("s_add_u32 s34, s34, s35")
    A("s_lshl_b32 s35, s31, 1")
    A("s_add_u32 s34, s34, s35")
    A("s_lshl_b32 s34, s34, 10")
    A("s_lshl_b32 s35, s21, 18")
    A("s_lshl_b32 s36, s31, 16")
    A("s_add_u32 s35, s35, s36")
    A("s_lshl_b32 s36, s22, 7")
    A("s_add_u32 s35, s35, s36")
    A("s_lshl_b32 s36, s33, 6")
    A("s_add_u32 s35, s35, s36")
    A("s_add_u32 s36, s35, 32768")
    srd(A, 16, 6, WS_H, 4*MB)
    srd(A, 48, 44, 0, 4*MB)
    if is_wo:
        srd(A, 12, wp, 0, K*2048)
    else:
        A(f"s_mul_i32 s28, s22, {3584*128}")
        A("s_add_u32 s4, s6, s28")
        A("s_addc_u32 s5, s7, 0")
        srd(A, 12, 4, WS_WD, 3584*128)
    srd(A, 8, 6, ws_x, 2048*K*2)
    def resload():
        if is_wo:
            for i in range(2):
                A(f"buffer_load_dwordx4 {v(RES+4*i,4)}, v9, s[48:51], {s(35+i)} offen")
        else:
            for i in range(2):
                A(f"buffer_load_dwordx4 {v(RES+4*i,4)}, v6, s[16:19], s34 offen offset:{i*1024}{LDF}")
    A("v_lshlrev_b32 v9, 11, v5")
    A("v_and_b32 v15, 1, v2")
    A("v_lshl_add_u32 v9, v15, 5, v9")
    A("v_lshrrev_b32 v15, 1, v2")
    A("v_lshl_add_u32 v9, v15, 4, v9")
    A("s_lshl_b32 s28, s31, 11")
    A("v_add_u32 v10, s28, v6")
    A("v_lshl_add_u32 v11, v2, 2, v3")
    A("v_lshlrev_b32 v11, 7, v11")
    A("v_lshl_add_u32 v11, v4, 3, v11")
    A("v_add_u32 v11, 16384, v11")
    A("v_bfe_u32 v12, v1, 3, 2")
    A("s_lshl_b32 s29, s33, 1")
    A("v_xor_b32 v13, s29, v12")
    A("v_lshl_add_u32 v13, v13, 5, v11")
    A("v_xor_b32 v14, 32, v13")
    A("s_lshr_b32 s32, s21, 1")
    A("s_cmp_lt_u32 s20, 4")
    A(f"s_cbranch_scc1 {name}_A0")
    if is_wo:
        w_swz_voff(A, 7, 2048)
        A(f"v_add_u32 v8, {8*2048-1024}, v7")
        A("s_lshl_b32 s28, s31, 15")
        A("s_lshl_b32 s29, s22, 7")
        A(f"s_add_u32 {s(sGo)}, s28, s29")
    else:
        A(f"s_lshl_b32 {s(sGo)}, s31, 11")
    if PSC: rot_init(A, 64*2048 if is_wo else 8192, PSC)
    A(f"s_lshl_b32 {s(sM)}, s31, 11")
    A(f"s_add_u32 {s(sM)}, {s(sM)}, 16384")
    if not OPT("PUBFIRST", 1):
        A("s_waitcnt vmcnt(0)")
        stamp(A, ph - 1, 4)
    publish(A)
    resload()
    fill_ring(A, R, SLOT, wdma)
    A(f"s_branch {name}_C0")
    A.label(f"{name}_A0")
    A("s_lshr_b32 s28, s31, 1")
    A("s_lshl_b32 s28, s28, 7")
    A("s_lshl_b32 s29, s21, 3")
    A("s_add_u32 s28, s28, s29")
    A("s_and_b32 s29, s31, 1")
    A("s_lshl_b32 s29, s29, 2")
    A("s_add_u32 s28, s28, s29")
    A(f"s_lshl_b32 {s(sGo)}, s28, 10")
    if PSC: rot_init(A, DX, PSC)
    A(f"s_lshl_b32 {s(sM)}, s31, 12")
    if not OPT("PUBFIRST", 1):
        A("s_waitcnt vmcnt(0)")
        stamp(A, ph - 1, 4)
    publish(A)
    resload()
    A.label(f"{name}_C0")
    stamp(A, ph, 0)
    wait_flags(A, ph - 1, 32, 32)
    stamp(A, ph, 1)
    def accinit():
        if is_wo:
            for i in range(2):
                A(f"v_permlane16_swap_b32 {v(RES+4*i)}, {v(RES+4*i+2)}")
                A(f"v_permlane16_swap_b32 {v(RES+4*i+1)}, {v(RES+4*i+3)}")
            A("s_nop 1")
        for i in range(2):
            for f in range(2):
                for h in range(2):
                    src = RES + 4*i + 2*f + h
                    A(f"v_lshlrev_b32 {v(acc(f,i)+2*h)}, 16, {v(src)}")
                    A(f"v_and_b32 {v(acc(f,i)+2*h+1)}, 0xffff0000, {v(src)}")
    def reads(p):
        out = []
        for kk in range(2):
            for f in range(2):
                for t in range(2):
                    out.append([f"ds_read_b64_tr_b16 {v(wf(p,kk,f)+2*t,2)}, {v(17+f)} offset:{kk*4096+t*2048}"])
            for i in range(2):
                out.append([f"ds_read_b128 {v(xf(p,kk,i),4)}, v16 offset:{kk*8192+i*1024}"])
        return out
    def addr_upd():
        return [f"v_add_u32 v16, {s(sRd)}, v10", f"v_add_u32 v17, {s(sRd)}, v13", f"v_add_u32 v18, {s(sRd)}, v14"]
    def mfmas(p):
        return [mf16(acc(f, i), wf(p, kk, f), xf(p, kk, i)) for kk in range(2) for f in range(2) for i in ((0, 1) if (f == 0 or not OPT("SNAKE", 1)) else (1, 0))]
    A("s_cmp_ge_u32 s20, 4")
    A(f"s_cbranch_scc1 {name}_B")
    fill_ring(A, R, SLOT, lambda: xdma(DX, PSC), bar=True)
    A(f"s_waitcnt vmcnt({4*R})")
    accinit()
    gemm_loop(A, ph, f"{name}_loopA", "A", R, SLOT, NST, 4, mfmas, reads, lambda: xdma(DX, PSC), addr_upd,
              {6: code_touch_list(A, f"{name}_epi", 251, 252), ('x', 5): 1, ('x', 4): 1, ('x', 3): 1, ('x', 2): 1} if OPT("CTW", 1) else None)
    A(f"s_branch {name}_epi")
    A.label(f"{name}_B")
    A(f"s_waitcnt vmcnt({2*R})")
    accinit()
    fill_ring(A, R, SLOT, None, bar=True)
    gemm_loop(A, ph, f"{name}_loopB", "B", R, SLOT, NST, 2, mfmas, reads, wdma, addr_upd)
    A.label(f"{name}_epi")
    T = 112
    for i in range(2):
        for f in range(2):
            for h in range(2):
                A(f"v_cvt_pk_bf16_f32 {v(T+4*i+2*f+h)}, {v(acc(f,i)+2*h)}, {v(acc(f,i)+2*h+1)}")
    if is_wo:
        for i in range(2):
            A(f"buffer_store_dwordx4 {v(T+4*i,4)}, v6, s[16:19], s34 offen offset:{i*1024}{STF}")
        for i in range(2):
            sm, sq = 20 + 2*i, 21 + 2*i
            b = acc(0, i)
            A(f"v_add_f32 {v(sm)}, {v(b)}, {v(b+1)}")
            A(f"v_mul_f32 {v(sq)}, {v(b)}, {v(b)}")
            A(f"v_fmac_f32 {v(sq)}, {v(b+1)}, {v(b+1)}")
            for j in range(2, 8):
                A(f"v_add_f32 {v(sm)}, {v(sm)}, {v(b+j)}")
                A(f"v_fmac_f32 {v(sq)}, {v(b+j)}, {v(b+j)}")
        reduce_rows16_32(A, [20, 21, 22, 23], [24, 25, 26, 27])
        A("s_lshl_b32 s28, s31, 9")
        A("s_lshl_b32 s29, s33, 3")
        A("s_add_u32 s28, s28, s29")
        A(f"s_add_u32 s28, s28, {STATS_LDS}")
        A("v_lshlrev_b32 v24, 4, v5")
        A("v_add_u32 v24, s28, v24")
        A("ds_write_b64 v24, v[20:21]")
        A("ds_write_b64 v24, v[22:23] offset:256")
        A(f"s_load_dwordx4 s[44:47], s[0:1], {KA_WG}")
        A("s_waitcnt lgkmcnt(0)")
        A("s_barrier")
        A("s_cmp_ge_u32 s20, 2")
        A(f"s_cbranch_scc1 {name}_end2")
        A("v_lshlrev_b32 v24, 4, v0")
        A(f"v_add_u32 v24, {STATS_LDS}, v24")
        A("ds_read_b128 v[20:23], v24")
        srd(A, 8, 6, WS_ST, 2048*128)
        A("v_lshlrev_b32 v24, 3, v0")
        A("s_lshl_b32 s28, s21, 10")
        A("s_lshl_b32 s29, s22, 14")
        A("s_add_u32 s28, s28, s29")
        A("s_waitcnt lgkmcnt(0)")
        A("v_add_f32 v20, v20, v22")
        A("v_add_f32 v21, v21, v23")
        A(f"buffer_store_dwordx2 v[20:21], v24, s[8:11], s28 offen{STF}")
        A.label(f"{name}_end2")
        A("s_and_b32 s38, s21, 1")
        A("s_lshl_b32 s38, s38, 4")
        A("s_add_u32 s38, s38, s22")
        pub_prep(A, ph, 32, 38)
    else:
        A("s_nop 1")
        for i in range(2):
            A(f"v_permlane16_swap_b32 {v(T+4*i)}, {v(T+4*i+2)}")
            A(f"v_permlane16_swap_b32 {v(T+4*i+1)}, {v(T+4*i+3)}")
        A("s_nop 1")
        for i in range(2):
            A(f"buffer_store_dwordx4 {v(T+4*i,4)}, v9, s[48:51], {s(35+i)} offen{OUTF}")
        if PROF:
            A("s_waitcnt vmcnt(0)")
            stamp(A, ph, 4)

def ph_gu(A):
    ph = 4
    R, SLOT, NST = 5, 30720, 32
    SL = R * SLOT
    A("s_and_b32 s21, s2, 1")
    A("s_lshl_b32 s21, s21, 2")
    A("s_bfe_u32 s28, s2, 0x20003")
    A("s_add_u32 s21, s21, s28")
    A("s_bfe_u32 s22, s2, 0x20001")
    A("s_lshl_b32 s22, s22, 3")
    A("s_lshr_b32 s28, s2, 5")
    A("s_add_u32 s22, s22, s28")
    def wdma():
        return [[f"s_add_u32 m0, {s(sWr)}, {s(sM)}", "s_mov_b64 exec, s[34:35]",
                 f"buffer_load_dwordx4 v7, s[12:15], {s(sGo)} offen lds",
                 f"buffer_load_dwordx4 v8, s[12:15], {s(sGo)} offen offset:896 lds",
                 f"s_add_u32 m0, m0, 7168", "s_nop 0",
                 f"buffer_load_dwordx4 v7, s[16:19], {s(sGo)} offen lds",
                 f"buffer_load_dwordx4 v8, s[16:19], {s(sGo)} offen offset:896 lds",
                 "s_mov_b64 exec, -1",
                 f"s_add_u32 {s(sGo)}, {s(sGo)}, {32*7168}"]]
    srd(A, 12, 44, 0, 7*MB)
    srd(A, 16, 46, 0, 7*MB)
    srd(A, 8, 6, WS_H, 4*MB)
    A("s_cmp_lt_u32 s20, 4")
    A("s_cbranch_scc1 gu_A0")
    if OPT("CT", 1) >= 2: code_touch(A, 255)
    A("v_mul_u32_u24 v7, 4682, v1")
    A("v_lshrrev_b32 v7, 16, v7")
    A("v_mul_u32_u24 v8, 14, v7")
    A("v_sub_u32 v8, v1, v8")
    A("v_mul_u32_u24 v7, 7168, v7")
    A("v_lshl_add_u32 v7, v8, 4, v7")
    A(f"v_add_u32 v8, {4*7168-896}, v7")
    A("s_mov_b32 s34, -1")
    A("s_mov_b32 s35, 0x00ffffff")
    A(f"s_mul_i32 s28, s31, {8*7168}")
    A("s_mul_i32 s29, s22, 224")
    A(f"s_add_u32 {s(sGo)}, s28, s29")
    A(f"s_mul_i32 {s(sM)}, s31, 1792")
    A(f"s_add_u32 {s(sM)}, {s(sM)}, 16384")
    GE = OPT("GE", 0)
    fill_ring(A, R, SLOT, wdma, 0, GE)
    if not OPT("PUBFIRST", 1):
        A(f"s_waitcnt vmcnt({4*GE})")
        stamp(A, 3, 4)
    publish(A)
    fill_ring(A, R, SLOT, wdma, GE, R)
    A("s_branch gu_C0")
    A.label("gu_A0")
    A("s_lshl_b32 s28, s21, 4")
    A("s_lshl_b32 s29, s31, 2")
    A("s_add_u32 s28, s28, s29")
    A(f"s_lshl_b32 {s(sGo)}, s28, 10")
    A(f"s_lshl_b32 {s(sM)}, s31, 12")
    for i in range(32, 152): A(f"v_mov_b32 {v(i)}, 0")
    if not OPT("PUBFIRST", 1):
        A("s_waitcnt vmcnt(0)")
        stamp(A, 3, 4)
    publish(A)
    A.label("gu_C0")
    srd(A, 44, 6, WS_ST, 2048*128)
    srd(A, 48, 6, WS_CS, 4*7168*4)
    srd(A, 52, 6, WS_HACT, 2048*3584*2)
    A("s_and_b32 s36, s22, 1")
    A("s_cmp_eq_u32 s36, 1")
    A("s_cselect_b32 s37, 3, 0")
    A("s_cselect_b32 s38, 1, 4")
    A("s_cselect_b32 s39, 0, 6")
    A("s_cmp_ge_u32 s20, 4")
    A("s_cselect_b32 s37, s38, s37")
    A("s_lshl_b32 s28, s31, 12")
    A("v_add_u32 v10, s28, v6")
    A("v_lshl_add_u32 v11, v2, 2, v3")
    A("v_mul_u32_u24 v11, 224, v11")
    A("v_lshl_add_u32 v11, v4, 3, v11")
    A("v_add_u32 v11, 16384, v11")
    A("s_lshl_b32 s28, s39, 5")
    A("v_add_u32 v12, s28, v11")
    A("s_lshl_b32 s28, s37, 5")
    A("v_add_u32 v11, s28, v11")
    A("v_and_b32 v13, 255, v0")
    A("v_lshlrev_b32 v14, 3, v13")
    A("s_lshl_b32 s32, s21, 11")
    A("v_lshlrev_b32 v15, 2, v13")
    A(f"v_add_u32 v9, {(3584-112)*4}, v15")
    A("v_cmp_gt_u32 vcc, 112, v13")
    A("v_mov_b32 v19, 0x7fffffff")
    A("s_mul_i32 s33, s22, 448")
    A("v_cndmask_b32 v15, v9, v15, vcc")
    A("v_cmp_gt_u32 vcc, 224, v13")
    A("s_nop 1")
    A("v_cndmask_b32 v15, v19, v15, vcc")
    A("s_cmp_lt_u32 s20, 4")
    A("s_cbranch_scc1 gu_Z")
    for i in range(32, 120): A(f"v_mov_b32 {v(i)}, 0")
    A.label("gu_Z")
    stamp(A, ph, 0)
    wait_flags(A, 3, 21, 32, also_all=2)
    for i in range(24, 32): A(f"v_mov_b32 {v(i)}, 0")
    stamp(A, ph, 1)
    def body(nf, tag):
        def wsrc(j):
            if nf == 3 and j == 2: return 18, 0
            return 17, j * 32
        ACC = 24
        def acc(j, gu, i): return ACC + ((j * 2 + gu) * 4 + i) * 4
        NS = 16 + nf * 8
        SET = [ACC + nf * 32, ACC + nf * 32 + NS]
        def xf(p, i): return SET[p] + i * 4
        def wf(p, j, gu): return SET[p] + 16 + (j * 2 + gu) * 4
        if tag == "A":
            fill_ring(A, R, SLOT, lambda: xdma(0x20000), bar=True)
        else:
            fill_ring(A, R, SLOT, None, bar=True)
        hook = None
        if tag == "A" and OPT("CTG", 1):
            hook = {5: code_touch_list(A, "gu_epiA", 251, 252), ('x', 4): 1, ('x', 3): 1, ('x', 2): 1}
        if tag == "B":
            h1 = []
            for j in range(16):
                h1 += [f"buffer_load_dwordx2 {v(200+2*j,2)}, v14, s[44:47], s32 offen{LDF}", "s_add_u32 s32, s32, 16384"]
            for j in range(4):
                h1 += [f"buffer_load_dword {v(232+j)}, v15, s[48:51], s33 offen{LDF}", f"s_add_u32 s33, s33, {7168*4}"]
            hook = ["s_waitcnt vmcnt(0)"]
            for j in range(1, 8):
                hook.append(f"v_pk_add_f32 v[200:201], v[200:201], {v(200+2*j,2)}")
                hook.append(f"v_pk_add_f32 v[216:217], v[216:217], {v(216+2*j,2)}")
            hook += ["v_pk_add_f32 v[200:201], v[200:201], v[216:217]",
                "v_add_f32 v232, v232, v233", "v_add_f32 v234, v234, v235", "v_add_f32 v232, v232, v234",
                f"v_mul_f32 v200, {f32(-1/1024)}, v200", f"v_mul_f32 v201, {f32(1/1024)}, v201",
                "v_fma_f32 v201, -v200, v200, v201", "v_max_f32 v201, 0, v201", f"v_add_f32 v201, {f32(1e-5)}, v201",
                "v_rsq_f32 v202, v201", "v_sqrt_f32 v203, v201", "v_mov_b32 v201, v200",
                f"v_mul_f32 v202, {f32(-LOG2E)}, v202",
                "v_lshlrev_b32 v14, 4, v13", f"v_add_u32 v14, {SL}, v14", "ds_write_b128 v14, v[200:203]",
                "v_lshlrev_b32 v15, 2, v13", f"v_add_u32 v15, {SL+4096}, v15", "ds_write_b32 v15, v232"]
            hook = {5: h1, 3: hook, ('x', 4): 20, ('x', 3): 20}
        def reads(p):
            out = []
            for i in range(4):
                out.append([f"ds_read_b128 {v(xf(p,i),4)}, v16 offset:{i*1024}"])
            for j in range(nf):
                ar, imm = wsrc(j)
                for gu in range(2):
                    for t in range(2):
                        out.append([f"ds_read_b64_tr_b16 {v(wf(p,j,gu)+2*t,2)}, {v(ar)} offset:{imm+gu*7168+t*3584}"])
            return out
        def addr_upd():
            o = [f"v_add_u32 v16, {s(sRd)}, v10", f"v_add_u32 v17, {s(sRd)}, v11"]
            if nf == 3: o.append(f"v_add_u32 v18, {s(sRd)}, v12")
            return o
        def mfmas(p):
            return [mf16(acc(j, gu, i), wf(p, j, gu), xf(p, i)) for j in range(nf) for gu in range(2) for i in (range(4) if (gu == 0 or not OPT("SNAKE", 1)) else range(3, -1, -1))]
        gemm_loop(A, ph, f"gu_loop{tag}", tag, R, SLOT, NST, 4, mfmas, reads, (lambda: xdma(0x20000)) if tag == "A" else wdma, addr_upd, hook)
        A.label(f"gu_epi{tag}")
        A(f"s_load_dwordx2 s[44:45], s[0:1], {KA_OUT}")
        A(f"s_load_dwordx2 s[46:47], s[0:1], {KA_DBG}")
        STR = 232
        CSR = 200
        A("s_lshl_b32 s28, s31, 10")
        A(f"s_add_u32 s28, s28, {SL}")
        A("v_lshlrev_b32 v14, 4, v5")
        A("v_add_u32 v14, s28, v14")
        for i in range(4):
            A(f"ds_read_b128 {v(STR+4*i,4)}, v14 offset:{i*256}")
        A("v_lshlrev_b32 v9, 4, v2")
        A("s_lshl_b32 s28, s37, 6")
        A(f"s_add_u32 s28, s28, {SL+4096}")
        A("v_add_u32 v14, s28, v9")
        A("s_lshl_b32 s28, s39, 6")
        A(f"s_add_u32 s28, s28, {SL+4096}")
        A("v_add_u32 v15, s28, v9")
        for j in range(nf):
            for gu in range(2):
                ar, imm = (15, 0) if (nf == 3 and j == 2) else (14, j * 64)
                A(f"ds_read_b128 {v(CSR+(j*2+gu)*4,4)}, {v(ar)} offset:{imm+gu*448}")
        A("s_mul_i32 s28, s22, 7")
        A("s_add_u32 s29, s28, s37")
        A("s_lshr_b32 s29, s29, 1")
        A("s_lshl_b32 s29, s29, 17")
        A("s_lshl_b32 s33, s21, 4")
        A("s_lshl_b32 s36, s31, 2")
        A("s_add_u32 s33, s33, s36")
        A("s_lshl_b32 s33, s33, 10")
        A("s_add_u32 s56, s29, s33")
        A("s_add_u32 s57, s56, 0x20000")
        A("s_add_u32 s29, s28, s39")
        A("s_and_b32 s36, s29, 1")
        A("s_lshl_b32 s36, s36, 3")
        A("s_lshr_b32 s29, s29, 1")
        A("s_lshl_b32 s29, s29, 17")
        A("s_add_u32 s58, s29, s33")
        A("s_add_u32 s58, s58, s36")
        T = SET[0]
        tix = 0
        A("s_waitcnt lgkmcnt(0)")
        for jp in range(2):
            js = [2*jp, 2*jp+1] if 2*jp+1 < nf else [2*jp]
            for i in range(4):
                dst = T + 4 * (tix % 8); tix += 1
                c1 = v(STR+4*i+2, 2)
                nm_ = v(STR+4*i, 2)
                for j in js:
                    for gu in range(2):
                        a_ = acc(j, gu, i)
                        for h in range(2): A(f"v_pk_fma_f32 {v(a_+2*h,2)}, {v(CSR+(j*2+gu)*4+2*h,2)}, {nm_}, {v(a_+2*h,2)}")
                for j in js:
                    g_ = acc(j, 0, i)
                    for h in range(2): A(f"v_pk_mul_f32 {v(g_+2*h,2)}, {v(g_+2*h,2)}, {c1} op_sel_hi:[1,0]")
                for j in js:
                    g_ = acc(j, 0, i)
                    for r in range(4): A(f"v_exp_f32 {v(g_+r)}, {v(g_+r)}")
                if len(js) == 1: A("s_nop 0")
                for j in js:
                    g_ = acc(j, 0, i)
                    for h in range(2): A(f"v_pk_fma_f32 {v(g_+2*h,2)}, {v(g_+2*h,2)}, {c1}, {c1} op_sel:[0,1,1] op_sel_hi:[1,1,1]")
                for j in js:
                    g_ = acc(j, 0, i)
                    for r in range(4): A(f"v_rcp_f32 {v(g_+r)}, {v(g_+r)}")
                if len(js) == 1: A("s_nop 0")
                for j in js:
                    g_, u_ = acc(j, 0, i), acc(j, 1, i)
                    for h in range(2): A(f"v_pk_mul_f32 {v(u_+2*h,2)}, {v(u_+2*h,2)}, {v(g_+2*h,2)}")
                for jj, j in enumerate(js):
                    u_ = acc(j, 1, i)
                    for h in range(2):
                        A(f"v_cvt_pk_bf16_f32 {v(dst+2*jj+h)}, {v(u_+2*h)}, {v(u_+2*h+1)}")
                if len(js) == 2:
                    A(f"buffer_store_dwordx4 {v(dst,4)}, v6, s[52:55], {s(56+jp)} offen offset:{i*1024}{STF}")
                else:
                    A(f"buffer_store_dwordx2 {v(dst,2)}, v6, s[52:55], s58 offen offset:{i*1024}{STF}")
    A("s_cmp_ge_u32 s20, 4")
    A("s_cbranch_scc1 gu_B")
    body(4, "A")
    A("s_branch gu_end")
    A.label("gu_B")
    body(3, "B")
    A.label("gu_end")
    pub_prep(A, ph, 21, 22)


def ph_down2(A):
    ph = 5
    R, SLOT, NST = OPT("DR", 5), 32768, 28
    PSC = OPT("D2SC", 0)
    A("s_and_b32 s21, s2, 3")
    A("s_lshl_b32 s21, s21, 2")
    A("s_bfe_u32 s28, s2, 0x20003")
    A("s_add_u32 s21, s21, s28")
    A("s_lshr_b32 s22, s2, 5")
    A("s_bfe_u32 s26, s2, 0x10002")
    A("s_and_b32 s32, s20, 1")
    A("s_lshr_b32 s33, s20, 1")
    if PSC:
        A("s_add_u32 s39, s21, s22")
        A("s_and_b32 s39, s39, 3")
        A(f"s_mul_i32 s39, s39, {PSC//4}")
    srd(A, 12, 6, WS_WD, 7*MB)
    srd(A, 8, 6, WS_HACT, 2048*3584*2)
    wd = lambda: xdma(8192, PSC, 's[12:15]')
    xd = lambda: xdma(0x40000, PSC)
    A("s_cmp_lt_u32 s20, 4")
    A("s_cbranch_scc1 d2_A0")
    A("s_lshl_b32 s28, s22, 1")
    A("s_lshr_b32 s29, s31, 1")
    A("s_add_u32 s28, s28, s29")
    A(f"s_mul_i32 s28, s28, {3584*128}")
    A(f"s_mul_i32 s29, s26, {1792*128}")
    A("s_add_u32 s28, s28, s29")
    A("s_and_b32 s29, s31, 1")
    A("s_lshl_b32 s29, s29, 12")
    A(f"s_add_u32 {s(sGo)}, s28, s29")
    if PSC: rot_init(A, 8192, PSC)
    A(f"s_lshl_b32 {s(sM)}, s31, 12")
    A(f"s_add_u32 {s(sM)}, {s(sM)}, 16384")
    srd(A, 52, 46, 0, 256)
    A("v_mov_b32 v20, 0")
    A("buffer_load_dwordx2 v[248:249], v20, s[52:55], 0 offen sc1")
    fill_ring(A, R, SLOT, wd)
    A("s_branch d2_C0")
    A.label("d2_A0")
    A("s_mul_i32 s28, s26, 56")
    A("s_lshr_b32 s29, s31, 1")
    A("s_add_u32 s28, s28, s29")
    A("s_lshl_b32 s28, s28, 7")
    A("s_lshl_b32 s29, s21, 3")
    A("s_add_u32 s28, s28, s29")
    A("s_and_b32 s29, s31, 1")
    A("s_lshl_b32 s29, s29, 2")
    A("s_add_u32 s28, s28, s29")
    A(f"s_lshl_b32 {s(sGo)}, s28, 10")
    if PSC: rot_init(A, 0x40000, PSC)
    A(f"s_lshl_b32 {s(sM)}, s31, 12")
    A.label("d2_C0")
    ACC = 32
    def acc(f, i): return ACC + (i * 2 + f) * 4
    SET = [64, 112]
    def xf(p, kk, i): return SET[p] + (kk * 4 + i) * 4
    def wf(p, kk, f): return SET[p] + 32 + (kk * 2 + f) * 4
    RES = 240
    A("s_lshl_b32 s34, s22, 2")
    A("s_add_u32 s34, s34, s33")
    A("s_lshl_b32 s34, s34, 7")
    A("s_lshl_b32 s35, s21, 3")
    A("s_lshl_b32 s36, s32, 2")
    A("s_add_u32 s35, s35, s36")
    A("s_lshl_b32 s36, s26, 1")
    A("s_add_u32 s35, s35, s36")
    A("s_add_u32 s34, s34, s35")
    A("s_lshl_b32 s34, s34, 10")
    A("s_lshl_b32 s35, s35, 15")
    A("s_lshl_b32 s36, s22, 8")
    A("s_add_u32 s35, s35, s36")
    A("s_lshl_b32 s36, s33, 6")
    A("s_add_u32 s35, s35, s36")
    A("s_add_u32 s36, s35, 32768")
    srd(A, 16, 6, WS_H, 4*MB)
    srd(A, 48, 44, 0, 4*MB)
    A("v_lshlrev_b32 v9, 11, v5")
    A("v_and_b32 v15, 1, v2")
    A("v_lshl_add_u32 v9, v15, 5, v9")
    A("v_lshrrev_b32 v15, 1, v2")
    A("v_lshl_add_u32 v9, v15, 4, v9")
    A("s_lshl_b32 s28, s32, 12")
    A("s_lshl_b32 s29, s26, 11")
    A("s_add_u32 s3, s28, s29")
    A("v_add_u32 v10, s3, v6")
    A("s_xor_b32 s3, s3, 2048")
    A("v_add_u32 v15, s3, v6")
    A("v_lshl_add_u32 v11, v2, 2, v3")
    A("v_lshlrev_b32 v11, 7, v11")
    A("v_lshl_add_u32 v11, v4, 3, v11")
    A("s_lshr_b32 s28, s33, 1")
    A("s_lshl_b32 s28, s28, 13")
    A("s_add_u32 s28, s28, 16384")
    A("v_add_u32 v11, s28, v11")
    A("v_bfe_u32 v12, v1, 3, 2")
    A("s_and_b32 s29, s33, 1")
    A("s_lshl_b32 s29, s29, 1")
    A("v_xor_b32 v13, s29, v12")
    A("v_lshl_add_u32 v13, v13, 5, v11")
    A("v_xor_b32 v14, 32, v13")
    for i in range(16): A(f"v_mov_b32 {v(acc(0,2)+i)}, 0")
    A("s_lshr_b32 s40, s21, 1")
    A("s_lshl_b32 s41, s26, 7")
    stamp(A, ph, 0)
    wait_flags(A, 4, 40, 16, soff=41)
    stamp(A, ph, 1)
    for i in range(2):
        A(f"buffer_load_dwordx4 {v(RES+4*i,4)}, v6, s[16:19], s34 offen offset:{i*1024}{LDF}")
    def accinit():
        for i in range(2):
            for f in range(2):
                for h in range(2):
                    src = RES + 4*i + 2*f + h
                    A(f"v_lshlrev_b32 {v(acc(f,i)+2*h)}, 16, {v(src)}")
                    A(f"v_and_b32 {v(acc(f,i)+2*h+1)}, 0xffff0000, {v(src)}")
        A("s_movk_i32 s42, 0xfff")
        A("v_mov_b32 v244, v248")
        A("v_lshrrev_b32 v245, 12, v248")
        A("v_alignbit_b32 v246, v249, v248, 24")
        A("v_lshrrev_b32 v247, 4, v249")
    def reads(p):
        out = []
        for kk in range(2):
            for f in range(2):
                for t in range(2):
                    out.append([f"ds_read_b64_tr_b16 {v(wf(p,kk,f)+2*t,2)}, {v(17+f)} offset:{kk*4096+t*2048}"])
            for i in range(4):
                out.append([f"ds_read_b128 {v(xf(p,kk,i),4)}, {v(16 if i < 2 else 19)} offset:{kk*8192+(i&1)*1024}"])
        return out
    def addr_upd():
        return [f"v_add_u32 v16, {s(sRd)}, v10", f"v_add_u32 v17, {s(sRd)}, v13", f"v_add_u32 v18, {s(sRd)}, v14", f"v_add_u32 v19, {s(sRd)}, v15"]
    def mfmas(p):
        return [mf16(acc(f, i), wf(p, kk, f), xf(p, kk, i)) for ii in (2, 0) for kk in range(2) for f in range(2) for i in (ii, ii + 1)]
    A("s_cmp_ge_u32 s20, 4")
    A("s_cbranch_scc1 d2_B")
    fill_ring(A, R, SLOT, xd, bar=True)
    A(f"s_waitcnt vmcnt({4*R})")
    accinit()
    gemm_loop(A, ph, "d2_loopA", "A", R, SLOT, NST, 4, mfmas, reads, xd, addr_upd,
              {5: code_touch_list(A, "d2_epi", 251, 252), ('x', 4): 1, ('x', 3): 1, ('x', 2): 1} if OPT("CTD", 1) else None)
    A("s_branch d2_epi")
    A.label("d2_B")
    fill_ring(A, R, SLOT, None, bar=True)
    A("s_waitcnt vmcnt(0)")
    accinit()
    gemm_loop(A, ph, "d2_loopB", "B", R, SLOT, NST, 4, mfmas, reads, wd, addr_upd)
    A.label("d2_epi")
    srd(A, 8, 6, WS_Q if OPT('XBQ', 0) else WS_XB, 9*MB)
    A("s_lshl_b32 s28, s2, 3")
    A("s_add_u32 s28, s28, s20")
    A("s_xor_b32 s29, s28, 32")
    A("s_lshl_b32 s40, s28, 12")
    A("s_lshl_b32 s41, s29, 12")
    XTAG = OPT("XTAG", 0)
    if XTAG:
        for j in range(4):
            for r in range(4):
                A(f"v_bfi_b32 {v(acc(0,2)+4*j+r)}, s42, {v(244+r)}, {v(acc(0,2)+4*j+r)}")
            A(f"buffer_store_dwordx4 {v(acc(0,2)+4*j,4)}, v6, s[8:11], s40 offen offset:{j*1024} sc1")
        A(f"s_mov_b32 s28, {SPIN_MAX}")
        if OPT("XW", 1): A("s_waitcnt vmcnt(0)")
        if OPT("XDBG", 0): stamp(A, ph, 0)
        A.label("d2_poll")
        for j in range(4):
            A(f"buffer_load_dwordx4 {v(64+4*j,4)}, v6, s[8:11], s41 offen offset:{j*1024} sc1")
        for j in range(4):
            A(f"s_waitcnt vmcnt({3-j})")
            for r in range(4):
                A(f"v_xor_b32 {v(80+4*j+r)}, {v(244+r)}, {v(64+4*j+r)}")
            A(f"v_or3_b32 {v(80+4*j)}, {v(80+4*j)}, {v(81+4*j)}, {v(82+4*j)}")
            if j: A(f"v_or3_b32 {v(80+4*j)}, {v(80+4*j)}, {v(83+4*j)}, {v(76+4*j)}")
            else: A(f"v_or_b32 {v(80)}, {v(80)}, {v(83)}")
        A("v_and_b32 v92, s42, v92")
        A("v_cmp_ne_u32 vcc, 0, v92")
        A("s_nop 1")
        A("s_cmp_eq_u64 vcc, 0")
        A("s_cbranch_scc1 d2_got")
        A("s_sleep 1")
        A("s_sub_u32 s28, s28, 1")
        A("s_cmp_lg_u32 s28, 0")
        A("s_cbranch_scc1 d2_poll")
        A.label("d2_got")
        if OPT("XDBG", 0): stamp(A, ph, 1)
    else:
        for j in range(4):
            A(f"buffer_store_dwordx4 {v(acc(0,2)+4*j,4)}, v6, s[8:11], s40 offen offset:{j*1024} sc1")
        A(f"s_lshl_b32 s42, s28, {OPT('XFS', 7)}")
        A(f"s_add_u32 s42, s42, {8*MB}")
        A(f"s_lshl_b32 s43, s29, {OPT('XFS', 7)}")
        A(f"s_add_u32 s43, s43, {8*MB}")
        A("v_mov_b32 v20, 0")
        A(f"s_mov_b32 s28, {SPIN_MAX}")
        A("s_waitcnt vmcnt(0)")
        if OPT("XDBG", 0): stamp(A, ph, 0)
        A("s_mov_b64 exec, 1")
        A("buffer_store_dwordx2 v[248:249], v20, s[8:11], s42 offen sc1")
        A.label("d2_poll")
        A("buffer_load_dwordx2 v[22:23], v20, s[8:11], s43 offen sc1")
        A("s_waitcnt vmcnt(0)")
        A("v_cmp_ne_u64 vcc, v[248:249], v[22:23]")
        A("s_nop 1")
        A("s_cmp_eq_u64 vcc, 0")
        A("s_cbranch_scc1 d2_got")
        if OPT("XSLEEP", 1): A(f"s_sleep {OPT('XSLEEP', 1)}")
        A("s_sub_u32 s28, s28, 1")
        A("s_cmp_lg_u32 s28, 0")
        A("s_cbranch_scc1 d2_poll")
        A.label("d2_got")
        A("s_mov_b64 exec, -1")
        if OPT("XDBG", 0): stamp(A, ph, 1)
        for j in range(4):
            A(f"buffer_load_dwordx4 {v(64+4*j,4)}, v6, s[8:11], s41 offen offset:{j*1024} sc1")
    T = 112
    for i in range(2):
        if not XTAG: A(f"s_waitcnt vmcnt({2 - 2*i + i})")
        for q in range(4):
            A(f"v_pk_add_f32 {v(ACC+8*i+2*q,2)}, {v(ACC+8*i+2*q,2)}, {v(64+8*i+2*q,2)}")
        for f in range(2):
            for h in range(2):
                A(f"v_cvt_pk_bf16_f32 {v(T+4*i+2*f+h)}, {v(acc(f,i)+2*h)}, {v(acc(f,i)+2*h+1)}")
        A("s_nop 1")
        A(f"v_permlane16_swap_b32 {v(T+4*i)}, {v(T+4*i+2)}")
        A(f"v_permlane16_swap_b32 {v(T+4*i+1)}, {v(T+4*i+3)}")
        A("s_nop 1")
        A(f"buffer_store_dwordx4 {v(T+4*i,4)}, v9, s[48:51], {s(35+i)} offen{OUTF}")
    if PROF:
        A("s_waitcnt vmcnt(0)")
        stamp(A, ph, 4)


def ph_down3(A):
    ph = 5
    R, SLOT = OPT("DR", 5), 32768
    N0 = OPT("N0", 26)
    T = R + (R % 2)
    A("s_and_b32 s21, s2, 3")
    A("s_lshl_b32 s21, s21, 2")
    A("s_bfe_u32 s28, s2, 0x20003")
    A("s_add_u32 s21, s21, s28")
    A("s_lshr_b32 s22, s2, 5")
    A("s_bfe_u32 s26, s2, 0x10002")
    A("s_and_b32 s32, s20, 1")
    A("s_lshr_b32 s33, s20, 1")
    srd(A, 12, 6, WS_WD, 7*MB)
    srd(A, 8, 6, WS_HACT, 2048*3584*2)
    wd = lambda: xdma(8192, 0, 's[12:15]')
    xd = lambda: xdma(0x40000, 0)
    A("s_cmp_lt_u32 s20, 4")
    A("s_cbranch_scc1 d3_A0")
    A("s_lshl_b32 s28, s22, 1")
    A("s_lshr_b32 s29, s31, 1")
    A("s_add_u32 s28, s28, s29")
    A(f"s_mul_i32 s28, s28, {3584*128}")
    A(f"s_mul_i32 s29, s26, {N0*64*128}")
    A("s_add_u32 s28, s28, s29")
    A("s_and_b32 s29, s31, 1")
    A("s_lshl_b32 s29, s29, 12")
    A(f"s_add_u32 {s(sGo)}, s28, s29")
    A(f"s_lshl_b32 {s(sM)}, s31, 12")
    A(f"s_add_u32 {s(sM)}, {s(sM)}, 16384")
    srd(A, 52, 46, 0, 256)
    A("v_mov_b32 v20, 0")
    A("buffer_load_dwordx2 v[248:249], v20, s[52:55], 0 offen sc1")
    fill_ring(A, R, SLOT, wd)
    A("s_branch d3_C0")
    A.label("d3_A0")
    A(f"s_mul_i32 s28, s26, {2*N0}")
    A("s_lshr_b32 s29, s31, 1")
    A("s_add_u32 s28, s28, s29")
    A("s_lshl_b32 s28, s28, 7")
    A("s_lshl_b32 s29, s21, 3")
    A("s_add_u32 s28, s28, s29")
    A("s_and_b32 s29, s31, 1")
    A("s_lshl_b32 s29, s29, 2")
    A("s_add_u32 s28, s28, s29")
    A(f"s_lshl_b32 {s(sGo)}, s28, 10")
    A(f"s_lshl_b32 {s(sM)}, s31, 12")
    A.label("d3_C0")
    ACC = 32
    def acc(f, i): return ACC + (i * 2 + f) * 4
    SET = [64, 112]
    def xf(p, kk, i): return SET[p] + (kk * 4 + i) * 4
    def wf(p, kk, f): return SET[p] + 32 + (kk * 2 + f) * 4
    RES = 224
    A("s_lshl_b32 s34, s22, 2")
    A("s_add_u32 s34, s34, s33")
    A("s_lshl_b32 s34, s34, 7")
    A("s_lshl_b32 s35, s21, 3")
    A("s_lshl_b32 s36, s32, 2")
    A("s_add_u32 s35, s35, s36")
    A("s_add_u32 s34, s34, s35")
    A("s_lshl_b32 s34, s34, 10")
    A("s_lshl_b32 s35, s35, 15")
    A("s_lshl_b32 s36, s22, 8")
    A("s_add_u32 s35, s35, s36")
    A("s_lshl_b32 s36, s33, 6")
    A("s_add_u32 s35, s35, s36")
    A("s_add_u32 s36, s35, 32768")
    A("s_add_u32 s37, s36, 32768")
    A("s_add_u32 s38, s37, 32768")
    srd(A, 16, 6, WS_H, 4*MB)
    A("s_cmp_eq_u32 s26, 0")
    A(f"s_cselect_b32 s18, 0, {4*MB}")
    A(f"s_cselect_b32 s39, {(N0-T)//2}, {(56-N0-T)//2}")
    srd(A, 48, 44, 0, 4*MB)
    A("v_lshlrev_b32 v9, 11, v5")
    A("v_and_b32 v15, 1, v2")
    A("v_lshl_add_u32 v9, v15, 5, v9")
    A("v_lshrrev_b32 v15, 1, v2")
    A("v_lshl_add_u32 v9, v15, 4, v9")
    A("s_lshl_b32 s28, s32, 12")
    A("v_add_u32 v10, s28, v6")
    A("v_lshl_add_u32 v11, v2, 2, v3")
    A("v_lshlrev_b32 v11, 7, v11")
    A("v_lshl_add_u32 v11, v4, 3, v11")
    A("s_lshr_b32 s28, s33, 1")
    A("s_lshl_b32 s28, s28, 13")
    A("s_add_u32 s28, s28, 16384")
    A("v_add_u32 v11, s28, v11")
    A("v_bfe_u32 v12, v1, 3, 2")
    A("s_and_b32 s29, s33, 1")
    A("s_lshl_b32 s29, s29, 1")
    A("v_xor_b32 v13, s29, v12")
    A("v_lshl_add_u32 v13, v13, 5, v11")
    A("v_xor_b32 v14, 32, v13")
    A("s_lshr_b32 s28, s2, 3")
    A("s_lshl_b32 s28, s28, 2")
    A("s_and_b32 s29, s2, 3")
    A("s_add_u32 s28, s28, s29")
    A("s_lshl_b32 s28, s28, 3")
    A("s_add_u32 s28, s28, s20")
    A("s_lshl_b32 s41, s28, 13")
    A("s_add_u32 s42, s41, 4096")
    A("s_lshl_b32 s43, s28, 7")
    A(f"s_add_u32 s43, s43, {8*MB}")
    A("s_lshr_b32 s40, s21, 1")
    stamp(A, ph, 0)
    wait_flags(A, 4, 40, 32)
    stamp(A, ph, 1)
    for i in range(4):
        A(f"buffer_load_dwordx4 {v(RES+4*i,4)}, v6, s[16:19], s34 offen offset:{i*1024}{LDF}")
    def accinit():
        for i in range(4):
            for f in range(2):
                for h in range(2):
                    src = RES + 4*i + 2*f + h
                    A(f"v_lshlrev_b32 {v(acc(f,i)+2*h)}, 16, {v(src)}")
                    A(f"v_and_b32 {v(acc(f,i)+2*h+1)}, 0xffff0000, {v(src)}")
    def reads(p):
        out = []
        for kk in range(2):
            for f in range(2):
                for t in range(2):
                    out.append([f"ds_read_b64_tr_b16 {v(wf(p,kk,f)+2*t,2)}, {v(17+f)} offset:{kk*4096+t*2048}"])
            for i in range(4):
                out.append([f"ds_read_b128 {v(xf(p,kk,i),4)}, v16 offset:{kk*8192+i*1024}"])
        return out
    def addr_upd():
        return [f"v_add_u32 v16, {s(sRd)}, v10", f"v_add_u32 v17, {s(sRd)}, v13", f"v_add_u32 v18, {s(sRd)}, v14"]
    def mfmas(p):
        return [mf16(acc(f, i), wf(p, kk, f), xf(p, kk, i)) for kk in range(2) for f in range(2) for i in range(4)]
    A("s_cmp_ge_u32 s20, 4")
    A("s_cbranch_scc1 d3_B")
    fill_ring(A, R, SLOT, xd, bar=True)
    A(f"s_waitcnt vmcnt({4*R})")
    accinit()
    gemm_loop(A, ph, "d3_loopA", "A", R, SLOT, 28, 4, mfmas, reads, xd, addr_upd, cnt_sgpr=39)
    A("s_branch d3_epi")
    A.label("d3_B")
    fill_ring(A, R, SLOT, None, bar=True)
    A("s_waitcnt vmcnt(0)")
    accinit()
    gemm_loop(A, ph, "d3_loopB", "B", R, SLOT, 28, 4, mfmas, reads, wd, addr_upd, cnt_sgpr=39)
    A.label("d3_epi")
    srd(A, 8, 6, WS_Q, 9*MB)
    A("v_mov_b32 v20, 0")
    A("s_cmp_lg_u32 s26, 0")
    A("s_cbranch_scc1 d3_recv")
    for j in range(8):
        A(f"buffer_store_dwordx4 {v(ACC+4*j,4)}, v6, s[8:11], {s(41 + j//4)} offen offset:{(j%4)*1024} sc1")
    A("s_waitcnt vmcnt(0)")
    A("s_mov_b64 exec, 1")
    A("buffer_store_dwordx2 v[248:249], v20, s[8:11], s43 offen sc1")
    A("s_mov_b64 exec, -1")
    A("s_branch d3_end")
    A.label("d3_recv")
    A(f"s_mov_b32 s28, {SPIN_MAX}")
    A("s_mov_b64 exec, 1")
    A.label("d3_poll")
    A("buffer_load_dwordx2 v[22:23], v20, s[8:11], s43 offen sc1")
    A("s_waitcnt vmcnt(0)")
    A("v_cmp_ne_u64 vcc, v[248:249], v[22:23]")
    A("s_nop 1")
    A("s_cmp_eq_u64 vcc, 0")
    A("s_cbranch_scc1 d3_got")
    A("s_sleep 1")
    A("s_sub_u32 s28, s28, 1")
    A("s_cmp_lg_u32 s28, 0")
    A("s_cbranch_scc1 d3_poll")
    A.label("d3_got")
    A("s_mov_b64 exec, -1")
    for j in range(8):
        A(f"buffer_load_dwordx4 {v(64+4*j,4)}, v6, s[8:11], {s(41 + j//4)} offen offset:{(j%4)*1024} sc1")
    TT = 112
    for i in range(4):
        A(f"s_waitcnt vmcnt({6 - 2*i + i})")
        for q in range(4):
            A(f"v_pk_add_f32 {v(ACC+8*i+2*q,2)}, {v(ACC+8*i+2*q,2)}, {v(64+8*i+2*q,2)}")
        for f in range(2):
            for h in range(2):
                A(f"v_cvt_pk_bf16_f32 {v(TT+4*i+2*f+h)}, {v(acc(f,i)+2*h)}, {v(acc(f,i)+2*h+1)}")
        A("s_nop 1")
        A(f"v_permlane16_swap_b32 {v(TT+4*i)}, {v(TT+4*i+2)}")
        A(f"v_permlane16_swap_b32 {v(TT+4*i+1)}, {v(TT+4*i+3)}")
        A("s_nop 1")
        A(f"buffer_store_dwordx4 {v(TT+4*i,4)}, v9, s[48:51], {s(35+i)} offen{OUTF}")
    A.label("d3_end")
    if PROF:
        A("s_waitcnt vmcnt(0)")
        stamp(A, ph, 4)
```

```python
import sys, math, os, struct
from asmlib import *

MB = 1 << 20
WS_XN, WS_Q, WS_K, WS_VT, WS_O, WS_H, WS_ST, WS_CS, WS_FL, WS_HACT = 0, 4*MB, 8*MB, 12*MB, 16*MB, 20*MB, 24*MB, 25*MB, 26*MB, 32*MB
if int(os.environ.get('HACT0', '1')): WS_HACT = 0
WS_DBG = 48*MB
WS_XB = 72*MB
WS_WD = 64*MB
KA_X, KA_WQKV, KA_WO, KA_BX, KA_WG, KA_WU, KA_WD, KA_OUT, KA_DBG, KA_WS = 0, 8, 16, 24, 32, 40, 48, 56, 64, 72
LOG2E = math.log2(math.e)
QSCALE = LOG2E / math.sqrt(32.0)
def f32(x): return hex(struct.unpack("<I", struct.pack("<f", x))[0])
def OPT(name, default): return int(os.environ.get(name, str(default)))
def SOPT(name, default): return os.environ.get(name, default)
PROF = OPT("PROF", 0)
STF = " sc1"
LDF = SOPT("LDF", " sc1")
OUTF = SOPT("OUTF", "")
NAME = "sequential_preLN__mha_block__glu_gated_glu__prompt_kernel"

sNON = 62
def stamp(A, ph, i):
    if not PROF: return
    A("s_memrealtime s[64:65]")
    A("s_waitcnt lgkmcnt(0)")
    A(f"s_mov_b32 {s(66+ph*6+i)}, s64")
def cyc(A, ph, end):
    if not PROF: return
    A("s_memtime s[64:65]")
    A("s_waitcnt lgkmcnt(0)")
    if not end: A(f"s_mov_b32 {s(66+ph*6+5)}, s64")
    else: A(f"s_sub_u32 {s(66+ph*6+5)}, s64, {s(66+ph*6+5)}")
def stamp_flush(A):
    if not PROF: return
    if PROF == 2:
        A(f"s_load_dwordx2 s[4:5], s[0:1], {KA_DBG}")
        A("s_waitcnt lgkmcnt(0)")
        srd(A, 8, 4, 0, 256)
        A(f"s_cmp_lg_u32 s2, {OPT('DBGWG', 0)}")
        A("s_cbranch_scc1 the_end")
        A("s_cmp_lg_u32 s20, 0")
        A("s_cbranch_scc1 the_end")
        A("s_mov_b64 exec, 1")
        A("v_mov_b32 v0, 0")
        sel = [(0,3),(0,4),(1,1),(1,2),(1,3),(2,2),(2,3),(3,2),(3,3),(4,2),(4,3),(5,2),(5,3),(5,4)]
        for i, (ph, j) in enumerate(sel):
            A(f"s_sub_u32 s3, {s(66+ph*6+j)}, s66")
            A(f"v_mov_b32 {v(1+i)}, s3")
            A(f"buffer_store_dword {v(1+i)}, v0, s[8:11], 0 offen offset:{8+4*i}")
        return
    A("s_mov_b64 exec, 1")
    srd(A, 8, 6, WS_DBG, 16*MB)
    A("s_lshl_b32 s3, s2, 3")
    A("s_add_u32 s3, s3, s20")
    A("s_lshl_b32 s3, s3, 8")
    A("v_mov_b32 v0, 0")
    for i in range(36):
        A(f"v_mov_b32 {v(1+i)}, {s(66+i)}")
    for i in range(36):
        A(f"buffer_store_dword {v(1+i)}, v0, s[8:11], s3 offen offset:{4*i}")

def mf16(d, A_, B_, c=None):
    c = v(d, 4) if c is None else c
    return f"v_mfma_f32_16x16x32_bf16 {v(d,4)}, {v(A_,4)}, {v(B_,4)}, {c}"
def mf32(d, A_, B_, c=None):
    c = v(d, 16) if c is None else c
    return f"v_mfma_f32_32x32x16_bf16 {v(d,16)}, {v(A_,4)}, {v(B_,4)}, {c}"
def reduce_rows16_32(A, xs, ts):
    for op in ("v_permlane16_swap_b32", "v_permlane32_swap_b32"):
        for x, t in zip(xs, ts): A(f"v_mov_b32 {v(t)}, {v(x)}")
        A("s_nop 1")
        for x, t in zip(xs, ts): A(f"{op} {v(t)}, {v(x)}")
        A("s_nop 1")
        for x, t in zip(xs, ts): A(f"v_add_f32 {v(x)}, {v(x)}, {v(t)}")
def lane_decomp(A):
    A("v_and_b32 v1, 63, v0")
    A("v_lshrrev_b32 v2, 4, v1")
    A("v_bfe_u32 v3, v1, 2, 2")
    A("v_and_b32 v4, 3, v1")
    A("v_and_b32 v5, 15, v1")
    A("v_lshlrev_b32 v6, 4, v1")
def emit(A, L):
    for i in L:
        if isinstance(i, list): emit(A, i)
        else: A(i)

SPIN_MAX = 1 << 18
def pub_prep(A, ph, sg, sj):
    A(f"s_lshl_b32 s3, {s(sg)}, 8")
    A(f"s_lshl_b32 s28, {s(sj)}, 3")
    A("s_add_u32 s3, s3, s28")
    A(f"s_add_u32 s3, s3, {ph*4096}")
    A("v_mov_b32 v250, s3")
    if OPT("PUBFIRST", 1) and ph > 0:
        A("s_waitcnt vmcnt(0)")
        stamp(A, ph, 4)
        publish(A, force=True)
def publish(A, force=False):
    if OPT("PUBFIRST", 1) and not force: return
    srd(A, 56, 6, WS_FL, 6 * 4096)
    A("s_barrier")
    skip = A.newlabel("pub_skip")
    A("s_cmp_lg_u32 s20, 0")
    A(f"s_cbranch_scc1 {skip}")
    A("s_mov_b64 exec, 1")
    A("buffer_store_dwordx2 v[248:249], v250, s[56:59], 0 offen sc1")
    A("s_mov_b64 exec, -1")
    A.label(skip)

def wait_flags(A, ph, sg, n, also_all=None, soff=None):
    skip = A.newlabel("wf_skip"); loop = A.newlabel("wf_loop"); done = A.newlabel("wf_done")
    A("s_cmp_lg_u32 s20, 0")
    A(f"s_cbranch_scc1 {skip}")
    srd(A, 56, 6, WS_FL, 6 * 4096)
    A(f"s_lshl_b32 s3, {s(sg)}, 8")
    A(f"s_add_u32 s3, s3, {ph*4096}")
    if soff is not None: A(f"s_add_u32 s3, s3, {s(soff)}")
    A(f"v_and_b32 v22, {n-1}, v0")
    A("v_lshlrev_b32 v22, 3, v22")
    A("v_lshlrev_b32 v23, 3, v0")
    if also_all is not None: A(f"s_mov_b32 s29, {also_all*4096}")
    A(f"s_mov_b32 s28, {SPIN_MAX}")
    A.label(loop)
    A("buffer_load_dwordx2 v[20:21], v22, s[56:59], s3 offen sc1")
    if also_all is not None:
        for j in range(4):
            A(f"buffer_load_dwordx2 {v(24+2*j,2)}, v23, s[56:59], s29 offen offset:{j*512} sc1")
    A("s_waitcnt vmcnt(0)")
    A(f"v_cmp_ne_u64 vcc, {s(sNON,2)}, v[20:21]")
    if also_all is not None:
        for j in range(4):
            A(f"v_cmp_ne_u64 s[60:61], {s(sNON,2)}, {v(24+2*j,2)}")
            A("s_nop 1")
            A("s_or_b64 vcc, vcc, s[60:61]")
    A("s_nop 1")
    A("s_cmp_eq_u64 vcc, 0")
    A(f"s_cbranch_scc1 {skip}")
    A(f"s_sleep {OPT('SLEEP', 1)}")
    A("s_sub_u32 s28, s28, 1")
    A("s_cmp_lg_u32 s28, 0")
    A(f"s_cbranch_scc1 {loop}")
    A.label(skip)
    A("s_barrier")

sRd, sWr, sGo, sCnt, sM = 23, 24, 25, 27, 30
def ring_advance(slot, R):
    return [f"s_mov_b32 {s(sWr)}, {s(sRd)}",
            f"s_add_u32 {s(sRd)}, {s(sRd)}, {slot}",
            f"s_cmp_eq_u32 {s(sRd)}, {slot*R}",
            f"s_cselect_b32 {s(sRd)}, 0, {s(sRd)}"]

def adv(d, SC=0):
    if not SC: return [f"s_add_u32 {s(sGo)}, {s(sGo)}, {hex(d)}"]
    return ["s_add_u32 s38, s38, 1",
            "s_add_u32 s3, s38, s39",
            f"s_and_b32 s3, s3, {SC-1}",
            f"s_andn2_b32 {s(sGo)}, s38, {SC-1}",
            f"s_or_b32 s3, s3, {s(sGo)}",
            f"s_mul_i32 s3, s3, {hex(d)}",
            f"s_add_u32 {s(sGo)}, s3, s37"]
def rot_init(A, d, SC):
    A(f"s_mov_b32 s37, {s(sGo)}")
    A("s_mov_b32 s38, -1")
    emit(A, adv(d, SC))

def xdma(dX, SC=0, srd_='s[8:11]'):
    g = [[f"s_add_u32 m0, {s(sWr)}, {s(sM)}", "s_nop 0",
          f"buffer_load_dwordx4 v6, {srd_}, {s(sGo)} offen{LDF} lds"]]
    for j in range(1, 4):
        g.append([f"buffer_load_dwordx4 v6, {srd_}, {s(sGo)} offen offset:{j*1024}{LDF} lds"])
    g[-1] += adv(dX, SC)
    return g

def fill_ring(A, R, SLOT, dma, lo=0, hi=None, bar=False):
    for st in range(lo, R if hi is None else hi):
        if dma is not None:
            A(f"s_mov_b32 {s(sWr)}, {st*SLOT}")
            emit(A, dma())
        if bar and st < R - 1: A("s_barrier")

def gemm_loop(A, ph, label, role, R, SLOT, NST, ndma, mfmas, reads, dma_groups, addr_upd, tail_hook=None, cnt_sgpr=None):
    T = R + (R % 2) if OPT("TAIL", 1) else 0
    A(f"s_mov_b32 {s(sRd)}, 0")
    emit(A, addr_upd())
    A(f"s_waitcnt vmcnt({ndma*(R-1)})")
    A("s_barrier")
    stamp(A, ph, 2); cyc(A, ph, 0)
    emit(A, reads(0))
    emit(A, ring_advance(SLOT, R))
    emit(A, addr_upd())
    A(f"s_mov_b32 {s(sCnt)}, {(NST-T)//2 if cnt_sgpr is None else s(cnt_sgpr)}")
    PRE = OPT("PRE_" + str(ph), OPT("PRE", 0))
    BK = OPT("BK", 1)
    def snake(M):
        return M
    def stage(p, dma, nout, last, hook=None, extra=0, loopend=False):
        M = mfmas(p); Rd = reads(1 - p); D = dma_groups() if dma else []
        if hook: D = D + [hook]
        nm = len(M)
        if last:
            A("s_waitcnt lgkmcnt(0)")
            emit(A, M)
            return
        book = ring_advance(SLOT, R) + addr_upd()
        cnt = [f"s_sub_u32 {s(sCnt)}, {s(sCnt)}, 1", f"s_cmp_lg_u32 {s(sCnt)}, 0"] if loopend else []
        if role == "A":
            pre = min(PRE, nm // 2)
            if pre:
                A("s_waitcnt lgkmcnt(0)")
                emit(A, M[:pre])
                A(f"s_waitcnt vmcnt({ndma*nout+extra})")
            else:
                A(f"s_waitcnt vmcnt({ndma*nout+extra}) lgkmcnt(0)")
            A("s_barrier")
            Mr = M[pre:]; nr = len(Mr)
            if BK and dma:
                m0set = D[0][0]; D = [D[0][2:]] + D[1:]
                emit(A, interleave(Mr, Rd, 0, max(1, nr - 2)))
                A(m0set)
                emit(A, book)
                emit(A, D)
                emit(A, cnt)
            else:
                emit(A, interleave(Mr, Rd, 0, max(1, nr - 2) if dma else max(1, (2 * nr) // 3)))
                emit(A, D)
                emit(A, book); emit(A, cnt)
        else:
            A(f"s_waitcnt vmcnt({ndma*nout+extra}) lgkmcnt(0)")
            A("s_barrier")
            emit(A, D)
            if BK:
                h = max(1, (2 * nm) // 3)
                emit(A, interleave(M[:h], Rd))
                emit(A, interleave(M[h:], [[x] for x in book[:2]] + [book[2:4]] + [[x] for x in book[4:]] + ([cnt] if cnt else []), 0, max(1, nm - h - 1)))
            else:
                emit(A, interleave(M, Rd, 0, max(1, (2 * nm) // 3)))
                emit(A, book); emit(A, cnt)
    A.raw(".p2align 6")
    A.label(label)
    for p in range(2): stage(p, True, R - 2, False, loopend=(p == 1))
    A(f"s_cbranch_scc1 {label}")
    for st in range(NST - T, NST):
        stage(st % 2, st + R < NST, min(R - 2, NST - 2 - st), st == NST - 1, (tail_hook or {}).get(NST - st), (tail_hook or {}).get(('x', NST - st), 0))
    if not T: A("s_waitcnt lgkmcnt(0)")
    A("s_nop 7")
    cyc(A, ph, 1); stamp(A, ph, 3)

def code_touch(A, vd=26):
    if not OPT("CT", 0): return
    l = A.newlabel("ct")
    A("s_getpc_b64 s[56:57]")
    A.label(l)
    A(f"s_sub_u32 s56, s56, {l}-{NAME}")
    A("s_subb_u32 s57, s57, 0")
    A(f"s_mov_b32 s58, code_end-{NAME}")
    A("s_mov_b32 s59, 0x20000")
    A("v_lshlrev_b32 v20, 7, v1")
    A("s_lshl_b32 s28, s31, 13")
    A(f"buffer_load_dword {v(vd)}, v20, s[56:59], s28 offen")

def code_touch_list(A, frm, vd, va):
    l = A.newlabel("ct")
    return ["s_getpc_b64 s[56:57]", f"{l}:",
            f"s_add_u32 s56, s56, {frm}-{l}", "s_addc_u32 s57, s57, 0",
            "s_and_b32 s56, s56, 0xffffff80",
            f"s_mov_b32 s58, code_end-{frm}", "s_mov_b32 s59, 0x20000",
            f"v_lshlrev_b32 {v(va)}, 7, v1", "s_lshl_b32 s28, s31, 13",
            f"buffer_load_dword {v(vd)}, {v(va)}, s[56:59], s28 offen"]

def w_swz_voff(A, dst, rowstride):
    A(f"v_lshrrev_b32 {v(dst)}, 3, v1")
    A(f"v_mul_u32_u24 {v(dst)}, {rowstride}, {v(dst)}")
    A("v_and_b32 v20, 7, v1")
    A("v_lshlrev_b32 v21, 1, v2")
    A("v_xor_b32 v20, v20, v21")
    A(f"v_lshl_add_u32 {v(dst)}, v20, 4, {v(dst)}")

def ph_ln_qkv(A):
    R, SLOT, NST = 4, 40960, 16
    A(f"s_load_dwordx4 s[40:43], s[0:1], {KA_X}")
    A(f"s_load_dwordx4 s[4:7], s[0:1], {KA_DBG}")
    A("s_memrealtime s[62:63]")
    A("v_lshrrev_b32 v1, 6, v0")
    A("s_nop 0")
    A("v_readfirstlane_b32 s20, v1")
    lane_decomp(A)
    A("s_and_b32 s21, s2, 1")
    A("s_lshl_b32 s21, s21, 3")
    A("s_bfe_u32 s28, s2, 0x30003")
    A("s_add_u32 s21, s21, s28")
    A("s_bfe_u32 s22, s2, 0x20001")
    A("s_lshl_b32 s22, s22, 2")
    A("s_lshr_b32 s28, s2, 6")
    A("s_add_u32 s22, s22, s28")
    A("s_and_b32 s31, s20, 3")
    QSC = OPT("QSC", 16)
    A("s_and_b32 s39, s21, 3")
    A(f"s_mul_i32 s39, s39, {QSC//4}")
    A("s_cmp_ge_u32 s20, 4")
    A("s_cbranch_scc1 p0_B")
    A("v_and_b32 v7, 7, v1")
    A("v_bfe_u32 v8, v1, 3, 2")
    A("v_lshrrev_b32 v9, 5, v1")
    A("v_lshlrev_b32 v10, 11, v7")
    A("v_lshl_add_u32 v10, v9, 6, v10")
    A("v_lshl_add_u32 v10, v8, 3, v10")
    A("s_lshl_b32 s3, s2, 14")
    A("s_lshl_b32 s28, s20, 9")
    A("s_add_u32 s3, s3, s28")
    A("s_waitcnt lgkmcnt(0)")
    if PROF: A("s_mov_b32 s66, s62")
    srd(A, 8, 40, 0, 4*MB)
    for i in range(4):
        A(f"buffer_load_dwordx2 {v(32+4*i,2)}, v10, s[8:11], s3 offen offset:{i*128}")
        A(f"buffer_load_dwordx2 {v(34+4*i,2)}, v10, s[8:11], s3 offen offset:{i*128+32}")
    srd(A, 16, 4, 0, 256)
    A("s_or_b32 s28, s2, s20")
    A("s_cmp_lg_u32 s28, 0")
    A("s_cbranch_scc1 p0_nopub")
    A("s_or_b32 s62, s62, 1")
    A("v_mov_b32 v20, s62")
    A("v_mov_b32 v21, s63")
    A("v_mov_b32 v22, 0")
    A("s_mov_b64 exec, 1")
    A("buffer_store_dwordx2 v[20:21], v22, s[16:19], 0 offen sc1")
    A("s_mov_b64 exec, -1")
    A("s_waitcnt vmcnt(0)")
    A.label("p0_nopub")
    srd(A, 12, 6, WS_XN, 4*MB)
    A("v_lshlrev_b32 v11, 17, v9")
    A("v_lshl_add_u32 v11, v7, 4, v11")
    A("v_lshl_add_u32 v11, v8, 8, v11")
    A("s_lshr_b32 s32, s2, 1")
    A("s_lshl_b32 s32, s32, 10")
    A("s_and_b32 s33, s2, 1")
    A("s_lshl_b32 s33, s33, 7")
    A("s_add_u32 s32, s32, s33")
    A("s_lshl_b32 s33, s20, 20")
    A("s_add_u32 s32, s32, s33")
    A("s_add_u32 s33, s32, 0x40000")
    A("s_add_u32 s34, s32, 0x80000")
    A("s_add_u32 s35, s32, 0xc0000")
    A("v_mov_b32 v24, 0")
    A("v_mov_b32 v25, 0")
    U = 64
    for j in range(16):
        if j % 2 == 0: A(f"s_waitcnt vmcnt({7 - j//2})")
        A(f"v_lshlrev_b32 {v(U+2*j)}, 16, {v(32+j)}")
        A(f"v_and_b32 {v(U+1+2*j)}, 0xffff0000, {v(32+j)}")
        A(f"v_add_f32 v24, v24, {v(U+2*j)}")
        A(f"v_fmac_f32 v25, {v(U+2*j)}, {v(U+2*j)}")
        A(f"v_add_f32 v24, v24, {v(U+1+2*j)}")
        A(f"v_fmac_f32 v25, {v(U+1+2*j)}, {v(U+1+2*j)}")
    A("v_mov_b32 v22, 0")
    A("buffer_load_dwordx2 v[28:29], v22, s[16:19], 0 offen sc1")
    A("v_add_f32_dpp v24, v24, v24 row_ror:8 row_mask:0xf bank_mask:0xf")
    A("v_add_f32_dpp v25, v25, v25 row_ror:8 row_mask:0xf bank_mask:0xf")
    reduce_rows16_32(A, [24, 25], [26, 27])
    A("v_lshlrev_b32 v26, 5, v7")
    A("s_lshl_b32 s28, s20, 3")
    A("v_add_u32 v27, s28, v26")
    A("ds_write_b64 v27, v[24:25]")
    A("s_waitcnt lgkmcnt(0)")
    A("s_barrier")
    A("ds_read_b128 v[100:103], v26")
    A("ds_read_b128 v[104:107], v26 offset:16")
    A("s_waitcnt lgkmcnt(0)")
    A("v_pk_add_f32 v[24:25], v[100:101], v[102:103]")
    A("v_pk_add_f32 v[26:27], v[104:105], v[106:107]")
    A("v_pk_add_f32 v[24:25], v[24:25], v[26:27]")
    A(f"v_mul_f32 v24, {f32(1/1024)}, v24")
    A(f"v_mul_f32 v25, {f32(1/1024)}, v25")
    A("v_fma_f32 v25, -v24, v24, v25")
    A("v_max_f32 v25, 0, v25")
    A(f"v_add_f32 v25, {f32(1e-5)}, v25")
    A("v_rsq_f32 v25, v25")
    A("s_nop 0")
    A("v_mul_f32 v24, v24, v25")
    for j in range(16):
        A(f"v_fma_f32 {v(U+2*j)}, {v(U+2*j)}, v25, -v24")
        A(f"v_fma_f32 {v(U+1+2*j)}, {v(U+1+2*j)}, v25, -v24")
        A(f"v_cvt_pk_bf16_f32 {v(32+j)}, {v(U+2*j)}, {v(U+1+2*j)}")
        if j % 4 == 3:
            A(f"buffer_store_dwordx4 {v(32+j-3,4)}, v11, s[12:15], {s(32+j//4)} offen{STF}")
    stamp(A, 0, 3)
    A("s_lshr_b32 s32, s2, 4")
    A("s_and_b32 s33, s2, 15")
    pub_prep(A, 0, 32, 33)
    A(f"s_mov_b32 s28, {SPIN_MAX}")
    A.label("p0_nonce")
    A("s_waitcnt vmcnt(0)")
    A("v_readfirstlane_b32 s62, v28")
    A("v_readfirstlane_b32 s63, v29")
    A("s_nop 1")
    A("s_cmp_lg_u32 s62, 0")
    A("s_cbranch_scc1 p0_gotnonce")
    A("buffer_load_dwordx2 v[28:29], v22, s[16:19], 0 offen sc1")
    A("s_sub_u32 s28, s28, 1")
    A("s_cmp_lg_u32 s28, 0")
    A("s_cbranch_scc1 p0_nonce")
    A.label("p0_gotnonce")
    A("v_mov_b32 v248, s62")
    A("v_mov_b32 v249, s63")
    stamp(A, 0, 4)
    publish(A, force=True)
    A("v_mov_b32 v12, 0")
    A("s_lshr_b32 s28, s31, 1")
    A("s_lshl_b32 s28, s28, 7")
    A("s_lshl_b32 s29, s21, 3")
    A("s_add_u32 s28, s28, s29")
    A("s_and_b32 s29, s31, 1")
    A("s_lshl_b32 s29, s29, 2")
    A("s_add_u32 s28, s28, s29")
    A(f"s_lshl_b32 {s(sGo)}, s28, 10")
    if QSC: rot_init(A, 0x40000, QSC)
    A(f"s_lshl_b32 {s(sM)}, s31, 12")
    A("s_branch p1_common")
    A.label("p0_B")
    code_touch(A)
    w_swz_voff(A, 7, 6144)
    A(f"v_add_u32 v8, {8*6144-1024}, v7")
    A("v_add_u32 v9, 2048, v7")
    A("v_add_u32 v10, 2048, v8")
    A("v_add_u32 v11, 4096, v7")
    A("v_add_u32 v12, 4096, v8")
    A(f"s_mul_i32 s28, s31, {16*6144}")
    A("s_lshl_b32 s29, s22, 7")
    A(f"s_add_u32 {s(sGo)}, s28, s29")
    if QSC: rot_init(A, 64*6144, QSC)
    A(f"s_lshl_b32 {s(sM)}, s31, 11")
    A(f"s_add_u32 {s(sM)}, {s(sM)}, 16384")
    A("v_and_b32 v13, 31, v1")
    A("v_mul_u32_u24 v13, 6144, v13")
    A("v_lshrrev_b32 v14, 5, v1")
    A("v_lshl_add_u32 v15, v14, 11, v13")
    A("v_lshl_add_u32 v13, v14, 30, v13")
    A("v_add_u32 v13, 4096, v13")
    A("s_and_b32 s28, s21, 7")
    A("s_lshl_b32 s28, s28, 2")
    A("s_add_u32 s28, s28, s31")
    A(f"s_mul_i32 s28, s28, {32*6144}")
    A("s_add_u32 s28, s28, s29")
    A("s_waitcnt lgkmcnt(0)")
    if PROF: A("s_mov_b32 s66, s62")
    srd(A, 12, 42, 0, 6*MB)
    def wdma():
        g = []
        for seg in range(3):
            g.append([f"s_add_u32 m0, {s(sWr)}, {s(sM)}" if seg == 0 else "s_add_u32 m0, m0, 8192", "s_nop 0",
                      f"buffer_load_dwordx4 {v(7+2*seg)}, s[12:15], {s(sGo)} offen lds"])
            g.append([f"buffer_load_dwordx4 {v(8+2*seg)}, s[12:15], {s(sGo)} offen offset:1024 lds"])
        g[-1] += adv(64*6144, QSC)
        return g
    P0M = OPT("P0M", 6)
    def touches():
        A("buffer_load_dword v24, v15, s[12:15], s28 offen")
        A("buffer_load_dword v25, v13, s[12:15], s28 offen")
    if P0M == 0:
        touches()
        fill_ring(A, R, SLOT, wdma, 0, 2)
        A("s_barrier")
        fill_ring(A, R, SLOT, wdma, 2, 4)
        A("s_barrier")
    elif P0M == 1:
        A("s_barrier")
        touches()
        fill_ring(A, R, SLOT, wdma, 0, 2)
        A("s_barrier")
        fill_ring(A, R, SLOT, wdma, 2, 4)
    elif P0M == 2:
        fill_ring(A, R, SLOT, wdma, 0, 2)
        A("s_barrier")
        touches()
        fill_ring(A, R, SLOT, wdma, 2, 4)
        A("s_barrier")
        A("s_waitcnt vmcnt(0)")
    elif P0M == 4:
        A("s_barrier")
        fill_ring(A, R, SLOT, wdma, 0, 2)
        A("s_barrier")
        fill_ring(A, R, SLOT, wdma, 2, 4)
    elif P0M == 5:
        fill_ring(A, R, SLOT, wdma, 0, 4)
        A("s_barrier")
        A("s_barrier")
    elif P0M == 6:
        fill_ring(A, R, SLOT, wdma, 0, 2)
        A("s_barrier")
        A("s_barrier")
        fill_ring(A, R, SLOT, wdma, 2, 4)
    elif P0M == 3:
        fill_ring(A, R, SLOT, wdma, 0, 2)
        A("s_barrier")
        fill_ring(A, R, SLOT, wdma, 2, 4)
        A("s_barrier")

    A.label("p1_common")
    ACC = 64
    def acc(f, i): return ACC + (f * 4 + i) * 4
    SET = [112, 168]
    def xf(p, kk, i): return SET[p] + (kk * 4 + i) * 4
    def wf(p, kk, f): return SET[p] + 32 + (kk * 3 + f) * 4
    srd(A, 8, 6, WS_XN, 4*MB)
    srd(A, 12, 42, 0, 6*MB)
    srd(A, 16, 6, WS_Q, 12*MB)
    A("s_and_b32 s28, s20, 1")
    A("s_lshl_b32 s28, s28, 12")
    A("v_add_u32 v32, s28, v6")
    A("v_lshl_add_u32 v33, v2, 2, v3")
    A("v_lshlrev_b32 v33, 7, v33")
    A("v_lshl_add_u32 v33, v4, 3, v33")
    A("v_add_u32 v33, 16384, v33")
    A("v_bfe_u32 v34, v1, 3, 2")
    A("s_lshr_b32 s28, s20, 1")
    A("s_and_b32 s29, s28, 1")
    A("s_lshl_b32 s29, s29, 1")
    A("s_lshr_b32 s32, s28, 1")
    A("s_lshl_b32 s32, s32, 13")
    A("v_xor_b32 v35, s29, v34")
    A("v_lshl_add_u32 v35, v35, 5, v33")
    A("v_add_u32 v35, s32, v35")
    A("v_xor_b32 v36, 32, v35")
    A("v_xor_b32 v37, s28, v34")
    A("v_lshl_add_u32 v37, v37, 5, v33")
    A("v_add_u32 v37, 16384, v37")
    for i in range(48): A(f"v_mov_b32 {v(ACC+i)}, 0")
    stamp(A, 1, 0)
    wait_flags(A, 0, 21, 16)
    stamp(A, 1, 1)
    def reads(p):
        out = []
        for kk in range(2):
            for f in range(3):
                for t in range(2):
                    out.append([f"ds_read_b64_tr_b16 {v(wf(p,kk,f)+2*t,2)}, {v(17+f)} offset:{kk*4096+t*2048}"])
            for i in range(4):
                out.append([f"ds_read_b128 {v(xf(p,kk,i),4)}, v16 offset:{kk*8192+i*1024}"])
        return out
    def addr_upd():
        return [f"v_add_u32 v16, {s(sRd)}, v32", f"v_add_u32 v17, {s(sRd)}, v35",
                f"v_add_u32 v18, {s(sRd)}, v36", f"v_add_u32 v19, {s(sRd)}, v37"]
    def mfmas(p):
        M = []
        for kk in range(2):
            for f in range(3):
                for i in (range(4) if (f % 2 == 0 or not OPT("SNAKE", 1)) else range(3, -1, -1)):
                    if f < 2: M.append(mf16(acc(f, i), wf(p, kk, f), xf(p, kk, i)))
                    else:     M.append(mf16(acc(f, i), xf(p, kk, i), wf(p, kk, f)))
        return M
    A("s_cmp_ge_u32 s20, 4")
    A("s_cbranch_scc1 qkv_B")
    fill_ring(A, R, SLOT, lambda: xdma(0x40000, QSC), bar=True)
    gemm_loop(A, 1, "qkv_loopA", "A", R, SLOT, NST, 4, mfmas, reads, lambda: xdma(0x40000, QSC), addr_upd,
              {4: code_touch_list(A, "qkv_epi", 251, 252), ('x', 3): 1, ('x', 2): 1} if OPT("CTQ", 1) else None)
    A("s_branch qkv_epi")
    A.label("qkv_B")
    fill_ring(A, R, SLOT, None, bar=True)
    gemm_loop(A, 1, "qkv_loopB", "B", R, SLOT, NST, 6, mfmas, reads, wdma, addr_upd)
    A.label("qkv_epi")
    A(f"s_load_dwordx2 s[40:41], s[0:1], {KA_WO}")
    A(f"s_load_dwordx4 s[44:47], s[0:1], {KA_WG}")
    A(f"s_load_dwordx2 s[42:43], s[0:1], {KA_WD}")
    A("v_lshlrev_b32 v9, 9, v2")
    A("v_lshrrev_b32 v7, 3, v5")
    A("v_lshl_add_u32 v7, v7, 8, v9")
    A("v_and_b32 v8, 7, v5")
    A("v_lshl_add_u32 v7, v8, 4, v7")
    A("v_lshl_add_u32 v8, v5, 4, v9")
    A("s_lshr_b32 s28, s20, 1")
    A("s_and_b32 s29, s28, 1")
    A("s_lshr_b32 s32, s28, 1")
    A("s_and_b32 s33, s20, 1")
    A("s_lshl_b32 s34, s21, 2")
    A("s_lshl_b32 s33, s33, 1")
    A("s_add_u32 s34, s34, s33")
    A("s_lshl_b32 s34, s34, 11")
    A("s_lshl_b32 s35, s22, 1")
    A("s_add_u32 s36, s35, s29")
    A("s_lshl_b32 s36, s36, 17")
    A("s_add_u32 s36, s36, s34")
    A("s_lshl_b32 s37, s32, 22")
    A("s_add_u32 s36, s36, s37")
    A("s_add_u32 s38, s35, s32")
    A("s_lshl_b32 s38, s38, 17")
    A("s_add_u32 s38, s38, s34")
    A("s_lshl_b32 s37, s29, 8")
    A("s_add_u32 s38, s38, s37")
    A(f"s_add_u32 s38, s38, {8*MB}")
    A("s_cmp_eq_u32 s32, 0")
    A(f"s_cselect_b32 s39, {f32(QSCALE)}, 1.0")
    A("v_mov_b32 v20, s39")
    T = 128
    for pr in range(2):
        for ii in range(2):
            for h in range(2):
                A(f"v_cvt_pk_bf16_f32 {v(T+4*pr+2*ii+h)}, {v(acc(2,2*pr+ii)+2*h)}, {v(acc(2,2*pr+ii)+2*h+1)}")
        A(f"buffer_store_dwordx4 {v(T+4*pr,4)}, v8, s[16:19], s38 offen offset:{pr*2048}{STF}")
    T = 112
    for i in range(4):
        for f in range(2):
            for h in range(2):
                A(f"v_pk_mul_f32 {v(acc(f,i)+2*h,2)}, {v(acc(f,i)+2*h,2)}, v[20:21] op_sel_hi:[1,0]")
        for f in range(2):
            for h in range(2):
                A(f"v_cvt_pk_bf16_f32 {v(T+4*i+2*f+h)}, {v(acc(f,i)+2*h)}, {v(acc(f,i)+2*h+1)}")
        A(f"buffer_store_dwordx4 {v(T+4*i,4)}, v7, s[16:19], s36 offen offset:{(i>>1)*2048+(i&1)*128}{STF}")
    pub_prep(A, 1, 22, 21)
    A("s_waitcnt lgkmcnt(0)")

def ph_attn(A):
    R, SLOT = 3, 32768
    WL = R * SLOT
    Q, NEGM, S0, S1, P, KF, VF, O, L, ONES = 8, 32, 48, 64, 80, 88, 96, 104, 120, 124
    S_ = [S0, S1]
    A("s_and_b32 s21, s2, 7")
    A("s_lshl_b32 s21, s21, 2")
    A("s_bfe_u32 s28, s2, 0x20003")
    A("s_add_u32 s21, s21, s28")
    A("s_lshr_b32 s22, s2, 5")
    A("s_lshr_b32 s32, s2, 1")
    A("s_and_b32 s33, s2, 1")
    sCo, sCM = 26, 29
    A("s_cmp_ge_u32 s32, 56")
    A("s_cselect_b32 s48, s46, s44")
    A("s_cselect_b32 s49, s47, s45")
    A("s_cselect_b32 s34, 56, 0")
    A("s_sub_u32 s34, s32, s34")
    A("s_mov_b32 s51, 0x20000")
    A("s_lshl_b32 s34, s34, 7")
    A(f"s_mul_i32 s35, s33, {512*7168}")
    A("s_add_u32 s34, s34, s35")
    A(f"s_add_u32 s35, s35, {512*7168}")
    A("s_cmp_lt_u32 s2, 224")
    A("s_cselect_b32 s50, s35, 0")
    A(f"s_mul_i32 s35, s31, {16*7168}")
    A(f"s_add_u32 {s(sCo)}, s34, s35")
    w_swz_voff(A, 7, 7168)
    A(f"v_add_u32 v129, {8*7168-1024}, v7")
    srd(A, 52, 40, 0, 2*MB)
    srd(A, 44, 42, 0, 7*MB)
    A("s_lshl_b32 s35, s2, 2")
    A("s_add_u32 s35, s35, s31")
    A("v_lshlrev_b32 v8, 7, v1")
    A("v_mov_b32 v9, 0x7fffffff")
    A("s_lshl_b32 s34, s35, 11")
    A("v_add_u32 v130, s34, v8")
    A("v_cmp_gt_u32 vcc, 16, v1")
    A("s_lshl_b32 s60, s35, 10")
    A("s_nop 0")
    A("v_cndmask_b32 v130, v9, v130, vcc")
    A("s_and_b32 s34, s35, 1")
    A("s_lshl_b32 s34, s34, 3")
    A("v_lshrrev_b32 v8, 3, v1")
    A("v_add_u32 v8, s34, v8")
    A(f"v_mul_u32_u24 v8, {3584*128}, v8")
    A("s_bfe_u32 s34, s35, 0x20002")
    A("s_lshl_b32 s34, s34, 1")
    A("v_and_b32 v9, 7, v1")
    A("v_xor_b32 v9, s34, v9")
    A("v_lshl_add_u32 v131, v9, 4, v8")
    A("s_lshr_b32 s61, s35, 1")
    A("s_lshl_b32 s61, s61, 7")
    A(f"s_sub_u32 s61, s61, {512*128}")
    CP = 140
    def cp_load():
        return [f"buffer_load_dwordx4 {v(CP,4)}, v6, s[44:47], s60 offen", f"s_add_u32 s60, s60, {MB}"]
    def cp_store():
        return [f"s_cmp_lt_u32 s61, {3584*128}", f"s_cselect_b32 s58, {7*MB}, 0",
                f"buffer_store_dwordx4 {v(CP,4)}, v131, s[56:59], s61 offen{STF}", f"s_add_u32 s61, s61, {512*128}"]
    def cs_dma(j):
        if j == 0:
            return [f"s_mov_b32 m0, {s(sCM)}", f"s_add_u32 {s(sCM)}, {s(sCM)}, 8192",
                    f"buffer_load_dwordx4 v7, s[48:51], {s(sCo)} offen lds"]
        return [f"buffer_load_dwordx4 v129, s[48:51], {s(sCo)} offen offset:1024 lds",
                f"s_add_u32 {s(sCo)}, {s(sCo)}, {64*7168}"]
    A("s_lshl_b32 s28, s21, 17")
    A("s_add_u32 s4, s6, s28")
    A("s_addc_u32 s5, s7, 0")
    srd(A, 8, 4, WS_K, 131072)
    srd(A, 12, 4, WS_VT, 131072)
    srd(A, 16, 4, WS_Q, 131072)
    srd(A, 36, 6, WS_O, 4*MB)
    A(f"s_lshl_b32 {s(sGo)}, s31, 12")
    A(f"s_lshl_b32 {s(sM)}, s31, 12")
    A("v_lshrrev_b32 v16, 2, v1")
    A("v_xor_b32 v16, v16, v2")
    A("v_and_b32 v16, 1, v16")
    A("v_cmp_eq_u32 vcc, 0, v16")
    A("v_mov_b32 v17, 0x3f803f80")
    A("s_nop 1")
    for i in range(4): A(f"v_cndmask_b32 {v(ONES+i)}, 0, v17, vcc")
    for i in range(16): A(f"v_mov_b32 {v(O+i)}, 0")
    for i in range(4): A(f"v_mov_b32 {v(L+i)}, 0")
    for i in range(4): A(f"v_mov_b32 {v(P+4+i)}, 0")
    for i in range(4): A(f"v_mov_b32 {v(VF+4+i)}, 0")
    A("v_mov_b32 v16, v6")
    A(f"v_add_u32 v17, {SLOT}, v6")
    A(f"s_mov_b32 {s(sRd)}, {SLOT}")
    A("s_lshr_b32 s34, s21, 1")
    A("s_lshl_b32 s35, s22, 3")
    A("s_add_u32 s35, s35, s20")
    A("s_lshl_b32 s35, s35, 11")
    if not OPT("PUBFIRST", 1):
        A("s_waitcnt vmcnt(0)")
        stamp(A, 1, 4)
    publish(A)
    stamp(A, 2, 0)
    wait_flags(A, 1, 34, 16)
    stamp(A, 2, 1)
    def kv(j):
        o = []
        if j % 4 == 0: o = [f"s_add_u32 m0, {s(sWr)}, {16384 if j >= 4 else 0}", "s_nop 0"]
        o += [f"buffer_load_dwordx4 v6, {'s[8:11]' if j < 4 else 's[12:15]'}, {s(sGo)} offen offset:{(j&3)*1024}{LDF} lds"]
        if j == 7:
            o += [f"s_add_u32 {s(sGo)}, {s(sGo)}, 16384",
                  f"s_add_u32 {s(sWr)}, {s(sWr)}, {SLOT}",
                  f"s_cmp_ge_u32 {s(sWr)}, {SLOT*R}",
                  f"s_cselect_b32 {s(sWr)}, {s(sM)}, {s(sWr)}"]
        return o
    srd(A, 56, 6, WS_WD, 7*MB)
    if OPT("NOSIDE", 0):
        A("s_mov_b32 s50, 0"); A("s_mov_b32 s46, 0"); A("s_mov_b32 s54, 0"); A("s_mov_b32 s61, 0x10000000")
    A(f"s_mov_b32 {s(sWr)}, {s(sM)}")
    A(f"s_lshl_b32 {s(sCM)}, s31, 11")
    A(f"s_add_u32 {s(sCM)}, {s(sCM)}, {WL}")
    A("s_cmp_ge_u32 s20, 4")
    A("s_cbranch_scc1 at_B0")
    for j in range(4): emit(A, kv(j))
    A("s_branch at_C0")
    A.label("at_B0")
    for j in range(4, 7): emit(A, kv(j))
    emit(A, kv(7)[:1])
    A.label("at_C0")
    A(f"buffer_load_dwordx4 {v(Q,4)}, v6, s[16:19], s35 offen{LDF}")
    A(f"buffer_load_dwordx4 {v(Q+4,4)}, v6, s[16:19], s35 offen offset:1024{LDF}")
    emit(A, kv(7)[1:])
    A("s_waitcnt vmcnt(0)")
    A("s_barrier")
    stamp(A, 2, 2); cyc(A, 2, 0)
    def kread(t, j, dst=None):
        a_ = 16 if t < 8 else 17
        return f"ds_read_b128 {v(KF+4*j if dst is None else dst,4)}, {v(a_)} offset:{(t%8)*2048+j*1024}"
    def vread(t, j):
        a_ = 16 if t < 8 else 17
        return f"ds_read_b128 {v(VF+4*j,4)}, {v(a_)} offset:{16384+(t%8)*2048+j*1024}"
    A(kread(0, 0, S1)); A(kread(0, 1, S1+4))
    A(kread(1, 0)); A(kread(1, 1)); A(vread(0, 0))
    A("s_cmp_ge_u32 s20, 4")
    A("s_cbranch_scc1 at_C1")
    for j in range(4): emit(A, kv(j))
    A("buffer_load_dword v128, v130, s[52:55], 0 offen")
    emit(A, cs_dma(0)); emit(A, cs_dma(1))
    if OPT("CT", 0) >= 2:
        A("s_branch at_C2")
    A.label("at_C1")
    if OPT("CT", 0) >= 2:
        code_touch(A, 128)
        srd(A, 56, 6, WS_WD, 7*MB)
        A.label("at_C2")
    A("s_waitcnt lgkmcnt(3)")
    A(mf32(S0, S1, Q, "0"))
    A(mf32(S0, S1+4, Q+4))
    A("s_nop 15")
    A("s_nop 3")
    A(f"v_max3_f32 v18, {v(S0)}, {v(S0+1)}, {v(S0+2)}")
    for i in range(3, 15, 2): A(f"v_max3_f32 v18, v18, {v(S0+i)}, {v(S0+i+1)}")
    A(f"v_max_f32 v18, v18, {v(S0+15)}")
    A("v_mov_b32 v19, v18")
    A("s_nop 1")
    A("v_permlane32_swap_b32 v19, v18")
    A("s_nop 1")
    A("v_max_f32 v18, v18, v19")
    for i in range(16): A(f"v_sub_f32 {v(NEGM+i)}, 0, v18")
    for i in range(16): A(f"v_sub_f32 {v(S0+i)}, {v(S0+i)}, v18")
    A(f"s_mov_b32 {s(sCnt)}, 8")
    A("s_waitcnt lgkmcnt(0)")
    def loop(role):
        A.raw(".p2align 6")
        A.label(f"attn_loop{role}")
        for t in range(8):
            c, n = S_[t % 2], S_[1 - t % 2]
            E = lambda i: f"v_exp_f32 {v(c+i)}, {v(c+i)}"
            C = lambda i: f"v_cvt_pk_bf16_f32 {v(P+i)}, {v(c+2*i)}, {v(c+2*i+1)}"
            X = {6: (kv(0), kv(1)), 7: (kv(2), kv(3)), 0: (kv(4), kv(5)), 1: (kv(6), kv(7)),
                 2: (["s_waitcnt vmcnt(10)"] + cp_store(), cp_load()), 3: (cs_dma(0), cs_dma(1)), 4: ([], []), 5: ([], [])}[t]
            if role == "B":
                X = ([], [])
                if OPT("CTA", 0) and t == 7: X = (["buffer_load_dword v251, v252, s[56:59], s60 offen"], [])
            FAIR = OPT("FAIR", 0)
            if t == 6:
                if role == "A": A("s_waitcnt vmcnt(4)")
                A("s_barrier")
            elif FAIR == 1 and t == 2:
                A("s_barrier")
            elif FAIR == 2 and t % 2 == 0:
                A("s_barrier")
            if FAIR == 1: A(f"s_setprio {3 - (t + 2) % 4}")
            if FAIR == 3 and t % 2 == 0: A(f"s_setprio {3 - ((t + 2) % 8) // 2}")
            A("s_waitcnt lgkmcnt(2)")
            A(mf32(n, KF, Q, v(NEGM, 16)))
            A(kread(t + 2, 0))
            emit(A, [E(0), E(1), E(2)])
            A(mf32(O, VF+4, P+4))
            A(vread(t, 1))
            emit(A, X[0])
            emit(A, [E(3), E(4), E(5), E(6)])
            A("s_waitcnt lgkmcnt(2)")
            A(mf32(n, KF+4, Q+4))
            A(kread(t + 2, 1))
            emit(A, [E(7), C(0), C(1), C(2), C(3), E(8)])
            A(mf16(L, ONES, P+4))
            emit(A, [E(9), E(10)])
            A(mf32(O, VF, P))
            A(vread(t + 1, 0))
            emit(A, X[1])
            emit(A, [E(11), E(12), E(13), E(14)])
            A(mf16(L, ONES, P))
            if t == 7:
                A(f"s_add_u32 {s(sRd)}, {s(sRd)}, {SLOT}")
                A(f"s_cmp_eq_u32 {s(sRd)}, {SLOT*R}")
                A(f"s_cselect_b32 {s(sRd)}, 0, {s(sRd)}")
                A("v_mov_b32 v16, v17")
                A(f"v_add_u32 v17, {s(sRd)}, v6")
                A(f"s_sub_u32 {s(sCnt)}, {s(sCnt)}, 1")
                A(f"s_cmp_lg_u32 {s(sCnt)}, 0")
            emit(A, [E(15), C(4), C(5), C(6), C(7)])
        A(f"s_cbranch_scc1 attn_loop{role}")
    A("s_cmp_ge_u32 s20, 4")
    A("s_cbranch_scc1 attn_preB")
    loop("A")
    A("s_branch attn_post")
    A.label("attn_preB")
    if OPT("CTA", 0):
        emit(A, code_touch_list(A, "attn_post", 251, 252)[:-1])
        A("s_mov_b32 s60, s28")
    loop("B")
    A.label("attn_post")
    if OPT("FAIR", 0): A("s_setprio 0")
    A("s_waitcnt lgkmcnt(0)")
    A("s_nop 0")
    A(mf32(O, VF+4, P+4))
    A(mf16(L, ONES, P+4))
    cyc(A, 2, 1); stamp(A, 2, 3)
    A("s_waitcnt vmcnt(0)")
    A("s_barrier")
    A("v_lshrrev_b32 v18, 2, v1")
    A("v_lshlrev_b32 v18, 7, v18")
    A("v_lshl_add_u32 v18, v4, 3, v18")
    A("v_bfe_u32 v19, v1, 3, 2")
    A("v_xor_b32 v19, s31, v19")
    A("v_lshl_add_u32 v18, v19, 5, v18")
    A("s_lshr_b32 s29, s20, 2")
    A("s_lshl_b32 s34, s29, 15")
    A(f"s_add_u32 s34, s34, {WL}")
    A("v_add_u32 v18, s34, v18")
    CSW = S0
    for ks in range(8):
        for t in range(2):
            A(f"ds_read_b64_tr_b16 {v(CSW+4*ks+2*t,2)}, v18 offset:{ks*4096+t*2048}")
    for i in range(4): A(f"v_mov_b32 {v(132+i)}, 0x3f803f80")
    A(f"v_add_f32 v18, |{v(O)}|, {v(L)}")
    for i in range(1, 16): A(f"v_add_f32 v18, |{v(O+i)}|, v18")
    A(f"v_mov_b32 v19, {f32(2.0**120)}")
    A("v_cmp_nlt_f32 vcc, v18, v19")
    A("s_waitcnt lgkmcnt(0)")
    for ks in range(8):
        A(mf16(136, CSW+4*ks, 132, "0" if ks == 0 else None))
    A("s_cmp_eq_u64 vcc, 0")
    A("s_cbranch_scc0 attn_slow")
    A.label("attn_fin")
    A(f"s_load_dwordx2 s[44:45], s[0:1], {KA_X}")
    A(f"v_rcp_f32 v18, {v(L)}")
    A("s_nop 0")
    for i in range(16): A(f"v_mul_f32 {v(O+i)}, {v(O+i)}, v18")
    for pc in range(2):
        for hh in range(2):
            run = pc + 2 * hh
            for j in range(2):
                A(f"v_cvt_pk_bf16_f32 {v(P+4*pc+2*hh+j)}, {v(O+4*run+2*j)}, {v(O+4*run+2*j+1)}")
    A("v_bfe_u32 v18, v1, 3, 1")
    A("v_lshlrev_b32 v18, 10, v18")
    A("v_bfe_u32 v19, v1, 4, 1")
    A("v_lshl_add_u32 v18, v19, 7, v18")
    A("v_and_b32 v19, 7, v1")
    A("v_lshl_add_u32 v18, v19, 4, v18")
    A("v_lshrrev_b32 v19, 5, v1")
    A("v_lshl_add_u32 v18, v19, 8, v18")
    A("s_lshl_b32 s28, s21, 17")
    A("s_add_u32 s28, s28, s35")
    A(f"buffer_store_dwordx4 {v(P,4)}, v18, s[36:39], s28 offen{STF}")
    A(f"buffer_store_dwordx4 {v(P+4,4)}, v18, s[36:39], s28 offen offset:512{STF}")
    srd(A, 48, 6, WS_CS, 4*7168*4)
    A("s_lshl_b32 s33, s33, 1")
    A("s_add_u32 s33, s33, s29")
    A(f"s_mul_i32 s33, s33, {7168*4}")
    A("s_lshl_b32 s34, s32, 8")
    A("s_add_u32 s33, s33, s34")
    A("s_lshl_b32 s34, s31, 6")
    A("s_add_u32 s33, s33, s34")
    A("v_cmp_ne_u32 vcc, 0, v5")
    A("v_mov_b32 v19, 0x7fffffff")
    A("s_cmp_lt_u32 s2, 224")
    A(f"s_cselect_b32 s50, {4*7168*4}, 0")
    A("v_cndmask_b32 v19, v1, v19, vcc")
    A(f"buffer_store_dwordx4 v[136:139], v19, s[48:51], s33 offen{STF}")
    pub_prep(A, 2, 22, 21)
    A("s_waitcnt lgkmcnt(0)")
    def slow():
        A.label("attn_slow")
        A("v_mov_b32 v18, 0xff800000")
        A("s_mov_b32 s28, 0")
        A.label("attn_slow1")
        A(f"buffer_load_dwordx4 {v(KF,4)}, v6, s[8:11], s28 offen{LDF}")
        A(f"buffer_load_dwordx4 {v(KF+4,4)}, v6, s[8:11], s28 offen offset:1024{LDF}")
        A("s_waitcnt vmcnt(0)")
        A("s_nop 15")
        A(mf32(S0, KF, Q, "0"))
        A(mf32(S0, KF+4, Q+4))
        A("s_nop 15")
        A("s_nop 3")
        for i in range(0, 16, 2): A(f"v_max3_f32 v18, v18, {v(S0+i)}, {v(S0+i+1)}")
        A("s_add_u32 s28, s28, 2048")
        A("s_cmp_lt_u32 s28, 131072")
        A("s_cbranch_scc1 attn_slow1")
        A("v_mov_b32 v19, v18")
        A("s_nop 1")
        A("v_permlane32_swap_b32 v19, v18")
        A("s_nop 1")
        A("v_max_f32 v18, v18, v19")
        for i in range(16): A(f"v_sub_f32 {v(NEGM+i)}, 0, v18")
        for i in range(16): A(f"v_mov_b32 {v(O+i)}, 0")
        for i in range(4): A(f"v_mov_b32 {v(L+i)}, 0")
        A("s_mov_b32 s28, 0")
        A.label("attn_slow2")
        A(f"buffer_load_dwordx4 {v(KF,4)}, v6, s[8:11], s28 offen{LDF}")
        A(f"buffer_load_dwordx4 {v(KF+4,4)}, v6, s[8:11], s28 offen offset:1024{LDF}")
        A(f"buffer_load_dwordx4 {v(VF,4)}, v6, s[12:15], s28 offen{LDF}")
        A(f"buffer_load_dwordx4 {v(VF+4,4)}, v6, s[12:15], s28 offen offset:1024{LDF}")
        A("s_waitcnt vmcnt(0)")
        A(mf32(S0, KF, Q, v(NEGM, 16)))
        A(mf32(S0, KF+4, Q+4))
        A("s_nop 15")
        A("s_nop 3")
        for i in range(16): A(f"v_exp_f32 {v(S0+i)}, {v(S0+i)}")
        A("s_nop 0")
        for i in range(8): A(f"v_cvt_pk_bf16_f32 {v(P+i)}, {v(S0+2*i)}, {v(S0+2*i+1)}")
        A("s_nop 1")
        A(mf32(O, VF, P))
        A(mf32(O, VF+4, P+4))
        A(mf16(L, ONES, P))
        A(mf16(L, ONES, P+4))
        A("s_nop 15")
        A("s_add_u32 s28, s28, 2048")
        A("s_cmp_lt_u32 s28, 131072")
        A("s_cbranch_scc1 attn_slow2")
        A("s_nop 15")
        A("s_branch attn_fin")
    return slow

HEADER = open("sequential_preLN__mha_block__glu_gated_glu__prompt.s.ref").read().split("; Override launch")[0]

def build(path):
    from mk2 import ph_proj, ph_gu, ph_down2, ph_down3
    A = Asm()
    A.raw(f".globl {NAME}"); A.raw(".p2align 8"); A.raw(f".type {NAME},@function"); A.label(NAME)
    A("s_cmp_ge_u32 s2, 256")
    A("s_cbranch_scc1 the_end")
    ph_ln_qkv(A)
    slow = ph_attn(A)
    ph_proj(A, 3, True)
    ph_gu(A)
    if OPT("SPLITK", 1) == 2: ph_down3(A)
    elif OPT("SPLITK", 1) == 1: ph_down2(A)
    else: ph_proj(A, 5, False)
    stamp_flush(A)
    A.label("the_end")
    A("s_endpgm")
    slow()
    A.label("code_end")
    out = HEADER
    out += "; @launch grid=(256,1,1) block=(512,1,1) lds=163840\n"
    out += '.amdgcn_target "amdgcn-amd-amdhsa--gfx950"\n.text\n'
    out += A.text()
    out += '.section .rodata,"a"\n'
    out += kernel_desc(NAME, 256, 102 if PROF else 64)
    open(path, "w").write(out)

if __name__ == "__main__":
    build(sys.argv[1] if len(sys.argv) > 1 else "sequential_preLN__mha_block__glu_gated_glu__prompt.s")
```

```python
from mk import *

def ph_proj(A, ph, is_wo):
    name = "wo" if is_wo else "dn"
    K = 1024 if is_wo else 3584
    ws_x = WS_O if is_wo else WS_HACT
    wp = 40 if is_wo else 42
    R, SLOT, NST = 6, 24576, K // 64
    STATS_LDS = R * SLOT
    A("s_and_b32 s21, s2, 3")
    A("s_lshl_b32 s21, s21, 2")
    A("s_bfe_u32 s28, s2, 0x20003")
    A("s_add_u32 s21, s21, s28")
    A("s_bfe_u32 s22, s2, 0x10002")
    A("s_lshl_b32 s22, s22, 3")
    A("s_lshr_b32 s28, s2, 5")
    A("s_add_u32 s22, s22, s28")
    PSC = OPT("WSC", 0) if is_wo else OPT("DSC", 4)
    PG = min(4, OPT("PG", 4))
    if PSC:
        A("s_add_u32 s39, s21, s22")
        A(f"s_and_b32 s39, s39, {PG-1}")
        A(f"s_mul_i32 s39, s39, {PSC//PG}")
    def wdma():
        if not is_wo:
            return [[f"s_add_u32 m0, {s(sWr)}, {s(sM)}", "s_nop 0",
                     f"buffer_load_dwordx4 v6, s[12:15], {s(sGo)} offen{LDF} lds"],
                    [f"buffer_load_dwordx4 v6, s[12:15], {s(sGo)} offen offset:1024{LDF} lds",
                     ] + adv(8192, PSC)]
        return [[f"s_add_u32 m0, {s(sWr)}, {s(sM)}", "s_nop 0",
                 f"buffer_load_dwordx4 v7, s[12:15], {s(sGo)} offen lds"],
                [f"buffer_load_dwordx4 v8, s[12:15], {s(sGo)} offen offset:1024 lds",
                 ] + adv(64*2048, PSC)]
    DX = 0x40000
    ACC = 32
    def acc(f, i): return ACC + (i * 2 + f) * 4
    SET = [48, 80]
    def xf(p, kk, i): return SET[p] + (kk * 2 + i) * 4
    def wf(p, kk, f): return SET[p] + 16 + (kk * 2 + f) * 4
    RES = 240
    NRES = 4 if is_wo else 2
    A("s_lshr_b32 s33, s20, 2")
    A("s_lshl_b32 s34, s22, 1")
    A("s_add_u32 s34, s34, s33")
    A("s_lshl_b32 s34, s34, 7")
    A("s_lshl_b32 s35, s21, 3")
    A("s_add_u32 s34, s34, s35")
    A("s_lshl_b32 s35, s31, 1")
    A("s_add_u32 s34, s34, s35")
    A("s_lshl_b32 s34, s34, 10")
    A("s_lshl_b32 s35, s21, 18")
    A("s_lshl_b32 s36, s31, 16")
    A("s_add_u32 s35, s35, s36")
    A("s_lshl_b32 s36, s22, 7")
    A("s_add_u32 s35, s35, s36")
    A("s_lshl_b32 s36, s33, 6")
    A("s_add_u32 s35, s35, s36")
    A("s_add_u32 s36, s35, 32768")
    srd(A, 16, 6, WS_H, 4*MB)
    srd(A, 48, 44, 0, 4*MB)
    if is_wo:
        srd(A, 12, wp, 0, K*2048)
    else:
        A(f"s_mul_i32 s28, s22, {3584*128}")
        A("s_add_u32 s4, s6, s28")
        A("s_addc_u32 s5, s7, 0")
        srd(A, 12, 4, WS_WD, 3584*128)
    srd(A, 8, 6, ws_x, 2048*K*2)
    def resload():
        if is_wo:
            for i in range(2):
                A(f"buffer_load_dwordx4 {v(RES+4*i,4)}, v9, s[48:51], {s(35+i)} offen")
        else:
            for i in range(2):
                A(f"buffer_load_dwordx4 {v(RES+4*i,4)}, v6, s[16:19], s34 offen offset:{i*1024}{LDF}")
    A("v_lshlrev_b32 v9, 11, v5")
    A("v_and_b32 v15, 1, v2")
    A("v_lshl_add_u32 v9, v15, 5, v9")
    A("v_lshrrev_b32 v15, 1, v2")
    A("v_lshl_add_u32 v9, v15, 4, v9")
    A("s_lshl_b32 s28, s31, 11")
    A("v_add_u32 v10, s28, v6")
    A("v_lshl_add_u32 v11, v2, 2, v3")
    A("v_lshlrev_b32 v11, 7, v11")
    A("v_lshl_add_u32 v11, v4, 3, v11")
    A("v_add_u32 v11, 16384, v11")
    A("v_bfe_u32 v12, v1, 3, 2")
    A("s_lshl_b32 s29, s33, 1")
    A("v_xor_b32 v13, s29, v12")
    A("v_lshl_add_u32 v13, v13, 5, v11")
    A("v_xor_b32 v14, 32, v13")
    A("s_lshr_b32 s32, s21, 1")
    A("s_cmp_lt_u32 s20, 4")
    A(f"s_cbranch_scc1 {name}_A0")
    if is_wo:
        w_swz_voff(A, 7, 2048)
        A(f"v_add_u32 v8, {8*2048-1024}, v7")
        A("s_lshl_b32 s28, s31, 15")
        A("s_lshl_b32 s29, s22, 7")
        A(f"s_add_u32 {s(sGo)}, s28, s29")
    else:
        A(f"s_lshl_b32 {s(sGo)}, s31, 11")
    if PSC: rot_init(A, 64*2048 if is_wo else 8192, PSC)
    A(f"s_lshl_b32 {s(sM)}, s31, 11")
    A(f"s_add_u32 {s(sM)}, {s(sM)}, 16384")
    if not OPT("PUBFIRST", 1):
        A("s_waitcnt vmcnt(0)")
        stamp(A, ph - 1, 4)
    publish(A)
    resload()
    fill_ring(A, R, SLOT, wdma)
    A(f"s_branch {name}_C0")
    A.label(f"{name}_A0")
    A("s_lshr_b32 s28, s31, 1")
    A("s_lshl_b32 s28, s28, 7")
    A("s_lshl_b32 s29, s21, 3")
    A("s_add_u32 s28, s28, s29")
    A("s_and_b32 s29, s31, 1")
    A("s_lshl_b32 s29, s29, 2")
    A("s_add_u32 s28, s28, s29")
    A(f"s_lshl_b32 {s(sGo)}, s28, 10")
    if PSC: rot_init(A, DX, PSC)
    A(f"s_lshl_b32 {s(sM)}, s31, 12")
    if not OPT("PUBFIRST", 1):
        A("s_waitcnt vmcnt(0)")
        stamp(A, ph - 1, 4)
    publish(A)
    resload()
    A.label(f"{name}_C0")
    stamp(A, ph, 0)
    wait_flags(A, ph - 1, 32, 32)
    stamp(A, ph, 1)
    def accinit():
        if is_wo:
            for i in range(2):
                A(f"v_permlane16_swap_b32 {v(RES+4*i)}, {v(RES+4*i+2)}")
                A(f"v_permlane16_swap_b32 {v(RES+4*i+1)}, {v(RES+4*i+3)}")
            A("s_nop 1")
        for i in range(2):
            for f in range(2):
                for h in range(2):
                    src = RES + 4*i + 2*f + h
                    A(f"v_lshlrev_b32 {v(acc(f,i)+2*h)}, 16, {v(src)}")
                    A(f"v_and_b32 {v(acc(f,i)+2*h+1)}, 0xffff0000, {v(src)}")
    def reads(p):
        out = []
        for kk in range(2):
            for f in range(2):
                for t in range(2):
                    out.append([f"ds_read_b64_tr_b16 {v(wf(p,kk,f)+2*t,2)}, {v(17+f)} offset:{kk*4096+t*2048}"])
            for i in range(2):
                out.append([f"ds_read_b128 {v(xf(p,kk,i),4)}, v16 offset:{kk*8192+i*1024}"])
        return out
    def addr_upd():
        return [f"v_add_u32 v16, {s(sRd)}, v10", f"v_add_u32 v17, {s(sRd)}, v13", f"v_add_u32 v18, {s(sRd)}, v14"]
    def mfmas(p):
        return [mf16(acc(f, i), wf(p, kk, f), xf(p, kk, i)) for kk in range(2) for f in range(2) for i in ((0, 1) if (f == 0 or not OPT("SNAKE", 1)) else (1, 0))]
    A("s_cmp_ge_u32 s20, 4")
    A(f"s_cbranch_scc1 {name}_B")
    fill_ring(A, R, SLOT, lambda: xdma(DX, PSC), bar=True)
    A(f"s_waitcnt vmcnt({4*R})")
    accinit()
    gemm_loop(A, ph, f"{name}_loopA", "A", R, SLOT, NST, 4, mfmas, reads, lambda: xdma(DX, PSC), addr_upd,
              {6: code_touch_list(A, f"{name}_epi", 251, 252), ('x', 5): 1, ('x', 4): 1, ('x', 3): 1, ('x', 2): 1} if OPT("CTW", 1) else None)
    A(f"s_branch {name}_epi")
    A.label(f"{name}_B")
    A(f"s_waitcnt vmcnt({2*R})")
    accinit()
    fill_ring(A, R, SLOT, None, bar=True)
    gemm_loop(A, ph, f"{name}_loopB", "B", R, SLOT, NST, 2, mfmas, reads, wdma, addr_upd)
    A.label(f"{name}_epi")
    T = 112
    for i in range(2):
        for f in range(2):
            for h in range(2):
                A(f"v_cvt_pk_bf16_f32 {v(T+4*i+2*f+h)}, {v(acc(f,i)+2*h)}, {v(acc(f,i)+2*h+1)}")
    if is_wo:
        for i in range(2):
            A(f"buffer_store_dwordx4 {v(T+4*i,4)}, v6, s[16:19], s34 offen offset:{i*1024}{STF}")
        for i in range(2):
            sm, sq = 20 + 2*i, 21 + 2*i
            b = acc(0, i)
            A(f"v_add_f32 {v(sm)}, {v(b)}, {v(b+1)}")
            A(f"v_mul_f32 {v(sq)}, {v(b)}, {v(b)}")
            A(f"v_fmac_f32 {v(sq)}, {v(b+1)}, {v(b+1)}")
            for j in range(2, 8):
                A(f"v_add_f32 {v(sm)}, {v(sm)}, {v(b+j)}")
                A(f"v_fmac_f32 {v(sq)}, {v(b+j)}, {v(b+j)}")
        reduce_rows16_32(A, [20, 21, 22, 23], [24, 25, 26, 27])
        A("s_lshl_b32 s28, s31, 9")
        A("s_lshl_b32 s29, s33, 3")
        A("s_add_u32 s28, s28, s29")
        A(f"s_add_u32 s28, s28, {STATS_LDS}")
        A("v_lshlrev_b32 v24, 4, v5")
        A("v_add_u32 v24, s28, v24")
        A("ds_write_b64 v24, v[20:21]")
        A("ds_write_b64 v24, v[22:23] offset:256")
        A(f"s_load_dwordx4 s[44:47], s[0:1], {KA_WG}")
        A("s_waitcnt lgkmcnt(0)")
        A("s_barrier")
        A("s_cmp_ge_u32 s20, 2")
        A(f"s_cbranch_scc1 {name}_end2")
        A("v_lshlrev_b32 v24, 4, v0")
        A(f"v_add_u32 v24, {STATS_LDS}, v24")
        A("ds_read_b128 v[20:23], v24")
        srd(A, 8, 6, WS_ST, 2048*128)
        A("v_lshlrev_b32 v24, 3, v0")
        A("s_lshl_b32 s28, s21, 10")
        A("s_lshl_b32 s29, s22, 14")
        A("s_add_u32 s28, s28, s29")
        A("s_waitcnt lgkmcnt(0)")
        A("v_add_f32 v20, v20, v22")
        A("v_add_f32 v21, v21, v23")
        A(f"buffer_store_dwordx2 v[20:21], v24, s[8:11], s28 offen{STF}")
        A.label(f"{name}_end2")
        A("s_and_b32 s38, s21, 1")
        A("s_lshl_b32 s38, s38, 4")
        A("s_add_u32 s38, s38, s22")
        pub_prep(A, ph, 32, 38)
    else:
        A("s_nop 1")
        for i in range(2):
            A(f"v_permlane16_swap_b32 {v(T+4*i)}, {v(T+4*i+2)}")
            A(f"v_permlane16_swap_b32 {v(T+4*i+1)}, {v(T+4*i+3)}")
        A("s_nop 1")
        for i in range(2):
            A(f"buffer_store_dwordx4 {v(T+4*i,4)}, v9, s[48:51], {s(35+i)} offen{OUTF}")
        if PROF:
            A("s_waitcnt vmcnt(0)")
            stamp(A, ph, 4)

def ph_gu(A):
    ph = 4
    R, SLOT, NST = 5, 30720, 32
    SL = R * SLOT
    A("s_and_b32 s21, s2, 1")
    A("s_lshl_b32 s21, s21, 2")
    A("s_bfe_u32 s28, s2, 0x20003")
    A("s_add_u32 s21, s21, s28")
    A("s_bfe_u32 s22, s2, 0x20001")
    A("s_lshl_b32 s22, s22, 3")
    A("s_lshr_b32 s28, s2, 5")
    A("s_add_u32 s22, s22, s28")
    def wdma():
        return [[f"s_add_u32 m0, {s(sWr)}, {s(sM)}", "s_mov_b64 exec, s[34:35]",
                 f"buffer_load_dwordx4 v7, s[12:15], {s(sGo)} offen lds",
                 f"buffer_load_dwordx4 v8, s[12:15], {s(sGo)} offen offset:896 lds",
                 f"s_add_u32 m0, m0, 7168", "s_nop 0",
                 f"buffer_load_dwordx4 v7, s[16:19], {s(sGo)} offen lds",
                 f"buffer_load_dwordx4 v8, s[16:19], {s(sGo)} offen offset:896 lds",
                 "s_mov_b64 exec, -1",
                 f"s_add_u32 {s(sGo)}, {s(sGo)}, {32*7168}"]]
    srd(A, 12, 44, 0, 7*MB)
    srd(A, 16, 46, 0, 7*MB)
    srd(A, 8, 6, WS_H, 4*MB)
    A("s_cmp_lt_u32 s20, 4")
    A("s_cbranch_scc1 gu_A0")
    if OPT("CT", 1) >= 2: code_touch(A, 255)
    A("v_mul_u32_u24 v7, 4682, v1")
    A("v_lshrrev_b32 v7, 16, v7")
    A("v_mul_u32_u24 v8, 14, v7")
    A("v_sub_u32 v8, v1, v8")
    A("v_mul_u32_u24 v7, 7168, v7")
    A("v_lshl_add_u32 v7, v8, 4, v7")
    A(f"v_add_u32 v8, {4*7168-896}, v7")
    A("s_mov_b32 s34, -1")
    A("s_mov_b32 s35, 0x00ffffff")
    A(f"s_mul_i32 s28, s31, {8*7168}")
    A("s_mul_i32 s29, s22, 224")
    A(f"s_add_u32 {s(sGo)}, s28, s29")
    A(f"s_mul_i32 {s(sM)}, s31, 1792")
    A(f"s_add_u32 {s(sM)}, {s(sM)}, 16384")
    GE = OPT("GE", 0)
    fill_ring(A, R, SLOT, wdma, 0, GE)
    if not OPT("PUBFIRST", 1):
        A(f"s_waitcnt vmcnt({4*GE})")
        stamp(A, 3, 4)
    publish(A)
    fill_ring(A, R, SLOT, wdma, GE, R)
    A("s_branch gu_C0")
    A.label("gu_A0")
    A("s_lshl_b32 s28, s21, 4")
    A("s_lshl_b32 s29, s31, 2")
    A("s_add_u32 s28, s28, s29")
    A(f"s_lshl_b32 {s(sGo)}, s28, 10")
    A(f"s_lshl_b32 {s(sM)}, s31, 12")
    for i in range(32, 152): A(f"v_mov_b32 {v(i)}, 0")
    if not OPT("PUBFIRST", 1):
        A("s_waitcnt vmcnt(0)")
        stamp(A, 3, 4)
    publish(A)
    A.label("gu_C0")
    srd(A, 44, 6, WS_ST, 2048*128)
    srd(A, 48, 6, WS_CS, 4*7168*4)
    srd(A, 52, 6, WS_HACT, 2048*3584*2)
    A("s_and_b32 s36, s22, 1")
    A("s_cmp_eq_u32 s36, 1")
    A("s_cselect_b32 s37, 3, 0")
    A("s_cselect_b32 s38, 1, 4")
    A("s_cselect_b32 s39, 0, 6")
    A("s_cmp_ge_u32 s20, 4")
    A("s_cselect_b32 s37, s38, s37")
    A("s_lshl_b32 s28, s31, 12")
    A("v_add_u32 v10, s28, v6")
    A("v_lshl_add_u32 v11, v2, 2, v3")
    A("v_mul_u32_u24 v11, 224, v11")
    A("v_lshl_add_u32 v11, v4, 3, v11")
    A("v_add_u32 v11, 16384, v11")
    A("s_lshl_b32 s28, s39, 5")
    A("v_add_u32 v12, s28, v11")
    A("s_lshl_b32 s28, s37, 5")
    A("v_add_u32 v11, s28, v11")
    A("v_and_b32 v13, 255, v0")
    A("v_lshlrev_b32 v14, 3, v13")
    A("s_lshl_b32 s32, s21, 11")
    A("v_lshlrev_b32 v15, 2, v13")
    A(f"v_add_u32 v9, {(3584-112)*4}, v15")
    A("v_cmp_gt_u32 vcc, 112, v13")
    A("v_mov_b32 v19, 0x7fffffff")
    A("s_mul_i32 s33, s22, 448")
    A("v_cndmask_b32 v15, v9, v15, vcc")
    A("v_cmp_gt_u32 vcc, 224, v13")
    A("s_nop 1")
    A("v_cndmask_b32 v15, v19, v15, vcc")
    A("s_cmp_lt_u32 s20, 4")
    A("s_cbranch_scc1 gu_Z")
    for i in range(32, 120): A(f"v_mov_b32 {v(i)}, 0")
    A.label("gu_Z")
    stamp(A, ph, 0)
    wait_flags(A, 3, 21, 32, also_all=2)
    for i in range(24, 32): A(f"v_mov_b32 {v(i)}, 0")
    stamp(A, ph, 1)
    def body(nf, tag):
        def wsrc(j):
            if nf == 3 and j == 2: return 18, 0
            return 17, j * 32
        ACC = 24
        def acc(j, gu, i): return ACC + ((j * 2 + gu) * 4 + i) * 4
        NS = 16 + nf * 8
        SET = [ACC + nf * 32, ACC + nf * 32 + NS]
        def xf(p, i): return SET[p] + i * 4
        def wf(p, j, gu): return SET[p] + 16 + (j * 2 + gu) * 4
        if tag == "A":
            fill_ring(A, R, SLOT, lambda: xdma(0x20000), bar=True)
        else:
            fill_ring(A, R, SLOT, None, bar=True)
        hook = None
        if tag == "A" and OPT("CTG", 1):
            hook = {5: code_touch_list(A, "gu_epiA", 251, 252), ('x', 4): 1, ('x', 3): 1, ('x', 2): 1}
        if tag == "B":
            h1 = []
            for j in range(16):
                h1 += [f"buffer_load_dwordx2 {v(200+2*j,2)}, v14, s[44:47], s32 offen{LDF}", "s_add_u32 s32, s32, 16384"]
            for j in range(4):
                h1 += [f"buffer_load_dword {v(232+j)}, v15, s[48:51], s33 offen{LDF}", f"s_add_u32 s33, s33, {7168*4}"]
            hook = ["s_waitcnt vmcnt(0)"]
            for j in range(1, 8):
                for q in (200, 201, 216, 217):
                    hook.append(f"v_add_f32 {v(q)}, {v(q)}, {v(q+2*j)}")
            hook += ["v_add_f32 v200, v200, v216", "v_add_f32 v201, v201, v217",
                "v_add_f32 v232, v232, v233", "v_add_f32 v234, v234, v235", "v_add_f32 v232, v232, v234",
                f"v_mul_f32 v200, {f32(-1/1024)}, v200", f"v_mul_f32 v201, {f32(1/1024)}, v201",
                "v_fma_f32 v201, -v200, v200, v201", "v_max_f32 v201, 0, v201", f"v_add_f32 v201, {f32(1e-5)}, v201",
                "v_rsq_f32 v202, v201", "v_sqrt_f32 v204, v201", "v_mov_b32 v201, v200",
                f"v_mul_f32 v202, {f32(-LOG2E)}, v202", "v_mov_b32 v205, v204", "v_mov_b32 v203, v202",
                "v_lshlrev_b32 v14, 4, v13", f"v_add_u32 v14, {SL}, v14", "ds_write_b128 v14, v[200:203]",
                "v_lshlrev_b32 v14, 3, v13", f"v_add_u32 v14, {SL+5120}, v14", "ds_write_b64 v14, v[204:205]",
                "v_lshlrev_b32 v15, 2, v13", f"v_add_u32 v15, {SL+4096}, v15", "ds_write_b32 v15, v232"]
            hook = {5: h1, 3: hook, ('x', 4): 20, ('x', 3): 20}
        def reads(p):
            out = []
            for i in range(4):
                out.append([f"ds_read_b128 {v(xf(p,i),4)}, v16 offset:{i*1024}"])
            for j in range(nf):
                ar, imm = wsrc(j)
                for gu in range(2):
                    for t in range(2):
                        out.append([f"ds_read_b64_tr_b16 {v(wf(p,j,gu)+2*t,2)}, {v(ar)} offset:{imm+gu*7168+t*3584}"])
            return out
        def addr_upd():
            o = [f"v_add_u32 v16, {s(sRd)}, v10", f"v_add_u32 v17, {s(sRd)}, v11"]
            if nf == 3: o.append(f"v_add_u32 v18, {s(sRd)}, v12")
            return o
        def mfmas(p):
            return [mf16(acc(j, gu, i), wf(p, j, gu), xf(p, i)) for j in range(nf) for gu in range(2) for i in (range(4) if (gu == 0 or not OPT("SNAKE", 1)) else range(3, -1, -1))]
        gemm_loop(A, ph, f"gu_loop{tag}", tag, R, SLOT, NST, 4, mfmas, reads, (lambda: xdma(0x20000)) if tag == "A" else wdma, addr_upd, hook)
        A.label(f"gu_epi{tag}")
        A(f"s_load_dwordx2 s[44:45], s[0:1], {KA_OUT}")
        A(f"s_load_dwordx2 s[46:47], s[0:1], {KA_DBG}")
        STR = 232
        CSR = 200
        A("s_lshl_b32 s28, s31, 10")
        A(f"s_add_u32 s28, s28, {SL}")
        A("v_lshlrev_b32 v14, 4, v5")
        A("v_add_u32 v14, s28, v14")
        for i in range(4):
            A(f"ds_read_b128 {v(STR+4*i,4)}, v14 offset:{i*256}")
        SGR = 184
        A("s_lshl_b32 s28, s31, 9")
        A(f"s_add_u32 s28, s28, {SL+5120}")
        A("v_lshlrev_b32 v14, 3, v5")
        A("v_add_u32 v14, s28, v14")
        for i in range(4):
            A(f"ds_read_b64 {v(SGR+2*i,2)}, v14 offset:{i*128}")
        A("v_lshlrev_b32 v9, 4, v2")
        A("s_lshl_b32 s28, s37, 6")
        A(f"s_add_u32 s28, s28, {SL+4096}")
        A("v_add_u32 v14, s28, v9")
        A("s_lshl_b32 s28, s39, 6")
        A(f"s_add_u32 s28, s28, {SL+4096}")
        A("v_add_u32 v15, s28, v9")
        for j in range(nf):
            for gu in range(2):
                ar, imm = (15, 0) if (nf == 3 and j == 2) else (14, j * 64)
                A(f"ds_read_b128 {v(CSR+(j*2+gu)*4,4)}, {v(ar)} offset:{imm+gu*448}")
        A("s_mul_i32 s28, s22, 7")
        A("s_add_u32 s29, s28, s37")
        A("s_lshr_b32 s29, s29, 1")
        A("s_lshl_b32 s29, s29, 17")
        A("s_lshl_b32 s33, s21, 4")
        A("s_lshl_b32 s36, s31, 2")
        A("s_add_u32 s33, s33, s36")
        A("s_lshl_b32 s33, s33, 10")
        A("s_add_u32 s56, s29, s33")
        A("s_add_u32 s57, s56, 0x20000")
        A("s_add_u32 s29, s28, s39")
        A("s_and_b32 s36, s29, 1")
        A("s_lshl_b32 s36, s36, 3")
        A("s_lshr_b32 s29, s29, 1")
        A("s_lshl_b32 s29, s29, 17")
        A("s_add_u32 s58, s29, s33")
        A("s_add_u32 s58, s58, s36")
        T = SET[0]
        tix = 0
        A("s_waitcnt lgkmcnt(0)")
        for jp in range(2):
            js = [2*jp, 2*jp+1] if 2*jp+1 < nf else [2*jp]
            for i in range(4):
                dst = T + 4 * (tix % 8); tix += 1
                c1 = v(STR+4*i+2, 2)
                nm_ = v(STR+4*i, 2)
                for j in js:
                    for gu in range(2):
                        a_ = acc(j, gu, i)
                        for h in range(2): A(f"v_pk_fma_f32 {v(a_+2*h,2)}, {v(CSR+(j*2+gu)*4+2*h,2)}, {nm_}, {v(a_+2*h,2)}")
                for j in js:
                    g_ = acc(j, 0, i)
                    for h in range(2): A(f"v_pk_mul_f32 {v(g_+2*h,2)}, {v(g_+2*h,2)}, {c1}")
                for j in js:
                    g_ = acc(j, 0, i)
                    for r in range(4): A(f"v_exp_f32 {v(g_+r)}, {v(g_+r)}")
                if len(js) == 1: A("s_nop 0")
                for j in js:
                    g_ = acc(j, 0, i)
                    for h in range(2): A(f"v_pk_fma_f32 {v(g_+2*h,2)}, {v(g_+2*h,2)}, {v(SGR+2*i,2)}, {v(SGR+2*i,2)}")
                for j in js:
                    g_ = acc(j, 0, i)
                    for r in range(4): A(f"v_rcp_f32 {v(g_+r)}, {v(g_+r)}")
                if len(js) == 1: A("s_nop 0")
                for j in js:
                    g_, u_ = acc(j, 0, i), acc(j, 1, i)
                    for h in range(2): A(f"v_pk_mul_f32 {v(u_+2*h,2)}, {v(u_+2*h,2)}, {v(g_+2*h,2)}")
                for jj, j in enumerate(js):
                    u_ = acc(j, 1, i)
                    for h in range(2):
                        A(f"v_cvt_pk_bf16_f32 {v(dst+2*jj+h)}, {v(u_+2*h)}, {v(u_+2*h+1)}")
                if len(js) == 2:
                    A(f"buffer_store_dwordx4 {v(dst,4)}, v6, s[52:55], {s(56+jp)} offen offset:{i*1024}{STF}")
                else:
                    A(f"buffer_store_dwordx2 {v(dst,2)}, v6, s[52:55], s58 offen offset:{i*1024}{STF}")
    A("s_cmp_ge_u32 s20, 4")
    A("s_cbranch_scc1 gu_B")
    body(4, "A")
    A("s_branch gu_end")
    A.label("gu_B")
    body(3, "B")
    A.label("gu_end")
    pub_prep(A, ph, 21, 22)


def ph_down2(A):
    ph = 5
    R, SLOT, NST = OPT("DR", 5), 32768, 28
    PSC = OPT("D2SC", 0)
    A("s_and_b32 s21, s2, 3")
    A("s_lshl_b32 s21, s21, 2")
    A("s_bfe_u32 s28, s2, 0x20003")
    A("s_add_u32 s21, s21, s28")
    A("s_lshr_b32 s22, s2, 5")
    A("s_bfe_u32 s26, s2, 0x10002")
    A("s_and_b32 s32, s20, 1")
    A("s_lshr_b32 s33, s20, 1")
    if PSC:
        A("s_add_u32 s39, s21, s22")
        A("s_and_b32 s39, s39, 3")
        A(f"s_mul_i32 s39, s39, {PSC//4}")
    srd(A, 12, 6, WS_WD, 7*MB)
    srd(A, 8, 6, WS_HACT, 2048*3584*2)
    wd = lambda: xdma(8192, PSC, 's[12:15]')
    xd = lambda: xdma(0x40000, PSC)
    srd(A, 52, 46, 0, 256)
    A("v_mov_b32 v20, 0")
    A("buffer_load_dwordx2 v[248:249], v20, s[52:55], 0 offen sc1")
    A("s_cmp_lt_u32 s20, 4")
    A("s_cbranch_scc1 d2_A0")
    A("s_lshl_b32 s28, s22, 1")
    A("s_lshr_b32 s29, s31, 1")
    A("s_add_u32 s28, s28, s29")
    A(f"s_mul_i32 s28, s28, {3584*128}")
    A(f"s_mul_i32 s29, s26, {1792*128}")
    A("s_add_u32 s28, s28, s29")
    A("s_and_b32 s29, s31, 1")
    A("s_lshl_b32 s29, s29, 12")
    A(f"s_add_u32 {s(sGo)}, s28, s29")
    if PSC: rot_init(A, 8192, PSC)
    A(f"s_lshl_b32 {s(sM)}, s31, 12")
    A(f"s_add_u32 {s(sM)}, {s(sM)}, 16384")
    fill_ring(A, R, SLOT, wd)
    A("s_branch d2_C0")
    A.label("d2_A0")
    A("s_mul_i32 s28, s26, 56")
    A("s_lshr_b32 s29, s31, 1")
    A("s_add_u32 s28, s28, s29")
    A("s_lshl_b32 s28, s28, 7")
    A("s_lshl_b32 s29, s21, 3")
    A("s_add_u32 s28, s28, s29")
    A("s_and_b32 s29, s31, 1")
    A("s_lshl_b32 s29, s29, 2")
    A("s_add_u32 s28, s28, s29")
    A(f"s_lshl_b32 {s(sGo)}, s28, 10")
    if PSC: rot_init(A, 0x40000, PSC)
    A(f"s_lshl_b32 {s(sM)}, s31, 12")
    A.label("d2_C0")
    ACC = 32
    def acc(f, i): return ACC + (i * 2 + f) * 4
    SET = [64, 112]
    def xf(p, kk, i): return SET[p] + (kk * 4 + i) * 4
    def wf(p, kk, f): return SET[p] + 32 + (kk * 2 + f) * 4
    RES = 240
    A("s_lshl_b32 s34, s22, 2")
    A("s_add_u32 s34, s34, s33")
    A("s_lshl_b32 s34, s34, 7")
    A("s_lshl_b32 s35, s21, 3")
    A("s_lshl_b32 s36, s32, 2")
    A("s_add_u32 s35, s35, s36")
    A("s_lshl_b32 s36, s26, 1")
    A("s_add_u32 s35, s35, s36")
    A("s_add_u32 s34, s34, s35")
    A("s_lshl_b32 s34, s34, 10")
    A("s_lshl_b32 s35, s35, 15")
    A("s_lshl_b32 s36, s22, 8")
    A("s_add_u32 s35, s35, s36")
    A("s_lshl_b32 s36, s33, 6")
    A("s_add_u32 s35, s35, s36")
    A("s_add_u32 s36, s35, 32768")
    srd(A, 16, 6, WS_H, 4*MB)
    srd(A, 48, 44, 0, 4*MB)
    A("v_lshlrev_b32 v9, 11, v5")
    A("v_and_b32 v15, 1, v2")
    A("v_lshl_add_u32 v9, v15, 5, v9")
    A("v_lshrrev_b32 v15, 1, v2")
    A("v_lshl_add_u32 v9, v15, 4, v9")
    A("s_lshl_b32 s28, s32, 12")
    A("s_lshl_b32 s29, s26, 11")
    A("s_add_u32 s3, s28, s29")
    A("v_add_u32 v10, s3, v6")
    A("s_xor_b32 s3, s3, 2048")
    A("v_add_u32 v15, s3, v6")
    A("v_lshl_add_u32 v11, v2, 2, v3")
    A("v_lshlrev_b32 v11, 7, v11")
    A("v_lshl_add_u32 v11, v4, 3, v11")
    A("s_lshr_b32 s28, s33, 1")
    A("s_lshl_b32 s28, s28, 13")
    A("s_add_u32 s28, s28, 16384")
    A("v_add_u32 v11, s28, v11")
    A("v_bfe_u32 v12, v1, 3, 2")
    A("s_and_b32 s29, s33, 1")
    A("s_lshl_b32 s29, s29, 1")
    A("v_xor_b32 v13, s29, v12")
    A("v_lshl_add_u32 v13, v13, 5, v11")
    A("v_xor_b32 v14, 32, v13")
    for i in range(16): A(f"v_mov_b32 {v(acc(0,2)+i)}, 0")
    A("s_lshr_b32 s40, s21, 1")
    A("s_lshl_b32 s41, s26, 7")
    stamp(A, ph, 0)
    wait_flags(A, 4, 40, 16, soff=41)
    stamp(A, ph, 1)
    for i in range(2):
        A(f"buffer_load_dwordx4 {v(RES+4*i,4)}, v6, s[16:19], s34 offen offset:{i*1024}{LDF}")
    def accinit():
        for i in range(2):
            for f in range(2):
                for h in range(2):
                    src = RES + 4*i + 2*f + h
                    A(f"v_lshlrev_b32 {v(acc(f,i)+2*h)}, 16, {v(src)}")
                    A(f"v_and_b32 {v(acc(f,i)+2*h+1)}, 0xffff0000, {v(src)}")
        A("s_movk_i32 s42, 0xfff")
        A("v_mov_b32 v244, v248")
        A("v_lshrrev_b32 v245, 12, v248")
        A("v_alignbit_b32 v246, v249, v248, 24")
        A("v_lshrrev_b32 v247, 4, v249")
    def reads(p):
        out = []
        for kk in range(2):
            for f in range(2):
                for t in range(2):
                    out.append([f"ds_read_b64_tr_b16 {v(wf(p,kk,f)+2*t,2)}, {v(17+f)} offset:{kk*4096+t*2048}"])
            for i in range(4):
                out.append([f"ds_read_b128 {v(xf(p,kk,i),4)}, {v(16 if i < 2 else 19)} offset:{kk*8192+(i&1)*1024}"])
        return out
    def addr_upd():
        return [f"v_add_u32 v16, {s(sRd)}, v10", f"v_add_u32 v17, {s(sRd)}, v13", f"v_add_u32 v18, {s(sRd)}, v14", f"v_add_u32 v19, {s(sRd)}, v15"]
    def mfmas(p):
        return [mf16(acc(f, i), wf(p, kk, f), xf(p, kk, i)) for ii in (2, 0) for kk in range(2) for f in range(2) for i in (ii, ii + 1)]
    A("s_cmp_ge_u32 s20, 4")
    A("s_cbranch_scc1 d2_B")
    fill_ring(A, R, SLOT, xd, bar=True)
    A(f"s_waitcnt vmcnt({4*R})")
    accinit()
    gemm_loop(A, ph, "d2_loopA", "A", R, SLOT, NST, 4, mfmas, reads, xd, addr_upd,
              {5: code_touch_list(A, "d2_epi", 251, 252), ('x', 4): 1, ('x', 3): 1, ('x', 2): 1} if OPT("CTD", 1) else None)
    A("s_branch d2_epi")
    A.label("d2_B")
    fill_ring(A, R, SLOT, None, bar=True)
    A("s_waitcnt vmcnt(0)")
    accinit()
    gemm_loop(A, ph, "d2_loopB", "B", R, SLOT, NST, 4, mfmas, reads, wd, addr_upd)
    A.label("d2_epi")
    srd(A, 8, 6, WS_Q if OPT('XBQ', 0) else WS_XB, 9*MB)
    A("s_lshl_b32 s28, s2, 3")
    A("s_add_u32 s28, s28, s20")
    A("s_xor_b32 s29, s28, 32")
    A("s_lshl_b32 s40, s28, 12")
    A("s_lshl_b32 s41, s29, 12")
    XTAG = OPT("XTAG", 0)
    if XTAG:
        for j in range(4):
            for r in range(4):
                A(f"v_bfi_b32 {v(acc(0,2)+4*j+r)}, s42, {v(244+r)}, {v(acc(0,2)+4*j+r)}")
            A(f"buffer_store_dwordx4 {v(acc(0,2)+4*j,4)}, v6, s[8:11], s40 offen offset:{j*1024} sc1")
        A(f"s_mov_b32 s28, {SPIN_MAX}")
        if OPT("XW", 1): A("s_waitcnt vmcnt(0)")
        if OPT("XDBG", 0): stamp(A, ph, 0)
        A.label("d2_poll")
        for j in range(4):
            A(f"buffer_load_dwordx4 {v(64+4*j,4)}, v6, s[8:11], s41 offen offset:{j*1024} sc1")
        for j in range(4):
            A(f"s_waitcnt vmcnt({3-j})")
            for r in range(4):
                A(f"v_xor_b32 {v(80+4*j+r)}, {v(244+r)}, {v(64+4*j+r)}")
            A(f"v_or3_b32 {v(80+4*j)}, {v(80+4*j)}, {v(81+4*j)}, {v(82+4*j)}")
            if j: A(f"v_or3_b32 {v(80+4*j)}, {v(80+4*j)}, {v(83+4*j)}, {v(76+4*j)}")
            else: A(f"v_or_b32 {v(80)}, {v(80)}, {v(83)}")
        A("v_and_b32 v92, s42, v92")
        A("v_cmp_ne_u32 vcc, 0, v92")
        A("s_nop 1")
        A("s_cmp_eq_u64 vcc, 0")
        A("s_cbranch_scc1 d2_got")
        A("s_sleep 1")
        A("s_sub_u32 s28, s28, 1")
        A("s_cmp_lg_u32 s28, 0")
        A("s_cbranch_scc1 d2_poll")
        A.label("d2_got")
        if OPT("XDBG", 0): stamp(A, ph, 1)
    else:
        for j in range(4):
            A(f"buffer_store_dwordx4 {v(acc(0,2)+4*j,4)}, v6, s[8:11], s40 offen offset:{j*1024} sc1")
        A(f"s_lshl_b32 s42, s28, {OPT('XFS', 7)}")
        A(f"s_add_u32 s42, s42, {8*MB}")
        A(f"s_lshl_b32 s43, s29, {OPT('XFS', 7)}")
        A(f"s_add_u32 s43, s43, {8*MB}")
        A("v_mov_b32 v20, 0")
        A(f"s_mov_b32 s28, {SPIN_MAX}")
        A("s_waitcnt vmcnt(0)")
        if OPT("XDBG", 0): stamp(A, ph, 0)
        A("s_mov_b64 exec, 1")
        A("buffer_store_dwordx2 v[248:249], v20, s[8:11], s42 offen sc1")
        A.label("d2_poll")
        A("buffer_load_dwordx2 v[22:23], v20, s[8:11], s43 offen sc1")
        A("s_waitcnt vmcnt(0)")
        A("v_cmp_ne_u64 vcc, v[248:249], v[22:23]")
        A("s_nop 1")
        A("s_cmp_eq_u64 vcc, 0")
        A("s_cbranch_scc1 d2_got")
        if OPT("XSLEEP", 1): A(f"s_sleep {OPT('XSLEEP', 1)}")
        A("s_sub_u32 s28, s28, 1")
        A("s_cmp_lg_u32 s28, 0")
        A("s_cbranch_scc1 d2_poll")
        A.label("d2_got")
        A("s_mov_b64 exec, -1")
        if OPT("XDBG", 0): stamp(A, ph, 1)
        for j in range(4):
            A(f"buffer_load_dwordx4 {v(64+4*j,4)}, v6, s[8:11], s41 offen offset:{j*1024} sc1")
    T = 112
    for i in range(2):
        if not XTAG: A(f"s_waitcnt vmcnt({2 - 2*i + i})")
        for q in range(4):
            A(f"v_pk_add_f32 {v(ACC+8*i+2*q,2)}, {v(ACC+8*i+2*q,2)}, {v(64+8*i+2*q,2)}")
        for f in range(2):
            for h in range(2):
                A(f"v_cvt_pk_bf16_f32 {v(T+4*i+2*f+h)}, {v(acc(f,i)+2*h)}, {v(acc(f,i)+2*h+1)}")
        A("s_nop 1")
        A(f"v_permlane16_swap_b32 {v(T+4*i)}, {v(T+4*i+2)}")
        A(f"v_permlane16_swap_b32 {v(T+4*i+1)}, {v(T+4*i+3)}")
        A("s_nop 1")
        A(f"buffer_store_dwordx4 {v(T+4*i,4)}, v9, s[48:51], {s(35+i)} offen{OUTF}")
    if PROF:
        A("s_waitcnt vmcnt(0)")
        stamp(A, ph, 4)


def ph_down3(A):
    ph = 5
    R, SLOT = OPT("DR", 5), 32768
    N0 = OPT("N0", 26)
    T = R + (R % 2)
    A("s_and_b32 s21, s2, 3")
    A("s_lshl_b32 s21, s21, 2")
    A("s_bfe_u32 s28, s2, 0x20003")
    A("s_add_u32 s21, s21, s28")
    A("s_lshr_b32 s22, s2, 5")
    A("s_bfe_u32 s26, s2, 0x10002")
    A("s_and_b32 s32, s20, 1")
    A("s_lshr_b32 s33, s20, 1")
    srd(A, 12, 6, WS_WD, 7*MB)
    srd(A, 8, 6, WS_HACT, 2048*3584*2)
    wd = lambda: xdma(8192, 0, 's[12:15]')
    xd = lambda: xdma(0x40000, 0)
    A("s_cmp_lt_u32 s20, 4")
    A("s_cbranch_scc1 d3_A0")
    A("s_lshl_b32 s28, s22, 1")
    A("s_lshr_b32 s29, s31, 1")
    A("s_add_u32 s28, s28, s29")
    A(f"s_mul_i32 s28, s28, {3584*128}")
    A(f"s_mul_i32 s29, s26, {N0*64*128}")
    A("s_add_u32 s28, s28, s29")
    A("s_and_b32 s29, s31, 1")
    A("s_lshl_b32 s29, s29, 12")
    A(f"s_add_u32 {s(sGo)}, s28, s29")
    A(f"s_lshl_b32 {s(sM)}, s31, 12")
    A(f"s_add_u32 {s(sM)}, {s(sM)}, 16384")
    srd(A, 52, 46, 0, 256)
    A("v_mov_b32 v20, 0")
    A("buffer_load_dwordx2 v[248:249], v20, s[52:55], 0 offen sc1")
    fill_ring(A, R, SLOT, wd)
    A("s_branch d3_C0")
    A.label("d3_A0")
    A(f"s_mul_i32 s28, s26, {2*N0}")
    A("s_lshr_b32 s29, s31, 1")
    A("s_add_u32 s28, s28, s29")
    A("s_lshl_b32 s28, s28, 7")
    A("s_lshl_b32 s29, s21, 3")
    A("s_add_u32 s28, s28, s29")
    A("s_and_b32 s29, s31, 1")
    A("s_lshl_b32 s29, s29, 2")
    A("s_add_u32 s28, s28, s29")
    A(f"s_lshl_b32 {s(sGo)}, s28, 10")
    A(f"s_lshl_b32 {s(sM)}, s31, 12")
    A.label("d3_C0")
    ACC = 32
    def acc(f, i): return ACC + (i * 2 + f) * 4
    SET = [64, 112]
    def xf(p, kk, i): return SET[p] + (kk * 4 + i) * 4
    def wf(p, kk, f): return SET[p] + 32 + (kk * 2 + f) * 4
    RES = 224
    A("s_lshl_b32 s34, s22, 2")
    A("s_add_u32 s34, s34, s33")
    A("s_lshl_b32 s34, s34, 7")
    A("s_lshl_b32 s35, s21, 3")
    A("s_lshl_b32 s36, s32, 2")
    A("s_add_u32 s35, s35, s36")
    A("s_add_u32 s34, s34, s35")
    A("s_lshl_b32 s34, s34, 10")
    A("s_lshl_b32 s35, s35, 15")
    A("s_lshl_b32 s36, s22, 8")
    A("s_add_u32 s35, s35, s36")
    A("s_lshl_b32 s36, s33, 6")
    A("s_add_u32 s35, s35, s36")
    A("s_add_u32 s36, s35, 32768")
    A("s_add_u32 s37, s36, 32768")
    A("s_add_u32 s38, s37, 32768")
    srd(A, 16, 6, WS_H, 4*MB)
    A("s_cmp_eq_u32 s26, 0")
    A(f"s_cselect_b32 s18, 0, {4*MB}")
    A(f"s_cselect_b32 s39, {(N0-T)//2}, {(56-N0-T)//2}")
    srd(A, 48, 44, 0, 4*MB)
    A("v_lshlrev_b32 v9, 11, v5")
    A("v_and_b32 v15, 1, v2")
    A("v_lshl_add_u32 v9, v15, 5, v9")
    A("v_lshrrev_b32 v15, 1, v2")
    A("v_lshl_add_u32 v9, v15, 4, v9")
    A("s_lshl_b32 s28, s32, 12")
    A("v_add_u32 v10, s28, v6")
    A("v_lshl_add_u32 v11, v2, 2, v3")
    A("v_lshlrev_b32 v11, 7, v11")
    A("v_lshl_add_u32 v11, v4, 3, v11")
    A("s_lshr_b32 s28, s33, 1")
    A("s_lshl_b32 s28, s28, 13")
    A("s_add_u32 s28, s28, 16384")
    A("v_add_u32 v11, s28, v11")
    A("v_bfe_u32 v12, v1, 3, 2")
    A("s_and_b32 s29, s33, 1")
    A("s_lshl_b32 s29, s29, 1")
    A("v_xor_b32 v13, s29, v12")
    A("v_lshl_add_u32 v13, v13, 5, v11")
    A("v_xor_b32 v14, 32, v13")
    A("s_lshr_b32 s28, s2, 3")
    A("s_lshl_b32 s28, s28, 2")
    A("s_and_b32 s29, s2, 3")
    A("s_add_u32 s28, s28, s29")
    A("s_lshl_b32 s28, s28, 3")
    A("s_add_u32 s28, s28, s20")
    A("s_lshl_b32 s41, s28, 13")
    A("s_add_u32 s42, s41, 4096")
    A("s_lshl_b32 s43, s28, 7")
    A(f"s_add_u32 s43, s43, {8*MB}")
    A("s_lshr_b32 s40, s21, 1")
    stamp(A, ph, 0)
    wait_flags(A, 4, 40, 32)
    stamp(A, ph, 1)
    for i in range(4):
        A(f"buffer_load_dwordx4 {v(RES+4*i,4)}, v6, s[16:19], s34 offen offset:{i*1024}{LDF}")
    def accinit():
        for i in range(4):
            for f in range(2):
                for h in range(2):
                    src = RES + 4*i + 2*f + h
                    A(f"v_lshlrev_b32 {v(acc(f,i)+2*h)}, 16, {v(src)}")
                    A(f"v_and_b32 {v(acc(f,i)+2*h+1)}, 0xffff0000, {v(src)}")
    def reads(p):
        out = []
        for kk in range(2):
            for f in range(2):
                for t in range(2):
                    out.append([f"ds_read_b64_tr_b16 {v(wf(p,kk,f)+2*t,2)}, {v(17+f)} offset:{kk*4096+t*2048}"])
            for i in range(4):
                out.append([f"ds_read_b128 {v(xf(p,kk,i),4)}, v16 offset:{kk*8192+i*1024}"])
        return out
    def addr_upd():
        return [f"v_add_u32 v16, {s(sRd)}, v10", f"v_add_u32 v17, {s(sRd)}, v13", f"v_add_u32 v18, {s(sRd)}, v14"]
    def mfmas(p):
        return [mf16(acc(f, i), wf(p, kk, f), xf(p, kk, i)) for kk in range(2) for f in range(2) for i in range(4)]
    A("s_cmp_ge_u32 s20, 4")
    A("s_cbranch_scc1 d3_B")
    fill_ring(A, R, SLOT, xd, bar=True)
    A(f"s_waitcnt vmcnt({4*R})")
    accinit()
    gemm_loop(A, ph, "d3_loopA", "A", R, SLOT, 28, 4, mfmas, reads, xd, addr_upd, cnt_sgpr=39)
    A("s_branch d3_epi")
    A.label("d3_B")
    fill_ring(A, R, SLOT, None, bar=True)
    A("s_waitcnt vmcnt(0)")
    accinit()
    gemm_loop(A, ph, "d3_loopB", "B", R, SLOT, 28, 4, mfmas, reads, wd, addr_upd, cnt_sgpr=39)
    A.label("d3_epi")
    srd(A, 8, 6, WS_Q, 9*MB)
    A("v_mov_b32 v20, 0")
    A("s_cmp_lg_u32 s26, 0")
    A("s_cbranch_scc1 d3_recv")
    for j in range(8):
        A(f"buffer_store_dwordx4 {v(ACC+4*j,4)}, v6, s[8:11], {s(41 + j//4)} offen offset:{(j%4)*1024} sc1")
    A("s_waitcnt vmcnt(0)")
    A("s_mov_b64 exec, 1")
    A("buffer_store_dwordx2 v[248:249], v20, s[8:11], s43 offen sc1")
    A("s_mov_b64 exec, -1")
    A("s_branch d3_end")
    A.label("d3_recv")
    A(f"s_mov_b32 s28, {SPIN_MAX}")
    A("s_mov_b64 exec, 1")
    A.label("d3_poll")
    A("buffer_load_dwordx2 v[22:23], v20, s[8:11], s43 offen sc1")
    A("s_waitcnt vmcnt(0)")
    A("v_cmp_ne_u64 vcc, v[248:249], v[22:23]")
    A("s_nop 1")
    A("s_cmp_eq_u64 vcc, 0")
    A("s_cbranch_scc1 d3_got")
    A("s_sleep 1")
    A("s_sub_u32 s28, s28, 1")
    A("s_cmp_lg_u32 s28, 0")
    A("s_cbranch_scc1 d3_poll")
    A.label("d3_got")
    A("s_mov_b64 exec, -1")
    for j in range(8):
        A(f"buffer_load_dwordx4 {v(64+4*j,4)}, v6, s[8:11], {s(41 + j//4)} offen offset:{(j%4)*1024} sc1")
    TT = 112
    for i in range(4):
        A(f"s_waitcnt vmcnt({6 - 2*i + i})")
        for q in range(4):
            A(f"v_pk_add_f32 {v(ACC+8*i+2*q,2)}, {v(ACC+8*i+2*q,2)}, {v(64+8*i+2*q,2)}")
        for f in range(2):
            for h in range(2):
                A(f"v_cvt_pk_bf16_f32 {v(TT+4*i+2*f+h)}, {v(acc(f,i)+2*h)}, {v(acc(f,i)+2*h+1)}")
        A("s_nop 1")
        A(f"v_permlane16_swap_b32 {v(TT+4*i)}, {v(TT+4*i+2)}")
        A(f"v_permlane16_swap_b32 {v(TT+4*i+1)}, {v(TT+4*i+3)}")
        A("s_nop 1")
        A(f"buffer_store_dwordx4 {v(TT+4*i,4)}, v9, s[48:51], {s(35+i)} offen{OUTF}")
    A.label("d3_end")
    if PROF:
        A("s_waitcnt vmcnt(0)")
        stamp(A, ph, 4)
```

```python
from mk import *

def ph_qkv_raw(A):
    R, SLOT, NST = 4, 40960, 16
    SC = 16
    CQ = 65536
    A(f"s_load_dwordx4 s[40:43], s[0:1], {KA_X}")
    A(f"s_load_dwordx4 s[4:7], s[0:1], {KA_DBG}")
    A("s_memrealtime s[62:63]")
    A("v_lshrrev_b32 v1, 6, v0")
    A("s_nop 0")
    A("v_readfirstlane_b32 s20, v1")
    lane_decomp(A)
    A("s_and_b32 s21, s2, 1")
    A("s_lshl_b32 s21, s21, 3")
    A("s_bfe_u32 s28, s2, 0x30003")
    A("s_add_u32 s21, s21, s28")
    A("s_bfe_u32 s22, s2, 0x20001")
    A("s_lshl_b32 s22, s22, 2")
    A("s_lshr_b32 s28, s2, 6")
    A("s_add_u32 s22, s22, s28")
    A("s_and_b32 s31, s20, 3")
    A("s_mov_b32 s39, s21")
    A("s_lshl_b32 s32, s2, 3")
    A("s_add_u32 s32, s32, s20")
    A("s_lshl_b32 s33, s32, 11")
    A("v_lshrrev_b32 v13, 3, v1")
    A("v_and_b32 v14, 7, v1")
    A("s_cmp_ge_u32 s20, 4")
    A("s_cbranch_scc1 r_B0")
    A("v_lshlrev_b32 v7, 11, v13")
    A("v_xor_b32 v20, v14, v2")
    A("v_lshl_add_u32 v7, v20, 4, v7")
    A("v_xor_b32 v8, 64, v7")
    A(f"v_add_u32 v8, {8*2048-1024}, v8")
    A(f"v_add_u32 v9, {16*2048-2048}, v7")
    A(f"v_add_u32 v10, {16*2048-2048}, v8")
    A("v_mov_b32 v11, 0")
    A("v_mov_b32 v12, 0")
    A("s_lshl_b32 s28, s21, 18")
    A("s_lshl_b32 s29, s31, 16")
    A(f"s_add_u32 {s(sGo)}, s28, s29")
    rot_init(A, 128, SC)
    A(f"s_lshl_b32 {s(sM)}, s31, 12")
    A("s_branch r_C0")
    A.label("r_B0")
    A("v_mul_u32_u24 v7, 6144, v13")
    A("v_and_b32 v20, 1, v2")
    A("v_lshlrev_b32 v20, 1, v20")
    A("v_xor_b32 v20, v14, v20")
    A("v_lshl_add_u32 v7, v20, 4, v7")
    A("v_xor_b32 v8, 64, v7")
    A(f"v_add_u32 v8, {8*6144-1024}, v8")
    A("v_add_u32 v9, 2048, v7")
    A("v_add_u32 v10, 2048, v8")
    A("v_add_u32 v11, 4096, v7")
    A("v_add_u32 v12, 4096, v8")
    A(f"s_mul_i32 s28, s31, {16*6144}")
    A("s_lshl_b32 s29, s22, 7")
    A(f"s_add_u32 {s(sGo)}, s28, s29")
    rot_init(A, 64*6144, SC)
    A(f"s_lshl_b32 {s(sM)}, s31, 11")
    A(f"s_add_u32 {s(sM)}, {s(sM)}, 16384")
    A.label("r_C0")
    A("s_waitcnt lgkmcnt(0)")
    if PROF: A("s_mov_b32 s66, s62")
    srd(A, 8, 40, 0, 4*MB)
    srd(A, 12, 42, 0, 6*MB)
    def xd():
        g = [[f"s_add_u32 m0, {s(sWr)}, {s(sM)}", "s_nop 0", f"buffer_load_dwordx4 v7, s[8:11], {s(sGo)} offen lds"]]
        for j in range(1, 4):
            g.append([f"buffer_load_dwordx4 {v(7+j)}, s[8:11], {s(sGo)} offen offset:{j*1024} lds"])
        g[-1] += adv(128, SC)
        return g
    def wd():
        g = []
        for seg in range(3):
            g.append([f"s_add_u32 m0, {s(sWr)}, {s(sM)}" if seg == 0 else "s_add_u32 m0, m0, 8192", "s_nop 0",
                      f"buffer_load_dwordx4 {v(7+2*seg)}, s[12:15], {s(sGo)} offen lds"])
            g.append([f"buffer_load_dwordx4 {v(8+2*seg)}, s[12:15], {s(sGo)} offen offset:1024 lds"])
        g[-1] += adv(64*6144, SC)
        return g
    ACC = 64
    def acc(f, i): return ACC + (f * 4 + i) * 4
    SET = [112, 168]
    def xf(p, kk, i): return SET[p] + (kk * 4 + i) * 4
    def wf(p, kk, f): return SET[p] + 32 + (kk * 3 + f) * 4
    def rowloads():
        A("buffer_load_dwordx4 v[224:227], v6, s[8:11], s33 offen")
        A("buffer_load_dwordx4 v[228:231], v6, s[8:11], s33 offen offset:1024")
    def setup():
        srd(A, 16, 4, 0, 256)
        A("s_or_b32 s28, s2, s20")
        A("s_cmp_lg_u32 s28, 0")
        l = A.newlabel("r_nopub")
        A(f"s_cbranch_scc1 {l}")
        A("s_or_b32 s62, s62, 1")
        A("v_mov_b32 v20, s62")
        A("v_mov_b32 v21, s63")
        A("v_mov_b32 v22, 0")
        A("s_mov_b64 exec, 1")
        A("buffer_store_dwordx2 v[20:21], v22, s[16:19], 0 offen sc1")
        A("s_mov_b64 exec, -1")
        A.label(l)
        srd(A, 44, 6, WS_RS, CQ + 16*3072*4)
        srd(A, 56, 6, WS_FL, 6 * 4096)
        A("v_mov_b32 v22, 0")
        A("v_mov_b32 v23, 0")
        A("s_and_b32 s28, s20, 1")
        A("s_lshl_b32 s28, s28, 13")
        A("v_lshrrev_b32 v20, 1, v5")
        A("v_xor_b32 v20, v20, v2")
        A("v_lshlrev_b32 v32, 7, v5")
        A("v_lshl_add_u32 v32, v20, 4, v32")
        A("v_add_u32 v32, s28, v32")
        A("v_xor_b32 v33, 64, v32")
        A("v_lshl_add_u32 v34, v2, 3, v3")
        A("v_lshlrev_b32 v34, 7, v34")
        A("v_lshl_add_u32 v34, v4, 3, v34")
        A("v_add_u32 v34, 16384, v34")
        A("v_bfe_u32 v20, v1, 3, 2")
        A("s_lshr_b32 s28, s20, 1")
        A("s_and_b32 s29, s28, 1")
        A("s_lshl_b32 s29, s29, 1")
        A("s_lshr_b32 s34, s28, 1")
        A("s_lshl_b32 s35, s34, 13")
        A("v_xor_b32 v35, s29, v20")
        A("v_lshl_add_u32 v35, v35, 5, v34")
        A("v_add_u32 v35, s35, v35")
        A("v_xor_b32 v36, 32, v35")
        A("v_xor_b32 v37, s28, v20")
        A("v_lshl_add_u32 v37, v37, 5, v34")
        A("v_add_u32 v37, 16384, v37")
        A("s_lshl_b32 s48, s34, 12")
        A("s_lshl_b32 s35, s22, 8")
        A("s_add_u32 s48, s48, s35")
        A("s_lshl_b32 s36, s29, 6")
        A("s_add_u32 s48, s48, s36")
        A(f"s_add_u32 s48, s48, {CQ}")
        A("s_lshl_b32 s49, s28, 6")
        A("s_add_u32 s49, s49, s35")
        A(f"s_add_u32 s49, s49, {CQ + 8192}")
        for i in range(48): A(f"v_mov_b32 {v(ACC+i)}, 0")
        for i in range(4): A(f"v_mov_b32 {v(24+i)}, 0x3f803f80")
    def rowstats():
        A("v_mov_b32 v28, 0")
        A("v_mov_b32 v29, 0")
        for j in range(8):
            A(f"v_lshlrev_b32 v20, 16, {v(224+j)}")
            A(f"v_and_b32 v21, 0xffff0000, {v(224+j)}")
            A("v_add_f32 v28, v28, v20")
            A("v_fmac_f32 v29, v20, v20")
            A("v_add_f32 v28, v28, v21")
            A("v_fmac_f32 v29, v21, v21")
        for r_ in (8, 4, 2, 1):
            A("s_nop 1")
            A(f"v_add_f32_dpp v28, v28, v28 row_ror:{r_} row_mask:0xf bank_mask:0xf")
            A(f"v_add_f32_dpp v29, v29, v29 row_ror:{r_} row_mask:0xf bank_mask:0xf")
        reduce_rows16_32(A, [28, 29], [20, 21])
        A(f"v_mul_f32 v28, {f32(-1/1024)}, v28")
        A(f"v_mul_f32 v29, {f32(1/1024)}, v29")
        A("v_fma_f32 v29, -v28, v28, v29")
        A("v_max_f32 v29, 0, v29")
        A(f"v_add_f32 v29, {f32(1e-5)}, v29")
        A("v_rsq_f32 v29, v29")
        A("s_nop 0")
        A("v_mul_f32 v28, v28, v29")
    def reads(p):
        out = []
        for kk in range(2):
            for f in range(3):
                for t in range(2):
                    out.append([f"ds_read_b64_tr_b16 {v(wf(p,kk,f)+2*t,2)}, {v(17+f)} offset:{kk*4096+t*512}"])
            for i in range(4):
                out.append([f"ds_read_b128 {v(xf(p,kk,i),4)}, {v(16-kk)} offset:{i*2048}"])
        return out
    def addr_upd():
        return [f"v_add_u32 v16, {s(sRd)}, v32", f"v_add_u32 v15, {s(sRd)}, v33", f"v_add_u32 v17, {s(sRd)}, v35",
                f"v_add_u32 v18, {s(sRd)}, v36", f"v_add_u32 v19, {s(sRd)}, v37"]
    def mfmas(p):
        M = []
        for kk in range(2):
            for f in range(3):
                for i in (range(4) if f % 2 == 0 else range(3, -1, -1)):
                    if f < 2: M.append(mf16(acc(f, i), wf(p, kk, f), xf(p, kk, i)))
                    else:     M.append(mf16(acc(f, i), xf(p, kk, i), wf(p, kk, f)))
        return M
    RQ = 224
    RV = [40, 44, 48, 52, 56, 60, 232, 236]
    CQK = 240
    CV = 251
    def stat_loads():
        L = ["s_and_b32 s28, s20, 1", "s_lshl_b32 s28, s28, 9", "s_lshl_b32 s29, s21, 10", "s_add_u32 s28, s28, s29",
             "v_lshlrev_b32 v20, 3, v5", "v_lshlrev_b32 v21, 5, v2",
             f"v_mul_u32_u24 v22, {3072*4}, v5", "v_lshl_add_u32 v22, v2, 4, v22",
             f"v_mul_u32_u24 v23, {4*3072*4}, v2", "v_lshl_add_u32 v23, v5, 2, v23"]
        for f in range(2):
            L.append(f"buffer_load_dwordx4 {v(CQK+4*f,4)}, v22, s[44:47], s48 offen offset:{64*f} sc1")
        for j in range(4):
            L.append(f"buffer_load_dword {v(CV+j)}, v23, s[44:47], s49 offen sc1")
            L.append(f"s_add_u32 s49, s49, {3072*4}")
        for i in range(4):
            L.append(f"buffer_load_dwordx2 {v(RQ+2*i,2)}, v20, s[44:47], s28 offen offset:{i*128} sc1")
        for i in range(4):
            for h in range(2):
                L.append(f"buffer_load_dwordx4 {v(RV[2*i+h],4)}, v21, s[44:47], s28 offen offset:{i*128+16*h} sc1")
        return L
    NSL = 18
    def pre_math():
        L = ["s_waitcnt vmcnt(0)"]
        L += [f"v_add_f32 {v(CV)}, {v(CV)}, {v(CV+1)}", f"v_add_f32 {v(CV+2)}, {v(CV+2)}, {v(CV+3)}", f"v_add_f32 {v(CV)}, {v(CV)}, {v(CV+2)}"]
        sw = [[f"v_mov_b32 {v(CV+1)}, {v(CV)}"], [f"v_permlane16_swap_b32 {v(CV+1)}, {v(CV)}"], [f"v_add_f32 {v(CV)}, {v(CV)}, {v(CV+1)}", f"v_mov_b32 {v(CV+1)}, {v(CV)}"],
              [f"v_permlane32_swap_b32 {v(CV+1)}, {v(CV)}"]]
        for q, r_ in enumerate((8, 4, 2, 1)):
            L += sw[q]
            for j in range(8):
                L.append(f"v_add_f32_dpp {v(CQK+j)}, {v(CQK+j)}, {v(CQK+j)} row_ror:{r_} row_mask:0xf bank_mask:0xf")
        L.append(f"v_add_f32 {v(CV)}, {v(CV)}, {v(CV+1)}")
        for i in range(8): L.append(f"v_mul_f32 {v(RQ+i)}, s39, {v(RQ+i)}")
        for i in range(4):
            for r_ in range(4):
                q = RV[2*i + r_//2] + 2*(r_ % 2)
                L.append(f"v_mul_f32 {v(q)}, {v(q)}, {v(CV)}")
        return L
    def flag_check():
        sk = A.newlabel("r_fc"); lp = A.newlabel("r_fl")
        L = ["s_cmp_lg_u32 s20, 0", f"s_cbranch_scc1 {sk}", f"s_mov_b32 s28, {SPIN_MAX}", f"{lp}:"]
        L.append(f"v_cmp_ne_u64 vcc, {s(sNON,2)}, v[40:41]")
        for j in range(1, 4):
            L += [f"v_cmp_ne_u64 s[60:61], {s(sNON,2)}, {v(40+2*j,2)}", "s_nop 1", "s_or_b64 vcc, vcc, s[60:61]"]
        L += ["s_nop 1", "s_cmp_eq_u64 vcc, 0", f"s_cbranch_scc1 {sk}"]
        for j in range(4):
            L.append(f"buffer_load_dwordx2 {v(40+2*j,2)}, v23, s[56:59], 0 offen offset:{j*512} sc1")
        L += ["s_waitcnt vmcnt(0)", "s_sub_u32 s28, s28, 1", "s_cmp_lg_u32 s28, 0", f"s_cbranch_scc1 {lp}", f"{sk}:"]
        return L
    scale_set = ["s_lshr_b32 s28, s20, 2", "s_cmp_eq_u32 s28, 0", f"s_cselect_b32 s39, {f32(QSCALE)}, 1.0"]
    ct = code_touch_list(A, "qkv_epi", 255, 39) if OPT("CTQ", 1) else []
    nct = 1 if ct else 0
    LP = OPT("LASTPOS", 0)
    tailA = {4: flag_check() + ct, ('x', 3): nct, 3: stat_loads() + scale_set, ('x', 2): NSL + nct, 1: pre_math(), 'lastpos': LP}
    tailB = {3: stat_loads() + scale_set, ('x', 2): NSL, 1: pre_math(), 'lastpos': LP}
    def top(role):
        mask = 0b110010 if role == "A" else 0b100000
        return [f"s_bitcmp1_b32 {mask}, {s(sCnt)}", f"s_cbranch_scc1 r_hook{role}", f"r_ret{role}:"]
    A("s_cmp_ge_u32 s20, 4")
    A("s_cbranch_scc1 r_B")
    for role, dma, nd, tl in (("A", xd, 4, tailA), ("B", wd, 6, tailB)):
        if role == "B": A.label("r_B")
        A(f"s_mov_b32 {s(sWr)}, 0")
        emit(A, dma())
        rowloads()
        A("s_barrier")
        A(f"s_mov_b32 {s(sWr)}, {SLOT}")
        emit(A, dma())
        setup()
        A("s_barrier")
        for st in (2, 3):
            A(f"s_mov_b32 {s(sWr)}, {st*SLOT}")
            emit(A, dma())
            if st == 2: A("s_barrier")
        A(f"s_waitcnt vmcnt({3*nd})")
        stamp(A, 1, 0)
        rowstats()
        stamp(A, 1, 1)
        gemm_loop(A, 1, f"r_loop{role}", role, R, SLOT, NST, nd, mfmas, reads, dma, addr_upd, tl, top_hook=top(role))
        A("s_branch qkv_epi")
        A.label(f"r_hook{role}")
        if role == "A":
            A(f"s_cmp_eq_u32 {s(sCnt)}, 5")
            A("s_cbranch_scc0 r_hookA2")
        for f in range(3):
            A(mf16(40 + 4*f, wf(0, 0, f), 24, "0"))
        for f in range(3):
            A(mf16(40 + 4*f, wf(0, 1, f), 24))
        A("v_cmp_ne_u32 vcc, 0, v5")
        A("v_mov_b32 v20, 0x7fffffff")
        A("s_bitcmp1_b32 s20, 0")
        A("s_cselect_b64 vcc, -1, vcc")
        A(f"s_mul_i32 s28, s21, {3072*4}")
        A("v_cndmask_b32 v21, v1, v20, vcc")
        A("s_add_u32 s29, s28, s49")
        A("s_add_u32 s28, s28, s48")
        A("v_cmp_ne_u32 vcc, 0, v1")
        A("v_mov_b32 v22, 0")
        A("s_lshl_b32 s3, s32, 3")
        A("v_cndmask_b32 v23, v22, v20, vcc")
        A("buffer_store_dwordx2 v[28:29], v23, s[44:47], s3 offen sc1")
        A("buffer_store_dwordx4 v[40:43], v21, s[44:47], s28 offen sc1")
        A("buffer_store_dwordx4 v[44:47], v21, s[44:47], s28 offen offset:64 sc1")
        A("buffer_store_dwordx4 v[48:51], v21, s[44:47], s29 offen sc1")
        if role == "A": A("buffer_load_dwordx2 v[248:249], v22, s[16:19], 0 offen sc1")
        A(f"s_branch r_ret{role}")
        if role == "A":
            A.label("r_hookA2")
            A("s_cmp_lg_u32 s20, 0")
            A("s_cbranch_scc1 r_retA")
            A(f"s_cmp_eq_u32 {s(sCnt)}, 4")
            A("s_cbranch_scc0 r_hookA3")
            A(f"s_mov_b32 s28, {SPIN_MAX}")
            A.label("r_nonce")
            A("v_readfirstlane_b32 s62, v248")
            A("v_readfirstlane_b32 s63, v249")
            A("s_nop 1")
            A("s_cmp_lg_u32 s62, 0")
            A("s_cbranch_scc1 r_gotnonce")
            A("buffer_load_dwordx2 v[248:249], v22, s[16:19], 0 offen sc1")
            A("s_waitcnt vmcnt(0)")
            A("s_sub_u32 s28, s28, 1")
            A("s_cmp_lg_u32 s28, 0")
            A("s_cbranch_scc1 r_nonce")
            A.label("r_gotnonce")
            A("s_lshl_b32 s3, s2, 3")
            A("buffer_store_dwordx2 v[248:249], v23, s[56:59], s3 offen sc1")
            A("s_branch r_retA")
            A.label("r_hookA3")
            A("v_lshlrev_b32 v23, 3, v1")
            for j in range(4):
                A(f"buffer_load_dwordx2 {v(40+2*j,2)}, v23, s[56:59], 0 offen offset:{j*512} sc1")
            A("s_branch r_retA")
    A.label("qkv_epi")
    A(f"s_load_dwordx2 s[40:41], s[0:1], {KA_WO}")
    A(f"s_load_dwordx4 s[44:47], s[0:1], {KA_WG}")
    A(f"s_load_dwordx2 s[42:43], s[0:1], {KA_WD}")
    srd(A, 16, 6, WS_Q, 12*MB)
    A("v_lshlrev_b32 v9, 9, v2")
    A("v_lshrrev_b32 v7, 3, v5")
    A("v_lshl_add_u32 v7, v7, 8, v9")
    A("v_and_b32 v8, 7, v5")
    A("v_lshl_add_u32 v7, v8, 4, v7")
    A("v_lshl_add_u32 v8, v5, 4, v9")
    A("s_lshr_b32 s28, s20, 1")
    A("s_and_b32 s29, s28, 1")
    A("s_lshr_b32 s32, s28, 1")
    A("s_and_b32 s33, s20, 1")
    A("s_lshl_b32 s34, s21, 2")
    A("s_lshl_b32 s33, s33, 1")
    A("s_add_u32 s34, s34, s33")
    A("s_lshl_b32 s34, s34, 11")
    A("s_lshl_b32 s35, s22, 1")
    A("s_add_u32 s36, s35, s29")
    A("s_lshl_b32 s36, s36, 17")
    A("s_add_u32 s36, s36, s34")
    A("s_lshl_b32 s37, s32, 22")
    A("s_add_u32 s36, s36, s37")
    A("s_add_u32 s38, s35, s32")
    A("s_lshl_b32 s38, s38, 17")
    A("s_add_u32 s38, s38, s34")
    A("s_lshl_b32 s37, s29, 8")
    A("s_add_u32 s38, s38, s37")
    A(f"s_add_u32 s38, s38, {8*MB}")
    T = 128
    for pr in range(2):
        for ii in range(2):
            i = 2*pr + ii
            for r_ in range(4):
                q = RV[2*i + r_//2] + 2*(r_ % 2)
                A(f"v_fma_f32 {v(acc(2,i)+r_)}, {v(acc(2,i)+r_)}, {v(q+1)}, {v(q)}")
            for h in range(2):
                A(f"v_cvt_pk_bf16_f32 {v(T+4*pr+2*ii+h)}, {v(acc(2,i)+2*h)}, {v(acc(2,i)+2*h+1)}")
        A(f"buffer_store_dwordx4 {v(T+4*pr,4)}, v8, s[16:19], s38 offen offset:{pr*2048}{STF}")
    T = 112
    for i in range(4):
        ab = v(RQ+2*i, 2)
        for f in range(2):
            for h in range(2):
                A(f"v_pk_mul_f32 {v(acc(f,i)+2*h,2)}, {v(acc(f,i)+2*h,2)}, {ab} op_sel:[0,1] op_sel_hi:[1,1]")
        for f in range(2):
            for h in range(2):
                A(f"v_pk_fma_f32 {v(acc(f,i)+2*h,2)}, {v(CQK+4*f+2*h,2)}, {ab}, {v(acc(f,i)+2*h,2)} op_sel_hi:[1,0,1]")
        for f in range(2):
            for h in range(2):
                A(f"v_cvt_pk_bf16_f32 {v(T+4*i+2*f+h)}, {v(acc(f,i)+2*h)}, {v(acc(f,i)+2*h+1)}")
        A(f"buffer_store_dwordx4 {v(T+4*i,4)}, v7, s[16:19], s36 offen offset:{(i>>1)*2048+(i&1)*128}{STF}")
    pub_prep(A, 1, 22, 21)
    A("s_waitcnt lgkmcnt(0)")
```

```python
import sys, math, os, struct
from asmlib import *

MB = 1 << 20
WS_XN, WS_Q, WS_K, WS_VT, WS_O, WS_H, WS_ST, WS_CS, WS_FL, WS_HACT = 0, 4*MB, 8*MB, 12*MB, 16*MB, 20*MB, 24*MB, 25*MB, 26*MB, 32*MB
if int(os.environ.get('HACT0', '1')): WS_HACT = 0
WS_DBG = 48*MB
WS_RS = 27*MB
WS_XB = 72*MB
WS_WD = 64*MB
KA_X, KA_WQKV, KA_WO, KA_BX, KA_WG, KA_WU, KA_WD, KA_OUT, KA_DBG, KA_WS = 0, 8, 16, 24, 32, 40, 48, 56, 64, 72
LOG2E = math.log2(math.e)
QSCALE = LOG2E / math.sqrt(32.0)
def f32(x): return hex(struct.unpack("<I", struct.pack("<f", x))[0])
def OPT(name, default): return int(os.environ.get(name, str(default)))
def SOPT(name, default): return os.environ.get(name, default)
PROF = OPT("PROF", 0)
STF = " sc1"
LDF = SOPT("LDF", " sc1")
OUTF = SOPT("OUTF", "")
NAME = "sequential_preLN__mha_block__glu_gated_glu__prompt_kernel"

sNON = 62
def stamp(A, ph, i):
    if not PROF: return
    A("s_memrealtime s[64:65]")
    A("s_waitcnt lgkmcnt(0)")
    A(f"s_mov_b32 {s(66+ph*6+i)}, s64")
def cyc(A, ph, end):
    if not PROF: return
    A("s_memtime s[64:65]")
    A("s_waitcnt lgkmcnt(0)")
    if not end: A(f"s_mov_b32 {s(66+ph*6+5)}, s64")
    else: A(f"s_sub_u32 {s(66+ph*6+5)}, s64, {s(66+ph*6+5)}")
def stamp_flush(A):
    if not PROF: return
    if PROF == 2:
        A(f"s_load_dwordx2 s[4:5], s[0:1], {KA_DBG}")
        A("s_waitcnt lgkmcnt(0)")
        srd(A, 8, 4, 0, 256)
        A(f"s_cmp_lg_u32 s2, {OPT('DBGWG', 0)}")
        A("s_cbranch_scc1 the_end")
        A("s_cmp_lg_u32 s20, 0")
        A("s_cbranch_scc1 the_end")
        A("s_mov_b64 exec, 1")
        A("v_mov_b32 v0, 0")
        sel = [(0,3),(0,4),(1,1),(1,2),(1,3),(2,2),(2,3),(3,2),(3,3),(4,2),(4,3),(5,2),(5,3),(5,4)]
        for i, (ph, j) in enumerate(sel):
            A(f"s_sub_u32 s3, {s(66+ph*6+j)}, s66")
            A(f"v_mov_b32 {v(1+i)}, s3")
            A(f"buffer_store_dword {v(1+i)}, v0, s[8:11], 0 offen offset:{8+4*i}")
        return
    A("s_mov_b64 exec, 1")
    srd(A, 8, 6, WS_DBG, 16*MB)
    A("s_lshl_b32 s3, s2, 3")
    A("s_add_u32 s3, s3, s20")
    A("s_lshl_b32 s3, s3, 8")
    A("v_mov_b32 v0, 0")
    for i in range(36):
        A(f"v_mov_b32 {v(1+i)}, {s(66+i)}")
    for i in range(36):
        A(f"buffer_store_dword {v(1+i)}, v0, s[8:11], s3 offen offset:{4*i}")

def mf16(d, A_, B_, c=None):
    c = v(d, 4) if c is None else c
    return f"v_mfma_f32_16x16x32_bf16 {v(d,4)}, {v(A_,4)}, {v(B_,4)}, {c}"
def mf32(d, A_, B_, c=None):
    c = v(d, 16) if c is None else c
    return f"v_mfma_f32_32x32x16_bf16 {v(d,16)}, {v(A_,4)}, {v(B_,4)}, {c}"
def reduce_rows16_32(A, xs, ts):
    for op in ("v_permlane16_swap_b32", "v_permlane32_swap_b32"):
        for x, t in zip(xs, ts): A(f"v_mov_b32 {v(t)}, {v(x)}")
        A("s_nop 1")
        for x, t in zip(xs, ts): A(f"{op} {v(t)}, {v(x)}")
        A("s_nop 1")
        for x, t in zip(xs, ts): A(f"v_add_f32 {v(x)}, {v(x)}, {v(t)}")
def lane_decomp(A):
    A("v_and_b32 v1, 63, v0")
    A("v_lshrrev_b32 v2, 4, v1")
    A("v_bfe_u32 v3, v1, 2, 2")
    A("v_and_b32 v4, 3, v1")
    A("v_and_b32 v5, 15, v1")
    A("v_lshlrev_b32 v6, 4, v1")
def emit(A, L):
    for i in L:
        if isinstance(i, list): emit(A, i)
        else: A(i)

SPIN_MAX = 1 << 18
def pub_prep(A, ph, sg, sj):
    A(f"s_lshl_b32 s3, {s(sg)}, 8")
    A(f"s_lshl_b32 s28, {s(sj)}, 3")
    A("s_add_u32 s3, s3, s28")
    A(f"s_add_u32 s3, s3, {ph*4096}")
    A("v_mov_b32 v250, s3")
    if OPT("PUBFIRST", 1) and ph > 0:
        A("s_waitcnt vmcnt(0)")
        stamp(A, ph, 4)
        publish(A, force=True)
def publish(A, force=False):
    if OPT("PUBFIRST", 1) and not force: return
    srd(A, 56, 6, WS_FL, 6 * 4096)
    A("s_barrier")
    skip = A.newlabel("pub_skip")
    A("s_cmp_lg_u32 s20, 0")
    A(f"s_cbranch_scc1 {skip}")
    A("s_mov_b64 exec, 1")
    A("buffer_store_dwordx2 v[248:249], v250, s[56:59], 0 offen sc1")
    A("s_mov_b64 exec, -1")
    A.label(skip)

def wait_flags(A, ph, sg, n, also_all=None, soff=None):
    skip = A.newlabel("wf_skip"); loop = A.newlabel("wf_loop"); done = A.newlabel("wf_done")
    A("s_cmp_lg_u32 s20, 0")
    A(f"s_cbranch_scc1 {skip}")
    srd(A, 56, 6, WS_FL, 6 * 4096)
    A(f"s_lshl_b32 s3, {s(sg)}, 8")
    A(f"s_add_u32 s3, s3, {ph*4096}")
    if soff is not None: A(f"s_add_u32 s3, s3, {s(soff)}")
    A(f"v_and_b32 v22, {n-1}, v0")
    A("v_lshlrev_b32 v22, 3, v22")
    A("v_lshlrev_b32 v23, 3, v0")
    if also_all is not None: A(f"s_mov_b32 s29, {also_all*4096}")
    A(f"s_mov_b32 s28, {SPIN_MAX}")
    A.label(loop)
    A("buffer_load_dwordx2 v[20:21], v22, s[56:59], s3 offen sc1")
    if also_all is not None:
        for j in range(4):
            A(f"buffer_load_dwordx2 {v(24+2*j,2)}, v23, s[56:59], s29 offen offset:{j*512} sc1")
    A("s_waitcnt vmcnt(0)")
    A(f"v_cmp_ne_u64 vcc, {s(sNON,2)}, v[20:21]")
    if also_all is not None:
        for j in range(4):
            A(f"v_cmp_ne_u64 s[60:61], {s(sNON,2)}, {v(24+2*j,2)}")
            A("s_nop 1")
            A("s_or_b64 vcc, vcc, s[60:61]")
    A("s_nop 1")
    A("s_cmp_eq_u64 vcc, 0")
    A(f"s_cbranch_scc1 {skip}")
    A(f"s_sleep {OPT('SLEEP', 1)}")
    A("s_sub_u32 s28, s28, 1")
    A("s_cmp_lg_u32 s28, 0")
    A(f"s_cbranch_scc1 {loop}")
    A.label(skip)
    A("s_barrier")

sRd, sWr, sGo, sCnt, sM = 23, 24, 25, 27, 30
def ring_advance(slot, R):
    return [f"s_mov_b32 {s(sWr)}, {s(sRd)}",
            f"s_add_u32 {s(sRd)}, {s(sRd)}, {slot}",
            f"s_cmp_eq_u32 {s(sRd)}, {slot*R}",
            f"s_cselect_b32 {s(sRd)}, 0, {s(sRd)}"]

def adv(d, SC=0):
    if not SC: return [f"s_add_u32 {s(sGo)}, {s(sGo)}, {hex(d)}"]
    return ["s_add_u32 s38, s38, 1",
            "s_add_u32 s3, s38, s39",
            f"s_and_b32 s3, s3, {SC-1}",
            f"s_andn2_b32 {s(sGo)}, s38, {SC-1}",
            f"s_or_b32 s3, s3, {s(sGo)}",
            f"s_mul_i32 s3, s3, {hex(d)}",
            f"s_add_u32 {s(sGo)}, s3, s37"]
def rot_init(A, d, SC):
    A(f"s_mov_b32 s37, {s(sGo)}")
    A("s_mov_b32 s38, -1")
    emit(A, adv(d, SC))

def xdma(dX, SC=0, srd_='s[8:11]'):
    g = [[f"s_add_u32 m0, {s(sWr)}, {s(sM)}", "s_nop 0",
          f"buffer_load_dwordx4 v6, {srd_}, {s(sGo)} offen{LDF} lds"]]
    for j in range(1, 4):
        g.append([f"buffer_load_dwordx4 v6, {srd_}, {s(sGo)} offen offset:{j*1024}{LDF} lds"])
    g[-1] += adv(dX, SC)
    return g

def fill_ring(A, R, SLOT, dma, lo=0, hi=None, bar=False):
    for st in range(lo, R if hi is None else hi):
        if dma is not None:
            A(f"s_mov_b32 {s(sWr)}, {st*SLOT}")
            emit(A, dma())
        if bar and st < R - 1: A("s_barrier")

def gemm_loop(A, ph, label, role, R, SLOT, NST, ndma, mfmas, reads, dma_groups, addr_upd, tail_hook=None, cnt_sgpr=None, top_hook=None):
    T = R + (R % 2) if OPT("TAIL", 1) else 0
    A(f"s_mov_b32 {s(sRd)}, 0")
    emit(A, addr_upd())
    A(f"s_waitcnt vmcnt({ndma*(R-1)})")
    A("s_barrier")
    stamp(A, ph, 2); cyc(A, ph, 0)
    emit(A, reads(0))
    emit(A, ring_advance(SLOT, R))
    emit(A, addr_upd())
    A(f"s_mov_b32 {s(sCnt)}, {(NST-T)//2 if cnt_sgpr is None else s(cnt_sgpr)}")
    PRE = OPT("PRE_" + str(ph), OPT("PRE", 0))
    BK = OPT("BK", 1)
    def snake(M):
        return M
    def stage(p, dma, nout, last, hook=None, extra=0, loopend=False, inloop=False):
        M = mfmas(p); Rd = reads(1 - p); D = dma_groups() if dma else []
        if hook: D = D + [hook]
        nm = len(M)
        if last:
            A("s_waitcnt lgkmcnt(0)")
            if hook:
                h0 = (tail_hook or {}).get('lastpos', 0)
                emit(A, interleave(M, [[x] for x in hook], h0, nm))
            else:
                emit(A, M)
            return
        book = ring_advance(SLOT, R) + addr_upd()
        cnt = [f"s_sub_u32 {s(sCnt)}, {s(sCnt)}, 1", f"s_cmp_lg_u32 {s(sCnt)}, 0"] if loopend else []
        if role == "A":
            pre = min(PRE, nm // 2)
            if pre:
                A("s_waitcnt lgkmcnt(0)")
                emit(A, M[:pre])
                A(f"s_waitcnt vmcnt({ndma*nout+extra})")
            else:
                A(f"s_waitcnt vmcnt({ndma*nout+extra}) lgkmcnt(0)")
            A("s_barrier")
            if inloop and p == 0 and top_hook: emit(A, top_hook)
            Mr = M[pre:]; nr = len(Mr)
            if BK and dma:
                m0set = D[0][0]; D = [D[0][2:]] + D[1:]
                emit(A, interleave(Mr, Rd, 0, max(1, nr - 2)))
                A(m0set)
                emit(A, book)
                emit(A, D)
                emit(A, cnt)
            else:
                emit(A, interleave(Mr, Rd, 0, max(1, nr - 2) if dma else max(1, (2 * nr) // 3)))
                emit(A, D)
                emit(A, book); emit(A, cnt)
        else:
            A(f"s_waitcnt vmcnt({ndma*nout+extra}) lgkmcnt(0)")
            A("s_barrier")
            if inloop and p == 0 and top_hook: emit(A, top_hook)
            emit(A, D)
            if BK:
                h = max(1, (2 * nm) // 3)
                emit(A, interleave(M[:h], Rd))
                emit(A, interleave(M[h:], [[x] for x in book[:2]] + [book[2:4]] + [[x] for x in book[4:]] + ([cnt] if cnt else []), 0, max(1, nm - h - 1)))
            else:
                emit(A, interleave(M, Rd, 0, max(1, (2 * nm) // 3)))
                emit(A, book); emit(A, cnt)
    A.raw(".p2align 6")
    A.label(label)
    for p in range(2): stage(p, True, R - 2, False, loopend=(p == 1), inloop=True)
    A(f"s_cbranch_scc1 {label}")
    for st in range(NST - T, NST):
        stage(st % 2, st + R < NST, min(R - 2, NST - 2 - st), st == NST - 1, (tail_hook or {}).get(NST - st), (tail_hook or {}).get(('x', NST - st), 0))
    if not T: A("s_waitcnt lgkmcnt(0)")
    A("s_nop 7")
    if OPT("ENDBAR", 0): A("s_barrier")
    cyc(A, ph, 1); stamp(A, ph, 3)

def code_touch(A, vd=26):
    if not OPT("CT", 0): return
    l = A.newlabel("ct")
    A("s_getpc_b64 s[56:57]")
    A.label(l)
    A(f"s_sub_u32 s56, s56, {l}-{NAME}")
    A("s_subb_u32 s57, s57, 0")
    A(f"s_mov_b32 s58, code_end-{NAME}")
    A("s_mov_b32 s59, 0x20000")
    A("v_lshlrev_b32 v20, 7, v1")
    A("s_lshl_b32 s28, s31, 13")
    A(f"buffer_load_dword {v(vd)}, v20, s[56:59], s28 offen")

def code_touch_list(A, frm, vd, va):
    l = A.newlabel("ct")
    return ["s_getpc_b64 s[56:57]", f"{l}:",
            f"s_add_u32 s56, s56, {frm}-{l}", "s_addc_u32 s57, s57, 0",
            "s_and_b32 s56, s56, 0xffffff80",
            f"s_mov_b32 s58, code_end-{frm}", "s_mov_b32 s59, 0x20000",
            f"v_lshlrev_b32 {v(va)}, 7, v1", "s_lshl_b32 s28, s31, 13",
            f"buffer_load_dword {v(vd)}, {v(va)}, s[56:59], s28 offen"]

def w_swz_voff(A, dst, rowstride):
    A(f"v_lshrrev_b32 {v(dst)}, 3, v1")
    A(f"v_mul_u32_u24 {v(dst)}, {rowstride}, {v(dst)}")
    A("v_and_b32 v20, 7, v1")
    A("v_lshlrev_b32 v21, 1, v2")
    A("v_xor_b32 v20, v20, v21")
    A(f"v_lshl_add_u32 {v(dst)}, v20, 4, {v(dst)}")

def ph_ln_qkv(A):
    R, SLOT, NST = 4, 40960, 16
    A(f"s_load_dwordx4 s[40:43], s[0:1], {KA_X}")
    A(f"s_load_dwordx4 s[4:7], s[0:1], {KA_DBG}")
    A("s_memrealtime s[62:63]")
    A("v_lshrrev_b32 v1, 6, v0")
    A("s_nop 0")
    A("v_readfirstlane_b32 s20, v1")
    lane_decomp(A)
    A("s_and_b32 s21, s2, 1")
    A("s_lshl_b32 s21, s21, 3")
    A("s_bfe_u32 s28, s2, 0x30003")
    A("s_add_u32 s21, s21, s28")
    A("s_bfe_u32 s22, s2, 0x20001")
    A("s_lshl_b32 s22, s22, 2")
    A("s_lshr_b32 s28, s2, 6")
    A("s_add_u32 s22, s22, s28")
    A("s_and_b32 s31, s20, 3")
    QSC = OPT("QSC", 16)
    A("s_and_b32 s39, s21, 3")
    A(f"s_mul_i32 s39, s39, {QSC//4}")
    A("s_cmp_ge_u32 s20, 4")
    A("s_cbranch_scc1 p0_B")
    A("v_and_b32 v7, 7, v1")
    A("v_bfe_u32 v8, v1, 3, 2")
    A("v_lshrrev_b32 v9, 5, v1")
    A("v_lshlrev_b32 v10, 11, v7")
    A("v_lshl_add_u32 v10, v9, 6, v10")
    A("v_lshl_add_u32 v10, v8, 3, v10")
    A("s_lshl_b32 s3, s2, 14")
    A("s_lshl_b32 s28, s20, 9")
    A("s_add_u32 s3, s3, s28")
    A("s_waitcnt lgkmcnt(0)")
    if PROF: A("s_mov_b32 s66, s62")
    srd(A, 8, 40, 0, 4*MB)
    for i in range(4):
        A(f"buffer_load_dwordx2 {v(32+4*i,2)}, v10, s[8:11], s3 offen offset:{i*128}")
        A(f"buffer_load_dwordx2 {v(34+4*i,2)}, v10, s[8:11], s3 offen offset:{i*128+32}")
    srd(A, 16, 4, 0, 256)
    A("s_or_b32 s28, s2, s20")
    A("s_cmp_lg_u32 s28, 0")
    A("s_cbranch_scc1 p0_nopub")
    A("s_or_b32 s62, s62, 1")
    A("v_mov_b32 v20, s62")
    A("v_mov_b32 v21, s63")
    A("v_mov_b32 v22, 0")
    A("s_mov_b64 exec, 1")
    A("buffer_store_dwordx2 v[20:21], v22, s[16:19], 0 offen sc1")
    A("s_mov_b64 exec, -1")
    A("s_waitcnt vmcnt(0)")
    A.label("p0_nopub")
    srd(A, 12, 6, WS_XN, 4*MB)
    A("v_lshlrev_b32 v11, 17, v9")
    A("v_lshl_add_u32 v11, v7, 4, v11")
    A("v_lshl_add_u32 v11, v8, 8, v11")
    A("s_lshr_b32 s32, s2, 1")
    A("s_lshl_b32 s32, s32, 10")
    A("s_and_b32 s33, s2, 1")
    A("s_lshl_b32 s33, s33, 7")
    A("s_add_u32 s32, s32, s33")
    A("s_lshl_b32 s33, s20, 20")
    A("s_add_u32 s32, s32, s33")
    A("s_add_u32 s33, s32, 0x40000")
    A("s_add_u32 s34, s32, 0x80000")
    A("s_add_u32 s35, s32, 0xc0000")
    A("v_mov_b32 v24, 0")
    A("v_mov_b32 v25, 0")
    U = 64
    for j in range(16):
        if j % 2 == 0: A(f"s_waitcnt vmcnt({7 - j//2})")
        A(f"v_lshlrev_b32 {v(U+2*j)}, 16, {v(32+j)}")
        A(f"v_and_b32 {v(U+1+2*j)}, 0xffff0000, {v(32+j)}")
        A(f"v_add_f32 v24, v24, {v(U+2*j)}")
        A(f"v_fmac_f32 v25, {v(U+2*j)}, {v(U+2*j)}")
        A(f"v_add_f32 v24, v24, {v(U+1+2*j)}")
        A(f"v_fmac_f32 v25, {v(U+1+2*j)}, {v(U+1+2*j)}")
    A("v_mov_b32 v22, 0")
    A("buffer_load_dwordx2 v[28:29], v22, s[16:19], 0 offen sc1")
    A("v_add_f32_dpp v24, v24, v24 row_ror:8 row_mask:0xf bank_mask:0xf")
    A("v_add_f32_dpp v25, v25, v25 row_ror:8 row_mask:0xf bank_mask:0xf")
    reduce_rows16_32(A, [24, 25], [26, 27])
    A("v_lshlrev_b32 v26, 5, v7")
    A("s_lshl_b32 s28, s20, 3")
    A("v_add_u32 v27, s28, v26")
    A("ds_write_b64 v27, v[24:25]")
    A("s_waitcnt lgkmcnt(0)")
    A("s_barrier")
    A("ds_read_b128 v[100:103], v26")
    A("ds_read_b128 v[104:107], v26 offset:16")
    A("s_waitcnt lgkmcnt(0)")
    A("v_pk_add_f32 v[24:25], v[100:101], v[102:103]")
    A("v_pk_add_f32 v[26:27], v[104:105], v[106:107]")
    A("v_pk_add_f32 v[24:25], v[24:25], v[26:27]")
    A(f"v_mul_f32 v24, {f32(1/1024)}, v24")
    A(f"v_mul_f32 v25, {f32(1/1024)}, v25")
    A("v_fma_f32 v25, -v24, v24, v25")
    A("v_max_f32 v25, 0, v25")
    A(f"v_add_f32 v25, {f32(1e-5)}, v25")
    A("v_rsq_f32 v25, v25")
    A("s_nop 0")
    A("v_mul_f32 v24, v24, v25")
    for j in range(16):
        A(f"v_fma_f32 {v(U+2*j)}, {v(U+2*j)}, v25, -v24")
        A(f"v_fma_f32 {v(U+1+2*j)}, {v(U+1+2*j)}, v25, -v24")
        A(f"v_cvt_pk_bf16_f32 {v(32+j)}, {v(U+2*j)}, {v(U+1+2*j)}")
        if j % 4 == 3:
            A(f"buffer_store_dwordx4 {v(32+j-3,4)}, v11, s[12:15], {s(32+j//4)} offen{STF}")
    stamp(A, 0, 3)
    A("s_lshr_b32 s32, s2, 4")
    A("s_and_b32 s33, s2, 15")
    pub_prep(A, 0, 32, 33)
    A(f"s_mov_b32 s28, {SPIN_MAX}")
    A.label("p0_nonce")
    A("s_waitcnt vmcnt(0)")
    A("v_readfirstlane_b32 s62, v28")
    A("v_readfirstlane_b32 s63, v29")
    A("s_nop 1")
    A("s_cmp_lg_u32 s62, 0")
    A("s_cbranch_scc1 p0_gotnonce")
    A("buffer_load_dwordx2 v[28:29], v22, s[16:19], 0 offen sc1")
    A("s_sub_u32 s28, s28, 1")
    A("s_cmp_lg_u32 s28, 0")
    A("s_cbranch_scc1 p0_nonce")
    A.label("p0_gotnonce")
    A("v_mov_b32 v248, s62")
    A("v_mov_b32 v249, s63")
    stamp(A, 0, 4)
    publish(A, force=True)
    A("v_mov_b32 v12, 0")
    A("s_lshr_b32 s28, s31, 1")
    A("s_lshl_b32 s28, s28, 7")
    A("s_lshl_b32 s29, s21, 3")
    A("s_add_u32 s28, s28, s29")
    A("s_and_b32 s29, s31, 1")
    A("s_lshl_b32 s29, s29, 2")
    A("s_add_u32 s28, s28, s29")
    A(f"s_lshl_b32 {s(sGo)}, s28, 10")
    if QSC: rot_init(A, 0x40000, QSC)
    A(f"s_lshl_b32 {s(sM)}, s31, 12")
    A("s_branch p1_common")
    A.label("p0_B")
    code_touch(A)
    w_swz_voff(A, 7, 6144)
    A(f"v_add_u32 v8, {8*6144-1024}, v7")
    A("v_add_u32 v9, 2048, v7")
    A("v_add_u32 v10, 2048, v8")
    A("v_add_u32 v11, 4096, v7")
    A("v_add_u32 v12, 4096, v8")
    A(f"s_mul_i32 s28, s31, {16*6144}")
    A("s_lshl_b32 s29, s22, 7")
    A(f"s_add_u32 {s(sGo)}, s28, s29")
    if QSC: rot_init(A, 64*6144, QSC)
    A(f"s_lshl_b32 {s(sM)}, s31, 11")
    A(f"s_add_u32 {s(sM)}, {s(sM)}, 16384")
    A("v_and_b32 v13, 31, v1")
    A("v_mul_u32_u24 v13, 6144, v13")
    A("v_lshrrev_b32 v14, 5, v1")
    A("v_lshl_add_u32 v15, v14, 11, v13")
    A("v_lshl_add_u32 v13, v14, 30, v13")
    A("v_add_u32 v13, 4096, v13")
    A("s_and_b32 s28, s21, 7")
    A("s_lshl_b32 s28, s28, 2")
    A("s_add_u32 s28, s28, s31")
    A(f"s_mul_i32 s28, s28, {32*6144}")
    A("s_add_u32 s28, s28, s29")
    A("s_waitcnt lgkmcnt(0)")
    if PROF: A("s_mov_b32 s66, s62")
    srd(A, 12, 42, 0, 6*MB)
    def wdma():
        g = []
        for seg in range(3):
            g.append([f"s_add_u32 m0, {s(sWr)}, {s(sM)}" if seg == 0 else "s_add_u32 m0, m0, 8192", "s_nop 0",
                      f"buffer_load_dwordx4 {v(7+2*seg)}, s[12:15], {s(sGo)} offen lds"])
            g.append([f"buffer_load_dwordx4 {v(8+2*seg)}, s[12:15], {s(sGo)} offen offset:1024 lds"])
        g[-1] += adv(64*6144, QSC)
        return g
    P0M = OPT("P0M", 6)
    def touches():
        A("buffer_load_dword v24, v15, s[12:15], s28 offen")
        A("buffer_load_dword v25, v13, s[12:15], s28 offen")
    if P0M == 0:
        touches()
        fill_ring(A, R, SLOT, wdma, 0, 2)
        A("s_barrier")
        fill_ring(A, R, SLOT, wdma, 2, 4)
        A("s_barrier")
    elif P0M == 1:
        A("s_barrier")
        touches()
        fill_ring(A, R, SLOT, wdma, 0, 2)
        A("s_barrier")
        fill_ring(A, R, SLOT, wdma, 2, 4)
    elif P0M == 2:
        fill_ring(A, R, SLOT, wdma, 0, 2)
        A("s_barrier")
        touches()
        fill_ring(A, R, SLOT, wdma, 2, 4)
        A("s_barrier")
        A("s_waitcnt vmcnt(0)")
    elif P0M == 4:
        A("s_barrier")
        fill_ring(A, R, SLOT, wdma, 0, 2)
        A("s_barrier")
        fill_ring(A, R, SLOT, wdma, 2, 4)
    elif P0M == 5:
        fill_ring(A, R, SLOT, wdma, 0, 4)
        A("s_barrier")
        A("s_barrier")
    elif P0M == 6:
        fill_ring(A, R, SLOT, wdma, 0, 2)
        A("s_barrier")
        A("s_barrier")
        fill_ring(A, R, SLOT, wdma, 2, 4)
    elif P0M == 3:
        fill_ring(A, R, SLOT, wdma, 0, 2)
        A("s_barrier")
        fill_ring(A, R, SLOT, wdma, 2, 4)
        A("s_barrier")

    A.label("p1_common")
    ACC = 64
    def acc(f, i): return ACC + (f * 4 + i) * 4
    SET = [112, 168]
    def xf(p, kk, i): return SET[p] + (kk * 4 + i) * 4
    def wf(p, kk, f): return SET[p] + 32 + (kk * 3 + f) * 4
    srd(A, 8, 6, WS_XN, 4*MB)
    srd(A, 12, 42, 0, 6*MB)
    srd(A, 16, 6, WS_Q, 12*MB)
    A("s_and_b32 s28, s20, 1")
    A("s_lshl_b32 s28, s28, 12")
    A("v_add_u32 v32, s28, v6")
    A("v_lshl_add_u32 v33, v2, 2, v3")
    A("v_lshlrev_b32 v33, 7, v33")
    A("v_lshl_add_u32 v33, v4, 3, v33")
    A("v_add_u32 v33, 16384, v33")
    A("v_bfe_u32 v34, v1, 3, 2")
    A("s_lshr_b32 s28, s20, 1")
    A("s_and_b32 s29, s28, 1")
    A("s_lshl_b32 s29, s29, 1")
    A("s_lshr_b32 s32, s28, 1")
    A("s_lshl_b32 s32, s32, 13")
    A("v_xor_b32 v35, s29, v34")
    A("v_lshl_add_u32 v35, v35, 5, v33")
    A("v_add_u32 v35, s32, v35")
    A("v_xor_b32 v36, 32, v35")
    A("v_xor_b32 v37, s28, v34")
    A("v_lshl_add_u32 v37, v37, 5, v33")
    A("v_add_u32 v37, 16384, v37")
    for i in range(48): A(f"v_mov_b32 {v(ACC+i)}, 0")
    stamp(A, 1, 0)
    wait_flags(A, 0, 21, 16)
    stamp(A, 1, 1)
    def reads(p):
        out = []
        for kk in range(2):
            for f in range(3):
                for t in range(2):
                    out.append([f"ds_read_b64_tr_b16 {v(wf(p,kk,f)+2*t,2)}, {v(17+f)} offset:{kk*4096+t*2048}"])
            for i in range(4):
                out.append([f"ds_read_b128 {v(xf(p,kk,i),4)}, v16 offset:{kk*8192+i*1024}"])
        return out
    def addr_upd():
        return [f"v_add_u32 v16, {s(sRd)}, v32", f"v_add_u32 v17, {s(sRd)}, v35",
                f"v_add_u32 v18, {s(sRd)}, v36", f"v_add_u32 v19, {s(sRd)}, v37"]
    def mfmas(p):
        M = []
        for kk in range(2):
            for f in range(3):
                for i in (range(4) if (f % 2 == 0 or not OPT("SNAKE", 1)) else range(3, -1, -1)):
                    if f < 2: M.append(mf16(acc(f, i), wf(p, kk, f), xf(p, kk, i)))
                    else:     M.append(mf16(acc(f, i), xf(p, kk, i), wf(p, kk, f)))
        return M
    A("s_cmp_ge_u32 s20, 4")
    A("s_cbranch_scc1 qkv_B")
    fill_ring(A, R, SLOT, lambda: xdma(0x40000, QSC), bar=True)
    gemm_loop(A, 1, "qkv_loopA", "A", R, SLOT, NST, 4, mfmas, reads, lambda: xdma(0x40000, QSC), addr_upd,
              {4: code_touch_list(A, "qkv_epi", 251, 252), ('x', 3): 1, ('x', 2): 1} if OPT("CTQ", 1) else None)
    A("s_branch qkv_epi")
    A.label("qkv_B")
    fill_ring(A, R, SLOT, None, bar=True)
    gemm_loop(A, 1, "qkv_loopB", "B", R, SLOT, NST, 6, mfmas, reads, wdma, addr_upd)
    A.label("qkv_epi")
    A(f"s_load_dwordx2 s[40:41], s[0:1], {KA_WO}")
    A(f"s_load_dwordx4 s[44:47], s[0:1], {KA_WG}")
    A(f"s_load_dwordx2 s[42:43], s[0:1], {KA_WD}")
    A("v_lshlrev_b32 v9, 9, v2")
    A("v_lshrrev_b32 v7, 3, v5")
    A("v_lshl_add_u32 v7, v7, 8, v9")
    A("v_and_b32 v8, 7, v5")
    A("v_lshl_add_u32 v7, v8, 4, v7")
    A("v_lshl_add_u32 v8, v5, 4, v9")
    A("s_lshr_b32 s28, s20, 1")
    A("s_and_b32 s29, s28, 1")
    A("s_lshr_b32 s32, s28, 1")
    A("s_and_b32 s33, s20, 1")
    A("s_lshl_b32 s34, s21, 2")
    A("s_lshl_b32 s33, s33, 1")
    A("s_add_u32 s34, s34, s33")
    A("s_lshl_b32 s34, s34, 11")
    A("s_lshl_b32 s35, s22, 1")
    A("s_add_u32 s36, s35, s29")
    A("s_lshl_b32 s36, s36, 17")
    A("s_add_u32 s36, s36, s34")
    A("s_lshl_b32 s37, s32, 22")
    A("s_add_u32 s36, s36, s37")
    A("s_add_u32 s38, s35, s32")
    A("s_lshl_b32 s38, s38, 17")
    A("s_add_u32 s38, s38, s34")
    A("s_lshl_b32 s37, s29, 8")
    A("s_add_u32 s38, s38, s37")
    A(f"s_add_u32 s38, s38, {8*MB}")
    A("s_cmp_eq_u32 s32, 0")
    A(f"s_cselect_b32 s39, {f32(QSCALE)}, 1.0")
    A("v_mov_b32 v20, s39")
    A("v_mov_b32 v21, s39")
    T = 128
    for pr in range(2):
        for ii in range(2):
            for h in range(2):
                A(f"v_cvt_pk_bf16_f32 {v(T+4*pr+2*ii+h)}, {v(acc(2,2*pr+ii)+2*h)}, {v(acc(2,2*pr+ii)+2*h+1)}")
        A(f"buffer_store_dwordx4 {v(T+4*pr,4)}, v8, s[16:19], s38 offen offset:{pr*2048}{STF}")
    T = 112
    for i in range(4):
        for f in range(2):
            for h in range(2):
                if OPT("NOPK", 0):
                    A(f"v_mul_f32 {v(acc(f,i)+2*h)}, {v(acc(f,i)+2*h)}, v20")
                    A(f"v_mul_f32 {v(acc(f,i)+2*h+1)}, {v(acc(f,i)+2*h+1)}, v20")
                else:
                    A(f"v_pk_mul_f32 {v(acc(f,i)+2*h,2)}, {v(acc(f,i)+2*h,2)}, v[20:21]")
        for f in range(2):
            for h in range(2):
                A(f"v_cvt_pk_bf16_f32 {v(T+4*i+2*f+h)}, {v(acc(f,i)+2*h)}, {v(acc(f,i)+2*h+1)}")
        A(f"buffer_store_dwordx4 {v(T+4*i,4)}, v7, s[16:19], s36 offen offset:{(i>>1)*2048+(i&1)*128}{STF}")
    pub_prep(A, 1, 22, 21)
    A("s_waitcnt lgkmcnt(0)")

def ph_attn(A):
    R, SLOT = 3, 32768
    WL = R * SLOT
    Q, NEGM, S0, S1, P, KF, VF, O, L, ONES = 8, 32, 48, 64, 80, 88, 96, 104, 120, 124
    S_ = [S0, S1]
    A("s_and_b32 s21, s2, 7")
    A("s_lshl_b32 s21, s21, 2")
    A("s_bfe_u32 s28, s2, 0x20003")
    A("s_add_u32 s21, s21, s28")
    A("s_lshr_b32 s22, s2, 5")
    A("s_lshr_b32 s32, s2, 1")
    A("s_and_b32 s33, s2, 1")
    sCo, sCM = 26, 29
    A("s_cmp_ge_u32 s32, 56")
    A("s_cselect_b32 s48, s46, s44")
    A("s_cselect_b32 s49, s47, s45")
    A("s_cselect_b32 s34, 56, 0")
    A("s_sub_u32 s34, s32, s34")
    A("s_mov_b32 s51, 0x20000")
    A("s_lshl_b32 s34, s34, 7")
    A(f"s_mul_i32 s35, s33, {512*7168}")
    A("s_add_u32 s34, s34, s35")
    A(f"s_add_u32 s35, s35, {512*7168}")
    A("s_cmp_lt_u32 s2, 224")
    A("s_cselect_b32 s50, s35, 0")
    A(f"s_mul_i32 s35, s31, {16*7168}")
    A(f"s_add_u32 {s(sCo)}, s34, s35")
    w_swz_voff(A, 7, 7168)
    A(f"v_add_u32 v129, {8*7168-1024}, v7")
    srd(A, 52, 40, 0, 2*MB)
    srd(A, 44, 42, 0, 7*MB)
    A("s_lshl_b32 s35, s2, 2")
    A("s_add_u32 s35, s35, s31")
    A("v_lshlrev_b32 v8, 7, v1")
    A("v_mov_b32 v9, 0x7fffffff")
    A("s_lshl_b32 s34, s35, 11")
    A("v_add_u32 v130, s34, v8")
    A("v_cmp_gt_u32 vcc, 16, v1")
    A("s_lshl_b32 s60, s35, 10")
    A("s_nop 0")
    A("v_cndmask_b32 v130, v9, v130, vcc")
    A("s_and_b32 s34, s35, 1")
    A("s_lshl_b32 s34, s34, 3")
    A("v_lshrrev_b32 v8, 3, v1")
    A("v_add_u32 v8, s34, v8")
    A(f"v_mul_u32_u24 v8, {3584*128}, v8")
    A("s_bfe_u32 s34, s35, 0x20002")
    A("s_lshl_b32 s34, s34, 1")
    A("v_and_b32 v9, 7, v1")
    A("v_xor_b32 v9, s34, v9")
    A("v_lshl_add_u32 v131, v9, 4, v8")
    A("s_lshr_b32 s61, s35, 1")
    A("s_lshl_b32 s61, s61, 7")
    A(f"s_sub_u32 s61, s61, {512*128}")
    CP = 140
    def cp_load():
        return [f"buffer_load_dwordx4 {v(CP,4)}, v6, s[44:47], s60 offen", f"s_add_u32 s60, s60, {MB}"]
    def cp_store():
        return [f"s_cmp_lt_u32 s61, {3584*128}", f"s_cselect_b32 s58, {7*MB}, 0",
                f"buffer_store_dwordx4 {v(CP,4)}, v131, s[56:59], s61 offen{STF}", f"s_add_u32 s61, s61, {512*128}"]
    def cs_dma(j):
        if j == 0:
            return [f"s_mov_b32 m0, {s(sCM)}", f"s_add_u32 {s(sCM)}, {s(sCM)}, 8192",
                    f"buffer_load_dwordx4 v7, s[48:51], {s(sCo)} offen lds"]
        return [f"buffer_load_dwordx4 v129, s[48:51], {s(sCo)} offen offset:1024 lds",
                f"s_add_u32 {s(sCo)}, {s(sCo)}, {64*7168}"]
    A("s_lshl_b32 s28, s21, 17")
    A("s_add_u32 s4, s6, s28")
    A("s_addc_u32 s5, s7, 0")
    srd(A, 8, 4, WS_K, 131072)
    srd(A, 12, 4, WS_VT, 131072)
    srd(A, 16, 4, WS_Q, 131072)
    srd(A, 36, 6, WS_O, 4*MB)
    A(f"s_lshl_b32 {s(sGo)}, s31, 12")
    A(f"s_lshl_b32 {s(sM)}, s31, 12")
    A("v_lshrrev_b32 v16, 2, v1")
    A("v_xor_b32 v16, v16, v2")
    A("v_and_b32 v16, 1, v16")
    A("v_cmp_eq_u32 vcc, 0, v16")
    A("v_mov_b32 v17, 0x3f803f80")
    A("s_nop 1")
    for i in range(4): A(f"v_cndmask_b32 {v(ONES+i)}, 0, v17, vcc")
    for i in range(16): A(f"v_mov_b32 {v(O+i)}, 0")
    for i in range(4): A(f"v_mov_b32 {v(L+i)}, 0")
    for i in range(4): A(f"v_mov_b32 {v(P+4+i)}, 0")
    for i in range(4): A(f"v_mov_b32 {v(VF+4+i)}, 0")
    A("v_mov_b32 v16, v6")
    A(f"v_add_u32 v17, {SLOT}, v6")
    A(f"s_mov_b32 {s(sRd)}, {SLOT}")
    A("s_lshr_b32 s34, s21, 1")
    A("s_lshl_b32 s35, s22, 3")
    A("s_add_u32 s35, s35, s20")
    A("s_lshl_b32 s35, s35, 11")
    if not OPT("PUBFIRST", 1):
        A("s_waitcnt vmcnt(0)")
        stamp(A, 1, 4)
    publish(A)
    stamp(A, 2, 0)
    wait_flags(A, 1, 34, 16)
    stamp(A, 2, 1)
    def kv(j):
        o = []
        if j % 4 == 0: o = [f"s_add_u32 m0, {s(sWr)}, {16384 if j >= 4 else 0}", "s_nop 0"]
        o += [f"buffer_load_dwordx4 v6, {'s[8:11]' if j < 4 else 's[12:15]'}, {s(sGo)} offen offset:{(j&3)*1024}{LDF} lds"]
        if j == 7:
            o += [f"s_add_u32 {s(sGo)}, {s(sGo)}, 16384",
                  f"s_add_u32 {s(sWr)}, {s(sWr)}, {SLOT}",
                  f"s_cmp_ge_u32 {s(sWr)}, {SLOT*R}",
                  f"s_cselect_b32 {s(sWr)}, {s(sM)}, {s(sWr)}"]
        return o
    srd(A, 56, 6, WS_WD, 7*MB)
    if OPT("NOSIDE", 0):
        A("s_mov_b32 s50, 0"); A("s_mov_b32 s46, 0"); A("s_mov_b32 s54, 0"); A("s_mov_b32 s61, 0x10000000")
    A(f"s_mov_b32 {s(sWr)}, {s(sM)}")
    A(f"s_lshl_b32 {s(sCM)}, s31, 11")
    A(f"s_add_u32 {s(sCM)}, {s(sCM)}, {WL}")
    A("s_cmp_ge_u32 s20, 4")
    A("s_cbranch_scc1 at_B0")
    for j in range(4): emit(A, kv(j))
    A("s_branch at_C0")
    A.label("at_B0")
    for j in range(4, 7): emit(A, kv(j))
    emit(A, kv(7)[:1])
    A.label("at_C0")
    A(f"buffer_load_dwordx4 {v(Q,4)}, v6, s[16:19], s35 offen{LDF}")
    A(f"buffer_load_dwordx4 {v(Q+4,4)}, v6, s[16:19], s35 offen offset:1024{LDF}")
    emit(A, kv(7)[1:])
    A("s_waitcnt vmcnt(0)")
    A("s_barrier")
    stamp(A, 2, 2); cyc(A, 2, 0)
    def kread(t, j, dst=None):
        a_ = 16 if t < 8 else 17
        return f"ds_read_b128 {v(KF+4*j if dst is None else dst,4)}, {v(a_)} offset:{(t%8)*2048+j*1024}"
    def vread(t, j):
        a_ = 16 if t < 8 else 17
        return f"ds_read_b128 {v(VF+4*j,4)}, {v(a_)} offset:{16384+(t%8)*2048+j*1024}"
    A(kread(0, 0, S1)); A(kread(0, 1, S1+4))
    A(kread(1, 0)); A(kread(1, 1)); A(vread(0, 0))
    A("s_cmp_ge_u32 s20, 4")
    A("s_cbranch_scc1 at_C1")
    for j in range(4): emit(A, kv(j))
    A("buffer_load_dword v128, v130, s[52:55], 0 offen")
    emit(A, cs_dma(0)); emit(A, cs_dma(1))
    if OPT("CT", 0) >= 2:
        A("s_branch at_C2")
    A.label("at_C1")
    if OPT("CT", 0) >= 2:
        code_touch(A, 128)
        srd(A, 56, 6, WS_WD, 7*MB)
        A.label("at_C2")
    A("s_waitcnt lgkmcnt(3)")
    A(mf32(S0, S1, Q, "0"))
    A(mf32(S0, S1+4, Q+4))
    A("s_nop 15")
    A("s_nop 3")
    A(f"v_max3_f32 v18, {v(S0)}, {v(S0+1)}, {v(S0+2)}")
    for i in range(3, 15, 2): A(f"v_max3_f32 v18, v18, {v(S0+i)}, {v(S0+i+1)}")
    A(f"v_max_f32 v18, v18, {v(S0+15)}")
    A("v_mov_b32 v19, v18")
    A("s_nop 1")
    A("v_permlane32_swap_b32 v19, v18")
    A("s_nop 1")
    A("v_max_f32 v18, v18, v19")
    for i in range(16): A(f"v_sub_f32 {v(NEGM+i)}, 0, v18")
    for i in range(16): A(f"v_sub_f32 {v(S0+i)}, {v(S0+i)}, v18")
    A(f"s_mov_b32 {s(sCnt)}, 8")
    A("s_waitcnt lgkmcnt(0)")
    def loop(role):
        A.raw(".p2align 6")
        A.label(f"attn_loop{role}")
        for t in range(8):
            c, n = S_[t % 2], S_[1 - t % 2]
            E = lambda i: f"v_exp_f32 {v(c+i)}, {v(c+i)}"
            C = lambda i: f"v_cvt_pk_bf16_f32 {v(P+i)}, {v(c+2*i)}, {v(c+2*i+1)}"
            X = {6: (kv(0), kv(1)), 7: (kv(2), kv(3)), 0: (kv(4), kv(5)), 1: (kv(6), kv(7)),
                 2: (["s_waitcnt vmcnt(10)"] + cp_store(), cp_load()), 3: (cs_dma(0), cs_dma(1)), 4: ([], []), 5: ([], [])}[t]
            if role == "B":
                X = ([], [])
                if OPT("CTA", 0) and t == 7: X = (["buffer_load_dword v251, v252, s[56:59], s60 offen"], [])
            FAIR = OPT("FAIR", 0)
            if t == 6:
                if role == "A": A("s_waitcnt vmcnt(4)")
                A("s_barrier")
            elif FAIR == 1 and t == 2:
                A("s_barrier")
            elif FAIR == 2 and t % 2 == 0:
                A("s_barrier")
            if FAIR == 1: A(f"s_setprio {3 - (t + 2) % 4}")
            if FAIR == 3 and t % 2 == 0: A(f"s_setprio {3 - ((t + 2) % 8) // 2}")
            A("s_waitcnt lgkmcnt(2)")
            A(mf32(n, KF, Q, v(NEGM, 16)))
            A(kread(t + 2, 0))
            emit(A, [E(0), E(1), E(2)])
            A(mf32(O, VF+4, P+4))
            A(vread(t, 1))
            emit(A, X[0])
            emit(A, [E(3), E(4), E(5), E(6)])
            A("s_waitcnt lgkmcnt(2)")
            A(mf32(n, KF+4, Q+4))
            A(kread(t + 2, 1))
            emit(A, [E(7), C(0), C(1), C(2), C(3), E(8)])
            A(mf16(L, ONES, P+4))
            emit(A, [E(9), E(10)])
            A(mf32(O, VF, P))
            A(vread(t + 1, 0))
            emit(A, X[1])
            emit(A, [E(11), E(12), E(13), E(14)])
            A(mf16(L, ONES, P))
            if t == 7:
                A(f"s_add_u32 {s(sRd)}, {s(sRd)}, {SLOT}")
                A(f"s_cmp_eq_u32 {s(sRd)}, {SLOT*R}")
                A(f"s_cselect_b32 {s(sRd)}, 0, {s(sRd)}")
                A("v_mov_b32 v16, v17")
                A(f"v_add_u32 v17, {s(sRd)}, v6")
                A(f"s_sub_u32 {s(sCnt)}, {s(sCnt)}, 1")
                A(f"s_cmp_lg_u32 {s(sCnt)}, 0")
            emit(A, [E(15), C(4), C(5), C(6), C(7)])
        A(f"s_cbranch_scc1 attn_loop{role}")
    A("s_cmp_ge_u32 s20, 4")
    A("s_cbranch_scc1 attn_preB")
    loop("A")
    A("s_branch attn_post")
    A.label("attn_preB")
    if OPT("CTA", 0):
        emit(A, code_touch_list(A, "attn_post", 251, 252)[:-1])
        A("s_mov_b32 s60, s28")
    loop("B")
    A.label("attn_post")
    if OPT("FAIR", 0): A("s_setprio 0")
    A("s_waitcnt lgkmcnt(0)")
    A("s_nop 0")
    A(mf32(O, VF+4, P+4))
    A(mf16(L, ONES, P+4))
    cyc(A, 2, 1); stamp(A, 2, 3)
    A("s_waitcnt vmcnt(0)")
    A("s_barrier")
    A("v_lshrrev_b32 v18, 2, v1")
    A("v_lshlrev_b32 v18, 7, v18")
    A("v_lshl_add_u32 v18, v4, 3, v18")
    A("v_bfe_u32 v19, v1, 3, 2")
    A("v_xor_b32 v19, s31, v19")
    A("v_lshl_add_u32 v18, v19, 5, v18")
    A("s_lshr_b32 s29, s20, 2")
    A("s_lshl_b32 s34, s29, 15")
    A(f"s_add_u32 s34, s34, {WL}")
    A("v_add_u32 v18, s34, v18")
    CSW = S0
    for ks in range(8):
        for t in range(2):
            A(f"ds_read_b64_tr_b16 {v(CSW+4*ks+2*t,2)}, v18 offset:{ks*4096+t*2048}")
    for i in range(4): A(f"v_mov_b32 {v(132+i)}, 0x3f803f80")
    A(f"v_add_f32 v18, |{v(O)}|, {v(L)}")
    for i in range(1, 16): A(f"v_add_f32 v18, |{v(O+i)}|, v18")
    A(f"v_mov_b32 v19, {f32(2.0**120)}")
    A("v_cmp_nlt_f32 vcc, v18, v19")
    A("s_waitcnt lgkmcnt(0)")
    for ks in range(8):
        A(mf16(136, CSW+4*ks, 132, "0" if ks == 0 else None))
    A("s_cmp_eq_u64 vcc, 0")
    A("s_cbranch_scc0 attn_slow")
    A.label("attn_fin")
    A(f"s_load_dwordx2 s[44:45], s[0:1], {KA_X}")
    A(f"v_rcp_f32 v18, {v(L)}")
    A("s_nop 0")
    for i in range(16): A(f"v_mul_f32 {v(O+i)}, {v(O+i)}, v18")
    for pc in range(2):
        for hh in range(2):
            run = pc + 2 * hh
            for j in range(2):
                A(f"v_cvt_pk_bf16_f32 {v(P+4*pc+2*hh+j)}, {v(O+4*run+2*j)}, {v(O+4*run+2*j+1)}")
    A("v_bfe_u32 v18, v1, 3, 1")
    A("v_lshlrev_b32 v18, 10, v18")
    A("v_bfe_u32 v19, v1, 4, 1")
    A("v_lshl_add_u32 v18, v19, 7, v18")
    A("v_and_b32 v19, 7, v1")
    A("v_lshl_add_u32 v18, v19, 4, v18")
    A("v_lshrrev_b32 v19, 5, v1")
    A("v_lshl_add_u32 v18, v19, 8, v18")
    A("s_lshl_b32 s28, s21, 17")
    A("s_add_u32 s28, s28, s35")
    A(f"buffer_store_dwordx4 {v(P,4)}, v18, s[36:39], s28 offen{STF}")
    A(f"buffer_store_dwordx4 {v(P+4,4)}, v18, s[36:39], s28 offen offset:512{STF}")
    srd(A, 48, 6, WS_CS, 4*7168*4)
    A("s_lshl_b32 s33, s33, 1")
    A("s_add_u32 s33, s33, s29")
    A(f"s_mul_i32 s33, s33, {7168*4}")
    A("s_lshl_b32 s34, s32, 8")
    A("s_add_u32 s33, s33, s34")
    A("s_lshl_b32 s34, s31, 6")
    A("s_add_u32 s33, s33, s34")
    A("v_cmp_ne_u32 vcc, 0, v5")
    A("v_mov_b32 v19, 0x7fffffff")
    A("s_cmp_lt_u32 s2, 224")
    A(f"s_cselect_b32 s50, {4*7168*4}, 0")
    A("v_cndmask_b32 v19, v1, v19, vcc")
    A(f"buffer_store_dwordx4 v[136:139], v19, s[48:51], s33 offen{STF}")
    pub_prep(A, 2, 22, 21)
    A("s_waitcnt lgkmcnt(0)")
    def slow():
        A.label("attn_slow")
        A("v_mov_b32 v18, 0xff800000")
        A("s_mov_b32 s28, 0")
        A.label("attn_slow1")
        A(f"buffer_load_dwordx4 {v(KF,4)}, v6, s[8:11], s28 offen{LDF}")
        A(f"buffer_load_dwordx4 {v(KF+4,4)}, v6, s[8:11], s28 offen offset:1024{LDF}")
        A("s_waitcnt vmcnt(0)")
        A("s_nop 15")
        A(mf32(S0, KF, Q, "0"))
        A(mf32(S0, KF+4, Q+4))
        A("s_nop 15")
        A("s_nop 3")
        for i in range(0, 16, 2): A(f"v_max3_f32 v18, v18, {v(S0+i)}, {v(S0+i+1)}")
        A("s_add_u32 s28, s28, 2048")
        A("s_cmp_lt_u32 s28, 131072")
        A("s_cbranch_scc1 attn_slow1")
        A("v_mov_b32 v19, v18")
        A("s_nop 1")
        A("v_permlane32_swap_b32 v19, v18")
        A("s_nop 1")
        A("v_max_f32 v18, v18, v19")
        for i in range(16): A(f"v_sub_f32 {v(NEGM+i)}, 0, v18")
        for i in range(16): A(f"v_mov_b32 {v(O+i)}, 0")
        for i in range(4): A(f"v_mov_b32 {v(L+i)}, 0")
        A("s_mov_b32 s28, 0")
        A.label("attn_slow2")
        A(f"buffer_load_dwordx4 {v(KF,4)}, v6, s[8:11], s28 offen{LDF}")
        A(f"buffer_load_dwordx4 {v(KF+4,4)}, v6, s[8:11], s28 offen offset:1024{LDF}")
        A(f"buffer_load_dwordx4 {v(VF,4)}, v6, s[12:15], s28 offen{LDF}")
        A(f"buffer_load_dwordx4 {v(VF+4,4)}, v6, s[12:15], s28 offen offset:1024{LDF}")
        A("s_waitcnt vmcnt(0)")
        A(mf32(S0, KF, Q, v(NEGM, 16)))
        A(mf32(S0, KF+4, Q+4))
        A("s_nop 15")
        A("s_nop 3")
        for i in range(16): A(f"v_exp_f32 {v(S0+i)}, {v(S0+i)}")
        A("s_nop 0")
        for i in range(8): A(f"v_cvt_pk_bf16_f32 {v(P+i)}, {v(S0+2*i)}, {v(S0+2*i+1)}")
        A("s_nop 1")
        A(mf32(O, VF, P))
        A(mf32(O, VF+4, P+4))
        A(mf16(L, ONES, P))
        A(mf16(L, ONES, P+4))
        A("s_nop 15")
        A("s_add_u32 s28, s28, 2048")
        A("s_cmp_lt_u32 s28, 131072")
        A("s_cbranch_scc1 attn_slow2")
        A("s_nop 15")
        A("s_branch attn_fin")
    return slow

HEADER = open("sequential_preLN__mha_block__glu_gated_glu__prompt.s.ref").read().split("; Override launch")[0]

def build(path):
    from mk2 import ph_proj, ph_gu, ph_down2, ph_down3
    A = Asm()
    A.raw(f".globl {NAME}"); A.raw(".p2align 8"); A.raw(f".type {NAME},@function"); A.label(NAME)
    A("s_cmp_ge_u32 s2, 256")
    A("s_cbranch_scc1 the_end")
    if OPT("RAW", 0):
        from mk3 import ph_qkv_raw
        hooks = ph_qkv_raw(A)
    else:
        ph_ln_qkv(A); hooks = None
    slow = ph_attn(A)
    ph_proj(A, 3, True)
    ph_gu(A)
    if OPT("SPLITK", 1) == 2: ph_down3(A)
    elif OPT("SPLITK", 1) == 1: ph_down2(A)
    else: ph_proj(A, 5, False)
    stamp_flush(A)
    A.label("the_end")
    A("s_endpgm")
    slow()
    A.label("code_end")
    out = HEADER
    out += "; @launch grid=(256,1,1) block=(512,1,1) lds=163840\n"
    out += '.amdgcn_target "amdgcn-amd-amdhsa--gfx950"\n.text\n'
    out += A.text()
    out += '.section .rodata,"a"\n'
    out += kernel_desc(NAME, 256, 102 if PROF else 64)
    open(path, "w").write(out)

if __name__ == "__main__":
    build(sys.argv[1] if len(sys.argv) > 1 else "sequential_preLN__mha_block__glu_gated_glu__prompt.s")
```

```python
from mk import *

def ph_proj(A, ph, is_wo):
    name = "wo" if is_wo else "dn"
    K = 1024 if is_wo else 3584
    ws_x = WS_O if is_wo else WS_HACT
    wp = 40 if is_wo else 42
    R, SLOT, NST = 6, 24576, K // 64
    STATS_LDS = R * SLOT
    A("s_and_b32 s21, s2, 3")
    A("s_lshl_b32 s21, s21, 2")
    A("s_bfe_u32 s28, s2, 0x20003")
    A("s_add_u32 s21, s21, s28")
    A("s_bfe_u32 s22, s2, 0x10002")
    A("s_lshl_b32 s22, s22, 3")
    A("s_lshr_b32 s28, s2, 5")
    A("s_add_u32 s22, s22, s28")
    PSC = OPT("WSC", 0) if is_wo else OPT("DSC", 4)
    PG = min(4, OPT("PG", 4))
    if PSC:
        A("s_add_u32 s39, s21, s22")
        A(f"s_and_b32 s39, s39, {PG-1}")
        A(f"s_mul_i32 s39, s39, {PSC//PG}")
    def wdma():
        if not is_wo:
            return [[f"s_add_u32 m0, {s(sWr)}, {s(sM)}", "s_nop 0",
                     f"buffer_load_dwordx4 v6, s[12:15], {s(sGo)} offen{LDF} lds"],
                    [f"buffer_load_dwordx4 v6, s[12:15], {s(sGo)} offen offset:1024{LDF} lds",
                     ] + adv(8192, PSC)]
        return [[f"s_add_u32 m0, {s(sWr)}, {s(sM)}", "s_nop 0",
                 f"buffer_load_dwordx4 v7, s[12:15], {s(sGo)} offen lds"],
                [f"buffer_load_dwordx4 v8, s[12:15], {s(sGo)} offen offset:1024 lds",
                 ] + adv(64*2048, PSC)]
    DX = 0x40000
    ACC = 32
    def acc(f, i): return ACC + (i * 2 + f) * 4
    SET = [48, 80]
    def xf(p, kk, i): return SET[p] + (kk * 2 + i) * 4
    def wf(p, kk, f): return SET[p] + 16 + (kk * 2 + f) * 4
    RES = 240
    NRES = 4 if is_wo else 2
    A("s_lshr_b32 s33, s20, 2")
    A("s_lshl_b32 s34, s22, 1")
    A("s_add_u32 s34, s34, s33")
    A("s_lshl_b32 s34, s34, 7")
    A("s_lshl_b32 s35, s21, 3")
    A("s_add_u32 s34, s34, s35")
    A("s_lshl_b32 s35, s31, 1")
    A("s_add_u32 s34, s34, s35")
    A("s_lshl_b32 s34, s34, 10")
    A("s_lshl_b32 s35, s21, 18")
    A("s_lshl_b32 s36, s31, 16")
    A("s_add_u32 s35, s35, s36")
    A("s_lshl_b32 s36, s22, 7")
    A("s_add_u32 s35, s35, s36")
    A("s_lshl_b32 s36, s33, 6")
    A("s_add_u32 s35, s35, s36")
    A("s_add_u32 s36, s35, 32768")
    srd(A, 16, 6, WS_H, 4*MB)
    srd(A, 48, 44, 0, 4*MB)
    if is_wo:
        srd(A, 12, wp, 0, K*2048)
    else:
        A(f"s_mul_i32 s28, s22, {3584*128}")
        A("s_add_u32 s4, s6, s28")
        A("s_addc_u32 s5, s7, 0")
        srd(A, 12, 4, WS_WD, 3584*128)
    srd(A, 8, 6, ws_x, 2048*K*2)
    def resload():
        if is_wo:
            for i in range(2):
                A(f"buffer_load_dwordx4 {v(RES+4*i,4)}, v9, s[48:51], {s(35+i)} offen")
        else:
            for i in range(2):
                A(f"buffer_load_dwordx4 {v(RES+4*i,4)}, v6, s[16:19], s34 offen offset:{i*1024}{LDF}")
    A("v_lshlrev_b32 v9, 11, v5")
    A("v_and_b32 v15, 1, v2")
    A("v_lshl_add_u32 v9, v15, 5, v9")
    A("v_lshrrev_b32 v15, 1, v2")
    A("v_lshl_add_u32 v9, v15, 4, v9")
    A("s_lshl_b32 s28, s31, 11")
    A("v_add_u32 v10, s28, v6")
    A("v_lshl_add_u32 v11, v2, 2, v3")
    A("v_lshlrev_b32 v11, 7, v11")
    A("v_lshl_add_u32 v11, v4, 3, v11")
    A("v_add_u32 v11, 16384, v11")
    A("v_bfe_u32 v12, v1, 3, 2")
    A("s_lshl_b32 s29, s33, 1")
    A("v_xor_b32 v13, s29, v12")
    A("v_lshl_add_u32 v13, v13, 5, v11")
    A("v_xor_b32 v14, 32, v13")
    A("s_lshr_b32 s32, s21, 1")
    A("s_cmp_lt_u32 s20, 4")
    A(f"s_cbranch_scc1 {name}_A0")
    if is_wo:
        w_swz_voff(A, 7, 2048)
        A(f"v_add_u32 v8, {8*2048-1024}, v7")
        A("s_lshl_b32 s28, s31, 15")
        A("s_lshl_b32 s29, s22, 7")
        A(f"s_add_u32 {s(sGo)}, s28, s29")
    else:
        A(f"s_lshl_b32 {s(sGo)}, s31, 11")
    if PSC: rot_init(A, 64*2048 if is_wo else 8192, PSC)
    A(f"s_lshl_b32 {s(sM)}, s31, 11")
    A(f"s_add_u32 {s(sM)}, {s(sM)}, 16384")
    if not OPT("PUBFIRST", 1):
        A("s_waitcnt vmcnt(0)")
        stamp(A, ph - 1, 4)
    publish(A)
    resload()
    fill_ring(A, R, SLOT, wdma)
    A(f"s_branch {name}_C0")
    A.label(f"{name}_A0")
    A("s_lshr_b32 s28, s31, 1")
    A("s_lshl_b32 s28, s28, 7")
    A("s_lshl_b32 s29, s21, 3")
    A("s_add_u32 s28, s28, s29")
    A("s_and_b32 s29, s31, 1")
    A("s_lshl_b32 s29, s29, 2")
    A("s_add_u32 s28, s28, s29")
    A(f"s_lshl_b32 {s(sGo)}, s28, 10")
    if PSC: rot_init(A, DX, PSC)
    A(f"s_lshl_b32 {s(sM)}, s31, 12")
    if not OPT("PUBFIRST", 1):
        A("s_waitcnt vmcnt(0)")
        stamp(A, ph - 1, 4)
    publish(A)
    resload()
    A.label(f"{name}_C0")
    stamp(A, ph, 0)
    wait_flags(A, ph - 1, 32, 32)
    stamp(A, ph, 1)
    def accinit():
        if is_wo:
            for i in range(2):
                A(f"v_permlane16_swap_b32 {v(RES+4*i)}, {v(RES+4*i+2)}")
                A(f"v_permlane16_swap_b32 {v(RES+4*i+1)}, {v(RES+4*i+3)}")
            A("s_nop 1")
        for i in range(2):
            for f in range(2):
                for h in range(2):
                    src = RES + 4*i + 2*f + h
                    A(f"v_lshlrev_b32 {v(acc(f,i)+2*h)}, 16, {v(src)}")
                    A(f"v_and_b32 {v(acc(f,i)+2*h+1)}, 0xffff0000, {v(src)}")
    def reads(p):
        out = []
        for kk in range(2):
            for f in range(2):
                for t in range(2):
                    out.append([f"ds_read_b64_tr_b16 {v(wf(p,kk,f)+2*t,2)}, {v(17+f)} offset:{kk*4096+t*2048}"])
            for i in range(2):
                out.append([f"ds_read_b128 {v(xf(p,kk,i),4)}, v16 offset:{kk*8192+i*1024}"])
        return out
    def addr_upd():
        return [f"v_add_u32 v16, {s(sRd)}, v10", f"v_add_u32 v17, {s(sRd)}, v13", f"v_add_u32 v18, {s(sRd)}, v14"]
    def mfmas(p):
        return [mf16(acc(f, i), wf(p, kk, f), xf(p, kk, i)) for kk in range(2) for f in range(2) for i in ((0, 1) if (f == 0 or not OPT("SNAKE", 1)) else (1, 0))]
    A("s_cmp_ge_u32 s20, 4")
    A(f"s_cbranch_scc1 {name}_B")
    fill_ring(A, R, SLOT, lambda: xdma(DX, PSC), bar=True)
    A(f"s_waitcnt vmcnt({4*R})")
    accinit()
    gemm_loop(A, ph, f"{name}_loopA", "A", R, SLOT, NST, 4, mfmas, reads, lambda: xdma(DX, PSC), addr_upd,
              {6: code_touch_list(A, f"{name}_epi", 251, 252), ('x', 5): 1, ('x', 4): 1, ('x', 3): 1, ('x', 2): 1} if OPT("CTW", 1) else None)
    A(f"s_branch {name}_epi")
    A.label(f"{name}_B")
    A(f"s_waitcnt vmcnt({2*R})")
    accinit()
    fill_ring(A, R, SLOT, None, bar=True)
    gemm_loop(A, ph, f"{name}_loopB", "B", R, SLOT, NST, 2, mfmas, reads, wdma, addr_upd)
    A.label(f"{name}_epi")
    T = 112
    for i in range(2):
        for f in range(2):
            for h in range(2):
                A(f"v_cvt_pk_bf16_f32 {v(T+4*i+2*f+h)}, {v(acc(f,i)+2*h)}, {v(acc(f,i)+2*h+1)}")
    if is_wo:
        for i in range(2):
            A(f"buffer_store_dwordx4 {v(T+4*i,4)}, v6, s[16:19], s34 offen offset:{i*1024}{STF}")
        for i in range(2):
            sm, sq = 20 + 2*i, 21 + 2*i
            b = acc(0, i)
            A(f"v_add_f32 {v(sm)}, {v(b)}, {v(b+1)}")
            A(f"v_mul_f32 {v(sq)}, {v(b)}, {v(b)}")
            A(f"v_fmac_f32 {v(sq)}, {v(b+1)}, {v(b+1)}")
            for j in range(2, 8):
                A(f"v_add_f32 {v(sm)}, {v(sm)}, {v(b+j)}")
                A(f"v_fmac_f32 {v(sq)}, {v(b+j)}, {v(b+j)}")
        reduce_rows16_32(A, [20, 21, 22, 23], [24, 25, 26, 27])
        A("s_lshl_b32 s28, s31, 9")
        A("s_lshl_b32 s29, s33, 3")
        A("s_add_u32 s28, s28, s29")
        A(f"s_add_u32 s28, s28, {STATS_LDS}")
        A("v_lshlrev_b32 v24, 4, v5")
        A("v_add_u32 v24, s28, v24")
        A("ds_write_b64 v24, v[20:21]")
        A("ds_write_b64 v24, v[22:23] offset:256")
        A(f"s_load_dwordx4 s[44:47], s[0:1], {KA_WG}")
        A("s_waitcnt lgkmcnt(0)")
        A("s_barrier")
        A("s_cmp_ge_u32 s20, 2")
        A(f"s_cbranch_scc1 {name}_end2")
        A("v_lshlrev_b32 v24, 4, v0")
        A(f"v_add_u32 v24, {STATS_LDS}, v24")
        A("ds_read_b128 v[20:23], v24")
        srd(A, 8, 6, WS_ST, 2048*128)
        A("v_lshlrev_b32 v24, 3, v0")
        A("s_lshl_b32 s28, s21, 10")
        A("s_lshl_b32 s29, s22, 14")
        A("s_add_u32 s28, s28, s29")
        A("s_waitcnt lgkmcnt(0)")
        A("v_add_f32 v20, v20, v22")
        A("v_add_f32 v21, v21, v23")
        A(f"buffer_store_dwordx2 v[20:21], v24, s[8:11], s28 offen{STF}")
        A.label(f"{name}_end2")
        A("s_and_b32 s38, s21, 1")
        A("s_lshl_b32 s38, s38, 4")
        A("s_add_u32 s38, s38, s22")
        pub_prep(A, ph, 32, 38)
    else:
        A("s_nop 1")
        for i in range(2):
            A(f"v_permlane16_swap_b32 {v(T+4*i)}, {v(T+4*i+2)}")
            A(f"v_permlane16_swap_b32 {v(T+4*i+1)}, {v(T+4*i+3)}")
        A("s_nop 1")
        for i in range(2):
            A(f"buffer_store_dwordx4 {v(T+4*i,4)}, v9, s[48:51], {s(35+i)} offen{OUTF}")
        if PROF:
            A("s_waitcnt vmcnt(0)")
            stamp(A, ph, 4)

def ph_gu(A):
    ph = 4
    R, SLOT, NST = 5, 30720, 32
    SL = R * SLOT
    A("s_and_b32 s21, s2, 1")
    A("s_lshl_b32 s21, s21, 2")
    A("s_bfe_u32 s28, s2, 0x20003")
    A("s_add_u32 s21, s21, s28")
    A("s_bfe_u32 s22, s2, 0x20001")
    A("s_lshl_b32 s22, s22, 3")
    A("s_lshr_b32 s28, s2, 5")
    A("s_add_u32 s22, s22, s28")
    def wdma():
        return [[f"s_add_u32 m0, {s(sWr)}, {s(sM)}", "s_mov_b64 exec, s[34:35]",
                 f"buffer_load_dwordx4 v7, s[12:15], {s(sGo)} offen lds",
                 f"buffer_load_dwordx4 v8, s[12:15], {s(sGo)} offen offset:896 lds",
                 f"s_add_u32 m0, m0, 7168", "s_nop 0",
                 f"buffer_load_dwordx4 v7, s[16:19], {s(sGo)} offen lds",
                 f"buffer_load_dwordx4 v8, s[16:19], {s(sGo)} offen offset:896 lds",
                 "s_mov_b64 exec, -1",
                 f"s_add_u32 {s(sGo)}, {s(sGo)}, {32*7168}"]]
    srd(A, 12, 44, 0, 7*MB)
    srd(A, 16, 46, 0, 7*MB)
    srd(A, 8, 6, WS_H, 4*MB)
    A("s_cmp_lt_u32 s20, 4")
    A("s_cbranch_scc1 gu_A0")
    if OPT("CT", 1) >= 2: code_touch(A, 255)
    A("v_mul_u32_u24 v7, 4682, v1")
    A("v_lshrrev_b32 v7, 16, v7")
    A("v_mul_u32_u24 v8, 14, v7")
    A("v_sub_u32 v8, v1, v8")
    A("v_mul_u32_u24 v7, 7168, v7")
    A("v_lshl_add_u32 v7, v8, 4, v7")
    A(f"v_add_u32 v8, {4*7168-896}, v7")
    A("s_mov_b32 s34, -1")
    A("s_mov_b32 s35, 0x00ffffff")
    A(f"s_mul_i32 s28, s31, {8*7168}")
    A("s_mul_i32 s29, s22, 224")
    A(f"s_add_u32 {s(sGo)}, s28, s29")
    A(f"s_mul_i32 {s(sM)}, s31, 1792")
    A(f"s_add_u32 {s(sM)}, {s(sM)}, 16384")
    GE = OPT("GE", 0)
    fill_ring(A, R, SLOT, wdma, 0, GE)
    if not OPT("PUBFIRST", 1):
        A(f"s_waitcnt vmcnt({4*GE})")
        stamp(A, 3, 4)
    publish(A)
    fill_ring(A, R, SLOT, wdma, GE, R)
    A("s_branch gu_C0")
    A.label("gu_A0")
    A("s_lshl_b32 s28, s21, 4")
    A("s_lshl_b32 s29, s31, 2")
    A("s_add_u32 s28, s28, s29")
    A(f"s_lshl_b32 {s(sGo)}, s28, 10")
    A(f"s_lshl_b32 {s(sM)}, s31, 12")
    for i in range(32, 152): A(f"v_mov_b32 {v(i)}, 0")
    if not OPT("PUBFIRST", 1):
        A("s_waitcnt vmcnt(0)")
        stamp(A, 3, 4)
    publish(A)
    A.label("gu_C0")
    srd(A, 44, 6, WS_ST, 2048*128)
    srd(A, 48, 6, WS_CS, 4*7168*4)
    srd(A, 52, 6, WS_HACT, 2048*3584*2)
    A("s_and_b32 s36, s22, 1")
    A("s_cmp_eq_u32 s36, 1")
    A("s_cselect_b32 s37, 3, 0")
    A("s_cselect_b32 s38, 1, 4")
    A("s_cselect_b32 s39, 0, 6")
    A("s_cmp_ge_u32 s20, 4")
    A("s_cselect_b32 s37, s38, s37")
    A("s_lshl_b32 s28, s31, 12")
    A("v_add_u32 v10, s28, v6")
    A("v_lshl_add_u32 v11, v2, 2, v3")
    A("v_mul_u32_u24 v11, 224, v11")
    A("v_lshl_add_u32 v11, v4, 3, v11")
    A("v_add_u32 v11, 16384, v11")
    A("s_lshl_b32 s28, s39, 5")
    A("v_add_u32 v12, s28, v11")
    A("s_lshl_b32 s28, s37, 5")
    A("v_add_u32 v11, s28, v11")
    A("v_and_b32 v13, 255, v0")
    A("v_lshlrev_b32 v14, 3, v13")
    A("s_lshl_b32 s32, s21, 11")
    A("v_lshlrev_b32 v15, 2, v13")
    A(f"v_add_u32 v9, {(3584-112)*4}, v15")
    A("v_cmp_gt_u32 vcc, 112, v13")
    A("v_mov_b32 v19, 0x7fffffff")
    A("s_mul_i32 s33, s22, 448")
    A("v_cndmask_b32 v15, v9, v15, vcc")
    A("v_cmp_gt_u32 vcc, 224, v13")
    A("s_nop 1")
    A("v_cndmask_b32 v15, v19, v15, vcc")
    A("s_cmp_lt_u32 s20, 4")
    A("s_cbranch_scc1 gu_Z")
    for i in range(32, 120): A(f"v_mov_b32 {v(i)}, 0")
    A.label("gu_Z")
    stamp(A, ph, 0)
    wait_flags(A, 3, 21, 32, also_all=2)
    for i in range(24, 32): A(f"v_mov_b32 {v(i)}, 0")
    stamp(A, ph, 1)
    def body(nf, tag):
        def wsrc(j):
            if nf == 3 and j == 2: return 18, 0
            return 17, j * 32
        ACC = 24
        def acc(j, gu, i): return ACC + ((j * 2 + gu) * 4 + i) * 4
        NS = 16 + nf * 8
        SET = [ACC + nf * 32, ACC + nf * 32 + NS]
        def xf(p, i): return SET[p] + i * 4
        def wf(p, j, gu): return SET[p] + 16 + (j * 2 + gu) * 4
        if tag == "A":
            fill_ring(A, R, SLOT, lambda: xdma(0x20000), bar=True)
        else:
            fill_ring(A, R, SLOT, None, bar=True)
        hook = None
        if tag == "A" and OPT("CTG", 1):
            hook = {5: code_touch_list(A, "gu_epiA", 251, 252), ('x', 4): 1, ('x', 3): 1, ('x', 2): 1}
        if tag == "B":
            def ld16():
                o = []
                for j in range(16):
                    o += [f"buffer_load_dwordx2 {v(200+2*j,2)}, v14, s[44:47], s32 offen{LDF}", "s_add_u32 s32, s32, 16384"]
                return o
            def red16():
                o = []
                for j in range(1, 8):
                    for q in (200, 201, 216, 217):
                        o.append(f"v_add_f32 {v(q)}, {v(q)}, {v(q+2*j)}")
                return o
            h1 = ld16()
            for j in range(4):
                h1 += [f"buffer_load_dword {v(232+j)}, v15, s[48:51], s33 offen{LDF}", f"s_add_u32 s33, s33, {7168*4}"]
            hook = ["s_waitcnt vmcnt(0)"] + red16()
            hook += ["v_add_f32 v200, v200, v216", "v_add_f32 v201, v201, v217",
                "v_add_f32 v232, v232, v233", "v_add_f32 v234, v234, v235", "v_add_f32 v232, v232, v234",
                f"v_mul_f32 v200, {f32(-1/1024)}, v200", f"v_mul_f32 v201, {f32(1/1024)}, v201",
                "v_fma_f32 v201, -v200, v200, v201", "v_max_f32 v201, 0, v201", f"v_add_f32 v201, {f32(1e-5)}, v201",
                "v_rsq_f32 v202, v201", "v_sqrt_f32 v204, v201", "v_mov_b32 v201, v200",
                f"v_mul_f32 v202, {f32(-LOG2E)}, v202", "v_mov_b32 v205, v204", "v_mov_b32 v203, v202",
                "v_lshlrev_b32 v14, 4, v13", f"v_add_u32 v14, {SL}, v14", "ds_write_b128 v14, v[200:203]",
                "v_lshlrev_b32 v14, 3, v13", f"v_add_u32 v14, {SL+5120}, v14", "ds_write_b64 v14, v[204:205]",
                "v_lshlrev_b32 v15, 2, v13", f"v_add_u32 v15, {SL+4096}, v15", "ds_write_b32 v15, v232"]
            hook = {5: h1, 3: hook, ('x', 4): 20, ('x', 3): 20}
        def reads(p):
            out = []
            for i in range(4):
                out.append([f"ds_read_b128 {v(xf(p,i),4)}, v16 offset:{i*1024}"])
            for j in range(nf):
                ar, imm = wsrc(j)
                for gu in range(2):
                    for t in range(2):
                        out.append([f"ds_read_b64_tr_b16 {v(wf(p,j,gu)+2*t,2)}, {v(ar)} offset:{imm+gu*7168+t*3584}"])
            return out
        def addr_upd():
            o = [f"v_add_u32 v16, {s(sRd)}, v10", f"v_add_u32 v17, {s(sRd)}, v11"]
            if nf == 3: o.append(f"v_add_u32 v18, {s(sRd)}, v12")
            return o
        def mfmas(p):
            return [mf16(acc(j, gu, i), wf(p, j, gu), xf(p, i)) for j in range(nf) for gu in range(2) for i in (range(4) if (gu == 0 or not OPT("SNAKE", 1)) else range(3, -1, -1))]
        gemm_loop(A, ph, f"gu_loop{tag}", tag, R, SLOT, NST, 4, mfmas, reads, (lambda: xdma(0x20000)) if tag == "A" else wdma, addr_upd, hook)
        A.label(f"gu_epi{tag}")
        A(f"s_load_dwordx2 s[44:45], s[0:1], {KA_OUT}")
        A(f"s_load_dwordx2 s[46:47], s[0:1], {KA_DBG}")
        STR = 232
        CSR = 200
        A("s_lshl_b32 s28, s31, 10")
        A(f"s_add_u32 s28, s28, {SL}")
        A("v_lshlrev_b32 v14, 4, v5")
        A("v_add_u32 v14, s28, v14")
        for i in range(4):
            A(f"ds_read_b128 {v(STR+4*i,4)}, v14 offset:{i*256}")
        SGR = 184
        A("s_lshl_b32 s28, s31, 9")
        A(f"s_add_u32 s28, s28, {SL+5120}")
        A("v_lshlrev_b32 v14, 3, v5")
        A("v_add_u32 v14, s28, v14")
        for i in range(4):
            A(f"ds_read_b64 {v(SGR+2*i,2)}, v14 offset:{i*128}")
        A("v_lshlrev_b32 v9, 4, v2")
        A("s_lshl_b32 s28, s37, 6")
        A(f"s_add_u32 s28, s28, {SL+4096}")
        A("v_add_u32 v14, s28, v9")
        A("s_lshl_b32 s28, s39, 6")
        A(f"s_add_u32 s28, s28, {SL+4096}")
        A("v_add_u32 v15, s28, v9")
        for j in range(nf):
            for gu in range(2):
                ar, imm = (15, 0) if (nf == 3 and j == 2) else (14, j * 64)
                A(f"ds_read_b128 {v(CSR+(j*2+gu)*4,4)}, {v(ar)} offset:{imm+gu*448}")
        A("s_mul_i32 s28, s22, 7")
        A("s_add_u32 s29, s28, s37")
        A("s_lshr_b32 s29, s29, 1")
        A("s_lshl_b32 s29, s29, 17")
        A("s_lshl_b32 s33, s21, 4")
        A("s_lshl_b32 s36, s31, 2")
        A("s_add_u32 s33, s33, s36")
        A("s_lshl_b32 s33, s33, 10")
        A("s_add_u32 s56, s29, s33")
        A("s_add_u32 s57, s56, 0x20000")
        A("s_add_u32 s29, s28, s39")
        A("s_and_b32 s36, s29, 1")
        A("s_lshl_b32 s36, s36, 3")
        A("s_lshr_b32 s29, s29, 1")
        A("s_lshl_b32 s29, s29, 17")
        A("s_add_u32 s58, s29, s33")
        A("s_add_u32 s58, s58, s36")
        T = SET[0]
        tix = 0
        A("s_waitcnt lgkmcnt(0)")
        for jp in range(2):
            js = [2*jp, 2*jp+1] if 2*jp+1 < nf else [2*jp]
            for i in range(4):
                dst = T + 4 * (tix % 8); tix += 1
                c1 = v(STR+4*i+2, 2)
                nm_ = v(STR+4*i, 2)
                for j in js:
                    for gu in range(2):
                        a_ = acc(j, gu, i)
                        for h in range(2): A(f"v_pk_fma_f32 {v(a_+2*h,2)}, {v(CSR+(j*2+gu)*4+2*h,2)}, {nm_}, {v(a_+2*h,2)}")
                for j in js:
                    g_ = acc(j, 0, i)
                    for h in range(2): A(f"v_pk_mul_f32 {v(g_+2*h,2)}, {v(g_+2*h,2)}, {c1}")
                for j in js:
                    g_ = acc(j, 0, i)
                    for r in range(4): A(f"v_exp_f32 {v(g_+r)}, {v(g_+r)}")
                if len(js) == 1: A("s_nop 0")
                for j in js:
                    g_ = acc(j, 0, i)
                    for h in range(2): A(f"v_pk_fma_f32 {v(g_+2*h,2)}, {v(g_+2*h,2)}, {v(SGR+2*i,2)}, {v(SGR+2*i,2)}")
                for j in js:
                    g_ = acc(j, 0, i)
                    for r in range(4): A(f"v_rcp_f32 {v(g_+r)}, {v(g_+r)}")
                if len(js) == 1: A("s_nop 0")
                for j in js:
                    g_, u_ = acc(j, 0, i), acc(j, 1, i)
                    for h in range(2): A(f"v_pk_mul_f32 {v(u_+2*h,2)}, {v(u_+2*h,2)}, {v(g_+2*h,2)}")
                for jj, j in enumerate(js):
                    u_ = acc(j, 1, i)
                    for h in range(2):
                        A(f"v_cvt_pk_bf16_f32 {v(dst+2*jj+h)}, {v(u_+2*h)}, {v(u_+2*h+1)}")
                if len(js) == 2:
                    A(f"buffer_store_dwordx4 {v(dst,4)}, v6, s[52:55], {s(56+jp)} offen offset:{i*1024}{STF}")
                else:
                    A(f"buffer_store_dwordx2 {v(dst,2)}, v6, s[52:55], s58 offen offset:{i*1024}{STF}")
    A("s_cmp_ge_u32 s20, 4")
    A("s_cbranch_scc1 gu_B")
    body(4, "A")
    A("s_branch gu_end")
    A.label("gu_B")
    body(3, "B")
    A.label("gu_end")
    pub_prep(A, ph, 21, 22)


def ph_down2(A):
    ph = 5
    R, SLOT, NST = OPT("DR", 5), 32768, 28
    PSC = OPT("D2SC", 0)
    A("s_and_b32 s21, s2, 3")
    A("s_lshl_b32 s21, s21, 2")
    A("s_bfe_u32 s28, s2, 0x20003")
    A("s_add_u32 s21, s21, s28")
    A("s_lshr_b32 s22, s2, 5")
    A("s_bfe_u32 s26, s2, 0x10002")
    A("s_and_b32 s32, s20, 1")
    A("s_lshr_b32 s33, s20, 1")
    if PSC:
        A("s_add_u32 s39, s21, s22")
        A("s_and_b32 s39, s39, 3")
        A(f"s_mul_i32 s39, s39, {PSC//4}")
    srd(A, 12, 6, WS_WD, 7*MB)
    srd(A, 8, 6, WS_HACT, 2048*3584*2)
    wd = lambda: xdma(8192, PSC, 's[12:15]')
    xd = lambda: xdma(0x40000, PSC)
    srd(A, 52, 46, 0, 256)
    A("v_mov_b32 v20, 0")
    A("buffer_load_dwordx2 v[248:249], v20, s[52:55], 0 offen sc1")
    A("s_cmp_lt_u32 s20, 4")
    A("s_cbranch_scc1 d2_A0")
    A("s_lshl_b32 s28, s22, 1")
    A("s_lshr_b32 s29, s31, 1")
    A("s_add_u32 s28, s28, s29")
    A(f"s_mul_i32 s28, s28, {3584*128}")
    A(f"s_mul_i32 s29, s26, {1792*128}")
    A("s_add_u32 s28, s28, s29")
    A("s_and_b32 s29, s31, 1")
    A("s_lshl_b32 s29, s29, 12")
    A(f"s_add_u32 {s(sGo)}, s28, s29")
    if PSC: rot_init(A, 8192, PSC)
    A(f"s_lshl_b32 {s(sM)}, s31, 12")
    A(f"s_add_u32 {s(sM)}, {s(sM)}, 16384")
    fill_ring(A, R, SLOT, wd)
    A("s_branch d2_C0")
    A.label("d2_A0")
    A("s_mul_i32 s28, s26, 56")
    A("s_lshr_b32 s29, s31, 1")
    A("s_add_u32 s28, s28, s29")
    A("s_lshl_b32 s28, s28, 7")
    A("s_lshl_b32 s29, s21, 3")
    A("s_add_u32 s28, s28, s29")
    A("s_and_b32 s29, s31, 1")
    A("s_lshl_b32 s29, s29, 2")
    A("s_add_u32 s28, s28, s29")
    A(f"s_lshl_b32 {s(sGo)}, s28, 10")
    if PSC: rot_init(A, 0x40000, PSC)
    A(f"s_lshl_b32 {s(sM)}, s31, 12")
    A.label("d2_C0")
    ACC = 32
    def acc(f, i): return ACC + (i * 2 + f) * 4
    SET = [64, 112]
    def xf(p, kk, i): return SET[p] + (kk * 4 + i) * 4
    def wf(p, kk, f): return SET[p] + 32 + (kk * 2 + f) * 4
    RES = 240
    A("s_lshl_b32 s34, s22, 2")
    A("s_add_u32 s34, s34, s33")
    A("s_lshl_b32 s34, s34, 7")
    A("s_lshl_b32 s35, s21, 3")
    A("s_lshl_b32 s36, s32, 2")
    A("s_add_u32 s35, s35, s36")
    A("s_lshl_b32 s36, s26, 1")
    A("s_add_u32 s35, s35, s36")
    A("s_add_u32 s34, s34, s35")
    A("s_lshl_b32 s34, s34, 10")
    A("s_lshl_b32 s35, s35, 15")
    A("s_lshl_b32 s36, s22, 8")
    A("s_add_u32 s35, s35, s36")
    A("s_lshl_b32 s36, s33, 6")
    A("s_add_u32 s35, s35, s36")
    A("s_add_u32 s36, s35, 32768")
    srd(A, 16, 6, WS_H, 4*MB)
    srd(A, 48, 44, 0, 4*MB)
    A("v_lshlrev_b32 v9, 11, v5")
    A("v_and_b32 v15, 1, v2")
    A("v_lshl_add_u32 v9, v15, 5, v9")
    A("v_lshrrev_b32 v15, 1, v2")
    A("v_lshl_add_u32 v9, v15, 4, v9")
    A("s_lshl_b32 s28, s32, 12")
    A("s_lshl_b32 s29, s26, 11")
    A("s_add_u32 s3, s28, s29")
    A("v_add_u32 v10, s3, v6")
    A("s_xor_b32 s3, s3, 2048")
    A("v_add_u32 v15, s3, v6")
    A("v_lshl_add_u32 v11, v2, 2, v3")
    A("v_lshlrev_b32 v11, 7, v11")
    A("v_lshl_add_u32 v11, v4, 3, v11")
    A("s_lshr_b32 s28, s33, 1")
    A("s_lshl_b32 s28, s28, 13")
    A("s_add_u32 s28, s28, 16384")
    A("v_add_u32 v11, s28, v11")
    A("v_bfe_u32 v12, v1, 3, 2")
    A("s_and_b32 s29, s33, 1")
    A("s_lshl_b32 s29, s29, 1")
    A("v_xor_b32 v13, s29, v12")
    A("v_lshl_add_u32 v13, v13, 5, v11")
    A("v_xor_b32 v14, 32, v13")
    for i in range(16): A(f"v_mov_b32 {v(acc(0,2)+i)}, 0")
    A("s_lshr_b32 s40, s21, 1")
    A("s_lshl_b32 s41, s26, 7")
    stamp(A, ph, 0)
    wait_flags(A, 4, 40, 16, soff=41)
    stamp(A, ph, 1)
    for i in range(2):
        A(f"buffer_load_dwordx4 {v(RES+4*i,4)}, v6, s[16:19], s34 offen offset:{i*1024}{LDF}")
    def accinit():
        for i in range(2):
            for f in range(2):
                for h in range(2):
                    src = RES + 4*i + 2*f + h
                    A(f"v_lshlrev_b32 {v(acc(f,i)+2*h)}, 16, {v(src)}")
                    A(f"v_and_b32 {v(acc(f,i)+2*h+1)}, 0xffff0000, {v(src)}")
        if OPT("XTAG", 2) == 2:
            for q in (163, 167, 170, 171): A(f"v_mov_b32 {v(q)}, v248")
            srd(A, 52, 6, WS_XB, 9*MB)
            A("s_lshl_b32 s28, s2, 3")
            A("s_add_u32 s28, s28, s20")
            A("s_xor_b32 s29, s28, 32")
            A("s_lshl_b32 s40, s28, 12")
            A("s_lshl_b32 s41, s29, 12")
        A("s_movk_i32 s42, 0xfff")
        A("v_mov_b32 v244, v248")
        A("v_lshrrev_b32 v245, 12, v248")
        A("v_alignbit_b32 v246, v249, v248, 24")
        A("v_lshrrev_b32 v247, 4, v249")
    def reads(p):
        out = []
        for kk in range(2):
            for f in range(2):
                for t in range(2):
                    out.append([f"ds_read_b64_tr_b16 {v(wf(p,kk,f)+2*t,2)}, {v(17+f)} offset:{kk*4096+t*2048}"])
            for i in range(4):
                out.append([f"ds_read_b128 {v(xf(p,kk,i),4)}, {v(16 if i < 2 else 19)} offset:{kk*8192+(i&1)*1024}"])
        return out
    def addr_upd():
        return [f"v_add_u32 v16, {s(sRd)}, v10", f"v_add_u32 v17, {s(sRd)}, v13", f"v_add_u32 v18, {s(sRd)}, v14", f"v_add_u32 v19, {s(sRd)}, v15"]
    def mfmas(p):
        return [mf16(acc(f, i), wf(p, kk, f), xf(p, kk, i)) for ii in (2, 0) for kk in range(2) for f in range(2) for i in (ii, ii + 1)]
    DST = [160, 161, 162, 164, 165, 166, 168, 169]
    send = []
    if OPT("XTAG", 2) == 2:
        send = ["s_nop 4"]
        for q in range(8):
            send.append(f"v_cvt_pk_bf16_f32 {v(DST[q])}, {v(acc(0,2)+2*q)}, {v(acc(0,2)+2*q+1)}")
            if q in (2, 5, 7): send.append(f"buffer_store_dwordx4 {v(160+4*(q//3),4)}, v6, s[52:55], s40 offen offset:{(q//3)*1024} sc1")
    hookS = {1: send, 'lastpos': 11} if send else {}
    A("s_cmp_ge_u32 s20, 4")
    A("s_cbranch_scc1 d2_B")
    fill_ring(A, R, SLOT, xd, bar=True)
    A(f"s_waitcnt vmcnt({4*R})")
    accinit()
    gemm_loop(A, ph, "d2_loopA", "A", R, SLOT, NST, 4, mfmas, reads, xd, addr_upd,
              {5: code_touch_list(A, "d2_epi", 251, 252), ('x', 4): 1, ('x', 3): 1, ('x', 2): 1, **hookS})
    A("s_branch d2_epi")
    A.label("d2_B")
    fill_ring(A, R, SLOT, None, bar=True)
    A("s_waitcnt vmcnt(0)")
    accinit()
    gemm_loop(A, ph, "d2_loopB", "B", R, SLOT, NST, 4, mfmas, reads, wd, addr_upd, hookS)
    A.label("d2_epi")
    if OPT("XTAG", 2) == 2:
        A(f"s_mov_b32 s28, {SPIN_MAX}")
        if OPT("XW", 1): A("s_waitcnt vmcnt(0)")
        if OPT("XDBG", 0): stamp(A, ph, 0)
        A.label("d2_poll")
        for j in range(3):
            A(f"buffer_load_dwordx4 {v(64+4*j,4)}, v6, s[52:55], s41 offen offset:{j*1024} sc1")
        A("s_waitcnt vmcnt(0)")
        A("v_xor_b32 v80, v248, v67")
        A("v_xor_b32 v81, v248, v71")
        A("v_xor_b32 v82, v248, v75")
        A("v_or3_b32 v80, v80, v81, v82")
        A("v_cmp_ne_u32 vcc, 0, v80")
        A("s_nop 1")
        A("s_cmp_eq_u64 vcc, 0")
        A("s_cbranch_scc1 d2_got")
        A(f"s_sleep {OPT('XSLEEP', 1)}")
        A("s_sub_u32 s28, s28, 1")
        A("s_cmp_lg_u32 s28, 0")
        A("s_cbranch_scc1 d2_poll")
        A.label("d2_got")
        if OPT("XDBG", 0): stamp(A, ph, 1)
        T = 112
        for i in range(2):
            for q in range(4):
                src = DST[4*i+q] - 96
                A(f"v_lshlrev_b32 {v(84+2*q)}, 16, {v(src)}")
                A(f"v_and_b32 {v(85+2*q)}, 0xffff0000, {v(src)}")
            for q in range(4):
                A(f"v_pk_add_f32 {v(ACC+8*i+2*q,2)}, {v(ACC+8*i+2*q,2)}, {v(84+2*q,2)}")
            for q in range(4):
                A(f"v_cvt_pk_bf16_f32 {v(T+4*i+q)}, {v(ACC+8*i+2*q)}, {v(ACC+8*i+2*q+1)}")
            A("s_nop 1")
            A(f"v_permlane16_swap_b32 {v(T+4*i)}, {v(T+4*i+2)}")
            A(f"v_permlane16_swap_b32 {v(T+4*i+1)}, {v(T+4*i+3)}")
            A("s_nop 1")
            A(f"buffer_store_dwordx4 {v(T+4*i,4)}, v9, s[48:51], {s(35+i)} offen{OUTF}")
        if PROF:
            A("s_waitcnt vmcnt(0)")
            stamp(A, ph, 4)
        return
    srd(A, 8, 6, WS_Q if OPT('XBQ', 0) else WS_XB, 9*MB)
    A("s_lshl_b32 s28, s2, 3")
    A("s_add_u32 s28, s28, s20")
    A("s_xor_b32 s29, s28, 32")
    A("s_lshl_b32 s40, s28, 12")
    A("s_lshl_b32 s41, s29, 12")
    XTAG = OPT("XTAG", 2)
    if XTAG:
        for j in range(4):
            for r in range(4):
                A(f"v_bfi_b32 {v(acc(0,2)+4*j+r)}, s42, {v(244+r)}, {v(acc(0,2)+4*j+r)}")
            A(f"buffer_store_dwordx4 {v(acc(0,2)+4*j,4)}, v6, s[8:11], s40 offen offset:{j*1024} sc1")
        A(f"s_mov_b32 s28, {SPIN_MAX}")
        if OPT("XW", 1): A("s_waitcnt vmcnt(0)")
        if OPT("XDBG", 0): stamp(A, ph, 0)
        A.label("d2_poll")
        for j in range(4):
            A(f"buffer_load_dwordx4 {v(64+4*j,4)}, v6, s[8:11], s41 offen offset:{j*1024} sc1")
        for j in range(4):
            A(f"s_waitcnt vmcnt({3-j})")
            for r in range(4):
                A(f"v_xor_b32 {v(80+4*j+r)}, {v(244+r)}, {v(64+4*j+r)}")
            A(f"v_or3_b32 {v(80+4*j)}, {v(80+4*j)}, {v(81+4*j)}, {v(82+4*j)}")
            if j: A(f"v_or3_b32 {v(80+4*j)}, {v(80+4*j)}, {v(83+4*j)}, {v(76+4*j)}")
            else: A(f"v_or_b32 {v(80)}, {v(80)}, {v(83)}")
        A("v_and_b32 v92, s42, v92")
        A("v_cmp_ne_u32 vcc, 0, v92")
        A("s_nop 1")
        A("s_cmp_eq_u64 vcc, 0")
        A("s_cbranch_scc1 d2_got")
        A("s_sleep 1")
        A("s_sub_u32 s28, s28, 1")
        A("s_cmp_lg_u32 s28, 0")
        A("s_cbranch_scc1 d2_poll")
        A.label("d2_got")
        if OPT("XDBG", 0): stamp(A, ph, 1)
    else:
        for j in range(4):
            A(f"buffer_store_dwordx4 {v(acc(0,2)+4*j,4)}, v6, s[8:11], s40 offen offset:{j*1024} sc1")
        A(f"s_lshl_b32 s42, s28, {OPT('XFS', 7)}")
        A(f"s_add_u32 s42, s42, {8*MB}")
        A(f"s_lshl_b32 s43, s29, {OPT('XFS', 7)}")
        A(f"s_add_u32 s43, s43, {8*MB}")
        A("v_mov_b32 v20, 0")
        A(f"s_mov_b32 s28, {SPIN_MAX}")
        A("s_waitcnt vmcnt(0)")
        if OPT("XDBG", 0): stamp(A, ph, 0)
        A("s_mov_b64 exec, 1")
        A("buffer_store_dwordx2 v[248:249], v20, s[8:11], s42 offen sc1")
        A.label("d2_poll")
        A("buffer_load_dwordx2 v[22:23], v20, s[8:11], s43 offen sc1")
        A("s_waitcnt vmcnt(0)")
        A("v_cmp_ne_u64 vcc, v[248:249], v[22:23]")
        A("s_nop 1")
        A("s_cmp_eq_u64 vcc, 0")
        A("s_cbranch_scc1 d2_got")
        if OPT("XSLEEP", 1): A(f"s_sleep {OPT('XSLEEP', 1)}")
        A("s_sub_u32 s28, s28, 1")
        A("s_cmp_lg_u32 s28, 0")
        A("s_cbranch_scc1 d2_poll")
        A.label("d2_got")
        A("s_mov_b64 exec, -1")
        if OPT("XDBG", 0): stamp(A, ph, 1)
        for j in range(4):
            A(f"buffer_load_dwordx4 {v(64+4*j,4)}, v6, s[8:11], s41 offen offset:{j*1024} sc1")
    T = 112
    for i in range(2):
        if not XTAG: A(f"s_waitcnt vmcnt({2 - 2*i + i})")
        for q in range(4):
            A(f"v_pk_add_f32 {v(ACC+8*i+2*q,2)}, {v(ACC+8*i+2*q,2)}, {v(64+8*i+2*q,2)}")
        for f in range(2):
            for h in range(2):
                A(f"v_cvt_pk_bf16_f32 {v(T+4*i+2*f+h)}, {v(acc(f,i)+2*h)}, {v(acc(f,i)+2*h+1)}")
        A("s_nop 1")
        A(f"v_permlane16_swap_b32 {v(T+4*i)}, {v(T+4*i+2)}")
        A(f"v_permlane16_swap_b32 {v(T+4*i+1)}, {v(T+4*i+3)}")
        A("s_nop 1")
        A(f"buffer_store_dwordx4 {v(T+4*i,4)}, v9, s[48:51], {s(35+i)} offen{OUTF}")
    if PROF:
        A("s_waitcnt vmcnt(0)")
        stamp(A, ph, 4)


def ph_down3(A):
    ph = 5
    R, SLOT = OPT("DR", 5), 32768
    N0 = OPT("N0", 26)
    T = R + (R % 2)
    A("s_and_b32 s21, s2, 3")
    A("s_lshl_b32 s21, s21, 2")
    A("s_bfe_u32 s28, s2, 0x20003")
    A("s_add_u32 s21, s21, s28")
    A("s_lshr_b32 s22, s2, 5")
    A("s_bfe_u32 s26, s2, 0x10002")
    A("s_and_b32 s32, s20, 1")
    A("s_lshr_b32 s33, s20, 1")
    srd(A, 12, 6, WS_WD, 7*MB)
    srd(A, 8, 6, WS_HACT, 2048*3584*2)
    wd = lambda: xdma(8192, 0, 's[12:15]')
    xd = lambda: xdma(0x40000, 0)
    A("s_cmp_lt_u32 s20, 4")
    A("s_cbranch_scc1 d3_A0")
    A("s_lshl_b32 s28, s22, 1")
    A("s_lshr_b32 s29, s31, 1")
    A("s_add_u32 s28, s28, s29")
    A(f"s_mul_i32 s28, s28, {3584*128}")
    A(f"s_mul_i32 s29, s26, {N0*64*128}")
    A("s_add_u32 s28, s28, s29")
    A("s_and_b32 s29, s31, 1")
    A("s_lshl_b32 s29, s29, 12")
    A(f"s_add_u32 {s(sGo)}, s28, s29")
    A(f"s_lshl_b32 {s(sM)}, s31, 12")
    A(f"s_add_u32 {s(sM)}, {s(sM)}, 16384")
    srd(A, 52, 46, 0, 256)
    A("v_mov_b32 v20, 0")
    A("buffer_load_dwordx2 v[248:249], v20, s[52:55], 0 offen sc1")
    fill_ring(A, R, SLOT, wd)
    A("s_branch d3_C0")
    A.label("d3_A0")
    A(f"s_mul_i32 s28, s26, {2*N0}")
    A("s_lshr_b32 s29, s31, 1")
    A("s_add_u32 s28, s28, s29")
    A("s_lshl_b32 s28, s28, 7")
    A("s_lshl_b32 s29, s21, 3")
    A("s_add_u32 s28, s28, s29")
    A("s_and_b32 s29, s31, 1")
    A("s_lshl_b32 s29, s29, 2")
    A("s_add_u32 s28, s28, s29")
    A(f"s_lshl_b32 {s(sGo)}, s28, 10")
    A(f"s_lshl_b32 {s(sM)}, s31, 12")
    A.label("d3_C0")
    ACC = 32
    def acc(f, i): return ACC + (i * 2 + f) * 4
    SET = [64, 112]
    def xf(p, kk, i): return SET[p] + (kk * 4 + i) * 4
    def wf(p, kk, f): return SET[p] + 32 + (kk * 2 + f) * 4
    RES = 224
    A("s_lshl_b32 s34, s22, 2")
    A("s_add_u32 s34, s34, s33")
    A("s_lshl_b32 s34, s34, 7")
    A("s_lshl_b32 s35, s21, 3")
    A("s_lshl_b32 s36, s32, 2")
    A("s_add_u32 s35, s35, s36")
    A("s_add_u32 s34, s34, s35")
    A("s_lshl_b32 s34, s34, 10")
    A("s_lshl_b32 s35, s35, 15")
    A("s_lshl_b32 s36, s22, 8")
    A("s_add_u32 s35, s35, s36")
    A("s_lshl_b32 s36, s33, 6")
    A("s_add_u32 s35, s35, s36")
    A("s_add_u32 s36, s35, 32768")
    A("s_add_u32 s37, s36, 32768")
    A("s_add_u32 s38, s37, 32768")
    srd(A, 16, 6, WS_H, 4*MB)
    A("s_cmp_eq_u32 s26, 0")
    A(f"s_cselect_b32 s18, 0, {4*MB}")
    A(f"s_cselect_b32 s39, {(N0-T)//2}, {(56-N0-T)//2}")
    srd(A, 48, 44, 0, 4*MB)
    A("v_lshlrev_b32 v9, 11, v5")
    A("v_and_b32 v15, 1, v2")
    A("v_lshl_add_u32 v9, v15, 5, v9")
    A("v_lshrrev_b32 v15, 1, v2")
    A("v_lshl_add_u32 v9, v15, 4, v9")
    A("s_lshl_b32 s28, s32, 12")
    A("v_add_u32 v10, s28, v6")
    A("v_lshl_add_u32 v11, v2, 2, v3")
    A("v_lshlrev_b32 v11, 7, v11")
    A("v_lshl_add_u32 v11, v4, 3, v11")
    A("s_lshr_b32 s28, s33, 1")
    A("s_lshl_b32 s28, s28, 13")
    A("s_add_u32 s28, s28, 16384")
    A("v_add_u32 v11, s28, v11")
    A("v_bfe_u32 v12, v1, 3, 2")
    A("s_and_b32 s29, s33, 1")
    A("s_lshl_b32 s29, s29, 1")
    A("v_xor_b32 v13, s29, v12")
    A("v_lshl_add_u32 v13, v13, 5, v11")
    A("v_xor_b32 v14, 32, v13")
    A("s_lshr_b32 s28, s2, 3")
    A("s_lshl_b32 s28, s28, 2")
    A("s_and_b32 s29, s2, 3")
    A("s_add_u32 s28, s28, s29")
    A("s_lshl_b32 s28, s28, 3")
    A("s_add_u32 s28, s28, s20")
    A("s_lshl_b32 s41, s28, 13")
    A("s_add_u32 s42, s41, 4096")
    A("s_lshl_b32 s43, s28, 7")
    A(f"s_add_u32 s43, s43, {8*MB}")
    A("s_lshr_b32 s40, s21, 1")
    stamp(A, ph, 0)
    wait_flags(A, 4, 40, 32)
    stamp(A, ph, 1)
    for i in range(4):
        A(f"buffer_load_dwordx4 {v(RES+4*i,4)}, v6, s[16:19], s34 offen offset:{i*1024}{LDF}")
    def accinit():
        for i in range(4):
            for f in range(2):
                for h in range(2):
                    src = RES + 4*i + 2*f + h
                    A(f"v_lshlrev_b32 {v(acc(f,i)+2*h)}, 16, {v(src)}")
                    A(f"v_and_b32 {v(acc(f,i)+2*h+1)}, 0xffff0000, {v(src)}")
    def reads(p):
        out = []
        for kk in range(2):
            for f in range(2):
                for t in range(2):
                    out.append([f"ds_read_b64_tr_b16 {v(wf(p,kk,f)+2*t,2)}, {v(17+f)} offset:{kk*4096+t*2048}"])
            for i in range(4):
                out.append([f"ds_read_b128 {v(xf(p,kk,i),4)}, v16 offset:{kk*8192+i*1024}"])
        return out
    def addr_upd():
        return [f"v_add_u32 v16, {s(sRd)}, v10", f"v_add_u32 v17, {s(sRd)}, v13", f"v_add_u32 v18, {s(sRd)}, v14"]
    def mfmas(p):
        return [mf16(acc(f, i), wf(p, kk, f), xf(p, kk, i)) for kk in range(2) for f in range(2) for i in range(4)]
    A("s_cmp_ge_u32 s20, 4")
    A("s_cbranch_scc1 d3_B")
    fill_ring(A, R, SLOT, xd, bar=True)
    A(f"s_waitcnt vmcnt({4*R})")
    accinit()
    gemm_loop(A, ph, "d3_loopA", "A", R, SLOT, 28, 4, mfmas, reads, xd, addr_upd, cnt_sgpr=39)
    A("s_branch d3_epi")
    A.label("d3_B")
    fill_ring(A, R, SLOT, None, bar=True)
    A("s_waitcnt vmcnt(0)")
    accinit()
    gemm_loop(A, ph, "d3_loopB", "B", R, SLOT, 28, 4, mfmas, reads, wd, addr_upd, cnt_sgpr=39)
    A.label("d3_epi")
    srd(A, 8, 6, WS_Q, 9*MB)
    A("v_mov_b32 v20, 0")
    A("s_cmp_lg_u32 s26, 0")
    A("s_cbranch_scc1 d3_recv")
    for j in range(8):
        A(f"buffer_store_dwordx4 {v(ACC+4*j,4)}, v6, s[8:11], {s(41 + j//4)} offen offset:{(j%4)*1024} sc1")
    A("s_waitcnt vmcnt(0)")
    A("s_mov_b64 exec, 1")
    A("buffer_store_dwordx2 v[248:249], v20, s[8:11], s43 offen sc1")
    A("s_mov_b64 exec, -1")
    A("s_branch d3_end")
    A.label("d3_recv")
    A(f"s_mov_b32 s28, {SPIN_MAX}")
    A("s_mov_b64 exec, 1")
    A.label("d3_poll")
    A("buffer_load_dwordx2 v[22:23], v20, s[8:11], s43 offen sc1")
    A("s_waitcnt vmcnt(0)")
    A("v_cmp_ne_u64 vcc, v[248:249], v[22:23]")
    A("s_nop 1")
    A("s_cmp_eq_u64 vcc, 0")
    A("s_cbranch_scc1 d3_got")
    A("s_sleep 1")
    A("s_sub_u32 s28, s28, 1")
    A("s_cmp_lg_u32 s28, 0")
    A("s_cbranch_scc1 d3_poll")
    A.label("d3_got")
    A("s_mov_b64 exec, -1")
    for j in range(8):
        A(f"buffer_load_dwordx4 {v(64+4*j,4)}, v6, s[8:11], {s(41 + j//4)} offen offset:{(j%4)*1024} sc1")
    TT = 112
    for i in range(4):
        A(f"s_waitcnt vmcnt({6 - 2*i + i})")
        for q in range(4):
            A(f"v_pk_add_f32 {v(ACC+8*i+2*q,2)}, {v(ACC+8*i+2*q,2)}, {v(64+8*i+2*q,2)}")
        for f in range(2):
            for h in range(2):
                A(f"v_cvt_pk_bf16_f32 {v(TT+4*i+2*f+h)}, {v(acc(f,i)+2*h)}, {v(acc(f,i)+2*h+1)}")
        A("s_nop 1")
        A(f"v_permlane16_swap_b32 {v(TT+4*i)}, {v(TT+4*i+2)}")
        A(f"v_permlane16_swap_b32 {v(TT+4*i+1)}, {v(TT+4*i+3)}")
        A("s_nop 1")
        A(f"buffer_store_dwordx4 {v(TT+4*i,4)}, v9, s[48:51], {s(35+i)} offen{OUTF}")
    A.label("d3_end")
    if PROF:
        A("s_waitcnt vmcnt(0)")
        stamp(A, ph, 4)
```

```python
import sys, math, os, struct
from asmlib import *

MB = 1 << 20
WS_XN, WS_Q, WS_K, WS_VT, WS_O, WS_H, WS_ST, WS_CS, WS_FL, WS_HACT = 0, 4*MB, 8*MB, 12*MB, 16*MB, 20*MB, 24*MB, 25*MB, 26*MB, 32*MB
if int(os.environ.get('HACT0', '1')): WS_HACT = 0
WS_DBG = 48*MB
WS_RS = 27*MB
WS_XB = 72*MB
WS_WD = 64*MB
KA_X, KA_WQKV, KA_WO, KA_BX, KA_WG, KA_WU, KA_WD, KA_OUT, KA_DBG, KA_WS = 0, 8, 16, 24, 32, 40, 48, 56, 64, 72
LOG2E = math.log2(math.e)
QSCALE = LOG2E / math.sqrt(32.0)
def f32(x): return hex(struct.unpack("<I", struct.pack("<f", x))[0])
def OPT(name, default): return int(os.environ.get(name, str(default)))
def SOPT(name, default): return os.environ.get(name, default)
PROF = OPT("PROF", 0)
STF = " sc1"
LDF = SOPT("LDF", " sc1")
OUTF = SOPT("OUTF", "")
NAME = "sequential_preLN__mha_block__glu_gated_glu__prompt_kernel"

sNON = 62
def stamp(A, ph, i):
    if not PROF: return
    A("s_memrealtime s[64:65]")
    A("s_waitcnt lgkmcnt(0)")
    A(f"s_mov_b32 {s(66+ph*6+i)}, s64")
def cyc(A, ph, end):
    if not PROF: return
    A("s_memtime s[64:65]")
    A("s_waitcnt lgkmcnt(0)")
    if not end: A(f"s_mov_b32 {s(66+ph*6+5)}, s64")
    else: A(f"s_sub_u32 {s(66+ph*6+5)}, s64, {s(66+ph*6+5)}")
def stamp_flush(A):
    if not PROF: return
    if PROF == 2:
        A(f"s_load_dwordx2 s[4:5], s[0:1], {KA_DBG}")
        A("s_waitcnt lgkmcnt(0)")
        srd(A, 8, 4, 0, 256)
        A(f"s_cmp_lg_u32 s2, {OPT('DBGWG', 0)}")
        A("s_cbranch_scc1 the_end")
        A("s_cmp_lg_u32 s20, 0")
        A("s_cbranch_scc1 the_end")
        A("s_mov_b64 exec, 1")
        A("v_mov_b32 v0, 0")
        sel = [(0,3),(0,4),(1,1),(1,2),(1,3),(2,2),(2,3),(3,2),(3,3),(4,2),(4,3),(5,2),(5,3),(5,4)]
        for i, (ph, j) in enumerate(sel):
            A(f"s_sub_u32 s3, {s(66+ph*6+j)}, s66")
            A(f"v_mov_b32 {v(1+i)}, s3")
            A(f"buffer_store_dword {v(1+i)}, v0, s[8:11], 0 offen offset:{8+4*i}")
        return
    A("s_mov_b64 exec, 1")
    srd(A, 8, 6, WS_DBG, 16*MB)
    A("s_lshl_b32 s3, s2, 3")
    A("s_add_u32 s3, s3, s20")
    A("s_lshl_b32 s3, s3, 8")
    A("v_mov_b32 v0, 0")
    for i in range(36):
        A(f"v_mov_b32 {v(1+i)}, {s(66+i)}")
    for i in range(36):
        A(f"buffer_store_dword {v(1+i)}, v0, s[8:11], s3 offen offset:{4*i}")

def mf16(d, A_, B_, c=None):
    c = v(d, 4) if c is None else c
    return f"v_mfma_f32_16x16x32_bf16 {v(d,4)}, {v(A_,4)}, {v(B_,4)}, {c}"
def mf32(d, A_, B_, c=None):
    c = v(d, 16) if c is None else c
    return f"v_mfma_f32_32x32x16_bf16 {v(d,16)}, {v(A_,4)}, {v(B_,4)}, {c}"
def reduce_rows16_32(A, xs, ts):
    for op in ("v_permlane16_swap_b32", "v_permlane32_swap_b32"):
        for x, t in zip(xs, ts): A(f"v_mov_b32 {v(t)}, {v(x)}")
        A("s_nop 1")
        for x, t in zip(xs, ts): A(f"{op} {v(t)}, {v(x)}")
        A("s_nop 1")
        for x, t in zip(xs, ts): A(f"v_add_f32 {v(x)}, {v(x)}, {v(t)}")
def lane_decomp(A):
    A("v_and_b32 v1, 63, v0")
    A("v_lshrrev_b32 v2, 4, v1")
    A("v_bfe_u32 v3, v1, 2, 2")
    A("v_and_b32 v4, 3, v1")
    A("v_and_b32 v5, 15, v1")
    A("v_lshlrev_b32 v6, 4, v1")
def emit(A, L):
    for i in L:
        if isinstance(i, list): emit(A, i)
        else: A(i)

SPIN_MAX = 1 << 18
def pub_prep(A, ph, sg, sj):
    A(f"s_lshl_b32 s3, {s(sg)}, 8")
    A(f"s_lshl_b32 s28, {s(sj)}, 3")
    A("s_add_u32 s3, s3, s28")
    A(f"s_add_u32 s3, s3, {ph*4096}")
    A("v_mov_b32 v250, s3")
    if OPT("PUBFIRST", 1) and ph > 0:
        A("s_waitcnt vmcnt(0)")
        stamp(A, ph, 4)
        publish(A, force=True)
def publish(A, force=False):
    if OPT("PUBFIRST", 1) and not force: return
    srd(A, 56, 6, WS_FL, 6 * 4096)
    A("s_barrier")
    skip = A.newlabel("pub_skip")
    A("s_cmp_lg_u32 s20, 0")
    A(f"s_cbranch_scc1 {skip}")
    A("s_mov_b64 exec, 1")
    A("buffer_store_dwordx2 v[248:249], v250, s[56:59], 0 offen sc1")
    A("s_mov_b64 exec, -1")
    A.label(skip)

def wait_flags(A, ph, sg, n, also_all=None, soff=None):
    skip = A.newlabel("wf_skip"); loop = A.newlabel("wf_loop"); done = A.newlabel("wf_done")
    A("s_cmp_lg_u32 s20, 0")
    A(f"s_cbranch_scc1 {skip}")
    srd(A, 56, 6, WS_FL, 6 * 4096)
    A(f"s_lshl_b32 s3, {s(sg)}, 8")
    A(f"s_add_u32 s3, s3, {ph*4096}")
    if soff is not None: A(f"s_add_u32 s3, s3, {s(soff)}")
    A(f"v_and_b32 v22, {n-1}, v0")
    A("v_lshlrev_b32 v22, 3, v22")
    A("v_lshlrev_b32 v23, 3, v0")
    if also_all is not None: A(f"s_mov_b32 s29, {also_all*4096}")
    A(f"s_mov_b32 s28, {SPIN_MAX}")
    PP = OPT("PPOLL", 0)
    if also_all is not None:
        l2 = A.newlabel("wf_all")
        A.label(l2)
        for j in range(4):
            A(f"buffer_load_dwordx2 {v(24+2*j,2)}, v23, s[56:59], s29 offen offset:{j*512} sc1")
        A("buffer_load_dwordx2 v[252:253], v22, s[56:59], s3 offen sc1")
        A("s_waitcnt vmcnt(1)")
        A(f"v_cmp_ne_u64 vcc, {s(sNON,2)}, v[24:25]")
        for j in range(1, 4):
            A(f"v_cmp_ne_u64 s[60:61], {s(sNON,2)}, {v(24+2*j,2)}")
            A("s_nop 1")
            A("s_or_b64 vcc, vcc, s[60:61]")
        A("s_sub_u32 s28, s28, 1")
        A("s_cmp_eq_u32 s28, 0")
        A(f"s_cbranch_scc1 {skip}")
        A("s_cmp_eq_u64 vcc, 0")
        A(f"s_cbranch_scc0 {l2}")
    else:
        A("buffer_load_dwordx2 v[252:253], v22, s[56:59], s3 offen sc1")
    if PP:
        A(f"s_sleep {PP}")
        A.label(loop)
        for a_, b_ in ((252, 254), (254, 252)):
            A(f"buffer_load_dwordx2 {v(b_,2)}, v22, s[56:59], s3 offen sc1")
            A("s_waitcnt vmcnt(1)")
            A(f"v_cmp_ne_u64 vcc, {s(sNON,2)}, {v(a_,2)}")
            A("s_nop 1")
            A("s_cmp_eq_u64 vcc, 0")
            A(f"s_cbranch_scc1 {done}")
        A("s_sub_u32 s28, s28, 1")
        A("s_cmp_lg_u32 s28, 0")
        A(f"s_cbranch_scc1 {loop}")
        A.label(done)
    else:
        A.label(loop)
        A("s_waitcnt vmcnt(0)")
        A(f"v_cmp_ne_u64 vcc, {s(sNON,2)}, v[252:253]")
        A("s_nop 1")
        A("s_cmp_eq_u64 vcc, 0")
        A(f"s_cbranch_scc1 {skip}")
        A(f"s_sleep {OPT('SLEEP', 1)}")
        A("buffer_load_dwordx2 v[252:253], v22, s[56:59], s3 offen sc1")
        A("s_sub_u32 s28, s28, 1")
        A("s_cmp_lg_u32 s28, 0")
        A(f"s_cbranch_scc1 {loop}")
    A.label(skip)
    A("s_barrier")

sRd, sWr, sGo, sCnt, sM = 23, 24, 25, 27, 30
def ring_advance(slot, R):
    return [f"s_mov_b32 {s(sWr)}, {s(sRd)}",
            f"s_add_u32 {s(sRd)}, {s(sRd)}, {slot}",
            f"s_cmp_eq_u32 {s(sRd)}, {slot*R}",
            f"s_cselect_b32 {s(sRd)}, 0, {s(sRd)}"]

def adv(d, SC=0):
    if not SC: return [f"s_add_u32 {s(sGo)}, {s(sGo)}, {hex(d)}"]
    return ["s_add_u32 s38, s38, 1",
            "s_add_u32 s3, s38, s39",
            f"s_and_b32 s3, s3, {SC-1}",
            f"s_andn2_b32 {s(sGo)}, s38, {SC-1}",
            f"s_or_b32 s3, s3, {s(sGo)}",
            f"s_mul_i32 s3, s3, {hex(d)}",
            f"s_add_u32 {s(sGo)}, s3, s37"]
def rot_init(A, d, SC):
    A(f"s_mov_b32 s37, {s(sGo)}")
    A("s_mov_b32 s38, -1")
    emit(A, adv(d, SC))

def xdma(dX, SC=0, srd_='s[8:11]'):
    g = [[f"s_add_u32 m0, {s(sWr)}, {s(sM)}", "s_nop 0",
          f"buffer_load_dwordx4 v6, {srd_}, {s(sGo)} offen{LDF} lds"]]
    for j in range(1, 4):
        g.append([f"buffer_load_dwordx4 v6, {srd_}, {s(sGo)} offen offset:{j*1024}{LDF} lds"])
    g[-1] += adv(dX, SC)
    return g

def fill_ring(A, R, SLOT, dma, lo=0, hi=None, bar=False):
    for st in range(lo, R if hi is None else hi):
        if dma is not None:
            A(f"s_mov_b32 {s(sWr)}, {st*SLOT}")
            emit(A, dma())
        if bar and st < R - 1: A("s_barrier")

def gemm_loop(A, ph, label, role, R, SLOT, NST, ndma, mfmas, reads, dma_groups, addr_upd, tail_hook=None, cnt_sgpr=None, top_hook=None):
    T = R + (R % 2) if OPT("TAIL", 1) else 0
    A(f"s_mov_b32 {s(sRd)}, 0")
    emit(A, addr_upd())
    A(f"s_waitcnt vmcnt({ndma*(R-1)})")
    A("s_barrier")
    stamp(A, ph, 2); cyc(A, ph, 0)
    emit(A, reads(0))
    emit(A, ring_advance(SLOT, R))
    emit(A, addr_upd())
    A(f"s_mov_b32 {s(sCnt)}, {(NST-T)//2 if cnt_sgpr is None else s(cnt_sgpr)}")
    PRE = OPT("PRE_" + str(ph), OPT("PRE", 0))
    BK = OPT("BK", 1)
    def snake(M):
        return M
    def stage(p, dma, nout, last, hook=None, extra=0, loopend=False, inloop=False):
        M = mfmas(p); Rd = reads(1 - p); D = dma_groups() if dma else []
        if hook: D = D + [hook]
        nm = len(M)
        if last:
            A("s_waitcnt lgkmcnt(0)")
            if (tail_hook or {}).get('endbar'): A("s_barrier")
            if hook:
                h0 = (tail_hook or {}).get('lastpos', 0)
                emit(A, interleave(M, [[x] for x in hook], h0, nm))
            else:
                emit(A, M)
            return
        book = ring_advance(SLOT, R) + addr_upd()
        cnt = [f"s_sub_u32 {s(sCnt)}, {s(sCnt)}, 1", f"s_cmp_lg_u32 {s(sCnt)}, 0"] if loopend else []
        if role == "A":
            pre = min(PRE, nm // 2)
            if pre:
                A("s_waitcnt lgkmcnt(0)")
                emit(A, M[:pre])
                A(f"s_waitcnt vmcnt({ndma*nout+extra})")
            else:
                A(f"s_waitcnt vmcnt({ndma*nout+extra}) lgkmcnt(0)")
            A("s_barrier")
            if inloop and p == 0 and top_hook: emit(A, top_hook)
            Mr = M[pre:]; nr = len(Mr)
            if BK and dma:
                m0set = D[0][0]; D = [D[0][2:]] + D[1:]
                emit(A, interleave(Mr, Rd, 0, max(1, nr - 2)))
                A(m0set)
                emit(A, book)
                emit(A, D)
                emit(A, cnt)
            else:
                emit(A, interleave(Mr, Rd, 0, max(1, nr - 2) if dma else max(1, (2 * nr) // 3)))
                emit(A, D)
                emit(A, book); emit(A, cnt)
        else:
            A(f"s_waitcnt vmcnt({ndma*nout+extra}) lgkmcnt(0)")
            A("s_barrier")
            if inloop and p == 0 and top_hook: emit(A, top_hook)
            emit(A, D)
            if BK:
                h = max(1, (2 * nm) // 3)
                emit(A, interleave(M[:h], Rd))
                emit(A, interleave(M[h:], [[x] for x in book[:2]] + [book[2:4]] + [[x] for x in book[4:]] + ([cnt] if cnt else []), 0, max(1, nm - h - 1)))
            else:
                emit(A, interleave(M, Rd, 0, max(1, (2 * nm) // 3)))
                emit(A, book); emit(A, cnt)
    A.raw(".p2align 6")
    A.label(label)
    for p in range(2): stage(p, True, R - 2, False, loopend=(p == 1), inloop=True)
    A(f"s_cbranch_scc1 {label}")
    for st in range(NST - T, NST):
        stage(st % 2, st + R < NST, min(R - 2, NST - 2 - st), st == NST - 1, (tail_hook or {}).get(NST - st), (tail_hook or {}).get(('x', NST - st), 0))
    if not T: A("s_waitcnt lgkmcnt(0)")
    A("s_nop 7")
    if OPT("ENDBAR", 0) or (ph == 1 and OPT("RAW", 0)): A("s_barrier")
    cyc(A, ph, 1); stamp(A, ph, 3)

def code_touch(A, vd=26):
    if not OPT("CT", 0): return
    l = A.newlabel("ct")
    A("s_getpc_b64 s[56:57]")
    A.label(l)
    A(f"s_sub_u32 s56, s56, {l}-{NAME}")
    A("s_subb_u32 s57, s57, 0")
    A(f"s_mov_b32 s58, code_end-{NAME}")
    A("s_mov_b32 s59, 0x20000")
    A("v_lshlrev_b32 v20, 7, v1")
    A("s_lshl_b32 s28, s31, 13")
    A(f"buffer_load_dword {v(vd)}, v20, s[56:59], s28 offen")

def code_touch_list(A, frm, vd, va):
    l = A.newlabel("ct")
    return ["s_getpc_b64 s[56:57]", f"{l}:",
            f"s_add_u32 s56, s56, {frm}-{l}", "s_addc_u32 s57, s57, 0",
            "s_and_b32 s56, s56, 0xffffff80",
            f"s_mov_b32 s58, code_end-{frm}", "s_mov_b32 s59, 0x20000",
            f"v_lshlrev_b32 {v(va)}, 7, v1", "s_lshl_b32 s28, s31, 13",
            f"buffer_load_dword {v(vd)}, {v(va)}, s[56:59], s28 offen"]

def w_swz_voff(A, dst, rowstride):
    A(f"v_lshrrev_b32 {v(dst)}, 3, v1")
    A(f"v_mul_u32_u24 {v(dst)}, {rowstride}, {v(dst)}")
    A("v_and_b32 v20, 7, v1")
    A("v_lshlrev_b32 v21, 1, v2")
    A("v_xor_b32 v20, v20, v21")
    A(f"v_lshl_add_u32 {v(dst)}, v20, 4, {v(dst)}")

def ph_ln_qkv(A):
    R, SLOT, NST = 4, 40960, 16
    A(f"s_load_dwordx4 s[40:43], s[0:1], {KA_X}")
    A(f"s_load_dwordx4 s[4:7], s[0:1], {KA_DBG}")
    A("s_memrealtime s[62:63]")
    A("v_lshrrev_b32 v1, 6, v0")
    A("s_nop 0")
    A("v_readfirstlane_b32 s20, v1")
    lane_decomp(A)
    A("s_and_b32 s21, s2, 1")
    A("s_lshl_b32 s21, s21, 3")
    A("s_bfe_u32 s28, s2, 0x30003")
    A("s_add_u32 s21, s21, s28")
    A("s_bfe_u32 s22, s2, 0x20001")
    A("s_lshl_b32 s22, s22, 2")
    A("s_lshr_b32 s28, s2, 6")
    A("s_add_u32 s22, s22, s28")
    A("s_and_b32 s31, s20, 3")
    QSC = OPT("QSC", 16)
    A("s_and_b32 s39, s21, 3")
    A(f"s_mul_i32 s39, s39, {QSC//4}")
    A("s_cmp_ge_u32 s20, 4")
    A("s_cbranch_scc1 p0_B")
    A("v_and_b32 v7, 7, v1")
    A("v_bfe_u32 v8, v1, 3, 2")
    A("v_lshrrev_b32 v9, 5, v1")
    A("v_lshlrev_b32 v10, 11, v7")
    A("v_lshl_add_u32 v10, v9, 6, v10")
    A("v_lshl_add_u32 v10, v8, 3, v10")
    A("s_lshl_b32 s3, s2, 14")
    A("s_lshl_b32 s28, s20, 9")
    A("s_add_u32 s3, s3, s28")
    A("s_waitcnt lgkmcnt(0)")
    if PROF: A("s_mov_b32 s66, s62")
    srd(A, 8, 40, 0, 4*MB)
    for i in range(4):
        A(f"buffer_load_dwordx2 {v(32+4*i,2)}, v10, s[8:11], s3 offen offset:{i*128}")
        A(f"buffer_load_dwordx2 {v(34+4*i,2)}, v10, s[8:11], s3 offen offset:{i*128+32}")
    srd(A, 16, 4, 0, 256)
    A("s_or_b32 s28, s2, s20")
    A("s_cmp_lg_u32 s28, 0")
    A("s_cbranch_scc1 p0_nopub")
    A("s_or_b32 s62, s62, 1")
    A("v_mov_b32 v20, s62")
    A("v_mov_b32 v21, s63")
    A("v_mov_b32 v22, 0")
    A("s_mov_b64 exec, 1")
    A("buffer_store_dwordx2 v[20:21], v22, s[16:19], 0 offen sc1")
    A("s_mov_b64 exec, -1")
    A("s_waitcnt vmcnt(0)")
    A.label("p0_nopub")
    srd(A, 12, 6, WS_XN, 4*MB)
    A("v_lshlrev_b32 v11, 17, v9")
    A("v_lshl_add_u32 v11, v7, 4, v11")
    A("v_lshl_add_u32 v11, v8, 8, v11")
    A("s_lshr_b32 s32, s2, 1")
    A("s_lshl_b32 s32, s32, 10")
    A("s_and_b32 s33, s2, 1")
    A("s_lshl_b32 s33, s33, 7")
    A("s_add_u32 s32, s32, s33")
    A("s_lshl_b32 s33, s20, 20")
    A("s_add_u32 s32, s32, s33")
    A("s_add_u32 s33, s32, 0x40000")
    A("s_add_u32 s34, s32, 0x80000")
    A("s_add_u32 s35, s32, 0xc0000")
    A("v_mov_b32 v24, 0")
    A("v_mov_b32 v25, 0")
    U = 64
    for j in range(16):
        if j % 2 == 0: A(f"s_waitcnt vmcnt({7 - j//2})")
        A(f"v_lshlrev_b32 {v(U+2*j)}, 16, {v(32+j)}")
        A(f"v_and_b32 {v(U+1+2*j)}, 0xffff0000, {v(32+j)}")
        A(f"v_add_f32 v24, v24, {v(U+2*j)}")
        A(f"v_fmac_f32 v25, {v(U+2*j)}, {v(U+2*j)}")
        A(f"v_add_f32 v24, v24, {v(U+1+2*j)}")
        A(f"v_fmac_f32 v25, {v(U+1+2*j)}, {v(U+1+2*j)}")
    A("v_mov_b32 v22, 0")
    A("buffer_load_dwordx2 v[28:29], v22, s[16:19], 0 offen sc1")
    A("v_add_f32_dpp v24, v24, v24 row_ror:8 row_mask:0xf bank_mask:0xf")
    A("v_add_f32_dpp v25, v25, v25 row_ror:8 row_mask:0xf bank_mask:0xf")
    reduce_rows16_32(A, [24, 25], [26, 27])
    A("v_lshlrev_b32 v26, 5, v7")
    A("s_lshl_b32 s28, s20, 3")
    A("v_add_u32 v27, s28, v26")
    A("ds_write_b64 v27, v[24:25]")
    A("s_waitcnt lgkmcnt(0)")
    A("s_barrier")
    A("ds_read_b128 v[100:103], v26")
    A("ds_read_b128 v[104:107], v26 offset:16")
    A("s_waitcnt lgkmcnt(0)")
    A("v_pk_add_f32 v[24:25], v[100:101], v[102:103]")
    A("v_pk_add_f32 v[26:27], v[104:105], v[106:107]")
    A("v_pk_add_f32 v[24:25], v[24:25], v[26:27]")
    A(f"v_mul_f32 v24, {f32(1/1024)}, v24")
    A(f"v_mul_f32 v25, {f32(1/1024)}, v25")
    A("v_fma_f32 v25, -v24, v24, v25")
    A("v_max_f32 v25, 0, v25")
    A(f"v_add_f32 v25, {f32(1e-5)}, v25")
    A("v_rsq_f32 v25, v25")
    A("s_nop 0")
    A("v_mul_f32 v24, v24, v25")
    for j in range(16):
        A(f"v_fma_f32 {v(U+2*j)}, {v(U+2*j)}, v25, -v24")
        A(f"v_fma_f32 {v(U+1+2*j)}, {v(U+1+2*j)}, v25, -v24")
        A(f"v_cvt_pk_bf16_f32 {v(32+j)}, {v(U+2*j)}, {v(U+1+2*j)}")
        if j % 4 == 3:
            A(f"buffer_store_dwordx4 {v(32+j-3,4)}, v11, s[12:15], {s(32+j//4)} offen{STF}")
    stamp(A, 0, 3)
    A("s_lshr_b32 s32, s2, 4")
    A("s_and_b32 s33, s2, 15")
    pub_prep(A, 0, 32, 33)
    A(f"s_mov_b32 s28, {SPIN_MAX}")
    A.label("p0_nonce")
    A("s_waitcnt vmcnt(0)")
    A("v_readfirstlane_b32 s62, v28")
    A("v_readfirstlane_b32 s63, v29")
    A("s_nop 1")
    A("s_cmp_lg_u32 s62, 0")
    A("s_cbranch_scc1 p0_gotnonce")
    A("buffer_load_dwordx2 v[28:29], v22, s[16:19], 0 offen sc1")
    A("s_sub_u32 s28, s28, 1")
    A("s_cmp_lg_u32 s28, 0")
    A("s_cbranch_scc1 p0_nonce")
    A.label("p0_gotnonce")
    A("v_mov_b32 v248, s62")
    A("v_mov_b32 v249, s63")
    stamp(A, 0, 4)
    publish(A, force=True)
    A("v_mov_b32 v12, 0")
    A("s_lshr_b32 s28, s31, 1")
    A("s_lshl_b32 s28, s28, 7")
    A("s_lshl_b32 s29, s21, 3")
    A("s_add_u32 s28, s28, s29")
    A("s_and_b32 s29, s31, 1")
    A("s_lshl_b32 s29, s29, 2")
    A("s_add_u32 s28, s28, s29")
    A(f"s_lshl_b32 {s(sGo)}, s28, 10")
    if QSC: rot_init(A, 0x40000, QSC)
    A(f"s_lshl_b32 {s(sM)}, s31, 12")
    A("s_branch p1_common")
    A.label("p0_B")
    code_touch(A)
    w_swz_voff(A, 7, 6144)
    A(f"v_add_u32 v8, {8*6144-1024}, v7")
    A("v_add_u32 v9, 2048, v7")
    A("v_add_u32 v10, 2048, v8")
    A("v_add_u32 v11, 4096, v7")
    A("v_add_u32 v12, 4096, v8")
    A(f"s_mul_i32 s28, s31, {16*6144}")
    A("s_lshl_b32 s29, s22, 7")
    A(f"s_add_u32 {s(sGo)}, s28, s29")
    if QSC: rot_init(A, 64*6144, QSC)
    A(f"s_lshl_b32 {s(sM)}, s31, 11")
    A(f"s_add_u32 {s(sM)}, {s(sM)}, 16384")
    A("v_and_b32 v13, 31, v1")
    A("v_mul_u32_u24 v13, 6144, v13")
    A("v_lshrrev_b32 v14, 5, v1")
    A("v_lshl_add_u32 v15, v14, 11, v13")
    A("v_lshl_add_u32 v13, v14, 30, v13")
    A("v_add_u32 v13, 4096, v13")
    A("s_and_b32 s28, s21, 7")
    A("s_lshl_b32 s28, s28, 2")
    A("s_add_u32 s28, s28, s31")
    A(f"s_mul_i32 s28, s28, {32*6144}")
    A("s_add_u32 s28, s28, s29")
    A("s_waitcnt lgkmcnt(0)")
    if PROF: A("s_mov_b32 s66, s62")
    srd(A, 12, 42, 0, 6*MB)
    def wdma():
        g = []
        for seg in range(3):
            g.append([f"s_add_u32 m0, {s(sWr)}, {s(sM)}" if seg == 0 else "s_add_u32 m0, m0, 8192", "s_nop 0",
                      f"buffer_load_dwordx4 {v(7+2*seg)}, s[12:15], {s(sGo)} offen lds"])
            g.append([f"buffer_load_dwordx4 {v(8+2*seg)}, s[12:15], {s(sGo)} offen offset:1024 lds"])
        g[-1] += adv(64*6144, QSC)
        return g
    P0M = OPT("P0M", 6)
    def touches():
        A("buffer_load_dword v24, v15, s[12:15], s28 offen")
        A("buffer_load_dword v25, v13, s[12:15], s28 offen")
    if P0M == 0:
        touches()
        fill_ring(A, R, SLOT, wdma, 0, 2)
        A("s_barrier")
        fill_ring(A, R, SLOT, wdma, 2, 4)
        A("s_barrier")
    elif P0M == 1:
        A("s_barrier")
        touches()
        fill_ring(A, R, SLOT, wdma, 0, 2)
        A("s_barrier")
        fill_ring(A, R, SLOT, wdma, 2, 4)
    elif P0M == 2:
        fill_ring(A, R, SLOT, wdma, 0, 2)
        A("s_barrier")
        touches()
        fill_ring(A, R, SLOT, wdma, 2, 4)
        A("s_barrier")
        A("s_waitcnt vmcnt(0)")
    elif P0M == 4:
        A("s_barrier")
        fill_ring(A, R, SLOT, wdma, 0, 2)
        A("s_barrier")
        fill_ring(A, R, SLOT, wdma, 2, 4)
    elif P0M == 5:
        fill_ring(A, R, SLOT, wdma, 0, 4)
        A("s_barrier")
        A("s_barrier")
    elif P0M == 6:
        fill_ring(A, R, SLOT, wdma, 0, 2)
        A("s_barrier")
        A("s_barrier")
        fill_ring(A, R, SLOT, wdma, 2, 4)
    elif P0M in (7, 8, 9):
        def ctouch():
            A("v_lshlrev_b32 v15, 7, v1")
            A("v_cmp_gt_u32 vcc, 48, v1")
            A("v_mov_b32 v13, 0x7fffffff")
            A("s_lshl_b32 s28, s2, 2")
            A("s_add_u32 s28, s28, s31")
            A("v_cndmask_b32 v15, v13, v15, vcc")
            A("s_mul_i32 s28, s28, 6144")
            A("buffer_load_dword v24, v15, s[12:15], s28 offen")
        if P0M == 7:
            ctouch()
            fill_ring(A, R, SLOT, wdma, 0, 2)
            A("s_barrier"); A("s_barrier")
            fill_ring(A, R, SLOT, wdma, 2, 4)
        elif P0M == 8:
            ctouch()
            A("s_waitcnt vmcnt(0)")
            A("s_barrier")
            fill_ring(A, R, SLOT, wdma, 0, 2)
            A("s_barrier")
            fill_ring(A, R, SLOT, wdma, 2, 4)
        else:
            ctouch()
            A("s_barrier"); A("s_barrier")
            fill_ring(A, R, SLOT, wdma, 0, 4)
    elif P0M == 3:
        fill_ring(A, R, SLOT, wdma, 0, 2)
        A("s_barrier")
        fill_ring(A, R, SLOT, wdma, 2, 4)
        A("s_barrier")

    A.label("p1_common")
    ACC = 64
    def acc(f, i): return ACC + (f * 4 + i) * 4
    SET = [112, 168]
    def xf(p, kk, i): return SET[p] + (kk * 4 + i) * 4
    def wf(p, kk, f): return SET[p] + 32 + (kk * 3 + f) * 4
    srd(A, 8, 6, WS_XN, 4*MB)
    srd(A, 12, 42, 0, 6*MB)
    srd(A, 16, 6, WS_Q, 12*MB)
    A("s_and_b32 s28, s20, 1")
    A("s_lshl_b32 s28, s28, 12")
    A("v_add_u32 v32, s28, v6")
    A("v_lshl_add_u32 v33, v2, 2, v3")
    A("v_lshlrev_b32 v33, 7, v33")
    A("v_lshl_add_u32 v33, v4, 3, v33")
    A("v_add_u32 v33, 16384, v33")
    A("v_bfe_u32 v34, v1, 3, 2")
    A("s_lshr_b32 s28, s20, 1")
    A("s_and_b32 s29, s28, 1")
    A("s_lshl_b32 s29, s29, 1")
    A("s_lshr_b32 s32, s28, 1")
    A("s_lshl_b32 s32, s32, 13")
    A("v_xor_b32 v35, s29, v34")
    A("v_lshl_add_u32 v35, v35, 5, v33")
    A("v_add_u32 v35, s32, v35")
    A("v_xor_b32 v36, 32, v35")
    A("v_xor_b32 v37, s28, v34")
    A("v_lshl_add_u32 v37, v37, 5, v33")
    A("v_add_u32 v37, 16384, v37")
    for i in range(48): A(f"v_mov_b32 {v(ACC+i)}, 0")
    stamp(A, 1, 0)
    wait_flags(A, 0, 21, 16)
    stamp(A, 1, 1)
    def reads(p):
        out = []
        for kk in range(2):
            for f in range(3):
                for t in range(2):
                    out.append([f"ds_read_b64_tr_b16 {v(wf(p,kk,f)+2*t,2)}, {v(17+f)} offset:{kk*4096+t*2048}"])
            for i in range(4):
                out.append([f"ds_read_b128 {v(xf(p,kk,i),4)}, v16 offset:{kk*8192+i*1024}"])
        return out
    def addr_upd():
        return [f"v_add_u32 v16, {s(sRd)}, v32", f"v_add_u32 v17, {s(sRd)}, v35",
                f"v_add_u32 v18, {s(sRd)}, v36", f"v_add_u32 v19, {s(sRd)}, v37"]
    def mfmas(p):
        M = []
        for kk in range(2):
            for f in range(3):
                for i in (range(4) if (f % 2 == 0 or not OPT("SNAKE", 1)) else range(3, -1, -1)):
                    if f < 2: M.append(mf16(acc(f, i), wf(p, kk, f), xf(p, kk, i)))
                    else:     M.append(mf16(acc(f, i), xf(p, kk, i), wf(p, kk, f)))
        return M
    A("s_cmp_ge_u32 s20, 4")
    A("s_cbranch_scc1 qkv_B")
    fill_ring(A, R, SLOT, lambda: xdma(0x40000, QSC), bar=True)
    gemm_loop(A, 1, "qkv_loopA", "A", R, SLOT, NST, 4, mfmas, reads, lambda: xdma(0x40000, QSC), addr_upd,
              {4: code_touch_list(A, "qkv_epi", 251, 252), ('x', 3): 1, ('x', 2): 1} if OPT("CTQ", 1) else None)
    A("s_branch qkv_epi")
    A.label("qkv_B")
    fill_ring(A, R, SLOT, None, bar=True)
    gemm_loop(A, 1, "qkv_loopB", "B", R, SLOT, NST, 6, mfmas, reads, wdma, addr_upd)
    A.label("qkv_epi")
    A(f"s_load_dwordx2 s[40:41], s[0:1], {KA_WO}")
    A(f"s_load_dwordx4 s[44:47], s[0:1], {KA_WG}")
    A(f"s_load_dwordx2 s[42:43], s[0:1], {KA_WD}")
    A("v_lshlrev_b32 v9, 9, v2")
    A("v_lshrrev_b32 v7, 3, v5")
    A("v_lshl_add_u32 v7, v7, 8, v9")
    A("v_and_b32 v8, 7, v5")
    A("v_lshl_add_u32 v7, v8, 4, v7")
    A("v_lshl_add_u32 v8, v5, 4, v9")
    A("s_lshr_b32 s28, s20, 1")
    A("s_and_b32 s29, s28, 1")
    A("s_lshr_b32 s32, s28, 1")
    A("s_and_b32 s33, s20, 1")
    A("s_lshl_b32 s34, s21, 2")
    A("s_lshl_b32 s33, s33, 1")
    A("s_add_u32 s34, s34, s33")
    A("s_lshl_b32 s34, s34, 11")
    A("s_lshl_b32 s35, s22, 1")
    A("s_add_u32 s36, s35, s29")
    A("s_lshl_b32 s36, s36, 17")
    A("s_add_u32 s36, s36, s34")
    A("s_lshl_b32 s37, s32, 22")
    A("s_add_u32 s36, s36, s37")
    A("s_add_u32 s38, s35, s32")
    A("s_lshl_b32 s38, s38, 17")
    A("s_add_u32 s38, s38, s34")
    A("s_lshl_b32 s37, s29, 8")
    A("s_add_u32 s38, s38, s37")
    A(f"s_add_u32 s38, s38, {8*MB}")
    A("s_cmp_eq_u32 s32, 0")
    A(f"s_cselect_b32 s39, {f32(QSCALE)}, 1.0")
    A("v_mov_b32 v20, s39")
    A("v_mov_b32 v21, s39")
    T = 128
    for pr in range(2):
        for ii in range(2):
            for h in range(2):
                A(f"v_cvt_pk_bf16_f32 {v(T+4*pr+2*ii+h)}, {v(acc(2,2*pr+ii)+2*h)}, {v(acc(2,2*pr+ii)+2*h+1)}")
        A(f"buffer_store_dwordx4 {v(T+4*pr,4)}, v8, s[16:19], s38 offen offset:{pr*2048}{STF}")
    T = 112
    for i in range(4):
        for f in range(2):
            for h in range(2):
                if OPT("NOPK", 0):
                    A(f"v_mul_f32 {v(acc(f,i)+2*h)}, {v(acc(f,i)+2*h)}, v20")
                    A(f"v_mul_f32 {v(acc(f,i)+2*h+1)}, {v(acc(f,i)+2*h+1)}, v20")
                else:
                    A(f"v_pk_mul_f32 {v(acc(f,i)+2*h,2)}, {v(acc(f,i)+2*h,2)}, v[20:21]")
        for f in range(2):
            for h in range(2):
                A(f"v_cvt_pk_bf16_f32 {v(T+4*i+2*f+h)}, {v(acc(f,i)+2*h)}, {v(acc(f,i)+2*h+1)}")
        A(f"buffer_store_dwordx4 {v(T+4*i,4)}, v7, s[16:19], s36 offen offset:{(i>>1)*2048+(i&1)*128}{STF}")
    pub_prep(A, 1, 22, 21)
    A("s_waitcnt lgkmcnt(0)")

def ph_attn(A):
    R, SLOT = 3, 32768
    WL = R * SLOT
    Q, NEGM, S0, S1, P, KF, VF, O, L, ONES = 8, 32, 48, 64, 80, 88, 96, 104, 120, 124
    S_ = [S0, S1]
    A("s_and_b32 s21, s2, 7")
    A("s_lshl_b32 s21, s21, 2")
    A("s_bfe_u32 s28, s2, 0x20003")
    A("s_add_u32 s21, s21, s28")
    A("s_lshr_b32 s22, s2, 5")
    A("s_lshr_b32 s32, s2, 1")
    A("s_and_b32 s33, s2, 1")
    sCo, sCM = 26, 29
    A("s_cmp_ge_u32 s32, 56")
    A("s_cselect_b32 s48, s46, s44")
    A("s_cselect_b32 s49, s47, s45")
    A("s_cselect_b32 s34, 56, 0")
    A("s_sub_u32 s34, s32, s34")
    A("s_mov_b32 s51, 0x20000")
    A("s_lshl_b32 s34, s34, 7")
    A(f"s_mul_i32 s35, s33, {512*7168}")
    A("s_add_u32 s34, s34, s35")
    A(f"s_add_u32 s35, s35, {512*7168}")
    A("s_cmp_lt_u32 s2, 224")
    A("s_cselect_b32 s50, s35, 0")
    A(f"s_mul_i32 s35, s31, {16*7168}")
    A(f"s_add_u32 {s(sCo)}, s34, s35")
    w_swz_voff(A, 7, 7168)
    A(f"v_add_u32 v129, {8*7168-1024}, v7")
    srd(A, 52, 40, 0, 2*MB)
    srd(A, 44, 42, 0, 7*MB)
    A("s_lshl_b32 s35, s2, 2")
    A("s_add_u32 s35, s35, s31")
    A("v_lshlrev_b32 v8, 7, v1")
    A("v_mov_b32 v9, 0x7fffffff")
    A("s_lshl_b32 s34, s35, 11")
    A("v_add_u32 v130, s34, v8")
    A("v_cmp_gt_u32 vcc, 16, v1")
    A("s_lshl_b32 s60, s35, 10")
    A("s_nop 0")
    A("v_cndmask_b32 v130, v9, v130, vcc")
    A("s_and_b32 s34, s35, 1")
    A("s_lshl_b32 s34, s34, 3")
    A("v_lshrrev_b32 v8, 3, v1")
    A("v_add_u32 v8, s34, v8")
    A(f"v_mul_u32_u24 v8, {3584*128}, v8")
    A("s_bfe_u32 s34, s35, 0x20002")
    A("s_lshl_b32 s34, s34, 1")
    A("v_and_b32 v9, 7, v1")
    A("v_xor_b32 v9, s34, v9")
    A("v_lshl_add_u32 v131, v9, 4, v8")
    A("s_lshr_b32 s61, s35, 1")
    A("s_lshl_b32 s61, s61, 7")
    A(f"s_sub_u32 s61, s61, {512*128}")
    CP = 140
    def cp_load():
        return [f"buffer_load_dwordx4 {v(CP,4)}, v6, s[44:47], s60 offen", f"s_add_u32 s60, s60, {MB}"]
    def cp_store():
        return [f"s_cmp_lt_u32 s61, {3584*128}", f"s_cselect_b32 s58, {7*MB}, 0",
                f"buffer_store_dwordx4 {v(CP,4)}, v131, s[56:59], s61 offen{STF}", f"s_add_u32 s61, s61, {512*128}"]
    def cs_dma(j):
        if j == 0:
            return [f"s_mov_b32 m0, {s(sCM)}", f"s_add_u32 {s(sCM)}, {s(sCM)}, 8192",
                    f"buffer_load_dwordx4 v7, s[48:51], {s(sCo)} offen lds"]
        return [f"buffer_load_dwordx4 v129, s[48:51], {s(sCo)} offen offset:1024 lds",
                f"s_add_u32 {s(sCo)}, {s(sCo)}, {64*7168}"]
    A("s_lshl_b32 s28, s21, 17")
    A("s_add_u32 s4, s6, s28")
    A("s_addc_u32 s5, s7, 0")
    srd(A, 8, 4, WS_K, 131072)
    srd(A, 12, 4, WS_VT, 131072)
    srd(A, 16, 4, WS_Q, 131072)
    srd(A, 36, 6, WS_O, 4*MB)
    A(f"s_lshl_b32 {s(sGo)}, s31, 12")
    A(f"s_lshl_b32 {s(sM)}, s31, 12")
    A("v_lshrrev_b32 v16, 2, v1")
    A("v_xor_b32 v16, v16, v2")
    A("v_and_b32 v16, 1, v16")
    A("v_cmp_eq_u32 vcc, 0, v16")
    A("v_mov_b32 v17, 0x3f803f80")
    A("s_nop 1")
    for i in range(4): A(f"v_cndmask_b32 {v(ONES+i)}, 0, v17, vcc")
    for i in range(16): A(f"v_mov_b32 {v(O+i)}, 0")
    for i in range(4): A(f"v_mov_b32 {v(L+i)}, 0")
    for i in range(4): A(f"v_mov_b32 {v(P+4+i)}, 0")
    for i in range(4): A(f"v_mov_b32 {v(VF+4+i)}, 0")
    A("v_mov_b32 v16, v6")
    A(f"v_add_u32 v17, {SLOT}, v6")
    A(f"s_mov_b32 {s(sRd)}, {SLOT}")
    A("s_lshr_b32 s34, s21, 1")
    A("s_lshl_b32 s35, s22, 3")
    A("s_add_u32 s35, s35, s20")
    A("s_lshl_b32 s35, s35, 11")
    if not OPT("PUBFIRST", 1):
        A("s_waitcnt vmcnt(0)")
        stamp(A, 1, 4)
    publish(A)
    stamp(A, 2, 0)
    wait_flags(A, 1, 34, 16)
    stamp(A, 2, 1)
    def kv(j):
        o = []
        if j % 4 == 0: o = [f"s_add_u32 m0, {s(sWr)}, {16384 if j >= 4 else 0}", "s_nop 0"]
        o += [f"buffer_load_dwordx4 v6, {'s[8:11]' if j < 4 else 's[12:15]'}, {s(sGo)} offen offset:{(j&3)*1024}{LDF} lds"]
        if j == 7:
            o += [f"s_add_u32 {s(sGo)}, {s(sGo)}, 16384",
                  f"s_add_u32 {s(sWr)}, {s(sWr)}, {SLOT}",
                  f"s_cmp_ge_u32 {s(sWr)}, {SLOT*R}",
                  f"s_cselect_b32 {s(sWr)}, {s(sM)}, {s(sWr)}"]
        return o
    srd(A, 56, 6, WS_WD, 7*MB)
    if OPT("NOSIDE", 0):
        A("s_mov_b32 s50, 0"); A("s_mov_b32 s46, 0"); A("s_mov_b32 s54, 0"); A("s_mov_b32 s61, 0x10000000")
    A(f"s_mov_b32 {s(sWr)}, {s(sM)}")
    A(f"s_lshl_b32 {s(sCM)}, s31, 11")
    A(f"s_add_u32 {s(sCM)}, {s(sCM)}, {WL}")
    A("s_cmp_ge_u32 s20, 4")
    A("s_cbranch_scc1 at_B0")
    for j in range(4): emit(A, kv(j))
    A("s_branch at_C0")
    A.label("at_B0")
    for j in range(4, 7): emit(A, kv(j))
    emit(A, kv(7)[:1])
    A.label("at_C0")
    A(f"buffer_load_dwordx4 {v(Q,4)}, v6, s[16:19], s35 offen{LDF}")
    A(f"buffer_load_dwordx4 {v(Q+4,4)}, v6, s[16:19], s35 offen offset:1024{LDF}")
    emit(A, kv(7)[1:])
    A("s_waitcnt vmcnt(0)")
    A("s_barrier")
    stamp(A, 2, 2); cyc(A, 2, 0)
    def kread(t, j, dst=None):
        a_ = 16 if t < 8 else 17
        return f"ds_read_b128 {v(KF+4*j if dst is None else dst,4)}, {v(a_)} offset:{(t%8)*2048+j*1024}"
    def vread(t, j):
        a_ = 16 if t < 8 else 17
        return f"ds_read_b128 {v(VF+4*j,4)}, {v(a_)} offset:{16384+(t%8)*2048+j*1024}"
    A(kread(0, 0, S1)); A(kread(0, 1, S1+4))
    A(kread(1, 0)); A(kread(1, 1)); A(vread(0, 0))
    A("s_cmp_ge_u32 s20, 4")
    A("s_cbranch_scc1 at_C1")
    for j in range(4): emit(A, kv(j))
    A("buffer_load_dword v128, v130, s[52:55], 0 offen")
    emit(A, cs_dma(0)); emit(A, cs_dma(1))
    if OPT("CT", 0) >= 2:
        A("s_branch at_C2")
    A.label("at_C1")
    if OPT("CT", 0) >= 2:
        code_touch(A, 128)
        srd(A, 56, 6, WS_WD, 7*MB)
        A.label("at_C2")
    A("s_waitcnt lgkmcnt(3)")
    A(mf32(S0, S1, Q, "0"))
    A(mf32(S0, S1+4, Q+4))
    A("s_nop 15")
    A("s_nop 3")
    A(f"v_max3_f32 v18, {v(S0)}, {v(S0+1)}, {v(S0+2)}")
    for i in range(3, 15, 2): A(f"v_max3_f32 v18, v18, {v(S0+i)}, {v(S0+i+1)}")
    A(f"v_max_f32 v18, v18, {v(S0+15)}")
    A("v_mov_b32 v19, v18")
    A("s_nop 1")
    A("v_permlane32_swap_b32 v19, v18")
    A("s_nop 1")
    A("v_max_f32 v18, v18, v19")
    for i in range(16): A(f"v_sub_f32 {v(NEGM+i)}, 0, v18")
    for i in range(16): A(f"v_sub_f32 {v(S0+i)}, {v(S0+i)}, v18")
    A(f"s_mov_b32 {s(sCnt)}, 8")
    A("s_waitcnt lgkmcnt(0)")
    def loop(role):
        A.raw(".p2align 6")
        A.label(f"attn_loop{role}")
        for t in range(8):
            c, n = S_[t % 2], S_[1 - t % 2]
            E = lambda i: f"v_exp_f32 {v(c+i)}, {v(c+i)}"
            C = lambda i: f"v_cvt_pk_bf16_f32 {v(P+i)}, {v(c+2*i)}, {v(c+2*i+1)}"
            X = {6: (kv(0), kv(1)), 7: (kv(2), kv(3)), 0: (kv(4), kv(5)), 1: (kv(6), kv(7)),
                 2: (["s_waitcnt vmcnt(10)"] + cp_store(), cp_load()), 3: (cs_dma(0), cs_dma(1)), 4: ([], []), 5: ([], [])}[t]
            if role == "B":
                X = ([], [])
                if OPT("CTA", 0) and t == 7: X = (["buffer_load_dword v251, v252, s[56:59], s60 offen"], [])
            FAIR = OPT("FAIR", 0)
            if t == 6:
                if role == "A": A("s_waitcnt vmcnt(4)")
                A("s_barrier")
            elif FAIR == 1 and t == 2:
                A("s_barrier")
            elif FAIR == 2 and t % 2 == 0:
                A("s_barrier")
            if FAIR == 1: A(f"s_setprio {3 - (t + 2) % 4}")
            if FAIR == 3 and t % 2 == 0: A(f"s_setprio {3 - ((t + 2) % 8) // 2}")
            A("s_waitcnt lgkmcnt(2)")
            A(mf32(n, KF, Q, v(NEGM, 16)))
            A(kread(t + 2, 0))
            emit(A, [E(0), E(1), E(2)])
            A(mf32(O, VF+4, P+4))
            A(vread(t, 1))
            emit(A, X[0])
            emit(A, [E(3), E(4), E(5), E(6)])
            A("s_waitcnt lgkmcnt(2)")
            A(mf32(n, KF+4, Q+4))
            A(kread(t + 2, 1))
            emit(A, [E(7), C(0), C(1), C(2), C(3), E(8)])
            A(mf16(L, ONES, P+4))
            emit(A, [E(9), E(10)])
            A(mf32(O, VF, P))
            A(vread(t + 1, 0))
            emit(A, X[1])
            emit(A, [E(11), E(12), E(13), E(14)])
            A(mf16(L, ONES, P))
            if t == 7:
                A(f"s_add_u32 {s(sRd)}, {s(sRd)}, {SLOT}")
                A(f"s_cmp_eq_u32 {s(sRd)}, {SLOT*R}")
                A(f"s_cselect_b32 {s(sRd)}, 0, {s(sRd)}")
                A("v_mov_b32 v16, v17")
                A(f"v_add_u32 v17, {s(sRd)}, v6")
                A(f"s_sub_u32 {s(sCnt)}, {s(sCnt)}, 1")
                A(f"s_cmp_lg_u32 {s(sCnt)}, 0")
            emit(A, [E(15), C(4), C(5), C(6), C(7)])
        A(f"s_cbranch_scc1 attn_loop{role}")
    A("s_cmp_ge_u32 s20, 4")
    A("s_cbranch_scc1 attn_preB")
    loop("A")
    A("s_branch attn_post")
    A.label("attn_preB")
    if OPT("CTA", 0):
        emit(A, code_touch_list(A, "attn_post", 251, 252)[:-1])
        A("s_mov_b32 s60, s28")
    loop("B")
    A.label("attn_post")
    if OPT("FAIR", 0): A("s_setprio 0")
    A("s_waitcnt lgkmcnt(0)")
    A("s_nop 0")
    A(mf32(O, VF+4, P+4))
    A(mf16(L, ONES, P+4))
    cyc(A, 2, 1); stamp(A, 2, 3)
    A("s_waitcnt vmcnt(0)")
    A("s_barrier")
    A("v_lshrrev_b32 v18, 2, v1")
    A("v_lshlrev_b32 v18, 7, v18")
    A("v_lshl_add_u32 v18, v4, 3, v18")
    A("v_bfe_u32 v19, v1, 3, 2")
    A("v_xor_b32 v19, s31, v19")
    A("v_lshl_add_u32 v18, v19, 5, v18")
    A("s_lshr_b32 s29, s20, 2")
    A("s_lshl_b32 s34, s29, 15")
    A(f"s_add_u32 s34, s34, {WL}")
    A("v_add_u32 v18, s34, v18")
    CSW = S0
    for ks in range(8):
        for t in range(2):
            A(f"ds_read_b64_tr_b16 {v(CSW+4*ks+2*t,2)}, v18 offset:{ks*4096+t*2048}")
    for i in range(4): A(f"v_mov_b32 {v(132+i)}, 0x3f803f80")
    A(f"v_add_f32 v18, |{v(O)}|, {v(L)}")
    for i in range(1, 16): A(f"v_add_f32 v18, |{v(O+i)}|, v18")
    A(f"v_mov_b32 v19, {f32(2.0**120)}")
    A("v_cmp_nlt_f32 vcc, v18, v19")
    A("s_waitcnt lgkmcnt(0)")
    for ks in range(8):
        A(mf16(136, CSW+4*ks, 132, "0" if ks == 0 else None))
    A("s_cmp_eq_u64 vcc, 0")
    A("s_cbranch_scc0 attn_slow")
    A.label("attn_fin")
    A(f"s_load_dwordx2 s[44:45], s[0:1], {KA_X}")
    A(f"v_rcp_f32 v18, {v(L)}")
    A("s_nop 0")
    for i in range(16): A(f"v_mul_f32 {v(O+i)}, {v(O+i)}, v18")
    for pc in range(2):
        for hh in range(2):
            run = pc + 2 * hh
            for j in range(2):
                A(f"v_cvt_pk_bf16_f32 {v(P+4*pc+2*hh+j)}, {v(O+4*run+2*j)}, {v(O+4*run+2*j+1)}")
    A("v_bfe_u32 v18, v1, 3, 1")
    A("v_lshlrev_b32 v18, 10, v18")
    A("v_bfe_u32 v19, v1, 4, 1")
    A("v_lshl_add_u32 v18, v19, 7, v18")
    A("v_and_b32 v19, 7, v1")
    A("v_lshl_add_u32 v18, v19, 4, v18")
    A("v_lshrrev_b32 v19, 5, v1")
    A("v_lshl_add_u32 v18, v19, 8, v18")
    A("s_lshl_b32 s28, s21, 17")
    A("s_add_u32 s28, s28, s35")
    A(f"buffer_store_dwordx4 {v(P,4)}, v18, s[36:39], s28 offen{STF}")
    A(f"buffer_store_dwordx4 {v(P+4,4)}, v18, s[36:39], s28 offen offset:512{STF}")
    srd(A, 48, 6, WS_CS, 4*7168*4)
    A("s_lshl_b32 s33, s33, 1")
    A("s_add_u32 s33, s33, s29")
    A(f"s_mul_i32 s33, s33, {7168*4}")
    A("s_lshl_b32 s34, s32, 8")
    A("s_add_u32 s33, s33, s34")
    A("s_lshl_b32 s34, s31, 6")
    A("s_add_u32 s33, s33, s34")
    A("v_cmp_ne_u32 vcc, 0, v5")
    A("v_mov_b32 v19, 0x7fffffff")
    A("s_cmp_lt_u32 s2, 224")
    A(f"s_cselect_b32 s50, {4*7168*4}, 0")
    A("v_cndmask_b32 v19, v1, v19, vcc")
    A(f"buffer_store_dwordx4 v[136:139], v19, s[48:51], s33 offen{STF}")
    pub_prep(A, 2, 22, 21)
    A("s_waitcnt lgkmcnt(0)")
    def slow():
        A.label("attn_slow")
        A("v_mov_b32 v18, 0xff800000")
        A("s_mov_b32 s28, 0")
        A.label("attn_slow1")
        A(f"buffer_load_dwordx4 {v(KF,4)}, v6, s[8:11], s28 offen{LDF}")
        A(f"buffer_load_dwordx4 {v(KF+4,4)}, v6, s[8:11], s28 offen offset:1024{LDF}")
        A("s_waitcnt vmcnt(0)")
        A("s_nop 15")
        A(mf32(S0, KF, Q, "0"))
        A(mf32(S0, KF+4, Q+4))
        A("s_nop 15")
        A("s_nop 3")
        for i in range(0, 16, 2): A(f"v_max3_f32 v18, v18, {v(S0+i)}, {v(S0+i+1)}")
        A("s_add_u32 s28, s28, 2048")
        A("s_cmp_lt_u32 s28, 131072")
        A("s_cbranch_scc1 attn_slow1")
        A("v_mov_b32 v19, v18")
        A("s_nop 1")
        A("v_permlane32_swap_b32 v19, v18")
        A("s_nop 1")
        A("v_max_f32 v18, v18, v19")
        for i in range(16): A(f"v_sub_f32 {v(NEGM+i)}, 0, v18")
        for i in range(16): A(f"v_mov_b32 {v(O+i)}, 0")
        for i in range(4): A(f"v_mov_b32 {v(L+i)}, 0")
        A("s_mov_b32 s28, 0")
        A.label("attn_slow2")
        A(f"buffer_load_dwordx4 {v(KF,4)}, v6, s[8:11], s28 offen{LDF}")
        A(f"buffer_load_dwordx4 {v(KF+4,4)}, v6, s[8:11], s28 offen offset:1024{LDF}")
        A(f"buffer_load_dwordx4 {v(VF,4)}, v6, s[12:15], s28 offen{LDF}")
        A(f"buffer_load_dwordx4 {v(VF+4,4)}, v6, s[12:15], s28 offen offset:1024{LDF}")
        A("s_waitcnt vmcnt(0)")
        A(mf32(S0, KF, Q, v(NEGM, 16)))
        A(mf32(S0, KF+4, Q+4))
        A("s_nop 15")
        A("s_nop 3")
        for i in range(16): A(f"v_exp_f32 {v(S0+i)}, {v(S0+i)}")
        A("s_nop 0")
        for i in range(8): A(f"v_cvt_pk_bf16_f32 {v(P+i)}, {v(S0+2*i)}, {v(S0+2*i+1)}")
        A("s_nop 1")
        A(mf32(O, VF, P))
        A(mf32(O, VF+4, P+4))
        A(mf16(L, ONES, P))
        A(mf16(L, ONES, P+4))
        A("s_nop 15")
        A("s_add_u32 s28, s28, 2048")
        A("s_cmp_lt_u32 s28, 131072")
        A("s_cbranch_scc1 attn_slow2")
        A("s_nop 15")
        A("s_branch attn_fin")
    return slow

HEADER = open("sequential_preLN__mha_block__glu_gated_glu__prompt.s.ref").read().split("; Override launch")[0]

def build(path):
    from mk2 import ph_proj, ph_gu, ph_down2, ph_down3
    A = Asm()
    A.raw(f".globl {NAME}"); A.raw(".p2align 8"); A.raw(f".type {NAME},@function"); A.label(NAME)
    A("s_cmp_ge_u32 s2, 256")
    A("s_cbranch_scc1 the_end")
    if OPT("RAW", 0):
        from mk3 import ph_qkv_raw
        hooks = ph_qkv_raw(A)
    else:
        ph_ln_qkv(A); hooks = None
    slow = ph_attn(A)
    ph_proj(A, 3, True)
    ph_gu(A)
    if OPT("SPLITK", 1) == 2: ph_down3(A)
    elif OPT("SPLITK", 1) == 1: ph_down2(A)
    else: ph_proj(A, 5, False)
    stamp_flush(A)
    A.label("the_end")
    A("s_endpgm")
    slow()
    A.label("code_end")
    out = HEADER
    out += "; @launch grid=(256,1,1) block=(512,1,1) lds=163840\n"
    out += '.amdgcn_target "amdgcn-amd-amdhsa--gfx950"\n.text\n'
    out += A.text()
    out += '.section .rodata,"a"\n'
    out += kernel_desc(NAME, 256, 102 if PROF else 64)
    open(path, "w").write(out)

if __name__ == "__main__":
    build(sys.argv[1] if len(sys.argv) > 1 else "sequential_preLN__mha_block__glu_gated_glu__prompt.s")
```

```python
from mk import *

def ph_proj(A, ph, is_wo):
    name = "wo" if is_wo else "dn"
    K = 1024 if is_wo else 3584
    ws_x = WS_O if is_wo else WS_HACT
    wp = 40 if is_wo else 42
    R, SLOT, NST = 6, 24576, K // 64
    STATS_LDS = R * SLOT
    A("s_and_b32 s21, s2, 3")
    A("s_lshl_b32 s21, s21, 2")
    A("s_bfe_u32 s28, s2, 0x20003")
    A("s_add_u32 s21, s21, s28")
    A("s_bfe_u32 s22, s2, 0x10002")
    A("s_lshl_b32 s22, s22, 3")
    A("s_lshr_b32 s28, s2, 5")
    A("s_add_u32 s22, s22, s28")
    PSC = OPT("WSC", 0) if is_wo else OPT("DSC", 4)
    PG = min(4, OPT("PG", 4))
    if PSC:
        A("s_add_u32 s39, s21, s22")
        A(f"s_and_b32 s39, s39, {PG-1}")
        A(f"s_mul_i32 s39, s39, {PSC//PG}")
    def wdma():
        if not is_wo:
            return [[f"s_add_u32 m0, {s(sWr)}, {s(sM)}", "s_nop 0",
                     f"buffer_load_dwordx4 v6, s[12:15], {s(sGo)} offen{LDF} lds"],
                    [f"buffer_load_dwordx4 v6, s[12:15], {s(sGo)} offen offset:1024{LDF} lds",
                     ] + adv(8192, PSC)]
        return [[f"s_add_u32 m0, {s(sWr)}, {s(sM)}", "s_nop 0",
                 f"buffer_load_dwordx4 v7, s[12:15], {s(sGo)} offen lds"],
                [f"buffer_load_dwordx4 v8, s[12:15], {s(sGo)} offen offset:1024 lds",
                 ] + adv(64*2048, PSC)]
    DX = 0x40000
    ACC = 32
    def acc(f, i): return ACC + (i * 2 + f) * 4
    SET = [48, 80]
    def xf(p, kk, i): return SET[p] + (kk * 2 + i) * 4
    def wf(p, kk, f): return SET[p] + 16 + (kk * 2 + f) * 4
    RES = 240
    NRES = 4 if is_wo else 2
    A("s_lshr_b32 s33, s20, 2")
    A("s_lshl_b32 s34, s22, 1")
    A("s_add_u32 s34, s34, s33")
    A("s_lshl_b32 s34, s34, 7")
    A("s_lshl_b32 s35, s21, 3")
    A("s_add_u32 s34, s34, s35")
    A("s_lshl_b32 s35, s31, 1")
    A("s_add_u32 s34, s34, s35")
    A("s_lshl_b32 s34, s34, 10")
    A("s_lshl_b32 s35, s21, 18")
    A("s_lshl_b32 s36, s31, 16")
    A("s_add_u32 s35, s35, s36")
    A("s_lshl_b32 s36, s22, 7")
    A("s_add_u32 s35, s35, s36")
    A("s_lshl_b32 s36, s33, 6")
    A("s_add_u32 s35, s35, s36")
    A("s_add_u32 s36, s35, 32768")
    srd(A, 16, 6, WS_H, 4*MB)
    srd(A, 48, 44, 0, 4*MB)
    if is_wo:
        srd(A, 12, wp, 0, K*2048)
    else:
        A(f"s_mul_i32 s28, s22, {3584*128}")
        A("s_add_u32 s4, s6, s28")
        A("s_addc_u32 s5, s7, 0")
        srd(A, 12, 4, WS_WD, 3584*128)
    srd(A, 8, 6, ws_x, 2048*K*2)
    def resload():
        if is_wo:
            for i in range(2):
                A(f"buffer_load_dwordx4 {v(RES+4*i,4)}, v9, s[48:51], {s(35+i)} offen")
        else:
            for i in range(2):
                A(f"buffer_load_dwordx4 {v(RES+4*i,4)}, v6, s[16:19], s34 offen offset:{i*1024}{LDF}")
    A("v_lshlrev_b32 v9, 11, v5")
    A("v_and_b32 v15, 1, v2")
    A("v_lshl_add_u32 v9, v15, 5, v9")
    A("v_lshrrev_b32 v15, 1, v2")
    A("v_lshl_add_u32 v9, v15, 4, v9")
    A("s_lshl_b32 s28, s31, 11")
    A("v_add_u32 v10, s28, v6")
    A("v_lshl_add_u32 v11, v2, 2, v3")
    A("v_lshlrev_b32 v11, 7, v11")
    A("v_lshl_add_u32 v11, v4, 3, v11")
    A("v_add_u32 v11, 16384, v11")
    A("v_bfe_u32 v12, v1, 3, 2")
    A("s_lshl_b32 s29, s33, 1")
    A("v_xor_b32 v13, s29, v12")
    A("v_lshl_add_u32 v13, v13, 5, v11")
    A("v_xor_b32 v14, 32, v13")
    A("s_lshr_b32 s32, s21, 1")
    A("s_cmp_lt_u32 s20, 4")
    A(f"s_cbranch_scc1 {name}_A0")
    if is_wo:
        w_swz_voff(A, 7, 2048)
        A(f"v_add_u32 v8, {8*2048-1024}, v7")
        A("s_lshl_b32 s28, s31, 15")
        A("s_lshl_b32 s29, s22, 7")
        A(f"s_add_u32 {s(sGo)}, s28, s29")
    else:
        A(f"s_lshl_b32 {s(sGo)}, s31, 11")
    if PSC: rot_init(A, 64*2048 if is_wo else 8192, PSC)
    A(f"s_lshl_b32 {s(sM)}, s31, 11")
    A(f"s_add_u32 {s(sM)}, {s(sM)}, 16384")
    if not OPT("PUBFIRST", 1):
        A("s_waitcnt vmcnt(0)")
        stamp(A, ph - 1, 4)
    publish(A)
    WE = OPT("WE_W", 6)
    resload()
    fill_ring(A, R, SLOT, wdma, 0, WE)
    A(f"s_branch {name}_C0")
    A.label(f"{name}_A0")
    A("s_lshr_b32 s28, s31, 1")
    A("s_lshl_b32 s28, s28, 7")
    A("s_lshl_b32 s29, s21, 3")
    A("s_add_u32 s28, s28, s29")
    A("s_and_b32 s29, s31, 1")
    A("s_lshl_b32 s29, s29, 2")
    A("s_add_u32 s28, s28, s29")
    A(f"s_lshl_b32 {s(sGo)}, s28, 10")
    if PSC: rot_init(A, DX, PSC)
    A(f"s_lshl_b32 {s(sM)}, s31, 12")
    if not OPT("PUBFIRST", 1):
        A("s_waitcnt vmcnt(0)")
        stamp(A, ph - 1, 4)
    publish(A)
    resload()
    A.label(f"{name}_C0")
    stamp(A, ph, 0)
    wait_flags(A, ph - 1, 32, 32)
    stamp(A, ph, 1)
    def accinit():
        if is_wo:
            for i in range(2):
                A(f"v_permlane16_swap_b32 {v(RES+4*i)}, {v(RES+4*i+2)}")
                A(f"v_permlane16_swap_b32 {v(RES+4*i+1)}, {v(RES+4*i+3)}")
            A("s_nop 1")
        for i in range(2):
            for f in range(2):
                for h in range(2):
                    src = RES + 4*i + 2*f + h
                    A(f"v_lshlrev_b32 {v(acc(f,i)+2*h)}, 16, {v(src)}")
                    A(f"v_and_b32 {v(acc(f,i)+2*h+1)}, 0xffff0000, {v(src)}")
    def reads(p):
        out = []
        for kk in range(2):
            for f in range(2):
                for t in range(2):
                    out.append([f"ds_read_b64_tr_b16 {v(wf(p,kk,f)+2*t,2)}, {v(17+f)} offset:{kk*4096+t*2048}"])
            for i in range(2):
                out.append([f"ds_read_b128 {v(xf(p,kk,i),4)}, v16 offset:{kk*8192+i*1024}"])
        return out
    def addr_upd():
        return [f"v_add_u32 v16, {s(sRd)}, v10", f"v_add_u32 v17, {s(sRd)}, v13", f"v_add_u32 v18, {s(sRd)}, v14"]
    def mfmas(p):
        return [mf16(acc(f, i), wf(p, kk, f), xf(p, kk, i)) for kk in range(2) for f in range(2) for i in ((0, 1) if (f == 0 or not OPT("SNAKE", 1)) else (1, 0))]
    A("s_cmp_ge_u32 s20, 4")
    A(f"s_cbranch_scc1 {name}_B")
    fill_ring(A, R, SLOT, lambda: xdma(DX, PSC), bar=True)
    A(f"s_waitcnt vmcnt({4*R})")
    accinit()
    gemm_loop(A, ph, f"{name}_loopA", "A", R, SLOT, NST, 4, mfmas, reads, lambda: xdma(DX, PSC), addr_upd,
              {6: code_touch_list(A, f"{name}_epi", 251, 252), ('x', 5): 1, ('x', 4): 1, ('x', 3): 1, ('x', 2): 1} if OPT("CTW", 1) else None)
    A(f"s_branch {name}_epi")
    A.label(f"{name}_B")
    fill_rest(A, R, SLOT, wdma, WE)
    A(f"s_waitcnt vmcnt({2*R})")
    accinit()
    gemm_loop(A, ph, f"{name}_loopB", "B", R, SLOT, NST, 2, mfmas, reads, wdma, addr_upd)
    A.label(f"{name}_epi")
    T = 112
    for i in range(2):
        for f in range(2):
            for h in range(2):
                A(f"v_cvt_pk_bf16_f32 {v(T+4*i+2*f+h)}, {v(acc(f,i)+2*h)}, {v(acc(f,i)+2*h+1)}")
    if is_wo:
        for i in range(2):
            A(f"buffer_store_dwordx4 {v(T+4*i,4)}, v6, s[16:19], s34 offen offset:{i*1024}{STF}")
        for i in range(2):
            sm, sq = 20 + 2*i, 21 + 2*i
            b = acc(0, i)
            A(f"v_add_f32 {v(sm)}, {v(b)}, {v(b+1)}")
            A(f"v_mul_f32 {v(sq)}, {v(b)}, {v(b)}")
            A(f"v_fmac_f32 {v(sq)}, {v(b+1)}, {v(b+1)}")
            for j in range(2, 8):
                A(f"v_add_f32 {v(sm)}, {v(sm)}, {v(b+j)}")
                A(f"v_fmac_f32 {v(sq)}, {v(b+j)}, {v(b+j)}")
        reduce_rows16_32(A, [20, 21, 22, 23], [24, 25, 26, 27])
        A("s_lshl_b32 s28, s31, 9")
        A("s_lshl_b32 s29, s33, 3")
        A("s_add_u32 s28, s28, s29")
        A(f"s_add_u32 s28, s28, {STATS_LDS}")
        A("v_lshlrev_b32 v24, 4, v5")
        A("v_add_u32 v24, s28, v24")
        A("ds_write_b64 v24, v[20:21]")
        A("ds_write_b64 v24, v[22:23] offset:256")
        A(f"s_load_dwordx4 s[44:47], s[0:1], {KA_WG}")
        A("s_waitcnt lgkmcnt(0)")
        A("s_barrier")
        A("s_cmp_ge_u32 s20, 2")
        A(f"s_cbranch_scc1 {name}_end2")
        A("v_lshlrev_b32 v24, 4, v0")
        A(f"v_add_u32 v24, {STATS_LDS}, v24")
        A("ds_read_b128 v[20:23], v24")
        srd(A, 8, 6, WS_ST, 2048*128)
        A("v_lshlrev_b32 v24, 3, v0")
        A("s_lshl_b32 s28, s21, 10")
        A("s_lshl_b32 s29, s22, 14")
        A("s_add_u32 s28, s28, s29")
        A("s_waitcnt lgkmcnt(0)")
        A("v_add_f32 v20, v20, v22")
        A("v_add_f32 v21, v21, v23")
        A(f"buffer_store_dwordx2 v[20:21], v24, s[8:11], s28 offen{STF}")
        A.label(f"{name}_end2")
        A("s_and_b32 s38, s21, 1")
        A("s_lshl_b32 s38, s38, 4")
        A("s_add_u32 s38, s38, s22")
        pub_prep(A, ph, 32, 38)
    else:
        A("s_nop 1")
        for i in range(2):
            A(f"v_permlane16_swap_b32 {v(T+4*i)}, {v(T+4*i+2)}")
            A(f"v_permlane16_swap_b32 {v(T+4*i+1)}, {v(T+4*i+3)}")
        A("s_nop 1")
        for i in range(2):
            A(f"buffer_store_dwordx4 {v(T+4*i,4)}, v9, s[48:51], {s(35+i)} offen{OUTF}")
        if PROF:
            A("s_waitcnt vmcnt(0)")
            stamp(A, ph, 4)

def ph_gu(A):
    ph = 4
    R, SLOT, NST = 5, 30720, 32
    SL = R * SLOT
    A("s_and_b32 s21, s2, 1")
    A("s_lshl_b32 s21, s21, 2")
    A("s_bfe_u32 s28, s2, 0x20003")
    A("s_add_u32 s21, s21, s28")
    A("s_bfe_u32 s22, s2, 0x20001")
    A("s_lshl_b32 s22, s22, 3")
    A("s_lshr_b32 s28, s2, 5")
    A("s_add_u32 s22, s22, s28")
    def wdma():
        return [[f"s_add_u32 m0, {s(sWr)}, {s(sM)}", "s_mov_b64 exec, s[34:35]",
                 f"buffer_load_dwordx4 v7, s[12:15], {s(sGo)} offen lds",
                 f"buffer_load_dwordx4 v8, s[12:15], {s(sGo)} offen offset:896 lds",
                 f"s_add_u32 m0, m0, 7168", "s_nop 0",
                 f"buffer_load_dwordx4 v7, s[16:19], {s(sGo)} offen lds",
                 f"buffer_load_dwordx4 v8, s[16:19], {s(sGo)} offen offset:896 lds",
                 "s_mov_b64 exec, -1",
                 f"s_add_u32 {s(sGo)}, {s(sGo)}, {32*7168}"]]
    srd(A, 12, 44, 0, 7*MB)
    srd(A, 16, 46, 0, 7*MB)
    srd(A, 8, 6, WS_H, 4*MB)
    A("s_cmp_lt_u32 s20, 4")
    A("s_cbranch_scc1 gu_A0")
    if OPT("CT", 1) >= 2: code_touch(A, 255)
    A("v_mul_u32_u24 v7, 4682, v1")
    A("v_lshrrev_b32 v7, 16, v7")
    A("v_mul_u32_u24 v8, 14, v7")
    A("v_sub_u32 v8, v1, v8")
    A("v_mul_u32_u24 v7, 7168, v7")
    A("v_lshl_add_u32 v7, v8, 4, v7")
    A(f"v_add_u32 v8, {4*7168-896}, v7")
    A("s_mov_b32 s34, -1")
    A("s_mov_b32 s35, 0x00ffffff")
    A(f"s_mul_i32 s28, s31, {8*7168}")
    A("s_mul_i32 s29, s22, 224")
    A(f"s_add_u32 {s(sGo)}, s28, s29")
    A(f"s_mul_i32 {s(sM)}, s31, 1792")
    A(f"s_add_u32 {s(sM)}, {s(sM)}, 16384")
    GE = OPT("GE", 0)
    fill_ring(A, R, SLOT, wdma, 0, GE)
    if not OPT("PUBFIRST", 1):
        A(f"s_waitcnt vmcnt({4*GE})")
        stamp(A, 3, 4)
    publish(A)
    WE = OPT("WE_G", 5)
    fill_ring(A, R, SLOT, wdma, GE, WE)
    A("s_branch gu_C0")
    A.label("gu_A0")
    A("s_lshl_b32 s28, s21, 4")
    A("s_lshl_b32 s29, s31, 2")
    A("s_add_u32 s28, s28, s29")
    A(f"s_lshl_b32 {s(sGo)}, s28, 10")
    A(f"s_lshl_b32 {s(sM)}, s31, 12")
    for i in range(32, 152): A(f"v_mov_b32 {v(i)}, 0")
    if not OPT("PUBFIRST", 1):
        A("s_waitcnt vmcnt(0)")
        stamp(A, 3, 4)
    publish(A)
    A.label("gu_C0")
    srd(A, 44, 6, WS_ST, 2048*128)
    srd(A, 48, 6, WS_CS, 4*7168*4)
    srd(A, 52, 6, WS_HACT, 2048*3584*2)
    A("s_and_b32 s36, s22, 1")
    A("s_cmp_eq_u32 s36, 1")
    A("s_cselect_b32 s37, 3, 0")
    A("s_cselect_b32 s38, 1, 4")
    A("s_cselect_b32 s39, 0, 6")
    A("s_cmp_ge_u32 s20, 4")
    A("s_cselect_b32 s37, s38, s37")
    A("s_lshl_b32 s28, s31, 12")
    A("v_add_u32 v10, s28, v6")
    A("v_lshl_add_u32 v11, v2, 2, v3")
    A("v_mul_u32_u24 v11, 224, v11")
    A("v_lshl_add_u32 v11, v4, 3, v11")
    A("v_add_u32 v11, 16384, v11")
    A("s_lshl_b32 s28, s39, 5")
    A("v_add_u32 v12, s28, v11")
    A("s_lshl_b32 s28, s37, 5")
    A("v_add_u32 v11, s28, v11")
    A("v_and_b32 v13, 255, v0")
    A("v_lshlrev_b32 v14, 3, v13")
    A("s_lshl_b32 s32, s21, 11")
    A("v_lshlrev_b32 v15, 2, v13")
    A(f"v_add_u32 v9, {(3584-112)*4}, v15")
    A("v_cmp_gt_u32 vcc, 112, v13")
    A("v_mov_b32 v19, 0x7fffffff")
    A("s_mul_i32 s33, s22, 448")
    A("v_cndmask_b32 v15, v9, v15, vcc")
    A("v_cmp_gt_u32 vcc, 224, v13")
    A("s_nop 1")
    A("v_cndmask_b32 v15, v19, v15, vcc")
    A("s_cmp_lt_u32 s20, 4")
    A("s_cbranch_scc1 gu_Z")
    for i in range(32, 120): A(f"v_mov_b32 {v(i)}, 0")
    A.label("gu_Z")
    stamp(A, ph, 0)
    wait_flags(A, 3, 21, 32, also_all=2)
    for i in range(24, 32): A(f"v_mov_b32 {v(i)}, 0")
    stamp(A, ph, 1)
    def body(nf, tag):
        def wsrc(j):
            if nf == 3 and j == 2: return 18, 0
            return 17, j * 32
        ACC = 24
        def acc(j, gu, i): return ACC + ((j * 2 + gu) * 4 + i) * 4
        NS = 16 + nf * 8
        SET = [ACC + nf * 32, ACC + nf * 32 + NS]
        def xf(p, i): return SET[p] + i * 4
        def wf(p, j, gu): return SET[p] + 16 + (j * 2 + gu) * 4
        if tag == "A":
            fill_ring(A, R, SLOT, lambda: xdma(0x20000), bar=True)
        else:
            fill_rest(A, R, SLOT, wdma, WE)
        hook = None
        if tag == "A" and OPT("CTG", 1):
            hook = {5: code_touch_list(A, "gu_epiA", 251, 252), ('x', 4): 1, ('x', 3): 1, ('x', 2): 1}
        if tag == "B":
            def ld16():
                o = []
                for j in range(16):
                    o += [f"buffer_load_dwordx2 {v(200+2*j,2)}, v14, s[44:47], s32 offen{LDF}", "s_add_u32 s32, s32, 16384"]
                return o
            def red16():
                o = []
                for j in range(1, 8):
                    for q in (200, 201, 216, 217):
                        o.append(f"v_add_f32 {v(q)}, {v(q)}, {v(q+2*j)}")
                return o
            h1 = ld16()
            for j in range(4):
                h1 += [f"buffer_load_dword {v(232+j)}, v15, s[48:51], s33 offen{LDF}", f"s_add_u32 s33, s33, {7168*4}"]
            hook = ["s_waitcnt vmcnt(0)"] + red16()
            hook += ["v_add_f32 v200, v200, v216", "v_add_f32 v201, v201, v217",
                "v_add_f32 v232, v232, v233", "v_add_f32 v234, v234, v235", "v_add_f32 v232, v232, v234",
                f"v_mul_f32 v200, {f32(-1/1024)}, v200", f"v_mul_f32 v201, {f32(1/1024)}, v201",
                "v_fma_f32 v201, -v200, v200, v201", "v_max_f32 v201, 0, v201", f"v_add_f32 v201, {f32(1e-5)}, v201",
                "v_rsq_f32 v202, v201", "v_sqrt_f32 v204, v201", "v_mov_b32 v201, v200",
                f"v_mul_f32 v202, {f32(-LOG2E)}, v202", "v_mov_b32 v205, v204", "v_mov_b32 v203, v202",
                "v_lshlrev_b32 v14, 4, v13", f"v_add_u32 v14, {SL}, v14", "ds_write_b128 v14, v[200:203]",
                "v_lshlrev_b32 v14, 3, v13", f"v_add_u32 v14, {SL+5120}, v14", "ds_write_b64 v14, v[204:205]",
                "v_lshlrev_b32 v15, 2, v13", f"v_add_u32 v15, {SL+4096}, v15", "ds_write_b32 v15, v232"]
            hook = {5: h1, 3: hook, ('x', 4): 20, ('x', 3): 20}
        def reads(p):
            out = []
            for i in range(4):
                out.append([f"ds_read_b128 {v(xf(p,i),4)}, v16 offset:{i*1024}"])
            for j in range(nf):
                ar, imm = wsrc(j)
                for gu in range(2):
                    for t in range(2):
                        out.append([f"ds_read_b64_tr_b16 {v(wf(p,j,gu)+2*t,2)}, {v(ar)} offset:{imm+gu*7168+t*3584}"])
            return out
        def addr_upd():
            o = [f"v_add_u32 v16, {s(sRd)}, v10", f"v_add_u32 v17, {s(sRd)}, v11"]
            if nf == 3: o.append(f"v_add_u32 v18, {s(sRd)}, v12")
            return o
        def mfmas(p):
            return [mf16(acc(j, gu, i), wf(p, j, gu), xf(p, i)) for j in range(nf) for gu in range(2) for i in (range(4) if (gu == 0 or not OPT("SNAKE", 1)) else range(3, -1, -1))]
        gemm_loop(A, ph, f"gu_loop{tag}", tag, R, SLOT, NST, 4, mfmas, reads, (lambda: xdma(0x20000)) if tag == "A" else wdma, addr_upd, hook)
        A.label(f"gu_epi{tag}")
        if tag == "B": A("s_barrier")
        A(f"s_load_dwordx2 s[44:45], s[0:1], {KA_OUT}")
        A(f"s_load_dwordx2 s[46:47], s[0:1], {KA_DBG}")
        STR = 232
        CSR = 200
        A("s_lshl_b32 s28, s31, 10")
        A(f"s_add_u32 s28, s28, {SL}")
        A("v_lshlrev_b32 v14, 4, v5")
        A("v_add_u32 v14, s28, v14")
        for i in range(4):
            A(f"ds_read_b128 {v(STR+4*i,4)}, v14 offset:{i*256}")
        SGR = 184
        A("s_lshl_b32 s28, s31, 9")
        A(f"s_add_u32 s28, s28, {SL+5120}")
        A("v_lshlrev_b32 v14, 3, v5")
        A("v_add_u32 v14, s28, v14")
        for i in range(4):
            A(f"ds_read_b64 {v(SGR+2*i,2)}, v14 offset:{i*128}")
        A("v_lshlrev_b32 v9, 4, v2")
        A("s_lshl_b32 s28, s37, 6")
        A(f"s_add_u32 s28, s28, {SL+4096}")
        A("v_add_u32 v14, s28, v9")
        A("s_lshl_b32 s28, s39, 6")
        A(f"s_add_u32 s28, s28, {SL+4096}")
        A("v_add_u32 v15, s28, v9")
        for j in range(nf):
            for gu in range(2):
                ar, imm = (15, 0) if (nf == 3 and j == 2) else (14, j * 64)
                A(f"ds_read_b128 {v(CSR+(j*2+gu)*4,4)}, {v(ar)} offset:{imm+gu*448}")
        A("s_mul_i32 s28, s22, 7")
        A("s_add_u32 s29, s28, s37")
        A("s_lshr_b32 s29, s29, 1")
        A("s_lshl_b32 s29, s29, 17")
        A("s_lshl_b32 s33, s21, 4")
        A("s_lshl_b32 s36, s31, 2")
        A("s_add_u32 s33, s33, s36")
        A("s_lshl_b32 s33, s33, 10")
        A("s_add_u32 s56, s29, s33")
        A("s_add_u32 s57, s56, 0x20000")
        A("s_add_u32 s29, s28, s39")
        A("s_and_b32 s36, s29, 1")
        A("s_lshl_b32 s36, s36, 3")
        A("s_lshr_b32 s29, s29, 1")
        A("s_lshl_b32 s29, s29, 17")
        A("s_add_u32 s58, s29, s33")
        A("s_add_u32 s58, s58, s36")
        T = SET[0]
        tix = 0
        A("s_waitcnt lgkmcnt(0)")
        if tag == "A": A("s_barrier")
        for jp in range(2):
            js = [2*jp, 2*jp+1] if 2*jp+1 < nf else [2*jp]
            for i in range(4):
                dst = T + 4 * (tix % 8); tix += 1
                c1 = v(STR+4*i+2, 2)
                nm_ = v(STR+4*i, 2)
                for j in js:
                    for gu in range(2):
                        a_ = acc(j, gu, i)
                        for h in range(2): A(f"v_pk_fma_f32 {v(a_+2*h,2)}, {v(CSR+(j*2+gu)*4+2*h,2)}, {nm_}, {v(a_+2*h,2)}")
                for j in js:
                    g_ = acc(j, 0, i)
                    for h in range(2): A(f"v_pk_mul_f32 {v(g_+2*h,2)}, {v(g_+2*h,2)}, {c1}")
                for j in js:
                    g_ = acc(j, 0, i)
                    for r in range(4): A(f"v_exp_f32 {v(g_+r)}, {v(g_+r)}")
                if len(js) == 1: A("s_nop 0")
                for j in js:
                    g_ = acc(j, 0, i)
                    for h in range(2): A(f"v_pk_fma_f32 {v(g_+2*h,2)}, {v(g_+2*h,2)}, {v(SGR+2*i,2)}, {v(SGR+2*i,2)}")
                for j in js:
                    g_ = acc(j, 0, i)
                    for r in range(4): A(f"v_rcp_f32 {v(g_+r)}, {v(g_+r)}")
                if len(js) == 1: A("s_nop 0")
                for j in js:
                    g_, u_ = acc(j, 0, i), acc(j, 1, i)
                    for h in range(2): A(f"v_pk_mul_f32 {v(u_+2*h,2)}, {v(u_+2*h,2)}, {v(g_+2*h,2)}")
                for jj, j in enumerate(js):
                    u_ = acc(j, 1, i)
                    for h in range(2):
                        A(f"v_cvt_pk_bf16_f32 {v(dst+2*jj+h)}, {v(u_+2*h)}, {v(u_+2*h+1)}")
                if len(js) == 2:
                    A(f"buffer_store_dwordx4 {v(dst,4)}, v6, s[52:55], {s(56+jp)} offen offset:{i*1024}{STF}")
                else:
                    A(f"buffer_store_dwordx2 {v(dst,2)}, v6, s[52:55], s58 offen offset:{i*1024}{STF}")
    A("s_cmp_ge_u32 s20, 4")
    A("s_cbranch_scc1 gu_B")
    body(4, "A")
    A("s_branch gu_end")
    A.label("gu_B")
    body(3, "B")
    A.label("gu_end")
    pub_prep(A, ph, 21, 22)


def ph_down2(A):
    ph = 5
    R, SLOT, NST = OPT("DR", 5), 32768, 28
    PSC = OPT("D2SC", 0)
    A("s_and_b32 s21, s2, 3")
    A("s_lshl_b32 s21, s21, 2")
    A("s_bfe_u32 s28, s2, 0x20003")
    A("s_add_u32 s21, s21, s28")
    A("s_lshr_b32 s22, s2, 5")
    A("s_bfe_u32 s26, s2, 0x10002")
    A("s_and_b32 s32, s20, 1")
    A("s_lshr_b32 s33, s20, 1")
    if PSC:
        A("s_add_u32 s39, s21, s22")
        A("s_and_b32 s39, s39, 3")
        A(f"s_mul_i32 s39, s39, {PSC//4}")
    srd(A, 12, 6, WS_WD, 7*MB)
    srd(A, 8, 6, WS_HACT, 2048*3584*2)
    wd = lambda: xdma(8192, PSC, 's[12:15]')
    xd = lambda: xdma(0x40000, PSC)
    srd(A, 52, 46, 0, 256)
    A("v_mov_b32 v20, 0")
    A("buffer_load_dwordx2 v[248:249], v20, s[52:55], 0 offen sc1")
    A("s_cmp_lt_u32 s20, 4")
    A("s_cbranch_scc1 d2_A0")
    A("s_lshl_b32 s28, s22, 1")
    A("s_lshr_b32 s29, s31, 1")
    A("s_add_u32 s28, s28, s29")
    A(f"s_mul_i32 s28, s28, {3584*128}")
    A(f"s_mul_i32 s29, s26, {1792*128}")
    A("s_add_u32 s28, s28, s29")
    A("s_and_b32 s29, s31, 1")
    A("s_lshl_b32 s29, s29, 12")
    A(f"s_add_u32 {s(sGo)}, s28, s29")
    if PSC: rot_init(A, 8192, PSC)
    A(f"s_lshl_b32 {s(sM)}, s31, 12")
    A(f"s_add_u32 {s(sM)}, {s(sM)}, 16384")
    WE = OPT("WE_D", 5)
    fill_ring(A, R, SLOT, wd, 0, WE)
    A("s_branch d2_C0")
    A.label("d2_A0")
    A("s_mul_i32 s28, s26, 56")
    A("s_lshr_b32 s29, s31, 1")
    A("s_add_u32 s28, s28, s29")
    A("s_lshl_b32 s28, s28, 7")
    A("s_lshl_b32 s29, s21, 3")
    A("s_add_u32 s28, s28, s29")
    A("s_and_b32 s29, s31, 1")
    A("s_lshl_b32 s29, s29, 2")
    A("s_add_u32 s28, s28, s29")
    A(f"s_lshl_b32 {s(sGo)}, s28, 10")
    if PSC: rot_init(A, 0x40000, PSC)
    A(f"s_lshl_b32 {s(sM)}, s31, 12")
    A.label("d2_C0")
    ACC = 32
    def acc(f, i): return ACC + (i * 2 + f) * 4
    SET = [64, 112]
    def xf(p, kk, i): return SET[p] + (kk * 4 + i) * 4
    def wf(p, kk, f): return SET[p] + 32 + (kk * 2 + f) * 4
    RES = 240
    A("s_lshl_b32 s34, s22, 2")
    A("s_add_u32 s34, s34, s33")
    A("s_lshl_b32 s34, s34, 7")
    A("s_lshl_b32 s35, s21, 3")
    A("s_lshl_b32 s36, s32, 2")
    A("s_add_u32 s35, s35, s36")
    A("s_lshl_b32 s36, s26, 1")
    A("s_add_u32 s35, s35, s36")
    A("s_add_u32 s34, s34, s35")
    A("s_lshl_b32 s34, s34, 10")
    A("s_lshl_b32 s35, s35, 15")
    A("s_lshl_b32 s36, s22, 8")
    A("s_add_u32 s35, s35, s36")
    A("s_lshl_b32 s36, s33, 6")
    A("s_add_u32 s35, s35, s36")
    A("s_add_u32 s36, s35, 32768")
    srd(A, 16, 6, WS_H, 4*MB)
    srd(A, 48, 44, 0, 4*MB)
    A("v_lshlrev_b32 v9, 11, v5")
    A("v_and_b32 v15, 1, v2")
    A("v_lshl_add_u32 v9, v15, 5, v9")
    A("v_lshrrev_b32 v15, 1, v2")
    A("v_lshl_add_u32 v9, v15, 4, v9")
    A("s_lshl_b32 s28, s32, 12")
    A("s_lshl_b32 s29, s26, 11")
    A("s_add_u32 s3, s28, s29")
    A("v_add_u32 v10, s3, v6")
    A("s_xor_b32 s3, s3, 2048")
    A("v_add_u32 v15, s3, v6")
    A("v_lshl_add_u32 v11, v2, 2, v3")
    A("v_lshlrev_b32 v11, 7, v11")
    A("v_lshl_add_u32 v11, v4, 3, v11")
    A("s_lshr_b32 s28, s33, 1")
    A("s_lshl_b32 s28, s28, 13")
    A("s_add_u32 s28, s28, 16384")
    A("v_add_u32 v11, s28, v11")
    A("v_bfe_u32 v12, v1, 3, 2")
    A("s_and_b32 s29, s33, 1")
    A("s_lshl_b32 s29, s29, 1")
    A("v_xor_b32 v13, s29, v12")
    A("v_lshl_add_u32 v13, v13, 5, v11")
    A("v_xor_b32 v14, 32, v13")
    for i in range(16): A(f"v_mov_b32 {v(acc(0,2)+i)}, 0")
    A("s_lshr_b32 s40, s21, 1")
    A("s_lshl_b32 s41, s26, 7")
    stamp(A, ph, 0)
    if OPT("XTAG", 0) == 3: wait_flags(A, 4, 40, 32)
    else: wait_flags(A, 4, 40, 16, soff=41)
    stamp(A, ph, 1)
    for i in range(2):
        A(f"buffer_load_dwordx4 {v(RES+4*i,4)}, v6, s[16:19], s34 offen offset:{i*1024}{LDF}")
    def accinit():
        for i in range(2):
            for f in range(2):
                for h in range(2):
                    src = RES + 4*i + 2*f + h
                    A(f"v_lshlrev_b32 {v(acc(f,i)+2*h)}, 16, {v(src)}")
                    A(f"v_and_b32 {v(acc(f,i)+2*h+1)}, 0xffff0000, {v(src)}")
        if OPT("XTAG", 0) == 2:
            for q in (163, 167, 170, 171): A(f"v_mov_b32 {v(q)}, v248")
            srd(A, 52, 6, WS_XB, 9*MB)
            A("s_lshl_b32 s28, s2, 3")
            A("s_add_u32 s28, s28, s20")
            A("s_xor_b32 s29, s28, 32")
            A("s_lshl_b32 s40, s28, 12")
            A("s_lshl_b32 s41, s29, 12")
        if OPT("XTAG", 0) == 3:
            srd(A, 52, 6, WS_O, 9*MB)
            A("s_and_b32 s28, s21, 1")
            A("s_lshl_b32 s28, s28, 4")
            A("s_lshl_b32 s29, s26, 3")
            A("s_add_u32 s28, s28, s29")
            A("s_add_u32 s28, s28, s22")
            A("s_lshr_b32 s29, s21, 1")
            A("s_lshl_b32 s40, s28, 17")
            A("s_lshl_b32 s3, s29, 14")
            A("s_add_u32 s40, s40, s3")
            A("s_lshl_b32 s3, s20, 11")
            A("s_add_u32 s40, s40, s3")
            A("s_xor_b32 s41, s40, 0x100000")
            A("s_lshr_b32 s42, s28, 1")
            A("s_lshl_b32 s42, s42, 14")
            A("s_lshl_b32 s3, s29, 11")
            A("s_add_u32 s42, s42, s3")
            A("s_and_b32 s3, s28, 1")
            A("s_lshl_b32 s3, s3, 10")
            A("s_add_u32 s42, s42, s3")
            A("s_lshl_b32 s3, s20, 7")
            A("s_add_u32 s42, s42, s3")
            A("s_xor_b32 s43, s42, 0x10000")
            A(f"s_add_u32 s42, s42, {WS_ST - WS_O}")
            A(f"s_add_u32 s43, s43, {WS_ST - WS_O}")
            A("v_mov_b32 v20, 0")
            return
        A("s_movk_i32 s42, 0xfff")
        A("v_mov_b32 v244, v248")
        A("v_lshrrev_b32 v245, 12, v248")
        A("v_alignbit_b32 v246, v249, v248, 24")
        A("v_lshrrev_b32 v247, 4, v249")
    def reads(p):
        out = []
        for kk in range(2):
            for f in range(2):
                for t in range(2):
                    out.append([f"ds_read_b64_tr_b16 {v(wf(p,kk,f)+2*t,2)}, {v(17+f)} offset:{kk*4096+t*2048}"])
            for i in range(4):
                out.append([f"ds_read_b128 {v(xf(p,kk,i),4)}, {v(16 if i < 2 else 19)} offset:{kk*8192+(i&1)*1024}"])
        return out
    def addr_upd():
        return [f"v_add_u32 v16, {s(sRd)}, v10", f"v_add_u32 v17, {s(sRd)}, v13", f"v_add_u32 v18, {s(sRd)}, v14", f"v_add_u32 v19, {s(sRd)}, v15"]
    def mfmas(p):
        return [mf16(acc(f, i), wf(p, kk, f), xf(p, kk, i)) for ii in (2, 0) for kk in range(2) for f in range(2) for i in (ii, ii + 1)]
    DST = [160, 161, 162, 164, 165, 166, 168, 169]
    send = []
    if OPT("XTAG", 0) == 2:
        send = ["s_nop 4"]
        for q in range(8):
            send.append(f"v_cvt_pk_bf16_f32 {v(DST[q])}, {v(acc(0,2)+2*q)}, {v(acc(0,2)+2*q+1)}")
            if q in (2, 5, 7): send.append(f"buffer_store_dwordx4 {v(160+4*(q//3),4)}, v6, s[52:55], s40 offen offset:{(q//3)*1024} sc1")
    if OPT("XTAG", 0) == 3:
        send = ["s_nop 4"]
        for q in range(8):
            send.append(f"v_cvt_pk_bf16_f32 {v(160+q)}, {v(acc(0,2)+2*q)}, {v(acc(0,2)+2*q+1)}")
            if q in (3, 7): send.append(f"buffer_store_dwordx4 {v(160+q-3,4)}, v6, s[52:55], s40 offen offset:{(q//4)*1024} sc1")
    hookS = {1: send, 'lastpos': 11} if send else {}
    A("s_cmp_ge_u32 s20, 4")
    A("s_cbranch_scc1 d2_B")
    fill_ring(A, R, SLOT, xd, bar=True)
    A(f"s_waitcnt vmcnt({4*R})")
    accinit()
    gemm_loop(A, ph, "d2_loopA", "A", R, SLOT, NST, 4, mfmas, reads, xd, addr_upd,
              {5: code_touch_list(A, "d2_epi", 251, 252), ('x', 4): 1, ('x', 3): 1, ('x', 2): 1, **hookS})
    A("s_branch d2_epi")
    A.label("d2_B")
    fill_rest(A, R, SLOT, wd, WE)
    A(f"s_waitcnt vmcnt({4*(R-WE)})")
    accinit()
    gemm_loop(A, ph, "d2_loopB", "B", R, SLOT, NST, 4, mfmas, reads, wd, addr_upd, hookS)
    A.label("d2_epi")
    if OPT("XTAG", 0) == 3:
        A(f"s_mov_b32 s28, {SPIN_MAX}")
        A("s_waitcnt vmcnt(0)")
        if OPT("XDBG", 0): stamp(A, ph, 0)
        A("s_mov_b64 exec, 1")
        A("buffer_store_dwordx2 v[248:249], v20, s[52:55], s42 offen sc1")
        A.label("d2_poll")
        A("buffer_load_dwordx2 v[22:23], v20, s[52:55], s43 offen sc1")
        A("s_waitcnt vmcnt(0)")
        A("v_cmp_ne_u64 vcc, v[248:249], v[22:23]")
        A("s_nop 1")
        A("s_cmp_eq_u64 vcc, 0")
        A("s_cbranch_scc1 d2_got")
        A("s_sleep 1")
        A("s_sub_u32 s28, s28, 1")
        A("s_cmp_lg_u32 s28, 0")
        A("s_cbranch_scc1 d2_poll")
        A.label("d2_got")
        A("s_mov_b64 exec, -1")
        if OPT("XDBG", 0): stamp(A, ph, 1)
        for j in range(2):
            A(f"buffer_load_dwordx4 {v(64+4*j,4)}, v6, s[52:55], s41 offen offset:{j*1024} sc1")
        T = 112
        for i in range(2):
            A("s_waitcnt vmcnt(1)")
            for q in range(4):
                A(f"v_lshlrev_b32 {v(84+2*q)}, 16, {v(64+4*i+q)}")
                A(f"v_and_b32 {v(85+2*q)}, 0xffff0000, {v(64+4*i+q)}")
            for q in range(4):
                A(f"v_pk_add_f32 {v(ACC+8*i+2*q,2)}, {v(ACC+8*i+2*q,2)}, {v(84+2*q,2)}")
            for q in range(4):
                A(f"v_cvt_pk_bf16_f32 {v(T+4*i+q)}, {v(ACC+8*i+2*q)}, {v(ACC+8*i+2*q+1)}")
            A("s_nop 1")
            A(f"v_permlane16_swap_b32 {v(T+4*i)}, {v(T+4*i+2)}")
            A(f"v_permlane16_swap_b32 {v(T+4*i+1)}, {v(T+4*i+3)}")
            A("s_nop 1")
            A(f"buffer_store_dwordx4 {v(T+4*i,4)}, v9, s[48:51], {s(35+i)} offen{OUTF}")
        if PROF:
            A("s_waitcnt vmcnt(0)")
            stamp(A, ph, 4)
        return
    if OPT("XTAG", 0) == 2:
        A(f"s_mov_b32 s28, {SPIN_MAX}")
        if OPT("XW", 1): A("s_waitcnt vmcnt(0)")
        if OPT("XDBG", 0): stamp(A, ph, 0)
        A.label("d2_poll")
        for j in range(3):
            A(f"buffer_load_dwordx4 {v(64+4*j,4)}, v6, s[52:55], s41 offen offset:{j*1024} sc1")
        A("s_waitcnt vmcnt(0)")
        A("v_xor_b32 v80, v248, v67")
        A("v_xor_b32 v81, v248, v71")
        A("v_xor_b32 v82, v248, v75")
        A("v_or3_b32 v80, v80, v81, v82")
        A("v_cmp_ne_u32 vcc, 0, v80")
        A("s_nop 1")
        A("s_cmp_eq_u64 vcc, 0")
        A("s_cbranch_scc1 d2_got")
        A(f"s_sleep {OPT('XSLEEP', 1)}")
        A("s_sub_u32 s28, s28, 1")
        A("s_cmp_lg_u32 s28, 0")
        A("s_cbranch_scc1 d2_poll")
        A.label("d2_got")
        if OPT("XDBG", 0): stamp(A, ph, 1)
        T = 112
        for i in range(2):
            for q in range(4):
                src = DST[4*i+q] - 96
                A(f"v_lshlrev_b32 {v(84+2*q)}, 16, {v(src)}")
                A(f"v_and_b32 {v(85+2*q)}, 0xffff0000, {v(src)}")
            for q in range(4):
                A(f"v_pk_add_f32 {v(ACC+8*i+2*q,2)}, {v(ACC+8*i+2*q,2)}, {v(84+2*q,2)}")
            for q in range(4):
                A(f"v_cvt_pk_bf16_f32 {v(T+4*i+q)}, {v(ACC+8*i+2*q)}, {v(ACC+8*i+2*q+1)}")
            A("s_nop 1")
            A(f"v_permlane16_swap_b32 {v(T+4*i)}, {v(T+4*i+2)}")
            A(f"v_permlane16_swap_b32 {v(T+4*i+1)}, {v(T+4*i+3)}")
            A("s_nop 1")
            A(f"buffer_store_dwordx4 {v(T+4*i,4)}, v9, s[48:51], {s(35+i)} offen{OUTF}")
        if PROF:
            A("s_waitcnt vmcnt(0)")
            stamp(A, ph, 4)
        return
    srd(A, 8, 6, WS_Q if OPT('XBQ', 0) else WS_XB, 9*MB)
    A("s_lshl_b32 s28, s2, 3")
    A("s_add_u32 s28, s28, s20")
    A("s_xor_b32 s29, s28, 32")
    A("s_lshl_b32 s40, s28, 12")
    A("s_lshl_b32 s41, s29, 12")
    XTAG = OPT("XTAG", 0)
    if XTAG:
        for j in range(4):
            for r in range(4):
                A(f"v_bfi_b32 {v(acc(0,2)+4*j+r)}, s42, {v(244+r)}, {v(acc(0,2)+4*j+r)}")
            A(f"buffer_store_dwordx4 {v(acc(0,2)+4*j,4)}, v6, s[8:11], s40 offen offset:{j*1024} sc1")
        A(f"s_mov_b32 s28, {SPIN_MAX}")
        if OPT("XW", 1): A("s_waitcnt vmcnt(0)")
        if OPT("XDBG", 0): stamp(A, ph, 0)
        A.label("d2_poll")
        for j in range(4):
            A(f"buffer_load_dwordx4 {v(64+4*j,4)}, v6, s[8:11], s41 offen offset:{j*1024} sc1")
        for j in range(4):
            A(f"s_waitcnt vmcnt({3-j})")
            for r in range(4):
                A(f"v_xor_b32 {v(80+4*j+r)}, {v(244+r)}, {v(64+4*j+r)}")
            A(f"v_or3_b32 {v(80+4*j)}, {v(80+4*j)}, {v(81+4*j)}, {v(82+4*j)}")
            if j: A(f"v_or3_b32 {v(80+4*j)}, {v(80+4*j)}, {v(83+4*j)}, {v(76+4*j)}")
            else: A(f"v_or_b32 {v(80)}, {v(80)}, {v(83)}")
        A("v_and_b32 v92, s42, v92")
        A("v_cmp_ne_u32 vcc, 0, v92")
        A("s_nop 1")
        A("s_cmp_eq_u64 vcc, 0")
        A("s_cbranch_scc1 d2_got")
        A("s_sleep 1")
        A("s_sub_u32 s28, s28, 1")
        A("s_cmp_lg_u32 s28, 0")
        A("s_cbranch_scc1 d2_poll")
        A.label("d2_got")
        if OPT("XDBG", 0): stamp(A, ph, 1)
    else:
        for j in range(4):
            A(f"buffer_store_dwordx4 {v(acc(0,2)+4*j,4)}, v6, s[8:11], s40 offen offset:{j*1024} sc1")
        A(f"s_lshl_b32 s42, s28, {OPT('XFS', 7)}")
        A(f"s_add_u32 s42, s42, {8*MB}")
        A(f"s_lshl_b32 s43, s29, {OPT('XFS', 7)}")
        A(f"s_add_u32 s43, s43, {8*MB}")
        A("v_mov_b32 v20, 0")
        A(f"s_mov_b32 s28, {SPIN_MAX}")
        A("s_waitcnt vmcnt(0)")
        if OPT("XDBG", 0): stamp(A, ph, 0)
        A("s_mov_b64 exec, 1")
        A("buffer_store_dwordx2 v[248:249], v20, s[8:11], s42 offen sc1")
        A.label("d2_poll")
        A("buffer_load_dwordx2 v[22:23], v20, s[8:11], s43 offen sc1")
        A("s_waitcnt vmcnt(0)")
        A("v_cmp_ne_u64 vcc, v[248:249], v[22:23]")
        A("s_nop 1")
        A("s_cmp_eq_u64 vcc, 0")
        A("s_cbranch_scc1 d2_got")
        if OPT("XSLEEP", 1): A(f"s_sleep {OPT('XSLEEP', 1)}")
        A("s_sub_u32 s28, s28, 1")
        A("s_cmp_lg_u32 s28, 0")
        A("s_cbranch_scc1 d2_poll")
        A.label("d2_got")
        A("s_mov_b64 exec, -1")
        if OPT("XDBG", 0): stamp(A, ph, 1)
        for j in range(4):
            A(f"buffer_load_dwordx4 {v(64+4*j,4)}, v6, s[8:11], s41 offen offset:{j*1024} sc1")
    T = 112
    for i in range(2):
        if not XTAG: A(f"s_waitcnt vmcnt({2 - 2*i + i})")
        for q in range(4):
            A(f"v_pk_add_f32 {v(ACC+8*i+2*q,2)}, {v(ACC+8*i+2*q,2)}, {v(64+8*i+2*q,2)}")
        for f in range(2):
            for h in range(2):
                A(f"v_cvt_pk_bf16_f32 {v(T+4*i+2*f+h)}, {v(acc(f,i)+2*h)}, {v(acc(f,i)+2*h+1)}")
        A("s_nop 1")
        A(f"v_permlane16_swap_b32 {v(T+4*i)}, {v(T+4*i+2)}")
        A(f"v_permlane16_swap_b32 {v(T+4*i+1)}, {v(T+4*i+3)}")
        A("s_nop 1")
        A(f"buffer_store_dwordx4 {v(T+4*i,4)}, v9, s[48:51], {s(35+i)} offen{OUTF}")
    if PROF:
        A("s_waitcnt vmcnt(0)")
        stamp(A, ph, 4)


def ph_down3(A):
    ph = 5
    R, SLOT = OPT("DR", 5), 32768
    N0 = OPT("N0", 26)
    T = R + (R % 2)
    A("s_and_b32 s21, s2, 3")
    A("s_lshl_b32 s21, s21, 2")
    A("s_bfe_u32 s28, s2, 0x20003")
    A("s_add_u32 s21, s21, s28")
    A("s_lshr_b32 s22, s2, 5")
    A("s_bfe_u32 s26, s2, 0x10002")
    A("s_and_b32 s32, s20, 1")
    A("s_lshr_b32 s33, s20, 1")
    srd(A, 12, 6, WS_WD, 7*MB)
    srd(A, 8, 6, WS_HACT, 2048*3584*2)
    wd = lambda: xdma(8192, 0, 's[12:15]')
    xd = lambda: xdma(0x40000, 0)
    A("s_cmp_lt_u32 s20, 4")
    A("s_cbranch_scc1 d3_A0")
    A("s_lshl_b32 s28, s22, 1")
    A("s_lshr_b32 s29, s31, 1")
    A("s_add_u32 s28, s28, s29")
    A(f"s_mul_i32 s28, s28, {3584*128}")
    A(f"s_mul_i32 s29, s26, {N0*64*128}")
    A("s_add_u32 s28, s28, s29")
    A("s_and_b32 s29, s31, 1")
    A("s_lshl_b32 s29, s29, 12")
    A(f"s_add_u32 {s(sGo)}, s28, s29")
    A(f"s_lshl_b32 {s(sM)}, s31, 12")
    A(f"s_add_u32 {s(sM)}, {s(sM)}, 16384")
    srd(A, 52, 46, 0, 256)
    A("v_mov_b32 v20, 0")
    A("buffer_load_dwordx2 v[248:249], v20, s[52:55], 0 offen sc1")
    fill_ring(A, R, SLOT, wd)
    A("s_branch d3_C0")
    A.label("d3_A0")
    A(f"s_mul_i32 s28, s26, {2*N0}")
    A("s_lshr_b32 s29, s31, 1")
    A("s_add_u32 s28, s28, s29")
    A("s_lshl_b32 s28, s28, 7")
    A("s_lshl_b32 s29, s21, 3")
    A("s_add_u32 s28, s28, s29")
    A("s_and_b32 s29, s31, 1")
    A("s_lshl_b32 s29, s29, 2")
    A("s_add_u32 s28, s28, s29")
    A(f"s_lshl_b32 {s(sGo)}, s28, 10")
    A(f"s_lshl_b32 {s(sM)}, s31, 12")
    A.label("d3_C0")
    ACC = 32
    def acc(f, i): return ACC + (i * 2 + f) * 4
    SET = [64, 112]
    def xf(p, kk, i): return SET[p] + (kk * 4 + i) * 4
    def wf(p, kk, f): return SET[p] + 32 + (kk * 2 + f) * 4
    RES = 224
    A("s_lshl_b32 s34, s22, 2")
    A("s_add_u32 s34, s34, s33")
    A("s_lshl_b32 s34, s34, 7")
    A("s_lshl_b32 s35, s21, 3")
    A("s_lshl_b32 s36, s32, 2")
    A("s_add_u32 s35, s35, s36")
    A("s_add_u32 s34, s34, s35")
    A("s_lshl_b32 s34, s34, 10")
    A("s_lshl_b32 s35, s35, 15")
    A("s_lshl_b32 s36, s22, 8")
    A("s_add_u32 s35, s35, s36")
    A("s_lshl_b32 s36, s33, 6")
    A("s_add_u32 s35, s35, s36")
    A("s_add_u32 s36, s35, 32768")
    A("s_add_u32 s37, s36, 32768")
    A("s_add_u32 s38, s37, 32768")
    srd(A, 16, 6, WS_H, 4*MB)
    A("s_cmp_eq_u32 s26, 0")
    A(f"s_cselect_b32 s18, 0, {4*MB}")
    A(f"s_cselect_b32 s39, {(N0-T)//2}, {(56-N0-T)//2}")
    srd(A, 48, 44, 0, 4*MB)
    A("v_lshlrev_b32 v9, 11, v5")
    A("v_and_b32 v15, 1, v2")
    A("v_lshl_add_u32 v9, v15, 5, v9")
    A("v_lshrrev_b32 v15, 1, v2")
    A("v_lshl_add_u32 v9, v15, 4, v9")
    A("s_lshl_b32 s28, s32, 12")
    A("v_add_u32 v10, s28, v6")
    A("v_lshl_add_u32 v11, v2, 2, v3")
    A("v_lshlrev_b32 v11, 7, v11")
    A("v_lshl_add_u32 v11, v4, 3, v11")
    A("s_lshr_b32 s28, s33, 1")
    A("s_lshl_b32 s28, s28, 13")
    A("s_add_u32 s28, s28, 16384")
    A("v_add_u32 v11, s28, v11")
    A("v_bfe_u32 v12, v1, 3, 2")
    A("s_and_b32 s29, s33, 1")
    A("s_lshl_b32 s29, s29, 1")
    A("v_xor_b32 v13, s29, v12")
    A("v_lshl_add_u32 v13, v13, 5, v11")
    A("v_xor_b32 v14, 32, v13")
    A("s_lshr_b32 s28, s2, 3")
    A("s_lshl_b32 s28, s28, 2")
    A("s_and_b32 s29, s2, 3")
    A("s_add_u32 s28, s28, s29")
    A("s_lshl_b32 s28, s28, 3")
    A("s_add_u32 s28, s28, s20")
    A("s_lshl_b32 s41, s28, 13")
    A("s_add_u32 s42, s41, 4096")
    A("s_lshl_b32 s43, s28, 7")
    A(f"s_add_u32 s43, s43, {8*MB}")
    A("s_lshr_b32 s40, s21, 1")
    stamp(A, ph, 0)
    wait_flags(A, 4, 40, 32)
    stamp(A, ph, 1)
    for i in range(4):
        A(f"buffer_load_dwordx4 {v(RES+4*i,4)}, v6, s[16:19], s34 offen offset:{i*1024}{LDF}")
    def accinit():
        for i in range(4):
            for f in range(2):
                for h in range(2):
                    src = RES + 4*i + 2*f + h
                    A(f"v_lshlrev_b32 {v(acc(f,i)+2*h)}, 16, {v(src)}")
                    A(f"v_and_b32 {v(acc(f,i)+2*h+1)}, 0xffff0000, {v(src)}")
    def reads(p):
        out = []
        for kk in range(2):
            for f in range(2):
                for t in range(2):
                    out.append([f"ds_read_b64_tr_b16 {v(wf(p,kk,f)+2*t,2)}, {v(17+f)} offset:{kk*4096+t*2048}"])
            for i in range(4):
                out.append([f"ds_read_b128 {v(xf(p,kk,i),4)}, v16 offset:{kk*8192+i*1024}"])
        return out
    def addr_upd():
        return [f"v_add_u32 v16, {s(sRd)}, v10", f"v_add_u32 v17, {s(sRd)}, v13", f"v_add_u32 v18, {s(sRd)}, v14"]
    def mfmas(p):
        return [mf16(acc(f, i), wf(p, kk, f), xf(p, kk, i)) for kk in range(2) for f in range(2) for i in range(4)]
    A("s_cmp_ge_u32 s20, 4")
    A("s_cbranch_scc1 d3_B")
    fill_ring(A, R, SLOT, xd, bar=True)
    A(f"s_waitcnt vmcnt({4*R})")
    accinit()
    gemm_loop(A, ph, "d3_loopA", "A", R, SLOT, 28, 4, mfmas, reads, xd, addr_upd, cnt_sgpr=39)
    A("s_branch d3_epi")
    A.label("d3_B")
    fill_ring(A, R, SLOT, None, bar=True)
    A("s_waitcnt vmcnt(0)")
    accinit()
    gemm_loop(A, ph, "d3_loopB", "B", R, SLOT, 28, 4, mfmas, reads, wd, addr_upd, cnt_sgpr=39)
    A.label("d3_epi")
    srd(A, 8, 6, WS_Q, 9*MB)
    A("v_mov_b32 v20, 0")
    A("s_cmp_lg_u32 s26, 0")
    A("s_cbranch_scc1 d3_recv")
    for j in range(8):
        A(f"buffer_store_dwordx4 {v(ACC+4*j,4)}, v6, s[8:11], {s(41 + j//4)} offen offset:{(j%4)*1024} sc1")
    A("s_waitcnt vmcnt(0)")
    A("s_mov_b64 exec, 1")
    A("buffer_store_dwordx2 v[248:249], v20, s[8:11], s43 offen sc1")
    A("s_mov_b64 exec, -1")
    A("s_branch d3_end")
    A.label("d3_recv")
    A(f"s_mov_b32 s28, {SPIN_MAX}")
    A("s_mov_b64 exec, 1")
    A.label("d3_poll")
    A("buffer_load_dwordx2 v[22:23], v20, s[8:11], s43 offen sc1")
    A("s_waitcnt vmcnt(0)")
    A("v_cmp_ne_u64 vcc, v[248:249], v[22:23]")
    A("s_nop 1")
    A("s_cmp_eq_u64 vcc, 0")
    A("s_cbranch_scc1 d3_got")
    A("s_sleep 1")
    A("s_sub_u32 s28, s28, 1")
    A("s_cmp_lg_u32 s28, 0")
    A("s_cbranch_scc1 d3_poll")
    A.label("d3_got")
    A("s_mov_b64 exec, -1")
    for j in range(8):
        A(f"buffer_load_dwordx4 {v(64+4*j,4)}, v6, s[8:11], {s(41 + j//4)} offen offset:{(j%4)*1024} sc1")
    TT = 112
    for i in range(4):
        A(f"s_waitcnt vmcnt({6 - 2*i + i})")
        for q in range(4):
            A(f"v_pk_add_f32 {v(ACC+8*i+2*q,2)}, {v(ACC+8*i+2*q,2)}, {v(64+8*i+2*q,2)}")
        for f in range(2):
            for h in range(2):
                A(f"v_cvt_pk_bf16_f32 {v(TT+4*i+2*f+h)}, {v(acc(f,i)+2*h)}, {v(acc(f,i)+2*h+1)}")
        A("s_nop 1")
        A(f"v_permlane16_swap_b32 {v(TT+4*i)}, {v(TT+4*i+2)}")
        A(f"v_permlane16_swap_b32 {v(TT+4*i+1)}, {v(TT+4*i+3)}")
        A("s_nop 1")
        A(f"buffer_store_dwordx4 {v(TT+4*i,4)}, v9, s[48:51], {s(35+i)} offen{OUTF}")
    A.label("d3_end")
    if PROF:
        A("s_waitcnt vmcnt(0)")
        stamp(A, ph, 4)
```

```python
import sys, math, os, struct
from asmlib import *

MB = 1 << 20
WS_XN, WS_Q, WS_K, WS_VT, WS_O, WS_H, WS_ST, WS_CS, WS_FL, WS_HACT = 0, 4*MB, 8*MB, 12*MB, 16*MB, 20*MB, 24*MB, 25*MB, 26*MB, 32*MB
if int(os.environ.get('HACT0', '1')): WS_HACT = 0
WS_DBG = 48*MB
WS_RS = 27*MB
WS_XB = 72*MB
WS_WD = 64*MB
KA_X, KA_WQKV, KA_WO, KA_BX, KA_WG, KA_WU, KA_WD, KA_OUT, KA_DBG, KA_WS = 0, 8, 16, 24, 32, 40, 48, 56, 64, 72
LOG2E = math.log2(math.e)
QSCALE = LOG2E / math.sqrt(32.0)
def f32(x): return hex(struct.unpack("<I", struct.pack("<f", x))[0])
def OPT(name, default): return int(os.environ.get(name, str(default)))
def SOPT(name, default): return os.environ.get(name, default)
PROF = OPT("PROF", 0)
STF = " sc1"
LDF = SOPT("LDF", " sc1")
OUTF = SOPT("OUTF", "")
NAME = "sequential_preLN__mha_block__glu_gated_glu__prompt_kernel"

sNON = 62
def stamp(A, ph, i):
    if not PROF: return
    A("s_memrealtime s[64:65]")
    A("s_waitcnt lgkmcnt(0)")
    A(f"s_mov_b32 {s(66+ph*6+i)}, s64")
def cyc(A, ph, end):
    if not PROF: return
    A("s_memtime s[64:65]")
    A("s_waitcnt lgkmcnt(0)")
    if not end: A(f"s_mov_b32 {s(66+ph*6+5)}, s64")
    else: A(f"s_sub_u32 {s(66+ph*6+5)}, s64, {s(66+ph*6+5)}")
def stamp_flush(A):
    if not PROF: return
    if PROF == 2:
        A(f"s_load_dwordx2 s[4:5], s[0:1], {KA_DBG}")
        A("s_waitcnt lgkmcnt(0)")
        srd(A, 8, 4, 0, 256)
        A(f"s_cmp_lg_u32 s2, {OPT('DBGWG', 0)}")
        A("s_cbranch_scc1 the_end")
        A("s_cmp_lg_u32 s20, 0")
        A("s_cbranch_scc1 the_end")
        A("s_mov_b64 exec, 1")
        A("v_mov_b32 v0, 0")
        sel = [(0,3),(0,4),(1,1),(1,2),(1,3),(2,2),(2,3),(3,2),(3,3),(4,2),(4,3),(5,2),(5,3),(5,4)]
        for i, (ph, j) in enumerate(sel):
            A(f"s_sub_u32 s3, {s(66+ph*6+j)}, s66")
            A(f"v_mov_b32 {v(1+i)}, s3")
            A(f"buffer_store_dword {v(1+i)}, v0, s[8:11], 0 offen offset:{8+4*i}")
        return
    A("s_mov_b64 exec, 1")
    srd(A, 8, 6, WS_DBG, 16*MB)
    A("s_lshl_b32 s3, s2, 3")
    A("s_add_u32 s3, s3, s20")
    A("s_lshl_b32 s3, s3, 8")
    A("v_mov_b32 v0, 0")
    for i in range(36):
        A(f"v_mov_b32 {v(1+i)}, {s(66+i)}")
    for i in range(36):
        A(f"buffer_store_dword {v(1+i)}, v0, s[8:11], s3 offen offset:{4*i}")

def mf16(d, A_, B_, c=None):
    c = v(d, 4) if c is None else c
    return f"v_mfma_f32_16x16x32_bf16 {v(d,4)}, {v(A_,4)}, {v(B_,4)}, {c}"
def mf32(d, A_, B_, c=None):
    c = v(d, 16) if c is None else c
    return f"v_mfma_f32_32x32x16_bf16 {v(d,16)}, {v(A_,4)}, {v(B_,4)}, {c}"
def reduce_rows16_32(A, xs, ts):
    for op in ("v_permlane16_swap_b32", "v_permlane32_swap_b32"):
        for x, t in zip(xs, ts): A(f"v_mov_b32 {v(t)}, {v(x)}")
        A("s_nop 1")
        for x, t in zip(xs, ts): A(f"{op} {v(t)}, {v(x)}")
        A("s_nop 1")
        for x, t in zip(xs, ts): A(f"v_add_f32 {v(x)}, {v(x)}, {v(t)}")
def lane_decomp(A):
    A("v_and_b32 v1, 63, v0")
    A("v_lshrrev_b32 v2, 4, v1")
    A("v_bfe_u32 v3, v1, 2, 2")
    A("v_and_b32 v4, 3, v1")
    A("v_and_b32 v5, 15, v1")
    A("v_lshlrev_b32 v6, 4, v1")
def emit(A, L):
    for i in L:
        if isinstance(i, list): emit(A, i)
        else: A(i)

SPIN_MAX = 1 << 18
def pub_prep(A, ph, sg, sj):
    A(f"s_lshl_b32 s3, {s(sg)}, 8")
    A(f"s_lshl_b32 s28, {s(sj)}, 3")
    A("s_add_u32 s3, s3, s28")
    A(f"s_add_u32 s3, s3, {ph*4096}")
    A("v_mov_b32 v250, s3")
    if OPT("PUBFIRST", 1) and ph > 0:
        A("s_waitcnt vmcnt(0)")
        stamp(A, ph, 4)
        publish(A, force=True)
def publish(A, force=False):
    if OPT("PUBFIRST", 1) and not force: return
    srd(A, 56, 6, WS_FL, 6 * 4096)
    A("s_barrier")
    skip = A.newlabel("pub_skip")
    A("s_cmp_lg_u32 s20, 0")
    A(f"s_cbranch_scc1 {skip}")
    A("s_mov_b64 exec, 1")
    A("buffer_store_dwordx2 v[248:249], v250, s[56:59], 0 offen sc1")
    A("s_mov_b64 exec, -1")
    A.label(skip)

def wait_flags(A, ph, sg, n, also_all=None, soff=None):
    skip = A.newlabel("wf_skip"); loop = A.newlabel("wf_loop"); done = A.newlabel("wf_done")
    A("s_cmp_lg_u32 s20, 0")
    A(f"s_cbranch_scc1 {skip}")
    srd(A, 56, 6, WS_FL, 6 * 4096)
    A(f"s_lshl_b32 s3, {s(sg)}, 8")
    A(f"s_add_u32 s3, s3, {ph*4096}")
    if soff is not None: A(f"s_add_u32 s3, s3, {s(soff)}")
    A(f"v_and_b32 v22, {n-1}, v0")
    A("v_lshlrev_b32 v22, 3, v22")
    A("v_lshlrev_b32 v23, 3, v0")
    if also_all is not None: A(f"s_mov_b32 s29, {also_all*4096}")
    A(f"s_mov_b32 s28, {SPIN_MAX}")
    PP = OPT("PPOLL", 0)
    if also_all is not None:
        l2 = A.newlabel("wf_all")
        A.label(l2)
        for j in range(4):
            A(f"buffer_load_dwordx2 {v(24+2*j,2)}, v23, s[56:59], s29 offen offset:{j*512} sc1")
        A("buffer_load_dwordx2 v[252:253], v22, s[56:59], s3 offen sc1")
        A("s_waitcnt vmcnt(1)")
        A(f"v_cmp_ne_u64 vcc, {s(sNON,2)}, v[24:25]")
        for j in range(1, 4):
            A(f"v_cmp_ne_u64 s[60:61], {s(sNON,2)}, {v(24+2*j,2)}")
            A("s_nop 1")
            A("s_or_b64 vcc, vcc, s[60:61]")
        A("s_sub_u32 s28, s28, 1")
        A("s_cmp_eq_u32 s28, 0")
        A(f"s_cbranch_scc1 {skip}")
        A("s_cmp_eq_u64 vcc, 0")
        A(f"s_cbranch_scc0 {l2}")
    else:
        A("buffer_load_dwordx2 v[252:253], v22, s[56:59], s3 offen sc1")
    if PP:
        A(f"s_sleep {PP}")
        A.label(loop)
        for a_, b_ in ((252, 254), (254, 252)):
            A(f"buffer_load_dwordx2 {v(b_,2)}, v22, s[56:59], s3 offen sc1")
            A("s_waitcnt vmcnt(1)")
            A(f"v_cmp_ne_u64 vcc, {s(sNON,2)}, {v(a_,2)}")
            A("s_nop 1")
            A("s_cmp_eq_u64 vcc, 0")
            A(f"s_cbranch_scc1 {done}")
        A("s_sub_u32 s28, s28, 1")
        A("s_cmp_lg_u32 s28, 0")
        A(f"s_cbranch_scc1 {loop}")
        A.label(done)
    else:
        A.label(loop)
        A("s_waitcnt vmcnt(0)")
        A(f"v_cmp_ne_u64 vcc, {s(sNON,2)}, v[252:253]")
        A("s_nop 1")
        A("s_cmp_eq_u64 vcc, 0")
        A(f"s_cbranch_scc1 {skip}")
        A(f"s_sleep {OPT('SLEEP', 1)}")
        A("buffer_load_dwordx2 v[252:253], v22, s[56:59], s3 offen sc1")
        A("s_sub_u32 s28, s28, 1")
        A("s_cmp_lg_u32 s28, 0")
        A(f"s_cbranch_scc1 {loop}")
    A.label(skip)
    A("s_barrier")

sRd, sWr, sGo, sCnt, sM = 23, 24, 25, 27, 30
def ring_advance(slot, R):
    return [f"s_mov_b32 {s(sWr)}, {s(sRd)}",
            f"s_add_u32 {s(sRd)}, {s(sRd)}, {slot}",
            f"s_cmp_eq_u32 {s(sRd)}, {slot*R}",
            f"s_cselect_b32 {s(sRd)}, 0, {s(sRd)}"]

def adv(d, SC=0):
    if not SC: return [f"s_add_u32 {s(sGo)}, {s(sGo)}, {hex(d)}"]
    return ["s_add_u32 s38, s38, 1",
            "s_add_u32 s3, s38, s39",
            f"s_and_b32 s3, s3, {SC-1}",
            f"s_andn2_b32 {s(sGo)}, s38, {SC-1}",
            f"s_or_b32 s3, s3, {s(sGo)}",
            f"s_mul_i32 s3, s3, {hex(d)}",
            f"s_add_u32 {s(sGo)}, s3, s37"]
def rot_init(A, d, SC):
    A(f"s_mov_b32 s37, {s(sGo)}")
    A("s_mov_b32 s38, -1")
    emit(A, adv(d, SC))

def xdma(dX, SC=0, srd_='s[8:11]'):
    g = [[f"s_add_u32 m0, {s(sWr)}, {s(sM)}", "s_nop 0",
          f"buffer_load_dwordx4 v6, {srd_}, {s(sGo)} offen{LDF} lds"]]
    for j in range(1, 4):
        g.append([f"buffer_load_dwordx4 v6, {srd_}, {s(sGo)} offen offset:{j*1024}{LDF} lds"])
    g[-1] += adv(dX, SC)
    return g

def fill_ring(A, R, SLOT, dma, lo=0, hi=None, bar=False):
    for st in range(lo, R if hi is None else hi):
        if dma is not None:
            A(f"s_mov_b32 {s(sWr)}, {st*SLOT}")
            emit(A, dma())
        if bar and st < R - 1: A("s_barrier")

def fill_rest(A, R, SLOT, dma, done):
    st = done
    for b in range(R - 1):
        A("s_barrier")
        if st < R:
            A(f"s_mov_b32 {s(sWr)}, {st*SLOT}")
            emit(A, dma()); st += 1
    assert st == R

def gemm_loop(A, ph, label, role, R, SLOT, NST, ndma, mfmas, reads, dma_groups, addr_upd, tail_hook=None, cnt_sgpr=None, top_hook=None):
    T = R + (R % 2) if OPT("TAIL", 1) else 0
    A(f"s_mov_b32 {s(sRd)}, 0")
    emit(A, addr_upd())
    A(f"s_waitcnt vmcnt({ndma*(R-1)})")
    A("s_barrier")
    stamp(A, ph, 2); cyc(A, ph, 0)
    emit(A, reads(0))
    emit(A, ring_advance(SLOT, R))
    emit(A, addr_upd())
    A(f"s_mov_b32 {s(sCnt)}, {(NST-T)//2 if cnt_sgpr is None else s(cnt_sgpr)}")
    PRE = OPT("PRE_" + str(ph), OPT("PRE", 0))
    BK = OPT("BK", 1)
    def snake(M):
        return M
    def stage(p, dma, nout, last, hook=None, extra=0, loopend=False, inloop=False):
        M = mfmas(p); Rd = reads(1 - p); D = dma_groups() if dma else []
        if hook: D = D + [hook]
        nm = len(M)
        if last:
            A("s_waitcnt lgkmcnt(0)")
            if (tail_hook or {}).get('endbar'): A("s_barrier")
            if hook:
                h0 = (tail_hook or {}).get('lastpos', 0)
                emit(A, interleave(M, [[x] for x in hook], h0, nm))
            else:
                emit(A, M)
            return
        book = ring_advance(SLOT, R) + addr_upd()
        cnt = [f"s_sub_u32 {s(sCnt)}, {s(sCnt)}, 1", f"s_cmp_lg_u32 {s(sCnt)}, 0"] if loopend else []
        if role == "A":
            pre = min(PRE, nm // 2)
            if pre:
                A("s_waitcnt lgkmcnt(0)")
                emit(A, M[:pre])
                A(f"s_waitcnt vmcnt({ndma*nout+extra})")
            else:
                A(f"s_waitcnt vmcnt({ndma*nout+extra}) lgkmcnt(0)")
            A("s_barrier")
            if inloop and p == 0 and top_hook: emit(A, top_hook)
            Mr = M[pre:]; nr = len(Mr)
            if BK and dma:
                m0set = D[0][0]; D = [D[0][2:]] + D[1:]
                emit(A, interleave(Mr, Rd, 0, max(1, nr - 2)))
                A(m0set)
                emit(A, book)
                emit(A, D)
                emit(A, cnt)
            else:
                emit(A, interleave(Mr, Rd, 0, max(1, nr - 2) if dma else max(1, (2 * nr) // 3)))
                emit(A, D)
                emit(A, book); emit(A, cnt)
        else:
            A(f"s_waitcnt vmcnt({ndma*nout+extra}) lgkmcnt(0)")
            A("s_barrier")
            if inloop and p == 0 and top_hook: emit(A, top_hook)
            emit(A, D)
            if BK:
                h = max(1, (2 * nm) // 3)
                emit(A, interleave(M[:h], Rd))
                emit(A, interleave(M[h:], [[x] for x in book[:2]] + [book[2:4]] + [[x] for x in book[4:]] + ([cnt] if cnt else []), 0, max(1, nm - h - 1)))
            else:
                emit(A, interleave(M, Rd, 0, max(1, (2 * nm) // 3)))
                emit(A, book); emit(A, cnt)
    A.raw(".p2align 6")
    A.label(label)
    for p in range(2): stage(p, True, R - 2, False, loopend=(p == 1), inloop=True)
    A(f"s_cbranch_scc1 {label}")
    for st in range(NST - T, NST):
        stage(st % 2, st + R < NST, min(R - 2, NST - 2 - st), st == NST - 1, (tail_hook or {}).get(NST - st), (tail_hook or {}).get(('x', NST - st), 0))
    if not T: A("s_waitcnt lgkmcnt(0)")
    A("s_nop 7")
    if OPT("ENDBAR", 0) or (ph == 1 and OPT("RAW", 0)): A("s_barrier")
    cyc(A, ph, 1); stamp(A, ph, 3)

def code_touch(A, vd=26):
    if not OPT("CT", 0): return
    l = A.newlabel("ct")
    A("s_getpc_b64 s[56:57]")
    A.label(l)
    A(f"s_sub_u32 s56, s56, {l}-{NAME}")
    A("s_subb_u32 s57, s57, 0")
    A(f"s_mov_b32 s58, code_end-{NAME}")
    A("s_mov_b32 s59, 0x20000")
    A("v_lshlrev_b32 v20, 7, v1")
    A("s_lshl_b32 s28, s31, 13")
    A(f"buffer_load_dword {v(vd)}, v20, s[56:59], s28 offen")

def code_touch_list(A, frm, vd, va):
    l = A.newlabel("ct")
    return ["s_getpc_b64 s[56:57]", f"{l}:",
            f"s_add_u32 s56, s56, {frm}-{l}", "s_addc_u32 s57, s57, 0",
            "s_and_b32 s56, s56, 0xffffff80",
            f"s_mov_b32 s58, code_end-{frm}", "s_mov_b32 s59, 0x20000",
            f"v_lshlrev_b32 {v(va)}, 7, v1", "s_lshl_b32 s28, s31, 13",
            f"buffer_load_dword {v(vd)}, {v(va)}, s[56:59], s28 offen"]

def w_swz_voff(A, dst, rowstride):
    A(f"v_lshrrev_b32 {v(dst)}, 3, v1")
    A(f"v_mul_u32_u24 {v(dst)}, {rowstride}, {v(dst)}")
    A("v_and_b32 v20, 7, v1")
    A("v_lshlrev_b32 v21, 1, v2")
    A("v_xor_b32 v20, v20, v21")
    A(f"v_lshl_add_u32 {v(dst)}, v20, 4, {v(dst)}")

def ph_ln_qkv(A):
    R, SLOT, NST = 4, 40960, 16
    A(f"s_load_dwordx4 s[40:43], s[0:1], {KA_X}")
    A(f"s_load_dwordx4 s[4:7], s[0:1], {KA_DBG}")
    A("s_memrealtime s[62:63]")
    A("v_lshrrev_b32 v1, 6, v0")
    A("s_nop 0")
    A("v_readfirstlane_b32 s20, v1")
    lane_decomp(A)
    A("s_and_b32 s21, s2, 1")
    A("s_lshl_b32 s21, s21, 3")
    A("s_bfe_u32 s28, s2, 0x30003")
    A("s_add_u32 s21, s21, s28")
    A("s_bfe_u32 s22, s2, 0x20001")
    A("s_lshl_b32 s22, s22, 2")
    A("s_lshr_b32 s28, s2, 6")
    A("s_add_u32 s22, s22, s28")
    A("s_and_b32 s31, s20, 3")
    QSC = OPT("QSC", 16)
    A("s_and_b32 s39, s21, 3")
    A(f"s_mul_i32 s39, s39, {QSC//4}")
    A("s_cmp_ge_u32 s20, 4")
    A("s_cbranch_scc1 p0_B")
    A("v_and_b32 v7, 7, v1")
    A("v_bfe_u32 v8, v1, 3, 2")
    A("v_lshrrev_b32 v9, 5, v1")
    A("v_lshlrev_b32 v10, 11, v7")
    A("v_lshl_add_u32 v10, v9, 6, v10")
    A("v_lshl_add_u32 v10, v8, 3, v10")
    A("s_lshl_b32 s3, s2, 14")
    A("s_lshl_b32 s28, s20, 9")
    A("s_add_u32 s3, s3, s28")
    A("s_waitcnt lgkmcnt(0)")
    if PROF: A("s_mov_b32 s66, s62")
    srd(A, 8, 40, 0, 4*MB)
    for i in range(4):
        A(f"buffer_load_dwordx2 {v(32+4*i,2)}, v10, s[8:11], s3 offen offset:{i*128}")
        A(f"buffer_load_dwordx2 {v(34+4*i,2)}, v10, s[8:11], s3 offen offset:{i*128+32}")
    srd(A, 16, 4, 0, 256)
    A("s_or_b32 s28, s2, s20")
    A("s_cmp_lg_u32 s28, 0")
    A("s_cbranch_scc1 p0_nopub")
    A("s_or_b32 s62, s62, 1")
    A("v_mov_b32 v20, s62")
    A("v_mov_b32 v21, s63")
    A("v_mov_b32 v22, 0")
    A("s_mov_b64 exec, 1")
    A("buffer_store_dwordx2 v[20:21], v22, s[16:19], 0 offen sc1")
    A("s_mov_b64 exec, -1")
    A("s_waitcnt vmcnt(0)")
    A.label("p0_nopub")
    srd(A, 12, 6, WS_XN, 4*MB)
    A("v_lshlrev_b32 v11, 17, v9")
    A("v_lshl_add_u32 v11, v7, 4, v11")
    A("v_lshl_add_u32 v11, v8, 8, v11")
    A("s_lshr_b32 s32, s2, 1")
    A("s_lshl_b32 s32, s32, 10")
    A("s_and_b32 s33, s2, 1")
    A("s_lshl_b32 s33, s33, 7")
    A("s_add_u32 s32, s32, s33")
    A("s_lshl_b32 s33, s20, 20")
    A("s_add_u32 s32, s32, s33")
    A("s_add_u32 s33, s32, 0x40000")
    A("s_add_u32 s34, s32, 0x80000")
    A("s_add_u32 s35, s32, 0xc0000")
    A("v_mov_b32 v24, 0")
    A("v_mov_b32 v25, 0")
    U = 64
    for j in range(16):
        if j % 2 == 0: A(f"s_waitcnt vmcnt({7 - j//2})")
        A(f"v_lshlrev_b32 {v(U+2*j)}, 16, {v(32+j)}")
        A(f"v_and_b32 {v(U+1+2*j)}, 0xffff0000, {v(32+j)}")
        A(f"v_add_f32 v24, v24, {v(U+2*j)}")
        A(f"v_fmac_f32 v25, {v(U+2*j)}, {v(U+2*j)}")
        A(f"v_add_f32 v24, v24, {v(U+1+2*j)}")
        A(f"v_fmac_f32 v25, {v(U+1+2*j)}, {v(U+1+2*j)}")
    A("v_mov_b32 v22, 0")
    A("buffer_load_dwordx2 v[28:29], v22, s[16:19], 0 offen sc1")
    A("v_add_f32_dpp v24, v24, v24 row_ror:8 row_mask:0xf bank_mask:0xf")
    A("v_add_f32_dpp v25, v25, v25 row_ror:8 row_mask:0xf bank_mask:0xf")
    reduce_rows16_32(A, [24, 25], [26, 27])
    A("v_lshlrev_b32 v26, 5, v7")
    A("s_lshl_b32 s28, s20, 3")
    A("v_add_u32 v27, s28, v26")
    A("ds_write_b64 v27, v[24:25]")
    A("s_waitcnt lgkmcnt(0)")
    A("s_barrier")
    A("ds_read_b128 v[100:103], v26")
    A("ds_read_b128 v[104:107], v26 offset:16")
    A("s_waitcnt lgkmcnt(0)")
    A("v_pk_add_f32 v[24:25], v[100:101], v[102:103]")
    A("v_pk_add_f32 v[26:27], v[104:105], v[106:107]")
    A("v_pk_add_f32 v[24:25], v[24:25], v[26:27]")
    A(f"v_mul_f32 v24, {f32(1/1024)}, v24")
    A(f"v_mul_f32 v25, {f32(1/1024)}, v25")
    A("v_fma_f32 v25, -v24, v24, v25")
    A("v_max_f32 v25, 0, v25")
    A(f"v_add_f32 v25, {f32(1e-5)}, v25")
    A("v_rsq_f32 v25, v25")
    A("s_nop 0")
    A("v_mul_f32 v24, v24, v25")
    for j in range(16):
        A(f"v_fma_f32 {v(U+2*j)}, {v(U+2*j)}, v25, -v24")
        A(f"v_fma_f32 {v(U+1+2*j)}, {v(U+1+2*j)}, v25, -v24")
        A(f"v_cvt_pk_bf16_f32 {v(32+j)}, {v(U+2*j)}, {v(U+1+2*j)}")
        if j % 4 == 3:
            A(f"buffer_store_dwordx4 {v(32+j-3,4)}, v11, s[12:15], {s(32+j//4)} offen{STF}")
    stamp(A, 0, 3)
    A("s_lshr_b32 s32, s2, 4")
    A("s_and_b32 s33, s2, 15")
    pub_prep(A, 0, 32, 33)
    A(f"s_mov_b32 s28, {SPIN_MAX}")
    A.label("p0_nonce")
    A("s_waitcnt vmcnt(0)")
    A("v_readfirstlane_b32 s62, v28")
    A("v_readfirstlane_b32 s63, v29")
    A("s_nop 1")
    A("s_cmp_lg_u32 s62, 0")
    A("s_cbranch_scc1 p0_gotnonce")
    A("buffer_load_dwordx2 v[28:29], v22, s[16:19], 0 offen sc1")
    A("s_sub_u32 s28, s28, 1")
    A("s_cmp_lg_u32 s28, 0")
    A("s_cbranch_scc1 p0_nonce")
    A.label("p0_gotnonce")
    A("v_mov_b32 v248, s62")
    A("v_mov_b32 v249, s63")
    stamp(A, 0, 4)
    publish(A, force=True)
    A("v_mov_b32 v12, 0")
    A("s_lshr_b32 s28, s31, 1")
    A("s_lshl_b32 s28, s28, 7")
    A("s_lshl_b32 s29, s21, 3")
    A("s_add_u32 s28, s28, s29")
    A("s_and_b32 s29, s31, 1")
    A("s_lshl_b32 s29, s29, 2")
    A("s_add_u32 s28, s28, s29")
    A(f"s_lshl_b32 {s(sGo)}, s28, 10")
    if QSC: rot_init(A, 0x40000, QSC)
    A(f"s_lshl_b32 {s(sM)}, s31, 12")
    A("s_branch p1_common")
    A.label("p0_B")
    code_touch(A)
    w_swz_voff(A, 7, 6144)
    A(f"v_add_u32 v8, {8*6144-1024}, v7")
    A("v_add_u32 v9, 2048, v7")
    A("v_add_u32 v10, 2048, v8")
    A("v_add_u32 v11, 4096, v7")
    A("v_add_u32 v12, 4096, v8")
    A(f"s_mul_i32 s28, s31, {16*6144}")
    A("s_lshl_b32 s29, s22, 7")
    A(f"s_add_u32 {s(sGo)}, s28, s29")
    if QSC: rot_init(A, 64*6144, QSC)
    A(f"s_lshl_b32 {s(sM)}, s31, 11")
    A(f"s_add_u32 {s(sM)}, {s(sM)}, 16384")
    A("v_and_b32 v13, 31, v1")
    A("v_mul_u32_u24 v13, 6144, v13")
    A("v_lshrrev_b32 v14, 5, v1")
    A("v_lshl_add_u32 v15, v14, 11, v13")
    A("v_lshl_add_u32 v13, v14, 30, v13")
    A("v_add_u32 v13, 4096, v13")
    A("s_and_b32 s28, s21, 7")
    A("s_lshl_b32 s28, s28, 2")
    A("s_add_u32 s28, s28, s31")
    A(f"s_mul_i32 s28, s28, {32*6144}")
    A("s_add_u32 s28, s28, s29")
    A("s_waitcnt lgkmcnt(0)")
    if PROF: A("s_mov_b32 s66, s62")
    srd(A, 12, 42, 0, 6*MB)
    def wdma():
        g = []
        for seg in range(3):
            g.append([f"s_add_u32 m0, {s(sWr)}, {s(sM)}" if seg == 0 else "s_add_u32 m0, m0, 8192", "s_nop 0",
                      f"buffer_load_dwordx4 {v(7+2*seg)}, s[12:15], {s(sGo)} offen lds"])
            g.append([f"buffer_load_dwordx4 {v(8+2*seg)}, s[12:15], {s(sGo)} offen offset:1024 lds"])
        g[-1] += adv(64*6144, QSC)
        return g
    TLBW = OPT("TLBW", 0)
    if TLBW:
        sh = TLBW
        per = 1 << (21 - sh)
        A(f"s_load_dwordx2 s[44:45], s[0:1], {KA_WO}")
        A(f"s_load_dwordx4 s[48:51], s[0:1], {KA_WG}")
        A(f"s_load_dwordx4 s[52:55], s[0:1], {KA_WD}")
        A("v_lshlrev_b32 v26, 21, v1")
        A("s_lshr_b32 s33, s2, 3")
        A(f"s_and_b32 s33, s33, {per-1}")
        A(f"s_lshl_b32 s33, s33, {sh}")
        A("s_waitcnt lgkmcnt(0)")
        for wv, lst in ((0, [(6, 81*MB)]), (1, [(54, 4*MB), (44, 2*MB)]), (2, [(48, 7*MB), (50, 7*MB)]), (3, [(52, 7*MB)])):
            l = A.newlabel("tw")
            A(f"s_cmp_lg_u32 s31, {wv}")
            A(f"s_cbranch_scc1 {l}")
            for b_, sz in lst:
                srd(A, 56, b_, 0, sz)
                A("buffer_load_dword v27, v26, s[56:59], s33 offen sc1")
            A.label(l)
    P0M = OPT("P0M", 6)
    def touches():
        A("buffer_load_dword v24, v15, s[12:15], s28 offen")
        A("buffer_load_dword v25, v13, s[12:15], s28 offen")
    if P0M == 0:
        touches()
        fill_ring(A, R, SLOT, wdma, 0, 2)
        A("s_barrier")
        fill_ring(A, R, SLOT, wdma, 2, 4)
        A("s_barrier")
    elif P0M == 1:
        A("s_barrier")
        touches()
        fill_ring(A, R, SLOT, wdma, 0, 2)
        A("s_barrier")
        fill_ring(A, R, SLOT, wdma, 2, 4)
    elif P0M == 2:
        fill_ring(A, R, SLOT, wdma, 0, 2)
        A("s_barrier")
        touches()
        fill_ring(A, R, SLOT, wdma, 2, 4)
        A("s_barrier")
        A("s_waitcnt vmcnt(0)")
    elif P0M == 4:
        A("s_barrier")
        fill_ring(A, R, SLOT, wdma, 0, 2)
        A("s_barrier")
        fill_ring(A, R, SLOT, wdma, 2, 4)
    elif P0M == 5:
        fill_ring(A, R, SLOT, wdma, 0, 4)
        A("s_barrier")
        A("s_barrier")
    elif P0M == 6:
        fill_ring(A, R, SLOT, wdma, 0, 2)
        A("s_barrier")
        A("s_barrier")
        fill_ring(A, R, SLOT, wdma, 2, 4)
    elif P0M in (7, 8, 9):
        def ctouch():
            A("v_lshlrev_b32 v15, 7, v1")
            A("v_cmp_gt_u32 vcc, 48, v1")
            A("v_mov_b32 v13, 0x7fffffff")
            A("s_lshl_b32 s28, s2, 2")
            A("s_add_u32 s28, s28, s31")
            A("v_cndmask_b32 v15, v13, v15, vcc")
            A("s_mul_i32 s28, s28, 6144")
            A("buffer_load_dword v24, v15, s[12:15], s28 offen")
        if P0M == 7:
            ctouch()
            fill_ring(A, R, SLOT, wdma, 0, 2)
            A("s_barrier"); A("s_barrier")
            fill_ring(A, R, SLOT, wdma, 2, 4)
        elif P0M == 8:
            ctouch()
            A("s_waitcnt vmcnt(0)")
            A("s_barrier")
            fill_ring(A, R, SLOT, wdma, 0, 2)
            A("s_barrier")
            fill_ring(A, R, SLOT, wdma, 2, 4)
        else:
            ctouch()
            A("s_barrier"); A("s_barrier")
            fill_ring(A, R, SLOT, wdma, 0, 4)
    elif P0M == 3:
        fill_ring(A, R, SLOT, wdma, 0, 2)
        A("s_barrier")
        fill_ring(A, R, SLOT, wdma, 2, 4)
        A("s_barrier")

    A.label("p1_common")
    ACC = 64
    def acc(f, i): return ACC + (f * 4 + i) * 4
    SET = [112, 168]
    def xf(p, kk, i): return SET[p] + (kk * 4 + i) * 4
    def wf(p, kk, f): return SET[p] + 32 + (kk * 3 + f) * 4
    srd(A, 8, 6, WS_XN, 4*MB)
    srd(A, 12, 42, 0, 6*MB)
    srd(A, 16, 6, WS_Q, 12*MB)
    A("s_and_b32 s28, s20, 1")
    A("s_lshl_b32 s28, s28, 12")
    A("v_add_u32 v32, s28, v6")
    A("v_lshl_add_u32 v33, v2, 2, v3")
    A("v_lshlrev_b32 v33, 7, v33")
    A("v_lshl_add_u32 v33, v4, 3, v33")
    A("v_add_u32 v33, 16384, v33")
    A("v_bfe_u32 v34, v1, 3, 2")
    A("s_lshr_b32 s28, s20, 1")
    A("s_and_b32 s29, s28, 1")
    A("s_lshl_b32 s29, s29, 1")
    A("s_lshr_b32 s32, s28, 1")
    A("s_lshl_b32 s32, s32, 13")
    A("v_xor_b32 v35, s29, v34")
    A("v_lshl_add_u32 v35, v35, 5, v33")
    A("v_add_u32 v35, s32, v35")
    A("v_xor_b32 v36, 32, v35")
    A("v_xor_b32 v37, s28, v34")
    A("v_lshl_add_u32 v37, v37, 5, v33")
    A("v_add_u32 v37, 16384, v37")
    for i in range(48): A(f"v_mov_b32 {v(ACC+i)}, 0")
    stamp(A, 1, 0)
    wait_flags(A, 0, 21, 16)
    stamp(A, 1, 1)
    def reads(p):
        out = []
        for kk in range(2):
            for f in range(3):
                for t in range(2):
                    out.append([f"ds_read_b64_tr_b16 {v(wf(p,kk,f)+2*t,2)}, {v(17+f)} offset:{kk*4096+t*2048}"])
            for i in range(4):
                out.append([f"ds_read_b128 {v(xf(p,kk,i),4)}, v16 offset:{kk*8192+i*1024}"])
        return out
    def addr_upd():
        return [f"v_add_u32 v16, {s(sRd)}, v32", f"v_add_u32 v17, {s(sRd)}, v35",
                f"v_add_u32 v18, {s(sRd)}, v36", f"v_add_u32 v19, {s(sRd)}, v37"]
    def mfmas(p):
        M = []
        for kk in range(2):
            for f in range(3):
                for i in (range(4) if (f % 2 == 0 or not OPT("SNAKE", 1)) else range(3, -1, -1)):
                    if f < 2: M.append(mf16(acc(f, i), wf(p, kk, f), xf(p, kk, i)))
                    else:     M.append(mf16(acc(f, i), xf(p, kk, i), wf(p, kk, f)))
        return M
    A("s_cmp_ge_u32 s20, 4")
    A("s_cbranch_scc1 qkv_B")
    fill_ring(A, R, SLOT, lambda: xdma(0x40000, QSC), bar=True)
    gemm_loop(A, 1, "qkv_loopA", "A", R, SLOT, NST, 4, mfmas, reads, lambda: xdma(0x40000, QSC), addr_upd,
              {4: code_touch_list(A, "qkv_epi", 251, 252), ('x', 3): 1, ('x', 2): 1} if OPT("CTQ", 1) else None)
    A("s_branch qkv_epi")
    A.label("qkv_B")
    fill_ring(A, R, SLOT, None, bar=True)
    gemm_loop(A, 1, "qkv_loopB", "B", R, SLOT, NST, 6, mfmas, reads, wdma, addr_upd)
    A.label("qkv_epi")
    A(f"s_load_dwordx2 s[40:41], s[0:1], {KA_WO}")
    A(f"s_load_dwordx4 s[44:47], s[0:1], {KA_WG}")
    A(f"s_load_dwordx2 s[42:43], s[0:1], {KA_WD}")
    A("v_lshlrev_b32 v9, 9, v2")
    A("v_lshrrev_b32 v7, 3, v5")
    A("v_lshl_add_u32 v7, v7, 8, v9")
    A("v_and_b32 v8, 7, v5")
    A("v_lshl_add_u32 v7, v8, 4, v7")
    A("v_lshl_add_u32 v8, v5, 4, v9")
    A("s_lshr_b32 s28, s20, 1")
    A("s_and_b32 s29, s28, 1")
    A("s_lshr_b32 s32, s28, 1")
    A("s_and_b32 s33, s20, 1")
    A("s_lshl_b32 s34, s21, 2")
    A("s_lshl_b32 s33, s33, 1")
    A("s_add_u32 s34, s34, s33")
    A("s_lshl_b32 s34, s34, 11")
    A("s_lshl_b32 s35, s22, 1")
    A("s_add_u32 s36, s35, s29")
    A("s_lshl_b32 s36, s36, 17")
    A("s_add_u32 s36, s36, s34")
    A("s_lshl_b32 s37, s32, 22")
    A("s_add_u32 s36, s36, s37")
    A("s_add_u32 s38, s35, s32")
    A("s_lshl_b32 s38, s38, 17")
    A("s_add_u32 s38, s38, s34")
    A("s_lshl_b32 s37, s29, 8")
    A("s_add_u32 s38, s38, s37")
    A(f"s_add_u32 s38, s38, {8*MB}")
    A("s_cmp_eq_u32 s32, 0")
    A(f"s_cselect_b32 s39, {f32(QSCALE)}, 1.0")
    A("v_mov_b32 v20, s39")
    A("v_mov_b32 v21, s39")
    T = 128
    for pr in range(2):
        for ii in range(2):
            for h in range(2):
                A(f"v_cvt_pk_bf16_f32 {v(T+4*pr+2*ii+h)}, {v(acc(2,2*pr+ii)+2*h)}, {v(acc(2,2*pr+ii)+2*h+1)}")
        A(f"buffer_store_dwordx4 {v(T+4*pr,4)}, v8, s[16:19], s38 offen offset:{pr*2048}{STF}")
    T = 112
    for i in range(4):
        for f in range(2):
            for h in range(2):
                if OPT("NOPK", 1):
                    A(f"v_mul_f32 {v(acc(f,i)+2*h)}, {v(acc(f,i)+2*h)}, v20")
                    A(f"v_mul_f32 {v(acc(f,i)+2*h+1)}, {v(acc(f,i)+2*h+1)}, v20")
                else:
                    A(f"v_pk_mul_f32 {v(acc(f,i)+2*h,2)}, {v(acc(f,i)+2*h,2)}, v[20:21]")
        for f in range(2):
            for h in range(2):
                A(f"v_cvt_pk_bf16_f32 {v(T+4*i+2*f+h)}, {v(acc(f,i)+2*h)}, {v(acc(f,i)+2*h+1)}")
        A(f"buffer_store_dwordx4 {v(T+4*i,4)}, v7, s[16:19], s36 offen offset:{(i>>1)*2048+(i&1)*128}{STF}")
    pub_prep(A, 1, 22, 21)
    A("s_waitcnt lgkmcnt(0)")

def ph_attn(A):
    R, SLOT = 3, 32768
    WL = R * SLOT
    Q, NEGM, S0, S1, P, KF, VF, O, L, ONES = 8, 32, 48, 64, 80, 88, 96, 104, 120, 124
    S_ = [S0, S1]
    A("s_and_b32 s21, s2, 7")
    A("s_lshl_b32 s21, s21, 2")
    A("s_bfe_u32 s28, s2, 0x20003")
    A("s_add_u32 s21, s21, s28")
    A("s_lshr_b32 s22, s2, 5")
    A("s_lshr_b32 s32, s2, 1")
    A("s_and_b32 s33, s2, 1")
    sCo, sCM = 26, 29
    A("s_cmp_ge_u32 s32, 56")
    A("s_cselect_b32 s48, s46, s44")
    A("s_cselect_b32 s49, s47, s45")
    A("s_cselect_b32 s34, 56, 0")
    A("s_sub_u32 s34, s32, s34")
    A("s_mov_b32 s51, 0x20000")
    A("s_lshl_b32 s34, s34, 7")
    A(f"s_mul_i32 s35, s33, {512*7168}")
    A("s_add_u32 s34, s34, s35")
    A(f"s_add_u32 s35, s35, {512*7168}")
    A("s_cmp_lt_u32 s2, 224")
    A("s_cselect_b32 s50, s35, 0")
    A(f"s_mul_i32 s35, s31, {16*7168}")
    A(f"s_add_u32 {s(sCo)}, s34, s35")
    w_swz_voff(A, 7, 7168)
    A(f"v_add_u32 v129, {8*7168-1024}, v7")
    srd(A, 52, 40, 0, 2*MB)
    srd(A, 44, 42, 0, 7*MB)
    A("s_lshl_b32 s35, s2, 2")
    A("s_add_u32 s35, s35, s31")
    A("v_lshlrev_b32 v8, 7, v1")
    A("v_mov_b32 v9, 0x7fffffff")
    A("s_lshl_b32 s34, s35, 11")
    A("v_add_u32 v130, s34, v8")
    A("v_cmp_gt_u32 vcc, 16, v1")
    A("s_lshl_b32 s60, s35, 10")
    A("s_nop 0")
    A("v_cndmask_b32 v130, v9, v130, vcc")
    A("s_and_b32 s34, s35, 1")
    A("s_lshl_b32 s34, s34, 3")
    A("v_lshrrev_b32 v8, 3, v1")
    A("v_add_u32 v8, s34, v8")
    A(f"v_mul_u32_u24 v8, {3584*128}, v8")
    A("s_bfe_u32 s34, s35, 0x20002")
    A("s_lshl_b32 s34, s34, 1")
    A("v_and_b32 v9, 7, v1")
    A("v_xor_b32 v9, s34, v9")
    A("v_lshl_add_u32 v131, v9, 4, v8")
    A("s_lshr_b32 s61, s35, 1")
    A("s_lshl_b32 s61, s61, 7")
    A(f"s_sub_u32 s61, s61, {512*128}")
    CP = 140
    def cp_load():
        return [f"buffer_load_dwordx4 {v(CP,4)}, v6, s[44:47], s60 offen", f"s_add_u32 s60, s60, {MB}"]
    def cp_store():
        return [f"s_cmp_lt_u32 s61, {3584*128}", f"s_cselect_b32 s58, {7*MB}, 0",
                f"buffer_store_dwordx4 {v(CP,4)}, v131, s[56:59], s61 offen{STF}", f"s_add_u32 s61, s61, {512*128}"]
    def cs_dma(j):
        if j == 0:
            return [f"s_mov_b32 m0, {s(sCM)}", f"s_add_u32 {s(sCM)}, {s(sCM)}, 8192",
                    f"buffer_load_dwordx4 v7, s[48:51], {s(sCo)} offen lds"]
        return [f"buffer_load_dwordx4 v129, s[48:51], {s(sCo)} offen offset:1024 lds",
                f"s_add_u32 {s(sCo)}, {s(sCo)}, {64*7168}"]
    A("s_lshl_b32 s28, s21, 17")
    A("s_add_u32 s4, s6, s28")
    A("s_addc_u32 s5, s7, 0")
    srd(A, 8, 4, WS_K, 131072)
    srd(A, 12, 4, WS_VT, 131072)
    srd(A, 16, 4, WS_Q, 131072)
    srd(A, 36, 6, WS_O, 4*MB)
    A(f"s_lshl_b32 {s(sGo)}, s31, 12")
    A(f"s_lshl_b32 {s(sM)}, s31, 12")
    A("v_lshrrev_b32 v16, 2, v1")
    A("v_xor_b32 v16, v16, v2")
    A("v_and_b32 v16, 1, v16")
    A("v_cmp_eq_u32 vcc, 0, v16")
    A("v_mov_b32 v17, 0x3f803f80")
    A("s_nop 1")
    for i in range(4): A(f"v_cndmask_b32 {v(ONES+i)}, 0, v17, vcc")
    for i in range(16): A(f"v_mov_b32 {v(O+i)}, 0")
    for i in range(4): A(f"v_mov_b32 {v(L+i)}, 0")
    for i in range(4): A(f"v_mov_b32 {v(P+4+i)}, 0")
    for i in range(4): A(f"v_mov_b32 {v(VF+4+i)}, 0")
    A("v_mov_b32 v16, v6")
    A(f"v_add_u32 v17, {SLOT}, v6")
    A(f"s_mov_b32 {s(sRd)}, {SLOT}")
    A("s_lshr_b32 s34, s21, 1")
    A("s_lshl_b32 s35, s22, 3")
    A("s_add_u32 s35, s35, s20")
    A("s_lshl_b32 s35, s35, 11")
    if not OPT("PUBFIRST", 1):
        A("s_waitcnt vmcnt(0)")
        stamp(A, 1, 4)
    publish(A)
    stamp(A, 2, 0)
    wait_flags(A, 1, 34, 16)
    stamp(A, 2, 1)
    def kv(j):
        o = []
        if j % 4 == 0: o = [f"s_add_u32 m0, {s(sWr)}, {16384 if j >= 4 else 0}", "s_nop 0"]
        o += [f"buffer_load_dwordx4 v6, {'s[8:11]' if j < 4 else 's[12:15]'}, {s(sGo)} offen offset:{(j&3)*1024}{LDF} lds"]
        if j == 7:
            o += [f"s_add_u32 {s(sGo)}, {s(sGo)}, 16384",
                  f"s_add_u32 {s(sWr)}, {s(sWr)}, {SLOT}",
                  f"s_cmp_ge_u32 {s(sWr)}, {SLOT*R}",
                  f"s_cselect_b32 {s(sWr)}, {s(sM)}, {s(sWr)}"]
        return o
    srd(A, 56, 6, WS_WD, 7*MB)
    if OPT("NOSIDE", 0):
        A("s_mov_b32 s50, 0"); A("s_mov_b32 s46, 0"); A("s_mov_b32 s54, 0"); A("s_mov_b32 s61, 0x10000000")
    A(f"s_mov_b32 {s(sWr)}, {s(sM)}")
    A(f"s_lshl_b32 {s(sCM)}, s31, 11")
    A(f"s_add_u32 {s(sCM)}, {s(sCM)}, {WL}")
    A("s_cmp_ge_u32 s20, 4")
    A("s_cbranch_scc1 at_B0")
    for j in range(4): emit(A, kv(j))
    A("s_branch at_C0")
    A.label("at_B0")
    for j in range(4, 7): emit(A, kv(j))
    emit(A, kv(7)[:1])
    A.label("at_C0")
    A(f"buffer_load_dwordx4 {v(Q,4)}, v6, s[16:19], s35 offen{LDF}")
    A(f"buffer_load_dwordx4 {v(Q+4,4)}, v6, s[16:19], s35 offen offset:1024{LDF}")
    emit(A, kv(7)[1:])
    A("s_waitcnt vmcnt(0)")
    A("s_barrier")
    stamp(A, 2, 2); cyc(A, 2, 0)
    def kread(t, j, dst=None):
        a_ = 16 if t < 8 else 17
        return f"ds_read_b128 {v(KF+4*j if dst is None else dst,4)}, {v(a_)} offset:{(t%8)*2048+j*1024}"
    def vread(t, j):
        a_ = 16 if t < 8 else 17
        return f"ds_read_b128 {v(VF+4*j,4)}, {v(a_)} offset:{16384+(t%8)*2048+j*1024}"
    A(kread(0, 0, S1)); A(kread(0, 1, S1+4))
    A(kread(1, 0)); A(kread(1, 1)); A(vread(0, 0))
    A("s_cmp_ge_u32 s20, 4")
    A("s_cbranch_scc1 at_C1")
    for j in range(4): emit(A, kv(j))
    A("buffer_load_dword v128, v130, s[52:55], 0 offen")
    emit(A, cs_dma(0)); emit(A, cs_dma(1))
    if OPT("CT", 0) >= 2:
        A("s_branch at_C2")
    A.label("at_C1")
    if OPT("CT", 0) >= 2:
        code_touch(A, 128)
        srd(A, 56, 6, WS_WD, 7*MB)
        A.label("at_C2")
    A("s_waitcnt lgkmcnt(3)")
    A(mf32(S0, S1, Q, "0"))
    A(mf32(S0, S1+4, Q+4))
    A("s_nop 15")
    A("s_nop 3")
    A(f"v_max3_f32 v18, {v(S0)}, {v(S0+1)}, {v(S0+2)}")
    for i in range(3, 15, 2): A(f"v_max3_f32 v18, v18, {v(S0+i)}, {v(S0+i+1)}")
    A(f"v_max_f32 v18, v18, {v(S0+15)}")
    A("v_mov_b32 v19, v18")
    A("s_nop 1")
    A("v_permlane32_swap_b32 v19, v18")
    A("s_nop 1")
    A("v_max_f32 v18, v18, v19")
    for i in range(16): A(f"v_sub_f32 {v(NEGM+i)}, 0, v18")
    for i in range(16): A(f"v_sub_f32 {v(S0+i)}, {v(S0+i)}, v18")
    A(f"s_mov_b32 {s(sCnt)}, 8")
    A("s_waitcnt lgkmcnt(0)")
    def loop(role):
        A.raw(".p2align 6")
        A.label(f"attn_loop{role}")
        for t in range(8):
            c, n = S_[t % 2], S_[1 - t % 2]
            E = lambda i: f"v_exp_f32 {v(c+i)}, {v(c+i)}"
            C = lambda i: f"v_cvt_pk_bf16_f32 {v(P+i)}, {v(c+2*i)}, {v(c+2*i+1)}"
            X = {6: (kv(0), kv(1)), 7: (kv(2), kv(3)), 0: (kv(4), kv(5)), 1: (kv(6), kv(7)),
                 2: (["s_waitcnt vmcnt(10)"] + cp_store(), cp_load()), 3: (cs_dma(0), cs_dma(1)), 4: ([], []), 5: ([], [])}[t]
            if role == "B":
                X = ([], [])
                if OPT("CTA", 0) and t == 7: X = (["buffer_load_dword v251, v252, s[56:59], s60 offen"], [])
            FAIR = OPT("FAIR", 0)
            if t == 6:
                if role == "A": A("s_waitcnt vmcnt(4)")
                A("s_barrier")
            elif FAIR == 1 and t == 2:
                A("s_barrier")
            elif FAIR == 2 and t % 2 == 0:
                A("s_barrier")
            if FAIR == 1: A(f"s_setprio {3 - (t + 2) % 4}")
            if FAIR == 3 and t % 2 == 0: A(f"s_setprio {3 - ((t + 2) % 8) // 2}")
            A("s_waitcnt lgkmcnt(2)")
            A(mf32(n, KF, Q, v(NEGM, 16)))
            A(kread(t + 2, 0))
            emit(A, [E(0), E(1), E(2)])
            A(mf32(O, VF+4, P+4))
            A(vread(t, 1))
            emit(A, X[0])
            emit(A, [E(3), E(4), E(5), E(6)])
            A("s_waitcnt lgkmcnt(2)")
            A(mf32(n, KF+4, Q+4))
            A(kread(t + 2, 1))
            emit(A, [E(7), C(0), C(1), C(2), C(3), E(8)])
            A(mf16(L, ONES, P+4))
            emit(A, [E(9), E(10)])
            A(mf32(O, VF, P))
            A(vread(t + 1, 0))
            emit(A, X[1])
            emit(A, [E(11), E(12), E(13), E(14)])
            A(mf16(L, ONES, P))
            if t == 7:
                A(f"s_add_u32 {s(sRd)}, {s(sRd)}, {SLOT}")
                A(f"s_cmp_eq_u32 {s(sRd)}, {SLOT*R}")
                A(f"s_cselect_b32 {s(sRd)}, 0, {s(sRd)}")
                A("v_mov_b32 v16, v17")
                A(f"v_add_u32 v17, {s(sRd)}, v6")
                A(f"s_sub_u32 {s(sCnt)}, {s(sCnt)}, 1")
                A(f"s_cmp_lg_u32 {s(sCnt)}, 0")
            emit(A, [E(15), C(4), C(5), C(6), C(7)])
        A(f"s_cbranch_scc1 attn_loop{role}")
    A("s_cmp_ge_u32 s20, 4")
    A("s_cbranch_scc1 attn_preB")
    loop("A")
    A("s_branch attn_post")
    A.label("attn_preB")
    if OPT("CTA", 0):
        emit(A, code_touch_list(A, "attn_post", 251, 252)[:-1])
        A("s_mov_b32 s60, s28")
    loop("B")
    A.label("attn_post")
    if OPT("FAIR", 0): A("s_setprio 0")
    A("s_waitcnt lgkmcnt(0)")
    A("s_nop 0")
    A(mf32(O, VF+4, P+4))
    A(mf16(L, ONES, P+4))
    cyc(A, 2, 1); stamp(A, 2, 3)
    A("s_waitcnt vmcnt(0)")
    A("s_barrier")
    A("v_lshrrev_b32 v18, 2, v1")
    A("v_lshlrev_b32 v18, 7, v18")
    A("v_lshl_add_u32 v18, v4, 3, v18")
    A("v_bfe_u32 v19, v1, 3, 2")
    A("v_xor_b32 v19, s31, v19")
    A("v_lshl_add_u32 v18, v19, 5, v18")
    A("s_lshr_b32 s29, s20, 2")
    A("s_lshl_b32 s34, s29, 15")
    A(f"s_add_u32 s34, s34, {WL}")
    A("v_add_u32 v18, s34, v18")
    CSW = S0
    for ks in range(8):
        for t in range(2):
            A(f"ds_read_b64_tr_b16 {v(CSW+4*ks+2*t,2)}, v18 offset:{ks*4096+t*2048}")
    for i in range(4): A(f"v_mov_b32 {v(132+i)}, 0x3f803f80")
    A(f"v_add_f32 v18, |{v(O)}|, {v(L)}")
    for i in range(1, 16): A(f"v_add_f32 v18, |{v(O+i)}|, v18")
    A(f"v_mov_b32 v19, {f32(2.0**120)}")
    A("v_cmp_nlt_f32 vcc, v18, v19")
    A("s_waitcnt lgkmcnt(0)")
    for ks in range(8):
        A(mf16(136, CSW+4*ks, 132, "0" if ks == 0 else None))
    A("s_cmp_eq_u64 vcc, 0")
    A("s_cbranch_scc0 attn_slow")
    A.label("attn_fin")
    A(f"s_load_dwordx2 s[44:45], s[0:1], {KA_X}")
    A(f"v_rcp_f32 v18, {v(L)}")
    A("s_nop 0")
    for i in range(16): A(f"v_mul_f32 {v(O+i)}, {v(O+i)}, v18")
    for pc in range(2):
        for hh in range(2):
            run = pc + 2 * hh
            for j in range(2):
                A(f"v_cvt_pk_bf16_f32 {v(P+4*pc+2*hh+j)}, {v(O+4*run+2*j)}, {v(O+4*run+2*j+1)}")
    A("v_bfe_u32 v18, v1, 3, 1")
    A("v_lshlrev_b32 v18, 10, v18")
    A("v_bfe_u32 v19, v1, 4, 1")
    A("v_lshl_add_u32 v18, v19, 7, v18")
    A("v_and_b32 v19, 7, v1")
    A("v_lshl_add_u32 v18, v19, 4, v18")
    A("v_lshrrev_b32 v19, 5, v1")
    A("v_lshl_add_u32 v18, v19, 8, v18")
    A("s_lshl_b32 s28, s21, 17")
    A("s_add_u32 s28, s28, s35")
    A(f"buffer_store_dwordx4 {v(P,4)}, v18, s[36:39], s28 offen{STF}")
    A(f"buffer_store_dwordx4 {v(P+4,4)}, v18, s[36:39], s28 offen offset:512{STF}")
    srd(A, 48, 6, WS_CS, 4*7168*4)
    A("s_lshl_b32 s33, s33, 1")
    A("s_add_u32 s33, s33, s29")
    A(f"s_mul_i32 s33, s33, {7168*4}")
    A("s_lshl_b32 s34, s32, 8")
    A("s_add_u32 s33, s33, s34")
    A("s_lshl_b32 s34, s31, 6")
    A("s_add_u32 s33, s33, s34")
    A("v_cmp_ne_u32 vcc, 0, v5")
    A("v_mov_b32 v19, 0x7fffffff")
    A("s_cmp_lt_u32 s2, 224")
    A(f"s_cselect_b32 s50, {4*7168*4}, 0")
    A("v_cndmask_b32 v19, v1, v19, vcc")
    A(f"buffer_store_dwordx4 v[136:139], v19, s[48:51], s33 offen{STF}")
    pub_prep(A, 2, 22, 21)
    A("s_waitcnt lgkmcnt(0)")
    def slow():
        A.label("attn_slow")
        A("v_mov_b32 v18, 0xff800000")
        A("s_mov_b32 s28, 0")
        A.label("attn_slow1")
        A(f"buffer_load_dwordx4 {v(KF,4)}, v6, s[8:11], s28 offen{LDF}")
        A(f"buffer_load_dwordx4 {v(KF+4,4)}, v6, s[8:11], s28 offen offset:1024{LDF}")
        A("s_waitcnt vmcnt(0)")
        A("s_nop 15")
        A(mf32(S0, KF, Q, "0"))
        A(mf32(S0, KF+4, Q+4))
        A("s_nop 15")
        A("s_nop 3")
        for i in range(0, 16, 2): A(f"v_max3_f32 v18, v18, {v(S0+i)}, {v(S0+i+1)}")
        A("s_add_u32 s28, s28, 2048")
        A("s_cmp_lt_u32 s28, 131072")
        A("s_cbranch_scc1 attn_slow1")
        A("v_mov_b32 v19, v18")
        A("s_nop 1")
        A("v_permlane32_swap_b32 v19, v18")
        A("s_nop 1")
        A("v_max_f32 v18, v18, v19")
        for i in range(16): A(f"v_sub_f32 {v(NEGM+i)}, 0, v18")
        for i in range(16): A(f"v_mov_b32 {v(O+i)}, 0")
        for i in range(4): A(f"v_mov_b32 {v(L+i)}, 0")
        A("s_mov_b32 s28, 0")
        A.label("attn_slow2")
        A(f"buffer_load_dwordx4 {v(KF,4)}, v6, s[8:11], s28 offen{LDF}")
        A(f"buffer_load_dwordx4 {v(KF+4,4)}, v6, s[8:11], s28 offen offset:1024{LDF}")
        A(f"buffer_load_dwordx4 {v(VF,4)}, v6, s[12:15], s28 offen{LDF}")
        A(f"buffer_load_dwordx4 {v(VF+4,4)}, v6, s[12:15], s28 offen offset:1024{LDF}")
        A("s_waitcnt vmcnt(0)")
        A(mf32(S0, KF, Q, v(NEGM, 16)))
        A(mf32(S0, KF+4, Q+4))
        A("s_nop 15")
        A("s_nop 3")
        for i in range(16): A(f"v_exp_f32 {v(S0+i)}, {v(S0+i)}")
        A("s_nop 0")
        for i in range(8): A(f"v_cvt_pk_bf16_f32 {v(P+i)}, {v(S0+2*i)}, {v(S0+2*i+1)}")
        A("s_nop 1")
        A(mf32(O, VF, P))
        A(mf32(O, VF+4, P+4))
        A(mf16(L, ONES, P))
        A(mf16(L, ONES, P+4))
        A("s_nop 15")
        A("s_add_u32 s28, s28, 2048")
        A("s_cmp_lt_u32 s28, 131072")
        A("s_cbranch_scc1 attn_slow2")
        A("s_nop 15")
        A("s_branch attn_fin")
    return slow

HEADER = open("sequential_preLN__mha_block__glu_gated_glu__prompt.s.ref").read().split("; Override launch")[0]

def build(path):
    from mk2 import ph_proj, ph_gu, ph_down2, ph_down3
    A = Asm()
    A.raw(f".globl {NAME}"); A.raw(".p2align 8"); A.raw(f".type {NAME},@function"); A.label(NAME)
    A("s_cmp_ge_u32 s2, 256")
    A("s_cbranch_scc1 the_end")
    if OPT("RAW", 0):
        from mk3 import ph_qkv_raw
        hooks = ph_qkv_raw(A)
    else:
        ph_ln_qkv(A); hooks = None
    slow = ph_attn(A)
    ph_proj(A, 3, True)
    ph_gu(A)
    if OPT("SPLITK", 1) == 2: ph_down3(A)
    elif OPT("SPLITK", 1) == 1: ph_down2(A)
    else: ph_proj(A, 5, False)
    stamp_flush(A)
    A.label("the_end")
    A("s_endpgm")
    slow()
    A.label("code_end")
    out = HEADER
    out += "; @launch grid=(256,1,1) block=(512,1,1) lds=163840\n"
    out += '.amdgcn_target "amdgcn-amd-amdhsa--gfx950"\n.text\n'
    out += A.text()
    out += '.section .rodata,"a"\n'
    out += kernel_desc(NAME, 256, 102 if PROF else 64)
    open(path, "w").write(out)

if __name__ == "__main__":
    build(sys.argv[1] if len(sys.argv) > 1 else "sequential_preLN__mha_block__glu_gated_glu__prompt.s")
```

```python
from mk import *

def ph_proj(A, ph, is_wo):
    name = "wo" if is_wo else "dn"
    K = 1024 if is_wo else 3584
    ws_x = WS_O if is_wo else WS_HACT
    wp = 40 if is_wo else 42
    R, SLOT, NST = 6, 24576, K // 64
    STATS_LDS = R * SLOT
    A("s_and_b32 s21, s2, 3")
    A("s_lshl_b32 s21, s21, 2")
    A("s_bfe_u32 s28, s2, 0x20003")
    A("s_add_u32 s21, s21, s28")
    A("s_bfe_u32 s22, s2, 0x10002")
    A("s_lshl_b32 s22, s22, 3")
    A("s_lshr_b32 s28, s2, 5")
    A("s_add_u32 s22, s22, s28")
    PSC = OPT("WSC", 0) if is_wo else OPT("DSC", 4)
    PG = min(4, OPT("PG", 4))
    if PSC:
        A("s_add_u32 s39, s21, s22")
        A(f"s_and_b32 s39, s39, {PG-1}")
        A(f"s_mul_i32 s39, s39, {PSC//PG}")
    def wdma():
        if not is_wo:
            return [[f"s_add_u32 m0, {s(sWr)}, {s(sM)}", "s_nop 0",
                     f"buffer_load_dwordx4 v6, s[12:15], {s(sGo)} offen{LDF} lds"],
                    [f"buffer_load_dwordx4 v6, s[12:15], {s(sGo)} offen offset:1024{LDF} lds",
                     ] + adv(8192, PSC)]
        return [[f"s_add_u32 m0, {s(sWr)}, {s(sM)}", "s_nop 0",
                 f"buffer_load_dwordx4 v7, s[12:15], {s(sGo)} offen lds"],
                [f"buffer_load_dwordx4 v8, s[12:15], {s(sGo)} offen offset:1024 lds",
                 ] + adv(64*2048, PSC)]
    DX = 0x40000
    ACC = 32
    def acc(f, i): return ACC + (i * 2 + f) * 4
    SET = [48, 80]
    def xf(p, kk, i): return SET[p] + (kk * 2 + i) * 4
    def wf(p, kk, f): return SET[p] + 16 + (kk * 2 + f) * 4
    RES = 240
    NRES = 4 if is_wo else 2
    A("s_lshr_b32 s33, s20, 2")
    A("s_lshl_b32 s34, s22, 1")
    A("s_add_u32 s34, s34, s33")
    A("s_lshl_b32 s34, s34, 7")
    A("s_lshl_b32 s35, s21, 3")
    A("s_add_u32 s34, s34, s35")
    A("s_lshl_b32 s35, s31, 1")
    A("s_add_u32 s34, s34, s35")
    A("s_lshl_b32 s34, s34, 10")
    A("s_lshl_b32 s35, s21, 18")
    A("s_lshl_b32 s36, s31, 16")
    A("s_add_u32 s35, s35, s36")
    A("s_lshl_b32 s36, s22, 7")
    A("s_add_u32 s35, s35, s36")
    A("s_lshl_b32 s36, s33, 6")
    A("s_add_u32 s35, s35, s36")
    A("s_add_u32 s36, s35, 32768")
    srd(A, 16, 6, WS_H, 4*MB)
    srd(A, 48, 44, 0, 4*MB)
    if is_wo:
        srd(A, 12, wp, 0, K*2048)
    else:
        A(f"s_mul_i32 s28, s22, {3584*128}")
        A("s_add_u32 s4, s6, s28")
        A("s_addc_u32 s5, s7, 0")
        srd(A, 12, 4, WS_WD, 3584*128)
    srd(A, 8, 6, ws_x, 2048*K*2)
    def resload():
        if is_wo:
            for i in range(2):
                A(f"buffer_load_dwordx4 {v(RES+4*i,4)}, v9, s[48:51], {s(35+i)} offen")
        else:
            for i in range(2):
                A(f"buffer_load_dwordx4 {v(RES+4*i,4)}, v6, s[16:19], s34 offen offset:{i*1024}{LDF}")
    A("v_lshlrev_b32 v9, 11, v5")
    A("v_and_b32 v15, 1, v2")
    A("v_lshl_add_u32 v9, v15, 5, v9")
    A("v_lshrrev_b32 v15, 1, v2")
    A("v_lshl_add_u32 v9, v15, 4, v9")
    A("s_lshl_b32 s28, s31, 11")
    A("v_add_u32 v10, s28, v6")
    A("v_lshl_add_u32 v11, v2, 2, v3")
    A("v_lshlrev_b32 v11, 7, v11")
    A("v_lshl_add_u32 v11, v4, 3, v11")
    A("v_add_u32 v11, 16384, v11")
    A("v_bfe_u32 v12, v1, 3, 2")
    A("s_lshl_b32 s29, s33, 1")
    A("v_xor_b32 v13, s29, v12")
    A("v_lshl_add_u32 v13, v13, 5, v11")
    A("v_xor_b32 v14, 32, v13")
    A("s_lshr_b32 s32, s21, 1")
    A("s_cmp_lt_u32 s20, 4")
    A(f"s_cbranch_scc1 {name}_A0")
    if is_wo:
        w_swz_voff(A, 7, 2048)
        A(f"v_add_u32 v8, {8*2048-1024}, v7")
        A("s_lshl_b32 s28, s31, 15")
        A("s_lshl_b32 s29, s22, 7")
        A(f"s_add_u32 {s(sGo)}, s28, s29")
    else:
        A(f"s_lshl_b32 {s(sGo)}, s31, 11")
    if PSC: rot_init(A, 64*2048 if is_wo else 8192, PSC)
    A(f"s_lshl_b32 {s(sM)}, s31, 11")
    A(f"s_add_u32 {s(sM)}, {s(sM)}, 16384")
    if not OPT("PUBFIRST", 1):
        A("s_waitcnt vmcnt(0)")
        stamp(A, ph - 1, 4)
    publish(A)
    WE = OPT("WE_W", 6)
    resload()
    fill_ring(A, R, SLOT, wdma, 0, WE)
    A(f"s_branch {name}_C0")
    A.label(f"{name}_A0")
    A("s_lshr_b32 s28, s31, 1")
    A("s_lshl_b32 s28, s28, 7")
    A("s_lshl_b32 s29, s21, 3")
    A("s_add_u32 s28, s28, s29")
    A("s_and_b32 s29, s31, 1")
    A("s_lshl_b32 s29, s29, 2")
    A("s_add_u32 s28, s28, s29")
    A(f"s_lshl_b32 {s(sGo)}, s28, 10")
    if PSC: rot_init(A, DX, PSC)
    A(f"s_lshl_b32 {s(sM)}, s31, 12")
    if not OPT("PUBFIRST", 1):
        A("s_waitcnt vmcnt(0)")
        stamp(A, ph - 1, 4)
    publish(A)
    resload()
    A.label(f"{name}_C0")
    stamp(A, ph, 0)
    wait_flags(A, ph - 1, 32, 32)
    stamp(A, ph, 1)
    def accinit():
        if is_wo:
            for i in range(2):
                A(f"v_permlane16_swap_b32 {v(RES+4*i)}, {v(RES+4*i+2)}")
                A(f"v_permlane16_swap_b32 {v(RES+4*i+1)}, {v(RES+4*i+3)}")
            A("s_nop 1")
        for i in range(2):
            for f in range(2):
                for h in range(2):
                    src = RES + 4*i + 2*f + h
                    A(f"v_lshlrev_b32 {v(acc(f,i)+2*h)}, 16, {v(src)}")
                    A(f"v_and_b32 {v(acc(f,i)+2*h+1)}, 0xffff0000, {v(src)}")
    def reads(p):
        out = []
        for kk in range(2):
            for f in range(2):
                for t in range(2):
                    out.append([f"ds_read_b64_tr_b16 {v(wf(p,kk,f)+2*t,2)}, {v(17+f)} offset:{kk*4096+t*2048}"])
            for i in range(2):
                out.append([f"ds_read_b128 {v(xf(p,kk,i),4)}, v16 offset:{kk*8192+i*1024}"])
        return out
    def addr_upd():
        return [f"v_add_u32 v16, {s(sRd)}, v10", f"v_add_u32 v17, {s(sRd)}, v13", f"v_add_u32 v18, {s(sRd)}, v14"]
    def mfmas(p):
        return [mf16(acc(f, i), wf(p, kk, f), xf(p, kk, i)) for kk in range(2) for f in range(2) for i in ((0, 1) if (f == 0 or not OPT("SNAKE", 1)) else (1, 0))]
    A("s_cmp_ge_u32 s20, 4")
    A(f"s_cbranch_scc1 {name}_B")
    fill_ring(A, R, SLOT, lambda: xdma(DX, PSC), bar=True)
    A(f"s_waitcnt vmcnt({4*R})")
    accinit()
    gemm_loop(A, ph, f"{name}_loopA", "A", R, SLOT, NST, 4, mfmas, reads, lambda: xdma(DX, PSC), addr_upd,
              {6: code_touch_list(A, f"{name}_epi", 251, 252), ('x', 5): 1, ('x', 4): 1, ('x', 3): 1, ('x', 2): 1} if OPT("CTW", 1) else None)
    A(f"s_branch {name}_epi")
    A.label(f"{name}_B")
    fill_rest(A, R, SLOT, wdma, WE)
    A(f"s_waitcnt vmcnt({2*R})")
    accinit()
    gemm_loop(A, ph, f"{name}_loopB", "B", R, SLOT, NST, 2, mfmas, reads, wdma, addr_upd)
    A.label(f"{name}_epi")
    T = 112
    for i in range(2):
        for f in range(2):
            for h in range(2):
                A(f"v_cvt_pk_bf16_f32 {v(T+4*i+2*f+h)}, {v(acc(f,i)+2*h)}, {v(acc(f,i)+2*h+1)}")
    if is_wo:
        for i in range(2):
            A(f"buffer_store_dwordx4 {v(T+4*i,4)}, v6, s[16:19], s34 offen offset:{i*1024}{STF}")
        for i in range(2):
            sm, sq = 20 + 2*i, 21 + 2*i
            b = acc(0, i)
            A(f"v_add_f32 {v(sm)}, {v(b)}, {v(b+1)}")
            A(f"v_mul_f32 {v(sq)}, {v(b)}, {v(b)}")
            A(f"v_fmac_f32 {v(sq)}, {v(b+1)}, {v(b+1)}")
            for j in range(2, 8):
                A(f"v_add_f32 {v(sm)}, {v(sm)}, {v(b+j)}")
                A(f"v_fmac_f32 {v(sq)}, {v(b+j)}, {v(b+j)}")
        reduce_rows16_32(A, [20, 21, 22, 23], [24, 25, 26, 27])
        A("s_lshl_b32 s28, s31, 9")
        A("s_lshl_b32 s29, s33, 3")
        A("s_add_u32 s28, s28, s29")
        A(f"s_add_u32 s28, s28, {STATS_LDS}")
        A("v_lshlrev_b32 v24, 4, v5")
        A("v_add_u32 v24, s28, v24")
        A("ds_write_b64 v24, v[20:21]")
        A("ds_write_b64 v24, v[22:23] offset:256")
        A(f"s_load_dwordx4 s[44:47], s[0:1], {KA_WG}")
        A("s_waitcnt lgkmcnt(0)")
        A("s_barrier")
        A("s_cmp_ge_u32 s20, 2")
        A(f"s_cbranch_scc1 {name}_end2")
        A("v_lshlrev_b32 v24, 4, v0")
        A(f"v_add_u32 v24, {STATS_LDS}, v24")
        A("ds_read_b128 v[20:23], v24")
        srd(A, 8, 6, WS_ST, 2048*128)
        A("v_lshlrev_b32 v24, 3, v0")
        A("s_lshl_b32 s28, s21, 10")
        A("s_lshl_b32 s29, s22, 14")
        A("s_add_u32 s28, s28, s29")
        A("s_waitcnt lgkmcnt(0)")
        A("v_add_f32 v20, v20, v22")
        A("v_add_f32 v21, v21, v23")
        A(f"buffer_store_dwordx2 v[20:21], v24, s[8:11], s28 offen{STF}")
        A.label(f"{name}_end2")
        A("s_and_b32 s38, s21, 1")
        A("s_lshl_b32 s38, s38, 4")
        A("s_add_u32 s38, s38, s22")
        pub_prep(A, ph, 32, 38)
    else:
        A("s_nop 1")
        for i in range(2):
            A(f"v_permlane16_swap_b32 {v(T+4*i)}, {v(T+4*i+2)}")
            A(f"v_permlane16_swap_b32 {v(T+4*i+1)}, {v(T+4*i+3)}")
        A("s_nop 1")
        for i in range(2):
            A(f"buffer_store_dwordx4 {v(T+4*i,4)}, v9, s[48:51], {s(35+i)} offen{OUTF}")
        if PROF:
            A("s_waitcnt vmcnt(0)")
            stamp(A, ph, 4)

def ph_gu(A):
    ph = 4
    R, SLOT, NST = 5, 30720, 32
    SL = R * SLOT
    A("s_and_b32 s21, s2, 1")
    A("s_lshl_b32 s21, s21, 2")
    A("s_bfe_u32 s28, s2, 0x20003")
    A("s_add_u32 s21, s21, s28")
    A("s_bfe_u32 s22, s2, 0x20001")
    A("s_lshl_b32 s22, s22, 3")
    A("s_lshr_b32 s28, s2, 5")
    A("s_add_u32 s22, s22, s28")
    def wdma():
        return [[f"s_add_u32 m0, {s(sWr)}, {s(sM)}", "s_mov_b64 exec, s[34:35]",
                 f"buffer_load_dwordx4 v7, s[12:15], {s(sGo)} offen lds",
                 f"buffer_load_dwordx4 v8, s[12:15], {s(sGo)} offen offset:896 lds",
                 f"s_add_u32 m0, m0, 7168", "s_nop 0",
                 f"buffer_load_dwordx4 v7, s[16:19], {s(sGo)} offen lds",
                 f"buffer_load_dwordx4 v8, s[16:19], {s(sGo)} offen offset:896 lds",
                 "s_mov_b64 exec, -1",
                 f"s_add_u32 {s(sGo)}, {s(sGo)}, {32*7168}"]]
    srd(A, 12, 44, 0, 7*MB)
    srd(A, 16, 46, 0, 7*MB)
    srd(A, 8, 6, WS_H, 4*MB)
    A("s_cmp_lt_u32 s20, 4")
    A("s_cbranch_scc1 gu_A0")
    if OPT("CT", 1) >= 2: code_touch(A, 255)
    A("v_mul_u32_u24 v7, 4682, v1")
    A("v_lshrrev_b32 v7, 16, v7")
    A("v_mul_u32_u24 v8, 14, v7")
    A("v_sub_u32 v8, v1, v8")
    A("v_mul_u32_u24 v7, 7168, v7")
    A("v_lshl_add_u32 v7, v8, 4, v7")
    A(f"v_add_u32 v8, {4*7168-896}, v7")
    A("s_mov_b32 s34, -1")
    A("s_mov_b32 s35, 0x00ffffff")
    A(f"s_mul_i32 s28, s31, {8*7168}")
    A("s_mul_i32 s29, s22, 224")
    A(f"s_add_u32 {s(sGo)}, s28, s29")
    A(f"s_mul_i32 {s(sM)}, s31, 1792")
    A(f"s_add_u32 {s(sM)}, {s(sM)}, 16384")
    GE = OPT("GE", 0)
    fill_ring(A, R, SLOT, wdma, 0, GE)
    if not OPT("PUBFIRST", 1):
        A(f"s_waitcnt vmcnt({4*GE})")
        stamp(A, 3, 4)
    publish(A)
    WE = OPT("WE_G", 5)
    fill_ring(A, R, SLOT, wdma, GE, WE)
    A("s_branch gu_C0")
    A.label("gu_A0")
    A("s_lshl_b32 s28, s21, 4")
    A("s_lshl_b32 s29, s31, 2")
    A("s_add_u32 s28, s28, s29")
    A(f"s_lshl_b32 {s(sGo)}, s28, 10")
    A(f"s_lshl_b32 {s(sM)}, s31, 12")
    for i in range(32, 152): A(f"v_mov_b32 {v(i)}, 0")
    if not OPT("PUBFIRST", 1):
        A("s_waitcnt vmcnt(0)")
        stamp(A, 3, 4)
    publish(A)
    A.label("gu_C0")
    srd(A, 44, 6, WS_ST, 2048*128)
    srd(A, 48, 6, WS_CS, 4*7168*4)
    srd(A, 52, 6, WS_HACT, 2048*3584*2)
    A("s_and_b32 s36, s22, 1")
    A("s_cmp_eq_u32 s36, 1")
    A("s_cselect_b32 s37, 3, 0")
    A("s_cselect_b32 s38, 1, 4")
    A("s_cselect_b32 s39, 0, 6")
    A("s_cmp_ge_u32 s20, 4")
    A("s_cselect_b32 s37, s38, s37")
    A("s_lshl_b32 s28, s31, 12")
    A("v_add_u32 v10, s28, v6")
    A("v_lshl_add_u32 v11, v2, 2, v3")
    A("v_mul_u32_u24 v11, 224, v11")
    A("v_lshl_add_u32 v11, v4, 3, v11")
    A("v_add_u32 v11, 16384, v11")
    A("s_lshl_b32 s28, s39, 5")
    A("v_add_u32 v12, s28, v11")
    A("s_lshl_b32 s28, s37, 5")
    A("v_add_u32 v11, s28, v11")
    A("v_and_b32 v13, 255, v0")
    A("v_lshlrev_b32 v14, 3, v13")
    A("s_lshl_b32 s32, s21, 11")
    A("v_lshlrev_b32 v15, 2, v13")
    A(f"v_add_u32 v9, {(3584-112)*4}, v15")
    A("v_cmp_gt_u32 vcc, 112, v13")
    A("v_mov_b32 v19, 0x7fffffff")
    A("s_mul_i32 s33, s22, 448")
    A("v_cndmask_b32 v15, v9, v15, vcc")
    A("v_cmp_gt_u32 vcc, 224, v13")
    A("s_nop 1")
    A("v_cndmask_b32 v15, v19, v15, vcc")
    A("s_cmp_lt_u32 s20, 4")
    A("s_cbranch_scc1 gu_Z")
    for i in range(32, 120): A(f"v_mov_b32 {v(i)}, 0")
    A.label("gu_Z")
    stamp(A, ph, 0)
    wait_flags(A, 3, 21, 32, also_all=2)
    for i in range(24, 32): A(f"v_mov_b32 {v(i)}, 0")
    stamp(A, ph, 1)
    def body(nf, tag):
        def wsrc(j):
            if nf == 3 and j == 2: return 18, 0
            return 17, j * 32
        ACC = 24
        def acc(j, gu, i): return ACC + ((j * 2 + gu) * 4 + i) * 4
        NS = 16 + nf * 8
        SET = [ACC + nf * 32, ACC + nf * 32 + NS]
        def xf(p, i): return SET[p] + i * 4
        def wf(p, j, gu): return SET[p] + 16 + (j * 2 + gu) * 4
        if tag == "A":
            fill_ring(A, R, SLOT, lambda: xdma(0x20000), bar=True)
        else:
            fill_rest(A, R, SLOT, wdma, WE)
        hook = None
        if tag == "A" and OPT("CTG", 1):
            hook = {5: code_touch_list(A, "gu_epiA", 251, 252), ('x', 4): 1, ('x', 3): 1, ('x', 2): 1}
        if tag == "B":
            def ld16():
                o = []
                for j in range(16):
                    o += [f"buffer_load_dwordx2 {v(200+2*j,2)}, v14, s[44:47], s32 offen{LDF}", "s_add_u32 s32, s32, 16384"]
                return o
            def red16():
                o = []
                for j in range(1, 8):
                    for q in (200, 201, 216, 217):
                        o.append(f"v_add_f32 {v(q)}, {v(q)}, {v(q+2*j)}")
                return o
            h1 = ld16()
            for j in range(4):
                h1 += [f"buffer_load_dword {v(232+j)}, v15, s[48:51], s33 offen{LDF}", f"s_add_u32 s33, s33, {7168*4}"]
            hook = ["s_waitcnt vmcnt(0)"] + red16()
            hook += ["v_add_f32 v200, v200, v216", "v_add_f32 v201, v201, v217",
                "v_add_f32 v232, v232, v233", "v_add_f32 v234, v234, v235", "v_add_f32 v232, v232, v234",
                f"v_mul_f32 v200, {f32(-1/1024)}, v200", f"v_mul_f32 v201, {f32(1/1024)}, v201",
                "v_fma_f32 v201, -v200, v200, v201", "v_max_f32 v201, 0, v201", f"v_add_f32 v201, {f32(1e-5)}, v201",
                "v_rsq_f32 v202, v201", "v_sqrt_f32 v204, v201", "v_mov_b32 v201, v200",
                f"v_mul_f32 v202, {f32(-LOG2E)}, v202", "v_mov_b32 v205, v204", "v_mov_b32 v203, v202",
                "v_lshlrev_b32 v14, 4, v13", f"v_add_u32 v14, {SL}, v14", "ds_write_b128 v14, v[200:203]",
                "v_lshlrev_b32 v14, 3, v13", f"v_add_u32 v14, {SL+5120}, v14", "ds_write_b64 v14, v[204:205]",
                "v_lshlrev_b32 v15, 2, v13", f"v_add_u32 v15, {SL+4096}, v15", "ds_write_b32 v15, v232"]
            hook = {5: h1, 3: hook, ('x', 4): 20, ('x', 3): 20}
        def reads(p):
            out = []
            for i in range(4):
                out.append([f"ds_read_b128 {v(xf(p,i),4)}, v16 offset:{i*1024}"])
            for j in range(nf):
                ar, imm = wsrc(j)
                for gu in range(2):
                    for t in range(2):
                        out.append([f"ds_read_b64_tr_b16 {v(wf(p,j,gu)+2*t,2)}, {v(ar)} offset:{imm+gu*7168+t*3584}"])
            return out
        def addr_upd():
            o = [f"v_add_u32 v16, {s(sRd)}, v10", f"v_add_u32 v17, {s(sRd)}, v11"]
            if nf == 3: o.append(f"v_add_u32 v18, {s(sRd)}, v12")
            return o
        def mfmas(p):
            return [mf16(acc(j, gu, i), wf(p, j, gu), xf(p, i)) for j in range(nf) for gu in range(2) for i in (range(4) if (gu == 0 or not OPT("SNAKE", 1)) else range(3, -1, -1))]
        gemm_loop(A, ph, f"gu_loop{tag}", tag, R, SLOT, NST, 4, mfmas, reads, (lambda: xdma(0x20000)) if tag == "A" else wdma, addr_upd, hook)
        A.label(f"gu_epi{tag}")
        if tag == "B": A("s_barrier")
        A(f"s_load_dwordx2 s[44:45], s[0:1], {KA_OUT}")
        A(f"s_load_dwordx2 s[46:47], s[0:1], {KA_DBG}")
        STR = 232
        CSR = 200
        A("s_lshl_b32 s28, s31, 10")
        A(f"s_add_u32 s28, s28, {SL}")
        A("v_lshlrev_b32 v14, 4, v5")
        A("v_add_u32 v14, s28, v14")
        for i in range(4):
            A(f"ds_read_b128 {v(STR+4*i,4)}, v14 offset:{i*256}")
        SGR = 184
        A("s_lshl_b32 s28, s31, 9")
        A(f"s_add_u32 s28, s28, {SL+5120}")
        A("v_lshlrev_b32 v14, 3, v5")
        A("v_add_u32 v14, s28, v14")
        for i in range(4):
            A(f"ds_read_b64 {v(SGR+2*i,2)}, v14 offset:{i*128}")
        A("v_lshlrev_b32 v9, 4, v2")
        A("s_lshl_b32 s28, s37, 6")
        A(f"s_add_u32 s28, s28, {SL+4096}")
        A("v_add_u32 v14, s28, v9")
        A("s_lshl_b32 s28, s39, 6")
        A(f"s_add_u32 s28, s28, {SL+4096}")
        A("v_add_u32 v15, s28, v9")
        for j in range(nf):
            for gu in range(2):
                ar, imm = (15, 0) if (nf == 3 and j == 2) else (14, j * 64)
                A(f"ds_read_b128 {v(CSR+(j*2+gu)*4,4)}, {v(ar)} offset:{imm+gu*448}")
        A("s_mul_i32 s28, s22, 7")
        A("s_add_u32 s29, s28, s37")
        A("s_lshr_b32 s29, s29, 1")
        A("s_lshl_b32 s29, s29, 17")
        A("s_lshl_b32 s33, s21, 4")
        A("s_lshl_b32 s36, s31, 2")
        A("s_add_u32 s33, s33, s36")
        A("s_lshl_b32 s33, s33, 10")
        A("s_add_u32 s56, s29, s33")
        A("s_add_u32 s57, s56, 0x20000")
        A("s_add_u32 s29, s28, s39")
        A("s_and_b32 s36, s29, 1")
        A("s_lshl_b32 s36, s36, 3")
        A("s_lshr_b32 s29, s29, 1")
        A("s_lshl_b32 s29, s29, 17")
        A("s_add_u32 s58, s29, s33")
        A("s_add_u32 s58, s58, s36")
        T = SET[0]
        tix = 0
        A("s_waitcnt lgkmcnt(0)")
        if tag == "A": A("s_barrier")
        for jp in range(2):
            js = [2*jp, 2*jp+1] if 2*jp+1 < nf else [2*jp]
            for i in range(4):
                dst = T + 4 * (tix % 8); tix += 1
                c1 = v(STR+4*i+2, 2)
                nm_ = v(STR+4*i, 2)
                for j in js:
                    for gu in range(2):
                        a_ = acc(j, gu, i)
                        for h in range(2): A(f"v_pk_fma_f32 {v(a_+2*h,2)}, {v(CSR+(j*2+gu)*4+2*h,2)}, {nm_}, {v(a_+2*h,2)}")
                for j in js:
                    g_ = acc(j, 0, i)
                    for h in range(2): A(f"v_pk_mul_f32 {v(g_+2*h,2)}, {v(g_+2*h,2)}, {c1}")
                for j in js:
                    g_ = acc(j, 0, i)
                    for r in range(4): A(f"v_exp_f32 {v(g_+r)}, {v(g_+r)}")
                if len(js) == 1: A("s_nop 0")
                for j in js:
                    g_ = acc(j, 0, i)
                    for h in range(2): A(f"v_pk_fma_f32 {v(g_+2*h,2)}, {v(g_+2*h,2)}, {v(SGR+2*i,2)}, {v(SGR+2*i,2)}")
                for j in js:
                    g_ = acc(j, 0, i)
                    for r in range(4): A(f"v_rcp_f32 {v(g_+r)}, {v(g_+r)}")
                if len(js) == 1: A("s_nop 0")
                for j in js:
                    g_, u_ = acc(j, 0, i), acc(j, 1, i)
                    for h in range(2): A(f"v_pk_mul_f32 {v(u_+2*h,2)}, {v(u_+2*h,2)}, {v(g_+2*h,2)}")
                for jj, j in enumerate(js):
                    u_ = acc(j, 1, i)
                    for h in range(2):
                        A(f"v_cvt_pk_bf16_f32 {v(dst+2*jj+h)}, {v(u_+2*h)}, {v(u_+2*h+1)}")
                if len(js) == 2:
                    A(f"buffer_store_dwordx4 {v(dst,4)}, v6, s[52:55], {s(56+jp)} offen offset:{i*1024}{STF}")
                else:
                    A(f"buffer_store_dwordx2 {v(dst,2)}, v6, s[52:55], s58 offen offset:{i*1024}{STF}")
    A("s_cmp_ge_u32 s20, 4")
    A("s_cbranch_scc1 gu_B")
    body(4, "A")
    A("s_branch gu_end")
    A.label("gu_B")
    body(3, "B")
    A.label("gu_end")
    pub_prep(A, ph, 21, 22)


def ph_down2(A):
    ph = 5
    R, SLOT, NST = OPT("DR", 5), 32768, 28
    PSC = OPT("D2SC", 0)
    A("s_and_b32 s21, s2, 3")
    A("s_lshl_b32 s21, s21, 2")
    A("s_bfe_u32 s28, s2, 0x20003")
    A("s_add_u32 s21, s21, s28")
    A("s_lshr_b32 s22, s2, 5")
    A("s_bfe_u32 s26, s2, 0x10002")
    A("s_and_b32 s32, s20, 1")
    A("s_lshr_b32 s33, s20, 1")
    if PSC:
        A("s_add_u32 s39, s21, s22")
        A("s_and_b32 s39, s39, 3")
        A(f"s_mul_i32 s39, s39, {PSC//4}")
    srd(A, 12, 6, WS_WD, 7*MB)
    srd(A, 8, 6, WS_HACT, 2048*3584*2)
    wd = lambda: xdma(8192, PSC, 's[12:15]')
    xd = lambda: xdma(0x40000, PSC)
    srd(A, 52, 46, 0, 256)
    A("v_mov_b32 v20, 0")
    A("buffer_load_dwordx2 v[248:249], v20, s[52:55], 0 offen sc1")
    A("s_cmp_lt_u32 s20, 4")
    A("s_cbranch_scc1 d2_A0")
    A("s_lshl_b32 s28, s22, 1")
    A("s_lshr_b32 s29, s31, 1")
    A("s_add_u32 s28, s28, s29")
    A(f"s_mul_i32 s28, s28, {3584*128}")
    A(f"s_mul_i32 s29, s26, {1792*128}")
    A("s_add_u32 s28, s28, s29")
    A("s_and_b32 s29, s31, 1")
    A("s_lshl_b32 s29, s29, 12")
    A(f"s_add_u32 {s(sGo)}, s28, s29")
    if PSC: rot_init(A, 8192, PSC)
    A(f"s_lshl_b32 {s(sM)}, s31, 12")
    A(f"s_add_u32 {s(sM)}, {s(sM)}, 16384")
    WE = OPT("WE_D", 5)
    fill_ring(A, R, SLOT, wd, 0, WE)
    A("s_branch d2_C0")
    A.label("d2_A0")
    A("s_mul_i32 s28, s26, 56")
    A("s_lshr_b32 s29, s31, 1")
    A("s_add_u32 s28, s28, s29")
    A("s_lshl_b32 s28, s28, 7")
    A("s_lshl_b32 s29, s21, 3")
    A("s_add_u32 s28, s28, s29")
    A("s_and_b32 s29, s31, 1")
    A("s_lshl_b32 s29, s29, 2")
    A("s_add_u32 s28, s28, s29")
    A(f"s_lshl_b32 {s(sGo)}, s28, 10")
    if PSC: rot_init(A, 0x40000, PSC)
    A(f"s_lshl_b32 {s(sM)}, s31, 12")
    A.label("d2_C0")
    ACC = 32
    def acc(f, i): return ACC + (i * 2 + f) * 4
    SET = [64, 112]
    def xf(p, kk, i): return SET[p] + (kk * 4 + i) * 4
    def wf(p, kk, f): return SET[p] + 32 + (kk * 2 + f) * 4
    RES = 240
    A("s_lshl_b32 s34, s22, 2")
    A("s_add_u32 s34, s34, s33")
    A("s_lshl_b32 s34, s34, 7")
    A("s_lshl_b32 s35, s21, 3")
    A("s_lshl_b32 s36, s32, 2")
    A("s_add_u32 s35, s35, s36")
    A("s_lshl_b32 s36, s26, 1")
    A("s_add_u32 s35, s35, s36")
    A("s_add_u32 s34, s34, s35")
    A("s_lshl_b32 s34, s34, 10")
    A("s_lshl_b32 s35, s35, 15")
    A("s_lshl_b32 s36, s22, 8")
    A("s_add_u32 s35, s35, s36")
    A("s_lshl_b32 s36, s33, 6")
    A("s_add_u32 s35, s35, s36")
    A("s_add_u32 s36, s35, 32768")
    srd(A, 16, 6, WS_H, 4*MB)
    srd(A, 48, 44, 0, 4*MB)
    A("v_lshlrev_b32 v9, 11, v5")
    A("v_and_b32 v15, 1, v2")
    A("v_lshl_add_u32 v9, v15, 5, v9")
    A("v_lshrrev_b32 v15, 1, v2")
    A("v_lshl_add_u32 v9, v15, 4, v9")
    A("s_lshl_b32 s28, s32, 12")
    A("s_lshl_b32 s29, s26, 11")
    A("s_add_u32 s3, s28, s29")
    A("v_add_u32 v10, s3, v6")
    A("s_xor_b32 s3, s3, 2048")
    A("v_add_u32 v15, s3, v6")
    A("v_lshl_add_u32 v11, v2, 2, v3")
    A("v_lshlrev_b32 v11, 7, v11")
    A("v_lshl_add_u32 v11, v4, 3, v11")
    A("s_lshr_b32 s28, s33, 1")
    A("s_lshl_b32 s28, s28, 13")
    A("s_add_u32 s28, s28, 16384")
    A("v_add_u32 v11, s28, v11")
    A("v_bfe_u32 v12, v1, 3, 2")
    A("s_and_b32 s29, s33, 1")
    A("s_lshl_b32 s29, s29, 1")
    A("v_xor_b32 v13, s29, v12")
    A("v_lshl_add_u32 v13, v13, 5, v11")
    A("v_xor_b32 v14, 32, v13")
    for i in range(16): A(f"v_mov_b32 {v(acc(0,2)+i)}, 0")
    A("s_lshr_b32 s40, s21, 1")
    A("s_lshl_b32 s41, s26, 7")
    stamp(A, ph, 0)
    if OPT("XTAG", 3) == 3: wait_flags(A, 4, 40, 32)
    else: wait_flags(A, 4, 40, 16, soff=41)
    stamp(A, ph, 1)
    for i in range(2):
        A(f"buffer_load_dwordx4 {v(RES+4*i,4)}, v6, s[16:19], s34 offen offset:{i*1024}{LDF}")
    def accinit():
        for i in range(2):
            for f in range(2):
                for h in range(2):
                    src = RES + 4*i + 2*f + h
                    A(f"v_lshlrev_b32 {v(acc(f,i)+2*h)}, 16, {v(src)}")
                    A(f"v_and_b32 {v(acc(f,i)+2*h+1)}, 0xffff0000, {v(src)}")
        if OPT("XTAG", 3) == 2:
            for q in (163, 167, 170, 171): A(f"v_mov_b32 {v(q)}, v248")
            srd(A, 52, 6, WS_XB, 9*MB)
            A("s_lshl_b32 s28, s2, 3")
            A("s_add_u32 s28, s28, s20")
            A("s_xor_b32 s29, s28, 32")
            A("s_lshl_b32 s40, s28, 12")
            A("s_lshl_b32 s41, s29, 12")
        if OPT("XTAG", 3) == 3:
            srd(A, 52, 6, WS_O, 9*MB)
            A("s_and_b32 s28, s21, 1")
            A("s_lshl_b32 s28, s28, 4")
            A("s_lshl_b32 s29, s26, 3")
            A("s_add_u32 s28, s28, s29")
            A("s_add_u32 s28, s28, s22")
            A("s_lshr_b32 s29, s21, 1")
            A("s_lshl_b32 s40, s28, 17")
            A("s_lshl_b32 s3, s29, 14")
            A("s_add_u32 s40, s40, s3")
            A("s_lshl_b32 s3, s20, 11")
            A("s_add_u32 s40, s40, s3")
            A("s_xor_b32 s41, s40, 0x100000")
            A("s_lshr_b32 s42, s28, 1")
            A("s_lshl_b32 s42, s42, 14")
            A("s_lshl_b32 s3, s29, 11")
            A("s_add_u32 s42, s42, s3")
            A("s_and_b32 s3, s28, 1")
            A("s_lshl_b32 s3, s3, 10")
            A("s_add_u32 s42, s42, s3")
            A("s_lshl_b32 s3, s20, 7")
            A("s_add_u32 s42, s42, s3")
            A("s_xor_b32 s43, s42, 0x10000")
            A(f"s_add_u32 s42, s42, {WS_ST - WS_O}")
            A(f"s_add_u32 s43, s43, {WS_ST - WS_O}")
            A("v_mov_b32 v20, 0")
            return
        A("s_movk_i32 s42, 0xfff")
        A("v_mov_b32 v244, v248")
        A("v_lshrrev_b32 v245, 12, v248")
        A("v_alignbit_b32 v246, v249, v248, 24")
        A("v_lshrrev_b32 v247, 4, v249")
    def reads(p):
        out = []
        for kk in range(2):
            for f in range(2):
                for t in range(2):
                    out.append([f"ds_read_b64_tr_b16 {v(wf(p,kk,f)+2*t,2)}, {v(17+f)} offset:{kk*4096+t*2048}"])
            for i in range(4):
                out.append([f"ds_read_b128 {v(xf(p,kk,i),4)}, {v(16 if i < 2 else 19)} offset:{kk*8192+(i&1)*1024}"])
        return out
    def addr_upd():
        return [f"v_add_u32 v16, {s(sRd)}, v10", f"v_add_u32 v17, {s(sRd)}, v13", f"v_add_u32 v18, {s(sRd)}, v14", f"v_add_u32 v19, {s(sRd)}, v15"]
    def mfmas(p):
        return [mf16(acc(f, i), wf(p, kk, f), xf(p, kk, i)) for ii in (2, 0) for kk in range(2) for f in range(2) for i in (ii, ii + 1)]
    DST = [160, 161, 162, 164, 165, 166, 168, 169]
    send = []
    if OPT("XTAG", 3) == 2:
        send = ["s_nop 4"]
        for q in range(8):
            send.append(f"v_cvt_pk_bf16_f32 {v(DST[q])}, {v(acc(0,2)+2*q)}, {v(acc(0,2)+2*q+1)}")
            if q in (2, 5, 7): send.append(f"buffer_store_dwordx4 {v(160+4*(q//3),4)}, v6, s[52:55], s40 offen offset:{(q//3)*1024} sc1")
    if OPT("XTAG", 3) == 3:
        send = ["s_nop 4"]
        for q in range(8):
            send.append(f"v_cvt_pk_bf16_f32 {v(160+q)}, {v(acc(0,2)+2*q)}, {v(acc(0,2)+2*q+1)}")
            if q in (3, 7): send.append(f"buffer_store_dwordx4 {v(160+q-3,4)}, v6, s[52:55], s40 offen offset:{(q//4)*1024} sc1")
    hookS = {1: send, 'lastpos': 11} if send else {}
    A("s_cmp_ge_u32 s20, 4")
    A("s_cbranch_scc1 d2_B")
    fill_ring(A, R, SLOT, xd, bar=True)
    A(f"s_waitcnt vmcnt({4*R})")
    accinit()
    gemm_loop(A, ph, "d2_loopA", "A", R, SLOT, NST, 4, mfmas, reads, xd, addr_upd,
              {5: code_touch_list(A, "d2_epi", 251, 252), ('x', 4): 1, ('x', 3): 1, ('x', 2): 1, **hookS})
    A("s_branch d2_epi")
    A.label("d2_B")
    fill_rest(A, R, SLOT, wd, WE)
    A(f"s_waitcnt vmcnt({4*(R-WE)})")
    accinit()
    gemm_loop(A, ph, "d2_loopB", "B", R, SLOT, NST, 4, mfmas, reads, wd, addr_upd, hookS)
    A.label("d2_epi")
    if OPT("XTAG", 3) == 3:
        A(f"s_mov_b32 s28, {SPIN_MAX}")
        A("s_waitcnt vmcnt(0)")
        if OPT("XDBG", 0): stamp(A, ph, 0)
        A("s_mov_b64 exec, 1")
        A("buffer_store_dwordx2 v[248:249], v20, s[52:55], s42 offen sc1")
        A.label("d2_poll")
        A("buffer_load_dwordx2 v[22:23], v20, s[52:55], s43 offen sc1")
        A("s_waitcnt vmcnt(0)")
        A("v_cmp_ne_u64 vcc, v[248:249], v[22:23]")
        A("s_nop 1")
        A("s_cmp_eq_u64 vcc, 0")
        A("s_cbranch_scc1 d2_got")
        A("s_sleep 1")
        A("s_sub_u32 s28, s28, 1")
        A("s_cmp_lg_u32 s28, 0")
        A("s_cbranch_scc1 d2_poll")
        A.label("d2_got")
        A("s_mov_b64 exec, -1")
        if OPT("XDBG", 0): stamp(A, ph, 1)
        for j in range(2):
            A(f"buffer_load_dwordx4 {v(64+4*j,4)}, v6, s[52:55], s41 offen offset:{j*1024} sc1")
        T = 112
        for i in range(2):
            A("s_waitcnt vmcnt(1)")
            for q in range(4):
                A(f"v_lshlrev_b32 {v(84+2*q)}, 16, {v(64+4*i+q)}")
                A(f"v_and_b32 {v(85+2*q)}, 0xffff0000, {v(64+4*i+q)}")
            for q in range(4):
                A(f"v_pk_add_f32 {v(ACC+8*i+2*q,2)}, {v(ACC+8*i+2*q,2)}, {v(84+2*q,2)}")
            for q in range(4):
                A(f"v_cvt_pk_bf16_f32 {v(T+4*i+q)}, {v(ACC+8*i+2*q)}, {v(ACC+8*i+2*q+1)}")
            A("s_nop 1")
            A(f"v_permlane16_swap_b32 {v(T+4*i)}, {v(T+4*i+2)}")
            A(f"v_permlane16_swap_b32 {v(T+4*i+1)}, {v(T+4*i+3)}")
            A("s_nop 1")
            A(f"buffer_store_dwordx4 {v(T+4*i,4)}, v9, s[48:51], {s(35+i)} offen{OUTF}")
        if PROF:
            A("s_waitcnt vmcnt(0)")
            stamp(A, ph, 4)
        return
    if OPT("XTAG", 3) == 2:
        A(f"s_mov_b32 s28, {SPIN_MAX}")
        if OPT("XW", 1): A("s_waitcnt vmcnt(0)")
        if OPT("XDBG", 0): stamp(A, ph, 0)
        A.label("d2_poll")
        for j in range(3):
            A(f"buffer_load_dwordx4 {v(64+4*j,4)}, v6, s[52:55], s41 offen offset:{j*1024} sc1")
        A("s_waitcnt vmcnt(0)")
        A("v_xor_b32 v80, v248, v67")
        A("v_xor_b32 v81, v248, v71")
        A("v_xor_b32 v82, v248, v75")
        A("v_or3_b32 v80, v80, v81, v82")
        A("v_cmp_ne_u32 vcc, 0, v80")
        A("s_nop 1")
        A("s_cmp_eq_u64 vcc, 0")
        A("s_cbranch_scc1 d2_got")
        A(f"s_sleep {OPT('XSLEEP', 1)}")
        A("s_sub_u32 s28, s28, 1")
        A("s_cmp_lg_u32 s28, 0")
        A("s_cbranch_scc1 d2_poll")
        A.label("d2_got")
        if OPT("XDBG", 0): stamp(A, ph, 1)
        T = 112
        for i in range(2):
            for q in range(4):
                src = DST[4*i+q] - 96
                A(f"v_lshlrev_b32 {v(84+2*q)}, 16, {v(src)}")
                A(f"v_and_b32 {v(85+2*q)}, 0xffff0000, {v(src)}")
            for q in range(4):
                A(f"v_pk_add_f32 {v(ACC+8*i+2*q,2)}, {v(ACC+8*i+2*q,2)}, {v(84+2*q,2)}")
            for q in range(4):
                A(f"v_cvt_pk_bf16_f32 {v(T+4*i+q)}, {v(ACC+8*i+2*q)}, {v(ACC+8*i+2*q+1)}")
            A("s_nop 1")
            A(f"v_permlane16_swap_b32 {v(T+4*i)}, {v(T+4*i+2)}")
            A(f"v_permlane16_swap_b32 {v(T+4*i+1)}, {v(T+4*i+3)}")
            A("s_nop 1")
            A(f"buffer_store_dwordx4 {v(T+4*i,4)}, v9, s[48:51], {s(35+i)} offen{OUTF}")
        if PROF:
            A("s_waitcnt vmcnt(0)")
            stamp(A, ph, 4)
        return
    srd(A, 8, 6, WS_Q if OPT('XBQ', 0) else WS_XB, 9*MB)
    A("s_lshl_b32 s28, s2, 3")
    A("s_add_u32 s28, s28, s20")
    A("s_xor_b32 s29, s28, 32")
    A("s_lshl_b32 s40, s28, 12")
    A("s_lshl_b32 s41, s29, 12")
    XTAG = OPT("XTAG", 3)
    if XTAG:
        for j in range(4):
            for r in range(4):
                A(f"v_bfi_b32 {v(acc(0,2)+4*j+r)}, s42, {v(244+r)}, {v(acc(0,2)+4*j+r)}")
            A(f"buffer_store_dwordx4 {v(acc(0,2)+4*j,4)}, v6, s[8:11], s40 offen offset:{j*1024} sc1")
        A(f"s_mov_b32 s28, {SPIN_MAX}")
        if OPT("XW", 1): A("s_waitcnt vmcnt(0)")
        if OPT("XDBG", 0): stamp(A, ph, 0)
        A.label("d2_poll")
        for j in range(4):
            A(f"buffer_load_dwordx4 {v(64+4*j,4)}, v6, s[8:11], s41 offen offset:{j*1024} sc1")
        for j in range(4):
            A(f"s_waitcnt vmcnt({3-j})")
            for r in range(4):
                A(f"v_xor_b32 {v(80+4*j+r)}, {v(244+r)}, {v(64+4*j+r)}")
            A(f"v_or3_b32 {v(80+4*j)}, {v(80+4*j)}, {v(81+4*j)}, {v(82+4*j)}")
            if j: A(f"v_or3_b32 {v(80+4*j)}, {v(80+4*j)}, {v(83+4*j)}, {v(76+4*j)}")
            else: A(f"v_or_b32 {v(80)}, {v(80)}, {v(83)}")
        A("v_and_b32 v92, s42, v92")
        A("v_cmp_ne_u32 vcc, 0, v92")
        A("s_nop 1")
        A("s_cmp_eq_u64 vcc, 0")
        A("s_cbranch_scc1 d2_got")
        A("s_sleep 1")
        A("s_sub_u32 s28, s28, 1")
        A("s_cmp_lg_u32 s28, 0")
        A("s_cbranch_scc1 d2_poll")
        A.label("d2_got")
        if OPT("XDBG", 0): stamp(A, ph, 1)
    else:
        for j in range(4):
            A(f"buffer_store_dwordx4 {v(acc(0,2)+4*j,4)}, v6, s[8:11], s40 offen offset:{j*1024} sc1")
        A(f"s_lshl_b32 s42, s28, {OPT('XFS', 7)}")
        A(f"s_add_u32 s42, s42, {8*MB}")
        A(f"s_lshl_b32 s43, s29, {OPT('XFS', 7)}")
        A(f"s_add_u32 s43, s43, {8*MB}")
        A("v_mov_b32 v20, 0")
        A(f"s_mov_b32 s28, {SPIN_MAX}")
        A("s_waitcnt vmcnt(0)")
        if OPT("XDBG", 0): stamp(A, ph, 0)
        A("s_mov_b64 exec, 1")
        A("buffer_store_dwordx2 v[248:249], v20, s[8:11], s42 offen sc1")
        A.label("d2_poll")
        A("buffer_load_dwordx2 v[22:23], v20, s[8:11], s43 offen sc1")
        A("s_waitcnt vmcnt(0)")
        A("v_cmp_ne_u64 vcc, v[248:249], v[22:23]")
        A("s_nop 1")
        A("s_cmp_eq_u64 vcc, 0")
        A("s_cbranch_scc1 d2_got")
        if OPT("XSLEEP", 1): A(f"s_sleep {OPT('XSLEEP', 1)}")
        A("s_sub_u32 s28, s28, 1")
        A("s_cmp_lg_u32 s28, 0")
        A("s_cbranch_scc1 d2_poll")
        A.label("d2_got")
        A("s_mov_b64 exec, -1")
        if OPT("XDBG", 0): stamp(A, ph, 1)
        for j in range(4):
            A(f"buffer_load_dwordx4 {v(64+4*j,4)}, v6, s[8:11], s41 offen offset:{j*1024} sc1")
    T = 112
    for i in range(2):
        if not XTAG: A(f"s_waitcnt vmcnt({2 - 2*i + i})")
        for q in range(4):
            A(f"v_pk_add_f32 {v(ACC+8*i+2*q,2)}, {v(ACC+8*i+2*q,2)}, {v(64+8*i+2*q,2)}")
        for f in range(2):
            for h in range(2):
                A(f"v_cvt_pk_bf16_f32 {v(T+4*i+2*f+h)}, {v(acc(f,i)+2*h)}, {v(acc(f,i)+2*h+1)}")
        A("s_nop 1")
        A(f"v_permlane16_swap_b32 {v(T+4*i)}, {v(T+4*i+2)}")
        A(f"v_permlane16_swap_b32 {v(T+4*i+1)}, {v(T+4*i+3)}")
        A("s_nop 1")
        A(f"buffer_store_dwordx4 {v(T+4*i,4)}, v9, s[48:51], {s(35+i)} offen{OUTF}")
    if PROF:
        A("s_waitcnt vmcnt(0)")
        stamp(A, ph, 4)


def ph_down3(A):
    ph = 5
    R, SLOT = OPT("DR", 5), 32768
    N0 = OPT("N0", 26)
    T = R + (R % 2)
    A("s_and_b32 s21, s2, 3")
    A("s_lshl_b32 s21, s21, 2")
    A("s_bfe_u32 s28, s2, 0x20003")
    A("s_add_u32 s21, s21, s28")
    A("s_lshr_b32 s22, s2, 5")
    A("s_bfe_u32 s26, s2, 0x10002")
    A("s_and_b32 s32, s20, 1")
    A("s_lshr_b32 s33, s20, 1")
    srd(A, 12, 6, WS_WD, 7*MB)
    srd(A, 8, 6, WS_HACT, 2048*3584*2)
    wd = lambda: xdma(8192, 0, 's[12:15]')
    xd = lambda: xdma(0x40000, 0)
    A("s_cmp_lt_u32 s20, 4")
    A("s_cbranch_scc1 d3_A0")
    A("s_lshl_b32 s28, s22, 1")
    A("s_lshr_b32 s29, s31, 1")
    A("s_add_u32 s28, s28, s29")
    A(f"s_mul_i32 s28, s28, {3584*128}")
    A(f"s_mul_i32 s29, s26, {N0*64*128}")
    A("s_add_u32 s28, s28, s29")
    A("s_and_b32 s29, s31, 1")
    A("s_lshl_b32 s29, s29, 12")
    A(f"s_add_u32 {s(sGo)}, s28, s29")
    A(f"s_lshl_b32 {s(sM)}, s31, 12")
    A(f"s_add_u32 {s(sM)}, {s(sM)}, 16384")
    srd(A, 52, 46, 0, 256)
    A("v_mov_b32 v20, 0")
    A("buffer_load_dwordx2 v[248:249], v20, s[52:55], 0 offen sc1")
    fill_ring(A, R, SLOT, wd)
    A("s_branch d3_C0")
    A.label("d3_A0")
    A(f"s_mul_i32 s28, s26, {2*N0}")
    A("s_lshr_b32 s29, s31, 1")
    A("s_add_u32 s28, s28, s29")
    A("s_lshl_b32 s28, s28, 7")
    A("s_lshl_b32 s29, s21, 3")
    A("s_add_u32 s28, s28, s29")
    A("s_and_b32 s29, s31, 1")
    A("s_lshl_b32 s29, s29, 2")
    A("s_add_u32 s28, s28, s29")
    A(f"s_lshl_b32 {s(sGo)}, s28, 10")
    A(f"s_lshl_b32 {s(sM)}, s31, 12")
    A.label("d3_C0")
    ACC = 32
    def acc(f, i): return ACC + (i * 2 + f) * 4
    SET = [64, 112]
    def xf(p, kk, i): return SET[p] + (kk * 4 + i) * 4
    def wf(p, kk, f): return SET[p] + 32 + (kk * 2 + f) * 4
    RES = 224
    A("s_lshl_b32 s34, s22, 2")
    A("s_add_u32 s34, s34, s33")
    A("s_lshl_b32 s34, s34, 7")
    A("s_lshl_b32 s35, s21, 3")
    A("s_lshl_b32 s36, s32, 2")
    A("s_add_u32 s35, s35, s36")
    A("s_add_u32 s34, s34, s35")
    A("s_lshl_b32 s34, s34, 10")
    A("s_lshl_b32 s35, s35, 15")
    A("s_lshl_b32 s36, s22, 8")
    A("s_add_u32 s35, s35, s36")
    A("s_lshl_b32 s36, s33, 6")
    A("s_add_u32 s35, s35, s36")
    A("s_add_u32 s36, s35, 32768")
    A("s_add_u32 s37, s36, 32768")
    A("s_add_u32 s38, s37, 32768")
    srd(A, 16, 6, WS_H, 4*MB)
    A("s_cmp_eq_u32 s26, 0")
    A(f"s_cselect_b32 s18, 0, {4*MB}")
    A(f"s_cselect_b32 s39, {(N0-T)//2}, {(56-N0-T)//2}")
    srd(A, 48, 44, 0, 4*MB)
    A("v_lshlrev_b32 v9, 11, v5")
    A("v_and_b32 v15, 1, v2")
    A("v_lshl_add_u32 v9, v15, 5, v9")
    A("v_lshrrev_b32 v15, 1, v2")
    A("v_lshl_add_u32 v9, v15, 4, v9")
    A("s_lshl_b32 s28, s32, 12")
    A("v_add_u32 v10, s28, v6")
    A("v_lshl_add_u32 v11, v2, 2, v3")
    A("v_lshlrev_b32 v11, 7, v11")
    A("v_lshl_add_u32 v11, v4, 3, v11")
    A("s_lshr_b32 s28, s33, 1")
    A("s_lshl_b32 s28, s28, 13")
    A("s_add_u32 s28, s28, 16384")
    A("v_add_u32 v11, s28, v11")
    A("v_bfe_u32 v12, v1, 3, 2")
    A("s_and_b32 s29, s33, 1")
    A("s_lshl_b32 s29, s29, 1")
    A("v_xor_b32 v13, s29, v12")
    A("v_lshl_add_u32 v13, v13, 5, v11")
    A("v_xor_b32 v14, 32, v13")
    A("s_lshr_b32 s28, s2, 3")
    A("s_lshl_b32 s28, s28, 2")
    A("s_and_b32 s29, s2, 3")
    A("s_add_u32 s28, s28, s29")
    A("s_lshl_b32 s28, s28, 3")
    A("s_add_u32 s28, s28, s20")
    A("s_lshl_b32 s41, s28, 13")
    A("s_add_u32 s42, s41, 4096")
    A("s_lshl_b32 s43, s28, 7")
    A(f"s_add_u32 s43, s43, {8*MB}")
    A("s_lshr_b32 s40, s21, 1")
    stamp(A, ph, 0)
    wait_flags(A, 4, 40, 32)
    stamp(A, ph, 1)
    for i in range(4):
        A(f"buffer_load_dwordx4 {v(RES+4*i,4)}, v6, s[16:19], s34 offen offset:{i*1024}{LDF}")
    def accinit():
        for i in range(4):
            for f in range(2):
                for h in range(2):
                    src = RES + 4*i + 2*f + h
                    A(f"v_lshlrev_b32 {v(acc(f,i)+2*h)}, 16, {v(src)}")
                    A(f"v_and_b32 {v(acc(f,i)+2*h+1)}, 0xffff0000, {v(src)}")
    def reads(p):
        out = []
        for kk in range(2):
            for f in range(2):
                for t in range(2):
                    out.append([f"ds_read_b64_tr_b16 {v(wf(p,kk,f)+2*t,2)}, {v(17+f)} offset:{kk*4096+t*2048}"])
            for i in range(4):
                out.append([f"ds_read_b128 {v(xf(p,kk,i),4)}, v16 offset:{kk*8192+i*1024}"])
        return out
    def addr_upd():
        return [f"v_add_u32 v16, {s(sRd)}, v10", f"v_add_u32 v17, {s(sRd)}, v13", f"v_add_u32 v18, {s(sRd)}, v14"]
    def mfmas(p):
        return [mf16(acc(f, i), wf(p, kk, f), xf(p, kk, i)) for kk in range(2) for f in range(2) for i in range(4)]
    A("s_cmp_ge_u32 s20, 4")
    A("s_cbranch_scc1 d3_B")
    fill_ring(A, R, SLOT, xd, bar=True)
    A(f"s_waitcnt vmcnt({4*R})")
    accinit()
    gemm_loop(A, ph, "d3_loopA", "A", R, SLOT, 28, 4, mfmas, reads, xd, addr_upd, cnt_sgpr=39)
    A("s_branch d3_epi")
    A.label("d3_B")
    fill_ring(A, R, SLOT, None, bar=True)
    A("s_waitcnt vmcnt(0)")
    accinit()
    gemm_loop(A, ph, "d3_loopB", "B", R, SLOT, 28, 4, mfmas, reads, wd, addr_upd, cnt_sgpr=39)
    A.label("d3_epi")
    srd(A, 8, 6, WS_Q, 9*MB)
    A("v_mov_b32 v20, 0")
    A("s_cmp_lg_u32 s26, 0")
    A("s_cbranch_scc1 d3_recv")
    for j in range(8):
        A(f"buffer_store_dwordx4 {v(ACC+4*j,4)}, v6, s[8:11], {s(41 + j//4)} offen offset:{(j%4)*1024} sc1")
    A("s_waitcnt vmcnt(0)")
    A("s_mov_b64 exec, 1")
    A("buffer_store_dwordx2 v[248:249], v20, s[8:11], s43 offen sc1")
    A("s_mov_b64 exec, -1")
    A("s_branch d3_end")
    A.label("d3_recv")
    A(f"s_mov_b32 s28, {SPIN_MAX}")
    A("s_mov_b64 exec, 1")
    A.label("d3_poll")
    A("buffer_load_dwordx2 v[22:23], v20, s[8:11], s43 offen sc1")
    A("s_waitcnt vmcnt(0)")
    A("v_cmp_ne_u64 vcc, v[248:249], v[22:23]")
    A("s_nop 1")
    A("s_cmp_eq_u64 vcc, 0")
    A("s_cbranch_scc1 d3_got")
    A("s_sleep 1")
    A("s_sub_u32 s28, s28, 1")
    A("s_cmp_lg_u32 s28, 0")
    A("s_cbranch_scc1 d3_poll")
    A.label("d3_got")
    A("s_mov_b64 exec, -1")
    for j in range(8):
        A(f"buffer_load_dwordx4 {v(64+4*j,4)}, v6, s[8:11], {s(41 + j//4)} offen offset:{(j%4)*1024} sc1")
    TT = 112
    for i in range(4):
        A(f"s_waitcnt vmcnt({6 - 2*i + i})")
        for q in range(4):
            A(f"v_pk_add_f32 {v(ACC+8*i+2*q,2)}, {v(ACC+8*i+2*q,2)}, {v(64+8*i+2*q,2)}")
        for f in range(2):
            for h in range(2):
                A(f"v_cvt_pk_bf16_f32 {v(TT+4*i+2*f+h)}, {v(acc(f,i)+2*h)}, {v(acc(f,i)+2*h+1)}")
        A("s_nop 1")
        A(f"v_permlane16_swap_b32 {v(TT+4*i)}, {v(TT+4*i+2)}")
        A(f"v_permlane16_swap_b32 {v(TT+4*i+1)}, {v(TT+4*i+3)}")
        A("s_nop 1")
        A(f"buffer_store_dwordx4 {v(TT+4*i,4)}, v9, s[48:51], {s(35+i)} offen{OUTF}")
    A.label("d3_end")
    if PROF:
        A("s_waitcnt vmcnt(0)")
        stamp(A, ph, 4)
```

```python
from mk import *

def ph_qkv_raw(A):
    R, SLOT, NST = 4, 40960, 16
    SC = 16
    CQ = 65536
    A(f"s_load_dwordx4 s[40:43], s[0:1], {KA_X}")
    A(f"s_load_dwordx4 s[4:7], s[0:1], {KA_DBG}")
    A("s_memrealtime s[62:63]")
    A("v_lshrrev_b32 v1, 6, v0")
    A("s_nop 0")
    A("v_readfirstlane_b32 s20, v1")
    lane_decomp(A)
    A("s_and_b32 s21, s2, 1")
    A("s_lshl_b32 s21, s21, 3")
    A("s_bfe_u32 s28, s2, 0x30003")
    A("s_add_u32 s21, s21, s28")
    A("s_bfe_u32 s22, s2, 0x20001")
    A("s_lshl_b32 s22, s22, 2")
    A("s_lshr_b32 s28, s2, 6")
    A("s_add_u32 s22, s22, s28")
    A("s_and_b32 s31, s20, 3")
    A("s_mov_b32 s39, s21")
    A("s_lshl_b32 s32, s2, 3")
    A("s_add_u32 s32, s32, s20")
    A("s_lshl_b32 s33, s32, 11")
    A("v_lshrrev_b32 v13, 3, v1")
    A("v_and_b32 v14, 7, v1")
    A("s_cmp_ge_u32 s20, 4")
    A("s_cbranch_scc1 r_B0")
    A("v_lshlrev_b32 v7, 11, v13")
    A("v_xor_b32 v20, v14, v2")
    A("v_lshl_add_u32 v7, v20, 4, v7")
    A("v_xor_b32 v8, 64, v7")
    A(f"v_add_u32 v8, {8*2048-1024}, v8")
    A(f"v_add_u32 v9, {16*2048-2048}, v7")
    A(f"v_add_u32 v10, {16*2048-2048}, v8")
    A("v_mov_b32 v11, 0")
    A("v_mov_b32 v12, 0")
    A("s_lshl_b32 s28, s21, 18")
    A("s_lshl_b32 s29, s31, 16")
    A(f"s_add_u32 {s(sGo)}, s28, s29")
    rot_init(A, 128, SC)
    A(f"s_lshl_b32 {s(sM)}, s31, 12")
    A("s_branch r_C0")
    A.label("r_B0")
    A("v_mul_u32_u24 v7, 6144, v13")
    A("v_and_b32 v20, 1, v2")
    A("v_lshlrev_b32 v20, 1, v20")
    A("v_xor_b32 v20, v14, v20")
    A("v_lshl_add_u32 v7, v20, 4, v7")
    A("v_xor_b32 v8, 64, v7")
    A(f"v_add_u32 v8, {8*6144-1024}, v8")
    A("v_add_u32 v9, 2048, v7")
    A("v_add_u32 v10, 2048, v8")
    A("v_add_u32 v11, 4096, v7")
    A("v_add_u32 v12, 4096, v8")
    A(f"s_mul_i32 s28, s31, {16*6144}")
    A("s_lshl_b32 s29, s22, 7")
    A(f"s_add_u32 {s(sGo)}, s28, s29")
    rot_init(A, 64*6144, SC)
    A(f"s_lshl_b32 {s(sM)}, s31, 11")
    A(f"s_add_u32 {s(sM)}, {s(sM)}, 16384")
    A.label("r_C0")
    A("s_waitcnt lgkmcnt(0)")
    if PROF: A("s_mov_b32 s66, s62")
    srd(A, 8, 40, 0, 4*MB)
    srd(A, 12, 42, 0, 6*MB)
    def xd():
        g = [[f"s_add_u32 m0, {s(sWr)}, {s(sM)}", "s_nop 0", f"buffer_load_dwordx4 v7, s[8:11], {s(sGo)} offen lds"]]
        for j in range(1, 4):
            g.append([f"buffer_load_dwordx4 {v(7+j)}, s[8:11], {s(sGo)} offen offset:{j*1024} lds"])
        g[-1] += adv(128, SC)
        return g
    def wd():
        g = []
        for seg in range(3):
            g.append([f"s_add_u32 m0, {s(sWr)}, {s(sM)}" if seg == 0 else "s_add_u32 m0, m0, 8192", "s_nop 0",
                      f"buffer_load_dwordx4 {v(7+2*seg)}, s[12:15], {s(sGo)} offen lds"])
            g.append([f"buffer_load_dwordx4 {v(8+2*seg)}, s[12:15], {s(sGo)} offen offset:1024 lds"])
        g[-1] += adv(64*6144, SC)
        return g
    ACC = 64
    def acc(f, i): return ACC + (f * 4 + i) * 4
    SET = [112, 168]
    def xf(p, kk, i): return SET[p] + (kk * 4 + i) * 4
    def wf(p, kk, f): return SET[p] + 32 + (kk * 3 + f) * 4
    def rowloads():
        A("buffer_load_dwordx4 v[224:227], v6, s[8:11], s33 offen")
        A("buffer_load_dwordx4 v[228:231], v6, s[8:11], s33 offen offset:1024")
        if OPT("RT", 0):
            A("s_and_b32 s28, s22, 3")
            A("s_lshl_b32 s28, s28, 3")
            A("s_add_u32 s28, s28, s20")
            A("s_lshl_b32 s28, s28, 13")
            A("s_lshl_b32 s29, s21, 18")
            A("s_add_u32 s28, s28, s29")
            A("v_lshlrev_b32 v20, 7, v1")
            A("buffer_load_dword v255, v20, s[8:11], s28 offen")
    def setup():
        srd(A, 16, 4, 0, 256)
        A("s_or_b32 s28, s2, s20")
        A("s_cmp_lg_u32 s28, 0")
        l = A.newlabel("r_nopub")
        A(f"s_cbranch_scc1 {l}")
        A("s_or_b32 s62, s62, 1")
        A("v_mov_b32 v20, s62")
        A("v_mov_b32 v21, s63")
        A("v_mov_b32 v22, 0")
        A("s_mov_b64 exec, 1")
        A("buffer_store_dwordx2 v[20:21], v22, s[16:19], 0 offen sc1")
        A("s_mov_b64 exec, -1")
        A.label(l)
        srd(A, 44, 6, WS_RS, CQ + 16*3072*4)
        srd(A, 56, 6, WS_FL, 6 * 4096)
        A("v_mov_b32 v22, 0")
        A("v_mov_b32 v23, 0")
        A("s_and_b32 s28, s20, 1")
        A("s_lshl_b32 s28, s28, 13")
        A("v_lshrrev_b32 v20, 1, v5")
        A("v_xor_b32 v20, v20, v2")
        A("v_lshlrev_b32 v32, 7, v5")
        A("v_lshl_add_u32 v32, v20, 4, v32")
        A("v_add_u32 v32, s28, v32")
        A("v_xor_b32 v33, 64, v32")
        A("v_lshl_add_u32 v34, v2, 3, v3")
        A("v_lshlrev_b32 v34, 7, v34")
        A("v_lshl_add_u32 v34, v4, 3, v34")
        A("v_add_u32 v34, 16384, v34")
        A("v_bfe_u32 v20, v1, 3, 2")
        A("s_lshr_b32 s28, s20, 1")
        A("s_and_b32 s29, s28, 1")
        A("s_lshl_b32 s29, s29, 1")
        A("s_lshr_b32 s34, s28, 1")
        A("s_lshl_b32 s35, s34, 13")
        A("v_xor_b32 v35, s29, v20")
        A("v_lshl_add_u32 v35, v35, 5, v34")
        A("v_add_u32 v35, s35, v35")
        A("v_xor_b32 v36, 32, v35")
        A("v_xor_b32 v37, s28, v20")
        A("v_lshl_add_u32 v37, v37, 5, v34")
        A("v_add_u32 v37, 16384, v37")
        A("s_lshl_b32 s48, s34, 12")
        A("s_lshl_b32 s35, s22, 8")
        A("s_add_u32 s48, s48, s35")
        A("s_lshl_b32 s36, s29, 6")
        A("s_add_u32 s48, s48, s36")
        A(f"s_add_u32 s48, s48, {CQ}")
        A("s_lshl_b32 s49, s28, 6")
        A("s_add_u32 s49, s49, s35")
        A(f"s_add_u32 s49, s49, {CQ + 8192}")
        for i in range(48): A(f"v_mov_b32 {v(ACC+i)}, 0")
        for i in range(4): A(f"v_mov_b32 {v(24+i)}, 0x3f803f80")
    def rowstats():
        A("v_mov_b32 v28, 0")
        A("v_mov_b32 v29, 0")
        for j in range(8):
            A(f"v_lshlrev_b32 v20, 16, {v(224+j)}")
            A(f"v_and_b32 v21, 0xffff0000, {v(224+j)}")
            A("v_add_f32 v28, v28, v20")
            A("v_fmac_f32 v29, v20, v20")
            A("v_add_f32 v28, v28, v21")
            A("v_fmac_f32 v29, v21, v21")
        for r_ in (8, 4, 2, 1):
            A("s_nop 1")
            A(f"v_add_f32_dpp v28, v28, v28 row_ror:{r_} row_mask:0xf bank_mask:0xf")
            A(f"v_add_f32_dpp v29, v29, v29 row_ror:{r_} row_mask:0xf bank_mask:0xf")
        reduce_rows16_32(A, [28, 29], [20, 21])
        A(f"v_mul_f32 v28, {f32(-1/1024)}, v28")
        A(f"v_mul_f32 v29, {f32(1/1024)}, v29")
        A("v_fma_f32 v29, -v28, v28, v29")
        A("v_max_f32 v29, 0, v29")
        A(f"v_add_f32 v29, {f32(1e-5)}, v29")
        A("v_rsq_f32 v29, v29")
        A("s_nop 0")
        A("v_mul_f32 v28, v28, v29")
    def reads(p):
        out = []
        for kk in range(2):
            for f in range(3):
                for t in range(2):
                    out.append([f"ds_read_b64_tr_b16 {v(wf(p,kk,f)+2*t,2)}, {v(17+f)} offset:{kk*4096+t*512}"])
            for i in range(4):
                out.append([f"ds_read_b128 {v(xf(p,kk,i),4)}, {v(16-kk)} offset:{i*2048}"])
        return out
    def addr_upd():
        return [f"v_add_u32 v16, {s(sRd)}, v32", f"v_add_u32 v15, {s(sRd)}, v33", f"v_add_u32 v17, {s(sRd)}, v35",
                f"v_add_u32 v18, {s(sRd)}, v36", f"v_add_u32 v19, {s(sRd)}, v37"]
    def mfmas(p):
        M = []
        for kk in range(2):
            for f in range(3):
                for i in (range(4) if f % 2 == 0 else range(3, -1, -1)):
                    if f < 2: M.append(mf16(acc(f, i), wf(p, kk, f), xf(p, kk, i)))
                    else:     M.append(mf16(acc(f, i), xf(p, kk, i), wf(p, kk, f)))
        return M
    RQ = 224
    RV = [40, 44, 48, 52, 56, 60, 232, 236]
    CQK = 240
    CV = 251
    def stat_loads():
        L = ["s_and_b32 s28, s20, 1", "s_lshl_b32 s28, s28, 9", "s_lshl_b32 s29, s21, 10", "s_add_u32 s28, s28, s29",
             "v_lshlrev_b32 v20, 3, v5", "v_lshlrev_b32 v21, 5, v2",
             f"v_mul_u32_u24 v22, {3072*4}, v5", "v_lshl_add_u32 v22, v2, 4, v22",
             f"v_mul_u32_u24 v23, {4*3072*4}, v2", "v_lshl_add_u32 v23, v5, 2, v23"]
        for f in range(2):
            L.append(f"buffer_load_dwordx4 {v(CQK+4*f,4)}, v22, s[44:47], s48 offen offset:{64*f} sc1")
        for j in range(4):
            L.append(f"buffer_load_dword {v(CV+j)}, v23, s[44:47], s49 offen sc1")
            L.append(f"s_add_u32 s49, s49, {3072*4}")
        for i in range(4):
            L.append(f"buffer_load_dwordx2 {v(RQ+2*i,2)}, v20, s[44:47], s28 offen offset:{i*128} sc1")
        for i in range(4):
            for h in range(2):
                L.append(f"buffer_load_dwordx4 {v(RV[2*i+h],4)}, v21, s[44:47], s28 offen offset:{i*128+16*h} sc1")
        return L
    NSL = 18
    def pre_math():
        L = ["s_waitcnt vmcnt(0)"]
        L += [f"v_add_f32 {v(CV)}, {v(CV)}, {v(CV+1)}", f"v_add_f32 {v(CV+2)}, {v(CV+2)}, {v(CV+3)}", f"v_add_f32 {v(CV)}, {v(CV)}, {v(CV+2)}"]
        sw = [[f"v_mov_b32 {v(CV+1)}, {v(CV)}"], [f"v_permlane16_swap_b32 {v(CV+1)}, {v(CV)}"], [f"v_add_f32 {v(CV)}, {v(CV)}, {v(CV+1)}", f"v_mov_b32 {v(CV+1)}, {v(CV)}"],
              [f"v_permlane32_swap_b32 {v(CV+1)}, {v(CV)}"]]
        for q, r_ in enumerate((8, 4, 2, 1)):
            L += sw[q]
            for j in range(8):
                L.append(f"v_add_f32_dpp {v(CQK+j)}, {v(CQK+j)}, {v(CQK+j)} row_ror:{r_} row_mask:0xf bank_mask:0xf")
        L.append(f"v_add_f32 {v(CV)}, {v(CV)}, {v(CV+1)}")
        for i in range(8): L.append(f"v_mul_f32 {v(RQ+i)}, s39, {v(RQ+i)}")
        for i in range(4):
            for r_ in range(4):
                q = RV[2*i + r_//2] + 2*(r_ % 2)
                L.append(f"v_mul_f32 {v(q)}, {v(q)}, {v(CV)}")
        return L
    def flag_check():
        sk = A.newlabel("r_fc"); lp = A.newlabel("r_fl")
        L = ["s_cmp_lg_u32 s20, 0", f"s_cbranch_scc1 {sk}", f"s_mov_b32 s28, {SPIN_MAX}", f"{lp}:"]
        L.append(f"v_cmp_ne_u64 vcc, {s(sNON,2)}, v[40:41]")
        for j in range(1, 4):
            L += [f"v_cmp_ne_u64 s[60:61], {s(sNON,2)}, {v(40+2*j,2)}", "s_nop 1", "s_or_b64 vcc, vcc, s[60:61]"]
        L += ["s_nop 1", "s_cmp_eq_u64 vcc, 0", f"s_cbranch_scc1 {sk}"]
        for j in range(4):
            L.append(f"buffer_load_dwordx2 {v(40+2*j,2)}, v23, s[56:59], 0 offen offset:{j*512} sc1")
        L += ["s_waitcnt vmcnt(0)", "s_sub_u32 s28, s28, 1", "s_cmp_lg_u32 s28, 0", f"s_cbranch_scc1 {lp}", f"{sk}:"]
        return L
    scale_set = ["s_lshr_b32 s28, s20, 2", "s_cmp_eq_u32 s28, 0", f"s_cselect_b32 s39, {f32(QSCALE)}, 1.0"]
    ct = code_touch_list(A, "qkv_epi", 255, 39) if OPT("CTQ", 1) else []
    nct = 1 if ct else 0
    LP = OPT("LASTPOS", 0)
    tailA = {4: flag_check() + ct, ('x', 3): nct, 3: stat_loads() + scale_set, ('x', 2): NSL + nct, 1: pre_math(), 'lastpos': LP}
    tailB = {3: stat_loads() + scale_set, ('x', 2): NSL, 1: pre_math(), 'lastpos': LP}
    def top(role):
        mask = 0b110010 if role == "A" else 0b100000
        return [f"s_bitcmp1_b32 {mask}, {s(sCnt)}", f"s_cbranch_scc1 r_hook{role}", f"r_ret{role}:"]
    A("s_cmp_ge_u32 s20, 4")
    A("s_cbranch_scc1 r_B")
    for role, dma, nd, tl in (("A", xd, 4, tailA), ("B", wd, 6, tailB)):
        if role == "B": A.label("r_B")
        if OPT("RT", 0) == 2: rowloads()
        A(f"s_mov_b32 {s(sWr)}, 0")
        emit(A, dma())
        if OPT("RT", 0) != 2: rowloads()
        A("s_barrier")
        A(f"s_mov_b32 {s(sWr)}, {SLOT}")
        emit(A, dma())
        setup()
        A("s_barrier")
        for st in (2, 3):
            A(f"s_mov_b32 {s(sWr)}, {st*SLOT}")
            emit(A, dma())
            if st == 2: A("s_barrier")
        A(f"s_waitcnt vmcnt({3*nd + (1 if OPT('RT', 0) == 1 else 0)})")
        stamp(A, 1, 0)
        rowstats()
        stamp(A, 1, 1)
        gemm_loop(A, 1, f"r_loop{role}", role, R, SLOT, NST, nd, mfmas, reads, dma, addr_upd, tl, top_hook=top(role))
        A("s_branch qkv_epi")
        A.label(f"r_hook{role}")
        if role == "A":
            A(f"s_cmp_eq_u32 {s(sCnt)}, 5")
            A("s_cbranch_scc0 r_hookA2")
        for f in range(3):
            A(mf16(40 + 4*f, wf(0, 0, f), 24, "0"))
        for f in range(3):
            A(mf16(40 + 4*f, wf(0, 1, f), 24))
        A("v_cmp_ne_u32 vcc, 0, v5")
        A("v_mov_b32 v20, 0x7fffffff")
        A("s_bitcmp1_b32 s20, 0")
        A("s_cselect_b64 vcc, -1, vcc")
        A(f"s_mul_i32 s28, s21, {3072*4}")
        A("v_cndmask_b32 v21, v1, v20, vcc")
        A("s_add_u32 s29, s28, s49")
        A("s_add_u32 s28, s28, s48")
        A("v_cmp_ne_u32 vcc, 0, v1")
        A("v_mov_b32 v22, 0")
        A("s_lshl_b32 s3, s32, 3")
        A("v_cndmask_b32 v23, v22, v20, vcc")
        A("buffer_store_dwordx2 v[28:29], v23, s[44:47], s3 offen sc1")
        A("buffer_store_dwordx4 v[40:43], v21, s[44:47], s28 offen sc1")
        A("buffer_store_dwordx4 v[44:47], v21, s[44:47], s28 offen offset:64 sc1")
        A("buffer_store_dwordx4 v[48:51], v21, s[44:47], s29 offen sc1")
        if role == "A": A("buffer_load_dwordx2 v[248:249], v22, s[16:19], 0 offen sc1")
        A(f"s_branch r_ret{role}")
        if role == "A":
            A.label("r_hookA2")
            A("s_cmp_lg_u32 s20, 0")
            A("s_cbranch_scc1 r_retA")
            A(f"s_cmp_eq_u32 {s(sCnt)}, 4")
            A("s_cbranch_scc0 r_hookA3")
            A(f"s_mov_b32 s28, {SPIN_MAX}")
            A.label("r_nonce")
            A("v_readfirstlane_b32 s62, v248")
            A("v_readfirstlane_b32 s63, v249")
            A("s_nop 1")
            A("s_cmp_lg_u32 s62, 0")
            A("s_cbranch_scc1 r_gotnonce")
            A("buffer_load_dwordx2 v[248:249], v22, s[16:19], 0 offen sc1")
            A("s_waitcnt vmcnt(0)")
            A("s_sub_u32 s28, s28, 1")
            A("s_cmp_lg_u32 s28, 0")
            A("s_cbranch_scc1 r_nonce")
            A.label("r_gotnonce")
            A("s_lshl_b32 s3, s2, 3")
            A("buffer_store_dwordx2 v[248:249], v23, s[56:59], s3 offen sc1")
            A("s_branch r_retA")
            A.label("r_hookA3")
            A("v_lshlrev_b32 v23, 3, v1")
            for j in range(4):
                A(f"buffer_load_dwordx2 {v(40+2*j,2)}, v23, s[56:59], 0 offen offset:{j*512} sc1")
            A("s_branch r_retA")
    A.label("qkv_epi")
    A(f"s_load_dwordx2 s[40:41], s[0:1], {KA_WO}")
    A(f"s_load_dwordx4 s[44:47], s[0:1], {KA_WG}")
    A(f"s_load_dwordx2 s[42:43], s[0:1], {KA_WD}")
    srd(A, 16, 6, WS_Q, 12*MB)
    A("v_lshlrev_b32 v9, 9, v2")
    A("v_lshrrev_b32 v7, 3, v5")
    A("v_lshl_add_u32 v7, v7, 8, v9")
    A("v_and_b32 v8, 7, v5")
    A("v_lshl_add_u32 v7, v8, 4, v7")
    A("v_lshl_add_u32 v8, v5, 4, v9")
    A("s_lshr_b32 s28, s20, 1")
    A("s_and_b32 s29, s28, 1")
    A("s_lshr_b32 s32, s28, 1")
    A("s_and_b32 s33, s20, 1")
    A("s_lshl_b32 s34, s21, 2")
    A("s_lshl_b32 s33, s33, 1")
    A("s_add_u32 s34, s34, s33")
    A("s_lshl_b32 s34, s34, 11")
    A("s_lshl_b32 s35, s22, 1")
    A("s_add_u32 s36, s35, s29")
    A("s_lshl_b32 s36, s36, 17")
    A("s_add_u32 s36, s36, s34")
    A("s_lshl_b32 s37, s32, 22")
    A("s_add_u32 s36, s36, s37")
    A("s_add_u32 s38, s35, s32")
    A("s_lshl_b32 s38, s38, 17")
    A("s_add_u32 s38, s38, s34")
    A("s_lshl_b32 s37, s29, 8")
    A("s_add_u32 s38, s38, s37")
    A(f"s_add_u32 s38, s38, {8*MB}")
    T = 128
    for pr in range(2):
        for ii in range(2):
            i = 2*pr + ii
            for r_ in range(4):
                q = RV[2*i + r_//2] + 2*(r_ % 2)
                A(f"v_fma_f32 {v(acc(2,i)+r_)}, {v(acc(2,i)+r_)}, {v(q+1)}, {v(q)}")
            for h in range(2):
                A(f"v_cvt_pk_bf16_f32 {v(T+4*pr+2*ii+h)}, {v(acc(2,i)+2*h)}, {v(acc(2,i)+2*h+1)}")
        A(f"buffer_store_dwordx4 {v(T+4*pr,4)}, v8, s[16:19], s38 offen offset:{pr*2048}{STF}")
    T = 112
    for i in range(4):
        ab = v(RQ+2*i, 2)
        for f in range(2):
            for h in range(2):
                A(f"v_pk_mul_f32 {v(acc(f,i)+2*h,2)}, {v(acc(f,i)+2*h,2)}, {ab} op_sel:[0,1] op_sel_hi:[1,1]")
        for f in range(2):
            for h in range(2):
                A(f"v_pk_fma_f32 {v(acc(f,i)+2*h,2)}, {v(CQK+4*f+2*h,2)}, {ab}, {v(acc(f,i)+2*h,2)} op_sel_hi:[1,0,1]")
        for f in range(2):
            for h in range(2):
                A(f"v_cvt_pk_bf16_f32 {v(T+4*i+2*f+h)}, {v(acc(f,i)+2*h)}, {v(acc(f,i)+2*h+1)}")
        A(f"buffer_store_dwordx4 {v(T+4*i,4)}, v7, s[16:19], s36 offen offset:{(i>>1)*2048+(i&1)*128}{STF}")
    pub_prep(A, 1, 22, 21)
    A("s_waitcnt lgkmcnt(0)")
```

```python
import sys, math, os, struct
from asmlib import *

MB = 1 << 20
WS_XN, WS_Q, WS_K, WS_VT, WS_O, WS_H, WS_ST, WS_CS, WS_FL, WS_HACT = 0, 4*MB, 8*MB, 12*MB, 16*MB, 20*MB, 24*MB, 25*MB, 26*MB, 32*MB
if int(os.environ.get('HACT0', '1')): WS_HACT = 0
WS_DBG = 48*MB
WS_RS = 27*MB
WS_XB = 72*MB
WS_WD = 64*MB
KA_X, KA_WQKV, KA_WO, KA_BX, KA_WG, KA_WU, KA_WD, KA_OUT, KA_DBG, KA_WS = 0, 8, 16, 24, 32, 40, 48, 56, 64, 72
LOG2E = math.log2(math.e)
QSCALE = LOG2E / math.sqrt(32.0)
def f32(x): return hex(struct.unpack("<I", struct.pack("<f", x))[0])
def OPT(name, default): return int(os.environ.get(name, str(default)))
def SOPT(name, default): return os.environ.get(name, default)
PROF = OPT("PROF", 0)
STF = " sc1"
LDF = SOPT("LDF", " sc1")
OUTF = SOPT("OUTF", "")
NAME = "sequential_preLN__mha_block__glu_gated_glu__prompt_kernel"

sNON = 62
def stamp(A, ph, i):
    if not PROF: return
    A("s_memrealtime s[64:65]")
    A("s_waitcnt lgkmcnt(0)")
    A(f"s_mov_b32 {s(66+ph*6+i)}, s64")
def cyc(A, ph, end):
    if not PROF: return
    A("s_memtime s[64:65]")
    A("s_waitcnt lgkmcnt(0)")
    if not end: A(f"s_mov_b32 {s(66+ph*6+5)}, s64")
    else: A(f"s_sub_u32 {s(66+ph*6+5)}, s64, {s(66+ph*6+5)}")
def stamp_flush(A):
    if not PROF: return
    if PROF == 2:
        A(f"s_load_dwordx2 s[4:5], s[0:1], {KA_DBG}")
        A("s_waitcnt lgkmcnt(0)")
        srd(A, 8, 4, 0, 256)
        A(f"s_cmp_lg_u32 s2, {OPT('DBGWG', 0)}")
        A("s_cbranch_scc1 the_end")
        A("s_cmp_lg_u32 s20, 0")
        A("s_cbranch_scc1 the_end")
        A("s_mov_b64 exec, 1")
        A("v_mov_b32 v0, 0")
        sel = [(0,3),(0,4),(1,1),(1,2),(1,3),(2,2),(2,3),(3,2),(3,3),(4,2),(4,3),(5,2),(5,3),(5,4)]
        for i, (ph, j) in enumerate(sel):
            A(f"s_sub_u32 s3, {s(66+ph*6+j)}, s66")
            A(f"v_mov_b32 {v(1+i)}, s3")
            A(f"buffer_store_dword {v(1+i)}, v0, s[8:11], 0 offen offset:{8+4*i}")
        return
    A("s_mov_b64 exec, 1")
    srd(A, 8, 6, WS_DBG, 16*MB)
    A("s_lshl_b32 s3, s2, 3")
    A("s_add_u32 s3, s3, s20")
    A("s_lshl_b32 s3, s3, 8")
    A("v_mov_b32 v0, 0")
    for i in range(36):
        A(f"v_mov_b32 {v(1+i)}, {s(66+i)}")
    for i in range(36):
        A(f"buffer_store_dword {v(1+i)}, v0, s[8:11], s3 offen offset:{4*i}")

def mf16(d, A_, B_, c=None):
    c = v(d, 4) if c is None else c
    return f"v_mfma_f32_16x16x32_bf16 {v(d,4)}, {v(A_,4)}, {v(B_,4)}, {c}"
def mf32(d, A_, B_, c=None):
    c = v(d, 16) if c is None else c
    return f"v_mfma_f32_32x32x16_bf16 {v(d,16)}, {v(A_,4)}, {v(B_,4)}, {c}"
def reduce_rows16_32(A, xs, ts):
    for op in ("v_permlane16_swap_b32", "v_permlane32_swap_b32"):
        for x, t in zip(xs, ts): A(f"v_mov_b32 {v(t)}, {v(x)}")
        A("s_nop 1")
        for x, t in zip(xs, ts): A(f"{op} {v(t)}, {v(x)}")
        A("s_nop 1")
        for x, t in zip(xs, ts): A(f"v_add_f32 {v(x)}, {v(x)}, {v(t)}")
def lane_decomp(A):
    A("v_and_b32 v1, 63, v0")
    A("v_lshrrev_b32 v2, 4, v1")
    A("v_bfe_u32 v3, v1, 2, 2")
    A("v_and_b32 v4, 3, v1")
    A("v_and_b32 v5, 15, v1")
    A("v_lshlrev_b32 v6, 4, v1")
def emit(A, L):
    for i in L:
        if isinstance(i, list): emit(A, i)
        else: A(i)

SPIN_MAX = 1 << 18
def pub_prep(A, ph, sg, sj):
    A(f"s_lshl_b32 s3, {s(sg)}, 8")
    A(f"s_lshl_b32 s28, {s(sj)}, 3")
    A("s_add_u32 s3, s3, s28")
    A(f"s_add_u32 s3, s3, {ph*4096}")
    A("v_mov_b32 v250, s3")
    if OPT("PUBFIRST", 1) and ph > 0:
        A("s_waitcnt vmcnt(0)")
        stamp(A, ph, 4)
        publish(A, force=True)
def publish(A, force=False):
    if OPT("PUBFIRST", 1) and not force: return
    srd(A, 56, 6, WS_FL, 6 * 4096)
    A("s_barrier")
    skip = A.newlabel("pub_skip")
    A("s_cmp_lg_u32 s20, 0")
    A(f"s_cbranch_scc1 {skip}")
    A("s_mov_b64 exec, 1")
    A("buffer_store_dwordx2 v[248:249], v250, s[56:59], 0 offen sc1")
    A("s_mov_b64 exec, -1")
    A.label(skip)

def wait_flags(A, ph, sg, n, also_all=None, soff=None):
    skip = A.newlabel("wf_skip"); loop = A.newlabel("wf_loop"); done = A.newlabel("wf_done")
    A("s_cmp_lg_u32 s20, 0")
    A(f"s_cbranch_scc1 {skip}")
    srd(A, 56, 6, WS_FL, 6 * 4096)
    A(f"s_lshl_b32 s3, {s(sg)}, 8")
    A(f"s_add_u32 s3, s3, {ph*4096}")
    if soff is not None: A(f"s_add_u32 s3, s3, {s(soff)}")
    A(f"v_and_b32 v22, {n-1}, v0")
    A("v_lshlrev_b32 v22, 3, v22")
    A("v_lshlrev_b32 v23, 3, v0")
    if also_all is not None: A(f"s_mov_b32 s29, {also_all*4096}")
    A(f"s_mov_b32 s28, {SPIN_MAX}")
    PP = OPT("PPOLL", 0)
    if also_all is not None:
        l2 = A.newlabel("wf_all")
        A.label(l2)
        for j in range(4):
            A(f"buffer_load_dwordx2 {v(24+2*j,2)}, v23, s[56:59], s29 offen offset:{j*512} sc1")
        A("buffer_load_dwordx2 v[252:253], v22, s[56:59], s3 offen sc1")
        A("s_waitcnt vmcnt(1)")
        A(f"v_cmp_ne_u64 vcc, {s(sNON,2)}, v[24:25]")
        for j in range(1, 4):
            A(f"v_cmp_ne_u64 s[60:61], {s(sNON,2)}, {v(24+2*j,2)}")
            A("s_nop 1")
            A("s_or_b64 vcc, vcc, s[60:61]")
        A("s_sub_u32 s28, s28, 1")
        A("s_cmp_eq_u32 s28, 0")
        A(f"s_cbranch_scc1 {skip}")
        A("s_cmp_eq_u64 vcc, 0")
        A(f"s_cbranch_scc0 {l2}")
    else:
        A("buffer_load_dwordx2 v[252:253], v22, s[56:59], s3 offen sc1")
    if PP:
        A(f"s_sleep {PP}")
        A.label(loop)
        for a_, b_ in ((252, 254), (254, 252)):
            A(f"buffer_load_dwordx2 {v(b_,2)}, v22, s[56:59], s3 offen sc1")
            A("s_waitcnt vmcnt(1)")
            A(f"v_cmp_ne_u64 vcc, {s(sNON,2)}, {v(a_,2)}")
            A("s_nop 1")
            A("s_cmp_eq_u64 vcc, 0")
            A(f"s_cbranch_scc1 {done}")
        A("s_sub_u32 s28, s28, 1")
        A("s_cmp_lg_u32 s28, 0")
        A(f"s_cbranch_scc1 {loop}")
        A.label(done)
    else:
        A.label(loop)
        A("s_waitcnt vmcnt(0)")
        A(f"v_cmp_ne_u64 vcc, {s(sNON,2)}, v[252:253]")
        A("s_nop 1")
        A("s_cmp_eq_u64 vcc, 0")
        A(f"s_cbranch_scc1 {skip}")
        A(f"s_sleep {OPT('SLEEP', 1)}")
        A("buffer_load_dwordx2 v[252:253], v22, s[56:59], s3 offen sc1")
        A("s_sub_u32 s28, s28, 1")
        A("s_cmp_lg_u32 s28, 0")
        A(f"s_cbranch_scc1 {loop}")
    A.label(skip)
    A("s_barrier")

sRd, sWr, sGo, sCnt, sM = 23, 24, 25, 27, 30
def ring_advance(slot, R):
    return [f"s_mov_b32 {s(sWr)}, {s(sRd)}",
            f"s_add_u32 {s(sRd)}, {s(sRd)}, {slot}",
            f"s_cmp_eq_u32 {s(sRd)}, {slot*R}",
            f"s_cselect_b32 {s(sRd)}, 0, {s(sRd)}"]

def adv(d, SC=0):
    if not SC: return [f"s_add_u32 {s(sGo)}, {s(sGo)}, {hex(d)}"]
    return ["s_add_u32 s38, s38, 1",
            "s_add_u32 s3, s38, s39",
            f"s_and_b32 s3, s3, {SC-1}",
            f"s_andn2_b32 {s(sGo)}, s38, {SC-1}",
            f"s_or_b32 s3, s3, {s(sGo)}",
            f"s_mul_i32 s3, s3, {hex(d)}",
            f"s_add_u32 {s(sGo)}, s3, s37"]
def rot_init(A, d, SC):
    A(f"s_mov_b32 s37, {s(sGo)}")
    A("s_mov_b32 s38, -1")
    emit(A, adv(d, SC))

def xdma(dX, SC=0, srd_='s[8:11]'):
    g = [[f"s_add_u32 m0, {s(sWr)}, {s(sM)}", "s_nop 0",
          f"buffer_load_dwordx4 v6, {srd_}, {s(sGo)} offen{LDF} lds"]]
    for j in range(1, 4):
        g.append([f"buffer_load_dwordx4 v6, {srd_}, {s(sGo)} offen offset:{j*1024}{LDF} lds"])
    g[-1] += adv(dX, SC)
    return g

def fill_ring(A, R, SLOT, dma, lo=0, hi=None, bar=False):
    for st in range(lo, R if hi is None else hi):
        if dma is not None:
            A(f"s_mov_b32 {s(sWr)}, {st*SLOT}")
            emit(A, dma())
        if bar and st < R - 1: A("s_barrier")

def fill_rest(A, R, SLOT, dma, done):
    st = done
    for b in range(R - 1):
        A("s_barrier")
        if st < R:
            A(f"s_mov_b32 {s(sWr)}, {st*SLOT}")
            emit(A, dma()); st += 1
    assert st == R

def gemm_loop(A, ph, label, role, R, SLOT, NST, ndma, mfmas, reads, dma_groups, addr_upd, tail_hook=None, cnt_sgpr=None, top_hook=None):
    T = R + (R % 2) if OPT("TAIL", 1) else 0
    A(f"s_mov_b32 {s(sRd)}, 0")
    emit(A, addr_upd())
    A(f"s_waitcnt vmcnt({ndma*(R-1)})")
    A("s_barrier")
    stamp(A, ph, 2); cyc(A, ph, 0)
    emit(A, reads(0))
    emit(A, ring_advance(SLOT, R))
    emit(A, addr_upd())
    A(f"s_mov_b32 {s(sCnt)}, {(NST-T)//2 if cnt_sgpr is None else s(cnt_sgpr)}")
    PRE = OPT("PRE_" + str(ph), OPT("PRE", 0))
    BK = OPT("BK", 1)
    def snake(M):
        return M
    def stage(p, dma, nout, last, hook=None, extra=0, loopend=False, inloop=False):
        M = mfmas(p); Rd = reads(1 - p); D = dma_groups() if dma else []
        if hook: D = D + [hook]
        nm = len(M)
        if last:
            A("s_waitcnt lgkmcnt(0)")
            if (tail_hook or {}).get('endbar'): A("s_barrier")
            if hook:
                h0 = (tail_hook or {}).get('lastpos', 0)
                emit(A, interleave(M, [[x] for x in hook], h0, nm))
            else:
                emit(A, M)
            return
        book = ring_advance(SLOT, R) + addr_upd()
        cnt = [f"s_sub_u32 {s(sCnt)}, {s(sCnt)}, 1", f"s_cmp_lg_u32 {s(sCnt)}, 0"] if loopend else []
        if role == "A":
            pre = min(PRE, nm // 2)
            if pre:
                A("s_waitcnt lgkmcnt(0)")
                emit(A, M[:pre])
                A(f"s_waitcnt vmcnt({ndma*nout+extra})")
            else:
                A(f"s_waitcnt vmcnt({ndma*nout+extra}) lgkmcnt(0)")
            A("s_barrier")
            if inloop and p == 0 and top_hook: emit(A, top_hook)
            Mr = M[pre:]; nr = len(Mr)
            if BK and dma:
                m0set = D[0][0]; D = [D[0][2:]] + D[1:]
                emit(A, interleave(Mr, Rd, 0, max(1, nr - 2)))
                A(m0set)
                emit(A, book)
                emit(A, D)
                emit(A, cnt)
            else:
                emit(A, interleave(Mr, Rd, 0, max(1, nr - 2) if dma else max(1, (2 * nr) // 3)))
                emit(A, D)
                emit(A, book); emit(A, cnt)
        else:
            A(f"s_waitcnt vmcnt({ndma*nout+extra}) lgkmcnt(0)")
            A("s_barrier")
            if inloop and p == 0 and top_hook: emit(A, top_hook)
            emit(A, D)
            if BK:
                h = max(1, (2 * nm) // 3)
                emit(A, interleave(M[:h], Rd))
                emit(A, interleave(M[h:], [[x] for x in book[:2]] + [book[2:4]] + [[x] for x in book[4:]] + ([cnt] if cnt else []), 0, max(1, nm - h - 1)))
            else:
                emit(A, interleave(M, Rd, 0, max(1, (2 * nm) // 3)))
                emit(A, book); emit(A, cnt)
    A.raw(".p2align 6")
    A.label(label)
    for p in range(2): stage(p, True, R - 2, False, loopend=(p == 1), inloop=True)
    A(f"s_cbranch_scc1 {label}")
    for st in range(NST - T, NST):
        stage(st % 2, st + R < NST, min(R - 2, NST - 2 - st), st == NST - 1, (tail_hook or {}).get(NST - st), (tail_hook or {}).get(('x', NST - st), 0))
    if not T: A("s_waitcnt lgkmcnt(0)")
    A("s_nop 7")
    if OPT("ENDBAR", 0) or (ph == 1 and OPT("RAW", 0)): A("s_barrier")
    cyc(A, ph, 1); stamp(A, ph, 3)

def code_touch(A, vd=26):
    if not OPT("CT", 0): return
    l = A.newlabel("ct")
    A("s_getpc_b64 s[56:57]")
    A.label(l)
    A(f"s_sub_u32 s56, s56, {l}-{NAME}")
    A("s_subb_u32 s57, s57, 0")
    A(f"s_mov_b32 s58, code_end-{NAME}")
    A("s_mov_b32 s59, 0x20000")
    A("v_lshlrev_b32 v20, 7, v1")
    A("s_lshl_b32 s28, s31, 13")
    A(f"buffer_load_dword {v(vd)}, v20, s[56:59], s28 offen")

def code_touch_list(A, frm, vd, va):
    l = A.newlabel("ct")
    return ["s_getpc_b64 s[56:57]", f"{l}:",
            f"s_add_u32 s56, s56, {frm}-{l}", "s_addc_u32 s57, s57, 0",
            "s_and_b32 s56, s56, 0xffffff80",
            f"s_mov_b32 s58, code_end-{frm}", "s_mov_b32 s59, 0x20000",
            f"v_lshlrev_b32 {v(va)}, 7, v1", "s_lshl_b32 s28, s31, 13",
            f"buffer_load_dword {v(vd)}, {v(va)}, s[56:59], s28 offen"]

def w_swz_voff(A, dst, rowstride):
    A(f"v_lshrrev_b32 {v(dst)}, 3, v1")
    A(f"v_mul_u32_u24 {v(dst)}, {rowstride}, {v(dst)}")
    A("v_and_b32 v20, 7, v1")
    A("v_lshlrev_b32 v21, 1, v2")
    A("v_xor_b32 v20, v20, v21")
    A(f"v_lshl_add_u32 {v(dst)}, v20, 4, {v(dst)}")

def ph_ln_qkv(A):
    R, SLOT, NST = 4, 40960, 16
    A(f"s_load_dwordx4 s[40:43], s[0:1], {KA_X}")
    A(f"s_load_dwordx4 s[4:7], s[0:1], {KA_DBG}")
    A("s_memrealtime s[62:63]")
    A("v_lshrrev_b32 v1, 6, v0")
    A("s_nop 0")
    A("v_readfirstlane_b32 s20, v1")
    lane_decomp(A)
    A("s_and_b32 s21, s2, 1")
    A("s_lshl_b32 s21, s21, 3")
    A("s_bfe_u32 s28, s2, 0x30003")
    A("s_add_u32 s21, s21, s28")
    A("s_bfe_u32 s22, s2, 0x20001")
    A("s_lshl_b32 s22, s22, 2")
    A("s_lshr_b32 s28, s2, 6")
    A("s_add_u32 s22, s22, s28")
    A("s_and_b32 s31, s20, 3")
    QSC = OPT("QSC", 16)
    A("s_and_b32 s39, s21, 3")
    A(f"s_mul_i32 s39, s39, {QSC//4}")
    A("s_cmp_ge_u32 s20, 4")
    A("s_cbranch_scc1 p0_B")
    A("v_and_b32 v7, 7, v1")
    A("v_bfe_u32 v8, v1, 3, 2")
    A("v_lshrrev_b32 v9, 5, v1")
    A("v_lshlrev_b32 v10, 11, v7")
    A("v_lshl_add_u32 v10, v9, 6, v10")
    A("v_lshl_add_u32 v10, v8, 3, v10")
    A("s_lshl_b32 s3, s2, 14")
    A("s_lshl_b32 s28, s20, 9")
    A("s_add_u32 s3, s3, s28")
    A("s_waitcnt lgkmcnt(0)")
    if PROF: A("s_mov_b32 s66, s62")
    srd(A, 8, 40, 0, 4*MB)
    for i in range(4):
        A(f"buffer_load_dwordx2 {v(32+4*i,2)}, v10, s[8:11], s3 offen offset:{i*128}")
        A(f"buffer_load_dwordx2 {v(34+4*i,2)}, v10, s[8:11], s3 offen offset:{i*128+32}")
    srd(A, 16, 4, 0, 256)
    A("s_or_b32 s28, s2, s20")
    A("s_cmp_lg_u32 s28, 0")
    A("s_cbranch_scc1 p0_nopub")
    A("s_or_b32 s62, s62, 1")
    A("v_mov_b32 v20, s62")
    A("v_mov_b32 v21, s63")
    A("v_mov_b32 v22, 0")
    A("s_mov_b64 exec, 1")
    A("buffer_store_dwordx2 v[20:21], v22, s[16:19], 0 offen sc1")
    A("s_mov_b64 exec, -1")
    A("s_waitcnt vmcnt(0)")
    A.label("p0_nopub")
    srd(A, 12, 6, WS_XN, 4*MB)
    A("v_lshlrev_b32 v11, 17, v9")
    A("v_lshl_add_u32 v11, v7, 4, v11")
    A("v_lshl_add_u32 v11, v8, 8, v11")
    A("s_lshr_b32 s32, s2, 1")
    A("s_lshl_b32 s32, s32, 10")
    A("s_and_b32 s33, s2, 1")
    A("s_lshl_b32 s33, s33, 7")
    A("s_add_u32 s32, s32, s33")
    A("s_lshl_b32 s33, s20, 20")
    A("s_add_u32 s32, s32, s33")
    A("s_add_u32 s33, s32, 0x40000")
    A("s_add_u32 s34, s32, 0x80000")
    A("s_add_u32 s35, s32, 0xc0000")
    A("v_mov_b32 v24, 0")
    A("v_mov_b32 v25, 0")
    U = 64
    for j in range(16):
        if j % 2 == 0: A(f"s_waitcnt vmcnt({7 - j//2})")
        A(f"v_lshlrev_b32 {v(U+2*j)}, 16, {v(32+j)}")
        A(f"v_and_b32 {v(U+1+2*j)}, 0xffff0000, {v(32+j)}")
        A(f"v_add_f32 v24, v24, {v(U+2*j)}")
        A(f"v_fmac_f32 v25, {v(U+2*j)}, {v(U+2*j)}")
        A(f"v_add_f32 v24, v24, {v(U+1+2*j)}")
        A(f"v_fmac_f32 v25, {v(U+1+2*j)}, {v(U+1+2*j)}")
    A("v_mov_b32 v22, 0")
    A("buffer_load_dwordx2 v[28:29], v22, s[16:19], 0 offen sc1")
    A("v_add_f32_dpp v24, v24, v24 row_ror:8 row_mask:0xf bank_mask:0xf")
    A("v_add_f32_dpp v25, v25, v25 row_ror:8 row_mask:0xf bank_mask:0xf")
    reduce_rows16_32(A, [24, 25], [26, 27])
    A("v_lshlrev_b32 v26, 5, v7")
    A("s_lshl_b32 s28, s20, 3")
    A("v_add_u32 v27, s28, v26")
    A("ds_write_b64 v27, v[24:25]")
    A("s_waitcnt lgkmcnt(0)")
    A("s_barrier")
    A("ds_read_b128 v[100:103], v26")
    A("ds_read_b128 v[104:107], v26 offset:16")
    A("s_waitcnt lgkmcnt(0)")
    A("v_pk_add_f32 v[24:25], v[100:101], v[102:103]")
    A("v_pk_add_f32 v[26:27], v[104:105], v[106:107]")
    A("v_pk_add_f32 v[24:25], v[24:25], v[26:27]")
    A(f"v_mul_f32 v24, {f32(1/1024)}, v24")
    A(f"v_mul_f32 v25, {f32(1/1024)}, v25")
    A("v_fma_f32 v25, -v24, v24, v25")
    A("v_max_f32 v25, 0, v25")
    A(f"v_add_f32 v25, {f32(1e-5)}, v25")
    A("v_rsq_f32 v25, v25")
    A("s_nop 0")
    A("v_mul_f32 v24, v24, v25")
    for j in range(16):
        A(f"v_fma_f32 {v(U+2*j)}, {v(U+2*j)}, v25, -v24")
        A(f"v_fma_f32 {v(U+1+2*j)}, {v(U+1+2*j)}, v25, -v24")
        A(f"v_cvt_pk_bf16_f32 {v(32+j)}, {v(U+2*j)}, {v(U+1+2*j)}")
        if j % 4 == 3:
            A(f"buffer_store_dwordx4 {v(32+j-3,4)}, v11, s[12:15], {s(32+j//4)} offen{STF}")
    stamp(A, 0, 3)
    A("s_lshr_b32 s32, s2, 4")
    A("s_and_b32 s33, s2, 15")
    pub_prep(A, 0, 32, 33)
    A(f"s_mov_b32 s28, {SPIN_MAX}")
    A.label("p0_nonce")
    A("s_waitcnt vmcnt(0)")
    A("v_readfirstlane_b32 s62, v28")
    A("v_readfirstlane_b32 s63, v29")
    A("s_nop 1")
    A("s_cmp_lg_u32 s62, 0")
    A("s_cbranch_scc1 p0_gotnonce")
    A("buffer_load_dwordx2 v[28:29], v22, s[16:19], 0 offen sc1")
    A("s_sub_u32 s28, s28, 1")
    A("s_cmp_lg_u32 s28, 0")
    A("s_cbranch_scc1 p0_nonce")
    A.label("p0_gotnonce")
    A("v_mov_b32 v248, s62")
    A("v_mov_b32 v249, s63")
    stamp(A, 0, 4)
    publish(A, force=True)
    A("v_mov_b32 v12, 0")
    A("s_lshr_b32 s28, s31, 1")
    A("s_lshl_b32 s28, s28, 7")
    A("s_lshl_b32 s29, s21, 3")
    A("s_add_u32 s28, s28, s29")
    A("s_and_b32 s29, s31, 1")
    A("s_lshl_b32 s29, s29, 2")
    A("s_add_u32 s28, s28, s29")
    A(f"s_lshl_b32 {s(sGo)}, s28, 10")
    if QSC: rot_init(A, 0x40000, QSC)
    A(f"s_lshl_b32 {s(sM)}, s31, 12")
    A("s_branch p1_common")
    A.label("p0_B")
    code_touch(A)
    w_swz_voff(A, 7, 6144)
    A(f"v_add_u32 v8, {8*6144-1024}, v7")
    A("v_add_u32 v9, 2048, v7")
    A("v_add_u32 v10, 2048, v8")
    A("v_add_u32 v11, 4096, v7")
    A("v_add_u32 v12, 4096, v8")
    A(f"s_mul_i32 s28, s31, {16*6144}")
    A("s_lshl_b32 s29, s22, 7")
    A(f"s_add_u32 {s(sGo)}, s28, s29")
    if QSC: rot_init(A, 64*6144, QSC)
    A(f"s_lshl_b32 {s(sM)}, s31, 11")
    A(f"s_add_u32 {s(sM)}, {s(sM)}, 16384")
    A("v_and_b32 v13, 31, v1")
    A("v_mul_u32_u24 v13, 6144, v13")
    A("v_lshrrev_b32 v14, 5, v1")
    A("v_lshl_add_u32 v15, v14, 11, v13")
    A("v_lshl_add_u32 v13, v14, 30, v13")
    A("v_add_u32 v13, 4096, v13")
    A("s_and_b32 s28, s21, 7")
    A("s_lshl_b32 s28, s28, 2")
    A("s_add_u32 s28, s28, s31")
    A(f"s_mul_i32 s28, s28, {32*6144}")
    A("s_add_u32 s28, s28, s29")
    A("s_waitcnt lgkmcnt(0)")
    if PROF: A("s_mov_b32 s66, s62")
    srd(A, 12, 42, 0, 6*MB)
    def wdma():
        g = []
        for seg in range(3):
            g.append([f"s_add_u32 m0, {s(sWr)}, {s(sM)}" if seg == 0 else "s_add_u32 m0, m0, 8192", "s_nop 0",
                      f"buffer_load_dwordx4 {v(7+2*seg)}, s[12:15], {s(sGo)} offen lds"])
            g.append([f"buffer_load_dwordx4 {v(8+2*seg)}, s[12:15], {s(sGo)} offen offset:1024 lds"])
        g[-1] += adv(64*6144, QSC)
        return g
    TLBW = OPT("TLBW", 0)
    if TLBW:
        sh = TLBW
        per = 1 << (21 - sh)
        A(f"s_load_dwordx2 s[44:45], s[0:1], {KA_WO}")
        A(f"s_load_dwordx4 s[48:51], s[0:1], {KA_WG}")
        A(f"s_load_dwordx4 s[52:55], s[0:1], {KA_WD}")
        A("v_lshlrev_b32 v26, 21, v1")
        A("s_lshr_b32 s33, s2, 3")
        A(f"s_and_b32 s33, s33, {per-1}")
        A(f"s_lshl_b32 s33, s33, {sh}")
        A("s_waitcnt lgkmcnt(0)")
        for wv, lst in ((0, [(6, 81*MB)]), (1, [(54, 4*MB), (44, 2*MB)]), (2, [(48, 7*MB), (50, 7*MB)]), (3, [(52, 7*MB)])):
            l = A.newlabel("tw")
            A(f"s_cmp_lg_u32 s31, {wv}")
            A(f"s_cbranch_scc1 {l}")
            for b_, sz in lst:
                srd(A, 56, b_, 0, sz)
                A("buffer_load_dword v27, v26, s[56:59], s33 offen sc1")
            A.label(l)
    P0M = OPT("P0M", 6)
    def touches():
        A("buffer_load_dword v24, v15, s[12:15], s28 offen")
        A("buffer_load_dword v25, v13, s[12:15], s28 offen")
    if P0M == 0:
        touches()
        fill_ring(A, R, SLOT, wdma, 0, 2)
        A("s_barrier")
        fill_ring(A, R, SLOT, wdma, 2, 4)
        A("s_barrier")
    elif P0M == 1:
        A("s_barrier")
        touches()
        fill_ring(A, R, SLOT, wdma, 0, 2)
        A("s_barrier")
        fill_ring(A, R, SLOT, wdma, 2, 4)
    elif P0M == 2:
        fill_ring(A, R, SLOT, wdma, 0, 2)
        A("s_barrier")
        touches()
        fill_ring(A, R, SLOT, wdma, 2, 4)
        A("s_barrier")
        A("s_waitcnt vmcnt(0)")
    elif P0M == 4:
        A("s_barrier")
        fill_ring(A, R, SLOT, wdma, 0, 2)
        A("s_barrier")
        fill_ring(A, R, SLOT, wdma, 2, 4)
    elif P0M == 5:
        fill_ring(A, R, SLOT, wdma, 0, 4)
        A("s_barrier")
        A("s_barrier")
    elif P0M == 6:
        fill_ring(A, R, SLOT, wdma, 0, 2)
        A("s_barrier")
        A("s_barrier")
        fill_ring(A, R, SLOT, wdma, 2, 4)
    elif P0M in (7, 8, 9):
        def ctouch():
            A("v_lshlrev_b32 v15, 7, v1")
            A("v_cmp_gt_u32 vcc, 48, v1")
            A("v_mov_b32 v13, 0x7fffffff")
            A("s_lshl_b32 s28, s2, 2")
            A("s_add_u32 s28, s28, s31")
            A("v_cndmask_b32 v15, v13, v15, vcc")
            A("s_mul_i32 s28, s28, 6144")
            A("buffer_load_dword v24, v15, s[12:15], s28 offen")
        if P0M == 7:
            ctouch()
            fill_ring(A, R, SLOT, wdma, 0, 2)
            A("s_barrier"); A("s_barrier")
            fill_ring(A, R, SLOT, wdma, 2, 4)
        elif P0M == 8:
            ctouch()
            A("s_waitcnt vmcnt(0)")
            A("s_barrier")
            fill_ring(A, R, SLOT, wdma, 0, 2)
            A("s_barrier")
            fill_ring(A, R, SLOT, wdma, 2, 4)
        else:
            ctouch()
            A("s_barrier"); A("s_barrier")
            fill_ring(A, R, SLOT, wdma, 0, 4)
    elif P0M == 3:
        fill_ring(A, R, SLOT, wdma, 0, 2)
        A("s_barrier")
        fill_ring(A, R, SLOT, wdma, 2, 4)
        A("s_barrier")

    A.label("p1_common")
    ACC = 64
    def acc(f, i): return ACC + (f * 4 + i) * 4
    SET = [112, 168]
    def xf(p, kk, i): return SET[p] + (kk * 4 + i) * 4
    def wf(p, kk, f): return SET[p] + 32 + (kk * 3 + f) * 4
    srd(A, 8, 6, WS_XN, 4*MB)
    srd(A, 12, 42, 0, 6*MB)
    srd(A, 16, 6, WS_Q, 12*MB)
    A("s_and_b32 s28, s20, 1")
    A("s_lshl_b32 s28, s28, 12")
    A("v_add_u32 v32, s28, v6")
    A("v_lshl_add_u32 v33, v2, 2, v3")
    A("v_lshlrev_b32 v33, 7, v33")
    A("v_lshl_add_u32 v33, v4, 3, v33")
    A("v_add_u32 v33, 16384, v33")
    A("v_bfe_u32 v34, v1, 3, 2")
    A("s_lshr_b32 s28, s20, 1")
    A("s_and_b32 s29, s28, 1")
    A("s_lshl_b32 s29, s29, 1")
    A("s_lshr_b32 s32, s28, 1")
    A("s_lshl_b32 s32, s32, 13")
    A("v_xor_b32 v35, s29, v34")
    A("v_lshl_add_u32 v35, v35, 5, v33")
    A("v_add_u32 v35, s32, v35")
    A("v_xor_b32 v36, 32, v35")
    A("v_xor_b32 v37, s28, v34")
    A("v_lshl_add_u32 v37, v37, 5, v33")
    A("v_add_u32 v37, 16384, v37")
    for i in range(48): A(f"v_mov_b32 {v(ACC+i)}, 0")
    stamp(A, 1, 0)
    wait_flags(A, 0, 21, 16)
    stamp(A, 1, 1)
    def reads(p):
        out = []
        for kk in range(2):
            for f in range(3):
                for t in range(2):
                    out.append([f"ds_read_b64_tr_b16 {v(wf(p,kk,f)+2*t,2)}, {v(17+f)} offset:{kk*4096+t*2048}"])
            for i in range(4):
                out.append([f"ds_read_b128 {v(xf(p,kk,i),4)}, v16 offset:{kk*8192+i*1024}"])
        return out
    def addr_upd():
        return [f"v_add_u32 v16, {s(sRd)}, v32", f"v_add_u32 v17, {s(sRd)}, v35",
                f"v_add_u32 v18, {s(sRd)}, v36", f"v_add_u32 v19, {s(sRd)}, v37"]
    def mfmas(p):
        M = []
        for kk in range(2):
            for f in range(3):
                for i in (range(4) if (f % 2 == 0 or not OPT("SNAKE", 1)) else range(3, -1, -1)):
                    if f < 2: M.append(mf16(acc(f, i), wf(p, kk, f), xf(p, kk, i)))
                    else:     M.append(mf16(acc(f, i), xf(p, kk, i), wf(p, kk, f)))
        return M
    A("s_cmp_ge_u32 s20, 4")
    A("s_cbranch_scc1 qkv_B")
    fill_ring(A, R, SLOT, lambda: xdma(0x40000, QSC), bar=True)
    gemm_loop(A, 1, "qkv_loopA", "A", R, SLOT, NST, 4, mfmas, reads, lambda: xdma(0x40000, QSC), addr_upd,
              {4: code_touch_list(A, "qkv_epi", 251, 252), ('x', 3): 1, ('x', 2): 1} if OPT("CTQ", 1) else None)
    A("s_branch qkv_epi")
    A.label("qkv_B")
    fill_ring(A, R, SLOT, None, bar=True)
    gemm_loop(A, 1, "qkv_loopB", "B", R, SLOT, NST, 6, mfmas, reads, wdma, addr_upd)
    A.label("qkv_epi")
    A(f"s_load_dwordx2 s[40:41], s[0:1], {KA_WO}")
    A(f"s_load_dwordx4 s[44:47], s[0:1], {KA_WG}")
    A(f"s_load_dwordx2 s[42:43], s[0:1], {KA_WD}")
    A("v_lshlrev_b32 v9, 9, v2")
    A("v_lshrrev_b32 v7, 3, v5")
    A("v_lshl_add_u32 v7, v7, 8, v9")
    A("v_and_b32 v8, 7, v5")
    A("v_lshl_add_u32 v7, v8, 4, v7")
    A("v_lshl_add_u32 v8, v5, 4, v9")
    A("s_lshr_b32 s28, s20, 1")
    A("s_and_b32 s29, s28, 1")
    A("s_lshr_b32 s32, s28, 1")
    A("s_and_b32 s33, s20, 1")
    A("s_lshl_b32 s34, s21, 2")
    A("s_lshl_b32 s33, s33, 1")
    A("s_add_u32 s34, s34, s33")
    A("s_lshl_b32 s34, s34, 11")
    A("s_lshl_b32 s35, s22, 1")
    A("s_add_u32 s36, s35, s29")
    A("s_lshl_b32 s36, s36, 17")
    A("s_add_u32 s36, s36, s34")
    A("s_lshl_b32 s37, s32, 22")
    A("s_add_u32 s36, s36, s37")
    A("s_add_u32 s38, s35, s32")
    A("s_lshl_b32 s38, s38, 17")
    A("s_add_u32 s38, s38, s34")
    A("s_lshl_b32 s37, s29, 8")
    A("s_add_u32 s38, s38, s37")
    A(f"s_add_u32 s38, s38, {8*MB}")
    A("s_cmp_eq_u32 s32, 0")
    A(f"s_cselect_b32 s39, {f32(QSCALE)}, 1.0")
    A("v_mov_b32 v20, s39")
    A("v_mov_b32 v21, s39")
    T = 128
    for pr in range(2):
        for ii in range(2):
            for h in range(2):
                A(f"v_cvt_pk_bf16_f32 {v(T+4*pr+2*ii+h)}, {v(acc(2,2*pr+ii)+2*h)}, {v(acc(2,2*pr+ii)+2*h+1)}")
        A(f"buffer_store_dwordx4 {v(T+4*pr,4)}, v8, s[16:19], s38 offen offset:{pr*2048}{STF}")
    T = 112
    for i in range(4):
        for f in range(2):
            for h in range(2):
                if OPT("NOPK", 1):
                    A(f"v_mul_f32 {v(acc(f,i)+2*h)}, {v(acc(f,i)+2*h)}, v20")
                    A(f"v_mul_f32 {v(acc(f,i)+2*h+1)}, {v(acc(f,i)+2*h+1)}, v20")
                else:
                    A(f"v_pk_mul_f32 {v(acc(f,i)+2*h,2)}, {v(acc(f,i)+2*h,2)}, v[20:21]")
        for f in range(2):
            for h in range(2):
                A(f"v_cvt_pk_bf16_f32 {v(T+4*i+2*f+h)}, {v(acc(f,i)+2*h)}, {v(acc(f,i)+2*h+1)}")
        A(f"buffer_store_dwordx4 {v(T+4*i,4)}, v7, s[16:19], s36 offen offset:{(i>>1)*2048+(i&1)*128}{STF}")
    pub_prep(A, 1, 22, 21)
    A("s_waitcnt lgkmcnt(0)")

def ph_attn(A):
    R, SLOT = 3, 32768
    WL = R * SLOT
    Q, NEGM, S0, S1, P, KF, VF, O, L, ONES = 8, 32, 48, 64, 80, 88, 96, 104, 120, 124
    S_ = [S0, S1]
    A("s_and_b32 s21, s2, 7")
    A("s_lshl_b32 s21, s21, 2")
    A("s_bfe_u32 s28, s2, 0x20003")
    A("s_add_u32 s21, s21, s28")
    A("s_lshr_b32 s22, s2, 5")
    A("s_lshr_b32 s32, s2, 1")
    A("s_and_b32 s33, s2, 1")
    sCo, sCM = 26, 29
    A("s_cmp_ge_u32 s32, 56")
    A("s_cselect_b32 s48, s46, s44")
    A("s_cselect_b32 s49, s47, s45")
    A("s_cselect_b32 s34, 56, 0")
    A("s_sub_u32 s34, s32, s34")
    A("s_mov_b32 s51, 0x20000")
    A("s_lshl_b32 s34, s34, 7")
    A(f"s_mul_i32 s35, s33, {512*7168}")
    A("s_add_u32 s34, s34, s35")
    A(f"s_add_u32 s35, s35, {512*7168}")
    A("s_cmp_lt_u32 s2, 224")
    A("s_cselect_b32 s50, s35, 0")
    A(f"s_mul_i32 s35, s31, {16*7168}")
    A(f"s_add_u32 {s(sCo)}, s34, s35")
    w_swz_voff(A, 7, 7168)
    A(f"v_add_u32 v129, {8*7168-1024}, v7")
    srd(A, 52, 40, 0, 2*MB)
    srd(A, 44, 42, 0, 7*MB)
    A("s_lshl_b32 s35, s2, 2")
    A("s_add_u32 s35, s35, s31")
    A("v_lshlrev_b32 v8, 7, v1")
    A("v_mov_b32 v9, 0x7fffffff")
    A("s_lshl_b32 s34, s35, 11")
    A("v_add_u32 v130, s34, v8")
    A("v_cmp_gt_u32 vcc, 16, v1")
    A("s_lshl_b32 s60, s35, 10")
    A("s_nop 0")
    A("v_cndmask_b32 v130, v9, v130, vcc")
    A("s_and_b32 s34, s35, 1")
    A("s_lshl_b32 s34, s34, 3")
    A("v_lshrrev_b32 v8, 3, v1")
    A("v_add_u32 v8, s34, v8")
    A(f"v_mul_u32_u24 v8, {3584*128}, v8")
    A("s_bfe_u32 s34, s35, 0x20002")
    A("s_lshl_b32 s34, s34, 1")
    A("v_and_b32 v9, 7, v1")
    A("v_xor_b32 v9, s34, v9")
    A("v_lshl_add_u32 v131, v9, 4, v8")
    A("s_lshr_b32 s61, s35, 1")
    A("s_lshl_b32 s61, s61, 7")
    A(f"s_sub_u32 s61, s61, {512*128}")
    CP = 140
    def cp_load():
        return [f"buffer_load_dwordx4 {v(CP,4)}, v6, s[44:47], s60 offen", f"s_add_u32 s60, s60, {MB}"]
    def cp_store():
        return [f"s_cmp_lt_u32 s61, {3584*128}", f"s_cselect_b32 s58, {7*MB}, 0",
                f"buffer_store_dwordx4 {v(CP,4)}, v131, s[56:59], s61 offen{STF}", f"s_add_u32 s61, s61, {512*128}"]
    def cs_dma(j):
        if j == 0:
            return [f"s_mov_b32 m0, {s(sCM)}", f"s_add_u32 {s(sCM)}, {s(sCM)}, 8192",
                    f"buffer_load_dwordx4 v7, s[48:51], {s(sCo)} offen lds"]
        return [f"buffer_load_dwordx4 v129, s[48:51], {s(sCo)} offen offset:1024 lds",
                f"s_add_u32 {s(sCo)}, {s(sCo)}, {64*7168}"]
    A("s_lshl_b32 s28, s21, 17")
    A("s_add_u32 s4, s6, s28")
    A("s_addc_u32 s5, s7, 0")
    srd(A, 8, 4, WS_K, 131072)
    srd(A, 12, 4, WS_VT, 131072)
    srd(A, 16, 4, WS_Q, 131072)
    srd(A, 36, 6, WS_O, 4*MB)
    A(f"s_lshl_b32 {s(sGo)}, s31, 12")
    A(f"s_lshl_b32 {s(sM)}, s31, 12")
    A("v_lshrrev_b32 v16, 2, v1")
    A("v_xor_b32 v16, v16, v2")
    A("v_and_b32 v16, 1, v16")
    A("v_cmp_eq_u32 vcc, 0, v16")
    A("v_mov_b32 v17, 0x3f803f80")
    A("s_nop 1")
    for i in range(4): A(f"v_cndmask_b32 {v(ONES+i)}, 0, v17, vcc")
    for i in range(16): A(f"v_mov_b32 {v(O+i)}, 0")
    for i in range(4): A(f"v_mov_b32 {v(L+i)}, 0")
    for i in range(4): A(f"v_mov_b32 {v(P+4+i)}, 0")
    for i in range(4): A(f"v_mov_b32 {v(VF+4+i)}, 0")
    A("v_mov_b32 v16, v6")
    A(f"v_add_u32 v17, {SLOT}, v6")
    A(f"s_mov_b32 {s(sRd)}, {SLOT}")
    A("s_lshr_b32 s34, s21, 1")
    A("s_lshl_b32 s35, s22, 3")
    A("s_add_u32 s35, s35, s20")
    A("s_lshl_b32 s35, s35, 11")
    if not OPT("PUBFIRST", 1):
        A("s_waitcnt vmcnt(0)")
        stamp(A, 1, 4)
    publish(A)
    stamp(A, 2, 0)
    wait_flags(A, 1, 34, 16)
    stamp(A, 2, 1)
    def kv(j):
        o = []
        if j % 4 == 0: o = [f"s_add_u32 m0, {s(sWr)}, {16384 if j >= 4 else 0}", "s_nop 0"]
        o += [f"buffer_load_dwordx4 v6, {'s[8:11]' if j < 4 else 's[12:15]'}, {s(sGo)} offen offset:{(j&3)*1024}{LDF} lds"]
        if j == 7:
            o += [f"s_add_u32 {s(sGo)}, {s(sGo)}, 16384",
                  f"s_add_u32 {s(sWr)}, {s(sWr)}, {SLOT}",
                  f"s_cmp_ge_u32 {s(sWr)}, {SLOT*R}",
                  f"s_cselect_b32 {s(sWr)}, {s(sM)}, {s(sWr)}"]
        return o
    srd(A, 56, 6, WS_WD, 7*MB)
    if OPT("NOSIDE", 0):
        A("s_mov_b32 s50, 0"); A("s_mov_b32 s46, 0"); A("s_mov_b32 s54, 0"); A("s_mov_b32 s61, 0x10000000")
    A(f"s_mov_b32 {s(sWr)}, {s(sM)}")
    A(f"s_lshl_b32 {s(sCM)}, s31, 11")
    A(f"s_add_u32 {s(sCM)}, {s(sCM)}, {WL}")
    A("s_cmp_ge_u32 s20, 4")
    A("s_cbranch_scc1 at_B0")
    for j in range(4): emit(A, kv(j))
    A("s_branch at_C0")
    A.label("at_B0")
    for j in range(4, 7): emit(A, kv(j))
    emit(A, kv(7)[:1])
    A.label("at_C0")
    A(f"buffer_load_dwordx4 {v(Q,4)}, v6, s[16:19], s35 offen{LDF}")
    A(f"buffer_load_dwordx4 {v(Q+4,4)}, v6, s[16:19], s35 offen offset:1024{LDF}")
    emit(A, kv(7)[1:])
    A("s_waitcnt vmcnt(0)")
    A("s_barrier")
    stamp(A, 2, 2); cyc(A, 2, 0)
    def kread(t, j, dst=None):
        a_ = 16 if t < 8 else 17
        return f"ds_read_b128 {v(KF+4*j if dst is None else dst,4)}, {v(a_)} offset:{(t%8)*2048+j*1024}"
    def vread(t, j):
        a_ = 16 if t < 8 else 17
        return f"ds_read_b128 {v(VF+4*j,4)}, {v(a_)} offset:{16384+(t%8)*2048+j*1024}"
    A(kread(0, 0, S1)); A(kread(0, 1, S1+4))
    A(kread(1, 0)); A(kread(1, 1)); A(vread(0, 0))
    A("s_cmp_ge_u32 s20, 4")
    A("s_cbranch_scc1 at_C1")
    for j in range(4): emit(A, kv(j))
    A("buffer_load_dword v128, v130, s[52:55], 0 offen")
    emit(A, cs_dma(0)); emit(A, cs_dma(1))
    if OPT("CT", 0) >= 2:
        A("s_branch at_C2")
    A.label("at_C1")
    if OPT("CT", 0) >= 2:
        code_touch(A, 128)
        srd(A, 56, 6, WS_WD, 7*MB)
        A.label("at_C2")
    A("s_waitcnt lgkmcnt(3)")
    A(mf32(S0, S1, Q, "0"))
    A(mf32(S0, S1+4, Q+4))
    A("s_nop 15")
    A("s_nop 3")
    A(f"v_max3_f32 v18, {v(S0)}, {v(S0+1)}, {v(S0+2)}")
    for i in range(3, 15, 2): A(f"v_max3_f32 v18, v18, {v(S0+i)}, {v(S0+i+1)}")
    A(f"v_max_f32 v18, v18, {v(S0+15)}")
    A("v_mov_b32 v19, v18")
    A("s_nop 1")
    A("v_permlane32_swap_b32 v19, v18")
    A("s_nop 1")
    A("v_max_f32 v18, v18, v19")
    for i in range(16): A(f"v_sub_f32 {v(NEGM+i)}, 0, v18")
    for i in range(16): A(f"v_sub_f32 {v(S0+i)}, {v(S0+i)}, v18")
    A(f"s_mov_b32 {s(sCnt)}, 8")
    A("s_waitcnt lgkmcnt(0)")
    def cs_p1(CSW):
        A("v_lshrrev_b32 v18, 2, v1")
        A("v_lshlrev_b32 v18, 7, v18")
        A("v_lshl_add_u32 v18, v4, 3, v18")
        A("v_bfe_u32 v19, v1, 3, 2")
        A("v_xor_b32 v19, s31, v19")
        A("v_lshl_add_u32 v18, v19, 5, v18")
        A("s_lshr_b32 s29, s20, 2")
        A("s_lshl_b32 s34, s29, 15")
        A(f"s_add_u32 s34, s34, {WL}")
        A("v_add_u32 v18, s34, v18")
        for ks in range(8):
            for t in range(2):
                A(f"ds_read_b64_tr_b16 {v(CSW+4*ks+2*t,2)}, v18 offset:{ks*4096+t*2048}")
        for i in range(4): A(f"v_mov_b32 {v(132+i)}, 0x3f803f80")
    def cs_p2(CSW):
        A("s_waitcnt lgkmcnt(0)")
        for ks in range(8):
            A(mf16(136, CSW+4*ks, 132, "0" if ks == 0 else None))
    def cs_p3(srdr):
        srd(A, srdr, 6, WS_CS, 4*7168*4)
        A("s_lshl_b32 s33, s33, 1")
        A("s_add_u32 s33, s33, s29")
        A(f"s_mul_i32 s33, s33, {7168*4}")
        A("s_lshl_b32 s34, s32, 8")
        A("s_add_u32 s33, s33, s34")
        A("s_lshl_b32 s34, s31, 6")
        A("s_add_u32 s33, s33, s34")
        A("v_cmp_ne_u32 vcc, 0, v5")
        A("v_mov_b32 v19, 0x7fffffff")
        A("s_cmp_lt_u32 s2, 224")
        A(f"s_cselect_b32 {s(srdr+2)}, {4*7168*4}, 0")
        A("v_cndmask_b32 v19, v1, v19, vcc")
        A(f"buffer_store_dwordx4 v[136:139], v19, {s(srdr,4)}, s33 offen{STF}")
    def loop(role):
        A.raw(".p2align 6")
        A.label(f"attn_loop{role}")
        for t in range(8):
            c, n = S_[t % 2], S_[1 - t % 2]
            E = lambda i: f"v_exp_f32 {v(c+i)}, {v(c+i)}"
            C = lambda i: f"v_cvt_pk_bf16_f32 {v(P+i)}, {v(c+2*i)}, {v(c+2*i+1)}"
            X = {6: (kv(0), kv(1)), 7: (kv(2), kv(3)), 0: (kv(4), kv(5)), 1: (kv(6), kv(7)),
                 2: (["s_waitcnt vmcnt(10)"] + cp_store(), cp_load()), 3: (cs_dma(0), cs_dma(1)), 4: ([], []), 5: ([], [])}[t]
            if role == "B":
                X = ([], [])
                if OPT("CTA", 0) and t == 7: X = (["buffer_load_dword v251, v252, s[56:59], s60 offen"], [])
            FAIR = OPT("FAIR", 0)
            if t == 6:
                if role == "A": A("s_waitcnt vmcnt(4)")
                A("s_barrier")
            elif FAIR == 1 and t == 2:
                A("s_barrier")
            elif FAIR == 2 and t % 2 == 0:
                A("s_barrier")
            if FAIR == 1: A(f"s_setprio {3 - (t + 2) % 4}")
            if FAIR == 3 and t % 2 == 0: A(f"s_setprio {3 - ((t + 2) % 8) // 2}")
            A("s_waitcnt lgkmcnt(2)")
            A(mf32(n, KF, Q, v(NEGM, 16)))
            A(kread(t + 2, 0))
            emit(A, [E(0), E(1), E(2)])
            A(mf32(O, VF+4, P+4))
            A(vread(t, 1))
            emit(A, X[0])
            emit(A, [E(3), E(4), E(5), E(6)])
            A("s_waitcnt lgkmcnt(2)")
            A(mf32(n, KF+4, Q+4))
            A(kread(t + 2, 1))
            emit(A, [E(7), C(0), C(1), C(2), C(3), E(8)])
            A(mf16(L, ONES, P+4))
            emit(A, [E(9), E(10)])
            A(mf32(O, VF, P))
            A(vread(t + 1, 0))
            emit(A, X[1])
            emit(A, [E(11), E(12), E(13), E(14)])
            A(mf16(L, ONES, P))
            if t == 7:
                A(f"s_add_u32 {s(sRd)}, {s(sRd)}, {SLOT}")
                A(f"s_cmp_eq_u32 {s(sRd)}, {SLOT*R}")
                A(f"s_cselect_b32 {s(sRd)}, 0, {s(sRd)}")
                A("v_mov_b32 v16, v17")
                A(f"v_add_u32 v17, {s(sRd)}, v6")
                A(f"s_sub_u32 {s(sCnt)}, {s(sCnt)}, 1")
                A(f"s_cmp_lg_u32 {s(sCnt)}, 0")
            emit(A, [E(15), C(4), C(5), C(6), C(7)])
        A(f"s_cbranch_scc1 attn_loop{role}")
    A("s_cmp_ge_u32 s20, 4")
    A("s_cbranch_scc1 attn_preB")
    loop("A")
    A("s_branch attn_post")
    A.label("attn_preB")
    if OPT("CTA", 0):
        emit(A, code_touch_list(A, "attn_post", 251, 252)[:-1])
        A("s_mov_b32 s60, s28")
    loop("B")
    A.label("attn_post")
    if OPT("FAIR", 0): A("s_setprio 0")
    A("s_waitcnt lgkmcnt(0)")
    A("s_nop 0")
    A(mf32(O, VF+4, P+4))
    A(mf16(L, ONES, P+4))
    cyc(A, 2, 1); stamp(A, 2, 3)
    if OPT("CSA", 1):
        A("s_nop 10")
        A(f"v_add_f32 v18, |{v(O)}|, {v(L)}")
        for i in range(1, 16): A(f"v_add_f32 v18, |{v(O+i)}|, v18")
        A(f"v_mov_b32 v19, {f32(2.0**120)}")
        A("v_cmp_nlt_f32 vcc, v18, v19")
        A("s_nop 1")
        A("s_cmp_eq_u64 vcc, 0")
        A("s_cbranch_scc0 attn_slow")
    else:
        A("s_waitcnt vmcnt(0)")
        A("s_barrier")
        cs_p1(S0)
        A(f"v_add_f32 v18, |{v(O)}|, {v(L)}")
        for i in range(1, 16): A(f"v_add_f32 v18, |{v(O+i)}|, v18")
        A(f"v_mov_b32 v19, {f32(2.0**120)}")
        A("v_cmp_nlt_f32 vcc, v18, v19")
        cs_p2(S0)
        A("s_cmp_eq_u64 vcc, 0")
        A("s_cbranch_scc0 attn_slow")
    A.label("attn_fin")
    A(f"s_load_dwordx2 s[44:45], s[0:1], {KA_X}")
    A(f"v_rcp_f32 v18, {v(L)}")
    A("s_nop 0")
    for i in range(16): A(f"v_mul_f32 {v(O+i)}, {v(O+i)}, v18")
    for pc in range(2):
        for hh in range(2):
            run = pc + 2 * hh
            for j in range(2):
                A(f"v_cvt_pk_bf16_f32 {v(P+4*pc+2*hh+j)}, {v(O+4*run+2*j)}, {v(O+4*run+2*j+1)}")
    A("v_bfe_u32 v18, v1, 3, 1")
    A("v_lshlrev_b32 v18, 10, v18")
    A("v_bfe_u32 v19, v1, 4, 1")
    A("v_lshl_add_u32 v18, v19, 7, v18")
    A("v_and_b32 v19, 7, v1")
    A("v_lshl_add_u32 v18, v19, 4, v18")
    A("v_lshrrev_b32 v19, 5, v1")
    A("v_lshl_add_u32 v18, v19, 8, v18")
    A("s_lshl_b32 s28, s21, 17")
    A("s_add_u32 s28, s28, s35")
    A(f"buffer_store_dwordx4 {v(P,4)}, v18, s[36:39], s28 offen{STF}")
    A(f"buffer_store_dwordx4 {v(P+4,4)}, v18, s[36:39], s28 offen offset:512{STF}")
    if OPT("CSA", 1):
        A("s_cmp_ge_u32 s20, 4")
        A("s_cbranch_scc1 attn_nocs")
        A("v_lshrrev_b32 v18, 2, v1")
        A("v_lshlrev_b32 v18, 7, v18")
        A("v_lshl_add_u32 v18, v4, 3, v18")
        A("v_bfe_u32 v19, v1, 3, 2")
        A("v_xor_b32 v19, s31, v19")
        A("v_lshl_add_u32 v18, v19, 5, v18")
        A(f"v_add_u32 v18, {WL}, v18")
        for ks in range(16):
            for t in range(2):
                A(f"ds_read_b64_tr_b16 {v(144+4*ks+2*t,2)}, v18 offset:{ks*4096+t*2048}")
        for i in range(4): A(f"v_mov_b32 {v(132+i)}, 0x3f803f80")
        srd(A, 48, 6, WS_CS, 4*7168*4)
        A(f"s_mul_i32 s33, s33, {2*7168*4}")
        A("s_lshl_b32 s34, s32, 8")
        A("s_add_u32 s33, s33, s34")
        A("s_lshl_b32 s34, s31, 6")
        A("s_add_u32 s33, s33, s34")
        A(f"s_add_u32 s34, s33, {7168*4}")
        A("v_cmp_ne_u32 vcc, 0, v5")
        A("v_mov_b32 v19, 0x7fffffff")
        A("s_cmp_lt_u32 s2, 224")
        A(f"s_cselect_b32 s50, {4*7168*4}, 0")
        A("v_cndmask_b32 v19, v1, v19, vcc")
        A("s_waitcnt lgkmcnt(0)")
        for ks in range(8):
            for hh in range(2):
                A(mf16(136 + 72*hh, 144 + 4*(8*hh+ks), 132, "0" if ks == 0 else None))
        A("s_nop 7")
        A(f"buffer_store_dwordx4 v[136:139], v19, s[48:51], s33 offen{STF}")
        A(f"buffer_store_dwordx4 v[208:211], v19, s[48:51], s34 offen{STF}")
        A.label("attn_nocs")
    else:
        cs_p3(48)
    pub_prep(A, 2, 22, 21)
    A("s_waitcnt lgkmcnt(0)")
    def slow():
        A.label("attn_slow")
        A("v_mov_b32 v18, 0xff800000")
        A("s_mov_b32 s28, 0")
        A.label("attn_slow1")
        A(f"buffer_load_dwordx4 {v(KF,4)}, v6, s[8:11], s28 offen{LDF}")
        A(f"buffer_load_dwordx4 {v(KF+4,4)}, v6, s[8:11], s28 offen offset:1024{LDF}")
        A("s_waitcnt vmcnt(0)")
        A("s_nop 15")
        A(mf32(S0, KF, Q, "0"))
        A(mf32(S0, KF+4, Q+4))
        A("s_nop 15")
        A("s_nop 3")
        for i in range(0, 16, 2): A(f"v_max3_f32 v18, v18, {v(S0+i)}, {v(S0+i+1)}")
        A("s_add_u32 s28, s28, 2048")
        A("s_cmp_lt_u32 s28, 131072")
        A("s_cbranch_scc1 attn_slow1")
        A("v_mov_b32 v19, v18")
        A("s_nop 1")
        A("v_permlane32_swap_b32 v19, v18")
        A("s_nop 1")
        A("v_max_f32 v18, v18, v19")
        for i in range(16): A(f"v_sub_f32 {v(NEGM+i)}, 0, v18")
        for i in range(16): A(f"v_mov_b32 {v(O+i)}, 0")
        for i in range(4): A(f"v_mov_b32 {v(L+i)}, 0")
        A("s_mov_b32 s28, 0")
        A.label("attn_slow2")
        A(f"buffer_load_dwordx4 {v(KF,4)}, v6, s[8:11], s28 offen{LDF}")
        A(f"buffer_load_dwordx4 {v(KF+4,4)}, v6, s[8:11], s28 offen offset:1024{LDF}")
        A(f"buffer_load_dwordx4 {v(VF,4)}, v6, s[12:15], s28 offen{LDF}")
        A(f"buffer_load_dwordx4 {v(VF+4,4)}, v6, s[12:15], s28 offen offset:1024{LDF}")
        A("s_waitcnt vmcnt(0)")
        A(mf32(S0, KF, Q, v(NEGM, 16)))
        A(mf32(S0, KF+4, Q+4))
        A("s_nop 15")
        A("s_nop 3")
        for i in range(16): A(f"v_exp_f32 {v(S0+i)}, {v(S0+i)}")
        A("s_nop 0")
        for i in range(8): A(f"v_cvt_pk_bf16_f32 {v(P+i)}, {v(S0+2*i)}, {v(S0+2*i+1)}")
        A("s_nop 1")
        A(mf32(O, VF, P))
        A(mf32(O, VF+4, P+4))
        A(mf16(L, ONES, P))
        A(mf16(L, ONES, P+4))
        A("s_nop 15")
        A("s_add_u32 s28, s28, 2048")
        A("s_cmp_lt_u32 s28, 131072")
        A("s_cbranch_scc1 attn_slow2")
        A("s_nop 15")
        A("s_branch attn_fin")
    return slow

HEADER = open("sequential_preLN__mha_block__glu_gated_glu__prompt.s.ref").read().split("; Override launch")[0]

def build(path):
    from mk2 import ph_proj, ph_gu, ph_down2, ph_down3
    A = Asm()
    A.raw(f".globl {NAME}"); A.raw(".p2align 8"); A.raw(f".type {NAME},@function"); A.label(NAME)
    A("s_cmp_ge_u32 s2, 256")
    A("s_cbranch_scc1 the_end")
    if OPT("RAW", 0):
        from mk3 import ph_qkv_raw
        hooks = ph_qkv_raw(A)
    else:
        ph_ln_qkv(A); hooks = None
    slow = ph_attn(A)
    ph_proj(A, 3, True)
    ph_gu(A)
    if OPT("SPLITK", 1) == 2: ph_down3(A)
    elif OPT("SPLITK", 1) == 1: ph_down2(A)
    else: ph_proj(A, 5, False)
    stamp_flush(A)
    A.label("the_end")
    A("s_endpgm")
    slow()
    A.label("code_end")
    out = HEADER
    out += "; @launch grid=(256,1,1) block=(512,1,1) lds=163840\n"
    out += '.amdgcn_target "amdgcn-amd-amdhsa--gfx950"\n.text\n'
    out += A.text()
    out += '.section .rodata,"a"\n'
    out += kernel_desc(NAME, 256, 102 if PROF else 64)
    open(path, "w").write(out)

if __name__ == "__main__":
    build(sys.argv[1] if len(sys.argv) > 1 else "sequential_preLN__mha_block__glu_gated_glu__prompt.s")
```

```python
from mk import *

def ph_proj(A, ph, is_wo):
    name = "wo" if is_wo else "dn"
    K = 1024 if is_wo else 3584
    ws_x = WS_O if is_wo else WS_HACT
    wp = 40 if is_wo else 42
    R, SLOT, NST = 6, 24576, K // 64
    STATS_LDS = R * SLOT
    A("s_and_b32 s21, s2, 3")
    A("s_lshl_b32 s21, s21, 2")
    A("s_bfe_u32 s28, s2, 0x20003")
    A("s_add_u32 s21, s21, s28")
    A("s_bfe_u32 s22, s2, 0x10002")
    A("s_lshl_b32 s22, s22, 3")
    A("s_lshr_b32 s28, s2, 5")
    A("s_add_u32 s22, s22, s28")
    PSC = OPT("WSC", 0) if is_wo else OPT("DSC", 4)
    PG = min(4, OPT("PG", 4))
    if PSC:
        A("s_add_u32 s39, s21, s22")
        A(f"s_and_b32 s39, s39, {PG-1}")
        A(f"s_mul_i32 s39, s39, {PSC//PG}")
    def wdma():
        if not is_wo:
            return [[f"s_add_u32 m0, {s(sWr)}, {s(sM)}", "s_nop 0",
                     f"buffer_load_dwordx4 v6, s[12:15], {s(sGo)} offen{LDF} lds"],
                    [f"buffer_load_dwordx4 v6, s[12:15], {s(sGo)} offen offset:1024{LDF} lds",
                     ] + adv(8192, PSC)]
        return [[f"s_add_u32 m0, {s(sWr)}, {s(sM)}", "s_nop 0",
                 f"buffer_load_dwordx4 v7, s[12:15], {s(sGo)} offen lds"],
                [f"buffer_load_dwordx4 v8, s[12:15], {s(sGo)} offen offset:1024 lds",
                 ] + adv(64*2048, PSC)]
    DX = 0x40000
    EZ = OPT("EZ", 0) and is_wo
    ACC = 152 if EZ else 32
    def acc(f, i): return ACC + (i * 2 + f) * 4
    SET = [168, 200] if EZ else [48, 80]
    def xf(p, kk, i): return SET[p] + (kk * 2 + i) * 4
    def wf(p, kk, f): return SET[p] + 16 + (kk * 2 + f) * 4
    RES = 240
    NRES = 4 if is_wo else 2
    A("s_lshr_b32 s33, s20, 2")
    A("s_lshl_b32 s34, s22, 1")
    A("s_add_u32 s34, s34, s33")
    A("s_lshl_b32 s34, s34, 7")
    A("s_lshl_b32 s35, s21, 3")
    A("s_add_u32 s34, s34, s35")
    A("s_lshl_b32 s35, s31, 1")
    A("s_add_u32 s34, s34, s35")
    A("s_lshl_b32 s34, s34, 10")
    A("s_lshl_b32 s35, s21, 18")
    A("s_lshl_b32 s36, s31, 16")
    A("s_add_u32 s35, s35, s36")
    A("s_lshl_b32 s36, s22, 7")
    A("s_add_u32 s35, s35, s36")
    A("s_lshl_b32 s36, s33, 6")
    A("s_add_u32 s35, s35, s36")
    A("s_add_u32 s36, s35, 32768")
    srd(A, 16, 6, WS_H, 4*MB)
    srd(A, 48, 44, 0, 4*MB)
    if is_wo:
        srd(A, 12, wp, 0, K*2048)
    else:
        A(f"s_mul_i32 s28, s22, {3584*128}")
        A("s_add_u32 s4, s6, s28")
        A("s_addc_u32 s5, s7, 0")
        srd(A, 12, 4, WS_WD, 3584*128)
    srd(A, 8, 6, ws_x, 2048*K*2)
    def resload():
        if is_wo:
            for i in range(2):
                A(f"buffer_load_dwordx4 {v(RES+4*i,4)}, v9, s[48:51], {s(35+i)} offen")
        else:
            for i in range(2):
                A(f"buffer_load_dwordx4 {v(RES+4*i,4)}, v6, s[16:19], s34 offen offset:{i*1024}{LDF}")
    A("v_lshlrev_b32 v9, 11, v5")
    A("v_and_b32 v15, 1, v2")
    A("v_lshl_add_u32 v9, v15, 5, v9")
    A("v_lshrrev_b32 v15, 1, v2")
    A("v_lshl_add_u32 v9, v15, 4, v9")
    A("s_lshl_b32 s28, s31, 11")
    A("v_add_u32 v10, s28, v6")
    A("v_lshl_add_u32 v11, v2, 2, v3")
    A("v_lshlrev_b32 v11, 7, v11")
    A("v_lshl_add_u32 v11, v4, 3, v11")
    A("v_add_u32 v11, 16384, v11")
    A("v_bfe_u32 v12, v1, 3, 2")
    A("s_lshl_b32 s29, s33, 1")
    A("v_xor_b32 v13, s29, v12")
    A("v_lshl_add_u32 v13, v13, 5, v11")
    A("v_xor_b32 v14, 32, v13")
    A("s_lshr_b32 s32, s21, 1")
    A("s_cmp_lt_u32 s20, 4")
    A(f"s_cbranch_scc1 {name}_A0")
    if is_wo:
        w_swz_voff(A, 7, 2048)
        A(f"v_add_u32 v8, {8*2048-1024}, v7")
        A("s_lshl_b32 s28, s31, 15")
        A("s_lshl_b32 s29, s22, 7")
        A(f"s_add_u32 {s(sGo)}, s28, s29")
    else:
        A(f"s_lshl_b32 {s(sGo)}, s31, 11")
    if PSC: rot_init(A, 64*2048 if is_wo else 8192, PSC)
    A(f"s_lshl_b32 {s(sM)}, s31, 11")
    A(f"s_add_u32 {s(sM)}, {s(sM)}, 16384")
    if not OPT("PUBFIRST", 1):
        A("s_waitcnt vmcnt(0)")
        stamp(A, ph - 1, 4)
    publish(A)
    WE = OPT("WE_W", 6)
    resload()
    fill_ring(A, R, SLOT, wdma, 0, WE)
    A(f"s_branch {name}_C0")
    A.label(f"{name}_A0")
    A("s_lshr_b32 s28, s31, 1")
    A("s_lshl_b32 s28, s28, 7")
    A("s_lshl_b32 s29, s21, 3")
    A("s_add_u32 s28, s28, s29")
    A("s_and_b32 s29, s31, 1")
    A("s_lshl_b32 s29, s29, 2")
    A("s_add_u32 s28, s28, s29")
    A(f"s_lshl_b32 {s(sGo)}, s28, 10")
    if PSC: rot_init(A, DX, PSC)
    A(f"s_lshl_b32 {s(sM)}, s31, 12")
    if not OPT("PUBFIRST", 1):
        A("s_waitcnt vmcnt(0)")
        stamp(A, ph - 1, 4)
    publish(A)
    resload()
    A.label(f"{name}_C0")
    if EZ:
        l = A.newlabel("ez")
        A("s_cmp_eq_u32 s20, 0")
        A(f"s_cbranch_scc1 {l}")
        for i in range(32, 152): A(f"v_mov_b32 {v(i)}, 0")
        A.label(l)
    stamp(A, ph, 0)
    wait_flags(A, ph - 1, 32, 32, also_all=2 if EZ else None)
    stamp(A, ph, 1)
    def accinit():
        if is_wo:
            for i in range(2):
                A(f"v_permlane16_swap_b32 {v(RES+4*i)}, {v(RES+4*i+2)}")
                A(f"v_permlane16_swap_b32 {v(RES+4*i+1)}, {v(RES+4*i+3)}")
            A("s_nop 1")
        for i in range(2):
            for f in range(2):
                for h in range(2):
                    src = RES + 4*i + 2*f + h
                    A(f"v_lshlrev_b32 {v(acc(f,i)+2*h)}, 16, {v(src)}")
                    A(f"v_and_b32 {v(acc(f,i)+2*h+1)}, 0xffff0000, {v(src)}")
    def reads(p):
        out = []
        for kk in range(2):
            for f in range(2):
                for t in range(2):
                    out.append([f"ds_read_b64_tr_b16 {v(wf(p,kk,f)+2*t,2)}, {v(17+f)} offset:{kk*4096+t*2048}"])
            for i in range(2):
                out.append([f"ds_read_b128 {v(xf(p,kk,i),4)}, v16 offset:{kk*8192+i*1024}"])
        return out
    def addr_upd():
        return [f"v_add_u32 v16, {s(sRd)}, v10", f"v_add_u32 v17, {s(sRd)}, v13", f"v_add_u32 v18, {s(sRd)}, v14"]
    def mfmas(p):
        return [mf16(acc(f, i), wf(p, kk, f), xf(p, kk, i)) for kk in range(2) for f in range(2) for i in ((0, 1) if (f == 0 or not OPT("SNAKE", 1)) else (1, 0))]
    A("s_cmp_ge_u32 s20, 4")
    A(f"s_cbranch_scc1 {name}_B")
    fill_ring(A, R, SLOT, lambda: xdma(DX, PSC), bar=True)
    if EZ:
        l = A.newlabel("ez")
        A("s_cmp_lg_u32 s20, 0")
        A(f"s_cbranch_scc1 {l}")
        for i in range(32, 152): A(f"v_mov_b32 {v(i)}, 0")
        A.label(l)
    A(f"s_waitcnt vmcnt({4*R})")
    accinit()
    gemm_loop(A, ph, f"{name}_loopA", "A", R, SLOT, NST, 4, mfmas, reads, lambda: xdma(DX, PSC), addr_upd,
              {6: code_touch_list(A, f"{name}_epi", 251, 252), ('x', 5): 1, ('x', 4): 1, ('x', 3): 1, ('x', 2): 1} if OPT("CTW", 1) else None)
    A(f"s_branch {name}_epi")
    A.label(f"{name}_B")
    fill_rest(A, R, SLOT, wdma, WE)
    A(f"s_waitcnt vmcnt({2*R})")
    accinit()
    gemm_loop(A, ph, f"{name}_loopB", "B", R, SLOT, NST, 2, mfmas, reads, wdma, addr_upd)
    A.label(f"{name}_epi")
    T = 232 if EZ else 112
    for i in range(2):
        for f in range(2):
            for h in range(2):
                A(f"v_cvt_pk_bf16_f32 {v(T+4*i+2*f+h)}, {v(acc(f,i)+2*h)}, {v(acc(f,i)+2*h+1)}")
    if is_wo:
        for i in range(2):
            A(f"buffer_store_dwordx4 {v(T+4*i,4)}, v6, s[16:19], s34 offen offset:{i*1024}{STF}")
        for i in range(2):
            sm, sq = 20 + 2*i, 21 + 2*i
            b = acc(0, i)
            A(f"v_add_f32 {v(sm)}, {v(b)}, {v(b+1)}")
            A(f"v_mul_f32 {v(sq)}, {v(b)}, {v(b)}")
            A(f"v_fmac_f32 {v(sq)}, {v(b+1)}, {v(b+1)}")
            for j in range(2, 8):
                A(f"v_add_f32 {v(sm)}, {v(sm)}, {v(b+j)}")
                A(f"v_fmac_f32 {v(sq)}, {v(b+j)}, {v(b+j)}")
        reduce_rows16_32(A, [20, 21, 22, 23], [24, 25, 26, 27])
        A("s_lshl_b32 s28, s31, 9")
        A("s_lshl_b32 s29, s33, 3")
        A("s_add_u32 s28, s28, s29")
        A(f"s_add_u32 s28, s28, {STATS_LDS}")
        A("v_lshlrev_b32 v24, 4, v5")
        A("v_add_u32 v24, s28, v24")
        A("ds_write_b64 v24, v[20:21]")
        A("ds_write_b64 v24, v[22:23] offset:256")
        A(f"s_load_dwordx4 s[44:47], s[0:1], {KA_WG}")
        A("s_waitcnt lgkmcnt(0)")
        A("s_barrier")
        A("s_cmp_ge_u32 s20, 2")
        A(f"s_cbranch_scc1 {name}_end2")
        A("v_lshlrev_b32 v24, 4, v0")
        A(f"v_add_u32 v24, {STATS_LDS}, v24")
        A("ds_read_b128 v[20:23], v24")
        srd(A, 8, 6, WS_ST, 2048*128)
        A("v_lshlrev_b32 v24, 3, v0")
        A("s_lshl_b32 s28, s21, 10")
        A("s_lshl_b32 s29, s22, 14")
        A("s_add_u32 s28, s28, s29")
        A("s_waitcnt lgkmcnt(0)")
        A("v_add_f32 v20, v20, v22")
        A("v_add_f32 v21, v21, v23")
        A(f"buffer_store_dwordx2 v[20:21], v24, s[8:11], s28 offen{STF}")
        A.label(f"{name}_end2")
        A("s_and_b32 s38, s21, 1")
        A("s_lshl_b32 s38, s38, 4")
        A("s_add_u32 s38, s38, s22")
        pub_prep(A, ph, 32, 38)
    else:
        A("s_nop 1")
        for i in range(2):
            A(f"v_permlane16_swap_b32 {v(T+4*i)}, {v(T+4*i+2)}")
            A(f"v_permlane16_swap_b32 {v(T+4*i+1)}, {v(T+4*i+3)}")
        A("s_nop 1")
        for i in range(2):
            A(f"buffer_store_dwordx4 {v(T+4*i,4)}, v9, s[48:51], {s(35+i)} offen{OUTF}")
        if PROF:
            A("s_waitcnt vmcnt(0)")
            stamp(A, ph, 4)

def ph_gu(A):
    ph = 4
    R, SLOT, NST = 5, 30720, 32
    SL = R * SLOT
    A("s_and_b32 s21, s2, 1")
    A("s_lshl_b32 s21, s21, 2")
    A("s_bfe_u32 s28, s2, 0x20003")
    A("s_add_u32 s21, s21, s28")
    A("s_bfe_u32 s22, s2, 0x20001")
    A("s_lshl_b32 s22, s22, 3")
    A("s_lshr_b32 s28, s2, 5")
    A("s_add_u32 s22, s22, s28")
    def wdma():
        return [[f"s_add_u32 m0, {s(sWr)}, {s(sM)}", "s_mov_b64 exec, s[34:35]",
                 f"buffer_load_dwordx4 v7, s[12:15], {s(sGo)} offen lds",
                 f"buffer_load_dwordx4 v8, s[12:15], {s(sGo)} offen offset:896 lds",
                 f"s_add_u32 m0, m0, 7168", "s_nop 0",
                 f"buffer_load_dwordx4 v7, s[16:19], {s(sGo)} offen lds",
                 f"buffer_load_dwordx4 v8, s[16:19], {s(sGo)} offen offset:896 lds",
                 "s_mov_b64 exec, -1",
                 f"s_add_u32 {s(sGo)}, {s(sGo)}, {32*7168}"]]
    srd(A, 12, 44, 0, 7*MB)
    srd(A, 16, 46, 0, 7*MB)
    srd(A, 8, 6, WS_H, 4*MB)
    A("s_cmp_lt_u32 s20, 4")
    A("s_cbranch_scc1 gu_A0")
    if OPT("CT", 1) >= 2: code_touch(A, 255)
    A("v_mul_u32_u24 v7, 4682, v1")
    A("v_lshrrev_b32 v7, 16, v7")
    A("v_mul_u32_u24 v8, 14, v7")
    A("v_sub_u32 v8, v1, v8")
    A("v_mul_u32_u24 v7, 7168, v7")
    A("v_lshl_add_u32 v7, v8, 4, v7")
    A(f"v_add_u32 v8, {4*7168-896}, v7")
    A("s_mov_b32 s34, -1")
    A("s_mov_b32 s35, 0x00ffffff")
    A(f"s_mul_i32 s28, s31, {8*7168}")
    A("s_mul_i32 s29, s22, 224")
    A(f"s_add_u32 {s(sGo)}, s28, s29")
    A(f"s_mul_i32 {s(sM)}, s31, 1792")
    A(f"s_add_u32 {s(sM)}, {s(sM)}, 16384")
    GE = OPT("GE", 0)
    fill_ring(A, R, SLOT, wdma, 0, GE)
    if not OPT("PUBFIRST", 1):
        A(f"s_waitcnt vmcnt({4*GE})")
        stamp(A, 3, 4)
    publish(A)
    WE = OPT("WE_G", 5)
    fill_ring(A, R, SLOT, wdma, GE, WE)
    A("s_branch gu_C0")
    A.label("gu_A0")
    A("s_lshl_b32 s28, s21, 4")
    A("s_lshl_b32 s29, s31, 2")
    A("s_add_u32 s28, s28, s29")
    A(f"s_lshl_b32 {s(sGo)}, s28, 10")
    A(f"s_lshl_b32 {s(sM)}, s31, 12")
    if not OPT("EZ", 0):
        for i in range(32, 152): A(f"v_mov_b32 {v(i)}, 0")
    if not OPT("PUBFIRST", 1):
        A("s_waitcnt vmcnt(0)")
        stamp(A, 3, 4)
    publish(A)
    A.label("gu_C0")
    srd(A, 44, 6, WS_ST, 2048*128)
    srd(A, 48, 6, WS_CS, 4*7168*4)
    srd(A, 52, 6, WS_HACT, 2048*3584*2)
    A("s_and_b32 s36, s22, 1")
    A("s_cmp_eq_u32 s36, 1")
    A("s_cselect_b32 s37, 3, 0")
    A("s_cselect_b32 s38, 1, 4")
    A("s_cselect_b32 s39, 0, 6")
    A("s_cmp_ge_u32 s20, 4")
    A("s_cselect_b32 s37, s38, s37")
    A("s_lshl_b32 s28, s31, 12")
    A("v_add_u32 v10, s28, v6")
    A("v_lshl_add_u32 v11, v2, 2, v3")
    A("v_mul_u32_u24 v11, 224, v11")
    A("v_lshl_add_u32 v11, v4, 3, v11")
    A("v_add_u32 v11, 16384, v11")
    A("s_lshl_b32 s28, s39, 5")
    A("v_add_u32 v12, s28, v11")
    A("s_lshl_b32 s28, s37, 5")
    A("v_add_u32 v11, s28, v11")
    A("v_and_b32 v13, 255, v0")
    A("v_lshlrev_b32 v14, 3, v13")
    A("s_lshl_b32 s32, s21, 11")
    A("v_lshlrev_b32 v15, 2, v13")
    A(f"v_add_u32 v9, {(3584-112)*4}, v15")
    A("v_cmp_gt_u32 vcc, 112, v13")
    A("v_mov_b32 v19, 0x7fffffff")
    A("s_mul_i32 s33, s22, 448")
    A("v_cndmask_b32 v15, v9, v15, vcc")
    A("v_cmp_gt_u32 vcc, 224, v13")
    A("s_nop 1")
    A("v_cndmask_b32 v15, v19, v15, vcc")
    if not OPT("EZ", 0):
        A("s_cmp_lt_u32 s20, 4")
        A("s_cbranch_scc1 gu_Z")
        for i in range(32, 120): A(f"v_mov_b32 {v(i)}, 0")
        A.label("gu_Z")
    stamp(A, ph, 0)
    wait_flags(A, 3, 21, 32, also_all=None if OPT("EZ", 0) else 2)
    for i in range(24, 32): A(f"v_mov_b32 {v(i)}, 0")
    stamp(A, ph, 1)
    def body(nf, tag):
        def wsrc(j):
            if nf == 3 and j == 2: return 18, 0
            return 17, j * 32
        ACC = 24
        def acc(j, gu, i): return ACC + ((j * 2 + gu) * 4 + i) * 4
        NS = 16 + nf * 8
        SET = [ACC + nf * 32, ACC + nf * 32 + NS]
        def xf(p, i): return SET[p] + i * 4
        def wf(p, j, gu): return SET[p] + 16 + (j * 2 + gu) * 4
        if tag == "A":
            fill_ring(A, R, SLOT, lambda: xdma(0x20000), bar=True)
        else:
            fill_rest(A, R, SLOT, wdma, WE)
        hook = None
        if tag == "A" and OPT("CTG", 1):
            hook = {5: code_touch_list(A, "gu_epiA", 251, 252), ('x', 4): 1, ('x', 3): 1, ('x', 2): 1}
        if tag == "B":
            def ld16():
                o = []
                for j in range(16):
                    o += [f"buffer_load_dwordx2 {v(200+2*j,2)}, v14, s[44:47], s32 offen{LDF}", "s_add_u32 s32, s32, 16384"]
                return o
            def red16():
                o = []
                for j in range(1, 8):
                    for q in (200, 201, 216, 217):
                        o.append(f"v_add_f32 {v(q)}, {v(q)}, {v(q+2*j)}")
                return o
            h1 = ld16()
            for j in range(4):
                h1 += [f"buffer_load_dword {v(232+j)}, v15, s[48:51], s33 offen{LDF}", f"s_add_u32 s33, s33, {7168*4}"]
            hook = ["s_waitcnt vmcnt(0)"] + red16()
            hook += ["v_add_f32 v200, v200, v216", "v_add_f32 v201, v201, v217",
                "v_add_f32 v232, v232, v233", "v_add_f32 v234, v234, v235", "v_add_f32 v232, v232, v234",
                f"v_mul_f32 v200, {f32(-1/1024)}, v200", f"v_mul_f32 v201, {f32(1/1024)}, v201",
                "v_fma_f32 v201, -v200, v200, v201", "v_max_f32 v201, 0, v201", f"v_add_f32 v201, {f32(1e-5)}, v201",
                "v_rsq_f32 v202, v201", "v_sqrt_f32 v204, v201", "v_mov_b32 v201, v200",
                f"v_mul_f32 v202, {f32(-LOG2E)}, v202", "v_mov_b32 v205, v204", "v_mov_b32 v203, v202",
                "v_lshlrev_b32 v14, 4, v13", f"v_add_u32 v14, {SL}, v14", "ds_write_b128 v14, v[200:203]",
                "v_lshlrev_b32 v14, 3, v13", f"v_add_u32 v14, {SL+5120}, v14", "ds_write_b64 v14, v[204:205]",
                "v_lshlrev_b32 v15, 2, v13", f"v_add_u32 v15, {SL+4096}, v15", "ds_write_b32 v15, v232"]
            hook = {5: h1, 3: hook, ('x', 4): 20, ('x', 3): 20}
        def reads(p):
            out = []
            for i in range(4):
                out.append([f"ds_read_b128 {v(xf(p,i),4)}, v16 offset:{i*1024}"])
            for j in range(nf):
                ar, imm = wsrc(j)
                for gu in range(2):
                    for t in range(2):
                        out.append([f"ds_read_b64_tr_b16 {v(wf(p,j,gu)+2*t,2)}, {v(ar)} offset:{imm+gu*7168+t*3584}"])
            return out
        def addr_upd():
            o = [f"v_add_u32 v16, {s(sRd)}, v10", f"v_add_u32 v17, {s(sRd)}, v11"]
            if nf == 3: o.append(f"v_add_u32 v18, {s(sRd)}, v12")
            return o
        def mfmas(p):
            return [mf16(acc(j, gu, i), wf(p, j, gu), xf(p, i)) for j in range(nf) for gu in range(2) for i in (range(4) if (gu == 0 or not OPT("SNAKE", 1)) else range(3, -1, -1))]
        gemm_loop(A, ph, f"gu_loop{tag}", tag, R, SLOT, NST, 4, mfmas, reads, (lambda: xdma(0x20000)) if tag == "A" else wdma, addr_upd, hook)
        A.label(f"gu_epi{tag}")
        if tag == "B": A("s_barrier")
        A(f"s_load_dwordx2 s[44:45], s[0:1], {KA_OUT}")
        A(f"s_load_dwordx2 s[46:47], s[0:1], {KA_DBG}")
        STR = 232
        CSR = 200
        A("s_lshl_b32 s28, s31, 10")
        A(f"s_add_u32 s28, s28, {SL}")
        A("v_lshlrev_b32 v14, 4, v5")
        A("v_add_u32 v14, s28, v14")
        for i in range(4):
            A(f"ds_read_b128 {v(STR+4*i,4)}, v14 offset:{i*256}")
        SGR = 184
        A("s_lshl_b32 s28, s31, 9")
        A(f"s_add_u32 s28, s28, {SL+5120}")
        A("v_lshlrev_b32 v14, 3, v5")
        A("v_add_u32 v14, s28, v14")
        for i in range(4):
            A(f"ds_read_b64 {v(SGR+2*i,2)}, v14 offset:{i*128}")
        A("v_lshlrev_b32 v9, 4, v2")
        A("s_lshl_b32 s28, s37, 6")
        A(f"s_add_u32 s28, s28, {SL+4096}")
        A("v_add_u32 v14, s28, v9")
        A("s_lshl_b32 s28, s39, 6")
        A(f"s_add_u32 s28, s28, {SL+4096}")
        A("v_add_u32 v15, s28, v9")
        for j in range(nf):
            for gu in range(2):
                ar, imm = (15, 0) if (nf == 3 and j == 2) else (14, j * 64)
                A(f"ds_read_b128 {v(CSR+(j*2+gu)*4,4)}, {v(ar)} offset:{imm+gu*448}")
        A("s_mul_i32 s28, s22, 7")
        A("s_add_u32 s29, s28, s37")
        A("s_lshr_b32 s29, s29, 1")
        A("s_lshl_b32 s29, s29, 17")
        A("s_lshl_b32 s33, s21, 4")
        A("s_lshl_b32 s36, s31, 2")
        A("s_add_u32 s33, s33, s36")
        A("s_lshl_b32 s33, s33, 10")
        A("s_add_u32 s56, s29, s33")
        A("s_add_u32 s57, s56, 0x20000")
        A("s_add_u32 s29, s28, s39")
        A("s_and_b32 s36, s29, 1")
        A("s_lshl_b32 s36, s36, 3")
        A("s_lshr_b32 s29, s29, 1")
        A("s_lshl_b32 s29, s29, 17")
        A("s_add_u32 s58, s29, s33")
        A("s_add_u32 s58, s58, s36")
        T = SET[0]
        tix = 0
        A("s_waitcnt lgkmcnt(0)")
        if tag == "A": A("s_barrier")
        for jp in range(2):
            js = [2*jp, 2*jp+1] if 2*jp+1 < nf else [2*jp]
            for i in range(4):
                dst = T + 4 * (tix % 8); tix += 1
                c1 = v(STR+4*i+2, 2)
                nm_ = v(STR+4*i, 2)
                for j in js:
                    for gu in range(2):
                        a_ = acc(j, gu, i)
                        for h in range(2): A(f"v_pk_fma_f32 {v(a_+2*h,2)}, {v(CSR+(j*2+gu)*4+2*h,2)}, {nm_}, {v(a_+2*h,2)}")
                for j in js:
                    g_ = acc(j, 0, i)
                    for h in range(2): A(f"v_pk_mul_f32 {v(g_+2*h,2)}, {v(g_+2*h,2)}, {c1}")
                for j in js:
                    g_ = acc(j, 0, i)
                    for r in range(4): A(f"v_exp_f32 {v(g_+r)}, {v(g_+r)}")
                if len(js) == 1: A("s_nop 0")
                for j in js:
                    g_ = acc(j, 0, i)
                    for h in range(2): A(f"v_pk_fma_f32 {v(g_+2*h,2)}, {v(g_+2*h,2)}, {v(SGR+2*i,2)}, {v(SGR+2*i,2)}")
                for j in js:
                    g_ = acc(j, 0, i)
                    for r in range(4): A(f"v_rcp_f32 {v(g_+r)}, {v(g_+r)}")
                if len(js) == 1: A("s_nop 0")
                for j in js:
                    g_, u_ = acc(j, 0, i), acc(j, 1, i)
                    for h in range(2): A(f"v_pk_mul_f32 {v(u_+2*h,2)}, {v(u_+2*h,2)}, {v(g_+2*h,2)}")
                for jj, j in enumerate(js):
                    u_ = acc(j, 1, i)
                    for h in range(2):
                        A(f"v_cvt_pk_bf16_f32 {v(dst+2*jj+h)}, {v(u_+2*h)}, {v(u_+2*h+1)}")
                if len(js) == 2:
                    A(f"buffer_store_dwordx4 {v(dst,4)}, v6, s[52:55], {s(56+jp)} offen offset:{i*1024}{STF}")
                else:
                    A(f"buffer_store_dwordx2 {v(dst,2)}, v6, s[52:55], s58 offen offset:{i*1024}{STF}")
    A("s_cmp_ge_u32 s20, 4")
    A("s_cbranch_scc1 gu_B")
    body(4, "A")
    A("s_branch gu_end")
    A.label("gu_B")
    body(3, "B")
    A.label("gu_end")
    pub_prep(A, ph, 21, 22)


def ph_down2(A):
    ph = 5
    R, SLOT, NST = OPT("DR", 5), 32768, 28
    PSC = OPT("D2SC", 0)
    A("s_and_b32 s21, s2, 3")
    A("s_lshl_b32 s21, s21, 2")
    A("s_bfe_u32 s28, s2, 0x20003")
    A("s_add_u32 s21, s21, s28")
    A("s_lshr_b32 s22, s2, 5")
    A("s_bfe_u32 s26, s2, 0x10002")
    A("s_and_b32 s32, s20, 1")
    A("s_lshr_b32 s33, s20, 1")
    if PSC:
        A("s_add_u32 s39, s21, s22")
        A("s_and_b32 s39, s39, 3")
        A(f"s_mul_i32 s39, s39, {PSC//4}")
    srd(A, 12, 6, WS_WD, 7*MB)
    srd(A, 8, 6, WS_HACT, 2048*3584*2)
    wd = lambda: xdma(8192, PSC, 's[12:15]')
    xd = lambda: xdma(0x40000, PSC)
    srd(A, 52, 46, 0, 256)
    A("v_mov_b32 v20, 0")
    A("buffer_load_dwordx2 v[248:249], v20, s[52:55], 0 offen sc1")
    A("s_cmp_lt_u32 s20, 4")
    A("s_cbranch_scc1 d2_A0")
    A("s_lshl_b32 s28, s22, 1")
    A("s_lshr_b32 s29, s31, 1")
    A("s_add_u32 s28, s28, s29")
    A(f"s_mul_i32 s28, s28, {3584*128}")
    A(f"s_mul_i32 s29, s26, {1792*128}")
    A("s_add_u32 s28, s28, s29")
    A("s_and_b32 s29, s31, 1")
    A("s_lshl_b32 s29, s29, 12")
    A(f"s_add_u32 {s(sGo)}, s28, s29")
    if PSC: rot_init(A, 8192, PSC)
    A(f"s_lshl_b32 {s(sM)}, s31, 12")
    A(f"s_add_u32 {s(sM)}, {s(sM)}, 16384")
    WE = OPT("WE_D", 5)
    fill_ring(A, R, SLOT, wd, 0, WE)
    A("s_branch d2_C0")
    A.label("d2_A0")
    A("s_mul_i32 s28, s26, 56")
    A("s_lshr_b32 s29, s31, 1")
    A("s_add_u32 s28, s28, s29")
    A("s_lshl_b32 s28, s28, 7")
    A("s_lshl_b32 s29, s21, 3")
    A("s_add_u32 s28, s28, s29")
    A("s_and_b32 s29, s31, 1")
    A("s_lshl_b32 s29, s29, 2")
    A("s_add_u32 s28, s28, s29")
    A(f"s_lshl_b32 {s(sGo)}, s28, 10")
    if PSC: rot_init(A, 0x40000, PSC)
    A(f"s_lshl_b32 {s(sM)}, s31, 12")
    A.label("d2_C0")
    ACC = 32
    def acc(f, i): return ACC + (i * 2 + f) * 4
    SET = [64, 112]
    def xf(p, kk, i): return SET[p] + (kk * 4 + i) * 4
    def wf(p, kk, f): return SET[p] + 32 + (kk * 2 + f) * 4
    RES = 240
    A("s_lshl_b32 s34, s22, 2")
    A("s_add_u32 s34, s34, s33")
    A("s_lshl_b32 s34, s34, 7")
    A("s_lshl_b32 s35, s21, 3")
    A("s_lshl_b32 s36, s32, 2")
    A("s_add_u32 s35, s35, s36")
    A("s_lshl_b32 s36, s26, 1")
    A("s_add_u32 s35, s35, s36")
    A("s_add_u32 s34, s34, s35")
    A("s_lshl_b32 s34, s34, 10")
    A("s_lshl_b32 s35, s35, 15")
    A("s_lshl_b32 s36, s22, 8")
    A("s_add_u32 s35, s35, s36")
    A("s_lshl_b32 s36, s33, 6")
    A("s_add_u32 s35, s35, s36")
    A("s_add_u32 s36, s35, 32768")
    srd(A, 16, 6, WS_H, 4*MB)
    srd(A, 48, 44, 0, 4*MB)
    A("v_lshlrev_b32 v9, 11, v5")
    A("v_and_b32 v15, 1, v2")
    A("v_lshl_add_u32 v9, v15, 5, v9")
    A("v_lshrrev_b32 v15, 1, v2")
    A("v_lshl_add_u32 v9, v15, 4, v9")
    A("s_lshl_b32 s28, s32, 12")
    A("s_lshl_b32 s29, s26, 11")
    A("s_add_u32 s3, s28, s29")
    A("v_add_u32 v10, s3, v6")
    A("s_xor_b32 s3, s3, 2048")
    A("v_add_u32 v15, s3, v6")
    A("v_lshl_add_u32 v11, v2, 2, v3")
    A("v_lshlrev_b32 v11, 7, v11")
    A("v_lshl_add_u32 v11, v4, 3, v11")
    A("s_lshr_b32 s28, s33, 1")
    A("s_lshl_b32 s28, s28, 13")
    A("s_add_u32 s28, s28, 16384")
    A("v_add_u32 v11, s28, v11")
    A("v_bfe_u32 v12, v1, 3, 2")
    A("s_and_b32 s29, s33, 1")
    A("s_lshl_b32 s29, s29, 1")
    A("v_xor_b32 v13, s29, v12")
    A("v_lshl_add_u32 v13, v13, 5, v11")
    A("v_xor_b32 v14, 32, v13")
    for i in range(16): A(f"v_mov_b32 {v(acc(0,2)+i)}, 0")
    A("s_lshr_b32 s40, s21, 1")
    A("s_lshl_b32 s41, s26, 7")
    stamp(A, ph, 0)
    if OPT("XTAG", 3) == 3: wait_flags(A, 4, 40, 32)
    else: wait_flags(A, 4, 40, 16, soff=41)
    stamp(A, ph, 1)
    for i in range(2):
        A(f"buffer_load_dwordx4 {v(RES+4*i,4)}, v6, s[16:19], s34 offen offset:{i*1024}{LDF}")
    def accinit():
        for i in range(2):
            for f in range(2):
                for h in range(2):
                    src = RES + 4*i + 2*f + h
                    A(f"v_lshlrev_b32 {v(acc(f,i)+2*h)}, 16, {v(src)}")
                    A(f"v_and_b32 {v(acc(f,i)+2*h+1)}, 0xffff0000, {v(src)}")
        if OPT("XTAG", 3) == 2:
            for q in (163, 167, 170, 171): A(f"v_mov_b32 {v(q)}, v248")
            srd(A, 52, 6, WS_XB, 9*MB)
            A("s_lshl_b32 s28, s2, 3")
            A("s_add_u32 s28, s28, s20")
            A("s_xor_b32 s29, s28, 32")
            A("s_lshl_b32 s40, s28, 12")
            A("s_lshl_b32 s41, s29, 12")
        if OPT("XTAG", 3) == 3:
            srd(A, 52, 6, WS_O, 9*MB)
            A("s_and_b32 s28, s21, 1")
            A("s_lshl_b32 s28, s28, 4")
            A("s_lshl_b32 s29, s26, 3")
            A("s_add_u32 s28, s28, s29")
            A("s_add_u32 s28, s28, s22")
            A("s_lshr_b32 s29, s21, 1")
            A("s_lshl_b32 s40, s28, 17")
            A("s_lshl_b32 s3, s29, 14")
            A("s_add_u32 s40, s40, s3")
            A("s_lshl_b32 s3, s20, 11")
            A("s_add_u32 s40, s40, s3")
            A("s_xor_b32 s41, s40, 0x100000")
            A("s_lshr_b32 s42, s28, 1")
            A("s_lshl_b32 s42, s42, 14")
            A("s_lshl_b32 s3, s29, 11")
            A("s_add_u32 s42, s42, s3")
            A("s_and_b32 s3, s28, 1")
            A("s_lshl_b32 s3, s3, 10")
            A("s_add_u32 s42, s42, s3")
            A("s_lshl_b32 s3, s20, 7")
            A("s_add_u32 s42, s42, s3")
            A("s_xor_b32 s43, s42, 0x10000")
            A(f"s_add_u32 s42, s42, {WS_ST - WS_O}")
            A(f"s_add_u32 s43, s43, {WS_ST - WS_O}")
            A("v_mov_b32 v20, 0")
            return
        A("s_movk_i32 s42, 0xfff")
        A("v_mov_b32 v244, v248")
        A("v_lshrrev_b32 v245, 12, v248")
        A("v_alignbit_b32 v246, v249, v248, 24")
        A("v_lshrrev_b32 v247, 4, v249")
    def reads(p):
        out = []
        for kk in range(2):
            for f in range(2):
                for t in range(2):
                    out.append([f"ds_read_b64_tr_b16 {v(wf(p,kk,f)+2*t,2)}, {v(17+f)} offset:{kk*4096+t*2048}"])
            for i in range(4):
                out.append([f"ds_read_b128 {v(xf(p,kk,i),4)}, {v(16 if i < 2 else 19)} offset:{kk*8192+(i&1)*1024}"])
        return out
    def addr_upd():
        return [f"v_add_u32 v16, {s(sRd)}, v10", f"v_add_u32 v17, {s(sRd)}, v13", f"v_add_u32 v18, {s(sRd)}, v14", f"v_add_u32 v19, {s(sRd)}, v15"]
    def mfmas(p):
        return [mf16(acc(f, i), wf(p, kk, f), xf(p, kk, i)) for ii in (2, 0) for kk in range(2) for f in range(2) for i in (ii, ii + 1)]
    DST = [160, 161, 162, 164, 165, 166, 168, 169]
    send = []
    if OPT("XTAG", 3) == 2:
        send = ["s_nop 4"]
        for q in range(8):
            send.append(f"v_cvt_pk_bf16_f32 {v(DST[q])}, {v(acc(0,2)+2*q)}, {v(acc(0,2)+2*q+1)}")
            if q in (2, 5, 7): send.append(f"buffer_store_dwordx4 {v(160+4*(q//3),4)}, v6, s[52:55], s40 offen offset:{(q//3)*1024} sc1")
    if OPT("XTAG", 3) == 3:
        send = ["s_nop 4"]
        for q in range(8):
            send.append(f"v_cvt_pk_bf16_f32 {v(160+q)}, {v(acc(0,2)+2*q)}, {v(acc(0,2)+2*q+1)}")
            if q in (3, 7): send.append(f"buffer_store_dwordx4 {v(160+q-3,4)}, v6, s[52:55], s40 offen offset:{(q//4)*1024} sc1")
    hookS = {1: send, 'lastpos': 11} if send else {}
    A("s_cmp_ge_u32 s20, 4")
    A("s_cbranch_scc1 d2_B")
    fill_ring(A, R, SLOT, xd, bar=True)
    A(f"s_waitcnt vmcnt({4*R})")
    accinit()
    gemm_loop(A, ph, "d2_loopA", "A", R, SLOT, NST, 4, mfmas, reads, xd, addr_upd,
              {5: code_touch_list(A, "d2_epi", 251, 252), ('x', 4): 1, ('x', 3): 1, ('x', 2): 1, **hookS})
    A("s_branch d2_epi")
    A.label("d2_B")
    fill_rest(A, R, SLOT, wd, WE)
    A(f"s_waitcnt vmcnt({4*(R-WE)})")
    accinit()
    gemm_loop(A, ph, "d2_loopB", "B", R, SLOT, NST, 4, mfmas, reads, wd, addr_upd, hookS)
    A.label("d2_epi")
    if OPT("XTAG", 3) == 3:
        A(f"s_mov_b32 s28, {SPIN_MAX}")
        A("s_waitcnt vmcnt(0)")
        if OPT("XDBG", 0): stamp(A, ph, 0)
        A("s_mov_b64 exec, 1")
        A("buffer_store_dwordx2 v[248:249], v20, s[52:55], s42 offen sc1")
        A.label("d2_poll")
        A("buffer_load_dwordx2 v[22:23], v20, s[52:55], s43 offen sc1")
        A("s_waitcnt vmcnt(0)")
        A("v_cmp_ne_u64 vcc, v[248:249], v[22:23]")
        A("s_nop 1")
        A("s_cmp_eq_u64 vcc, 0")
        A("s_cbranch_scc1 d2_got")
        A("s_sleep 1")
        A("s_sub_u32 s28, s28, 1")
        A("s_cmp_lg_u32 s28, 0")
        A("s_cbranch_scc1 d2_poll")
        A.label("d2_got")
        A("s_mov_b64 exec, -1")
        if OPT("XDBG", 0): stamp(A, ph, 1)
        for j in range(2):
            A(f"buffer_load_dwordx4 {v(64+4*j,4)}, v6, s[52:55], s41 offen offset:{j*1024} sc1")
        T = 112
        for i in range(2):
            A("s_waitcnt vmcnt(1)")
            for q in range(4):
                A(f"v_lshlrev_b32 {v(84+2*q)}, 16, {v(64+4*i+q)}")
                A(f"v_and_b32 {v(85+2*q)}, 0xffff0000, {v(64+4*i+q)}")
            for q in range(4):
                A(f"v_pk_add_f32 {v(ACC+8*i+2*q,2)}, {v(ACC+8*i+2*q,2)}, {v(84+2*q,2)}")
            for q in range(4):
                A(f"v_cvt_pk_bf16_f32 {v(T+4*i+q)}, {v(ACC+8*i+2*q)}, {v(ACC+8*i+2*q+1)}")
            A("s_nop 1")
            A(f"v_permlane16_swap_b32 {v(T+4*i)}, {v(T+4*i+2)}")
            A(f"v_permlane16_swap_b32 {v(T+4*i+1)}, {v(T+4*i+3)}")
            A("s_nop 1")
            A(f"buffer_store_dwordx4 {v(T+4*i,4)}, v9, s[48:51], {s(35+i)} offen{OUTF}")
        if PROF:
            A("s_waitcnt vmcnt(0)")
            stamp(A, ph, 4)
        return
    if OPT("XTAG", 3) == 2:
        A(f"s_mov_b32 s28, {SPIN_MAX}")
        if OPT("XW", 1): A("s_waitcnt vmcnt(0)")
        if OPT("XDBG", 0): stamp(A, ph, 0)
        A.label("d2_poll")
        for j in range(3):
            A(f"buffer_load_dwordx4 {v(64+4*j,4)}, v6, s[52:55], s41 offen offset:{j*1024} sc1")
        A("s_waitcnt vmcnt(0)")
        A("v_xor_b32 v80, v248, v67")
        A("v_xor_b32 v81, v248, v71")
        A("v_xor_b32 v82, v248, v75")
        A("v_or3_b32 v80, v80, v81, v82")
        A("v_cmp_ne_u32 vcc, 0, v80")
        A("s_nop 1")
        A("s_cmp_eq_u64 vcc, 0")
        A("s_cbranch_scc1 d2_got")
        A(f"s_sleep {OPT('XSLEEP', 1)}")
        A("s_sub_u32 s28, s28, 1")
        A("s_cmp_lg_u32 s28, 0")
        A("s_cbranch_scc1 d2_poll")
        A.label("d2_got")
        if OPT("XDBG", 0): stamp(A, ph, 1)
        T = 112
        for i in range(2):
            for q in range(4):
                src = DST[4*i+q] - 96
                A(f"v_lshlrev_b32 {v(84+2*q)}, 16, {v(src)}")
                A(f"v_and_b32 {v(85+2*q)}, 0xffff0000, {v(src)}")
            for q in range(4):
                A(f"v_pk_add_f32 {v(ACC+8*i+2*q,2)}, {v(ACC+8*i+2*q,2)}, {v(84+2*q,2)}")
            for q in range(4):
                A(f"v_cvt_pk_bf16_f32 {v(T+4*i+q)}, {v(ACC+8*i+2*q)}, {v(ACC+8*i+2*q+1)}")
            A("s_nop 1")
            A(f"v_permlane16_swap_b32 {v(T+4*i)}, {v(T+4*i+2)}")
            A(f"v_permlane16_swap_b32 {v(T+4*i+1)}, {v(T+4*i+3)}")
            A("s_nop 1")
            A(f"buffer_store_dwordx4 {v(T+4*i,4)}, v9, s[48:51], {s(35+i)} offen{OUTF}")
        if PROF:
            A("s_waitcnt vmcnt(0)")
            stamp(A, ph, 4)
        return
    srd(A, 8, 6, WS_Q if OPT('XBQ', 0) else WS_XB, 9*MB)
    A("s_lshl_b32 s28, s2, 3")
    A("s_add_u32 s28, s28, s20")
    A("s_xor_b32 s29, s28, 32")
    A("s_lshl_b32 s40, s28, 12")
    A("s_lshl_b32 s41, s29, 12")
    XTAG = OPT("XTAG", 3)
    if XTAG:
        for j in range(4):
            for r in range(4):
                A(f"v_bfi_b32 {v(acc(0,2)+4*j+r)}, s42, {v(244+r)}, {v(acc(0,2)+4*j+r)}")
            A(f"buffer_store_dwordx4 {v(acc(0,2)+4*j,4)}, v6, s[8:11], s40 offen offset:{j*1024} sc1")
        A(f"s_mov_b32 s28, {SPIN_MAX}")
        if OPT("XW", 1): A("s_waitcnt vmcnt(0)")
        if OPT("XDBG", 0): stamp(A, ph, 0)
        A.label("d2_poll")
        for j in range(4):
            A(f"buffer_load_dwordx4 {v(64+4*j,4)}, v6, s[8:11], s41 offen offset:{j*1024} sc1")
        for j in range(4):
            A(f"s_waitcnt vmcnt({3-j})")
            for r in range(4):
                A(f"v_xor_b32 {v(80+4*j+r)}, {v(244+r)}, {v(64+4*j+r)}")
            A(f"v_or3_b32 {v(80+4*j)}, {v(80+4*j)}, {v(81+4*j)}, {v(82+4*j)}")
            if j: A(f"v_or3_b32 {v(80+4*j)}, {v(80+4*j)}, {v(83+4*j)}, {v(76+4*j)}")
            else: A(f"v_or_b32 {v(80)}, {v(80)}, {v(83)}")
        A("v_and_b32 v92, s42, v92")
        A("v_cmp_ne_u32 vcc, 0, v92")
        A("s_nop 1")
        A("s_cmp_eq_u64 vcc, 0")
        A("s_cbranch_scc1 d2_got")
        A("s_sleep 1")
        A("s_sub_u32 s28, s28, 1")
        A("s_cmp_lg_u32 s28, 0")
        A("s_cbranch_scc1 d2_poll")
        A.label("d2_got")
        if OPT("XDBG", 0): stamp(A, ph, 1)
    else:
        for j in range(4):
            A(f"buffer_store_dwordx4 {v(acc(0,2)+4*j,4)}, v6, s[8:11], s40 offen offset:{j*1024} sc1")
        A(f"s_lshl_b32 s42, s28, {OPT('XFS', 7)}")
        A(f"s_add_u32 s42, s42, {8*MB}")
        A(f"s_lshl_b32 s43, s29, {OPT('XFS', 7)}")
        A(f"s_add_u32 s43, s43, {8*MB}")
        A("v_mov_b32 v20, 0")
        A(f"s_mov_b32 s28, {SPIN_MAX}")
        A("s_waitcnt vmcnt(0)")
        if OPT("XDBG", 0): stamp(A, ph, 0)
        A("s_mov_b64 exec, 1")
        A("buffer_store_dwordx2 v[248:249], v20, s[8:11], s42 offen sc1")
        A.label("d2_poll")
        A("buffer_load_dwordx2 v[22:23], v20, s[8:11], s43 offen sc1")
        A("s_waitcnt vmcnt(0)")
        A("v_cmp_ne_u64 vcc, v[248:249], v[22:23]")
        A("s_nop 1")
        A("s_cmp_eq_u64 vcc, 0")
        A("s_cbranch_scc1 d2_got")
        if OPT("XSLEEP", 1): A(f"s_sleep {OPT('XSLEEP', 1)}")
        A("s_sub_u32 s28, s28, 1")
        A("s_cmp_lg_u32 s28, 0")
        A("s_cbranch_scc1 d2_poll")
        A.label("d2_got")
        A("s_mov_b64 exec, -1")
        if OPT("XDBG", 0): stamp(A, ph, 1)
        for j in range(4):
            A(f"buffer_load_dwordx4 {v(64+4*j,4)}, v6, s[8:11], s41 offen offset:{j*1024} sc1")
    T = 112
    for i in range(2):
        if not XTAG: A(f"s_waitcnt vmcnt({2 - 2*i + i})")
        for q in range(4):
            A(f"v_pk_add_f32 {v(ACC+8*i+2*q,2)}, {v(ACC+8*i+2*q,2)}, {v(64+8*i+2*q,2)}")
        for f in range(2):
            for h in range(2):
                A(f"v_cvt_pk_bf16_f32 {v(T+4*i+2*f+h)}, {v(acc(f,i)+2*h)}, {v(acc(f,i)+2*h+1)}")
        A("s_nop 1")
        A(f"v_permlane16_swap_b32 {v(T+4*i)}, {v(T+4*i+2)}")
        A(f"v_permlane16_swap_b32 {v(T+4*i+1)}, {v(T+4*i+3)}")
        A("s_nop 1")
        A(f"buffer_store_dwordx4 {v(T+4*i,4)}, v9, s[48:51], {s(35+i)} offen{OUTF}")
    if PROF:
        A("s_waitcnt vmcnt(0)")
        stamp(A, ph, 4)


def ph_down3(A):
    ph = 5
    R, SLOT = OPT("DR", 5), 32768
    N0 = OPT("N0", 26)
    T = R + (R % 2)
    A("s_and_b32 s21, s2, 3")
    A("s_lshl_b32 s21, s21, 2")
    A("s_bfe_u32 s28, s2, 0x20003")
    A("s_add_u32 s21, s21, s28")
    A("s_lshr_b32 s22, s2, 5")
    A("s_bfe_u32 s26, s2, 0x10002")
    A("s_and_b32 s32, s20, 1")
    A("s_lshr_b32 s33, s20, 1")
    srd(A, 12, 6, WS_WD, 7*MB)
    srd(A, 8, 6, WS_HACT, 2048*3584*2)
    wd = lambda: xdma(8192, 0, 's[12:15]')
    xd = lambda: xdma(0x40000, 0)
    A("s_cmp_lt_u32 s20, 4")
    A("s_cbranch_scc1 d3_A0")
    A("s_lshl_b32 s28, s22, 1")
    A("s_lshr_b32 s29, s31, 1")
    A("s_add_u32 s28, s28, s29")
    A(f"s_mul_i32 s28, s28, {3584*128}")
    A(f"s_mul_i32 s29, s26, {N0*64*128}")
    A("s_add_u32 s28, s28, s29")
    A("s_and_b32 s29, s31, 1")
    A("s_lshl_b32 s29, s29, 12")
    A(f"s_add_u32 {s(sGo)}, s28, s29")
    A(f"s_lshl_b32 {s(sM)}, s31, 12")
    A(f"s_add_u32 {s(sM)}, {s(sM)}, 16384")
    srd(A, 52, 46, 0, 256)
    A("v_mov_b32 v20, 0")
    A("buffer_load_dwordx2 v[248:249], v20, s[52:55], 0 offen sc1")
    fill_ring(A, R, SLOT, wd)
    A("s_branch d3_C0")
    A.label("d3_A0")
    A(f"s_mul_i32 s28, s26, {2*N0}")
    A("s_lshr_b32 s29, s31, 1")
    A("s_add_u32 s28, s28, s29")
    A("s_lshl_b32 s28, s28, 7")
    A("s_lshl_b32 s29, s21, 3")
    A("s_add_u32 s28, s28, s29")
    A("s_and_b32 s29, s31, 1")
    A("s_lshl_b32 s29, s29, 2")
    A("s_add_u32 s28, s28, s29")
    A(f"s_lshl_b32 {s(sGo)}, s28, 10")
    A(f"s_lshl_b32 {s(sM)}, s31, 12")
    A.label("d3_C0")
    ACC = 32
    def acc(f, i): return ACC + (i * 2 + f) * 4
    SET = [64, 112]
    def xf(p, kk, i): return SET[p] + (kk * 4 + i) * 4
    def wf(p, kk, f): return SET[p] + 32 + (kk * 2 + f) * 4
    RES = 224
    A("s_lshl_b32 s34, s22, 2")
    A("s_add_u32 s34, s34, s33")
    A("s_lshl_b32 s34, s34, 7")
    A("s_lshl_b32 s35, s21, 3")
    A("s_lshl_b32 s36, s32, 2")
    A("s_add_u32 s35, s35, s36")
    A("s_add_u32 s34, s34, s35")
    A("s_lshl_b32 s34, s34, 10")
    A("s_lshl_b32 s35, s35, 15")
    A("s_lshl_b32 s36, s22, 8")
    A("s_add_u32 s35, s35, s36")
    A("s_lshl_b32 s36, s33, 6")
    A("s_add_u32 s35, s35, s36")
    A("s_add_u32 s36, s35, 32768")
    A("s_add_u32 s37, s36, 32768")
    A("s_add_u32 s38, s37, 32768")
    srd(A, 16, 6, WS_H, 4*MB)
    A("s_cmp_eq_u32 s26, 0")
    A(f"s_cselect_b32 s18, 0, {4*MB}")
    A(f"s_cselect_b32 s39, {(N0-T)//2}, {(56-N0-T)//2}")
    srd(A, 48, 44, 0, 4*MB)
    A("v_lshlrev_b32 v9, 11, v5")
    A("v_and_b32 v15, 1, v2")
    A("v_lshl_add_u32 v9, v15, 5, v9")
    A("v_lshrrev_b32 v15, 1, v2")
    A("v_lshl_add_u32 v9, v15, 4, v9")
    A("s_lshl_b32 s28, s32, 12")
    A("v_add_u32 v10, s28, v6")
    A("v_lshl_add_u32 v11, v2, 2, v3")
    A("v_lshlrev_b32 v11, 7, v11")
    A("v_lshl_add_u32 v11, v4, 3, v11")
    A("s_lshr_b32 s28, s33, 1")
    A("s_lshl_b32 s28, s28, 13")
    A("s_add_u32 s28, s28, 16384")
    A("v_add_u32 v11, s28, v11")
    A("v_bfe_u32 v12, v1, 3, 2")
    A("s_and_b32 s29, s33, 1")
    A("s_lshl_b32 s29, s29, 1")
    A("v_xor_b32 v13, s29, v12")
    A("v_lshl_add_u32 v13, v13, 5, v11")
    A("v_xor_b32 v14, 32, v13")
    A("s_lshr_b32 s28, s2, 3")
    A("s_lshl_b32 s28, s28, 2")
    A("s_and_b32 s29, s2, 3")
    A("s_add_u32 s28, s28, s29")
    A("s_lshl_b32 s28, s28, 3")
    A("s_add_u32 s28, s28, s20")
    A("s_lshl_b32 s41, s28, 13")
    A("s_add_u32 s42, s41, 4096")
    A("s_lshl_b32 s43, s28, 7")
    A(f"s_add_u32 s43, s43, {8*MB}")
    A("s_lshr_b32 s40, s21, 1")
    stamp(A, ph, 0)
    wait_flags(A, 4, 40, 32)
    stamp(A, ph, 1)
    for i in range(4):
        A(f"buffer_load_dwordx4 {v(RES+4*i,4)}, v6, s[16:19], s34 offen offset:{i*1024}{LDF}")
    def accinit():
        for i in range(4):
            for f in range(2):
                for h in range(2):
                    src = RES + 4*i + 2*f + h
                    A(f"v_lshlrev_b32 {v(acc(f,i)+2*h)}, 16, {v(src)}")
                    A(f"v_and_b32 {v(acc(f,i)+2*h+1)}, 0xffff0000, {v(src)}")
    def reads(p):
        out = []
        for kk in range(2):
            for f in range(2):
                for t in range(2):
                    out.append([f"ds_read_b64_tr_b16 {v(wf(p,kk,f)+2*t,2)}, {v(17+f)} offset:{kk*4096+t*2048}"])
            for i in range(4):
                out.append([f"ds_read_b128 {v(xf(p,kk,i),4)}, v16 offset:{kk*8192+i*1024}"])
        return out
    def addr_upd():
        return [f"v_add_u32 v16, {s(sRd)}, v10", f"v_add_u32 v17, {s(sRd)}, v13", f"v_add_u32 v18, {s(sRd)}, v14"]
    def mfmas(p):
        return [mf16(acc(f, i), wf(p, kk, f), xf(p, kk, i)) for kk in range(2) for f in range(2) for i in range(4)]
    A("s_cmp_ge_u32 s20, 4")
    A("s_cbranch_scc1 d3_B")
    fill_ring(A, R, SLOT, xd, bar=True)
    A(f"s_waitcnt vmcnt({4*R})")
    accinit()
    gemm_loop(A, ph, "d3_loopA", "A", R, SLOT, 28, 4, mfmas, reads, xd, addr_upd, cnt_sgpr=39)
    A("s_branch d3_epi")
    A.label("d3_B")
    fill_ring(A, R, SLOT, None, bar=True)
    A("s_waitcnt vmcnt(0)")
    accinit()
    gemm_loop(A, ph, "d3_loopB", "B", R, SLOT, 28, 4, mfmas, reads, wd, addr_upd, cnt_sgpr=39)
    A.label("d3_epi")
    srd(A, 8, 6, WS_Q, 9*MB)
    A("v_mov_b32 v20, 0")
    A("s_cmp_lg_u32 s26, 0")
    A("s_cbranch_scc1 d3_recv")
    for j in range(8):
        A(f"buffer_store_dwordx4 {v(ACC+4*j,4)}, v6, s[8:11], {s(41 + j//4)} offen offset:{(j%4)*1024} sc1")
    A("s_waitcnt vmcnt(0)")
    A("s_mov_b64 exec, 1")
    A("buffer_store_dwordx2 v[248:249], v20, s[8:11], s43 offen sc1")
    A("s_mov_b64 exec, -1")
    A("s_branch d3_end")
    A.label("d3_recv")
    A(f"s_mov_b32 s28, {SPIN_MAX}")
    A("s_mov_b64 exec, 1")
    A.label("d3_poll")
    A("buffer_load_dwordx2 v[22:23], v20, s[8:11], s43 offen sc1")
    A("s_waitcnt vmcnt(0)")
    A("v_cmp_ne_u64 vcc, v[248:249], v[22:23]")
    A("s_nop 1")
    A("s_cmp_eq_u64 vcc, 0")
    A("s_cbranch_scc1 d3_got")
    A("s_sleep 1")
    A("s_sub_u32 s28, s28, 1")
    A("s_cmp_lg_u32 s28, 0")
    A("s_cbranch_scc1 d3_poll")
    A.label("d3_got")
    A("s_mov_b64 exec, -1")
    for j in range(8):
        A(f"buffer_load_dwordx4 {v(64+4*j,4)}, v6, s[8:11], {s(41 + j//4)} offen offset:{(j%4)*1024} sc1")
    TT = 112
    for i in range(4):
        A(f"s_waitcnt vmcnt({6 - 2*i + i})")
        for q in range(4):
            A(f"v_pk_add_f32 {v(ACC+8*i+2*q,2)}, {v(ACC+8*i+2*q,2)}, {v(64+8*i+2*q,2)}")
        for f in range(2):
            for h in range(2):
                A(f"v_cvt_pk_bf16_f32 {v(TT+4*i+2*f+h)}, {v(acc(f,i)+2*h)}, {v(acc(f,i)+2*h+1)}")
        A("s_nop 1")
        A(f"v_permlane16_swap_b32 {v(TT+4*i)}, {v(TT+4*i+2)}")
        A(f"v_permlane16_swap_b32 {v(TT+4*i+1)}, {v(TT+4*i+3)}")
        A("s_nop 1")
        A(f"buffer_store_dwordx4 {v(TT+4*i,4)}, v9, s[48:51], {s(35+i)} offen{OUTF}")
    A.label("d3_end")
    if PROF:
        A("s_waitcnt vmcnt(0)")
        stamp(A, ph, 4)
```

```python
import sys, math, os, struct
from asmlib import *

MB = 1 << 20
WS_XN, WS_Q, WS_K, WS_VT, WS_O, WS_H, WS_ST, WS_CS, WS_FL, WS_HACT = 0, 4*MB, 8*MB, 12*MB, 16*MB, 20*MB, 24*MB, 25*MB, 26*MB, 32*MB
if int(os.environ.get('HACT0', '1')): WS_HACT = 0
WS_DBG = 48*MB
WS_RS = 27*MB
WS_XB = 72*MB
WS_WD = 64*MB
KA_X, KA_WQKV, KA_WO, KA_BX, KA_WG, KA_WU, KA_WD, KA_OUT, KA_DBG, KA_WS = 0, 8, 16, 24, 32, 40, 48, 56, 64, 72
LOG2E = math.log2(math.e)
QSCALE = LOG2E / math.sqrt(32.0)
def f32(x): return hex(struct.unpack("<I", struct.pack("<f", x))[0])
def OPT(name, default): return int(os.environ.get(name, str(default)))
def SOPT(name, default): return os.environ.get(name, default)
PROF = OPT("PROF", 0)
STF = " sc1"
LDF = SOPT("LDF", " sc1")
OUTF = SOPT("OUTF", "")
NAME = "sequential_preLN__mha_block__glu_gated_glu__prompt_kernel"

sNON = 62
def stamp(A, ph, i):
    if not PROF: return
    A("s_memrealtime s[64:65]")
    A("s_waitcnt lgkmcnt(0)")
    A(f"s_mov_b32 {s(66+ph*6+i)}, s64")
def cyc(A, ph, end):
    if not PROF: return
    A("s_memtime s[64:65]")
    A("s_waitcnt lgkmcnt(0)")
    if not end: A(f"s_mov_b32 {s(66+ph*6+5)}, s64")
    else: A(f"s_sub_u32 {s(66+ph*6+5)}, s64, {s(66+ph*6+5)}")
def stamp_flush(A):
    if not PROF: return
    if PROF == 2:
        A(f"s_load_dwordx2 s[4:5], s[0:1], {KA_DBG}")
        A("s_waitcnt lgkmcnt(0)")
        srd(A, 8, 4, 0, 256)
        A(f"s_cmp_lg_u32 s2, {OPT('DBGWG', 0)}")
        A("s_cbranch_scc1 the_end")
        A("s_cmp_lg_u32 s20, 0")
        A("s_cbranch_scc1 the_end")
        A("s_mov_b64 exec, 1")
        A("v_mov_b32 v0, 0")
        sel = [(0,3),(0,4),(1,1),(1,2),(1,3),(2,2),(2,3),(3,2),(3,3),(4,2),(4,3),(5,2),(5,3),(5,4)]
        for i, (ph, j) in enumerate(sel):
            A(f"s_sub_u32 s3, {s(66+ph*6+j)}, s66")
            A(f"v_mov_b32 {v(1+i)}, s3")
            A(f"buffer_store_dword {v(1+i)}, v0, s[8:11], 0 offen offset:{8+4*i}")
        return
    A("s_mov_b64 exec, 1")
    srd(A, 8, 6, WS_DBG, 16*MB)
    A("s_lshl_b32 s3, s2, 3")
    A("s_add_u32 s3, s3, s20")
    A("s_lshl_b32 s3, s3, 8")
    A("v_mov_b32 v0, 0")
    for i in range(36):
        A(f"v_mov_b32 {v(1+i)}, {s(66+i)}")
    for i in range(36):
        A(f"buffer_store_dword {v(1+i)}, v0, s[8:11], s3 offen offset:{4*i}")

def mf16(d, A_, B_, c=None):
    c = v(d, 4) if c is None else c
    return f"v_mfma_f32_16x16x32_bf16 {v(d,4)}, {v(A_,4)}, {v(B_,4)}, {c}"
def mf32(d, A_, B_, c=None):
    c = v(d, 16) if c is None else c
    return f"v_mfma_f32_32x32x16_bf16 {v(d,16)}, {v(A_,4)}, {v(B_,4)}, {c}"
def reduce_rows16_32(A, xs, ts):
    for op in ("v_permlane16_swap_b32", "v_permlane32_swap_b32"):
        for x, t in zip(xs, ts): A(f"v_mov_b32 {v(t)}, {v(x)}")
        A("s_nop 1")
        for x, t in zip(xs, ts): A(f"{op} {v(t)}, {v(x)}")
        A("s_nop 1")
        for x, t in zip(xs, ts): A(f"v_add_f32 {v(x)}, {v(x)}, {v(t)}")
def lane_decomp(A):
    A("v_and_b32 v1, 63, v0")
    A("v_lshrrev_b32 v2, 4, v1")
    A("v_bfe_u32 v3, v1, 2, 2")
    A("v_and_b32 v4, 3, v1")
    A("v_and_b32 v5, 15, v1")
    A("v_lshlrev_b32 v6, 4, v1")
def emit(A, L):
    for i in L:
        if isinstance(i, list): emit(A, i)
        else: A(i)

SPIN_MAX = 1 << 18
def pub_prep(A, ph, sg, sj):
    A(f"s_lshl_b32 s3, {s(sg)}, 8")
    A(f"s_lshl_b32 s28, {s(sj)}, 3")
    A("s_add_u32 s3, s3, s28")
    A(f"s_add_u32 s3, s3, {ph*4096}")
    A("v_mov_b32 v250, s3")
    if OPT("PUBFIRST", 1) and ph > 0:
        A("s_waitcnt vmcnt(0)")
        stamp(A, ph, 4)
        publish(A, force=True)
def publish(A, force=False):
    if OPT("PUBFIRST", 1) and not force: return
    srd(A, 56, 6, WS_FL, 6 * 4096)
    A("s_barrier")
    skip = A.newlabel("pub_skip")
    A("s_cmp_lg_u32 s20, 0")
    A(f"s_cbranch_scc1 {skip}")
    A("s_mov_b64 exec, 1")
    A("buffer_store_dwordx2 v[248:249], v250, s[56:59], 0 offen sc1")
    A("s_mov_b64 exec, -1")
    A.label(skip)

def wait_flags(A, ph, sg, n, also_all=None, soff=None):
    skip = A.newlabel("wf_skip"); loop = A.newlabel("wf_loop"); done = A.newlabel("wf_done")
    A("s_cmp_lg_u32 s20, 0")
    A(f"s_cbranch_scc1 {skip}")
    srd(A, 56, 6, WS_FL, 6 * 4096)
    A(f"s_lshl_b32 s3, {s(sg)}, 8")
    A(f"s_add_u32 s3, s3, {ph*4096}")
    if soff is not None: A(f"s_add_u32 s3, s3, {s(soff)}")
    A(f"v_and_b32 v22, {n-1}, v0")
    A("v_lshlrev_b32 v22, 3, v22")
    A("v_lshlrev_b32 v23, 3, v0")
    if also_all is not None: A(f"s_mov_b32 s29, {also_all*4096}")
    A(f"s_mov_b32 s28, {SPIN_MAX}")
    PP = OPT("PPOLL", 0)
    if also_all is not None:
        l2 = A.newlabel("wf_all")
        A.label(l2)
        for j in range(4):
            A(f"buffer_load_dwordx2 {v(24+2*j,2)}, v23, s[56:59], s29 offen offset:{j*512} sc1")
        A("buffer_load_dwordx2 v[252:253], v22, s[56:59], s3 offen sc1")
        A("s_waitcnt vmcnt(1)")
        A(f"v_cmp_ne_u64 vcc, {s(sNON,2)}, v[24:25]")
        for j in range(1, 4):
            A(f"v_cmp_ne_u64 s[60:61], {s(sNON,2)}, {v(24+2*j,2)}")
            A("s_nop 1")
            A("s_or_b64 vcc, vcc, s[60:61]")
        A("s_sub_u32 s28, s28, 1")
        A("s_cmp_eq_u32 s28, 0")
        A(f"s_cbranch_scc1 {skip}")
        A("s_cmp_eq_u64 vcc, 0")
        A(f"s_cbranch_scc0 {l2}")
    else:
        A("buffer_load_dwordx2 v[252:253], v22, s[56:59], s3 offen sc1")
    if PP:
        A(f"s_sleep {PP}")
        A.label(loop)
        for a_, b_ in ((252, 254), (254, 252)):
            A(f"buffer_load_dwordx2 {v(b_,2)}, v22, s[56:59], s3 offen sc1")
            A("s_waitcnt vmcnt(1)")
            A(f"v_cmp_ne_u64 vcc, {s(sNON,2)}, {v(a_,2)}")
            A("s_nop 1")
            A("s_cmp_eq_u64 vcc, 0")
            A(f"s_cbranch_scc1 {done}")
        A("s_sub_u32 s28, s28, 1")
        A("s_cmp_lg_u32 s28, 0")
        A(f"s_cbranch_scc1 {loop}")
        A.label(done)
    else:
        A.label(loop)
        A("s_waitcnt vmcnt(0)")
        A(f"v_cmp_ne_u64 vcc, {s(sNON,2)}, v[252:253]")
        A("s_nop 1")
        A("s_cmp_eq_u64 vcc, 0")
        A(f"s_cbranch_scc1 {skip}")
        A(f"s_sleep {OPT('SLEEP', 1)}")
        A("buffer_load_dwordx2 v[252:253], v22, s[56:59], s3 offen sc1")
        A("s_sub_u32 s28, s28, 1")
        A("s_cmp_lg_u32 s28, 0")
        A(f"s_cbranch_scc1 {loop}")
    A.label(skip)
    A("s_barrier")

sRd, sWr, sGo, sCnt, sM = 23, 24, 25, 27, 30
def ring_advance(slot, R):
    return [f"s_mov_b32 {s(sWr)}, {s(sRd)}",
            f"s_add_u32 {s(sRd)}, {s(sRd)}, {slot}",
            f"s_cmp_eq_u32 {s(sRd)}, {slot*R}",
            f"s_cselect_b32 {s(sRd)}, 0, {s(sRd)}"]

def adv(d, SC=0):
    if not SC: return [f"s_add_u32 {s(sGo)}, {s(sGo)}, {hex(d)}"]
    return ["s_add_u32 s38, s38, 1",
            "s_add_u32 s3, s38, s39",
            f"s_and_b32 s3, s3, {SC-1}",
            f"s_andn2_b32 {s(sGo)}, s38, {SC-1}",
            f"s_or_b32 s3, s3, {s(sGo)}",
            f"s_mul_i32 s3, s3, {hex(d)}",
            f"s_add_u32 {s(sGo)}, s3, s37"]
def rot_init(A, d, SC):
    A(f"s_mov_b32 s37, {s(sGo)}")
    A("s_mov_b32 s38, -1")
    emit(A, adv(d, SC))

def xdma(dX, SC=0, srd_='s[8:11]'):
    g = [[f"s_add_u32 m0, {s(sWr)}, {s(sM)}", "s_nop 0",
          f"buffer_load_dwordx4 v6, {srd_}, {s(sGo)} offen{LDF} lds"]]
    for j in range(1, 4):
        g.append([f"buffer_load_dwordx4 v6, {srd_}, {s(sGo)} offen offset:{j*1024}{LDF} lds"])
    g[-1] += adv(dX, SC)
    return g

def fill_ring(A, R, SLOT, dma, lo=0, hi=None, bar=False):
    for st in range(lo, R if hi is None else hi):
        if dma is not None:
            A(f"s_mov_b32 {s(sWr)}, {st*SLOT}")
            emit(A, dma())
        if bar and st < R - 1: A("s_barrier")

def fill_rest(A, R, SLOT, dma, done):
    st = done
    for b in range(R - 1):
        A("s_barrier")
        if st < R:
            A(f"s_mov_b32 {s(sWr)}, {st*SLOT}")
            emit(A, dma()); st += 1
    assert st == R

def gemm_loop(A, ph, label, role, R, SLOT, NST, ndma, mfmas, reads, dma_groups, addr_upd, tail_hook=None, cnt_sgpr=None, top_hook=None):
    T = R + (R % 2) if OPT("TAIL", 1) else 0
    A(f"s_mov_b32 {s(sRd)}, 0")
    emit(A, addr_upd())
    A(f"s_waitcnt vmcnt({ndma*(R-1)})")
    A("s_barrier")
    stamp(A, ph, 2); cyc(A, ph, 0)
    emit(A, reads(0))
    emit(A, ring_advance(SLOT, R))
    emit(A, addr_upd())
    A(f"s_mov_b32 {s(sCnt)}, {(NST-T)//2 if cnt_sgpr is None else s(cnt_sgpr)}")
    PRE = OPT("PRE_" + str(ph), OPT("PRE", 0))
    BK = OPT("BK", 1)
    def snake(M):
        return M
    def stage(p, dma, nout, last, hook=None, extra=0, loopend=False, inloop=False):
        M = mfmas(p); Rd = reads(1 - p); D = dma_groups() if dma else []
        if hook: D = D + [hook]
        nm = len(M)
        if last:
            A("s_waitcnt lgkmcnt(0)")
            if (tail_hook or {}).get('endbar'): A("s_barrier")
            if hook:
                h0 = (tail_hook or {}).get('lastpos', 0)
                emit(A, interleave(M, [[x] for x in hook], h0, nm))
            else:
                emit(A, M)
            return
        book = ring_advance(SLOT, R) + addr_upd()
        cnt = [f"s_sub_u32 {s(sCnt)}, {s(sCnt)}, 1", f"s_cmp_lg_u32 {s(sCnt)}, 0"] if loopend else []
        if role == "A":
            pre = min(PRE, nm // 2)
            if pre:
                A("s_waitcnt lgkmcnt(0)")
                emit(A, M[:pre])
                A(f"s_waitcnt vmcnt({ndma*nout+extra})")
            else:
                A(f"s_waitcnt vmcnt({ndma*nout+extra}) lgkmcnt(0)")
            A("s_barrier")
            if inloop and p == 0 and top_hook: emit(A, top_hook)
            Mr = M[pre:]; nr = len(Mr)
            if BK and dma:
                m0set = D[0][0]; D = [D[0][2:]] + D[1:]
                emit(A, interleave(Mr, Rd, 0, max(1, nr - 2)))
                A(m0set)
                emit(A, book)
                emit(A, D)
                emit(A, cnt)
            else:
                emit(A, interleave(Mr, Rd, 0, max(1, nr - 2) if dma else max(1, (2 * nr) // 3)))
                emit(A, D)
                emit(A, book); emit(A, cnt)
        else:
            A(f"s_waitcnt vmcnt({ndma*nout+extra}) lgkmcnt(0)")
            A("s_barrier")
            if inloop and p == 0 and top_hook: emit(A, top_hook)
            emit(A, D)
            if BK:
                h = max(1, (2 * nm) // 3)
                emit(A, interleave(M[:h], Rd))
                emit(A, interleave(M[h:], [[x] for x in book[:2]] + [book[2:4]] + [[x] for x in book[4:]] + ([cnt] if cnt else []), 0, max(1, nm - h - 1)))
            else:
                emit(A, interleave(M, Rd, 0, max(1, (2 * nm) // 3)))
                emit(A, book); emit(A, cnt)
    A.raw(".p2align 6")
    A.label(label)
    for p in range(2): stage(p, True, R - 2, False, loopend=(p == 1), inloop=True)
    A(f"s_cbranch_scc1 {label}")
    for st in range(NST - T, NST):
        stage(st % 2, st + R < NST, min(R - 2, NST - 2 - st), st == NST - 1, (tail_hook or {}).get(NST - st), (tail_hook or {}).get(('x', NST - st), 0))
    if not T: A("s_waitcnt lgkmcnt(0)")
    A("s_nop 7")
    if OPT("ENDBAR", 0) or (ph == 1 and OPT("RAW", 0)): A("s_barrier")
    cyc(A, ph, 1); stamp(A, ph, 3)

def code_touch(A, vd=26):
    if not OPT("CT", 0): return
    l = A.newlabel("ct")
    A("s_getpc_b64 s[56:57]")
    A.label(l)
    A(f"s_sub_u32 s56, s56, {l}-{NAME}")
    A("s_subb_u32 s57, s57, 0")
    A(f"s_mov_b32 s58, code_end-{NAME}")
    A("s_mov_b32 s59, 0x20000")
    A("v_lshlrev_b32 v20, 7, v1")
    A("s_lshl_b32 s28, s31, 13")
    A(f"buffer_load_dword {v(vd)}, v20, s[56:59], s28 offen")

def code_touch_list(A, frm, vd, va):
    l = A.newlabel("ct")
    return ["s_getpc_b64 s[56:57]", f"{l}:",
            f"s_add_u32 s56, s56, {frm}-{l}", "s_addc_u32 s57, s57, 0",
            "s_and_b32 s56, s56, 0xffffff80",
            f"s_mov_b32 s58, code_end-{frm}", "s_mov_b32 s59, 0x20000",
            f"v_lshlrev_b32 {v(va)}, 7, v1", "s_lshl_b32 s28, s31, 13",
            f"buffer_load_dword {v(vd)}, {v(va)}, s[56:59], s28 offen"]

def w_swz_voff(A, dst, rowstride):
    A(f"v_lshrrev_b32 {v(dst)}, 3, v1")
    A(f"v_mul_u32_u24 {v(dst)}, {rowstride}, {v(dst)}")
    A("v_and_b32 v20, 7, v1")
    A("v_lshlrev_b32 v21, 1, v2")
    A("v_xor_b32 v20, v20, v21")
    A(f"v_lshl_add_u32 {v(dst)}, v20, 4, {v(dst)}")

def ph_ln_qkv(A):
    R, SLOT, NST = 4, 40960, 16
    A(f"s_load_dwordx4 s[40:43], s[0:1], {KA_X}")
    A(f"s_load_dwordx4 s[4:7], s[0:1], {KA_DBG}")
    A("s_memrealtime s[62:63]")
    A("v_lshrrev_b32 v1, 6, v0")
    A("s_nop 0")
    A("v_readfirstlane_b32 s20, v1")
    lane_decomp(A)
    A("s_and_b32 s21, s2, 1")
    A("s_lshl_b32 s21, s21, 3")
    A("s_bfe_u32 s28, s2, 0x30003")
    A("s_add_u32 s21, s21, s28")
    A("s_bfe_u32 s22, s2, 0x20001")
    A("s_lshl_b32 s22, s22, 2")
    A("s_lshr_b32 s28, s2, 6")
    A("s_add_u32 s22, s22, s28")
    A("s_and_b32 s31, s20, 3")
    QSC = OPT("QSC", 16)
    A("s_and_b32 s39, s21, 3")
    A(f"s_mul_i32 s39, s39, {QSC//4}")
    A("s_cmp_ge_u32 s20, 4")
    A("s_cbranch_scc1 p0_B")
    A("v_and_b32 v7, 7, v1")
    A("v_bfe_u32 v8, v1, 3, 2")
    A("v_lshrrev_b32 v9, 5, v1")
    A("v_lshlrev_b32 v10, 11, v7")
    A("v_lshl_add_u32 v10, v9, 6, v10")
    A("v_lshl_add_u32 v10, v8, 3, v10")
    A("s_lshl_b32 s3, s2, 14")
    A("s_lshl_b32 s28, s20, 9")
    A("s_add_u32 s3, s3, s28")
    A("s_waitcnt lgkmcnt(0)")
    if PROF: A("s_mov_b32 s66, s62")
    srd(A, 8, 40, 0, 4*MB)
    for i in range(4):
        A(f"buffer_load_dwordx2 {v(32+4*i,2)}, v10, s[8:11], s3 offen offset:{i*128}")
        A(f"buffer_load_dwordx2 {v(34+4*i,2)}, v10, s[8:11], s3 offen offset:{i*128+32}")
    srd(A, 16, 4, 0, 256)
    A("s_or_b32 s28, s2, s20")
    A("s_cmp_lg_u32 s28, 0")
    A("s_cbranch_scc1 p0_nopub")
    A("s_or_b32 s62, s62, 1")
    A("v_mov_b32 v20, s62")
    A("v_mov_b32 v21, s63")
    A("v_mov_b32 v22, 0")
    A("s_mov_b64 exec, 1")
    A("buffer_store_dwordx2 v[20:21], v22, s[16:19], 0 offen sc1")
    A("s_mov_b64 exec, -1")
    A("s_waitcnt vmcnt(0)")
    A.label("p0_nopub")
    srd(A, 12, 6, WS_XN, 4*MB)
    A("v_lshlrev_b32 v11, 17, v9")
    A("v_lshl_add_u32 v11, v7, 4, v11")
    A("v_lshl_add_u32 v11, v8, 8, v11")
    A("s_lshr_b32 s32, s2, 1")
    A("s_lshl_b32 s32, s32, 10")
    A("s_and_b32 s33, s2, 1")
    A("s_lshl_b32 s33, s33, 7")
    A("s_add_u32 s32, s32, s33")
    A("s_lshl_b32 s33, s20, 20")
    A("s_add_u32 s32, s32, s33")
    A("s_add_u32 s33, s32, 0x40000")
    A("s_add_u32 s34, s32, 0x80000")
    A("s_add_u32 s35, s32, 0xc0000")
    A("v_mov_b32 v24, 0")
    A("v_mov_b32 v25, 0")
    U = 64
    for j in range(16):
        if j % 2 == 0: A(f"s_waitcnt vmcnt({7 - j//2})")
        A(f"v_lshlrev_b32 {v(U+2*j)}, 16, {v(32+j)}")
        A(f"v_and_b32 {v(U+1+2*j)}, 0xffff0000, {v(32+j)}")
        A(f"v_add_f32 v24, v24, {v(U+2*j)}")
        A(f"v_fmac_f32 v25, {v(U+2*j)}, {v(U+2*j)}")
        A(f"v_add_f32 v24, v24, {v(U+1+2*j)}")
        A(f"v_fmac_f32 v25, {v(U+1+2*j)}, {v(U+1+2*j)}")
    A("v_mov_b32 v22, 0")
    A("buffer_load_dwordx2 v[28:29], v22, s[16:19], 0 offen sc1")
    A("v_add_f32_dpp v24, v24, v24 row_ror:8 row_mask:0xf bank_mask:0xf")
    A("v_add_f32_dpp v25, v25, v25 row_ror:8 row_mask:0xf bank_mask:0xf")
    reduce_rows16_32(A, [24, 25], [26, 27])
    A("v_lshlrev_b32 v26, 5, v7")
    A("s_lshl_b32 s28, s20, 3")
    A("v_add_u32 v27, s28, v26")
    A("ds_write_b64 v27, v[24:25]")
    A("s_waitcnt lgkmcnt(0)")
    A("s_barrier")
    A("ds_read_b128 v[100:103], v26")
    A("ds_read_b128 v[104:107], v26 offset:16")
    A("s_waitcnt lgkmcnt(0)")
    A("v_pk_add_f32 v[24:25], v[100:101], v[102:103]")
    A("v_pk_add_f32 v[26:27], v[104:105], v[106:107]")
    A("v_pk_add_f32 v[24:25], v[24:25], v[26:27]")
    A(f"v_mul_f32 v24, {f32(1/1024)}, v24")
    A(f"v_mul_f32 v25, {f32(1/1024)}, v25")
    A("v_fma_f32 v25, -v24, v24, v25")
    A("v_max_f32 v25, 0, v25")
    A(f"v_add_f32 v25, {f32(1e-5)}, v25")
    A("v_rsq_f32 v25, v25")
    A("s_nop 0")
    A("v_mul_f32 v24, v24, v25")
    for j in range(16):
        A(f"v_fma_f32 {v(U+2*j)}, {v(U+2*j)}, v25, -v24")
        A(f"v_fma_f32 {v(U+1+2*j)}, {v(U+1+2*j)}, v25, -v24")
        A(f"v_cvt_pk_bf16_f32 {v(32+j)}, {v(U+2*j)}, {v(U+1+2*j)}")
        if j % 4 == 3:
            A(f"buffer_store_dwordx4 {v(32+j-3,4)}, v11, s[12:15], {s(32+j//4)} offen{STF}")
    stamp(A, 0, 3)
    A("s_lshr_b32 s32, s2, 4")
    A("s_and_b32 s33, s2, 15")
    pub_prep(A, 0, 32, 33)
    A(f"s_mov_b32 s28, {SPIN_MAX}")
    A.label("p0_nonce")
    A("s_waitcnt vmcnt(0)")
    A("v_readfirstlane_b32 s62, v28")
    A("v_readfirstlane_b32 s63, v29")
    A("s_nop 1")
    A("s_cmp_lg_u32 s62, 0")
    A("s_cbranch_scc1 p0_gotnonce")
    A("buffer_load_dwordx2 v[28:29], v22, s[16:19], 0 offen sc1")
    A("s_sub_u32 s28, s28, 1")
    A("s_cmp_lg_u32 s28, 0")
    A("s_cbranch_scc1 p0_nonce")
    A.label("p0_gotnonce")
    A("v_mov_b32 v248, s62")
    A("v_mov_b32 v249, s63")
    stamp(A, 0, 4)
    publish(A, force=True)
    A("v_mov_b32 v12, 0")
    A("s_lshr_b32 s28, s31, 1")
    A("s_lshl_b32 s28, s28, 7")
    A("s_lshl_b32 s29, s21, 3")
    A("s_add_u32 s28, s28, s29")
    A("s_and_b32 s29, s31, 1")
    A("s_lshl_b32 s29, s29, 2")
    A("s_add_u32 s28, s28, s29")
    A(f"s_lshl_b32 {s(sGo)}, s28, 10")
    if QSC: rot_init(A, 0x40000, QSC)
    A(f"s_lshl_b32 {s(sM)}, s31, 12")
    A("s_branch p1_common")
    A.label("p0_B")
    code_touch(A)
    w_swz_voff(A, 7, 6144)
    A(f"v_add_u32 v8, {8*6144-1024}, v7")
    A("v_add_u32 v9, 2048, v7")
    A("v_add_u32 v10, 2048, v8")
    A("v_add_u32 v11, 4096, v7")
    A("v_add_u32 v12, 4096, v8")
    A(f"s_mul_i32 s28, s31, {16*6144}")
    A("s_lshl_b32 s29, s22, 7")
    A(f"s_add_u32 {s(sGo)}, s28, s29")
    if QSC: rot_init(A, 64*6144, QSC)
    A(f"s_lshl_b32 {s(sM)}, s31, 11")
    A(f"s_add_u32 {s(sM)}, {s(sM)}, 16384")
    A("v_and_b32 v13, 31, v1")
    A("v_mul_u32_u24 v13, 6144, v13")
    A("v_lshrrev_b32 v14, 5, v1")
    A("v_lshl_add_u32 v15, v14, 11, v13")
    A("v_lshl_add_u32 v13, v14, 30, v13")
    A("v_add_u32 v13, 4096, v13")
    A("s_and_b32 s28, s21, 7")
    A("s_lshl_b32 s28, s28, 2")
    A("s_add_u32 s28, s28, s31")
    A(f"s_mul_i32 s28, s28, {32*6144}")
    A("s_add_u32 s28, s28, s29")
    A("s_waitcnt lgkmcnt(0)")
    if PROF: A("s_mov_b32 s66, s62")
    srd(A, 12, 42, 0, 6*MB)
    def wdma():
        g = []
        for seg in range(3):
            g.append([f"s_add_u32 m0, {s(sWr)}, {s(sM)}" if seg == 0 else "s_add_u32 m0, m0, 8192", "s_nop 0",
                      f"buffer_load_dwordx4 {v(7+2*seg)}, s[12:15], {s(sGo)} offen lds"])
            g.append([f"buffer_load_dwordx4 {v(8+2*seg)}, s[12:15], {s(sGo)} offen offset:1024 lds"])
        g[-1] += adv(64*6144, QSC)
        return g
    TLBW = OPT("TLBW", 0)
    if TLBW:
        sh = TLBW
        per = 1 << (21 - sh)
        A(f"s_load_dwordx2 s[44:45], s[0:1], {KA_WO}")
        A(f"s_load_dwordx4 s[48:51], s[0:1], {KA_WG}")
        A(f"s_load_dwordx4 s[52:55], s[0:1], {KA_WD}")
        A("v_lshlrev_b32 v26, 21, v1")
        A("s_lshr_b32 s33, s2, 3")
        A(f"s_and_b32 s33, s33, {per-1}")
        A(f"s_lshl_b32 s33, s33, {sh}")
        A("s_waitcnt lgkmcnt(0)")
        for wv, lst in ((0, [(6, 81*MB)]), (1, [(54, 4*MB), (44, 2*MB)]), (2, [(48, 7*MB), (50, 7*MB)]), (3, [(52, 7*MB)])):
            l = A.newlabel("tw")
            A(f"s_cmp_lg_u32 s31, {wv}")
            A(f"s_cbranch_scc1 {l}")
            for b_, sz in lst:
                srd(A, 56, b_, 0, sz)
                A("buffer_load_dword v27, v26, s[56:59], s33 offen sc1")
            A.label(l)
    P0M = OPT("P0M", 6)
    def touches():
        A("buffer_load_dword v24, v15, s[12:15], s28 offen")
        A("buffer_load_dword v25, v13, s[12:15], s28 offen")
    if P0M == 0:
        touches()
        fill_ring(A, R, SLOT, wdma, 0, 2)
        A("s_barrier")
        fill_ring(A, R, SLOT, wdma, 2, 4)
        A("s_barrier")
    elif P0M == 1:
        A("s_barrier")
        touches()
        fill_ring(A, R, SLOT, wdma, 0, 2)
        A("s_barrier")
        fill_ring(A, R, SLOT, wdma, 2, 4)
    elif P0M == 2:
        fill_ring(A, R, SLOT, wdma, 0, 2)
        A("s_barrier")
        touches()
        fill_ring(A, R, SLOT, wdma, 2, 4)
        A("s_barrier")
        A("s_waitcnt vmcnt(0)")
    elif P0M == 4:
        A("s_barrier")
        fill_ring(A, R, SLOT, wdma, 0, 2)
        A("s_barrier")
        fill_ring(A, R, SLOT, wdma, 2, 4)
    elif P0M == 5:
        fill_ring(A, R, SLOT, wdma, 0, 4)
        A("s_barrier")
        A("s_barrier")
    elif P0M == 6:
        fill_ring(A, R, SLOT, wdma, 0, 2)
        A("s_barrier")
        A("s_barrier")
        fill_ring(A, R, SLOT, wdma, 2, 4)
    elif P0M in (7, 8, 9):
        def ctouch():
            A("v_lshlrev_b32 v15, 7, v1")
            A("v_cmp_gt_u32 vcc, 48, v1")
            A("v_mov_b32 v13, 0x7fffffff")
            A("s_lshl_b32 s28, s2, 2")
            A("s_add_u32 s28, s28, s31")
            A("v_cndmask_b32 v15, v13, v15, vcc")
            A("s_mul_i32 s28, s28, 6144")
            A("buffer_load_dword v24, v15, s[12:15], s28 offen")
        if P0M == 7:
            ctouch()
            fill_ring(A, R, SLOT, wdma, 0, 2)
            A("s_barrier"); A("s_barrier")
            fill_ring(A, R, SLOT, wdma, 2, 4)
        elif P0M == 8:
            ctouch()
            A("s_waitcnt vmcnt(0)")
            A("s_barrier")
            fill_ring(A, R, SLOT, wdma, 0, 2)
            A("s_barrier")
            fill_ring(A, R, SLOT, wdma, 2, 4)
        else:
            ctouch()
            A("s_barrier"); A("s_barrier")
            fill_ring(A, R, SLOT, wdma, 0, 4)
    elif P0M == 3:
        fill_ring(A, R, SLOT, wdma, 0, 2)
        A("s_barrier")
        fill_ring(A, R, SLOT, wdma, 2, 4)
        A("s_barrier")

    A.label("p1_common")
    ACC = 64
    def acc(f, i): return ACC + (f * 4 + i) * 4
    SET = [112, 168]
    def xf(p, kk, i): return SET[p] + (kk * 4 + i) * 4
    def wf(p, kk, f): return SET[p] + 32 + (kk * 3 + f) * 4
    srd(A, 8, 6, WS_XN, 4*MB)
    srd(A, 12, 42, 0, 6*MB)
    srd(A, 16, 6, WS_Q, 12*MB)
    A("s_and_b32 s28, s20, 1")
    A("s_lshl_b32 s28, s28, 12")
    A("v_add_u32 v32, s28, v6")
    A("v_lshl_add_u32 v33, v2, 2, v3")
    A("v_lshlrev_b32 v33, 7, v33")
    A("v_lshl_add_u32 v33, v4, 3, v33")
    A("v_add_u32 v33, 16384, v33")
    A("v_bfe_u32 v34, v1, 3, 2")
    A("s_lshr_b32 s28, s20, 1")
    A("s_and_b32 s29, s28, 1")
    A("s_lshl_b32 s29, s29, 1")
    A("s_lshr_b32 s32, s28, 1")
    A("s_lshl_b32 s32, s32, 13")
    A("v_xor_b32 v35, s29, v34")
    A("v_lshl_add_u32 v35, v35, 5, v33")
    A("v_add_u32 v35, s32, v35")
    A("v_xor_b32 v36, 32, v35")
    A("v_xor_b32 v37, s28, v34")
    A("v_lshl_add_u32 v37, v37, 5, v33")
    A("v_add_u32 v37, 16384, v37")
    for i in range(48): A(f"v_mov_b32 {v(ACC+i)}, 0")
    stamp(A, 1, 0)
    wait_flags(A, 0, 21, 16)
    stamp(A, 1, 1)
    def reads(p):
        out = []
        for kk in range(2):
            for f in range(3):
                for t in range(2):
                    out.append([f"ds_read_b64_tr_b16 {v(wf(p,kk,f)+2*t,2)}, {v(17+f)} offset:{kk*4096+t*2048}"])
            for i in range(4):
                out.append([f"ds_read_b128 {v(xf(p,kk,i),4)}, v16 offset:{kk*8192+i*1024}"])
        return out
    def addr_upd():
        return [f"v_add_u32 v16, {s(sRd)}, v32", f"v_add_u32 v17, {s(sRd)}, v35",
                f"v_add_u32 v18, {s(sRd)}, v36", f"v_add_u32 v19, {s(sRd)}, v37"]
    def mfmas(p):
        M = []
        for kk in range(2):
            for f in range(3):
                for i in (range(4) if (f % 2 == 0 or not OPT("SNAKE", 1)) else range(3, -1, -1)):
                    if f < 2: M.append(mf16(acc(f, i), wf(p, kk, f), xf(p, kk, i)))
                    else:     M.append(mf16(acc(f, i), xf(p, kk, i), wf(p, kk, f)))
        return M
    A("s_cmp_ge_u32 s20, 4")
    A("s_cbranch_scc1 qkv_B")
    fill_ring(A, R, SLOT, lambda: xdma(0x40000, QSC), bar=True)
    gemm_loop(A, 1, "qkv_loopA", "A", R, SLOT, NST, 4, mfmas, reads, lambda: xdma(0x40000, QSC), addr_upd,
              {4: code_touch_list(A, "qkv_epi", 251, 252), ('x', 3): 1, ('x', 2): 1} if OPT("CTQ", 1) else None)
    A("s_branch qkv_epi")
    A.label("qkv_B")
    fill_ring(A, R, SLOT, None, bar=True)
    gemm_loop(A, 1, "qkv_loopB", "B", R, SLOT, NST, 6, mfmas, reads, wdma, addr_upd)
    A.label("qkv_epi")
    A(f"s_load_dwordx2 s[40:41], s[0:1], {KA_WO}")
    A(f"s_load_dwordx4 s[44:47], s[0:1], {KA_WG}")
    A(f"s_load_dwordx2 s[42:43], s[0:1], {KA_WD}")
    A("v_lshlrev_b32 v9, 9, v2")
    A("v_lshrrev_b32 v7, 3, v5")
    A("v_lshl_add_u32 v7, v7, 8, v9")
    A("v_and_b32 v8, 7, v5")
    A("v_lshl_add_u32 v7, v8, 4, v7")
    A("v_lshl_add_u32 v8, v5, 4, v9")
    A("s_lshr_b32 s28, s20, 1")
    A("s_and_b32 s29, s28, 1")
    A("s_lshr_b32 s32, s28, 1")
    A("s_and_b32 s33, s20, 1")
    A("s_lshl_b32 s34, s21, 2")
    A("s_lshl_b32 s33, s33, 1")
    A("s_add_u32 s34, s34, s33")
    A("s_lshl_b32 s34, s34, 11")
    A("s_lshl_b32 s35, s22, 1")
    A("s_add_u32 s36, s35, s29")
    A("s_lshl_b32 s36, s36, 17")
    A("s_add_u32 s36, s36, s34")
    A("s_lshl_b32 s37, s32, 22")
    A("s_add_u32 s36, s36, s37")
    A("s_add_u32 s38, s35, s32")
    A("s_lshl_b32 s38, s38, 17")
    A("s_add_u32 s38, s38, s34")
    A("s_lshl_b32 s37, s29, 8")
    A("s_add_u32 s38, s38, s37")
    A(f"s_add_u32 s38, s38, {8*MB}")
    A("s_cmp_eq_u32 s32, 0")
    A(f"s_cselect_b32 s39, {f32(QSCALE)}, 1.0")
    A("v_mov_b32 v20, s39")
    A("v_mov_b32 v21, s39")
    T = 128
    for pr in range(2):
        for ii in range(2):
            for h in range(2):
                A(f"v_cvt_pk_bf16_f32 {v(T+4*pr+2*ii+h)}, {v(acc(2,2*pr+ii)+2*h)}, {v(acc(2,2*pr+ii)+2*h+1)}")
        A(f"buffer_store_dwordx4 {v(T+4*pr,4)}, v8, s[16:19], s38 offen offset:{pr*2048}{STF}")
    T = 112
    for i in range(4):
        for f in range(2):
            for h in range(2):
                if OPT("NOPK", 1):
                    A(f"v_mul_f32 {v(acc(f,i)+2*h)}, {v(acc(f,i)+2*h)}, v20")
                    A(f"v_mul_f32 {v(acc(f,i)+2*h+1)}, {v(acc(f,i)+2*h+1)}, v20")
                else:
                    A(f"v_pk_mul_f32 {v(acc(f,i)+2*h,2)}, {v(acc(f,i)+2*h,2)}, v[20:21]")
        for f in range(2):
            for h in range(2):
                A(f"v_cvt_pk_bf16_f32 {v(T+4*i+2*f+h)}, {v(acc(f,i)+2*h)}, {v(acc(f,i)+2*h+1)}")
        A(f"buffer_store_dwordx4 {v(T+4*i,4)}, v7, s[16:19], s36 offen offset:{(i>>1)*2048+(i&1)*128}{STF}")
    pub_prep(A, 1, 22, 21)
    A("s_waitcnt lgkmcnt(0)")

def ph_attn(A):
    R, SLOT = 3, 32768
    WL = R * SLOT
    Q, NEGM, S0, S1, P, KF, VF, O, L, ONES = 8, 32, 48, 64, 80, 88, 96, 104, 120, 124
    S_ = [S0, S1]
    A("s_and_b32 s21, s2, 7")
    A("s_lshl_b32 s21, s21, 2")
    A("s_bfe_u32 s28, s2, 0x20003")
    A("s_add_u32 s21, s21, s28")
    A("s_lshr_b32 s22, s2, 5")
    A("s_lshr_b32 s32, s2, 1")
    A("s_and_b32 s33, s2, 1")
    sCo, sCM = 26, 29
    A("s_cmp_ge_u32 s32, 56")
    A("s_cselect_b32 s48, s46, s44")
    A("s_cselect_b32 s49, s47, s45")
    A("s_cselect_b32 s34, 56, 0")
    A("s_sub_u32 s34, s32, s34")
    A("s_mov_b32 s51, 0x20000")
    A("s_lshl_b32 s34, s34, 7")
    A(f"s_mul_i32 s35, s33, {512*7168}")
    A("s_add_u32 s34, s34, s35")
    A(f"s_add_u32 s35, s35, {512*7168}")
    A("s_cmp_lt_u32 s2, 224")
    A("s_cselect_b32 s50, s35, 0")
    A(f"s_mul_i32 s35, s31, {16*7168}")
    A(f"s_add_u32 {s(sCo)}, s34, s35")
    w_swz_voff(A, 7, 7168)
    A(f"v_add_u32 v129, {8*7168-1024}, v7")
    srd(A, 52, 40, 0, 2*MB)
    srd(A, 44, 42, 0, 7*MB)
    A("s_lshl_b32 s35, s2, 2")
    A("s_add_u32 s35, s35, s31")
    A("v_lshlrev_b32 v8, 7, v1")
    A("v_mov_b32 v9, 0x7fffffff")
    A("s_lshl_b32 s34, s35, 11")
    A("v_add_u32 v130, s34, v8")
    A("v_cmp_gt_u32 vcc, 16, v1")
    A("s_lshl_b32 s60, s35, 10")
    A("s_nop 0")
    A("v_cndmask_b32 v130, v9, v130, vcc")
    A("s_and_b32 s34, s35, 1")
    A("s_lshl_b32 s34, s34, 3")
    A("v_lshrrev_b32 v8, 3, v1")
    A("v_add_u32 v8, s34, v8")
    A(f"v_mul_u32_u24 v8, {3584*128}, v8")
    A("s_bfe_u32 s34, s35, 0x20002")
    A("s_lshl_b32 s34, s34, 1")
    A("v_and_b32 v9, 7, v1")
    A("v_xor_b32 v9, s34, v9")
    A("v_lshl_add_u32 v131, v9, 4, v8")
    A("s_lshr_b32 s61, s35, 1")
    A("s_lshl_b32 s61, s61, 7")
    A(f"s_sub_u32 s61, s61, {512*128}")
    CP = 140
    def cp_load():
        return [f"buffer_load_dwordx4 {v(CP,4)}, v6, s[44:47], s60 offen", f"s_add_u32 s60, s60, {MB}"]
    def cp_store():
        return [f"s_cmp_lt_u32 s61, {3584*128}", f"s_cselect_b32 s58, {7*MB}, 0",
                f"buffer_store_dwordx4 {v(CP,4)}, v131, s[56:59], s61 offen{STF}", f"s_add_u32 s61, s61, {512*128}"]
    def cs_dma(j):
        if j == 0:
            return [f"s_mov_b32 m0, {s(sCM)}", f"s_add_u32 {s(sCM)}, {s(sCM)}, 8192",
                    f"buffer_load_dwordx4 v7, s[48:51], {s(sCo)} offen lds"]
        return [f"buffer_load_dwordx4 v129, s[48:51], {s(sCo)} offen offset:1024 lds",
                f"s_add_u32 {s(sCo)}, {s(sCo)}, {64*7168}"]
    A("s_lshl_b32 s28, s21, 17")
    A("s_add_u32 s4, s6, s28")
    A("s_addc_u32 s5, s7, 0")
    srd(A, 8, 4, WS_K, 131072)
    srd(A, 12, 4, WS_VT, 131072)
    srd(A, 16, 4, WS_Q, 131072)
    srd(A, 36, 6, WS_O, 4*MB)
    A(f"s_lshl_b32 {s(sGo)}, s31, 12")
    A(f"s_lshl_b32 {s(sM)}, s31, 12")
    A("v_lshrrev_b32 v16, 2, v1")
    A("v_xor_b32 v16, v16, v2")
    A("v_and_b32 v16, 1, v16")
    A("v_cmp_eq_u32 vcc, 0, v16")
    A("v_mov_b32 v17, 0x3f803f80")
    A("s_nop 1")
    for i in range(4): A(f"v_cndmask_b32 {v(ONES+i)}, 0, v17, vcc")
    for i in range(16): A(f"v_mov_b32 {v(O+i)}, 0")
    for i in range(4): A(f"v_mov_b32 {v(L+i)}, 0")
    for i in range(4): A(f"v_mov_b32 {v(P+4+i)}, 0")
    for i in range(4): A(f"v_mov_b32 {v(VF+4+i)}, 0")
    A("v_mov_b32 v16, v6")
    A(f"v_add_u32 v17, {SLOT}, v6")
    A(f"s_mov_b32 {s(sRd)}, {SLOT}")
    A("s_lshr_b32 s34, s21, 1")
    A("s_lshl_b32 s35, s22, 3")
    A("s_add_u32 s35, s35, s20")
    A("s_lshl_b32 s35, s35, 11")
    if not OPT("PUBFIRST", 1):
        A("s_waitcnt vmcnt(0)")
        stamp(A, 1, 4)
    publish(A)
    stamp(A, 2, 0)
    wait_flags(A, 1, 34, 16)
    stamp(A, 2, 1)
    def kv(j):
        o = []
        if j % 4 == 0: o = [f"s_add_u32 m0, {s(sWr)}, {16384 if j >= 4 else 0}", "s_nop 0"]
        o += [f"buffer_load_dwordx4 v6, {'s[8:11]' if j < 4 else 's[12:15]'}, {s(sGo)} offen offset:{(j&3)*1024}{LDF} lds"]
        if j == 7:
            o += [f"s_add_u32 {s(sGo)}, {s(sGo)}, 16384",
                  f"s_add_u32 {s(sWr)}, {s(sWr)}, {SLOT}",
                  f"s_cmp_ge_u32 {s(sWr)}, {SLOT*R}",
                  f"s_cselect_b32 {s(sWr)}, {s(sM)}, {s(sWr)}"]
        return o
    srd(A, 56, 6, WS_WD, 7*MB)
    if OPT("NOSIDE", 0):
        A("s_mov_b32 s50, 0"); A("s_mov_b32 s46, 0"); A("s_mov_b32 s54, 0"); A("s_mov_b32 s61, 0x10000000")
    A(f"s_mov_b32 {s(sWr)}, {s(sM)}")
    A(f"s_lshl_b32 {s(sCM)}, s31, 11")
    A(f"s_add_u32 {s(sCM)}, {s(sCM)}, {WL}")
    def kread(t, j, dst=None):
        a_ = 16 if t < 8 else 17
        return f"ds_read_b128 {v(KF+4*j if dst is None else dst,4)}, {v(a_)} offset:{(t%8)*2048+j*1024}"
    def vread(t, j):
        a_ = 16 if t < 8 else 17
        return f"ds_read_b128 {v(VF+4*j,4)}, {v(a_)} offset:{16384+(t%8)*2048+j*1024}"
    qld = [f"buffer_load_dwordx4 {v(Q,4)}, v6, s[16:19], s35 offen{LDF}",
           f"buffer_load_dwordx4 {v(Q+4,4)}, v6, s[16:19], s35 offen offset:1024{LDF}"]
    if OPT("ATQ", 0):
        A("s_cmp_eq_u32 s20, 0")
        A("s_cbranch_scc1 at_W0")
        emit(A, qld)
        A("s_cmp_ge_u32 s20, 4")
        A("s_cbranch_scc1 at_B0")
        for j in range(4): emit(A, kv(j))
        A("s_waitcnt vmcnt(4)")
        A("s_branch at_C0")
        A.label("at_B0")
        for j in range(4, 7): emit(A, kv(j))
        emit(A, kv(7)[:1])
        A("s_waitcnt vmcnt(4)")
        A("s_branch at_C0")
        A.label("at_W0")
        for j in range(4): emit(A, kv(j))
        emit(A, qld)
        A("s_waitcnt vmcnt(0)")
        A.label("at_C0")
        emit(A, kv(7)[1:])
        A("s_barrier")
        stamp(A, 2, 2); cyc(A, 2, 0)
        A(kread(0, 0, S1)); A(kread(0, 1, S1+4))
        A(kread(1, 0)); A(kread(1, 1))
        A("s_waitcnt lgkmcnt(2)")
    else:
        A("s_cmp_ge_u32 s20, 4")
        A("s_cbranch_scc1 at_B0")
        for j in range(4): emit(A, kv(j))
        A("s_branch at_C0")
        A.label("at_B0")
        for j in range(4, 7): emit(A, kv(j))
        emit(A, kv(7)[:1])
        A.label("at_C0")
        A(f"buffer_load_dwordx4 {v(Q,4)}, v6, s[16:19], s35 offen{LDF}")
        A(f"buffer_load_dwordx4 {v(Q+4,4)}, v6, s[16:19], s35 offen offset:1024{LDF}")
        emit(A, kv(7)[1:])
        A("s_waitcnt vmcnt(0)")
        A("s_barrier")
        stamp(A, 2, 2); cyc(A, 2, 0)
        def kread(t, j, dst=None):
            a_ = 16 if t < 8 else 17
            return f"ds_read_b128 {v(KF+4*j if dst is None else dst,4)}, {v(a_)} offset:{(t%8)*2048+j*1024}"
        def vread(t, j):
            a_ = 16 if t < 8 else 17
            return f"ds_read_b128 {v(VF+4*j,4)}, {v(a_)} offset:{16384+(t%8)*2048+j*1024}"
        A(kread(0, 0, S1)); A(kread(0, 1, S1+4))
        A(kread(1, 0)); A(kread(1, 1)); A(vread(0, 0))
        A("s_cmp_ge_u32 s20, 4")
        A("s_cbranch_scc1 at_C1")
        for j in range(4): emit(A, kv(j))
        A("buffer_load_dword v128, v130, s[52:55], 0 offen")
        emit(A, cs_dma(0)); emit(A, cs_dma(1))
        if OPT("CT", 0) >= 2:
            A("s_branch at_C2")
        A.label("at_C1")
        if OPT("CT", 0) >= 2:
            code_touch(A, 128)
            srd(A, 56, 6, WS_WD, 7*MB)
            A.label("at_C2")
        A("s_waitcnt lgkmcnt(3)")
    A(mf32(S0, S1, Q, "0"))
    A(mf32(S0, S1+4, Q+4))
    A("s_nop 15")
    A("s_nop 3")
    A(f"v_max3_f32 v18, {v(S0)}, {v(S0+1)}, {v(S0+2)}")
    for i in range(3, 15, 2): A(f"v_max3_f32 v18, v18, {v(S0+i)}, {v(S0+i+1)}")
    A(f"v_max_f32 v18, v18, {v(S0+15)}")
    A("v_mov_b32 v19, v18")
    A("s_nop 1")
    A("v_permlane32_swap_b32 v19, v18")
    A("s_nop 1")
    A("v_max_f32 v18, v18, v19")
    for i in range(16): A(f"v_sub_f32 {v(NEGM+i)}, 0, v18")
    for i in range(16): A(f"v_sub_f32 {v(S0+i)}, {v(S0+i)}, v18")
    A(f"s_mov_b32 {s(sCnt)}, 8")
    if OPT("ATQ", 0):
        A("s_waitcnt vmcnt(0)")
        A("s_barrier")
        A(vread(0, 0))
        A("s_cmp_ge_u32 s20, 4")
        A("s_cbranch_scc1 at_C1")
        for j in range(4): emit(A, kv(j))
        A("buffer_load_dword v128, v130, s[52:55], 0 offen")
        emit(A, cs_dma(0)); emit(A, cs_dma(1))
        A.label("at_C1")
    else:
        A("s_waitcnt lgkmcnt(0)")
    def cs_p1(CSW):
        A("v_lshrrev_b32 v18, 2, v1")
        A("v_lshlrev_b32 v18, 7, v18")
        A("v_lshl_add_u32 v18, v4, 3, v18")
        A("v_bfe_u32 v19, v1, 3, 2")
        A("v_xor_b32 v19, s31, v19")
        A("v_lshl_add_u32 v18, v19, 5, v18")
        A("s_lshr_b32 s29, s20, 2")
        A("s_lshl_b32 s34, s29, 15")
        A(f"s_add_u32 s34, s34, {WL}")
        A("v_add_u32 v18, s34, v18")
        for ks in range(8):
            for t in range(2):
                A(f"ds_read_b64_tr_b16 {v(CSW+4*ks+2*t,2)}, v18 offset:{ks*4096+t*2048}")
        for i in range(4): A(f"v_mov_b32 {v(132+i)}, 0x3f803f80")
    def cs_p2(CSW):
        A("s_waitcnt lgkmcnt(0)")
        for ks in range(8):
            A(mf16(136, CSW+4*ks, 132, "0" if ks == 0 else None))
    def cs_p3(srdr):
        srd(A, srdr, 6, WS_CS, 4*7168*4)
        A("s_lshl_b32 s33, s33, 1")
        A("s_add_u32 s33, s33, s29")
        A(f"s_mul_i32 s33, s33, {7168*4}")
        A("s_lshl_b32 s34, s32, 8")
        A("s_add_u32 s33, s33, s34")
        A("s_lshl_b32 s34, s31, 6")
        A("s_add_u32 s33, s33, s34")
        A("v_cmp_ne_u32 vcc, 0, v5")
        A("v_mov_b32 v19, 0x7fffffff")
        A("s_cmp_lt_u32 s2, 224")
        A(f"s_cselect_b32 {s(srdr+2)}, {4*7168*4}, 0")
        A("v_cndmask_b32 v19, v1, v19, vcc")
        A(f"buffer_store_dwordx4 v[136:139], v19, {s(srdr,4)}, s33 offen{STF}")
    def loop(role):
        A.raw(".p2align 6")
        A.label(f"attn_loop{role}")
        for t in range(8):
            c, n = S_[t % 2], S_[1 - t % 2]
            E = lambda i: f"v_exp_f32 {v(c+i)}, {v(c+i)}"
            C = lambda i: f"v_cvt_pk_bf16_f32 {v(P+i)}, {v(c+2*i)}, {v(c+2*i+1)}"
            X = {6: (kv(0), kv(1)), 7: (kv(2), kv(3)), 0: (kv(4), kv(5)), 1: (kv(6), kv(7)),
                 2: (["s_waitcnt vmcnt(10)"] + cp_store(), cp_load()), 3: (cs_dma(0), cs_dma(1)), 4: ([], []), 5: ([], [])}[t]
            if role == "B":
                X = ([], [])
                if OPT("CTA", 0) and t == 7: X = (["buffer_load_dword v251, v252, s[56:59], s60 offen"], [])
            FAIR = OPT("FAIR", 0)
            if t == 6:
                if role == "A": A("s_waitcnt vmcnt(4)")
                A("s_barrier")
            elif FAIR == 1 and t == 2:
                A("s_barrier")
            elif FAIR == 2 and t % 2 == 0:
                A("s_barrier")
            if FAIR == 1: A(f"s_setprio {3 - (t + 2) % 4}")
            if FAIR == 3 and t % 2 == 0: A(f"s_setprio {3 - ((t + 2) % 8) // 2}")
            A("s_waitcnt lgkmcnt(2)")
            A(mf32(n, KF, Q, v(NEGM, 16)))
            A(kread(t + 2, 0))
            emit(A, [E(0), E(1), E(2)])
            A(mf32(O, VF+4, P+4))
            A(vread(t, 1))
            emit(A, X[0])
            emit(A, [E(3), E(4), E(5), E(6)])
            A("s_waitcnt lgkmcnt(2)")
            A(mf32(n, KF+4, Q+4))
            A(kread(t + 2, 1))
            emit(A, [E(7), C(0), C(1), C(2), C(3), E(8)])
            A(mf16(L, ONES, P+4))
            emit(A, [E(9), E(10)])
            A(mf32(O, VF, P))
            A(vread(t + 1, 0))
            emit(A, X[1])
            emit(A, [E(11), E(12), E(13), E(14)])
            A(mf16(L, ONES, P))
            if t == 7:
                A(f"s_add_u32 {s(sRd)}, {s(sRd)}, {SLOT}")
                A(f"s_cmp_eq_u32 {s(sRd)}, {SLOT*R}")
                A(f"s_cselect_b32 {s(sRd)}, 0, {s(sRd)}")
                A("v_mov_b32 v16, v17")
                A(f"v_add_u32 v17, {s(sRd)}, v6")
                A(f"s_sub_u32 {s(sCnt)}, {s(sCnt)}, 1")
                A(f"s_cmp_lg_u32 {s(sCnt)}, 0")
            emit(A, [E(15), C(4), C(5), C(6), C(7)])
        A(f"s_cbranch_scc1 attn_loop{role}")
    A("s_cmp_ge_u32 s20, 4")
    A("s_cbranch_scc1 attn_preB")
    loop("A")
    A("s_branch attn_post")
    A.label("attn_preB")
    if OPT("CTA", 0):
        emit(A, code_touch_list(A, "attn_post", 251, 252)[:-1])
        A("s_mov_b32 s60, s28")
    loop("B")
    A.label("attn_post")
    if OPT("FAIR", 0): A("s_setprio 0")
    A("s_waitcnt lgkmcnt(0)")
    A("s_nop 0")
    A(mf32(O, VF+4, P+4))
    A(mf16(L, ONES, P+4))
    cyc(A, 2, 1); stamp(A, 2, 3)
    if OPT("CSA", 1):
        A("s_nop 10")
        A(f"v_add_f32 v18, |{v(O)}|, {v(L)}")
        for i in range(1, 16): A(f"v_add_f32 v18, |{v(O+i)}|, v18")
        A(f"v_mov_b32 v19, {f32(2.0**120)}")
        A("v_cmp_nlt_f32 vcc, v18, v19")
        A("s_nop 1")
        A("s_cmp_eq_u64 vcc, 0")
        A("s_cbranch_scc0 attn_slow")
    else:
        A("s_waitcnt vmcnt(0)")
        A("s_barrier")
        cs_p1(S0)
        A(f"v_add_f32 v18, |{v(O)}|, {v(L)}")
        for i in range(1, 16): A(f"v_add_f32 v18, |{v(O+i)}|, v18")
        A(f"v_mov_b32 v19, {f32(2.0**120)}")
        A("v_cmp_nlt_f32 vcc, v18, v19")
        cs_p2(S0)
        A("s_cmp_eq_u64 vcc, 0")
        A("s_cbranch_scc0 attn_slow")
    A.label("attn_fin")
    A(f"s_load_dwordx2 s[44:45], s[0:1], {KA_X}")
    A(f"v_rcp_f32 v18, {v(L)}")
    A("s_nop 0")
    for i in range(16): A(f"v_mul_f32 {v(O+i)}, {v(O+i)}, v18")
    for pc in range(2):
        for hh in range(2):
            run = pc + 2 * hh
            for j in range(2):
                A(f"v_cvt_pk_bf16_f32 {v(P+4*pc+2*hh+j)}, {v(O+4*run+2*j)}, {v(O+4*run+2*j+1)}")
    A("v_bfe_u32 v18, v1, 3, 1")
    A("v_lshlrev_b32 v18, 10, v18")
    A("v_bfe_u32 v19, v1, 4, 1")
    A("v_lshl_add_u32 v18, v19, 7, v18")
    A("v_and_b32 v19, 7, v1")
    A("v_lshl_add_u32 v18, v19, 4, v18")
    A("v_lshrrev_b32 v19, 5, v1")
    A("v_lshl_add_u32 v18, v19, 8, v18")
    A("s_lshl_b32 s28, s21, 17")
    A("s_add_u32 s28, s28, s35")
    A(f"buffer_store_dwordx4 {v(P,4)}, v18, s[36:39], s28 offen{STF}")
    A(f"buffer_store_dwordx4 {v(P+4,4)}, v18, s[36:39], s28 offen offset:512{STF}")
    if OPT("CSA", 1):
        A("s_cmp_ge_u32 s20, 4")
        A("s_cbranch_scc1 attn_nocs")
        A("v_lshrrev_b32 v18, 2, v1")
        A("v_lshlrev_b32 v18, 7, v18")
        A("v_lshl_add_u32 v18, v4, 3, v18")
        A("v_bfe_u32 v19, v1, 3, 2")
        A("v_xor_b32 v19, s31, v19")
        A("v_lshl_add_u32 v18, v19, 5, v18")
        A(f"v_add_u32 v18, {WL}, v18")
        for ks in range(16):
            for t in range(2):
                A(f"ds_read_b64_tr_b16 {v(144+4*ks+2*t,2)}, v18 offset:{ks*4096+t*2048}")
        for i in range(4): A(f"v_mov_b32 {v(132+i)}, 0x3f803f80")
        srd(A, 48, 6, WS_CS, 4*7168*4)
        A(f"s_mul_i32 s33, s33, {2*7168*4}")
        A("s_lshl_b32 s34, s32, 8")
        A("s_add_u32 s33, s33, s34")
        A("s_lshl_b32 s34, s31, 6")
        A("s_add_u32 s33, s33, s34")
        A(f"s_add_u32 s34, s33, {7168*4}")
        A("v_cmp_ne_u32 vcc, 0, v5")
        A("v_mov_b32 v19, 0x7fffffff")
        A("s_cmp_lt_u32 s2, 224")
        A(f"s_cselect_b32 s50, {4*7168*4}, 0")
        A("v_cndmask_b32 v19, v1, v19, vcc")
        A("s_waitcnt lgkmcnt(0)")
        for ks in range(8):
            for hh in range(2):
                A(mf16(136 + 72*hh, 144 + 4*(8*hh+ks), 132, "0" if ks == 0 else None))
        A("s_nop 7")
        A(f"buffer_store_dwordx4 v[136:139], v19, s[48:51], s33 offen{STF}")
        A(f"buffer_store_dwordx4 v[208:211], v19, s[48:51], s34 offen{STF}")
        A.label("attn_nocs")
    else:
        cs_p3(48)
    pub_prep(A, 2, 22, 21)
    A("s_waitcnt lgkmcnt(0)")
    def slow():
        A.label("attn_slow")
        A("v_mov_b32 v18, 0xff800000")
        A("s_mov_b32 s28, 0")
        A.label("attn_slow1")
        A(f"buffer_load_dwordx4 {v(KF,4)}, v6, s[8:11], s28 offen{LDF}")
        A(f"buffer_load_dwordx4 {v(KF+4,4)}, v6, s[8:11], s28 offen offset:1024{LDF}")
        A("s_waitcnt vmcnt(0)")
        A("s_nop 15")
        A(mf32(S0, KF, Q, "0"))
        A(mf32(S0, KF+4, Q+4))
        A("s_nop 15")
        A("s_nop 3")
        for i in range(0, 16, 2): A(f"v_max3_f32 v18, v18, {v(S0+i)}, {v(S0+i+1)}")
        A("s_add_u32 s28, s28, 2048")
        A("s_cmp_lt_u32 s28, 131072")
        A("s_cbranch_scc1 attn_slow1")
        A("v_mov_b32 v19, v18")
        A("s_nop 1")
        A("v_permlane32_swap_b32 v19, v18")
        A("s_nop 1")
        A("v_max_f32 v18, v18, v19")
        for i in range(16): A(f"v_sub_f32 {v(NEGM+i)}, 0, v18")
        for i in range(16): A(f"v_mov_b32 {v(O+i)}, 0")
        for i in range(4): A(f"v_mov_b32 {v(L+i)}, 0")
        A("s_mov_b32 s28, 0")
        A.label("attn_slow2")
        A(f"buffer_load_dwordx4 {v(KF,4)}, v6, s[8:11], s28 offen{LDF}")
        A(f"buffer_load_dwordx4 {v(KF+4,4)}, v6, s[8:11], s28 offen offset:1024{LDF}")
        A(f"buffer_load_dwordx4 {v(VF,4)}, v6, s[12:15], s28 offen{LDF}")
        A(f"buffer_load_dwordx4 {v(VF+4,4)}, v6, s[12:15], s28 offen offset:1024{LDF}")
        A("s_waitcnt vmcnt(0)")
        A(mf32(S0, KF, Q, v(NEGM, 16)))
        A(mf32(S0, KF+4, Q+4))
        A("s_nop 15")
        A("s_nop 3")
        for i in range(16): A(f"v_exp_f32 {v(S0+i)}, {v(S0+i)}")
        A("s_nop 0")
        for i in range(8): A(f"v_cvt_pk_bf16_f32 {v(P+i)}, {v(S0+2*i)}, {v(S0+2*i+1)}")
        A("s_nop 1")
        A(mf32(O, VF, P))
        A(mf32(O, VF+4, P+4))
        A(mf16(L, ONES, P))
        A(mf16(L, ONES, P+4))
        A("s_nop 15")
        A("s_add_u32 s28, s28, 2048")
        A("s_cmp_lt_u32 s28, 131072")
        A("s_cbranch_scc1 attn_slow2")
        A("s_nop 15")
        A("s_branch attn_fin")
    return slow

HEADER = open("sequential_preLN__mha_block__glu_gated_glu__prompt.s.ref").read().split("; Override launch")[0]

def build(path):
    from mk2 import ph_proj, ph_gu, ph_down2, ph_down3
    A = Asm()
    A.raw(f".globl {NAME}"); A.raw(".p2align 8"); A.raw(f".type {NAME},@function"); A.label(NAME)
    A("s_cmp_ge_u32 s2, 256")
    A("s_cbranch_scc1 the_end")
    if OPT("RAW", 0):
        from mk3 import ph_qkv_raw
        hooks = ph_qkv_raw(A)
    else:
        ph_ln_qkv(A); hooks = None
    slow = ph_attn(A)
    ph_proj(A, 3, True)
    ph_gu(A)
    if OPT("SPLITK", 1) == 2: ph_down3(A)
    elif OPT("SPLITK", 1) == 1: ph_down2(A)
    else: ph_proj(A, 5, False)
    stamp_flush(A)
    A.label("the_end")
    A("s_endpgm")
    slow()
    A.label("code_end")
    out = HEADER
    out += "; @launch grid=(256,1,1) block=(512,1,1) lds=163840\n"
    out += '.amdgcn_target "amdgcn-amd-amdhsa--gfx950"\n.text\n'
    out += A.text()
    out += '.section .rodata,"a"\n'
    out += kernel_desc(NAME, 256, 102 if PROF else 64)
    open(path, "w").write(out)

if __name__ == "__main__":
    build(sys.argv[1] if len(sys.argv) > 1 else "sequential_preLN__mha_block__glu_gated_glu__prompt.s")
```

```python
import sys, math, os, struct
from asmlib import *

MB = 1 << 20
WS_XN, WS_Q, WS_K, WS_VT, WS_O, WS_H, WS_ST, WS_CS, WS_FL, WS_HACT = 0, 4*MB, 8*MB, 12*MB, 16*MB, 20*MB, 24*MB, 25*MB, 26*MB, 32*MB
if int(os.environ.get('HACT0', '1')): WS_HACT = 0
WS_DBG = 48*MB
WS_RS = 27*MB
WS_XB = 72*MB
WS_WD = 64*MB
KA_X, KA_WQKV, KA_WO, KA_BX, KA_WG, KA_WU, KA_WD, KA_OUT, KA_DBG, KA_WS = 0, 8, 16, 24, 32, 40, 48, 56, 64, 72
LOG2E = math.log2(math.e)
QSCALE = LOG2E / math.sqrt(32.0)
def f32(x): return hex(struct.unpack("<I", struct.pack("<f", x))[0])
def OPT(name, default): return int(os.environ.get(name, str(default)))
def SOPT(name, default): return os.environ.get(name, default)
PROF = OPT("PROF", 0)
STF = " sc1"
LDF = SOPT("LDF", " sc1")
OUTF = SOPT("OUTF", "")
NAME = "sequential_preLN__mha_block__glu_gated_glu__prompt_kernel"

sNON = 62
def stamp(A, ph, i):
    if not PROF: return
    A("s_memrealtime s[64:65]")
    A("s_waitcnt lgkmcnt(0)")
    A(f"s_mov_b32 {s(66+ph*6+i)}, s64")
def cyc(A, ph, end):
    if not PROF: return
    A("s_memtime s[64:65]")
    A("s_waitcnt lgkmcnt(0)")
    if not end: A(f"s_mov_b32 {s(66+ph*6+5)}, s64")
    else: A(f"s_sub_u32 {s(66+ph*6+5)}, s64, {s(66+ph*6+5)}")
def stamp_flush(A):
    if not PROF: return
    if PROF == 2:
        A(f"s_load_dwordx2 s[4:5], s[0:1], {KA_DBG}")
        A("s_waitcnt lgkmcnt(0)")
        srd(A, 8, 4, 0, 256)
        A(f"s_cmp_lg_u32 s2, {OPT('DBGWG', 0)}")
        A("s_cbranch_scc1 the_end")
        A("s_cmp_lg_u32 s20, 0")
        A("s_cbranch_scc1 the_end")
        A("s_mov_b64 exec, 1")
        A("v_mov_b32 v0, 0")
        sel = [(0,3),(0,4),(1,1),(1,2),(1,3),(2,2),(2,3),(3,2),(3,3),(4,2),(4,3),(5,2),(5,3),(5,4)]
        for i, (ph, j) in enumerate(sel):
            A(f"s_sub_u32 s3, {s(66+ph*6+j)}, s66")
            A(f"v_mov_b32 {v(1+i)}, s3")
            A(f"buffer_store_dword {v(1+i)}, v0, s[8:11], 0 offen offset:{8+4*i}")
        return
    A("s_mov_b64 exec, 1")
    srd(A, 8, 6, WS_DBG, 16*MB)
    A("s_lshl_b32 s3, s2, 3")
    A("s_add_u32 s3, s3, s20")
    A("s_lshl_b32 s3, s3, 8")
    A("v_mov_b32 v0, 0")
    for i in range(36):
        A(f"v_mov_b32 {v(1+i)}, {s(66+i)}")
    for i in range(36):
        A(f"buffer_store_dword {v(1+i)}, v0, s[8:11], s3 offen offset:{4*i}")

def mf16(d, A_, B_, c=None):
    c = v(d, 4) if c is None else c
    return f"v_mfma_f32_16x16x32_bf16 {v(d,4)}, {v(A_,4)}, {v(B_,4)}, {c}"
def mf32(d, A_, B_, c=None):
    c = v(d, 16) if c is None else c
    return f"v_mfma_f32_32x32x16_bf16 {v(d,16)}, {v(A_,4)}, {v(B_,4)}, {c}"
def reduce_rows16_32(A, xs, ts):
    for op in ("v_permlane16_swap_b32", "v_permlane32_swap_b32"):
        for x, t in zip(xs, ts): A(f"v_mov_b32 {v(t)}, {v(x)}")
        A("s_nop 1")
        for x, t in zip(xs, ts): A(f"{op} {v(t)}, {v(x)}")
        A("s_nop 1")
        for x, t in zip(xs, ts): A(f"v_add_f32 {v(x)}, {v(x)}, {v(t)}")
def lane_decomp(A):
    A("v_and_b32 v1, 63, v0")
    A("v_lshrrev_b32 v2, 4, v1")
    A("v_bfe_u32 v3, v1, 2, 2")
    A("v_and_b32 v4, 3, v1")
    A("v_and_b32 v5, 15, v1")
    A("v_lshlrev_b32 v6, 4, v1")
def emit(A, L):
    for i in L:
        if isinstance(i, list): emit(A, i)
        else: A(i)

SPIN_MAX = 1 << 18
def pub_prep(A, ph, sg, sj):
    A(f"s_lshl_b32 s3, {s(sg)}, 8")
    A(f"s_lshl_b32 s28, {s(sj)}, 3")
    A("s_add_u32 s3, s3, s28")
    A(f"s_add_u32 s3, s3, {ph*4096}")
    A("v_mov_b32 v250, s3")
    if OPT("PUBFIRST", 1) and ph > 0:
        A("s_waitcnt vmcnt(0)")
        stamp(A, ph, 4)
        publish(A, force=True)
def publish(A, force=False):
    if OPT("PUBFIRST", 1) and not force: return
    srd(A, 56, 6, WS_FL, 6 * 4096)
    A("s_barrier")
    skip = A.newlabel("pub_skip")
    A("s_cmp_lg_u32 s20, 0")
    A(f"s_cbranch_scc1 {skip}")
    A("s_mov_b64 exec, 1")
    A("buffer_store_dwordx2 v[248:249], v250, s[56:59], 0 offen sc1")
    A("s_mov_b64 exec, -1")
    A.label(skip)

def wait_flags(A, ph, sg, n, also_all=None, soff=None):
    skip = A.newlabel("wf_skip"); loop = A.newlabel("wf_loop"); done = A.newlabel("wf_done")
    A("s_cmp_lg_u32 s20, 0")
    A(f"s_cbranch_scc1 {skip}")
    srd(A, 56, 6, WS_FL, 6 * 4096)
    A(f"s_lshl_b32 s3, {s(sg)}, 8")
    A(f"s_add_u32 s3, s3, {ph*4096}")
    if soff is not None: A(f"s_add_u32 s3, s3, {s(soff)}")
    A(f"v_and_b32 v22, {n-1}, v0")
    A("v_lshlrev_b32 v22, 3, v22")
    A("v_lshlrev_b32 v23, 3, v0")
    if also_all is not None: A(f"s_mov_b32 s29, {also_all*4096}")
    A(f"s_mov_b32 s28, {SPIN_MAX}")
    PP = OPT("PPOLL", 0)
    if also_all is not None:
        l2 = A.newlabel("wf_all")
        A.label(l2)
        for j in range(4):
            A(f"buffer_load_dwordx2 {v(24+2*j,2)}, v23, s[56:59], s29 offen offset:{j*512} sc1")
        A("buffer_load_dwordx2 v[252:253], v22, s[56:59], s3 offen sc1")
        A("s_waitcnt vmcnt(1)")
        A(f"v_cmp_ne_u64 vcc, {s(sNON,2)}, v[24:25]")
        for j in range(1, 4):
            A(f"v_cmp_ne_u64 s[60:61], {s(sNON,2)}, {v(24+2*j,2)}")
            A("s_nop 1")
            A("s_or_b64 vcc, vcc, s[60:61]")
        A("s_sub_u32 s28, s28, 1")
        A("s_cmp_eq_u32 s28, 0")
        A(f"s_cbranch_scc1 {skip}")
        A("s_cmp_eq_u64 vcc, 0")
        A(f"s_cbranch_scc0 {l2}")
    else:
        A("buffer_load_dwordx2 v[252:253], v22, s[56:59], s3 offen sc1")
    if PP:
        A(f"s_sleep {PP}")
        A.label(loop)
        for a_, b_ in ((252, 254), (254, 252)):
            A(f"buffer_load_dwordx2 {v(b_,2)}, v22, s[56:59], s3 offen sc1")
            A("s_waitcnt vmcnt(1)")
            A(f"v_cmp_ne_u64 vcc, {s(sNON,2)}, {v(a_,2)}")
            A("s_nop 1")
            A("s_cmp_eq_u64 vcc, 0")
            A(f"s_cbranch_scc1 {done}")
        A("s_sub_u32 s28, s28, 1")
        A("s_cmp_lg_u32 s28, 0")
        A(f"s_cbranch_scc1 {loop}")
        A.label(done)
    else:
        A.label(loop)
        A("s_waitcnt vmcnt(0)")
        A(f"v_cmp_ne_u64 vcc, {s(sNON,2)}, v[252:253]")
        A("s_nop 1")
        A("s_cmp_eq_u64 vcc, 0")
        A(f"s_cbranch_scc1 {skip}")
        A(f"s_sleep {OPT('SLEEP', 1)}")
        A("buffer_load_dwordx2 v[252:253], v22, s[56:59], s3 offen sc1")
        A("s_sub_u32 s28, s28, 1")
        A("s_cmp_lg_u32 s28, 0")
        A(f"s_cbranch_scc1 {loop}")
    A.label(skip)
    A("s_barrier")

sRd, sWr, sGo, sCnt, sM = 23, 24, 25, 27, 30
def ring_advance(slot, R):
    return [f"s_mov_b32 {s(sWr)}, {s(sRd)}",
            f"s_add_u32 {s(sRd)}, {s(sRd)}, {slot}",
            f"s_cmp_eq_u32 {s(sRd)}, {slot*R}",
            f"s_cselect_b32 {s(sRd)}, 0, {s(sRd)}"]

def adv(d, SC=0):
    if not SC: return [f"s_add_u32 {s(sGo)}, {s(sGo)}, {hex(d)}"]
    return ["s_add_u32 s38, s38, 1",
            "s_add_u32 s3, s38, s39",
            f"s_and_b32 s3, s3, {SC-1}",
            f"s_andn2_b32 {s(sGo)}, s38, {SC-1}",
            f"s_or_b32 s3, s3, {s(sGo)}",
            f"s_mul_i32 s3, s3, {hex(d)}",
            f"s_add_u32 {s(sGo)}, s3, s37"]
def rot_init(A, d, SC):
    A(f"s_mov_b32 s37, {s(sGo)}")
    A("s_mov_b32 s38, -1")
    emit(A, adv(d, SC))

def xdma(dX, SC=0, srd_='s[8:11]'):
    g = [[f"s_add_u32 m0, {s(sWr)}, {s(sM)}", "s_nop 0",
          f"buffer_load_dwordx4 v6, {srd_}, {s(sGo)} offen{LDF} lds"]]
    for j in range(1, 4):
        g.append([f"buffer_load_dwordx4 v6, {srd_}, {s(sGo)} offen offset:{j*1024}{LDF} lds"])
    g[-1] += adv(dX, SC)
    return g

def fill_ring(A, R, SLOT, dma, lo=0, hi=None, bar=False):
    for st in range(lo, R if hi is None else hi):
        if dma is not None:
            A(f"s_mov_b32 {s(sWr)}, {st*SLOT}")
            emit(A, dma())
        if bar and st < R - 1: A("s_barrier")

def fill_rest(A, R, SLOT, dma, done):
    st = done
    for b in range(R - 1):
        A("s_barrier")
        if st < R:
            A(f"s_mov_b32 {s(sWr)}, {st*SLOT}")
            emit(A, dma()); st += 1
    assert st == R

def gemm_loop(A, ph, label, role, R, SLOT, NST, ndma, mfmas, reads, dma_groups, addr_upd, tail_hook=None, cnt_sgpr=None, top_hook=None):
    T = R + (R % 2) if OPT("TAIL", 1) else 0
    A(f"s_mov_b32 {s(sRd)}, 0")
    emit(A, addr_upd())
    A(f"s_waitcnt vmcnt({ndma*(R-1)})")
    A("s_barrier")
    stamp(A, ph, 2); cyc(A, ph, 0)
    emit(A, reads(0))
    emit(A, ring_advance(SLOT, R))
    emit(A, addr_upd())
    A(f"s_mov_b32 {s(sCnt)}, {(NST-T)//2 if cnt_sgpr is None else s(cnt_sgpr)}")
    PRE = OPT("PRE_" + str(ph), OPT("PRE", 0))
    BK = OPT("BK", 1)
    def snake(M):
        return M
    def stage(p, dma, nout, last, hook=None, extra=0, loopend=False, inloop=False):
        M = mfmas(p); Rd = reads(1 - p); D = dma_groups() if dma else []
        if hook: D = D + [hook]
        nm = len(M)
        if last:
            A("s_waitcnt lgkmcnt(0)")
            if (tail_hook or {}).get('endbar'): A("s_barrier")
            if hook:
                h0 = (tail_hook or {}).get('lastpos', 0)
                emit(A, interleave(M, [[x] for x in hook], h0, nm))
            else:
                emit(A, M)
            return
        book = ring_advance(SLOT, R) + addr_upd()
        cnt = [f"s_sub_u32 {s(sCnt)}, {s(sCnt)}, 1", f"s_cmp_lg_u32 {s(sCnt)}, 0"] if loopend else []
        if role == "A":
            pre = min(PRE, nm // 2)
            if pre:
                A("s_waitcnt lgkmcnt(0)")
                emit(A, M[:pre])
                A(f"s_waitcnt vmcnt({ndma*nout+extra})")
            else:
                A(f"s_waitcnt vmcnt({ndma*nout+extra}) lgkmcnt(0)")
            A("s_barrier")
            if inloop and p == 0 and top_hook: emit(A, top_hook)
            Mr = M[pre:]; nr = len(Mr)
            if BK and dma:
                m0set = D[0][0]; D = [D[0][2:]] + D[1:]
                emit(A, interleave(Mr, Rd, 0, max(1, nr - 2)))
                A(m0set)
                emit(A, book)
                emit(A, D)
                emit(A, cnt)
            else:
                emit(A, interleave(Mr, Rd, 0, max(1, nr - 2) if dma else max(1, (2 * nr) // 3)))
                emit(A, D)
                emit(A, book); emit(A, cnt)
        else:
            A(f"s_waitcnt vmcnt({ndma*nout+extra}) lgkmcnt(0)")
            A("s_barrier")
            if inloop and p == 0 and top_hook: emit(A, top_hook)
            emit(A, D)
            if BK:
                h = max(1, (2 * nm) // 3)
                emit(A, interleave(M[:h], Rd))
                emit(A, interleave(M[h:], [[x] for x in book[:2]] + [book[2:4]] + [[x] for x in book[4:]] + ([cnt] if cnt else []), 0, max(1, nm - h - 1)))
            else:
                emit(A, interleave(M, Rd, 0, max(1, (2 * nm) // 3)))
                emit(A, book); emit(A, cnt)
    A.raw(".p2align 6")
    A.label(label)
    for p in range(2): stage(p, True, R - 2, False, loopend=(p == 1), inloop=True)
    A(f"s_cbranch_scc1 {label}")
    for st in range(NST - T, NST):
        stage(st % 2, st + R < NST, min(R - 2, NST - 2 - st), st == NST - 1, (tail_hook or {}).get(NST - st), (tail_hook or {}).get(('x', NST - st), 0))
    if not T: A("s_waitcnt lgkmcnt(0)")
    A("s_nop 7")
    if OPT("ENDBAR", 0) or (ph == 1 and OPT("RAW", 0)): A("s_barrier")
    cyc(A, ph, 1); stamp(A, ph, 3)

def code_touch(A, vd=26):
    if not OPT("CT", 0): return
    l = A.newlabel("ct")
    A("s_getpc_b64 s[56:57]")
    A.label(l)
    A(f"s_sub_u32 s56, s56, {l}-{NAME}")
    A("s_subb_u32 s57, s57, 0")
    A(f"s_mov_b32 s58, code_end-{NAME}")
    A("s_mov_b32 s59, 0x20000")
    A("v_lshlrev_b32 v20, 7, v1")
    A("s_lshl_b32 s28, s31, 13")
    A(f"buffer_load_dword {v(vd)}, v20, s[56:59], s28 offen")

def code_touch_list(A, frm, vd, va):
    l = A.newlabel("ct")
    return ["s_getpc_b64 s[56:57]", f"{l}:",
            f"s_add_u32 s56, s56, {frm}-{l}", "s_addc_u32 s57, s57, 0",
            "s_and_b32 s56, s56, 0xffffff80",
            f"s_mov_b32 s58, code_end-{frm}", "s_mov_b32 s59, 0x20000",
            f"v_lshlrev_b32 {v(va)}, 7, v1", "s_lshl_b32 s28, s31, 13",
            f"buffer_load_dword {v(vd)}, {v(va)}, s[56:59], s28 offen"]

def w_swz_voff(A, dst, rowstride):
    A(f"v_lshrrev_b32 {v(dst)}, 3, v1")
    A(f"v_mul_u32_u24 {v(dst)}, {rowstride}, {v(dst)}")
    A("v_and_b32 v20, 7, v1")
    A("v_lshlrev_b32 v21, 1, v2")
    A("v_xor_b32 v20, v20, v21")
    A(f"v_lshl_add_u32 {v(dst)}, v20, 4, {v(dst)}")

def ph_ln_qkv(A):
    R, SLOT, NST = 4, 40960, 16
    A(f"s_load_dwordx4 s[40:43], s[0:1], {KA_X}")
    A(f"s_load_dwordx4 s[4:7], s[0:1], {KA_DBG}")
    A("s_memrealtime s[62:63]")
    A("v_lshrrev_b32 v1, 6, v0")
    A("s_nop 0")
    A("v_readfirstlane_b32 s20, v1")
    lane_decomp(A)
    A("s_and_b32 s21, s2, 1")
    A("s_lshl_b32 s21, s21, 3")
    A("s_bfe_u32 s28, s2, 0x30003")
    A("s_add_u32 s21, s21, s28")
    A("s_bfe_u32 s22, s2, 0x20001")
    A("s_lshl_b32 s22, s22, 2")
    A("s_lshr_b32 s28, s2, 6")
    A("s_add_u32 s22, s22, s28")
    A("s_and_b32 s31, s20, 3")
    QSC = OPT("QSC", 8)
    A("s_and_b32 s39, s21, 3")
    A(f"s_mul_i32 s39, s39, {QSC//4}")
    A("s_cmp_ge_u32 s20, 4")
    A("s_cbranch_scc1 p0_B")
    A("v_and_b32 v7, 7, v1")
    A("v_bfe_u32 v8, v1, 3, 2")
    A("v_lshrrev_b32 v9, 5, v1")
    A("v_lshlrev_b32 v10, 11, v7")
    A("v_lshl_add_u32 v10, v9, 6, v10")
    A("v_lshl_add_u32 v10, v8, 3, v10")
    A("s_lshl_b32 s3, s2, 14")
    A("s_lshl_b32 s28, s20, 9")
    A("s_add_u32 s3, s3, s28")
    A("s_waitcnt lgkmcnt(0)")
    if PROF: A("s_mov_b32 s66, s62")
    srd(A, 8, 40, 0, 4*MB)
    for i in range(4):
        A(f"buffer_load_dwordx2 {v(32+4*i,2)}, v10, s[8:11], s3 offen offset:{i*128}")
        A(f"buffer_load_dwordx2 {v(34+4*i,2)}, v10, s[8:11], s3 offen offset:{i*128+32}")
    srd(A, 16, 4, 0, 256)
    A("s_or_b32 s28, s2, s20")
    A("s_cmp_lg_u32 s28, 0")
    A("s_cbranch_scc1 p0_nopub")
    A("s_or_b32 s62, s62, 1")
    A("v_mov_b32 v20, s62")
    A("v_mov_b32 v21, s63")
    A("v_mov_b32 v22, 0")
    A("s_mov_b64 exec, 1")
    A("buffer_store_dwordx2 v[20:21], v22, s[16:19], 0 offen sc1")
    A("s_mov_b64 exec, -1")
    A("s_waitcnt vmcnt(0)")
    A.label("p0_nopub")
    srd(A, 12, 6, WS_XN, 4*MB)
    A("v_lshlrev_b32 v11, 17, v9")
    A("v_lshl_add_u32 v11, v7, 4, v11")
    A("v_lshl_add_u32 v11, v8, 8, v11")
    A("s_lshr_b32 s32, s2, 1")
    A("s_lshl_b32 s32, s32, 10")
    A("s_and_b32 s33, s2, 1")
    A("s_lshl_b32 s33, s33, 7")
    A("s_add_u32 s32, s32, s33")
    A("s_lshl_b32 s33, s20, 20")
    A("s_add_u32 s32, s32, s33")
    A("s_add_u32 s33, s32, 0x40000")
    A("s_add_u32 s34, s32, 0x80000")
    A("s_add_u32 s35, s32, 0xc0000")
    A("v_mov_b32 v24, 0")
    A("v_mov_b32 v25, 0")
    U = 64
    for j in range(16):
        if j % 2 == 0: A(f"s_waitcnt vmcnt({7 - j//2})")
        A(f"v_lshlrev_b32 {v(U+2*j)}, 16, {v(32+j)}")
        A(f"v_and_b32 {v(U+1+2*j)}, 0xffff0000, {v(32+j)}")
        A(f"v_add_f32 v24, v24, {v(U+2*j)}")
        A(f"v_fmac_f32 v25, {v(U+2*j)}, {v(U+2*j)}")
        A(f"v_add_f32 v24, v24, {v(U+1+2*j)}")
        A(f"v_fmac_f32 v25, {v(U+1+2*j)}, {v(U+1+2*j)}")
    A("v_mov_b32 v22, 0")
    A("buffer_load_dwordx2 v[28:29], v22, s[16:19], 0 offen sc1")
    A("v_add_f32_dpp v24, v24, v24 row_ror:8 row_mask:0xf bank_mask:0xf")
    A("v_add_f32_dpp v25, v25, v25 row_ror:8 row_mask:0xf bank_mask:0xf")
    reduce_rows16_32(A, [24, 25], [26, 27])
    A("v_lshlrev_b32 v26, 5, v7")
    A("s_lshl_b32 s28, s20, 3")
    A("v_add_u32 v27, s28, v26")
    A("ds_write_b64 v27, v[24:25]")
    A("s_waitcnt lgkmcnt(0)")
    A("s_barrier")
    A("ds_read_b128 v[100:103], v26")
    A("ds_read_b128 v[104:107], v26 offset:16")
    A("s_waitcnt lgkmcnt(0)")
    A("v_pk_add_f32 v[24:25], v[100:101], v[102:103]")
    A("v_pk_add_f32 v[26:27], v[104:105], v[106:107]")
    A("v_pk_add_f32 v[24:25], v[24:25], v[26:27]")
    A(f"v_mul_f32 v24, {f32(1/1024)}, v24")
    A(f"v_mul_f32 v25, {f32(1/1024)}, v25")
    A("v_fma_f32 v25, -v24, v24, v25")
    A("v_max_f32 v25, 0, v25")
    A(f"v_add_f32 v25, {f32(1e-5)}, v25")
    A("v_rsq_f32 v25, v25")
    A("s_nop 0")
    A("v_mul_f32 v24, v24, v25")
    for j in range(16):
        A(f"v_fma_f32 {v(U+2*j)}, {v(U+2*j)}, v25, -v24")
        A(f"v_fma_f32 {v(U+1+2*j)}, {v(U+1+2*j)}, v25, -v24")
        A(f"v_cvt_pk_bf16_f32 {v(32+j)}, {v(U+2*j)}, {v(U+1+2*j)}")
        if j % 4 == 3:
            A(f"buffer_store_dwordx4 {v(32+j-3,4)}, v11, s[12:15], {s(32+j//4)} offen{STF}")
    stamp(A, 0, 3)
    A("s_lshr_b32 s32, s2, 4")
    A("s_and_b32 s33, s2, 15")
    pub_prep(A, 0, 32, 33)
    A(f"s_mov_b32 s28, {SPIN_MAX}")
    A.label("p0_nonce")
    A("s_waitcnt vmcnt(0)")
    A("v_readfirstlane_b32 s62, v28")
    A("v_readfirstlane_b32 s63, v29")
    A("s_nop 1")
    A("s_cmp_lg_u32 s62, 0")
    A("s_cbranch_scc1 p0_gotnonce")
    A("buffer_load_dwordx2 v[28:29], v22, s[16:19], 0 offen sc1")
    A("s_sub_u32 s28, s28, 1")
    A("s_cmp_lg_u32 s28, 0")
    A("s_cbranch_scc1 p0_nonce")
    A.label("p0_gotnonce")
    A("v_mov_b32 v248, s62")
    A("v_mov_b32 v249, s63")
    stamp(A, 0, 4)
    publish(A, force=True)
    A("v_mov_b32 v12, 0")
    A("s_lshr_b32 s28, s31, 1")
    A("s_lshl_b32 s28, s28, 7")
    A("s_lshl_b32 s29, s21, 3")
    A("s_add_u32 s28, s28, s29")
    A("s_and_b32 s29, s31, 1")
    A("s_lshl_b32 s29, s29, 2")
    A("s_add_u32 s28, s28, s29")
    A(f"s_lshl_b32 {s(sGo)}, s28, 10")
    if QSC: rot_init(A, 0x40000, QSC)
    A(f"s_lshl_b32 {s(sM)}, s31, 12")
    A("s_branch p1_common")
    A.label("p0_B")
    code_touch(A)
    w_swz_voff(A, 7, 6144)
    A(f"v_add_u32 v8, {8*6144-1024}, v7")
    A("v_add_u32 v9, 2048, v7")
    A("v_add_u32 v10, 2048, v8")
    A("v_add_u32 v11, 4096, v7")
    A("v_add_u32 v12, 4096, v8")
    A(f"s_mul_i32 s28, s31, {16*6144}")
    A("s_lshl_b32 s29, s22, 7")
    A(f"s_add_u32 {s(sGo)}, s28, s29")
    if QSC: rot_init(A, 64*6144, QSC)
    A(f"s_lshl_b32 {s(sM)}, s31, 11")
    A(f"s_add_u32 {s(sM)}, {s(sM)}, 16384")
    A("v_and_b32 v13, 31, v1")
    A("v_mul_u32_u24 v13, 6144, v13")
    A("v_lshrrev_b32 v14, 5, v1")
    A("v_lshl_add_u32 v15, v14, 11, v13")
    A("v_lshl_add_u32 v13, v14, 30, v13")
    A("v_add_u32 v13, 4096, v13")
    A("s_and_b32 s28, s21, 7")
    A("s_lshl_b32 s28, s28, 2")
    A("s_add_u32 s28, s28, s31")
    A(f"s_mul_i32 s28, s28, {32*6144}")
    A("s_add_u32 s28, s28, s29")
    A("s_waitcnt lgkmcnt(0)")
    if PROF: A("s_mov_b32 s66, s62")
    srd(A, 12, 42, 0, 6*MB)
    def wdma():
        g = []
        for seg in range(3):
            g.append([f"s_add_u32 m0, {s(sWr)}, {s(sM)}" if seg == 0 else "s_add_u32 m0, m0, 8192", "s_nop 0",
                      f"buffer_load_dwordx4 {v(7+2*seg)}, s[12:15], {s(sGo)} offen lds"])
            g.append([f"buffer_load_dwordx4 {v(8+2*seg)}, s[12:15], {s(sGo)} offen offset:1024 lds"])
        g[-1] += adv(64*6144, QSC)
        return g
    TLBW = OPT("TLBW", 0)
    if TLBW:
        sh = TLBW
        per = 1 << (21 - sh)
        A(f"s_load_dwordx2 s[44:45], s[0:1], {KA_WO}")
        A(f"s_load_dwordx4 s[48:51], s[0:1], {KA_WG}")
        A(f"s_load_dwordx4 s[52:55], s[0:1], {KA_WD}")
        A("v_lshlrev_b32 v26, 21, v1")
        A("s_lshr_b32 s33, s2, 3")
        A(f"s_and_b32 s33, s33, {per-1}")
        A(f"s_lshl_b32 s33, s33, {sh}")
        A("s_waitcnt lgkmcnt(0)")
        for wv, lst in ((0, [(6, 81*MB)]), (1, [(54, 4*MB), (44, 2*MB)]), (2, [(48, 7*MB), (50, 7*MB)]), (3, [(52, 7*MB)])):
            l = A.newlabel("tw")
            A(f"s_cmp_lg_u32 s31, {wv}")
            A(f"s_cbranch_scc1 {l}")
            for b_, sz in lst:
                srd(A, 56, b_, 0, sz)
                A("buffer_load_dword v27, v26, s[56:59], s33 offen sc1")
            A.label(l)
    P0M = OPT("P0M", 7)
    def touches():
        A("buffer_load_dword v24, v15, s[12:15], s28 offen")
        A("buffer_load_dword v25, v13, s[12:15], s28 offen")
    if P0M == 0:
        touches()
        fill_ring(A, R, SLOT, wdma, 0, 2)
        A("s_barrier")
        fill_ring(A, R, SLOT, wdma, 2, 4)
        A("s_barrier")
    elif P0M == 1:
        A("s_barrier")
        touches()
        fill_ring(A, R, SLOT, wdma, 0, 2)
        A("s_barrier")
        fill_ring(A, R, SLOT, wdma, 2, 4)
    elif P0M == 2:
        fill_ring(A, R, SLOT, wdma, 0, 2)
        A("s_barrier")
        touches()
        fill_ring(A, R, SLOT, wdma, 2, 4)
        A("s_barrier")
        A("s_waitcnt vmcnt(0)")
    elif P0M == 4:
        A("s_barrier")
        fill_ring(A, R, SLOT, wdma, 0, 2)
        A("s_barrier")
        fill_ring(A, R, SLOT, wdma, 2, 4)
    elif P0M == 5:
        fill_ring(A, R, SLOT, wdma, 0, 4)
        A("s_barrier")
        A("s_barrier")
    elif P0M == 6:
        fill_ring(A, R, SLOT, wdma, 0, 2)
        A("s_barrier")
        A("s_barrier")
        fill_ring(A, R, SLOT, wdma, 2, 4)
    elif P0M in (7, 8, 9):
        def ctouch():
            A("v_lshlrev_b32 v15, 7, v1")
            A("v_cmp_gt_u32 vcc, 48, v1")
            A("v_mov_b32 v13, 0x7fffffff")
            A("s_lshl_b32 s28, s2, 2")
            A("s_add_u32 s28, s28, s31")
            A("v_cndmask_b32 v15, v13, v15, vcc")
            A("s_mul_i32 s28, s28, 6144")
            A("buffer_load_dword v24, v15, s[12:15], s28 offen")
        if P0M == 7:
            ctouch()
            fill_ring(A, R, SLOT, wdma, 0, 2)
            A("s_barrier"); A("s_barrier")
            fill_ring(A, R, SLOT, wdma, 2, 4)
        elif P0M == 8:
            ctouch()
            A("s_waitcnt vmcnt(0)")
            A("s_barrier")
            fill_ring(A, R, SLOT, wdma, 0, 2)
            A("s_barrier")
            fill_ring(A, R, SLOT, wdma, 2, 4)
        else:
            ctouch()
            A("s_barrier"); A("s_barrier")
            fill_ring(A, R, SLOT, wdma, 0, 4)
    elif P0M == 3:
        fill_ring(A, R, SLOT, wdma, 0, 2)
        A("s_barrier")
        fill_ring(A, R, SLOT, wdma, 2, 4)
        A("s_barrier")

    A.label("p1_common")
    ACC = 64
    def acc(f, i): return ACC + (f * 4 + i) * 4
    SET = [112, 168]
    def xf(p, kk, i): return SET[p] + (kk * 4 + i) * 4
    def wf(p, kk, f): return SET[p] + 32 + (kk * 3 + f) * 4
    srd(A, 8, 6, WS_XN, 4*MB)
    srd(A, 12, 42, 0, 6*MB)
    srd(A, 16, 6, WS_Q, 12*MB)
    A("s_and_b32 s28, s20, 1")
    A("s_lshl_b32 s28, s28, 12")
    A("v_add_u32 v32, s28, v6")
    A("v_lshl_add_u32 v33, v2, 2, v3")
    A("v_lshlrev_b32 v33, 7, v33")
    A("v_lshl_add_u32 v33, v4, 3, v33")
    A("v_add_u32 v33, 16384, v33")
    A("v_bfe_u32 v34, v1, 3, 2")
    A("s_lshr_b32 s28, s20, 1")
    A("s_and_b32 s29, s28, 1")
    A("s_lshl_b32 s29, s29, 1")
    A("s_lshr_b32 s32, s28, 1")
    A("s_lshl_b32 s32, s32, 13")
    A("v_xor_b32 v35, s29, v34")
    A("v_lshl_add_u32 v35, v35, 5, v33")
    A("v_add_u32 v35, s32, v35")
    A("v_xor_b32 v36, 32, v35")
    A("v_xor_b32 v37, s28, v34")
    A("v_lshl_add_u32 v37, v37, 5, v33")
    A("v_add_u32 v37, 16384, v37")
    for i in range(48): A(f"v_mov_b32 {v(ACC+i)}, 0")
    stamp(A, 1, 0)
    wait_flags(A, 0, 21, 16)
    stamp(A, 1, 1)
    def reads(p):
        out = []
        for kk in range(2):
            for f in range(3):
                for t in range(2):
                    out.append([f"ds_read_b64_tr_b16 {v(wf(p,kk,f)+2*t,2)}, {v(17+f)} offset:{kk*4096+t*2048}"])
            for i in range(4):
                out.append([f"ds_read_b128 {v(xf(p,kk,i),4)}, v16 offset:{kk*8192+i*1024}"])
        return out
    def addr_upd():
        return [f"v_add_u32 v16, {s(sRd)}, v32", f"v_add_u32 v17, {s(sRd)}, v35",
                f"v_add_u32 v18, {s(sRd)}, v36", f"v_add_u32 v19, {s(sRd)}, v37"]
    def mfmas(p):
        M = []
        for kk in range(2):
            for f in range(3):
                for i in (range(4) if (f % 2 == 0 or not OPT("SNAKE", 1)) else range(3, -1, -1)):
                    if f < 2: M.append(mf16(acc(f, i), wf(p, kk, f), xf(p, kk, i)))
                    else:     M.append(mf16(acc(f, i), xf(p, kk, i), wf(p, kk, f)))
        return M
    A("s_cmp_ge_u32 s20, 4")
    A("s_cbranch_scc1 qkv_B")
    fill_ring(A, R, SLOT, lambda: xdma(0x40000, QSC), bar=True)
    gemm_loop(A, 1, "qkv_loopA", "A", R, SLOT, NST, 4, mfmas, reads, lambda: xdma(0x40000, QSC), addr_upd,
              {4: code_touch_list(A, "qkv_epi", 251, 252), ('x', 3): 1, ('x', 2): 1} if OPT("CTQ", 1) else None)
    A("s_branch qkv_epi")
    A.label("qkv_B")
    fill_ring(A, R, SLOT, None, bar=True)
    gemm_loop(A, 1, "qkv_loopB", "B", R, SLOT, NST, 6, mfmas, reads, wdma, addr_upd)
    A.label("qkv_epi")
    A(f"s_load_dwordx2 s[40:41], s[0:1], {KA_WO}")
    A(f"s_load_dwordx4 s[44:47], s[0:1], {KA_WG}")
    A(f"s_load_dwordx2 s[42:43], s[0:1], {KA_WD}")
    A("v_lshlrev_b32 v9, 9, v2")
    A("v_lshrrev_b32 v7, 3, v5")
    A("v_lshl_add_u32 v7, v7, 8, v9")
    A("v_and_b32 v8, 7, v5")
    A("v_lshl_add_u32 v7, v8, 4, v7")
    A("v_lshl_add_u32 v8, v5, 4, v9")
    A("s_lshr_b32 s28, s20, 1")
    A("s_and_b32 s29, s28, 1")
    A("s_lshr_b32 s32, s28, 1")
    A("s_and_b32 s33, s20, 1")
    A("s_lshl_b32 s34, s21, 2")
    A("s_lshl_b32 s33, s33, 1")
    A("s_add_u32 s34, s34, s33")
    A("s_lshl_b32 s34, s34, 11")
    A("s_lshl_b32 s35, s22, 1")
    A("s_add_u32 s36, s35, s29")
    A("s_lshl_b32 s36, s36, 17")
    A("s_add_u32 s36, s36, s34")
    A("s_lshl_b32 s37, s32, 22")
    A("s_add_u32 s36, s36, s37")
    A("s_add_u32 s38, s35, s32")
    A("s_lshl_b32 s38, s38, 17")
    A("s_add_u32 s38, s38, s34")
    A("s_lshl_b32 s37, s29, 8")
    A("s_add_u32 s38, s38, s37")
    A(f"s_add_u32 s38, s38, {8*MB}")
    A("s_cmp_eq_u32 s32, 0")
    A(f"s_cselect_b32 s39, {f32(QSCALE)}, 1.0")
    A("v_mov_b32 v20, s39")
    A("v_mov_b32 v21, s39")
    T = 128
    for pr in range(2):
        for ii in range(2):
            for h in range(2):
                A(f"v_cvt_pk_bf16_f32 {v(T+4*pr+2*ii+h)}, {v(acc(2,2*pr+ii)+2*h)}, {v(acc(2,2*pr+ii)+2*h+1)}")
        A(f"buffer_store_dwordx4 {v(T+4*pr,4)}, v8, s[16:19], s38 offen offset:{pr*2048}{STF}")
    T = 112
    for i in range(4):
        for f in range(2):
            for h in range(2):
                if OPT("NOPK", 1):
                    A(f"v_mul_f32 {v(acc(f,i)+2*h)}, {v(acc(f,i)+2*h)}, v20")
                    A(f"v_mul_f32 {v(acc(f,i)+2*h+1)}, {v(acc(f,i)+2*h+1)}, v20")
                else:
                    A(f"v_pk_mul_f32 {v(acc(f,i)+2*h,2)}, {v(acc(f,i)+2*h,2)}, v[20:21]")
        for f in range(2):
            for h in range(2):
                A(f"v_cvt_pk_bf16_f32 {v(T+4*i+2*f+h)}, {v(acc(f,i)+2*h)}, {v(acc(f,i)+2*h+1)}")
        A(f"buffer_store_dwordx4 {v(T+4*i,4)}, v7, s[16:19], s36 offen offset:{(i>>1)*2048+(i&1)*128}{STF}")
    pub_prep(A, 1, 22, 21)
    A("s_waitcnt lgkmcnt(0)")

def ph_attn(A):
    R, SLOT = 3, 32768
    WL = R * SLOT
    Q, NEGM, S0, S1, P, KF, VF, O, L, ONES = 8, 32, 48, 64, 80, 88, 96, 104, 120, 124
    S_ = [S0, S1]
    A("s_and_b32 s21, s2, 7")
    A("s_lshl_b32 s21, s21, 2")
    A("s_bfe_u32 s28, s2, 0x20003")
    A("s_add_u32 s21, s21, s28")
    A("s_lshr_b32 s22, s2, 5")
    A("s_lshr_b32 s32, s2, 1")
    A("s_and_b32 s33, s2, 1")
    sCo, sCM = 26, 29
    A("s_cmp_ge_u32 s32, 56")
    A("s_cselect_b32 s48, s46, s44")
    A("s_cselect_b32 s49, s47, s45")
    A("s_cselect_b32 s34, 56, 0")
    A("s_sub_u32 s34, s32, s34")
    A("s_mov_b32 s51, 0x20000")
    A("s_lshl_b32 s34, s34, 7")
    A(f"s_mul_i32 s35, s33, {512*7168}")
    A("s_add_u32 s34, s34, s35")
    A(f"s_add_u32 s35, s35, {512*7168}")
    A("s_cmp_lt_u32 s2, 224")
    A("s_cselect_b32 s50, s35, 0")
    A(f"s_mul_i32 s35, s31, {16*7168}")
    A(f"s_add_u32 {s(sCo)}, s34, s35")
    w_swz_voff(A, 7, 7168)
    A(f"v_add_u32 v129, {8*7168-1024}, v7")
    srd(A, 52, 40, 0, 2*MB)
    srd(A, 44, 42, 0, 7*MB)
    A("s_lshl_b32 s35, s2, 2")
    A("s_add_u32 s35, s35, s31")
    A("v_lshlrev_b32 v8, 7, v1")
    A("v_mov_b32 v9, 0x7fffffff")
    A("s_lshl_b32 s34, s35, 11")
    A("v_add_u32 v130, s34, v8")
    A("v_cmp_gt_u32 vcc, 16, v1")
    A("s_lshl_b32 s60, s35, 10")
    A("s_nop 0")
    A("v_cndmask_b32 v130, v9, v130, vcc")
    A("s_and_b32 s34, s35, 1")
    A("s_lshl_b32 s34, s34, 3")
    A("v_lshrrev_b32 v8, 3, v1")
    A("v_add_u32 v8, s34, v8")
    A(f"v_mul_u32_u24 v8, {3584*128}, v8")
    A("s_bfe_u32 s34, s35, 0x20002")
    A("s_lshl_b32 s34, s34, 1")
    A("v_and_b32 v9, 7, v1")
    A("v_xor_b32 v9, s34, v9")
    A("v_lshl_add_u32 v131, v9, 4, v8")
    A("s_lshr_b32 s61, s35, 1")
    A("s_lshl_b32 s61, s61, 7")
    A(f"s_sub_u32 s61, s61, {512*128}")
    CP = 140
    def cp_load():
        return [f"buffer_load_dwordx4 {v(CP,4)}, v6, s[44:47], s60 offen", f"s_add_u32 s60, s60, {MB}"]
    def cp_store():
        return [f"s_cmp_lt_u32 s61, {3584*128}", f"s_cselect_b32 s58, {7*MB}, 0",
                f"buffer_store_dwordx4 {v(CP,4)}, v131, s[56:59], s61 offen{STF}", f"s_add_u32 s61, s61, {512*128}"]
    def cs_dma(j):
        if j == 0:
            return [f"s_mov_b32 m0, {s(sCM)}", f"s_add_u32 {s(sCM)}, {s(sCM)}, 8192",
                    f"buffer_load_dwordx4 v7, s[48:51], {s(sCo)} offen lds"]
        return [f"buffer_load_dwordx4 v129, s[48:51], {s(sCo)} offen offset:1024 lds",
                f"s_add_u32 {s(sCo)}, {s(sCo)}, {64*7168}"]
    A("s_lshl_b32 s28, s21, 17")
    A("s_add_u32 s4, s6, s28")
    A("s_addc_u32 s5, s7, 0")
    srd(A, 8, 4, WS_K, 131072)
    srd(A, 12, 4, WS_VT, 131072)
    srd(A, 16, 4, WS_Q, 131072)
    srd(A, 36, 6, WS_O, 4*MB)
    A(f"s_lshl_b32 {s(sGo)}, s31, 12")
    A(f"s_lshl_b32 {s(sM)}, s31, 12")
    A("v_lshrrev_b32 v16, 2, v1")
    A("v_xor_b32 v16, v16, v2")
    A("v_and_b32 v16, 1, v16")
    A("v_cmp_eq_u32 vcc, 0, v16")
    A("v_mov_b32 v17, 0x3f803f80")
    A("s_nop 1")
    for i in range(4): A(f"v_cndmask_b32 {v(ONES+i)}, 0, v17, vcc")
    for i in range(16): A(f"v_mov_b32 {v(O+i)}, 0")
    for i in range(4): A(f"v_mov_b32 {v(L+i)}, 0")
    for i in range(4): A(f"v_mov_b32 {v(P+4+i)}, 0")
    for i in range(4): A(f"v_mov_b32 {v(VF+4+i)}, 0")
    A("v_mov_b32 v16, v6")
    A(f"v_add_u32 v17, {SLOT}, v6")
    A(f"s_mov_b32 {s(sRd)}, {SLOT}")
    A("s_lshr_b32 s34, s21, 1")
    A("s_lshl_b32 s35, s22, 3")
    A("s_add_u32 s35, s35, s20")
    A("s_lshl_b32 s35, s35, 11")
    if not OPT("PUBFIRST", 1):
        A("s_waitcnt vmcnt(0)")
        stamp(A, 1, 4)
    publish(A)
    stamp(A, 2, 0)
    wait_flags(A, 1, 34, 16)
    stamp(A, 2, 1)
    def kv(j):
        o = []
        if j % 4 == 0: o = [f"s_add_u32 m0, {s(sWr)}, {16384 if j >= 4 else 0}", "s_nop 0"]
        o += [f"buffer_load_dwordx4 v6, {'s[8:11]' if j < 4 else 's[12:15]'}, {s(sGo)} offen offset:{(j&3)*1024}{LDF} lds"]
        if j == 7:
            o += [f"s_add_u32 {s(sGo)}, {s(sGo)}, 16384",
                  f"s_add_u32 {s(sWr)}, {s(sWr)}, {SLOT}",
                  f"s_cmp_ge_u32 {s(sWr)}, {SLOT*R}",
                  f"s_cselect_b32 {s(sWr)}, {s(sM)}, {s(sWr)}"]
        return o
    srd(A, 56, 6, WS_WD, 7*MB)
    if OPT("NOSIDE", 0):
        A("s_mov_b32 s50, 0"); A("s_mov_b32 s46, 0"); A("s_mov_b32 s54, 0"); A("s_mov_b32 s61, 0x10000000")
    A(f"s_mov_b32 {s(sWr)}, {s(sM)}")
    A(f"s_lshl_b32 {s(sCM)}, s31, 11")
    A(f"s_add_u32 {s(sCM)}, {s(sCM)}, {WL}")
    def kread(t, j, dst=None):
        a_ = 16 if t < 8 else 17
        return f"ds_read_b128 {v(KF+4*j if dst is None else dst,4)}, {v(a_)} offset:{(t%8)*2048+j*1024}"
    def vread(t, j):
        a_ = 16 if t < 8 else 17
        return f"ds_read_b128 {v(VF+4*j,4)}, {v(a_)} offset:{16384+(t%8)*2048+j*1024}"
    qld = [f"buffer_load_dwordx4 {v(Q,4)}, v6, s[16:19], s35 offen{LDF}",
           f"buffer_load_dwordx4 {v(Q+4,4)}, v6, s[16:19], s35 offen offset:1024{LDF}"]
    if OPT("ATQ", 0):
        A("s_cmp_eq_u32 s20, 0")
        A("s_cbranch_scc1 at_W0")
        emit(A, qld)
        A("s_cmp_ge_u32 s20, 4")
        A("s_cbranch_scc1 at_B0")
        for j in range(4): emit(A, kv(j))
        A("s_waitcnt vmcnt(4)")
        A("s_branch at_C0")
        A.label("at_B0")
        for j in range(4, 7): emit(A, kv(j))
        emit(A, kv(7)[:1])
        A("s_waitcnt vmcnt(4)")
        A("s_branch at_C0")
        A.label("at_W0")
        for j in range(4): emit(A, kv(j))
        emit(A, qld)
        A("s_waitcnt vmcnt(0)")
        A.label("at_C0")
        emit(A, kv(7)[1:])
        A("s_barrier")
        stamp(A, 2, 2); cyc(A, 2, 0)
        A(kread(0, 0, S1)); A(kread(0, 1, S1+4))
        A(kread(1, 0)); A(kread(1, 1))
        A("s_waitcnt lgkmcnt(2)")
    else:
        A("s_cmp_ge_u32 s20, 4")
        A("s_cbranch_scc1 at_B0")
        for j in range(4): emit(A, kv(j))
        A("s_branch at_C0")
        A.label("at_B0")
        for j in range(4, 7): emit(A, kv(j))
        emit(A, kv(7)[:1])
        A.label("at_C0")
        A(f"buffer_load_dwordx4 {v(Q,4)}, v6, s[16:19], s35 offen{LDF}")
        A(f"buffer_load_dwordx4 {v(Q+4,4)}, v6, s[16:19], s35 offen offset:1024{LDF}")
        emit(A, kv(7)[1:])
        A("s_waitcnt vmcnt(0)")
        A("s_barrier")
        stamp(A, 2, 2); cyc(A, 2, 0)
        def kread(t, j, dst=None):
            a_ = 16 if t < 8 else 17
            return f"ds_read_b128 {v(KF+4*j if dst is None else dst,4)}, {v(a_)} offset:{(t%8)*2048+j*1024}"
        def vread(t, j):
            a_ = 16 if t < 8 else 17
            return f"ds_read_b128 {v(VF+4*j,4)}, {v(a_)} offset:{16384+(t%8)*2048+j*1024}"
        A(kread(0, 0, S1)); A(kread(0, 1, S1+4))
        A(kread(1, 0)); A(kread(1, 1)); A(vread(0, 0))
        A("s_cmp_ge_u32 s20, 4")
        A("s_cbranch_scc1 at_C1")
        for j in range(4): emit(A, kv(j))
        A("buffer_load_dword v128, v130, s[52:55], 0 offen")
        emit(A, cs_dma(0)); emit(A, cs_dma(1))
        if OPT("CT", 0) >= 2:
            A("s_branch at_C2")
        A.label("at_C1")
        if OPT("CT", 0) >= 2:
            code_touch(A, 128)
            srd(A, 56, 6, WS_WD, 7*MB)
            A.label("at_C2")
        A("s_waitcnt lgkmcnt(3)")
    A(mf32(S0, S1, Q, "0"))
    A(mf32(S0, S1+4, Q+4))
    A("s_nop 15")
    A("s_nop 3")
    A(f"v_max3_f32 v18, {v(S0)}, {v(S0+1)}, {v(S0+2)}")
    for i in range(3, 15, 2): A(f"v_max3_f32 v18, v18, {v(S0+i)}, {v(S0+i+1)}")
    A(f"v_max_f32 v18, v18, {v(S0+15)}")
    A("v_mov_b32 v19, v18")
    A("s_nop 1")
    A("v_permlane32_swap_b32 v19, v18")
    A("s_nop 1")
    A("v_max_f32 v18, v18, v19")
    for i in range(16): A(f"v_sub_f32 {v(NEGM+i)}, 0, v18")
    for i in range(16): A(f"v_sub_f32 {v(S0+i)}, {v(S0+i)}, v18")
    A(f"s_mov_b32 {s(sCnt)}, 8")
    if OPT("ATQ", 0):
        A("s_waitcnt vmcnt(0)")
        A("s_barrier")
        A(vread(0, 0))
        A("s_cmp_ge_u32 s20, 4")
        A("s_cbranch_scc1 at_C1")
        for j in range(4): emit(A, kv(j))
        A("buffer_load_dword v128, v130, s[52:55], 0 offen")
        emit(A, cs_dma(0)); emit(A, cs_dma(1))
        A.label("at_C1")
    else:
        A("s_waitcnt lgkmcnt(0)")
    def cs_p1(CSW):
        A("v_lshrrev_b32 v18, 2, v1")
        A("v_lshlrev_b32 v18, 7, v18")
        A("v_lshl_add_u32 v18, v4, 3, v18")
        A("v_bfe_u32 v19, v1, 3, 2")
        A("v_xor_b32 v19, s31, v19")
        A("v_lshl_add_u32 v18, v19, 5, v18")
        A("s_lshr_b32 s29, s20, 2")
        A("s_lshl_b32 s34, s29, 15")
        A(f"s_add_u32 s34, s34, {WL}")
        A("v_add_u32 v18, s34, v18")
        for ks in range(8):
            for t in range(2):
                A(f"ds_read_b64_tr_b16 {v(CSW+4*ks+2*t,2)}, v18 offset:{ks*4096+t*2048}")
        for i in range(4): A(f"v_mov_b32 {v(132+i)}, 0x3f803f80")
    def cs_p2(CSW):
        A("s_waitcnt lgkmcnt(0)")
        for ks in range(8):
            A(mf16(136, CSW+4*ks, 132, "0" if ks == 0 else None))
    def cs_p3(srdr):
        srd(A, srdr, 6, WS_CS, 4*7168*4)
        A("s_lshl_b32 s33, s33, 1")
        A("s_add_u32 s33, s33, s29")
        A(f"s_mul_i32 s33, s33, {7168*4}")
        A("s_lshl_b32 s34, s32, 8")
        A("s_add_u32 s33, s33, s34")
        A("s_lshl_b32 s34, s31, 6")
        A("s_add_u32 s33, s33, s34")
        A("v_cmp_ne_u32 vcc, 0, v5")
        A("v_mov_b32 v19, 0x7fffffff")
        A("s_cmp_lt_u32 s2, 224")
        A(f"s_cselect_b32 {s(srdr+2)}, {4*7168*4}, 0")
        A("v_cndmask_b32 v19, v1, v19, vcc")
        A(f"buffer_store_dwordx4 v[136:139], v19, {s(srdr,4)}, s33 offen{STF}")
    def loop(role):
        A.raw(".p2align 6")
        A.label(f"attn_loop{role}")
        for t in range(8):
            c, n = S_[t % 2], S_[1 - t % 2]
            E = lambda i: f"v_exp_f32 {v(c+i)}, {v(c+i)}"
            C = lambda i: f"v_cvt_pk_bf16_f32 {v(P+i)}, {v(c+2*i)}, {v(c+2*i+1)}"
            X = {6: (kv(0), kv(1)), 7: (kv(2), kv(3)), 0: (kv(4), kv(5)), 1: (kv(6), kv(7)),
                 2: (["s_waitcnt vmcnt(10)"] + cp_store(), cp_load()), 3: (cs_dma(0), cs_dma(1)), 4: ([], []), 5: ([], [])}[t]
            if role == "B":
                X = ([], [])
                if OPT("CTA", 0) and t == 7: X = (["buffer_load_dword v251, v252, s[56:59], s60 offen"], [])
            FAIR = OPT("FAIR", 0)
            if t == 6:
                if role == "A": A("s_waitcnt vmcnt(4)")
                A("s_barrier")
            elif FAIR == 1 and t == 2:
                A("s_barrier")
            elif FAIR == 2 and t % 2 == 0:
                A("s_barrier")
            if FAIR == 1: A(f"s_setprio {3 - (t + 2) % 4}")
            if FAIR == 3 and t % 2 == 0: A(f"s_setprio {3 - ((t + 2) % 8) // 2}")
            A("s_waitcnt lgkmcnt(2)")
            A(mf32(n, KF, Q, v(NEGM, 16)))
            A(kread(t + 2, 0))
            emit(A, [E(0), E(1), E(2)])
            A(mf32(O, VF+4, P+4))
            A(vread(t, 1))
            emit(A, X[0])
            emit(A, [E(3), E(4), E(5), E(6)])
            A("s_waitcnt lgkmcnt(2)")
            A(mf32(n, KF+4, Q+4))
            A(kread(t + 2, 1))
            emit(A, [E(7), C(0), C(1), C(2), C(3), E(8)])
            A(mf16(L, ONES, P+4))
            emit(A, [E(9), E(10)])
            A(mf32(O, VF, P))
            A(vread(t + 1, 0))
            emit(A, X[1])
            emit(A, [E(11), E(12), E(13), E(14)])
            A(mf16(L, ONES, P))
            if t == 7:
                A(f"s_add_u32 {s(sRd)}, {s(sRd)}, {SLOT}")
                A(f"s_cmp_eq_u32 {s(sRd)}, {SLOT*R}")
                A(f"s_cselect_b32 {s(sRd)}, 0, {s(sRd)}")
                A("v_mov_b32 v16, v17")
                A(f"v_add_u32 v17, {s(sRd)}, v6")
                A(f"s_sub_u32 {s(sCnt)}, {s(sCnt)}, 1")
                A(f"s_cmp_lg_u32 {s(sCnt)}, 0")
            emit(A, [E(15), C(4), C(5), C(6), C(7)])
        A(f"s_cbranch_scc1 attn_loop{role}")
    A("s_cmp_ge_u32 s20, 4")
    A("s_cbranch_scc1 attn_preB")
    loop("A")
    A("s_branch attn_post")
    A.label("attn_preB")
    if OPT("CSPF", 0):
        A(f"s_load_dwordx4 s[52:55], s[0:1], {KA_WG}")
        A("v_lshlrev_b32 v18, 7, v1")
        A("v_cmp_gt_u32 vcc, 56, v1")
        A("v_mov_b32 v19, 0x7fffffff")
        A("s_lshl_b32 s28, s2, 2")
        A("s_add_u32 s28, s28, s31")
        A("v_cndmask_b32 v18, v19, v18, vcc")
        A("s_mul_i32 s28, s28, 7168")
        A("s_waitcnt lgkmcnt(0)")
        srd(A, 56, 54, 0, 7*MB)
        srd(A, 52, 52, 0, 7*MB)
        A("buffer_load_dword v250, v18, s[52:55], s28 offen")
        A("buffer_load_dword v251, v18, s[56:59], s28 offen")
    if OPT("CTA", 0):
        emit(A, code_touch_list(A, "attn_post", 251, 252)[:-1])
        A("s_mov_b32 s60, s28")
    loop("B")
    A.label("attn_post")
    if OPT("FAIR", 0): A("s_setprio 0")
    A("s_waitcnt lgkmcnt(0)")
    A("s_nop 0")
    A(mf32(O, VF+4, P+4))
    A(mf16(L, ONES, P+4))
    cyc(A, 2, 1); stamp(A, 2, 3)
    if OPT("CSA", 1):
        A("s_nop 10")
        A(f"v_add_f32 v18, |{v(O)}|, {v(L)}")
        for i in range(1, 16): A(f"v_add_f32 v18, |{v(O+i)}|, v18")
        A(f"v_mov_b32 v19, {f32(2.0**120)}")
        A("v_cmp_nlt_f32 vcc, v18, v19")
        A("s_nop 1")
        A("s_cmp_eq_u64 vcc, 0")
        A("s_cbranch_scc0 attn_slow")
    else:
        A("s_waitcnt vmcnt(0)")
        A("s_barrier")
        cs_p1(S0)
        A(f"v_add_f32 v18, |{v(O)}|, {v(L)}")
        for i in range(1, 16): A(f"v_add_f32 v18, |{v(O+i)}|, v18")
        A(f"v_mov_b32 v19, {f32(2.0**120)}")
        A("v_cmp_nlt_f32 vcc, v18, v19")
        cs_p2(S0)
        A("s_cmp_eq_u64 vcc, 0")
        A("s_cbranch_scc0 attn_slow")
    A.label("attn_fin")
    A(f"s_load_dwordx2 s[44:45], s[0:1], {KA_X}")
    A(f"v_rcp_f32 v18, {v(L)}")
    A("s_nop 0")
    for i in range(16): A(f"v_mul_f32 {v(O+i)}, {v(O+i)}, v18")
    for pc in range(2):
        for hh in range(2):
            run = pc + 2 * hh
            for j in range(2):
                A(f"v_cvt_pk_bf16_f32 {v(P+4*pc+2*hh+j)}, {v(O+4*run+2*j)}, {v(O+4*run+2*j+1)}")
    A("v_bfe_u32 v18, v1, 3, 1")
    A("v_lshlrev_b32 v18, 10, v18")
    A("v_bfe_u32 v19, v1, 4, 1")
    A("v_lshl_add_u32 v18, v19, 7, v18")
    A("v_and_b32 v19, 7, v1")
    A("v_lshl_add_u32 v18, v19, 4, v18")
    A("v_lshrrev_b32 v19, 5, v1")
    A("v_lshl_add_u32 v18, v19, 8, v18")
    A("s_lshl_b32 s28, s21, 17")
    A("s_add_u32 s28, s28, s35")
    A(f"buffer_store_dwordx4 {v(P,4)}, v18, s[36:39], s28 offen{STF}")
    A(f"buffer_store_dwordx4 {v(P+4,4)}, v18, s[36:39], s28 offen offset:512{STF}")
    if OPT("CSA", 1):
        A("s_cmp_ge_u32 s20, 4")
        A("s_cbranch_scc1 attn_nocs")
        A("v_lshrrev_b32 v18, 2, v1")
        A("v_lshlrev_b32 v18, 7, v18")
        A("v_lshl_add_u32 v18, v4, 3, v18")
        A("v_bfe_u32 v19, v1, 3, 2")
        A("v_xor_b32 v19, s31, v19")
        A("v_lshl_add_u32 v18, v19, 5, v18")
        A(f"v_add_u32 v18, {WL}, v18")
        for ks in range(16):
            for t in range(2):
                A(f"ds_read_b64_tr_b16 {v(144+4*ks+2*t,2)}, v18 offset:{ks*4096+t*2048}")
        for i in range(4): A(f"v_mov_b32 {v(132+i)}, 0x3f803f80")
        srd(A, 48, 6, WS_CS, 4*7168*4)
        A(f"s_mul_i32 s33, s33, {2*7168*4}")
        A("s_lshl_b32 s34, s32, 8")
        A("s_add_u32 s33, s33, s34")
        A("s_lshl_b32 s34, s31, 6")
        A("s_add_u32 s33, s33, s34")
        A(f"s_add_u32 s34, s33, {7168*4}")
        A("v_cmp_ne_u32 vcc, 0, v5")
        A("v_mov_b32 v19, 0x7fffffff")
        A("s_cmp_lt_u32 s2, 224")
        A(f"s_cselect_b32 s50, {4*7168*4}, 0")
        A("v_cndmask_b32 v19, v1, v19, vcc")
        A("s_waitcnt lgkmcnt(0)")
        for ks in range(8):
            for hh in range(2):
                A(mf16(136 + 72*hh, 144 + 4*(8*hh+ks), 132, "0" if ks == 0 else None))
        A("s_nop 7")
        A(f"buffer_store_dwordx4 v[136:139], v19, s[48:51], s33 offen{STF}")
        A(f"buffer_store_dwordx4 v[208:211], v19, s[48:51], s34 offen{STF}")
        A.label("attn_nocs")
    else:
        cs_p3(48)
    pub_prep(A, 2, 22, 21)
    A("s_waitcnt lgkmcnt(0)")
    def slow():
        A.label("attn_slow")
        A("v_mov_b32 v18, 0xff800000")
        A("s_mov_b32 s28, 0")
        A.label("attn_slow1")
        A(f"buffer_load_dwordx4 {v(KF,4)}, v6, s[8:11], s28 offen{LDF}")
        A(f"buffer_load_dwordx4 {v(KF+4,4)}, v6, s[8:11], s28 offen offset:1024{LDF}")
        A("s_waitcnt vmcnt(0)")
        A("s_nop 15")
        A(mf32(S0, KF, Q, "0"))
        A(mf32(S0, KF+4, Q+4))
        A("s_nop 15")
        A("s_nop 3")
        for i in range(0, 16, 2): A(f"v_max3_f32 v18, v18, {v(S0+i)}, {v(S0+i+1)}")
        A("s_add_u32 s28, s28, 2048")
        A("s_cmp_lt_u32 s28, 131072")
        A("s_cbranch_scc1 attn_slow1")
        A("v_mov_b32 v19, v18")
        A("s_nop 1")
        A("v_permlane32_swap_b32 v19, v18")
        A("s_nop 1")
        A("v_max_f32 v18, v18, v19")
        for i in range(16): A(f"v_sub_f32 {v(NEGM+i)}, 0, v18")
        for i in range(16): A(f"v_mov_b32 {v(O+i)}, 0")
        for i in range(4): A(f"v_mov_b32 {v(L+i)}, 0")
        A("s_mov_b32 s28, 0")
        A.label("attn_slow2")
        A(f"buffer_load_dwordx4 {v(KF,4)}, v6, s[8:11], s28 offen{LDF}")
        A(f"buffer_load_dwordx4 {v(KF+4,4)}, v6, s[8:11], s28 offen offset:1024{LDF}")
        A(f"buffer_load_dwordx4 {v(VF,4)}, v6, s[12:15], s28 offen{LDF}")
        A(f"buffer_load_dwordx4 {v(VF+4,4)}, v6, s[12:15], s28 offen offset:1024{LDF}")
        A("s_waitcnt vmcnt(0)")
        A(mf32(S0, KF, Q, v(NEGM, 16)))
        A(mf32(S0, KF+4, Q+4))
        A("s_nop 15")
        A("s_nop 3")
        for i in range(16): A(f"v_exp_f32 {v(S0+i)}, {v(S0+i)}")
        A("s_nop 0")
        for i in range(8): A(f"v_cvt_pk_bf16_f32 {v(P+i)}, {v(S0+2*i)}, {v(S0+2*i+1)}")
        A("s_nop 1")
        A(mf32(O, VF, P))
        A(mf32(O, VF+4, P+4))
        A(mf16(L, ONES, P))
        A(mf16(L, ONES, P+4))
        A("s_nop 15")
        A("s_add_u32 s28, s28, 2048")
        A("s_cmp_lt_u32 s28, 131072")
        A("s_cbranch_scc1 attn_slow2")
        A("s_nop 15")
        A("s_branch attn_fin")
    return slow

HEADER = open("sequential_preLN__mha_block__glu_gated_glu__prompt.s.ref").read().split("; Override launch")[0]

def build(path):
    from mk2 import ph_proj, ph_gu, ph_down2, ph_down3
    A = Asm()
    A.raw(f".globl {NAME}"); A.raw(".p2align 8"); A.raw(f".type {NAME},@function"); A.label(NAME)
    A("s_cmp_ge_u32 s2, 256")
    A("s_cbranch_scc1 the_end")
    if OPT("RAW", 0):
        from mk3 import ph_qkv_raw
        hooks = ph_qkv_raw(A)
    else:
        ph_ln_qkv(A); hooks = None
    slow = ph_attn(A)
    ph_proj(A, 3, True)
    ph_gu(A)
    if OPT("SPLITK", 1) == 2: ph_down3(A)
    elif OPT("SPLITK", 1) == 1: ph_down2(A)
    else: ph_proj(A, 5, False)
    stamp_flush(A)
    A.label("the_end")
    A("s_endpgm")
    slow()
    A.label("code_end")
    out = HEADER
    out += "; @launch grid=(256,1,1) block=(512,1,1) lds=163840\n"
    out += '.amdgcn_target "amdgcn-amd-amdhsa--gfx950"\n.text\n'
    out += A.text()
    out += '.section .rodata,"a"\n'
    out += kernel_desc(NAME, 256, 102 if PROF else 64)
    open(path, "w").write(out)

if __name__ == "__main__":
    build(sys.argv[1] if len(sys.argv) > 1 else "sequential_preLN__mha_block__glu_gated_glu__prompt.s")
```

```python
from mk import *

def ph_proj(A, ph, is_wo):
    name = "wo" if is_wo else "dn"
    K = 1024 if is_wo else 3584
    ws_x = WS_O if is_wo else WS_HACT
    wp = 40 if is_wo else 42
    R, SLOT, NST = 6, 24576, K // 64
    STATS_LDS = R * SLOT
    A("s_and_b32 s21, s2, 3")
    A("s_lshl_b32 s21, s21, 2")
    A("s_bfe_u32 s28, s2, 0x20003")
    A("s_add_u32 s21, s21, s28")
    A("s_bfe_u32 s22, s2, 0x10002")
    A("s_lshl_b32 s22, s22, 3")
    A("s_lshr_b32 s28, s2, 5")
    A("s_add_u32 s22, s22, s28")
    PSC = OPT("WSC", 0) if is_wo else OPT("DSC", 4)
    PG = min(4, OPT("PG", 4))
    if PSC:
        A("s_add_u32 s39, s21, s22")
        A(f"s_and_b32 s39, s39, {PG-1}")
        A(f"s_mul_i32 s39, s39, {PSC//PG}")
    def wdma():
        if not is_wo:
            return [[f"s_add_u32 m0, {s(sWr)}, {s(sM)}", "s_nop 0",
                     f"buffer_load_dwordx4 v6, s[12:15], {s(sGo)} offen{LDF} lds"],
                    [f"buffer_load_dwordx4 v6, s[12:15], {s(sGo)} offen offset:1024{LDF} lds",
                     ] + adv(8192, PSC)]
        return [[f"s_add_u32 m0, {s(sWr)}, {s(sM)}", "s_nop 0",
                 f"buffer_load_dwordx4 v7, s[12:15], {s(sGo)} offen lds"],
                [f"buffer_load_dwordx4 v8, s[12:15], {s(sGo)} offen offset:1024 lds",
                 ] + adv(64*2048, PSC)]
    DX = 0x40000
    EZ = OPT("EZ", 0) and is_wo
    ACC = 152 if EZ else 32
    def acc(f, i): return ACC + (i * 2 + f) * 4
    SET = [168, 200] if EZ else [48, 80]
    def xf(p, kk, i): return SET[p] + (kk * 2 + i) * 4
    def wf(p, kk, f): return SET[p] + 16 + (kk * 2 + f) * 4
    RES = 240
    NRES = 4 if is_wo else 2
    A("s_lshr_b32 s33, s20, 2")
    A("s_lshl_b32 s34, s22, 1")
    A("s_add_u32 s34, s34, s33")
    A("s_lshl_b32 s34, s34, 7")
    A("s_lshl_b32 s35, s21, 3")
    A("s_add_u32 s34, s34, s35")
    A("s_lshl_b32 s35, s31, 1")
    A("s_add_u32 s34, s34, s35")
    A("s_lshl_b32 s34, s34, 10")
    A("s_lshl_b32 s35, s21, 18")
    A("s_lshl_b32 s36, s31, 16")
    A("s_add_u32 s35, s35, s36")
    A("s_lshl_b32 s36, s22, 7")
    A("s_add_u32 s35, s35, s36")
    A("s_lshl_b32 s36, s33, 6")
    A("s_add_u32 s35, s35, s36")
    A("s_add_u32 s36, s35, 32768")
    srd(A, 16, 6, WS_H, 4*MB)
    srd(A, 48, 44, 0, 4*MB)
    if is_wo:
        srd(A, 12, wp, 0, K*2048)
    else:
        A(f"s_mul_i32 s28, s22, {3584*128}")
        A("s_add_u32 s4, s6, s28")
        A("s_addc_u32 s5, s7, 0")
        srd(A, 12, 4, WS_WD, 3584*128)
    srd(A, 8, 6, ws_x, 2048*K*2)
    def resload():
        if is_wo:
            for i in range(2):
                A(f"buffer_load_dwordx4 {v(RES+4*i,4)}, v9, s[48:51], {s(35+i)} offen")
        else:
            for i in range(2):
                A(f"buffer_load_dwordx4 {v(RES+4*i,4)}, v6, s[16:19], s34 offen offset:{i*1024}{LDF}")
    A("v_lshlrev_b32 v9, 11, v5")
    A("v_and_b32 v15, 1, v2")
    A("v_lshl_add_u32 v9, v15, 5, v9")
    A("v_lshrrev_b32 v15, 1, v2")
    A("v_lshl_add_u32 v9, v15, 4, v9")
    A("s_lshl_b32 s28, s31, 11")
    A("v_add_u32 v10, s28, v6")
    A("v_lshl_add_u32 v11, v2, 2, v3")
    A("v_lshlrev_b32 v11, 7, v11")
    A("v_lshl_add_u32 v11, v4, 3, v11")
    A("v_add_u32 v11, 16384, v11")
    A("v_bfe_u32 v12, v1, 3, 2")
    A("s_lshl_b32 s29, s33, 1")
    A("v_xor_b32 v13, s29, v12")
    A("v_lshl_add_u32 v13, v13, 5, v11")
    A("v_xor_b32 v14, 32, v13")
    A("s_lshr_b32 s32, s21, 1")
    A("s_cmp_lt_u32 s20, 4")
    A(f"s_cbranch_scc1 {name}_A0")
    if is_wo:
        w_swz_voff(A, 7, 2048)
        A(f"v_add_u32 v8, {8*2048-1024}, v7")
        A("s_lshl_b32 s28, s31, 15")
        A("s_lshl_b32 s29, s22, 7")
        A(f"s_add_u32 {s(sGo)}, s28, s29")
    else:
        A(f"s_lshl_b32 {s(sGo)}, s31, 11")
    if PSC: rot_init(A, 64*2048 if is_wo else 8192, PSC)
    A(f"s_lshl_b32 {s(sM)}, s31, 11")
    A(f"s_add_u32 {s(sM)}, {s(sM)}, 16384")
    if not OPT("PUBFIRST", 1):
        A("s_waitcnt vmcnt(0)")
        stamp(A, ph - 1, 4)
    publish(A)
    WE = OPT("WE_W", 6)
    resload()
    fill_ring(A, R, SLOT, wdma, 0, WE)
    A(f"s_branch {name}_C0")
    A.label(f"{name}_A0")
    A("s_lshr_b32 s28, s31, 1")
    A("s_lshl_b32 s28, s28, 7")
    A("s_lshl_b32 s29, s21, 3")
    A("s_add_u32 s28, s28, s29")
    A("s_and_b32 s29, s31, 1")
    A("s_lshl_b32 s29, s29, 2")
    A("s_add_u32 s28, s28, s29")
    A(f"s_lshl_b32 {s(sGo)}, s28, 10")
    if PSC: rot_init(A, DX, PSC)
    A(f"s_lshl_b32 {s(sM)}, s31, 12")
    if not OPT("PUBFIRST", 1):
        A("s_waitcnt vmcnt(0)")
        stamp(A, ph - 1, 4)
    publish(A)
    resload()
    A.label(f"{name}_C0")
    if EZ:
        l = A.newlabel("ez")
        A("s_cmp_eq_u32 s20, 0")
        A(f"s_cbranch_scc1 {l}")
        for i in range(32, 152): A(f"v_mov_b32 {v(i)}, 0")
        A.label(l)
    stamp(A, ph, 0)
    wait_flags(A, ph - 1, 32, 32, also_all=2 if EZ else None)
    stamp(A, ph, 1)
    def accinit():
        if is_wo:
            for i in range(2):
                A(f"v_permlane16_swap_b32 {v(RES+4*i)}, {v(RES+4*i+2)}")
                A(f"v_permlane16_swap_b32 {v(RES+4*i+1)}, {v(RES+4*i+3)}")
            A("s_nop 1")
        for i in range(2):
            for f in range(2):
                for h in range(2):
                    src = RES + 4*i + 2*f + h
                    A(f"v_lshlrev_b32 {v(acc(f,i)+2*h)}, 16, {v(src)}")
                    A(f"v_and_b32 {v(acc(f,i)+2*h+1)}, 0xffff0000, {v(src)}")
    def reads(p):
        out = []
        for kk in range(2):
            for f in range(2):
                for t in range(2):
                    out.append([f"ds_read_b64_tr_b16 {v(wf(p,kk,f)+2*t,2)}, {v(17+f)} offset:{kk*4096+t*2048}"])
            for i in range(2):
                out.append([f"ds_read_b128 {v(xf(p,kk,i),4)}, v16 offset:{kk*8192+i*1024}"])
        return out
    def addr_upd():
        return [f"v_add_u32 v16, {s(sRd)}, v10", f"v_add_u32 v17, {s(sRd)}, v13", f"v_add_u32 v18, {s(sRd)}, v14"]
    def mfmas(p):
        return [mf16(acc(f, i), wf(p, kk, f), xf(p, kk, i)) for kk in range(2) for f in range(2) for i in ((0, 1) if (f == 0 or not OPT("SNAKE", 1)) else (1, 0))]
    A("s_cmp_ge_u32 s20, 4")
    A(f"s_cbranch_scc1 {name}_B")
    fill_ring(A, R, SLOT, lambda: xdma(DX, PSC), bar=True)
    if EZ:
        l = A.newlabel("ez")
        A("s_cmp_lg_u32 s20, 0")
        A(f"s_cbranch_scc1 {l}")
        for i in range(32, 152): A(f"v_mov_b32 {v(i)}, 0")
        A.label(l)
    A(f"s_waitcnt vmcnt({4*R})")
    accinit()
    gemm_loop(A, ph, f"{name}_loopA", "A", R, SLOT, NST, 4, mfmas, reads, lambda: xdma(DX, PSC), addr_upd,
              {6: code_touch_list(A, f"{name}_epi", 251, 252), ('x', 5): 1, ('x', 4): 1, ('x', 3): 1, ('x', 2): 1} if OPT("CTW", 1) else None)
    A(f"s_branch {name}_epi")
    A.label(f"{name}_B")
    fill_rest(A, R, SLOT, wdma, WE)
    A(f"s_waitcnt vmcnt({2*R})")
    accinit()
    gemm_loop(A, ph, f"{name}_loopB", "B", R, SLOT, NST, 2, mfmas, reads, wdma, addr_upd)
    A.label(f"{name}_epi")
    T = 232 if EZ else 112
    for i in range(2):
        for f in range(2):
            for h in range(2):
                A(f"v_cvt_pk_bf16_f32 {v(T+4*i+2*f+h)}, {v(acc(f,i)+2*h)}, {v(acc(f,i)+2*h+1)}")
    if is_wo:
        for i in range(2):
            A(f"buffer_store_dwordx4 {v(T+4*i,4)}, v6, s[16:19], s34 offen offset:{i*1024}{STF}")
        for i in range(2):
            sm, sq = 20 + 2*i, 21 + 2*i
            b = acc(0, i)
            A(f"v_add_f32 {v(sm)}, {v(b)}, {v(b+1)}")
            A(f"v_mul_f32 {v(sq)}, {v(b)}, {v(b)}")
            A(f"v_fmac_f32 {v(sq)}, {v(b+1)}, {v(b+1)}")
            for j in range(2, 8):
                A(f"v_add_f32 {v(sm)}, {v(sm)}, {v(b+j)}")
                A(f"v_fmac_f32 {v(sq)}, {v(b+j)}, {v(b+j)}")
        reduce_rows16_32(A, [20, 21, 22, 23], [24, 25, 26, 27])
        A("s_lshl_b32 s28, s31, 9")
        A("s_lshl_b32 s29, s33, 3")
        A("s_add_u32 s28, s28, s29")
        A(f"s_add_u32 s28, s28, {STATS_LDS}")
        A("v_lshlrev_b32 v24, 4, v5")
        A("v_add_u32 v24, s28, v24")
        A("ds_write_b64 v24, v[20:21]")
        A("ds_write_b64 v24, v[22:23] offset:256")
        A(f"s_load_dwordx4 s[44:47], s[0:1], {KA_WG}")
        A("s_waitcnt lgkmcnt(0)")
        A("s_barrier")
        A("s_cmp_ge_u32 s20, 2")
        A(f"s_cbranch_scc1 {name}_end2")
        A("v_lshlrev_b32 v24, 4, v0")
        A(f"v_add_u32 v24, {STATS_LDS}, v24")
        A("ds_read_b128 v[20:23], v24")
        srd(A, 8, 6, WS_ST, 2048*128)
        A("v_lshlrev_b32 v24, 3, v0")
        A("s_lshl_b32 s28, s21, 10")
        A("s_lshl_b32 s29, s22, 14")
        A("s_add_u32 s28, s28, s29")
        A("s_waitcnt lgkmcnt(0)")
        A("v_add_f32 v20, v20, v22")
        A("v_add_f32 v21, v21, v23")
        A(f"buffer_store_dwordx2 v[20:21], v24, s[8:11], s28 offen{STF}")
        A.label(f"{name}_end2")
        A("s_and_b32 s38, s21, 1")
        A("s_lshl_b32 s38, s38, 4")
        A("s_add_u32 s38, s38, s22")
        pub_prep(A, ph, 32, 38)
    else:
        A("s_nop 1")
        for i in range(2):
            A(f"v_permlane16_swap_b32 {v(T+4*i)}, {v(T+4*i+2)}")
            A(f"v_permlane16_swap_b32 {v(T+4*i+1)}, {v(T+4*i+3)}")
        A("s_nop 1")
        for i in range(2):
            A(f"buffer_store_dwordx4 {v(T+4*i,4)}, v9, s[48:51], {s(35+i)} offen{OUTF}")
        if PROF:
            A("s_waitcnt vmcnt(0)")
            stamp(A, ph, 4)

def ph_gu(A):
    ph = 4
    R, SLOT, NST = 5, 30720, 32
    SL = R * SLOT
    A("s_and_b32 s21, s2, 1")
    A("s_lshl_b32 s21, s21, 2")
    A("s_bfe_u32 s28, s2, 0x20003")
    A("s_add_u32 s21, s21, s28")
    A("s_bfe_u32 s22, s2, 0x20001")
    A("s_lshl_b32 s22, s22, 3")
    A("s_lshr_b32 s28, s2, 5")
    A("s_add_u32 s22, s22, s28")
    def wdma():
        return [[f"s_add_u32 m0, {s(sWr)}, {s(sM)}", "s_mov_b64 exec, s[34:35]",
                 f"buffer_load_dwordx4 v7, s[12:15], {s(sGo)} offen lds",
                 f"buffer_load_dwordx4 v8, s[12:15], {s(sGo)} offen offset:896 lds",
                 f"s_add_u32 m0, m0, 7168", "s_nop 0",
                 f"buffer_load_dwordx4 v7, s[16:19], {s(sGo)} offen lds",
                 f"buffer_load_dwordx4 v8, s[16:19], {s(sGo)} offen offset:896 lds",
                 "s_mov_b64 exec, -1",
                 f"s_add_u32 {s(sGo)}, {s(sGo)}, {32*7168}"]]
    srd(A, 12, 44, 0, 7*MB)
    srd(A, 16, 46, 0, 7*MB)
    srd(A, 8, 6, WS_H, 4*MB)
    A("s_cmp_lt_u32 s20, 4")
    A("s_cbranch_scc1 gu_A0")
    if OPT("CT", 1) >= 2: code_touch(A, 255)
    A("v_mul_u32_u24 v7, 4682, v1")
    A("v_lshrrev_b32 v7, 16, v7")
    A("v_mul_u32_u24 v8, 14, v7")
    A("v_sub_u32 v8, v1, v8")
    A("v_mul_u32_u24 v7, 7168, v7")
    A("v_lshl_add_u32 v7, v8, 4, v7")
    A(f"v_add_u32 v8, {4*7168-896}, v7")
    A("s_mov_b32 s34, -1")
    A("s_mov_b32 s35, 0x00ffffff")
    A(f"s_mul_i32 s28, s31, {8*7168}")
    A("s_mul_i32 s29, s22, 224")
    A(f"s_add_u32 {s(sGo)}, s28, s29")
    A(f"s_mul_i32 {s(sM)}, s31, 1792")
    A(f"s_add_u32 {s(sM)}, {s(sM)}, 16384")
    GE = OPT("GE", 0)
    fill_ring(A, R, SLOT, wdma, 0, GE)
    if not OPT("PUBFIRST", 1):
        A(f"s_waitcnt vmcnt({4*GE})")
        stamp(A, 3, 4)
    publish(A)
    WE = OPT("WE_G", 5)
    fill_ring(A, R, SLOT, wdma, GE, WE)
    A("s_branch gu_C0")
    A.label("gu_A0")
    A("s_lshl_b32 s28, s21, 4")
    A("s_lshl_b32 s29, s31, 2")
    A("s_add_u32 s28, s28, s29")
    A(f"s_lshl_b32 {s(sGo)}, s28, 10")
    A(f"s_lshl_b32 {s(sM)}, s31, 12")
    if not OPT("EZ", 0):
        for i in range(32, 152): A(f"v_mov_b32 {v(i)}, 0")
    if not OPT("PUBFIRST", 1):
        A("s_waitcnt vmcnt(0)")
        stamp(A, 3, 4)
    publish(A)
    A.label("gu_C0")
    srd(A, 44, 6, WS_ST, 2048*128)
    srd(A, 48, 6, WS_CS, 4*7168*4)
    srd(A, 52, 6, WS_HACT, 2048*3584*2)
    A("s_and_b32 s36, s22, 1")
    A("s_cmp_eq_u32 s36, 1")
    A("s_cselect_b32 s37, 3, 0")
    A("s_cselect_b32 s38, 1, 4")
    A("s_cselect_b32 s39, 0, 6")
    A("s_cmp_ge_u32 s20, 4")
    A("s_cselect_b32 s37, s38, s37")
    A("s_lshl_b32 s28, s31, 12")
    A("v_add_u32 v10, s28, v6")
    A("v_lshl_add_u32 v11, v2, 2, v3")
    A("v_mul_u32_u24 v11, 224, v11")
    A("v_lshl_add_u32 v11, v4, 3, v11")
    A("v_add_u32 v11, 16384, v11")
    A("s_lshl_b32 s28, s39, 5")
    A("v_add_u32 v12, s28, v11")
    A("s_lshl_b32 s28, s37, 5")
    A("v_add_u32 v11, s28, v11")
    A("v_and_b32 v13, 255, v0")
    A("v_lshlrev_b32 v14, 3, v13")
    A("s_lshl_b32 s32, s21, 11")
    A("v_lshlrev_b32 v15, 2, v13")
    A(f"v_add_u32 v9, {(3584-112)*4}, v15")
    A("v_cmp_gt_u32 vcc, 112, v13")
    A("v_mov_b32 v19, 0x7fffffff")
    A("s_mul_i32 s33, s22, 448")
    A("v_cndmask_b32 v15, v9, v15, vcc")
    A("v_cmp_gt_u32 vcc, 224, v13")
    A("s_nop 1")
    A("v_cndmask_b32 v15, v19, v15, vcc")
    if not OPT("EZ", 0):
        A("s_cmp_lt_u32 s20, 4")
        A("s_cbranch_scc1 gu_Z")
        for i in range(32, 120): A(f"v_mov_b32 {v(i)}, 0")
        A.label("gu_Z")
    stamp(A, ph, 0)
    wait_flags(A, 3, 21, 32, also_all=None if OPT("EZ", 0) else 2)
    for i in range(24, 32): A(f"v_mov_b32 {v(i)}, 0")
    stamp(A, ph, 1)
    def body(nf, tag):
        def wsrc(j):
            if nf == 3 and j == 2: return 18, 0
            return 17, j * 32
        ACC = 24
        def acc(j, gu, i): return ACC + ((j * 2 + gu) * 4 + i) * 4
        NS = 16 + nf * 8
        SET = [ACC + nf * 32, ACC + nf * 32 + NS]
        def xf(p, i): return SET[p] + i * 4
        def wf(p, j, gu): return SET[p] + 16 + (j * 2 + gu) * 4
        if tag == "A":
            fill_ring(A, R, SLOT, lambda: xdma(0x20000), bar=True)
        else:
            fill_rest(A, R, SLOT, wdma, WE)
        hook = None
        if tag == "A" and OPT("CTG", 1):
            hook = {5: code_touch_list(A, "gu_epiA", 251, 252), ('x', 4): 1, ('x', 3): 1, ('x', 2): 1}
        if tag == "B":
            def ld16():
                o = []
                for j in range(16):
                    o += [f"buffer_load_dwordx2 {v(200+2*j,2)}, v14, s[44:47], s32 offen{LDF}", "s_add_u32 s32, s32, 16384"]
                return o
            def red16():
                o = []
                for j in range(1, 8):
                    for q in (200, 201, 216, 217):
                        o.append(f"v_add_f32 {v(q)}, {v(q)}, {v(q+2*j)}")
                return o
            h1 = ld16()
            for j in range(4):
                h1 += [f"buffer_load_dword {v(232+j)}, v15, s[48:51], s33 offen{LDF}", f"s_add_u32 s33, s33, {7168*4}"]
            hook = ["s_waitcnt vmcnt(0)"] + red16()
            hook += ["v_add_f32 v200, v200, v216", "v_add_f32 v201, v201, v217",
                "v_add_f32 v232, v232, v233", "v_add_f32 v234, v234, v235", "v_add_f32 v232, v232, v234",
                f"v_mul_f32 v200, {f32(-1/1024)}, v200", f"v_mul_f32 v201, {f32(1/1024)}, v201",
                "v_fma_f32 v201, -v200, v200, v201", "v_max_f32 v201, 0, v201", f"v_add_f32 v201, {f32(1e-5)}, v201",
                "v_rsq_f32 v202, v201", "v_sqrt_f32 v204, v201", "v_mov_b32 v201, v200",
                f"v_mul_f32 v202, {f32(-LOG2E)}, v202", "v_mov_b32 v205, v204", "v_mov_b32 v203, v202",
                "v_lshlrev_b32 v14, 4, v13", f"v_add_u32 v14, {SL}, v14", "ds_write_b128 v14, v[200:203]",
                "v_lshlrev_b32 v14, 3, v13", f"v_add_u32 v14, {SL+5120}, v14", "ds_write_b64 v14, v[204:205]",
                "v_lshlrev_b32 v15, 2, v13", f"v_add_u32 v15, {SL+4096}, v15", "ds_write_b32 v15, v232"]
            hook = {5: h1, 3: hook, ('x', 4): 20, ('x', 3): 20}
        def reads(p):
            out = []
            for i in range(4):
                out.append([f"ds_read_b128 {v(xf(p,i),4)}, v16 offset:{i*1024}"])
            for j in range(nf):
                ar, imm = wsrc(j)
                for gu in range(2):
                    for t in range(2):
                        out.append([f"ds_read_b64_tr_b16 {v(wf(p,j,gu)+2*t,2)}, {v(ar)} offset:{imm+gu*7168+t*3584}"])
            return out
        def addr_upd():
            o = [f"v_add_u32 v16, {s(sRd)}, v10", f"v_add_u32 v17, {s(sRd)}, v11"]
            if nf == 3: o.append(f"v_add_u32 v18, {s(sRd)}, v12")
            return o
        def mfmas(p):
            return [mf16(acc(j, gu, i), wf(p, j, gu), xf(p, i)) for j in range(nf) for gu in range(2) for i in (range(4) if (gu == 0 or not OPT("SNAKE", 1)) else range(3, -1, -1))]
        gemm_loop(A, ph, f"gu_loop{tag}", tag, R, SLOT, NST, 4, mfmas, reads, (lambda: xdma(0x20000)) if tag == "A" else wdma, addr_upd, hook)
        A.label(f"gu_epi{tag}")
        if tag == "B": A("s_barrier")
        EW = tag == "B" and OPT("EWD", 0)
        if EW:
            srd(A, 12, 6, WS_WD, 7*MB)
            A("s_lshr_b32 s28, s2, 5")
            A("s_lshl_b32 s28, s28, 1")
            A("s_lshr_b32 s29, s31, 1")
            A("s_add_u32 s28, s28, s29")
            A(f"s_mul_i32 s28, s28, {3584*128}")
            A("s_bfe_u32 s29, s2, 0x10002")
            A(f"s_mul_i32 s29, s29, {1792*128}")
            A("s_add_u32 s28, s28, s29")
            A("s_and_b32 s29, s31, 1")
            A("s_lshl_b32 s29, s29, 12")
            A(f"s_add_u32 {s(sGo)}, s28, s29")
            A(f"s_lshl_b32 {s(sM)}, s31, 12")
            A(f"s_add_u32 {s(sM)}, {s(sM)}, 16384")
        ewslot = [0]
        def ew():
            if EW and ewslot[0] < 4:
                A(f"s_mov_b32 {s(sWr)}, {ewslot[0]*32768}")
                emit(A, xdma(8192, 0, 's[12:15]')); ewslot[0] += 1
        A(f"s_load_dwordx2 s[44:45], s[0:1], {KA_OUT}")
        A(f"s_load_dwordx2 s[46:47], s[0:1], {KA_DBG}")
        STR = 232
        CSR = 200
        A("s_lshl_b32 s28, s31, 10")
        A(f"s_add_u32 s28, s28, {SL}")
        A("v_lshlrev_b32 v14, 4, v5")
        A("v_add_u32 v14, s28, v14")
        for i in range(4):
            A(f"ds_read_b128 {v(STR+4*i,4)}, v14 offset:{i*256}")
        SGR = 184
        A("s_lshl_b32 s28, s31, 9")
        A(f"s_add_u32 s28, s28, {SL+5120}")
        A("v_lshlrev_b32 v14, 3, v5")
        A("v_add_u32 v14, s28, v14")
        for i in range(4):
            A(f"ds_read_b64 {v(SGR+2*i,2)}, v14 offset:{i*128}")
        A("v_lshlrev_b32 v9, 4, v2")
        A("s_lshl_b32 s28, s37, 6")
        A(f"s_add_u32 s28, s28, {SL+4096}")
        A("v_add_u32 v14, s28, v9")
        A("s_lshl_b32 s28, s39, 6")
        A(f"s_add_u32 s28, s28, {SL+4096}")
        A("v_add_u32 v15, s28, v9")
        for j in range(nf):
            for gu in range(2):
                ar, imm = (15, 0) if (nf == 3 and j == 2) else (14, j * 64)
                A(f"ds_read_b128 {v(CSR+(j*2+gu)*4,4)}, {v(ar)} offset:{imm+gu*448}")
        A("s_mul_i32 s28, s22, 7")
        A("s_add_u32 s29, s28, s37")
        A("s_lshr_b32 s29, s29, 1")
        A("s_lshl_b32 s29, s29, 17")
        A("s_lshl_b32 s33, s21, 4")
        A("s_lshl_b32 s36, s31, 2")
        A("s_add_u32 s33, s33, s36")
        A("s_lshl_b32 s33, s33, 10")
        A("s_add_u32 s56, s29, s33")
        A("s_add_u32 s57, s56, 0x20000")
        A("s_add_u32 s29, s28, s39")
        A("s_and_b32 s36, s29, 1")
        A("s_lshl_b32 s36, s36, 3")
        A("s_lshr_b32 s29, s29, 1")
        A("s_lshl_b32 s29, s29, 17")
        A("s_add_u32 s58, s29, s33")
        A("s_add_u32 s58, s58, s36")
        T = SET[0]
        tix = 0
        A("s_waitcnt lgkmcnt(0)")
        if tag == "A": A("s_barrier")
        for jp in range(2):
            js = [2*jp, 2*jp+1] if 2*jp+1 < nf else [2*jp]
            for i in range(4):
                dst = T + 4 * (tix % 8); tix += 1
                c1 = v(STR+4*i+2, 2)
                nm_ = v(STR+4*i, 2)
                for j in js:
                    for gu in range(2):
                        a_ = acc(j, gu, i)
                        for h in range(2): A(f"v_pk_fma_f32 {v(a_+2*h,2)}, {v(CSR+(j*2+gu)*4+2*h,2)}, {nm_}, {v(a_+2*h,2)}")
                for j in js:
                    g_ = acc(j, 0, i)
                    for h in range(2): A(f"v_pk_mul_f32 {v(g_+2*h,2)}, {v(g_+2*h,2)}, {c1}")
                for j in js:
                    g_ = acc(j, 0, i)
                    for r in range(4): A(f"v_exp_f32 {v(g_+r)}, {v(g_+r)}")
                if len(js) == 1: A("s_nop 0")
                for j in js:
                    g_ = acc(j, 0, i)
                    for h in range(2): A(f"v_pk_fma_f32 {v(g_+2*h,2)}, {v(g_+2*h,2)}, {v(SGR+2*i,2)}, {v(SGR+2*i,2)}")
                for j in js:
                    g_ = acc(j, 0, i)
                    for r in range(4): A(f"v_rcp_f32 {v(g_+r)}, {v(g_+r)}")
                if len(js) == 1: A("s_nop 0")
                for j in js:
                    g_, u_ = acc(j, 0, i), acc(j, 1, i)
                    for h in range(2): A(f"v_pk_mul_f32 {v(u_+2*h,2)}, {v(u_+2*h,2)}, {v(g_+2*h,2)}")
                for jj, j in enumerate(js):
                    u_ = acc(j, 1, i)
                    for h in range(2):
                        A(f"v_cvt_pk_bf16_f32 {v(dst+2*jj+h)}, {v(u_+2*h)}, {v(u_+2*h+1)}")
                if len(js) == 2:
                    A(f"buffer_store_dwordx4 {v(dst,4)}, v6, s[52:55], {s(56+jp)} offen offset:{i*1024}{STF}")
                    ew()
                else:
                    A(f"buffer_store_dwordx2 {v(dst,2)}, v6, s[52:55], s58 offen offset:{i*1024}{STF}")
    A("s_cmp_ge_u32 s20, 4")
    A("s_cbranch_scc1 gu_B")
    body(4, "A")
    A("s_branch gu_end")
    A.label("gu_B")
    body(3, "B")
    A.label("gu_end")
    pub_prep(A, ph, 21, 22)


def ph_down2(A):
    ph = 5
    R, SLOT, NST = OPT("DR", 5), 32768, 28
    PSC = OPT("D2SC", 0)
    A("s_and_b32 s21, s2, 3")
    A("s_lshl_b32 s21, s21, 2")
    A("s_bfe_u32 s28, s2, 0x20003")
    A("s_add_u32 s21, s21, s28")
    A("s_lshr_b32 s22, s2, 5")
    A("s_bfe_u32 s26, s2, 0x10002")
    A("s_and_b32 s32, s20, 1")
    A("s_lshr_b32 s33, s20, 1")
    if PSC:
        A("s_add_u32 s39, s21, s22")
        A("s_and_b32 s39, s39, 3")
        A(f"s_mul_i32 s39, s39, {PSC//4}")
    srd(A, 12, 6, WS_WD, 7*MB)
    srd(A, 8, 6, WS_HACT, 2048*3584*2)
    wd = lambda: xdma(8192, PSC, 's[12:15]')
    xd = lambda: xdma(0x40000, PSC)
    srd(A, 52, 46, 0, 256)
    A("v_mov_b32 v20, 0")
    A("buffer_load_dwordx2 v[248:249], v20, s[52:55], 0 offen sc1")
    A("s_cmp_lt_u32 s20, 4")
    A("s_cbranch_scc1 d2_A0")
    WE = OPT("WE_D", 5)
    if OPT("EWD", 0):
        assert R == 5 and not PSC
        fill_ring(A, R, SLOT, wd, 4, 5)
    else:
        A("s_lshl_b32 s28, s22, 1")
        A("s_lshr_b32 s29, s31, 1")
        A("s_add_u32 s28, s28, s29")
        A(f"s_mul_i32 s28, s28, {3584*128}")
        A(f"s_mul_i32 s29, s26, {1792*128}")
        A("s_add_u32 s28, s28, s29")
        A("s_and_b32 s29, s31, 1")
        A("s_lshl_b32 s29, s29, 12")
        A(f"s_add_u32 {s(sGo)}, s28, s29")
        if PSC: rot_init(A, 8192, PSC)
        A(f"s_lshl_b32 {s(sM)}, s31, 12")
        A(f"s_add_u32 {s(sM)}, {s(sM)}, 16384")
        WE = OPT("WE_D", 5)
        fill_ring(A, R, SLOT, wd, 0, WE)
    A("s_branch d2_C0")
    A.label("d2_A0")
    A("s_mul_i32 s28, s26, 56")
    A("s_lshr_b32 s29, s31, 1")
    A("s_add_u32 s28, s28, s29")
    A("s_lshl_b32 s28, s28, 7")
    A("s_lshl_b32 s29, s21, 3")
    A("s_add_u32 s28, s28, s29")
    A("s_and_b32 s29, s31, 1")
    A("s_lshl_b32 s29, s29, 2")
    A("s_add_u32 s28, s28, s29")
    A(f"s_lshl_b32 {s(sGo)}, s28, 10")
    if PSC: rot_init(A, 0x40000, PSC)
    A(f"s_lshl_b32 {s(sM)}, s31, 12")
    A.label("d2_C0")
    ACC = 32
    def acc(f, i): return ACC + (i * 2 + f) * 4
    SET = [64, 112]
    def xf(p, kk, i): return SET[p] + (kk * 4 + i) * 4
    def wf(p, kk, f): return SET[p] + 32 + (kk * 2 + f) * 4
    RES = 240
    A("s_lshl_b32 s34, s22, 2")
    A("s_add_u32 s34, s34, s33")
    A("s_lshl_b32 s34, s34, 7")
    A("s_lshl_b32 s35, s21, 3")
    A("s_lshl_b32 s36, s32, 2")
    A("s_add_u32 s35, s35, s36")
    A("s_lshl_b32 s36, s26, 1")
    A("s_add_u32 s35, s35, s36")
    A("s_add_u32 s34, s34, s35")
    A("s_lshl_b32 s34, s34, 10")
    A("s_lshl_b32 s35, s35, 15")
    A("s_lshl_b32 s36, s22, 8")
    A("s_add_u32 s35, s35, s36")
    A("s_lshl_b32 s36, s33, 6")
    A("s_add_u32 s35, s35, s36")
    A("s_add_u32 s36, s35, 32768")
    srd(A, 16, 6, WS_H, 4*MB)
    srd(A, 48, 44, 0, 4*MB)
    A("v_lshlrev_b32 v9, 11, v5")
    A("v_and_b32 v15, 1, v2")
    A("v_lshl_add_u32 v9, v15, 5, v9")
    A("v_lshrrev_b32 v15, 1, v2")
    A("v_lshl_add_u32 v9, v15, 4, v9")
    A("s_lshl_b32 s28, s32, 12")
    A("s_lshl_b32 s29, s26, 11")
    A("s_add_u32 s3, s28, s29")
    A("v_add_u32 v10, s3, v6")
    A("s_xor_b32 s3, s3, 2048")
    A("v_add_u32 v15, s3, v6")
    A("v_lshl_add_u32 v11, v2, 2, v3")
    A("v_lshlrev_b32 v11, 7, v11")
    A("v_lshl_add_u32 v11, v4, 3, v11")
    A("s_lshr_b32 s28, s33, 1")
    A("s_lshl_b32 s28, s28, 13")
    A("s_add_u32 s28, s28, 16384")
    A("v_add_u32 v11, s28, v11")
    A("v_bfe_u32 v12, v1, 3, 2")
    A("s_and_b32 s29, s33, 1")
    A("s_lshl_b32 s29, s29, 1")
    A("v_xor_b32 v13, s29, v12")
    A("v_lshl_add_u32 v13, v13, 5, v11")
    A("v_xor_b32 v14, 32, v13")
    for i in range(16): A(f"v_mov_b32 {v(acc(0,2)+i)}, 0")
    A("s_lshr_b32 s40, s21, 1")
    A("s_lshl_b32 s41, s26, 7")
    stamp(A, ph, 0)
    if OPT("XTAG", 3) == 3: wait_flags(A, 4, 40, 32)
    else: wait_flags(A, 4, 40, 16, soff=41)
    stamp(A, ph, 1)
    for i in range(2):
        A(f"buffer_load_dwordx4 {v(RES+4*i,4)}, v6, s[16:19], s34 offen offset:{i*1024}{LDF}")
    def accinit():
        for i in range(2):
            for f in range(2):
                for h in range(2):
                    src = RES + 4*i + 2*f + h
                    A(f"v_lshlrev_b32 {v(acc(f,i)+2*h)}, 16, {v(src)}")
                    A(f"v_and_b32 {v(acc(f,i)+2*h+1)}, 0xffff0000, {v(src)}")
        if OPT("XTAG", 3) == 2:
            for q in (163, 167, 170, 171): A(f"v_mov_b32 {v(q)}, v248")
            srd(A, 52, 6, WS_XB, 9*MB)
            A("s_lshl_b32 s28, s2, 3")
            A("s_add_u32 s28, s28, s20")
            A("s_xor_b32 s29, s28, 32")
            A("s_lshl_b32 s40, s28, 12")
            A("s_lshl_b32 s41, s29, 12")
        if OPT("XTAG", 3) == 3:
            srd(A, 52, 6, WS_O, 9*MB)
            A("s_and_b32 s28, s21, 1")
            A("s_lshl_b32 s28, s28, 4")
            A("s_lshl_b32 s29, s26, 3")
            A("s_add_u32 s28, s28, s29")
            A("s_add_u32 s28, s28, s22")
            A("s_lshr_b32 s29, s21, 1")
            A("s_lshl_b32 s40, s28, 17")
            A("s_lshl_b32 s3, s29, 14")
            A("s_add_u32 s40, s40, s3")
            A("s_lshl_b32 s3, s20, 11")
            A("s_add_u32 s40, s40, s3")
            A("s_xor_b32 s41, s40, 0x100000")
            A("s_lshr_b32 s42, s28, 1")
            A("s_lshl_b32 s42, s42, 14")
            A("s_lshl_b32 s3, s29, 11")
            A("s_add_u32 s42, s42, s3")
            A("s_and_b32 s3, s28, 1")
            A("s_lshl_b32 s3, s3, 10")
            A("s_add_u32 s42, s42, s3")
            A("s_lshl_b32 s3, s20, 7")
            A("s_add_u32 s42, s42, s3")
            A("s_xor_b32 s43, s42, 0x10000")
            A(f"s_add_u32 s42, s42, {WS_ST - WS_O}")
            A(f"s_add_u32 s43, s43, {WS_ST - WS_O}")
            A("v_mov_b32 v20, 0")
            return
        A("s_movk_i32 s42, 0xfff")
        A("v_mov_b32 v244, v248")
        A("v_lshrrev_b32 v245, 12, v248")
        A("v_alignbit_b32 v246, v249, v248, 24")
        A("v_lshrrev_b32 v247, 4, v249")
    def reads(p):
        out = []
        for kk in range(2):
            for f in range(2):
                for t in range(2):
                    out.append([f"ds_read_b64_tr_b16 {v(wf(p,kk,f)+2*t,2)}, {v(17+f)} offset:{kk*4096+t*2048}"])
            for i in range(4):
                out.append([f"ds_read_b128 {v(xf(p,kk,i),4)}, {v(16 if i < 2 else 19)} offset:{kk*8192+(i&1)*1024}"])
        return out
    def addr_upd():
        return [f"v_add_u32 v16, {s(sRd)}, v10", f"v_add_u32 v17, {s(sRd)}, v13", f"v_add_u32 v18, {s(sRd)}, v14", f"v_add_u32 v19, {s(sRd)}, v15"]
    def mfmas(p):
        return [mf16(acc(f, i), wf(p, kk, f), xf(p, kk, i)) for ii in (2, 0) for kk in range(2) for f in range(2) for i in (ii, ii + 1)]
    DST = [160, 161, 162, 164, 165, 166, 168, 169]
    send = []
    if OPT("XTAG", 3) == 2:
        send = ["s_nop 4"]
        for q in range(8):
            send.append(f"v_cvt_pk_bf16_f32 {v(DST[q])}, {v(acc(0,2)+2*q)}, {v(acc(0,2)+2*q+1)}")
            if q in (2, 5, 7): send.append(f"buffer_store_dwordx4 {v(160+4*(q//3),4)}, v6, s[52:55], s40 offen offset:{(q//3)*1024} sc1")
    if OPT("XTAG", 3) == 3:
        send = ["s_nop 4"]
        for q in range(8):
            send.append(f"v_cvt_pk_bf16_f32 {v(160+q)}, {v(acc(0,2)+2*q)}, {v(acc(0,2)+2*q+1)}")
            if q in (3, 7): send.append(f"buffer_store_dwordx4 {v(160+q-3,4)}, v6, s[52:55], s40 offen offset:{(q//4)*1024} sc1")
    hookS = {1: send, 'lastpos': 11} if send else {}
    A("s_cmp_ge_u32 s20, 4")
    A("s_cbranch_scc1 d2_B")
    fill_ring(A, R, SLOT, xd, bar=True)
    A(f"s_waitcnt vmcnt({4*R})")
    accinit()
    gemm_loop(A, ph, "d2_loopA", "A", R, SLOT, NST, 4, mfmas, reads, xd, addr_upd,
              {5: code_touch_list(A, "d2_epi", 251, 252), ('x', 4): 1, ('x', 3): 1, ('x', 2): 1, **hookS})
    A("s_branch d2_epi")
    A.label("d2_B")
    fill_rest(A, R, SLOT, wd, WE)
    A(f"s_waitcnt vmcnt({4*(R-WE)})")
    accinit()
    gemm_loop(A, ph, "d2_loopB", "B", R, SLOT, NST, 4, mfmas, reads, wd, addr_upd, hookS)
    A.label("d2_epi")
    if OPT("XTAG", 3) == 3:
        A(f"s_mov_b32 s28, {SPIN_MAX}")
        A("s_waitcnt vmcnt(0)")
        if OPT("XDBG", 0): stamp(A, ph, 0)
        A("s_mov_b64 exec, 1")
        A("buffer_store_dwordx2 v[248:249], v20, s[52:55], s42 offen sc1")
        A.label("d2_poll")
        A("buffer_load_dwordx2 v[22:23], v20, s[52:55], s43 offen sc1")
        A("s_waitcnt vmcnt(0)")
        A("v_cmp_ne_u64 vcc, v[248:249], v[22:23]")
        A("s_nop 1")
        A("s_cmp_eq_u64 vcc, 0")
        A("s_cbranch_scc1 d2_got")
        A("s_sleep 1")
        A("s_sub_u32 s28, s28, 1")
        A("s_cmp_lg_u32 s28, 0")
        A("s_cbranch_scc1 d2_poll")
        A.label("d2_got")
        A("s_mov_b64 exec, -1")
        if OPT("XDBG", 0): stamp(A, ph, 1)
        for j in range(2):
            A(f"buffer_load_dwordx4 {v(64+4*j,4)}, v6, s[52:55], s41 offen offset:{j*1024} sc1")
        T = 112
        for i in range(2):
            A("s_waitcnt vmcnt(1)")
            for q in range(4):
                A(f"v_lshlrev_b32 {v(84+2*q)}, 16, {v(64+4*i+q)}")
                A(f"v_and_b32 {v(85+2*q)}, 0xffff0000, {v(64+4*i+q)}")
            for q in range(4):
                A(f"v_pk_add_f32 {v(ACC+8*i+2*q,2)}, {v(ACC+8*i+2*q,2)}, {v(84+2*q,2)}")
            for q in range(4):
                A(f"v_cvt_pk_bf16_f32 {v(T+4*i+q)}, {v(ACC+8*i+2*q)}, {v(ACC+8*i+2*q+1)}")
            A("s_nop 1")
            A(f"v_permlane16_swap_b32 {v(T+4*i)}, {v(T+4*i+2)}")
            A(f"v_permlane16_swap_b32 {v(T+4*i+1)}, {v(T+4*i+3)}")
            A("s_nop 1")
            A(f"buffer_store_dwordx4 {v(T+4*i,4)}, v9, s[48:51], {s(35+i)} offen{OUTF}")
        if PROF:
            A("s_waitcnt vmcnt(0)")
            stamp(A, ph, 4)
        return
    if OPT("XTAG", 3) == 2:
        A(f"s_mov_b32 s28, {SPIN_MAX}")
        if OPT("XW", 1): A("s_waitcnt vmcnt(0)")
        if OPT("XDBG", 0): stamp(A, ph, 0)
        A.label("d2_poll")
        for j in range(3):
            A(f"buffer_load_dwordx4 {v(64+4*j,4)}, v6, s[52:55], s41 offen offset:{j*1024} sc1")
        A("s_waitcnt vmcnt(0)")
        A("v_xor_b32 v80, v248, v67")
        A("v_xor_b32 v81, v248, v71")
        A("v_xor_b32 v82, v248, v75")
        A("v_or3_b32 v80, v80, v81, v82")
        A("v_cmp_ne_u32 vcc, 0, v80")
        A("s_nop 1")
        A("s_cmp_eq_u64 vcc, 0")
        A("s_cbranch_scc1 d2_got")
        A(f"s_sleep {OPT('XSLEEP', 1)}")
        A("s_sub_u32 s28, s28, 1")
        A("s_cmp_lg_u32 s28, 0")
        A("s_cbranch_scc1 d2_poll")
        A.label("d2_got")
        if OPT("XDBG", 0): stamp(A, ph, 1)
        T = 112
        for i in range(2):
            for q in range(4):
                src = DST[4*i+q] - 96
                A(f"v_lshlrev_b32 {v(84+2*q)}, 16, {v(src)}")
                A(f"v_and_b32 {v(85+2*q)}, 0xffff0000, {v(src)}")
            for q in range(4):
                A(f"v_pk_add_f32 {v(ACC+8*i+2*q,2)}, {v(ACC+8*i+2*q,2)}, {v(84+2*q,2)}")
            for q in range(4):
                A(f"v_cvt_pk_bf16_f32 {v(T+4*i+q)}, {v(ACC+8*i+2*q)}, {v(ACC+8*i+2*q+1)}")
            A("s_nop 1")
            A(f"v_permlane16_swap_b32 {v(T+4*i)}, {v(T+4*i+2)}")
            A(f"v_permlane16_swap_b32 {v(T+4*i+1)}, {v(T+4*i+3)}")
            A("s_nop 1")
            A(f"buffer_store_dwordx4 {v(T+4*i,4)}, v9, s[48:51], {s(35+i)} offen{OUTF}")
        if PROF:
            A("s_waitcnt vmcnt(0)")
            stamp(A, ph, 4)
        return
    srd(A, 8, 6, WS_Q if OPT('XBQ', 0) else WS_XB, 9*MB)
    A("s_lshl_b32 s28, s2, 3")
    A("s_add_u32 s28, s28, s20")
    A("s_xor_b32 s29, s28, 32")
    A("s_lshl_b32 s40, s28, 12")
    A("s_lshl_b32 s41, s29, 12")
    XTAG = OPT("XTAG", 3)
    if XTAG:
        for j in range(4):
            for r in range(4):
                A(f"v_bfi_b32 {v(acc(0,2)+4*j+r)}, s42, {v(244+r)}, {v(acc(0,2)+4*j+r)}")
            A(f"buffer_store_dwordx4 {v(acc(0,2)+4*j,4)}, v6, s[8:11], s40 offen offset:{j*1024} sc1")
        A(f"s_mov_b32 s28, {SPIN_MAX}")
        if OPT("XW", 1): A("s_waitcnt vmcnt(0)")
        if OPT("XDBG", 0): stamp(A, ph, 0)
        A.label("d2_poll")
        for j in range(4):
            A(f"buffer_load_dwordx4 {v(64+4*j,4)}, v6, s[8:11], s41 offen offset:{j*1024} sc1")
        for j in range(4):
            A(f"s_waitcnt vmcnt({3-j})")
            for r in range(4):
                A(f"v_xor_b32 {v(80+4*j+r)}, {v(244+r)}, {v(64+4*j+r)}")
            A(f"v_or3_b32 {v(80+4*j)}, {v(80+4*j)}, {v(81+4*j)}, {v(82+4*j)}")
            if j: A(f"v_or3_b32 {v(80+4*j)}, {v(80+4*j)}, {v(83+4*j)}, {v(76+4*j)}")
            else: A(f"v_or_b32 {v(80)}, {v(80)}, {v(83)}")
        A("v_and_b32 v92, s42, v92")
        A("v_cmp_ne_u32 vcc, 0, v92")
        A("s_nop 1")
        A("s_cmp_eq_u64 vcc, 0")
        A("s_cbranch_scc1 d2_got")
        A("s_sleep 1")
        A("s_sub_u32 s28, s28, 1")
        A("s_cmp_lg_u32 s28, 0")
        A("s_cbranch_scc1 d2_poll")
        A.label("d2_got")
        if OPT("XDBG", 0): stamp(A, ph, 1)
    else:
        for j in range(4):
            A(f"buffer_store_dwordx4 {v(acc(0,2)+4*j,4)}, v6, s[8:11], s40 offen offset:{j*1024} sc1")
        A(f"s_lshl_b32 s42, s28, {OPT('XFS', 7)}")
        A(f"s_add_u32 s42, s42, {8*MB}")
        A(f"s_lshl_b32 s43, s29, {OPT('XFS', 7)}")
        A(f"s_add_u32 s43, s43, {8*MB}")
        A("v_mov_b32 v20, 0")
        A(f"s_mov_b32 s28, {SPIN_MAX}")
        A("s_waitcnt vmcnt(0)")
        if OPT("XDBG", 0): stamp(A, ph, 0)
        A("s_mov_b64 exec, 1")
        A("buffer_store_dwordx2 v[248:249], v20, s[8:11], s42 offen sc1")
        A.label("d2_poll")
        A("buffer_load_dwordx2 v[22:23], v20, s[8:11], s43 offen sc1")
        A("s_waitcnt vmcnt(0)")
        A("v_cmp_ne_u64 vcc, v[248:249], v[22:23]")
        A("s_nop 1")
        A("s_cmp_eq_u64 vcc, 0")
        A("s_cbranch_scc1 d2_got")
        if OPT("XSLEEP", 1): A(f"s_sleep {OPT('XSLEEP', 1)}")
        A("s_sub_u32 s28, s28, 1")
        A("s_cmp_lg_u32 s28, 0")
        A("s_cbranch_scc1 d2_poll")
        A.label("d2_got")
        A("s_mov_b64 exec, -1")
        if OPT("XDBG", 0): stamp(A, ph, 1)
        for j in range(4):
            A(f"buffer_load_dwordx4 {v(64+4*j,4)}, v6, s[8:11], s41 offen offset:{j*1024} sc1")
    T = 112
    for i in range(2):
        if not XTAG: A(f"s_waitcnt vmcnt({2 - 2*i + i})")
        for q in range(4):
            A(f"v_pk_add_f32 {v(ACC+8*i+2*q,2)}, {v(ACC+8*i+2*q,2)}, {v(64+8*i+2*q,2)}")
        for f in range(2):
            for h in range(2):
                A(f"v_cvt_pk_bf16_f32 {v(T+4*i+2*f+h)}, {v(acc(f,i)+2*h)}, {v(acc(f,i)+2*h+1)}")
        A("s_nop 1")
        A(f"v_permlane16_swap_b32 {v(T+4*i)}, {v(T+4*i+2)}")
        A(f"v_permlane16_swap_b32 {v(T+4*i+1)}, {v(T+4*i+3)}")
        A("s_nop 1")
        A(f"buffer_store_dwordx4 {v(T+4*i,4)}, v9, s[48:51], {s(35+i)} offen{OUTF}")
    if PROF:
        A("s_waitcnt vmcnt(0)")
        stamp(A, ph, 4)


def ph_down3(A):
    ph = 5
    R, SLOT = OPT("DR", 5), 32768
    N0 = OPT("N0", 26)
    T = R + (R % 2)
    A("s_and_b32 s21, s2, 3")
    A("s_lshl_b32 s21, s21, 2")
    A("s_bfe_u32 s28, s2, 0x20003")
    A("s_add_u32 s21, s21, s28")
    A("s_lshr_b32 s22, s2, 5")
    A("s_bfe_u32 s26, s2, 0x10002")
    A("s_and_b32 s32, s20, 1")
    A("s_lshr_b32 s33, s20, 1")
    srd(A, 12, 6, WS_WD, 7*MB)
    srd(A, 8, 6, WS_HACT, 2048*3584*2)
    wd = lambda: xdma(8192, 0, 's[12:15]')
    xd = lambda: xdma(0x40000, 0)
    A("s_cmp_lt_u32 s20, 4")
    A("s_cbranch_scc1 d3_A0")
    A("s_lshl_b32 s28, s22, 1")
    A("s_lshr_b32 s29, s31, 1")
    A("s_add_u32 s28, s28, s29")
    A(f"s_mul_i32 s28, s28, {3584*128}")
    A(f"s_mul_i32 s29, s26, {N0*64*128}")
    A("s_add_u32 s28, s28, s29")
    A("s_and_b32 s29, s31, 1")
    A("s_lshl_b32 s29, s29, 12")
    A(f"s_add_u32 {s(sGo)}, s28, s29")
    A(f"s_lshl_b32 {s(sM)}, s31, 12")
    A(f"s_add_u32 {s(sM)}, {s(sM)}, 16384")
    srd(A, 52, 46, 0, 256)
    A("v_mov_b32 v20, 0")
    A("buffer_load_dwordx2 v[248:249], v20, s[52:55], 0 offen sc1")
    fill_ring(A, R, SLOT, wd)
    A("s_branch d3_C0")
    A.label("d3_A0")
    A(f"s_mul_i32 s28, s26, {2*N0}")
    A("s_lshr_b32 s29, s31, 1")
    A("s_add_u32 s28, s28, s29")
    A("s_lshl_b32 s28, s28, 7")
    A("s_lshl_b32 s29, s21, 3")
    A("s_add_u32 s28, s28, s29")
    A("s_and_b32 s29, s31, 1")
    A("s_lshl_b32 s29, s29, 2")
    A("s_add_u32 s28, s28, s29")
    A(f"s_lshl_b32 {s(sGo)}, s28, 10")
    A(f"s_lshl_b32 {s(sM)}, s31, 12")
    A.label("d3_C0")
    ACC = 32
    def acc(f, i): return ACC + (i * 2 + f) * 4
    SET = [64, 112]
    def xf(p, kk, i): return SET[p] + (kk * 4 + i) * 4
    def wf(p, kk, f): return SET[p] + 32 + (kk * 2 + f) * 4
    RES = 224
    A("s_lshl_b32 s34, s22, 2")
    A("s_add_u32 s34, s34, s33")
    A("s_lshl_b32 s34, s34, 7")
    A("s_lshl_b32 s35, s21, 3")
    A("s_lshl_b32 s36, s32, 2")
    A("s_add_u32 s35, s35, s36")
    A("s_add_u32 s34, s34, s35")
    A("s_lshl_b32 s34, s34, 10")
    A("s_lshl_b32 s35, s35, 15")
    A("s_lshl_b32 s36, s22, 8")
    A("s_add_u32 s35, s35, s36")
    A("s_lshl_b32 s36, s33, 6")
    A("s_add_u32 s35, s35, s36")
    A("s_add_u32 s36, s35, 32768")
    A("s_add_u32 s37, s36, 32768")
    A("s_add_u32 s38, s37, 32768")
    srd(A, 16, 6, WS_H, 4*MB)
    A("s_cmp_eq_u32 s26, 0")
    A(f"s_cselect_b32 s18, 0, {4*MB}")
    A(f"s_cselect_b32 s39, {(N0-T)//2}, {(56-N0-T)//2}")
    srd(A, 48, 44, 0, 4*MB)
    A("v_lshlrev_b32 v9, 11, v5")
    A("v_and_b32 v15, 1, v2")
    A("v_lshl_add_u32 v9, v15, 5, v9")
    A("v_lshrrev_b32 v15, 1, v2")
    A("v_lshl_add_u32 v9, v15, 4, v9")
    A("s_lshl_b32 s28, s32, 12")
    A("v_add_u32 v10, s28, v6")
    A("v_lshl_add_u32 v11, v2, 2, v3")
    A("v_lshlrev_b32 v11, 7, v11")
    A("v_lshl_add_u32 v11, v4, 3, v11")
    A("s_lshr_b32 s28, s33, 1")
    A("s_lshl_b32 s28, s28, 13")
    A("s_add_u32 s28, s28, 16384")
    A("v_add_u32 v11, s28, v11")
    A("v_bfe_u32 v12, v1, 3, 2")
    A("s_and_b32 s29, s33, 1")
    A("s_lshl_b32 s29, s29, 1")
    A("v_xor_b32 v13, s29, v12")
    A("v_lshl_add_u32 v13, v13, 5, v11")
    A("v_xor_b32 v14, 32, v13")
    A("s_lshr_b32 s28, s2, 3")
    A("s_lshl_b32 s28, s28, 2")
    A("s_and_b32 s29, s2, 3")
    A("s_add_u32 s28, s28, s29")
    A("s_lshl_b32 s28, s28, 3")
    A("s_add_u32 s28, s28, s20")
    A("s_lshl_b32 s41, s28, 13")
    A("s_add_u32 s42, s41, 4096")
    A("s_lshl_b32 s43, s28, 7")
    A(f"s_add_u32 s43, s43, {8*MB}")
    A("s_lshr_b32 s40, s21, 1")
    stamp(A, ph, 0)
    wait_flags(A, 4, 40, 32)
    stamp(A, ph, 1)
    for i in range(4):
        A(f"buffer_load_dwordx4 {v(RES+4*i,4)}, v6, s[16:19], s34 offen offset:{i*1024}{LDF}")
    def accinit():
        for i in range(4):
            for f in range(2):
                for h in range(2):
                    src = RES + 4*i + 2*f + h
                    A(f"v_lshlrev_b32 {v(acc(f,i)+2*h)}, 16, {v(src)}")
                    A(f"v_and_b32 {v(acc(f,i)+2*h+1)}, 0xffff0000, {v(src)}")
    def reads(p):
        out = []
        for kk in range(2):
            for f in range(2):
                for t in range(2):
                    out.append([f"ds_read_b64_tr_b16 {v(wf(p,kk,f)+2*t,2)}, {v(17+f)} offset:{kk*4096+t*2048}"])
            for i in range(4):
                out.append([f"ds_read_b128 {v(xf(p,kk,i),4)}, v16 offset:{kk*8192+i*1024}"])
        return out
    def addr_upd():
        return [f"v_add_u32 v16, {s(sRd)}, v10", f"v_add_u32 v17, {s(sRd)}, v13", f"v_add_u32 v18, {s(sRd)}, v14"]
    def mfmas(p):
        return [mf16(acc(f, i), wf(p, kk, f), xf(p, kk, i)) for kk in range(2) for f in range(2) for i in range(4)]
    A("s_cmp_ge_u32 s20, 4")
    A("s_cbranch_scc1 d3_B")
    fill_ring(A, R, SLOT, xd, bar=True)
    A(f"s_waitcnt vmcnt({4*R})")
    accinit()
    gemm_loop(A, ph, "d3_loopA", "A", R, SLOT, 28, 4, mfmas, reads, xd, addr_upd, cnt_sgpr=39)
    A("s_branch d3_epi")
    A.label("d3_B")
    fill_ring(A, R, SLOT, None, bar=True)
    A("s_waitcnt vmcnt(0)")
    accinit()
    gemm_loop(A, ph, "d3_loopB", "B", R, SLOT, 28, 4, mfmas, reads, wd, addr_upd, cnt_sgpr=39)
    A.label("d3_epi")
    srd(A, 8, 6, WS_Q, 9*MB)
    A("v_mov_b32 v20, 0")
    A("s_cmp_lg_u32 s26, 0")
    A("s_cbranch_scc1 d3_recv")
    for j in range(8):
        A(f"buffer_store_dwordx4 {v(ACC+4*j,4)}, v6, s[8:11], {s(41 + j//4)} offen offset:{(j%4)*1024} sc1")
    A("s_waitcnt vmcnt(0)")
    A("s_mov_b64 exec, 1")
    A("buffer_store_dwordx2 v[248:249], v20, s[8:11], s43 offen sc1")
    A("s_mov_b64 exec, -1")
    A("s_branch d3_end")
    A.label("d3_recv")
    A(f"s_mov_b32 s28, {SPIN_MAX}")
    A("s_mov_b64 exec, 1")
    A.label("d3_poll")
    A("buffer_load_dwordx2 v[22:23], v20, s[8:11], s43 offen sc1")
    A("s_waitcnt vmcnt(0)")
    A("v_cmp_ne_u64 vcc, v[248:249], v[22:23]")
    A("s_nop 1")
    A("s_cmp_eq_u64 vcc, 0")
    A("s_cbranch_scc1 d3_got")
    A("s_sleep 1")
    A("s_sub_u32 s28, s28, 1")
    A("s_cmp_lg_u32 s28, 0")
    A("s_cbranch_scc1 d3_poll")
    A.label("d3_got")
    A("s_mov_b64 exec, -1")
    for j in range(8):
        A(f"buffer_load_dwordx4 {v(64+4*j,4)}, v6, s[8:11], {s(41 + j//4)} offen offset:{(j%4)*1024} sc1")
    TT = 112
    for i in range(4):
        A(f"s_waitcnt vmcnt({6 - 2*i + i})")
        for q in range(4):
            A(f"v_pk_add_f32 {v(ACC+8*i+2*q,2)}, {v(ACC+8*i+2*q,2)}, {v(64+8*i+2*q,2)}")
        for f in range(2):
            for h in range(2):
                A(f"v_cvt_pk_bf16_f32 {v(TT+4*i+2*f+h)}, {v(acc(f,i)+2*h)}, {v(acc(f,i)+2*h+1)}")
        A("s_nop 1")
        A(f"v_permlane16_swap_b32 {v(TT+4*i)}, {v(TT+4*i+2)}")
        A(f"v_permlane16_swap_b32 {v(TT+4*i+1)}, {v(TT+4*i+3)}")
        A("s_nop 1")
        A(f"buffer_store_dwordx4 {v(TT+4*i,4)}, v9, s[48:51], {s(35+i)} offen{OUTF}")
    A.label("d3_end")
    if PROF:
        A("s_waitcnt vmcnt(0)")
        stamp(A, ph, 4)
```

```python
import sys, math, os, struct
from asmlib import *

MB = 1 << 20
WS_XN, WS_Q, WS_K, WS_VT, WS_O, WS_H, WS_ST, WS_CS, WS_FL, WS_HACT = 0, 4*MB, 8*MB, 12*MB, 16*MB, 20*MB, 24*MB, 25*MB, 26*MB, 32*MB
if int(os.environ.get('HACT0', '1')): WS_HACT = 0
WS_DBG = 48*MB
WS_RS = 27*MB
WS_XB = 72*MB
WS_WD = 64*MB
KA_X, KA_WQKV, KA_WO, KA_BX, KA_WG, KA_WU, KA_WD, KA_OUT, KA_DBG, KA_WS = 0, 8, 16, 24, 32, 40, 48, 56, 64, 72
LOG2E = math.log2(math.e)
QSCALE = LOG2E / math.sqrt(32.0)
def f32(x): return hex(struct.unpack("<I", struct.pack("<f", x))[0])
def OPT(name, default): return int(os.environ.get(name, str(default)))
def SOPT(name, default): return os.environ.get(name, default)
PROF = OPT("PROF", 0)
STF = " sc1"
LDF = SOPT("LDF", " sc1")
OUTF = SOPT("OUTF", "")
NAME = "sequential_preLN__mha_block__glu_gated_glu__prompt_kernel"

sNON = 62
def stamp(A, ph, i):
    if not PROF: return
    A("s_memrealtime s[64:65]")
    A("s_waitcnt lgkmcnt(0)")
    A(f"s_mov_b32 {s(66+ph*6+i)}, s64")
def cyc(A, ph, end):
    if not PROF: return
    A("s_memtime s[64:65]")
    A("s_waitcnt lgkmcnt(0)")
    if not end: A(f"s_mov_b32 {s(66+ph*6+5)}, s64")
    else: A(f"s_sub_u32 {s(66+ph*6+5)}, s64, {s(66+ph*6+5)}")
def stamp_flush(A):
    if not PROF: return
    if PROF == 2:
        A(f"s_load_dwordx2 s[4:5], s[0:1], {KA_DBG}")
        A("s_waitcnt lgkmcnt(0)")
        srd(A, 8, 4, 0, 256)
        A(f"s_cmp_lg_u32 s2, {OPT('DBGWG', 0)}")
        A("s_cbranch_scc1 the_end")
        A("s_cmp_lg_u32 s20, 0")
        A("s_cbranch_scc1 the_end")
        A("s_mov_b64 exec, 1")
        A("v_mov_b32 v0, 0")
        sel = [(0,3),(0,4),(1,1),(1,2),(1,3),(2,2),(2,3),(3,2),(3,3),(4,2),(4,3),(5,2),(5,3),(5,4)]
        for i, (ph, j) in enumerate(sel):
            A(f"s_sub_u32 s3, {s(66+ph*6+j)}, s66")
            A(f"v_mov_b32 {v(1+i)}, s3")
            A(f"buffer_store_dword {v(1+i)}, v0, s[8:11], 0 offen offset:{8+4*i}")
        return
    A("s_mov_b64 exec, 1")
    srd(A, 8, 6, WS_DBG, 16*MB)
    A("s_lshl_b32 s3, s2, 3")
    A("s_add_u32 s3, s3, s20")
    A("s_lshl_b32 s3, s3, 8")
    A("v_mov_b32 v0, 0")
    for i in range(36):
        A(f"v_mov_b32 {v(1+i)}, {s(66+i)}")
    for i in range(36):
        A(f"buffer_store_dword {v(1+i)}, v0, s[8:11], s3 offen offset:{4*i}")

def mf16(d, A_, B_, c=None):
    c = v(d, 4) if c is None else c
    return f"v_mfma_f32_16x16x32_bf16 {v(d,4)}, {v(A_,4)}, {v(B_,4)}, {c}"
def mf32(d, A_, B_, c=None):
    c = v(d, 16) if c is None else c
    return f"v_mfma_f32_32x32x16_bf16 {v(d,16)}, {v(A_,4)}, {v(B_,4)}, {c}"
def reduce_rows16_32(A, xs, ts):
    for op in ("v_permlane16_swap_b32", "v_permlane32_swap_b32"):
        for x, t in zip(xs, ts): A(f"v_mov_b32 {v(t)}, {v(x)}")
        A("s_nop 1")
        for x, t in zip(xs, ts): A(f"{op} {v(t)}, {v(x)}")
        A("s_nop 1")
        for x, t in zip(xs, ts): A(f"v_add_f32 {v(x)}, {v(x)}, {v(t)}")
def lane_decomp(A):
    A("v_and_b32 v1, 63, v0")
    A("v_lshrrev_b32 v2, 4, v1")
    A("v_bfe_u32 v3, v1, 2, 2")
    A("v_and_b32 v4, 3, v1")
    A("v_and_b32 v5, 15, v1")
    A("v_lshlrev_b32 v6, 4, v1")
def emit(A, L):
    for i in L:
        if isinstance(i, list): emit(A, i)
        else: A(i)

SPIN_MAX = 1 << 18
def pub_prep(A, ph, sg, sj):
    A(f"s_lshl_b32 s3, {s(sg)}, 8")
    A(f"s_lshl_b32 s28, {s(sj)}, 3")
    A("s_add_u32 s3, s3, s28")
    A(f"s_add_u32 s3, s3, {ph*4096}")
    A("v_mov_b32 v250, s3")
    if OPT("PUBFIRST", 1) and ph > 0:
        A("s_waitcnt vmcnt(0)")
        stamp(A, ph, 4)
        publish(A, force=True)
def publish(A, force=False):
    if OPT("PUBFIRST", 1) and not force: return
    srd(A, 56, 6, WS_FL, 6 * 4096)
    A("s_barrier")
    skip = A.newlabel("pub_skip")
    A("s_cmp_lg_u32 s20, 0")
    A(f"s_cbranch_scc1 {skip}")
    A("s_mov_b64 exec, 1")
    A("buffer_store_dwordx2 v[248:249], v250, s[56:59], 0 offen sc1")
    A("s_mov_b64 exec, -1")
    A.label(skip)

def wait_flags(A, ph, sg, n, also_all=None, soff=None):
    skip = A.newlabel("wf_skip"); loop = A.newlabel("wf_loop"); done = A.newlabel("wf_done")
    A("s_cmp_lg_u32 s20, 0")
    A(f"s_cbranch_scc1 {skip}")
    srd(A, 56, 6, WS_FL, 6 * 4096)
    A(f"s_lshl_b32 s3, {s(sg)}, 8")
    A(f"s_add_u32 s3, s3, {ph*4096}")
    if soff is not None: A(f"s_add_u32 s3, s3, {s(soff)}")
    A(f"v_and_b32 v22, {n-1}, v0")
    A("v_lshlrev_b32 v22, 3, v22")
    A("v_lshlrev_b32 v23, 3, v0")
    if also_all is not None: A(f"s_mov_b32 s29, {also_all*4096}")
    A(f"s_mov_b32 s28, {SPIN_MAX}")
    PP = OPT("PPOLL", 0)
    if also_all is not None:
        l2 = A.newlabel("wf_all")
        A.label(l2)
        for j in range(4):
            A(f"buffer_load_dwordx2 {v(24+2*j,2)}, v23, s[56:59], s29 offen offset:{j*512} sc1")
        A("buffer_load_dwordx2 v[252:253], v22, s[56:59], s3 offen sc1")
        A("s_waitcnt vmcnt(1)")
        A(f"v_cmp_ne_u64 vcc, {s(sNON,2)}, v[24:25]")
        for j in range(1, 4):
            A(f"v_cmp_ne_u64 s[60:61], {s(sNON,2)}, {v(24+2*j,2)}")
            A("s_nop 1")
            A("s_or_b64 vcc, vcc, s[60:61]")
        A("s_sub_u32 s28, s28, 1")
        A("s_cmp_eq_u32 s28, 0")
        A(f"s_cbranch_scc1 {skip}")
        A("s_cmp_eq_u64 vcc, 0")
        A(f"s_cbranch_scc0 {l2}")
    else:
        A("buffer_load_dwordx2 v[252:253], v22, s[56:59], s3 offen sc1")
    if PP:
        A(f"s_sleep {PP}")
        A.label(loop)
        for a_, b_ in ((252, 254), (254, 252)):
            A(f"buffer_load_dwordx2 {v(b_,2)}, v22, s[56:59], s3 offen sc1")
            A("s_waitcnt vmcnt(1)")
            A(f"v_cmp_ne_u64 vcc, {s(sNON,2)}, {v(a_,2)}")
            A("s_nop 1")
            A("s_cmp_eq_u64 vcc, 0")
            A(f"s_cbranch_scc1 {done}")
        A("s_sub_u32 s28, s28, 1")
        A("s_cmp_lg_u32 s28, 0")
        A(f"s_cbranch_scc1 {loop}")
        A.label(done)
    else:
        A.label(loop)
        A("s_waitcnt vmcnt(0)")
        A(f"v_cmp_ne_u64 vcc, {s(sNON,2)}, v[252:253]")
        A("s_nop 1")
        A("s_cmp_eq_u64 vcc, 0")
        A(f"s_cbranch_scc1 {skip}")
        A(f"s_sleep {OPT('SLEEP', 1)}")
        A("buffer_load_dwordx2 v[252:253], v22, s[56:59], s3 offen sc1")
        A("s_sub_u32 s28, s28, 1")
        A("s_cmp_lg_u32 s28, 0")
        A(f"s_cbranch_scc1 {loop}")
    A.label(skip)
    A("s_barrier")

sRd, sWr, sGo, sCnt, sM = 23, 24, 25, 27, 30
def ring_advance(slot, R):
    return [f"s_mov_b32 {s(sWr)}, {s(sRd)}",
            f"s_add_u32 {s(sRd)}, {s(sRd)}, {slot}",
            f"s_cmp_eq_u32 {s(sRd)}, {slot*R}",
            f"s_cselect_b32 {s(sRd)}, 0, {s(sRd)}"]

def adv(d, SC=0):
    if not SC: return [f"s_add_u32 {s(sGo)}, {s(sGo)}, {hex(d)}"]
    return ["s_add_u32 s38, s38, 1",
            "s_add_u32 s3, s38, s39",
            f"s_and_b32 s3, s3, {SC-1}",
            f"s_andn2_b32 {s(sGo)}, s38, {SC-1}",
            f"s_or_b32 s3, s3, {s(sGo)}",
            f"s_mul_i32 s3, s3, {hex(d)}",
            f"s_add_u32 {s(sGo)}, s3, s37"]
def rot_init(A, d, SC):
    A(f"s_mov_b32 s37, {s(sGo)}")
    A("s_mov_b32 s38, -1")
    emit(A, adv(d, SC))

def xdma(dX, SC=0, srd_='s[8:11]'):
    g = [[f"s_add_u32 m0, {s(sWr)}, {s(sM)}", "s_nop 0",
          f"buffer_load_dwordx4 v6, {srd_}, {s(sGo)} offen{LDF} lds"]]
    for j in range(1, 4):
        g.append([f"buffer_load_dwordx4 v6, {srd_}, {s(sGo)} offen offset:{j*1024}{LDF} lds"])
    g[-1] += adv(dX, SC)
    return g

def fill_ring(A, R, SLOT, dma, lo=0, hi=None, bar=False):
    for st in range(lo, R if hi is None else hi):
        if dma is not None:
            A(f"s_mov_b32 {s(sWr)}, {st*SLOT}")
            emit(A, dma())
        if bar and st < R - 1: A("s_barrier")

def fill_rest(A, R, SLOT, dma, done):
    st = done
    for b in range(R - 1):
        A("s_barrier")
        if st < R:
            A(f"s_mov_b32 {s(sWr)}, {st*SLOT}")
            emit(A, dma()); st += 1
    assert st == R

def gemm_loop(A, ph, label, role, R, SLOT, NST, ndma, mfmas, reads, dma_groups, addr_upd, tail_hook=None, cnt_sgpr=None, top_hook=None):
    T = R + (R % 2) if OPT("TAIL", 1) else 0
    A(f"s_mov_b32 {s(sRd)}, 0")
    emit(A, addr_upd())
    A(f"s_waitcnt vmcnt({ndma*(R-1)})")
    A("s_barrier")
    stamp(A, ph, 2); cyc(A, ph, 0)
    emit(A, reads(0))
    emit(A, ring_advance(SLOT, R))
    emit(A, addr_upd())
    A(f"s_mov_b32 {s(sCnt)}, {(NST-T)//2 if cnt_sgpr is None else s(cnt_sgpr)}")
    PRE = OPT("PRE_" + str(ph), OPT("PRE", 0))
    BK = OPT("BK", 1)
    def snake(M):
        return M
    def stage(p, dma, nout, last, hook=None, extra=0, loopend=False, inloop=False):
        M = mfmas(p); Rd = reads(1 - p); D = dma_groups() if dma else []
        if hook: D = D + [hook]
        nm = len(M)
        if last:
            A("s_waitcnt lgkmcnt(0)")
            if (tail_hook or {}).get('endbar'): A("s_barrier")
            if hook:
                h0 = (tail_hook or {}).get('lastpos', 0)
                emit(A, interleave(M, [[x] for x in hook], h0, nm))
            else:
                emit(A, M)
            return
        book = ring_advance(SLOT, R) + addr_upd()
        cnt = [f"s_sub_u32 {s(sCnt)}, {s(sCnt)}, 1", f"s_cmp_lg_u32 {s(sCnt)}, 0"] if loopend else []
        if role == "A":
            pre = min(PRE, nm // 2)
            if pre:
                A("s_waitcnt lgkmcnt(0)")
                emit(A, M[:pre])
                A(f"s_waitcnt vmcnt({ndma*nout+extra})")
            else:
                A(f"s_waitcnt vmcnt({ndma*nout+extra}) lgkmcnt(0)")
            A("s_barrier")
            if inloop and p == 0 and top_hook: emit(A, top_hook)
            Mr = M[pre:]; nr = len(Mr)
            if BK and dma:
                m0set = D[0][0]; D = [D[0][2:]] + D[1:]
                emit(A, interleave(Mr, Rd, 0, max(1, nr - 2)))
                A(m0set)
                emit(A, book)
                emit(A, D)
                emit(A, cnt)
            else:
                emit(A, interleave(Mr, Rd, 0, max(1, nr - 2) if dma else max(1, (2 * nr) // 3)))
                emit(A, D)
                emit(A, book); emit(A, cnt)
        else:
            A(f"s_waitcnt vmcnt({ndma*nout+extra}) lgkmcnt(0)")
            A("s_barrier")
            if inloop and p == 0 and top_hook: emit(A, top_hook)
            emit(A, D)
            if BK:
                h = max(1, (2 * nm) // 3)
                emit(A, interleave(M[:h], Rd))
                emit(A, interleave(M[h:], [[x] for x in book[:2]] + [book[2:4]] + [[x] for x in book[4:]] + ([cnt] if cnt else []), 0, max(1, nm - h - 1)))
            else:
                emit(A, interleave(M, Rd, 0, max(1, (2 * nm) // 3)))
                emit(A, book); emit(A, cnt)
    A.raw(".p2align 6")
    A.label(label)
    for p in range(2): stage(p, True, R - 2, False, loopend=(p == 1), inloop=True)
    A(f"s_cbranch_scc1 {label}")
    for st in range(NST - T, NST):
        stage(st % 2, st + R < NST, min(R - 2, NST - 2 - st), st == NST - 1, (tail_hook or {}).get(NST - st), (tail_hook or {}).get(('x', NST - st), 0))
    if not T: A("s_waitcnt lgkmcnt(0)")
    A("s_nop 7")
    if OPT("ENDBAR", 0) or (ph == 1 and OPT("RAW", 0)): A("s_barrier")
    cyc(A, ph, 1); stamp(A, ph, 3)

def code_touch(A, vd=26):
    if not OPT("CT", 0): return
    l = A.newlabel("ct")
    A("s_getpc_b64 s[56:57]")
    A.label(l)
    A(f"s_sub_u32 s56, s56, {l}-{NAME}")
    A("s_subb_u32 s57, s57, 0")
    A(f"s_mov_b32 s58, code_end-{NAME}")
    A("s_mov_b32 s59, 0x20000")
    A("v_lshlrev_b32 v20, 7, v1")
    A("s_lshl_b32 s28, s31, 13")
    A(f"buffer_load_dword {v(vd)}, v20, s[56:59], s28 offen")

def code_touch_list(A, frm, vd, va):
    l = A.newlabel("ct")
    return ["s_getpc_b64 s[56:57]", f"{l}:",
            f"s_add_u32 s56, s56, {frm}-{l}", "s_addc_u32 s57, s57, 0",
            "s_and_b32 s56, s56, 0xffffff80",
            f"s_mov_b32 s58, code_end-{frm}", "s_mov_b32 s59, 0x20000",
            f"v_lshlrev_b32 {v(va)}, 7, v1", "s_lshl_b32 s28, s31, 13",
            f"buffer_load_dword {v(vd)}, {v(va)}, s[56:59], s28 offen"]

def w_swz_voff(A, dst, rowstride):
    A(f"v_lshrrev_b32 {v(dst)}, 3, v1")
    A(f"v_mul_u32_u24 {v(dst)}, {rowstride}, {v(dst)}")
    A("v_and_b32 v20, 7, v1")
    A("v_lshlrev_b32 v21, 1, v2")
    A("v_xor_b32 v20, v20, v21")
    A(f"v_lshl_add_u32 {v(dst)}, v20, 4, {v(dst)}")

def ph_ln_qkv(A):
    R, SLOT, NST = 4, 40960, 16
    A(f"s_load_dwordx4 s[40:43], s[0:1], {KA_X}")
    A(f"s_load_dwordx4 s[4:7], s[0:1], {KA_DBG}")
    A("s_memrealtime s[62:63]")
    A("v_lshrrev_b32 v1, 6, v0")
    A("s_nop 0")
    A("v_readfirstlane_b32 s20, v1")
    lane_decomp(A)
    A("s_and_b32 s21, s2, 1")
    A("s_lshl_b32 s21, s21, 3")
    A("s_bfe_u32 s28, s2, 0x30003")
    A("s_add_u32 s21, s21, s28")
    A("s_bfe_u32 s22, s2, 0x20001")
    A("s_lshl_b32 s22, s22, 2")
    A("s_lshr_b32 s28, s2, 6")
    A("s_add_u32 s22, s22, s28")
    A("s_and_b32 s31, s20, 3")
    QSC = OPT("QSC", 8)
    A("s_and_b32 s39, s21, 3")
    A(f"s_mul_i32 s39, s39, {QSC//4}")
    A("s_cmp_ge_u32 s20, 4")
    A("s_cbranch_scc1 p0_B")
    A("v_and_b32 v7, 7, v1")
    A("v_bfe_u32 v8, v1, 3, 2")
    A("v_lshrrev_b32 v9, 5, v1")
    A("v_lshlrev_b32 v10, 11, v7")
    A("v_lshl_add_u32 v10, v9, 6, v10")
    A("v_lshl_add_u32 v10, v8, 3, v10")
    A("s_lshl_b32 s3, s2, 14")
    A("s_lshl_b32 s28, s20, 9")
    A("s_add_u32 s3, s3, s28")
    A("s_waitcnt lgkmcnt(0)")
    if PROF: A("s_mov_b32 s66, s62")
    srd(A, 8, 40, 0, 4*MB)
    for i in range(4):
        A(f"buffer_load_dwordx2 {v(32+4*i,2)}, v10, s[8:11], s3 offen offset:{i*128}")
        A(f"buffer_load_dwordx2 {v(34+4*i,2)}, v10, s[8:11], s3 offen offset:{i*128+32}")
    srd(A, 16, 4, 0, 256)
    A("s_or_b32 s28, s2, s20")
    A("s_cmp_lg_u32 s28, 0")
    A("s_cbranch_scc1 p0_nopub")
    A("s_or_b32 s62, s62, 1")
    A("v_mov_b32 v20, s62")
    A("v_mov_b32 v21, s63")
    A("v_mov_b32 v22, 0")
    A("s_mov_b64 exec, 1")
    A("buffer_store_dwordx2 v[20:21], v22, s[16:19], 0 offen sc1")
    A("s_mov_b64 exec, -1")
    A("s_waitcnt vmcnt(0)")
    A.label("p0_nopub")
    srd(A, 12, 6, WS_XN, 4*MB)
    A("v_lshlrev_b32 v11, 17, v9")
    A("v_lshl_add_u32 v11, v7, 4, v11")
    A("v_lshl_add_u32 v11, v8, 8, v11")
    A("s_lshr_b32 s32, s2, 1")
    A("s_lshl_b32 s32, s32, 10")
    A("s_and_b32 s33, s2, 1")
    A("s_lshl_b32 s33, s33, 7")
    A("s_add_u32 s32, s32, s33")
    A("s_lshl_b32 s33, s20, 20")
    A("s_add_u32 s32, s32, s33")
    A("s_add_u32 s33, s32, 0x40000")
    A("s_add_u32 s34, s32, 0x80000")
    A("s_add_u32 s35, s32, 0xc0000")
    A("v_mov_b32 v24, 0")
    A("v_mov_b32 v25, 0")
    U = 64
    for j in range(16):
        if j % 2 == 0: A(f"s_waitcnt vmcnt({7 - j//2})")
        A(f"v_lshlrev_b32 {v(U+2*j)}, 16, {v(32+j)}")
        A(f"v_and_b32 {v(U+1+2*j)}, 0xffff0000, {v(32+j)}")
        A(f"v_add_f32 v24, v24, {v(U+2*j)}")
        A(f"v_fmac_f32 v25, {v(U+2*j)}, {v(U+2*j)}")
        A(f"v_add_f32 v24, v24, {v(U+1+2*j)}")
        A(f"v_fmac_f32 v25, {v(U+1+2*j)}, {v(U+1+2*j)}")
    A("v_mov_b32 v22, 0")
    A("buffer_load_dwordx2 v[28:29], v22, s[16:19], 0 offen sc1")
    A("v_add_f32_dpp v24, v24, v24 row_ror:8 row_mask:0xf bank_mask:0xf")
    A("v_add_f32_dpp v25, v25, v25 row_ror:8 row_mask:0xf bank_mask:0xf")
    reduce_rows16_32(A, [24, 25], [26, 27])
    A("v_lshlrev_b32 v26, 5, v7")
    A("s_lshl_b32 s28, s20, 3")
    A("v_add_u32 v27, s28, v26")
    A("ds_write_b64 v27, v[24:25]")
    A("s_waitcnt lgkmcnt(0)")
    A("s_barrier")
    A("ds_read_b128 v[100:103], v26")
    A("ds_read_b128 v[104:107], v26 offset:16")
    A("s_waitcnt lgkmcnt(0)")
    A("v_pk_add_f32 v[24:25], v[100:101], v[102:103]")
    A("v_pk_add_f32 v[26:27], v[104:105], v[106:107]")
    A("v_pk_add_f32 v[24:25], v[24:25], v[26:27]")
    A(f"v_mul_f32 v24, {f32(1/1024)}, v24")
    A(f"v_mul_f32 v25, {f32(1/1024)}, v25")
    A("v_fma_f32 v25, -v24, v24, v25")
    A("v_max_f32 v25, 0, v25")
    A(f"v_add_f32 v25, {f32(1e-5)}, v25")
    A("v_rsq_f32 v25, v25")
    A("s_nop 0")
    A("v_mul_f32 v24, v24, v25")
    for j in range(16):
        A(f"v_fma_f32 {v(U+2*j)}, {v(U+2*j)}, v25, -v24")
        A(f"v_fma_f32 {v(U+1+2*j)}, {v(U+1+2*j)}, v25, -v24")
        A(f"v_cvt_pk_bf16_f32 {v(32+j)}, {v(U+2*j)}, {v(U+1+2*j)}")
        if j % 4 == 3:
            A(f"buffer_store_dwordx4 {v(32+j-3,4)}, v11, s[12:15], {s(32+j//4)} offen{STF}")
    stamp(A, 0, 3)
    A("s_lshr_b32 s32, s2, 4")
    A("s_and_b32 s33, s2, 15")
    pub_prep(A, 0, 32, 33)
    A(f"s_mov_b32 s28, {SPIN_MAX}")
    A.label("p0_nonce")
    A("s_waitcnt vmcnt(0)")
    A("v_readfirstlane_b32 s62, v28")
    A("v_readfirstlane_b32 s63, v29")
    A("s_nop 1")
    A("s_cmp_lg_u32 s62, 0")
    A("s_cbranch_scc1 p0_gotnonce")
    A("buffer_load_dwordx2 v[28:29], v22, s[16:19], 0 offen sc1")
    A("s_sub_u32 s28, s28, 1")
    A("s_cmp_lg_u32 s28, 0")
    A("s_cbranch_scc1 p0_nonce")
    A.label("p0_gotnonce")
    A("v_mov_b32 v248, s62")
    A("v_mov_b32 v249, s63")
    stamp(A, 0, 4)
    publish(A, force=True)
    A("v_mov_b32 v12, 0")
    A("s_lshr_b32 s28, s31, 1")
    A("s_lshl_b32 s28, s28, 7")
    A("s_lshl_b32 s29, s21, 3")
    A("s_add_u32 s28, s28, s29")
    A("s_and_b32 s29, s31, 1")
    A("s_lshl_b32 s29, s29, 2")
    A("s_add_u32 s28, s28, s29")
    A(f"s_lshl_b32 {s(sGo)}, s28, 10")
    if QSC: rot_init(A, 0x40000, QSC)
    A(f"s_lshl_b32 {s(sM)}, s31, 12")
    A("s_branch p1_common")
    A.label("p0_B")
    code_touch(A)
    w_swz_voff(A, 7, 6144)
    A(f"v_add_u32 v8, {8*6144-1024}, v7")
    A("v_add_u32 v9, 2048, v7")
    A("v_add_u32 v10, 2048, v8")
    A("v_add_u32 v11, 4096, v7")
    A("v_add_u32 v12, 4096, v8")
    A(f"s_mul_i32 s28, s31, {16*6144}")
    A("s_lshl_b32 s29, s22, 7")
    A(f"s_add_u32 {s(sGo)}, s28, s29")
    if QSC: rot_init(A, 64*6144, QSC)
    A(f"s_lshl_b32 {s(sM)}, s31, 11")
    A(f"s_add_u32 {s(sM)}, {s(sM)}, 16384")
    A("v_and_b32 v13, 31, v1")
    A("v_mul_u32_u24 v13, 6144, v13")
    A("v_lshrrev_b32 v14, 5, v1")
    A("v_lshl_add_u32 v15, v14, 11, v13")
    A("v_lshl_add_u32 v13, v14, 30, v13")
    A("v_add_u32 v13, 4096, v13")
    A("s_and_b32 s28, s21, 7")
    A("s_lshl_b32 s28, s28, 2")
    A("s_add_u32 s28, s28, s31")
    A(f"s_mul_i32 s28, s28, {32*6144}")
    A("s_add_u32 s28, s28, s29")
    A("s_waitcnt lgkmcnt(0)")
    if PROF: A("s_mov_b32 s66, s62")
    srd(A, 12, 42, 0, 6*MB)
    def wdma():
        g = []
        for seg in range(3):
            g.append([f"s_add_u32 m0, {s(sWr)}, {s(sM)}" if seg == 0 else "s_add_u32 m0, m0, 8192", "s_nop 0",
                      f"buffer_load_dwordx4 {v(7+2*seg)}, s[12:15], {s(sGo)} offen lds"])
            g.append([f"buffer_load_dwordx4 {v(8+2*seg)}, s[12:15], {s(sGo)} offen offset:1024 lds"])
        g[-1] += adv(64*6144, QSC)
        return g
    TLBW = OPT("TLBW", 0)
    if TLBW:
        sh = TLBW
        per = 1 << (21 - sh)
        A(f"s_load_dwordx2 s[44:45], s[0:1], {KA_WO}")
        A(f"s_load_dwordx4 s[48:51], s[0:1], {KA_WG}")
        A(f"s_load_dwordx4 s[52:55], s[0:1], {KA_WD}")
        A("v_lshlrev_b32 v26, 21, v1")
        A("s_lshr_b32 s33, s2, 3")
        A(f"s_and_b32 s33, s33, {per-1}")
        A(f"s_lshl_b32 s33, s33, {sh}")
        A("s_waitcnt lgkmcnt(0)")
        for wv, lst in ((0, [(6, 81*MB)]), (1, [(54, 4*MB), (44, 2*MB)]), (2, [(48, 7*MB), (50, 7*MB)]), (3, [(52, 7*MB)])):
            l = A.newlabel("tw")
            A(f"s_cmp_lg_u32 s31, {wv}")
            A(f"s_cbranch_scc1 {l}")
            for b_, sz in lst:
                srd(A, 56, b_, 0, sz)
                A("buffer_load_dword v27, v26, s[56:59], s33 offen sc1")
            A.label(l)
    P0M = OPT("P0M", 7)
    def touches():
        A("buffer_load_dword v24, v15, s[12:15], s28 offen")
        A("buffer_load_dword v25, v13, s[12:15], s28 offen")
    if P0M == 0:
        touches()
        fill_ring(A, R, SLOT, wdma, 0, 2)
        A("s_barrier")
        fill_ring(A, R, SLOT, wdma, 2, 4)
        A("s_barrier")
    elif P0M == 1:
        A("s_barrier")
        touches()
        fill_ring(A, R, SLOT, wdma, 0, 2)
        A("s_barrier")
        fill_ring(A, R, SLOT, wdma, 2, 4)
    elif P0M == 2:
        fill_ring(A, R, SLOT, wdma, 0, 2)
        A("s_barrier")
        touches()
        fill_ring(A, R, SLOT, wdma, 2, 4)
        A("s_barrier")
        A("s_waitcnt vmcnt(0)")
    elif P0M == 4:
        A("s_barrier")
        fill_ring(A, R, SLOT, wdma, 0, 2)
        A("s_barrier")
        fill_ring(A, R, SLOT, wdma, 2, 4)
    elif P0M == 5:
        fill_ring(A, R, SLOT, wdma, 0, 4)
        A("s_barrier")
        A("s_barrier")
    elif P0M == 6:
        fill_ring(A, R, SLOT, wdma, 0, 2)
        A("s_barrier")
        A("s_barrier")
        fill_ring(A, R, SLOT, wdma, 2, 4)
    elif P0M in (7, 8, 9):
        def ctouch():
            A("v_lshlrev_b32 v15, 7, v1")
            A("v_cmp_gt_u32 vcc, 48, v1")
            A("v_mov_b32 v13, 0x7fffffff")
            A("s_lshl_b32 s28, s2, 2")
            A("s_add_u32 s28, s28, s31")
            A("v_cndmask_b32 v15, v13, v15, vcc")
            A("s_mul_i32 s28, s28, 6144")
            A("buffer_load_dword v24, v15, s[12:15], s28 offen")
        if P0M == 7:
            ctouch()
            fill_ring(A, R, SLOT, wdma, 0, 2)
            A("s_barrier"); A("s_barrier")
            fill_ring(A, R, SLOT, wdma, 2, 4)
        elif P0M == 8:
            ctouch()
            A("s_waitcnt vmcnt(0)")
            A("s_barrier")
            fill_ring(A, R, SLOT, wdma, 0, 2)
            A("s_barrier")
            fill_ring(A, R, SLOT, wdma, 2, 4)
        else:
            ctouch()
            A("s_barrier"); A("s_barrier")
            fill_ring(A, R, SLOT, wdma, 0, 4)
    elif P0M == 3:
        fill_ring(A, R, SLOT, wdma, 0, 2)
        A("s_barrier")
        fill_ring(A, R, SLOT, wdma, 2, 4)
        A("s_barrier")

    A.label("p1_common")
    ACC = 64
    def acc(f, i): return ACC + (f * 4 + i) * 4
    SET = [112, 168]
    def xf(p, kk, i): return SET[p] + (kk * 4 + i) * 4
    def wf(p, kk, f): return SET[p] + 32 + (kk * 3 + f) * 4
    srd(A, 8, 6, WS_XN, 4*MB)
    srd(A, 12, 42, 0, 6*MB)
    srd(A, 16, 6, WS_Q, 12*MB)
    A("s_and_b32 s28, s20, 1")
    A("s_lshl_b32 s28, s28, 12")
    A("v_add_u32 v32, s28, v6")
    A("v_lshl_add_u32 v33, v2, 2, v3")
    A("v_lshlrev_b32 v33, 7, v33")
    A("v_lshl_add_u32 v33, v4, 3, v33")
    A("v_add_u32 v33, 16384, v33")
    A("v_bfe_u32 v34, v1, 3, 2")
    A("s_lshr_b32 s28, s20, 1")
    A("s_and_b32 s29, s28, 1")
    A("s_lshl_b32 s29, s29, 1")
    A("s_lshr_b32 s32, s28, 1")
    A("s_lshl_b32 s32, s32, 13")
    A("v_xor_b32 v35, s29, v34")
    A("v_lshl_add_u32 v35, v35, 5, v33")
    A("v_add_u32 v35, s32, v35")
    A("v_xor_b32 v36, 32, v35")
    A("v_xor_b32 v37, s28, v34")
    A("v_lshl_add_u32 v37, v37, 5, v33")
    A("v_add_u32 v37, 16384, v37")
    for i in range(48): A(f"v_mov_b32 {v(ACC+i)}, 0")
    stamp(A, 1, 0)
    wait_flags(A, 0, 21, 16)
    stamp(A, 1, 1)
    def reads(p):
        out = []
        for kk in range(2):
            for f in range(3):
                for t in range(2):
                    out.append([f"ds_read_b64_tr_b16 {v(wf(p,kk,f)+2*t,2)}, {v(17+f)} offset:{kk*4096+t*2048}"])
            for i in range(4):
                out.append([f"ds_read_b128 {v(xf(p,kk,i),4)}, v16 offset:{kk*8192+i*1024}"])
        return out
    def addr_upd():
        return [f"v_add_u32 v16, {s(sRd)}, v32", f"v_add_u32 v17, {s(sRd)}, v35",
                f"v_add_u32 v18, {s(sRd)}, v36", f"v_add_u32 v19, {s(sRd)}, v37"]
    def mfmas(p):
        M = []
        for kk in range(2):
            for f in range(3):
                for i in (range(4) if (f % 2 == 0 or not OPT("SNAKE", 1)) else range(3, -1, -1)):
                    if f < 2: M.append(mf16(acc(f, i), wf(p, kk, f), xf(p, kk, i)))
                    else:     M.append(mf16(acc(f, i), xf(p, kk, i), wf(p, kk, f)))
        return M
    A("s_cmp_ge_u32 s20, 4")
    A("s_cbranch_scc1 qkv_B")
    fill_ring(A, R, SLOT, lambda: xdma(0x40000, QSC), bar=True)
    gemm_loop(A, 1, "qkv_loopA", "A", R, SLOT, NST, 4, mfmas, reads, lambda: xdma(0x40000, QSC), addr_upd,
              {4: code_touch_list(A, "qkv_epi", 251, 252), ('x', 3): 1, ('x', 2): 1} if OPT("CTQ", 1) else None)
    A("s_branch qkv_epi")
    A.label("qkv_B")
    fill_ring(A, R, SLOT, None, bar=True)
    gemm_loop(A, 1, "qkv_loopB", "B", R, SLOT, NST, 6, mfmas, reads, wdma, addr_upd)
    A.label("qkv_epi")
    A(f"s_load_dwordx2 s[40:41], s[0:1], {KA_WO}")
    A(f"s_load_dwordx4 s[44:47], s[0:1], {KA_WG}")
    A(f"s_load_dwordx2 s[42:43], s[0:1], {KA_WD}")
    A("v_lshlrev_b32 v9, 9, v2")
    A("v_lshrrev_b32 v7, 3, v5")
    A("v_lshl_add_u32 v7, v7, 8, v9")
    A("v_and_b32 v8, 7, v5")
    A("v_lshl_add_u32 v7, v8, 4, v7")
    A("v_lshl_add_u32 v8, v5, 4, v9")
    A("s_lshr_b32 s28, s20, 1")
    A("s_and_b32 s29, s28, 1")
    A("s_lshr_b32 s32, s28, 1")
    A("s_and_b32 s33, s20, 1")
    A("s_lshl_b32 s34, s21, 2")
    A("s_lshl_b32 s33, s33, 1")
    A("s_add_u32 s34, s34, s33")
    A("s_lshl_b32 s34, s34, 11")
    A("s_lshl_b32 s35, s22, 1")
    A("s_add_u32 s36, s35, s29")
    A("s_lshl_b32 s36, s36, 17")
    A("s_add_u32 s36, s36, s34")
    A("s_lshl_b32 s37, s32, 22")
    A("s_add_u32 s36, s36, s37")
    A("s_add_u32 s38, s35, s32")
    A("s_lshl_b32 s38, s38, 17")
    A("s_add_u32 s38, s38, s34")
    A("s_lshl_b32 s37, s29, 8")
    A("s_add_u32 s38, s38, s37")
    A(f"s_add_u32 s38, s38, {8*MB}")
    A("s_cmp_eq_u32 s32, 0")
    A(f"s_cselect_b32 s39, {f32(QSCALE)}, 1.0")
    A("v_mov_b32 v20, s39")
    A("v_mov_b32 v21, s39")
    T = 128
    for pr in range(2):
        for ii in range(2):
            for h in range(2):
                A(f"v_cvt_pk_bf16_f32 {v(T+4*pr+2*ii+h)}, {v(acc(2,2*pr+ii)+2*h)}, {v(acc(2,2*pr+ii)+2*h+1)}")
        A(f"buffer_store_dwordx4 {v(T+4*pr,4)}, v8, s[16:19], s38 offen offset:{pr*2048}{STF}")
    T = 112
    for i in range(4):
        for f in range(2):
            for h in range(2):
                if OPT("NOPK", 1):
                    A(f"v_mul_f32 {v(acc(f,i)+2*h)}, {v(acc(f,i)+2*h)}, v20")
                    A(f"v_mul_f32 {v(acc(f,i)+2*h+1)}, {v(acc(f,i)+2*h+1)}, v20")
                else:
                    A(f"v_pk_mul_f32 {v(acc(f,i)+2*h,2)}, {v(acc(f,i)+2*h,2)}, v[20:21]")
        for f in range(2):
            for h in range(2):
                A(f"v_cvt_pk_bf16_f32 {v(T+4*i+2*f+h)}, {v(acc(f,i)+2*h)}, {v(acc(f,i)+2*h+1)}")
        A(f"buffer_store_dwordx4 {v(T+4*i,4)}, v7, s[16:19], s36 offen offset:{(i>>1)*2048+(i&1)*128}{STF}")
    pub_prep(A, 1, 22, 21)
    A("s_waitcnt lgkmcnt(0)")

def ph_attn(A):
    R, SLOT = 3, 32768
    WL = R * SLOT
    Q, NEGM, S0, S1, P, KF, VF, O, L, ONES = 8, 32, 48, 64, 80, 88, 96, 104, 120, 124
    S_ = [S0, S1]
    A("s_and_b32 s21, s2, 7")
    A("s_lshl_b32 s21, s21, 2")
    A("s_bfe_u32 s28, s2, 0x20003")
    A("s_add_u32 s21, s21, s28")
    A("s_lshr_b32 s22, s2, 5")
    A("s_lshr_b32 s32, s2, 1")
    A("s_and_b32 s33, s2, 1")
    sCo, sCM = 26, 29
    A("s_cmp_ge_u32 s32, 56")
    A("s_cselect_b32 s48, s46, s44")
    A("s_cselect_b32 s49, s47, s45")
    A("s_cselect_b32 s34, 56, 0")
    A("s_sub_u32 s34, s32, s34")
    A("s_mov_b32 s51, 0x20000")
    A("s_lshl_b32 s34, s34, 7")
    A(f"s_mul_i32 s35, s33, {512*7168}")
    A("s_add_u32 s34, s34, s35")
    A(f"s_add_u32 s35, s35, {512*7168}")
    A("s_cmp_lt_u32 s2, 224")
    A("s_cselect_b32 s50, s35, 0")
    A(f"s_mul_i32 s35, s31, {16*7168}")
    A(f"s_add_u32 {s(sCo)}, s34, s35")
    w_swz_voff(A, 7, 7168)
    A(f"v_add_u32 v129, {8*7168-1024}, v7")
    srd(A, 52, 40, 0, 2*MB)
    srd(A, 44, 42, 0, 7*MB)
    A("s_lshl_b32 s35, s2, 2")
    A("s_add_u32 s35, s35, s31")
    A("v_lshlrev_b32 v8, 7, v1")
    A("v_mov_b32 v9, 0x7fffffff")
    A("s_lshl_b32 s34, s35, 11")
    A("v_add_u32 v130, s34, v8")
    A("v_cmp_gt_u32 vcc, 16, v1")
    A("s_lshl_b32 s60, s35, 10")
    A("s_nop 0")
    A("v_cndmask_b32 v130, v9, v130, vcc")
    A("s_and_b32 s34, s35, 1")
    A("s_lshl_b32 s34, s34, 3")
    A("v_lshrrev_b32 v8, 3, v1")
    A("v_add_u32 v8, s34, v8")
    A(f"v_mul_u32_u24 v8, {3584*128}, v8")
    A("s_bfe_u32 s34, s35, 0x20002")
    A("s_lshl_b32 s34, s34, 1")
    A("v_and_b32 v9, 7, v1")
    A("v_xor_b32 v9, s34, v9")
    A("v_lshl_add_u32 v131, v9, 4, v8")
    A("s_lshr_b32 s61, s35, 1")
    A("s_lshl_b32 s61, s61, 7")
    A(f"s_sub_u32 s61, s61, {512*128}")
    CP = 140
    def cp_load():
        return [f"buffer_load_dwordx4 {v(CP,4)}, v6, s[44:47], s60 offen", f"s_add_u32 s60, s60, {MB}"]
    def cp_store():
        return [f"s_cmp_lt_u32 s61, {3584*128}", f"s_cselect_b32 s58, {7*MB}, 0",
                f"buffer_store_dwordx4 {v(CP,4)}, v131, s[56:59], s61 offen{STF}", f"s_add_u32 s61, s61, {512*128}"]
    def cs_dma(j):
        if j == 0:
            return [f"s_mov_b32 m0, {s(sCM)}", f"s_add_u32 {s(sCM)}, {s(sCM)}, 8192",
                    f"buffer_load_dwordx4 v7, s[48:51], {s(sCo)} offen lds"]
        return [f"buffer_load_dwordx4 v129, s[48:51], {s(sCo)} offen offset:1024 lds",
                f"s_add_u32 {s(sCo)}, {s(sCo)}, {64*7168}"]
    A("s_lshl_b32 s28, s21, 17")
    A("s_add_u32 s4, s6, s28")
    A("s_addc_u32 s5, s7, 0")
    srd(A, 8, 4, WS_K, 131072)
    srd(A, 12, 4, WS_VT, 131072)
    srd(A, 16, 4, WS_Q, 131072)
    srd(A, 36, 6, WS_O, 4*MB)
    A(f"s_lshl_b32 {s(sGo)}, s31, 12")
    A(f"s_lshl_b32 {s(sM)}, s31, 12")
    A("v_lshrrev_b32 v16, 2, v1")
    A("v_xor_b32 v16, v16, v2")
    A("v_and_b32 v16, 1, v16")
    A("v_cmp_eq_u32 vcc, 0, v16")
    A("v_mov_b32 v17, 0x3f803f80")
    A("s_nop 1")
    for i in range(4): A(f"v_cndmask_b32 {v(ONES+i)}, 0, v17, vcc")
    for i in range(16): A(f"v_mov_b32 {v(O+i)}, 0")
    for i in range(4): A(f"v_mov_b32 {v(L+i)}, 0")
    for i in range(4): A(f"v_mov_b32 {v(P+4+i)}, 0")
    for i in range(4): A(f"v_mov_b32 {v(VF+4+i)}, 0")
    A("v_mov_b32 v16, v6")
    A(f"v_add_u32 v17, {SLOT}, v6")
    A(f"s_mov_b32 {s(sRd)}, {SLOT}")
    A("s_lshr_b32 s34, s21, 1")
    A("s_lshl_b32 s35, s22, 3")
    A("s_add_u32 s35, s35, s20")
    A("s_lshl_b32 s35, s35, 11")
    if not OPT("PUBFIRST", 1):
        A("s_waitcnt vmcnt(0)")
        stamp(A, 1, 4)
    publish(A)
    stamp(A, 2, 0)
    wait_flags(A, 1, 34, 16)
    stamp(A, 2, 1)
    def kv(j):
        o = []
        if j % 4 == 0: o = [f"s_add_u32 m0, {s(sWr)}, {16384 if j >= 4 else 0}", "s_nop 0"]
        o += [f"buffer_load_dwordx4 v6, {'s[8:11]' if j < 4 else 's[12:15]'}, {s(sGo)} offen offset:{(j&3)*1024}{LDF} lds"]
        if j == 7:
            o += [f"s_add_u32 {s(sGo)}, {s(sGo)}, 16384",
                  f"s_add_u32 {s(sWr)}, {s(sWr)}, {SLOT}",
                  f"s_cmp_ge_u32 {s(sWr)}, {SLOT*R}",
                  f"s_cselect_b32 {s(sWr)}, {s(sM)}, {s(sWr)}"]
        return o
    srd(A, 56, 6, WS_WD, 7*MB)
    if OPT("NOSIDE", 0):
        A("s_mov_b32 s50, 0"); A("s_mov_b32 s46, 0"); A("s_mov_b32 s54, 0"); A("s_mov_b32 s61, 0x10000000")
    A(f"s_mov_b32 {s(sWr)}, {s(sM)}")
    A(f"s_lshl_b32 {s(sCM)}, s31, 11")
    A(f"s_add_u32 {s(sCM)}, {s(sCM)}, {WL}")
    def kread(t, j, dst=None):
        a_ = 16 if t < 8 else 17
        return f"ds_read_b128 {v(KF+4*j if dst is None else dst,4)}, {v(a_)} offset:{(t%8)*2048+j*1024}"
    def vread(t, j):
        a_ = 16 if t < 8 else 17
        return f"ds_read_b128 {v(VF+4*j,4)}, {v(a_)} offset:{16384+(t%8)*2048+j*1024}"
    qld = [f"buffer_load_dwordx4 {v(Q,4)}, v6, s[16:19], s35 offen{LDF}",
           f"buffer_load_dwordx4 {v(Q+4,4)}, v6, s[16:19], s35 offen offset:1024{LDF}"]
    if OPT("ATQ", 0):
        A("s_cmp_eq_u32 s20, 0")
        A("s_cbranch_scc1 at_W0")
        emit(A, qld)
        A("s_cmp_ge_u32 s20, 4")
        A("s_cbranch_scc1 at_B0")
        for j in range(4): emit(A, kv(j))
        A("s_waitcnt vmcnt(4)")
        A("s_branch at_C0")
        A.label("at_B0")
        for j in range(4, 7): emit(A, kv(j))
        emit(A, kv(7)[:1])
        A("s_waitcnt vmcnt(4)")
        A("s_branch at_C0")
        A.label("at_W0")
        for j in range(4): emit(A, kv(j))
        emit(A, qld)
        A("s_waitcnt vmcnt(0)")
        A.label("at_C0")
        emit(A, kv(7)[1:])
        A("s_barrier")
        stamp(A, 2, 2); cyc(A, 2, 0)
        A(kread(0, 0, S1)); A(kread(0, 1, S1+4))
        A(kread(1, 0)); A(kread(1, 1))
        A("s_waitcnt lgkmcnt(2)")
    else:
        A("s_cmp_ge_u32 s20, 4")
        A("s_cbranch_scc1 at_B0")
        for j in range(4): emit(A, kv(j))
        A("s_branch at_C0")
        A.label("at_B0")
        for j in range(4, 7): emit(A, kv(j))
        emit(A, kv(7)[:1])
        A.label("at_C0")
        A(f"buffer_load_dwordx4 {v(Q,4)}, v6, s[16:19], s35 offen{LDF}")
        A(f"buffer_load_dwordx4 {v(Q+4,4)}, v6, s[16:19], s35 offen offset:1024{LDF}")
        emit(A, kv(7)[1:])
        A("s_waitcnt vmcnt(0)")
        A("s_barrier")
        stamp(A, 2, 2); cyc(A, 2, 0)
        def kread(t, j, dst=None):
            a_ = 16 if t < 8 else 17
            return f"ds_read_b128 {v(KF+4*j if dst is None else dst,4)}, {v(a_)} offset:{(t%8)*2048+j*1024}"
        def vread(t, j):
            a_ = 16 if t < 8 else 17
            return f"ds_read_b128 {v(VF+4*j,4)}, {v(a_)} offset:{16384+(t%8)*2048+j*1024}"
        A(kread(0, 0, S1)); A(kread(0, 1, S1+4))
        A(kread(1, 0)); A(kread(1, 1)); A(vread(0, 0))
        A("s_cmp_ge_u32 s20, 4")
        A("s_cbranch_scc1 at_C1")
        for j in range(4): emit(A, kv(j))
        A("buffer_load_dword v128, v130, s[52:55], 0 offen")
        emit(A, cs_dma(0)); emit(A, cs_dma(1))
        if OPT("CT", 0) >= 2:
            A("s_branch at_C2")
        A.label("at_C1")
        if OPT("CT", 0) >= 2:
            code_touch(A, 128)
            srd(A, 56, 6, WS_WD, 7*MB)
            A.label("at_C2")
        A("s_waitcnt lgkmcnt(3)")
    A(mf32(S0, S1, Q, "0"))
    A(mf32(S0, S1+4, Q+4))
    A("s_nop 15")
    A("s_nop 3")
    A(f"v_max3_f32 v18, {v(S0)}, {v(S0+1)}, {v(S0+2)}")
    for i in range(3, 15, 2): A(f"v_max3_f32 v18, v18, {v(S0+i)}, {v(S0+i+1)}")
    A(f"v_max_f32 v18, v18, {v(S0+15)}")
    A("v_mov_b32 v19, v18")
    A("s_nop 1")
    A("v_permlane32_swap_b32 v19, v18")
    A("s_nop 1")
    A("v_max_f32 v18, v18, v19")
    for i in range(16): A(f"v_sub_f32 {v(NEGM+i)}, 0, v18")
    for i in range(16): A(f"v_sub_f32 {v(S0+i)}, {v(S0+i)}, v18")
    A(f"s_mov_b32 {s(sCnt)}, 8")
    if OPT("ATQ", 0):
        A("s_waitcnt vmcnt(0)")
        A("s_barrier")
        A(vread(0, 0))
        A("s_cmp_ge_u32 s20, 4")
        A("s_cbranch_scc1 at_C1")
        for j in range(4): emit(A, kv(j))
        A("buffer_load_dword v128, v130, s[52:55], 0 offen")
        emit(A, cs_dma(0)); emit(A, cs_dma(1))
        A.label("at_C1")
    else:
        A("s_waitcnt lgkmcnt(0)")
    def cs_p1(CSW):
        A("v_lshrrev_b32 v18, 2, v1")
        A("v_lshlrev_b32 v18, 7, v18")
        A("v_lshl_add_u32 v18, v4, 3, v18")
        A("v_bfe_u32 v19, v1, 3, 2")
        A("v_xor_b32 v19, s31, v19")
        A("v_lshl_add_u32 v18, v19, 5, v18")
        A("s_lshr_b32 s29, s20, 2")
        A("s_lshl_b32 s34, s29, 15")
        A(f"s_add_u32 s34, s34, {WL}")
        A("v_add_u32 v18, s34, v18")
        for ks in range(8):
            for t in range(2):
                A(f"ds_read_b64_tr_b16 {v(CSW+4*ks+2*t,2)}, v18 offset:{ks*4096+t*2048}")
        for i in range(4): A(f"v_mov_b32 {v(132+i)}, 0x3f803f80")
    def cs_p2(CSW):
        A("s_waitcnt lgkmcnt(0)")
        for ks in range(8):
            A(mf16(136, CSW+4*ks, 132, "0" if ks == 0 else None))
    def cs_p3(srdr):
        srd(A, srdr, 6, WS_CS, 4*7168*4)
        A("s_lshl_b32 s33, s33, 1")
        A("s_add_u32 s33, s33, s29")
        A(f"s_mul_i32 s33, s33, {7168*4}")
        A("s_lshl_b32 s34, s32, 8")
        A("s_add_u32 s33, s33, s34")
        A("s_lshl_b32 s34, s31, 6")
        A("s_add_u32 s33, s33, s34")
        A("v_cmp_ne_u32 vcc, 0, v5")
        A("v_mov_b32 v19, 0x7fffffff")
        A("s_cmp_lt_u32 s2, 224")
        A(f"s_cselect_b32 {s(srdr+2)}, {4*7168*4}, 0")
        A("v_cndmask_b32 v19, v1, v19, vcc")
        A(f"buffer_store_dwordx4 v[136:139], v19, {s(srdr,4)}, s33 offen{STF}")
    def loop(role):
        A.raw(".p2align 6")
        A.label(f"attn_loop{role}")
        for t in range(8):
            c, n = S_[t % 2], S_[1 - t % 2]
            E = lambda i: f"v_exp_f32 {v(c+i)}, {v(c+i)}"
            C = lambda i: f"v_cvt_pk_bf16_f32 {v(P+i)}, {v(c+2*i)}, {v(c+2*i+1)}"
            X = {6: (kv(0), kv(1)), 7: (kv(2), kv(3)), 0: (kv(4), kv(5)), 1: (kv(6), kv(7)),
                 2: (["s_waitcnt vmcnt(10)"] + cp_store(), cp_load()), 3: (cs_dma(0), cs_dma(1)), 4: ([], []), 5: ([], [])}[t]
            if role == "B":
                X = ([], [])
                if OPT("WOL2", 0) and t == 7:
                    X = ([f"s_cmp_lg_u32 {s(sCnt)}, {OPT('WOL2', 0)}", "s_cbranch_scc1 at_nt", "buffer_load_dword v251, v252, s[52:55], s60 offen", "at_nt:"], [])
                if OPT("CTA", 0) and t == 7: X = (["buffer_load_dword v251, v252, s[56:59], s60 offen"], [])
            FAIR = OPT("FAIR", 0)
            if t == 6:
                if role == "A": A("s_waitcnt vmcnt(4)")
                A("s_barrier")
            elif FAIR == 1 and t == 2:
                A("s_barrier")
            elif FAIR == 2 and t % 2 == 0:
                A("s_barrier")
            if FAIR == 1: A(f"s_setprio {3 - (t + 2) % 4}")
            if FAIR == 3 and t % 2 == 0: A(f"s_setprio {3 - ((t + 2) % 8) // 2}")
            A("s_waitcnt lgkmcnt(2)")
            A(mf32(n, KF, Q, v(NEGM, 16)))
            A(kread(t + 2, 0))
            emit(A, [E(0), E(1), E(2)])
            A(mf32(O, VF+4, P+4))
            A(vread(t, 1))
            emit(A, X[0])
            emit(A, [E(3), E(4), E(5), E(6)])
            A("s_waitcnt lgkmcnt(2)")
            A(mf32(n, KF+4, Q+4))
            A(kread(t + 2, 1))
            emit(A, [E(7), C(0), C(1), C(2), C(3), E(8)])
            A(mf16(L, ONES, P+4))
            emit(A, [E(9), E(10)])
            A(mf32(O, VF, P))
            A(vread(t + 1, 0))
            emit(A, X[1])
            emit(A, [E(11), E(12), E(13), E(14)])
            A(mf16(L, ONES, P))
            if t == 7:
                A(f"s_add_u32 {s(sRd)}, {s(sRd)}, {SLOT}")
                A(f"s_cmp_eq_u32 {s(sRd)}, {SLOT*R}")
                A(f"s_cselect_b32 {s(sRd)}, 0, {s(sRd)}")
                A("v_mov_b32 v16, v17")
                A(f"v_add_u32 v17, {s(sRd)}, v6")
                A(f"s_sub_u32 {s(sCnt)}, {s(sCnt)}, 1")
                A(f"s_cmp_lg_u32 {s(sCnt)}, 0")
            emit(A, [E(15), C(4), C(5), C(6), C(7)])
        A(f"s_cbranch_scc1 attn_loop{role}")
    A("s_cmp_ge_u32 s20, 4")
    A("s_cbranch_scc1 attn_preB")
    loop("A")
    A("s_branch attn_post")
    A.label("attn_preB")
    if OPT("WOL2", 0):
        A("v_lshrrev_b32 v252, 3, v1")
        A("v_lshlrev_b32 v252, 11, v252")
        A("v_and_b32 v251, 7, v1")
        A("v_lshl_add_u32 v252, v251, 7, v252")
        A("s_lshr_b32 s60, s2, 3")
        A("s_lshl_b32 s60, s60, 2")
        A("s_add_u32 s60, s60, s31")
        A("s_lshl_b32 s60, s60, 14")
        A("s_bfe_u32 s28, s2, 0x10002")
        A("s_lshl_b32 s28, s28, 10")
        A("s_add_u32 s60, s60, s28")
    if OPT("CSPF", 0):
        A(f"s_load_dwordx4 s[52:55], s[0:1], {KA_WG}")
        A("v_lshlrev_b32 v18, 7, v1")
        A("v_cmp_gt_u32 vcc, 56, v1")
        A("v_mov_b32 v19, 0x7fffffff")
        A("s_lshl_b32 s28, s2, 2")
        A("s_add_u32 s28, s28, s31")
        A("v_cndmask_b32 v18, v19, v18, vcc")
        A("s_mul_i32 s28, s28, 7168")
        A("s_waitcnt lgkmcnt(0)")
        srd(A, 56, 54, 0, 7*MB)
        srd(A, 52, 52, 0, 7*MB)
        A("buffer_load_dword v250, v18, s[52:55], s28 offen")
        A("buffer_load_dword v251, v18, s[56:59], s28 offen")
    if OPT("CTA", 0):
        emit(A, code_touch_list(A, "attn_post", 251, 252)[:-1])
        A("s_mov_b32 s60, s28")
    loop("B")
    A.label("attn_post")
    if OPT("FAIR", 0): A("s_setprio 0")
    A("s_waitcnt lgkmcnt(0)")
    A("s_nop 0")
    A(mf32(O, VF+4, P+4))
    A(mf16(L, ONES, P+4))
    cyc(A, 2, 1); stamp(A, 2, 3)
    if OPT("CSA", 1):
        A("s_nop 10")
        A(f"v_add_f32 v18, |{v(O)}|, {v(L)}")
        for i in range(1, 16): A(f"v_add_f32 v18, |{v(O+i)}|, v18")
        A(f"v_mov_b32 v19, {f32(2.0**120)}")
        A("v_cmp_nlt_f32 vcc, v18, v19")
        A("s_nop 1")
        A("s_cmp_eq_u64 vcc, 0")
        A("s_cbranch_scc0 attn_slow")
    else:
        A("s_waitcnt vmcnt(0)")
        A("s_barrier")
        cs_p1(S0)
        A(f"v_add_f32 v18, |{v(O)}|, {v(L)}")
        for i in range(1, 16): A(f"v_add_f32 v18, |{v(O+i)}|, v18")
        A(f"v_mov_b32 v19, {f32(2.0**120)}")
        A("v_cmp_nlt_f32 vcc, v18, v19")
        cs_p2(S0)
        A("s_cmp_eq_u64 vcc, 0")
        A("s_cbranch_scc0 attn_slow")
    A.label("attn_fin")
    A(f"s_load_dwordx2 s[44:45], s[0:1], {KA_X}")
    A(f"v_rcp_f32 v18, {v(L)}")
    A("s_nop 0")
    for i in range(16): A(f"v_mul_f32 {v(O+i)}, {v(O+i)}, v18")
    for pc in range(2):
        for hh in range(2):
            run = pc + 2 * hh
            for j in range(2):
                A(f"v_cvt_pk_bf16_f32 {v(P+4*pc+2*hh+j)}, {v(O+4*run+2*j)}, {v(O+4*run+2*j+1)}")
    A("v_bfe_u32 v18, v1, 3, 1")
    A("v_lshlrev_b32 v18, 10, v18")
    A("v_bfe_u32 v19, v1, 4, 1")
    A("v_lshl_add_u32 v18, v19, 7, v18")
    A("v_and_b32 v19, 7, v1")
    A("v_lshl_add_u32 v18, v19, 4, v18")
    A("v_lshrrev_b32 v19, 5, v1")
    A("v_lshl_add_u32 v18, v19, 8, v18")
    A("s_lshl_b32 s28, s21, 17")
    A("s_add_u32 s28, s28, s35")
    A(f"buffer_store_dwordx4 {v(P,4)}, v18, s[36:39], s28 offen{STF}")
    A(f"buffer_store_dwordx4 {v(P+4,4)}, v18, s[36:39], s28 offen offset:512{STF}")
    if OPT("CSA", 1):
        A("s_cmp_ge_u32 s20, 4")
        A("s_cbranch_scc1 attn_nocs")
        A("v_lshrrev_b32 v18, 2, v1")
        A("v_lshlrev_b32 v18, 7, v18")
        A("v_lshl_add_u32 v18, v4, 3, v18")
        A("v_bfe_u32 v19, v1, 3, 2")
        A("v_xor_b32 v19, s31, v19")
        A("v_lshl_add_u32 v18, v19, 5, v18")
        A(f"v_add_u32 v18, {WL}, v18")
        for ks in range(16):
            for t in range(2):
                A(f"ds_read_b64_tr_b16 {v(144+4*ks+2*t,2)}, v18 offset:{ks*4096+t*2048}")
        for i in range(4): A(f"v_mov_b32 {v(132+i)}, 0x3f803f80")
        srd(A, 48, 6, WS_CS, 4*7168*4)
        A(f"s_mul_i32 s33, s33, {2*7168*4}")
        A("s_lshl_b32 s34, s32, 8")
        A("s_add_u32 s33, s33, s34")
        A("s_lshl_b32 s34, s31, 6")
        A("s_add_u32 s33, s33, s34")
        A(f"s_add_u32 s34, s33, {7168*4}")
        A("v_cmp_ne_u32 vcc, 0, v5")
        A("v_mov_b32 v19, 0x7fffffff")
        A("s_cmp_lt_u32 s2, 224")
        A(f"s_cselect_b32 s50, {4*7168*4}, 0")
        A("v_cndmask_b32 v19, v1, v19, vcc")
        A("s_waitcnt lgkmcnt(0)")
        for ks in range(8):
            for hh in range(2):
                A(mf16(136 + 72*hh, 144 + 4*(8*hh+ks), 132, "0" if ks == 0 else None))
        A("s_nop 7")
        A(f"buffer_store_dwordx4 v[136:139], v19, s[48:51], s33 offen{STF}")
        A(f"buffer_store_dwordx4 v[208:211], v19, s[48:51], s34 offen{STF}")
        A.label("attn_nocs")
    else:
        cs_p3(48)
    pub_prep(A, 2, 22, 21)
    A("s_waitcnt lgkmcnt(0)")
    def slow():
        A.label("attn_slow")
        A("v_mov_b32 v18, 0xff800000")
        A("s_mov_b32 s28, 0")
        A.label("attn_slow1")
        A(f"buffer_load_dwordx4 {v(KF,4)}, v6, s[8:11], s28 offen{LDF}")
        A(f"buffer_load_dwordx4 {v(KF+4,4)}, v6, s[8:11], s28 offen offset:1024{LDF}")
        A("s_waitcnt vmcnt(0)")
        A("s_nop 15")
        A(mf32(S0, KF, Q, "0"))
        A(mf32(S0, KF+4, Q+4))
        A("s_nop 15")
        A("s_nop 3")
        for i in range(0, 16, 2): A(f"v_max3_f32 v18, v18, {v(S0+i)}, {v(S0+i+1)}")
        A("s_add_u32 s28, s28, 2048")
        A("s_cmp_lt_u32 s28, 131072")
        A("s_cbranch_scc1 attn_slow1")
        A("v_mov_b32 v19, v18")
        A("s_nop 1")
        A("v_permlane32_swap_b32 v19, v18")
        A("s_nop 1")
        A("v_max_f32 v18, v18, v19")
        for i in range(16): A(f"v_sub_f32 {v(NEGM+i)}, 0, v18")
        for i in range(16): A(f"v_mov_b32 {v(O+i)}, 0")
        for i in range(4): A(f"v_mov_b32 {v(L+i)}, 0")
        A("s_mov_b32 s28, 0")
        A.label("attn_slow2")
        A(f"buffer_load_dwordx4 {v(KF,4)}, v6, s[8:11], s28 offen{LDF}")
        A(f"buffer_load_dwordx4 {v(KF+4,4)}, v6, s[8:11], s28 offen offset:1024{LDF}")
        A(f"buffer_load_dwordx4 {v(VF,4)}, v6, s[12:15], s28 offen{LDF}")
        A(f"buffer_load_dwordx4 {v(VF+4,4)}, v6, s[12:15], s28 offen offset:1024{LDF}")
        A("s_waitcnt vmcnt(0)")
        A(mf32(S0, KF, Q, v(NEGM, 16)))
        A(mf32(S0, KF+4, Q+4))
        A("s_nop 15")
        A("s_nop 3")
        for i in range(16): A(f"v_exp_f32 {v(S0+i)}, {v(S0+i)}")
        A("s_nop 0")
        for i in range(8): A(f"v_cvt_pk_bf16_f32 {v(P+i)}, {v(S0+2*i)}, {v(S0+2*i+1)}")
        A("s_nop 1")
        A(mf32(O, VF, P))
        A(mf32(O, VF+4, P+4))
        A(mf16(L, ONES, P))
        A(mf16(L, ONES, P+4))
        A("s_nop 15")
        A("s_add_u32 s28, s28, 2048")
        A("s_cmp_lt_u32 s28, 131072")
        A("s_cbranch_scc1 attn_slow2")
        A("s_nop 15")
        A("s_branch attn_fin")
    return slow

HEADER = open("sequential_preLN__mha_block__glu_gated_glu__prompt.s.ref").read().split("; Override launch")[0]

def build(path):
    from mk2 import ph_proj, ph_gu, ph_down2, ph_down3
    A = Asm()
    A.raw(f".globl {NAME}"); A.raw(".p2align 8"); A.raw(f".type {NAME},@function"); A.label(NAME)
    A("s_cmp_ge_u32 s2, 256")
    A("s_cbranch_scc1 the_end")
    if OPT("RAW", 0):
        from mk3 import ph_qkv_raw
        hooks = ph_qkv_raw(A)
    else:
        ph_ln_qkv(A); hooks = None
    slow = ph_attn(A)
    ph_proj(A, 3, True)
    ph_gu(A)
    if OPT("SPLITK", 1) == 2: ph_down3(A)
    elif OPT("SPLITK", 1) == 1: ph_down2(A)
    else: ph_proj(A, 5, False)
    stamp_flush(A)
    A.label("the_end")
    A("s_endpgm")
    slow()
    A.label("code_end")
    out = HEADER
    out += "; @launch grid=(256,1,1) block=(512,1,1) lds=163840\n"
    out += '.amdgcn_target "amdgcn-amd-amdhsa--gfx950"\n.text\n'
    out += A.text()
    out += '.section .rodata,"a"\n'
    out += kernel_desc(NAME, 256, 102 if PROF else 64)
    open(path, "w").write(out)

if __name__ == "__main__":
    build(sys.argv[1] if len(sys.argv) > 1 else "sequential_preLN__mha_block__glu_gated_glu__prompt.s")
```

```python
from mk import *

class L(list):
    def __call__(self, x): self.append(x)
def gu_wdma(slot=None):
    m0 = f"s_add_u32 m0, {s(sWr)}, {s(sM)}" if slot is None else f"s_add_u32 m0, {s(sM)}, {slot*30720}"
    return [[m0, "s_mov_b64 exec, s[60:61]",
             f"buffer_load_dwordx4 v7, s[12:15], {s(sGo)} offen lds",
             f"buffer_load_dwordx4 v8, s[12:15], {s(sGo)} offen offset:896 lds",
             f"s_add_u32 m0, m0, 7168", "s_nop 0",
             f"buffer_load_dwordx4 v7, s[40:43], {s(sGo)} offen lds",
             f"buffer_load_dwordx4 v8, s[40:43], {s(sGo)} offen offset:896 lds",
             "s_mov_b64 exec, -1",
             f"s_add_u32 {s(sGo)}, {s(sGo)}, {32*7168}"]]
def gu_wsetup():
    A = L()
    srd(A, 12, 44, 0, 7*MB)
    srd(A, 40, 46, 0, 7*MB)
    A("v_mul_u32_u24 v7, 4682, v1")
    A("v_lshrrev_b32 v7, 16, v7")
    A("v_mul_u32_u24 v8, 14, v7")
    A("v_sub_u32 v8, v1, v8")
    A("v_mul_u32_u24 v7, 7168, v7")
    A("v_lshl_add_u32 v7, v8, 4, v7")
    A(f"v_add_u32 v8, {4*7168-896}, v7")
    A("s_mov_b32 s60, -1")
    A("s_mov_b32 s61, 0x00ffffff")
    A("s_bfe_u32 s29, s2, 0x20001")
    A("s_lshl_b32 s29, s29, 3")
    A("s_lshr_b32 s28, s2, 5")
    A("s_add_u32 s29, s29, s28")
    A(f"s_mul_i32 s28, s31, {8*7168}")
    A("s_mul_i32 s29, s29, 224")
    A(f"s_add_u32 {s(sGo)}, s28, s29")
    A(f"s_mul_i32 {s(sM)}, s31, 1792")
    A(f"s_add_u32 {s(sM)}, {s(sM)}, 16384")
    return list(A)

def ph_proj(A, ph, is_wo):
    name = "wo" if is_wo else "dn"
    K = 1024 if is_wo else 3584
    ws_x = WS_O if is_wo else WS_HACT
    wp = 40 if is_wo else 42
    R, SLOT, NST = 6, 24576, K // 64
    STATS_LDS = 153600
    if OPT("PAR", 0):
        A("s_and_b32 s21, s2, 1")
        A("s_lshl_b32 s21, s21, 3")
        A("s_and_b32 s28, s2, 2")
        A("s_lshl_b32 s28, s28, 1")
        A("s_add_u32 s21, s21, s28")
    else:
        A("s_and_b32 s21, s2, 3")
        A("s_lshl_b32 s21, s21, 2")
    A("s_bfe_u32 s28, s2, 0x20003")
    A("s_add_u32 s21, s21, s28")
    A("s_bfe_u32 s22, s2, 0x10002")
    A("s_lshl_b32 s22, s22, 3")
    A("s_lshr_b32 s28, s2, 5")
    A("s_add_u32 s22, s22, s28")
    PSC = OPT("WSC", 0) if is_wo else OPT("DSC", 4)
    PG = min(4, OPT("PG", 4))
    if PSC:
        A("s_add_u32 s39, s21, s22")
        A(f"s_and_b32 s39, s39, {PG-1}")
        A(f"s_mul_i32 s39, s39, {PSC//PG}")
    def wdma():
        if not is_wo:
            return [[f"s_add_u32 m0, {s(sWr)}, {s(sM)}", "s_nop 0",
                     f"buffer_load_dwordx4 v6, s[12:15], {s(sGo)} offen{LDF} lds"],
                    [f"buffer_load_dwordx4 v6, s[12:15], {s(sGo)} offen offset:1024{LDF} lds",
                     ] + adv(8192, PSC)]
        return [[f"s_add_u32 m0, {s(sWr)}, {s(sM)}", "s_nop 0",
                 f"buffer_load_dwordx4 v7, s[12:15], {s(sGo)} offen lds"],
                [f"buffer_load_dwordx4 v8, s[12:15], {s(sGo)} offen offset:1024 lds",
                 ] + adv(64*2048, PSC)]
    DX = 0x40000
    EZ = OPT("EZ", 0) and is_wo
    ACC = 152 if EZ else 32
    def acc(f, i): return ACC + (i * 2 + f) * 4
    SET = [168, 200] if EZ else [48, 80]
    def xf(p, kk, i): return SET[p] + (kk * 2 + i) * 4
    def wf(p, kk, f): return SET[p] + 16 + (kk * 2 + f) * 4
    RES = 240
    NRES = 4 if is_wo else 2
    A("s_lshr_b32 s33, s20, 2")
    A("s_lshl_b32 s34, s22, 1")
    A("s_add_u32 s34, s34, s33")
    A("s_lshl_b32 s34, s34, 7")
    A("s_lshl_b32 s35, s21, 3")
    A("s_add_u32 s34, s34, s35")
    A("s_lshl_b32 s35, s31, 1")
    A("s_add_u32 s34, s34, s35")
    A("s_lshl_b32 s34, s34, 10")
    A("s_lshl_b32 s35, s21, 18")
    A("s_lshl_b32 s36, s31, 16")
    A("s_add_u32 s35, s35, s36")
    A("s_lshl_b32 s36, s22, 7")
    A("s_add_u32 s35, s35, s36")
    A("s_lshl_b32 s36, s33, 6")
    A("s_add_u32 s35, s35, s36")
    A("s_add_u32 s36, s35, 32768")
    srd(A, 16, 6, WS_H, 4*MB)
    srd(A, 48, 44, 0, 4*MB)
    if is_wo:
        srd(A, 12, wp, 0, K*2048)
    else:
        A(f"s_mul_i32 s28, s22, {3584*128}")
        A("s_add_u32 s4, s6, s28")
        A("s_addc_u32 s5, s7, 0")
        srd(A, 12, 4, WS_WD, 3584*128)
    srd(A, 8, 6, ws_x, 2048*K*2)
    if is_wo: A(f"s_load_dwordx4 s[44:47], s[0:1], {KA_WG}")
    def resload():
        if is_wo:
            for i in range(2):
                A(f"buffer_load_dwordx4 {v(RES+4*i,4)}, v9, s[48:51], {s(35+i)} offen")
        else:
            for i in range(2):
                A(f"buffer_load_dwordx4 {v(RES+4*i,4)}, v6, s[16:19], s34 offen offset:{i*1024}{LDF}")
    A("v_lshlrev_b32 v9, 11, v5")
    A("v_and_b32 v15, 1, v2")
    A("v_lshl_add_u32 v9, v15, 5, v9")
    A("v_lshrrev_b32 v15, 1, v2")
    A("v_lshl_add_u32 v9, v15, 4, v9")
    A("s_lshl_b32 s28, s31, 11")
    A("v_add_u32 v10, s28, v6")
    A("v_lshl_add_u32 v11, v2, 2, v3")
    A("v_lshlrev_b32 v11, 7, v11")
    A("v_lshl_add_u32 v11, v4, 3, v11")
    A("v_add_u32 v11, 16384, v11")
    A("v_bfe_u32 v12, v1, 3, 2")
    A("s_lshl_b32 s29, s33, 1")
    A("v_xor_b32 v13, s29, v12")
    A("v_lshl_add_u32 v13, v13, 5, v11")
    A("v_xor_b32 v14, 32, v13")
    A("s_lshr_b32 s32, s21, 1")
    A("s_cmp_lt_u32 s20, 4")
    A(f"s_cbranch_scc1 {name}_A0")
    if is_wo:
        w_swz_voff(A, 7, 2048)
        A(f"v_add_u32 v8, {8*2048-1024}, v7")
        A("s_lshl_b32 s28, s31, 15")
        A("s_lshl_b32 s29, s22, 7")
        A(f"s_add_u32 {s(sGo)}, s28, s29")
    else:
        A(f"s_lshl_b32 {s(sGo)}, s31, 11")
    if PSC: rot_init(A, 64*2048 if is_wo else 8192, PSC)
    A(f"s_lshl_b32 {s(sM)}, s31, 11")
    A(f"s_add_u32 {s(sM)}, {s(sM)}, 16384")
    if not OPT("PUBFIRST", 1):
        A("s_waitcnt vmcnt(0)")
        stamp(A, ph - 1, 4)
    publish(A)
    WE = OPT("WE_W", 6)
    resload()
    fill_ring(A, R, SLOT, wdma, 0, WE)
    A(f"s_branch {name}_C0")
    A.label(f"{name}_A0")
    A("s_lshr_b32 s28, s31, 1")
    A("s_lshl_b32 s28, s28, 7")
    A("s_lshl_b32 s29, s21, 3")
    A("s_add_u32 s28, s28, s29")
    A("s_and_b32 s29, s31, 1")
    A("s_lshl_b32 s29, s29, 2")
    A("s_add_u32 s28, s28, s29")
    A(f"s_lshl_b32 {s(sGo)}, s28, 10")
    if PSC: rot_init(A, DX, PSC)
    A(f"s_lshl_b32 {s(sM)}, s31, 12")
    if not OPT("PUBFIRST", 1):
        A("s_waitcnt vmcnt(0)")
        stamp(A, ph - 1, 4)
    publish(A)
    resload()
    A.label(f"{name}_C0")
    if EZ:
        l = A.newlabel("ez")
        A("s_cmp_eq_u32 s20, 0")
        A(f"s_cbranch_scc1 {l}")
        for i in range(32, 152): A(f"v_mov_b32 {v(i)}, 0")
        A.label(l)
    stamp(A, ph, 0)
    wait_flags(A, ph - 1, 32, 32, also_all=2 if EZ else None)
    stamp(A, ph, 1)
    def accinit():
        if is_wo:
            for i in range(2):
                A(f"v_permlane16_swap_b32 {v(RES+4*i)}, {v(RES+4*i+2)}")
                A(f"v_permlane16_swap_b32 {v(RES+4*i+1)}, {v(RES+4*i+3)}")
            A("s_nop 1")
        for i in range(2):
            for f in range(2):
                for h in range(2):
                    src = RES + 4*i + 2*f + h
                    A(f"v_lshlrev_b32 {v(acc(f,i)+2*h)}, 16, {v(src)}")
                    A(f"v_and_b32 {v(acc(f,i)+2*h+1)}, 0xffff0000, {v(src)}")
    def reads(p):
        out = []
        for kk in range(2):
            for f in range(2):
                for t in range(2):
                    out.append([f"ds_read_b64_tr_b16 {v(wf(p,kk,f)+2*t,2)}, {v(17+f)} offset:{kk*4096+t*2048}"])
            for i in range(2):
                out.append([f"ds_read_b128 {v(xf(p,kk,i),4)}, v16 offset:{kk*8192+i*1024}"])
        return out
    def addr_upd():
        return [f"v_add_u32 v16, {s(sRd)}, v10", f"v_add_u32 v17, {s(sRd)}, v13", f"v_add_u32 v18, {s(sRd)}, v14"]
    def mfmas(p):
        return [mf16(acc(f, i), wf(p, kk, f), xf(p, kk, i)) for kk in range(2) for f in range(2) for i in ((0, 1) if (f == 0 or not OPT("SNAKE", 1)) else (1, 0))]
    A("s_cmp_ge_u32 s20, 4")
    A(f"s_cbranch_scc1 {name}_B")
    fill_ring(A, R, SLOT, lambda: xdma(DX, PSC), bar=True)
    if EZ:
        l = A.newlabel("ez")
        A("s_cmp_lg_u32 s20, 0")
        A(f"s_cbranch_scc1 {l}")
        for i in range(32, 152): A(f"v_mov_b32 {v(i)}, 0")
        A.label(l)
    A(f"s_waitcnt vmcnt({4*R})")
    accinit()
    gemm_loop(A, ph, f"{name}_loopA", "A", R, SLOT, NST, 4, mfmas, reads, lambda: xdma(DX, PSC), addr_upd,
              {6: code_touch_list(A, f"{name}_epi", 251, 252), ('x', 5): 1, ('x', 4): 1, ('x', 3): 1, ('x', 2): 1} if OPT("CTW", 1) else None)
    A(f"s_branch {name}_epi")
    A.label(f"{name}_B")
    fill_rest(A, R, SLOT, wdma, WE)
    A(f"s_waitcnt vmcnt({2*R})")
    accinit()
    hb = None
    if is_wo and OPT("EGW", 1):
        hb = {6: gu_wsetup() + gu_wdma(3)[0], 5: gu_wdma(4)[0], 3: gu_wdma(0)[0], 2: gu_wdma(1)[0],
              ('x', 5): 4, ('x', 4): 8, ('x', 3): 8, ('x', 2): 12}
    gemm_loop(A, ph, f"{name}_loopB", "B", R, SLOT, NST, 2, mfmas, reads, wdma, addr_upd, hb)
    A.label(f"{name}_epi")
    T = 232 if EZ else 112
    for i in range(2):
        for f in range(2):
            for h in range(2):
                A(f"v_cvt_pk_bf16_f32 {v(T+4*i+2*f+h)}, {v(acc(f,i)+2*h)}, {v(acc(f,i)+2*h+1)}")
    if is_wo:
        for i in range(2):
            A(f"buffer_store_dwordx4 {v(T+4*i,4)}, v6, s[16:19], s34 offen offset:{i*1024}{STF}")
        for i in range(2):
            sm, sq = 20 + 2*i, 21 + 2*i
            b = acc(0, i)
            A(f"v_add_f32 {v(sm)}, {v(b)}, {v(b+1)}")
            A(f"v_mul_f32 {v(sq)}, {v(b)}, {v(b)}")
            A(f"v_fmac_f32 {v(sq)}, {v(b+1)}, {v(b+1)}")
            for j in range(2, 8):
                A(f"v_add_f32 {v(sm)}, {v(sm)}, {v(b+j)}")
                A(f"v_fmac_f32 {v(sq)}, {v(b+j)}, {v(b+j)}")
        reduce_rows16_32(A, [20, 21, 22, 23], [24, 25, 26, 27])
        A("s_lshl_b32 s28, s31, 9")
        A("s_lshl_b32 s29, s33, 3")
        A("s_add_u32 s28, s28, s29")
        A(f"s_add_u32 s28, s28, {STATS_LDS}")
        A("v_lshlrev_b32 v24, 4, v5")
        A("v_add_u32 v24, s28, v24")
        A("ds_write_b64 v24, v[20:21]")
        A("ds_write_b64 v24, v[22:23] offset:256")
        A("s_waitcnt lgkmcnt(0)")
        A("s_barrier")
        A("s_cmp_ge_u32 s20, 2")
        A(f"s_cbranch_scc1 {name}_end2")
        A("v_lshlrev_b32 v24, 4, v0")
        A(f"v_add_u32 v24, {STATS_LDS}, v24")
        A("ds_read_b128 v[20:23], v24")
        srd(A, 8, 6, WS_ST, 2048*128)
        A("v_lshlrev_b32 v24, 3, v0")
        A("s_lshl_b32 s28, s21, 10")
        A("s_lshl_b32 s29, s22, 14")
        A("s_add_u32 s28, s28, s29")
        A("s_waitcnt lgkmcnt(0)")
        A("v_add_f32 v20, v20, v22")
        A("v_add_f32 v21, v21, v23")
        A(f"buffer_store_dwordx2 v[20:21], v24, s[8:11], s28 offen{STF}")
        A.label(f"{name}_end2")
        A("s_and_b32 s38, s21, 1")
        A("s_lshl_b32 s38, s38, 4")
        A("s_add_u32 s38, s38, s22")
        pub_prep(A, ph, 32, 38)
    else:
        A("s_nop 1")
        for i in range(2):
            A(f"v_permlane16_swap_b32 {v(T+4*i)}, {v(T+4*i+2)}")
            A(f"v_permlane16_swap_b32 {v(T+4*i+1)}, {v(T+4*i+3)}")
        A("s_nop 1")
        for i in range(2):
            A(f"buffer_store_dwordx4 {v(T+4*i,4)}, v9, s[48:51], {s(35+i)} offen{OUTF}")
        if PROF:
            A("s_waitcnt vmcnt(0)")
            stamp(A, ph, 4)

def ph_gu(A):
    ph = 4
    R, SLOT, NST = 5, 30720, 32
    SL = R * SLOT
    A("s_and_b32 s21, s2, 1")
    A("s_lshl_b32 s21, s21, 2")
    A("s_bfe_u32 s28, s2, 0x20003")
    A("s_add_u32 s21, s21, s28")
    A("s_bfe_u32 s22, s2, 0x20001")
    A("s_lshl_b32 s22, s22, 3")
    A("s_lshr_b32 s28, s2, 5")
    A("s_add_u32 s22, s22, s28")
    wdma = gu_wdma
    EGW = OPT("EGW", 1)
    S0 = 3 if EGW else 0
    WE = R
    srd(A, 12, 44, 0, 7*MB)
    srd(A, 40, 46, 0, 7*MB)
    srd(A, 8, 6, WS_H, 4*MB)
    A("s_cmp_lt_u32 s20, 4")
    A("s_cbranch_scc1 gu_A0")
    if EGW:
        emit(A, gu_wdma(2))
    else:
        emit(A, gu_wsetup())
        fill_ring(A, R, SLOT, wdma)
    A("s_branch gu_C0")
    A.label("gu_A0")
    A("s_lshl_b32 s28, s21, 4")
    A("s_lshl_b32 s29, s31, 2")
    A("s_add_u32 s28, s28, s29")
    A(f"s_lshl_b32 {s(sGo)}, s28, 10")
    A(f"s_lshl_b32 {s(sM)}, s31, 12")
    if not OPT("EZ", 0):
        for i in range(32, 152): A(f"v_mov_b32 {v(i)}, 0")
    if not OPT("PUBFIRST", 1):
        A("s_waitcnt vmcnt(0)")
        stamp(A, 3, 4)
    publish(A)
    A.label("gu_C0")
    srd(A, 44, 6, WS_ST, 2048*128)
    srd(A, 48, 6, WS_CS, 4*7168*4)
    srd(A, 52, 6, WS_HACT, 2048*3584*2)
    A("s_and_b32 s36, s22, 1")
    A("s_cmp_eq_u32 s36, 1")
    A("s_cselect_b32 s37, 3, 0")
    A("s_cselect_b32 s38, 1, 4")
    A("s_cselect_b32 s39, 0, 6")
    A("s_cmp_ge_u32 s20, 4")
    A("s_cselect_b32 s37, s38, s37")
    A("s_lshl_b32 s28, s31, 12")
    A("v_add_u32 v10, s28, v6")
    A("v_lshl_add_u32 v11, v2, 2, v3")
    A("v_mul_u32_u24 v11, 224, v11")
    A("v_lshl_add_u32 v11, v4, 3, v11")
    A("v_add_u32 v11, 16384, v11")
    A("s_lshl_b32 s28, s39, 5")
    A("v_add_u32 v12, s28, v11")
    A("s_lshl_b32 s28, s37, 5")
    A("v_add_u32 v11, s28, v11")
    A("v_and_b32 v13, 255, v0")
    A("v_lshlrev_b32 v14, 3, v13")
    A("s_lshl_b32 s32, s21, 11")
    A("v_lshlrev_b32 v15, 2, v13")
    A(f"v_add_u32 v9, {(3584-112)*4}, v15")
    A("v_cmp_gt_u32 vcc, 112, v13")
    A("v_mov_b32 v19, 0x7fffffff")
    A("s_mul_i32 s33, s22, 448")
    A("v_cndmask_b32 v15, v9, v15, vcc")
    A("v_cmp_gt_u32 vcc, 224, v13")
    A("s_nop 1")
    A("v_cndmask_b32 v15, v19, v15, vcc")
    if not OPT("EZ", 0):
        A("s_cmp_lt_u32 s20, 4")
        A("s_cbranch_scc1 gu_Z")
        for i in range(32, 120): A(f"v_mov_b32 {v(i)}, 0")
        A.label("gu_Z")
    stamp(A, ph, 0)
    wait_flags(A, 3, 21, 32, also_all=None if OPT("EZ", 0) else 2)
    for i in range(24, 32): A(f"v_mov_b32 {v(i)}, 0")
    stamp(A, ph, 1)
    def body(nf, tag):
        def wsrc(j):
            if nf == 3 and j == 2: return 18, 0
            return 17, j * 32
        ACC = 24
        def acc(j, gu, i): return ACC + ((j * 2 + gu) * 4 + i) * 4
        NS = 16 + nf * 8
        SET = [ACC + nf * 32, ACC + nf * 32 + NS]
        def xf(p, i): return SET[p] + i * 4
        def wf(p, j, gu): return SET[p] + 16 + (j * 2 + gu) * 4
        if tag == "A":
            fill_ring(A, R, SLOT, lambda: xdma(0x20000), bar=True, slot0=S0)
        else:
            fill_rest(A, R, SLOT, wdma, WE)
        hook = None
        if tag == "A" and OPT("CTG", 1):
            hook = {5: code_touch_list(A, "gu_epiA", 251, 252), ('x', 4): 1, ('x', 3): 1, ('x', 2): 1}
        if tag == "B":
            def ld16():
                o = []
                for j in range(16):
                    o += [f"buffer_load_dwordx2 {v(200+2*j,2)}, v14, s[44:47], s32 offen{LDF}", "s_add_u32 s32, s32, 16384"]
                return o
            def red16():
                o = []
                for j in range(1, 8):
                    for q in (200, 201, 216, 217):
                        o.append(f"v_add_f32 {v(q)}, {v(q)}, {v(q+2*j)}")
                return o
            h1 = ld16()
            for j in range(4):
                h1 += [f"buffer_load_dword {v(232+j)}, v15, s[48:51], s33 offen{LDF}", f"s_add_u32 s33, s33, {7168*4}"]
            hook = ["s_waitcnt vmcnt(0)"] + red16()
            hook += ["v_add_f32 v200, v200, v216", "v_add_f32 v201, v201, v217",
                "v_add_f32 v232, v232, v233", "v_add_f32 v234, v234, v235", "v_add_f32 v232, v232, v234",
                f"v_mul_f32 v200, {f32(-1/1024)}, v200", f"v_mul_f32 v201, {f32(1/1024)}, v201",
                "v_fma_f32 v201, -v200, v200, v201", "v_max_f32 v201, 0, v201", f"v_add_f32 v201, {f32(1e-5)}, v201",
                "v_rsq_f32 v202, v201", "v_sqrt_f32 v204, v201", "v_mov_b32 v201, v200",
                f"v_mul_f32 v202, {f32(-LOG2E)}, v202", "v_mov_b32 v205, v204", "v_mov_b32 v203, v202",
                "v_lshlrev_b32 v14, 4, v13", f"v_add_u32 v14, {SL}, v14", "ds_write_b128 v14, v[200:203]",
                "v_lshlrev_b32 v14, 3, v13", f"v_add_u32 v14, {SL+5120}, v14", "ds_write_b64 v14, v[204:205]",
                "v_lshlrev_b32 v15, 2, v13", f"v_add_u32 v15, {SL+4096}, v15", "ds_write_b32 v15, v232"]
            hook = {5: h1, 3: hook, ('x', 4): 20, ('x', 3): 20}
        def reads(p):
            out = []
            for i in range(4):
                out.append([f"ds_read_b128 {v(xf(p,i),4)}, v16 offset:{i*1024}"])
            for j in range(nf):
                ar, imm = wsrc(j)
                for gu in range(2):
                    for t in range(2):
                        out.append([f"ds_read_b64_tr_b16 {v(wf(p,j,gu)+2*t,2)}, {v(ar)} offset:{imm+gu*7168+t*3584}"])
            return out
        def addr_upd():
            o = [f"v_add_u32 v16, {s(sRd)}, v10", f"v_add_u32 v17, {s(sRd)}, v11"]
            if nf == 3: o.append(f"v_add_u32 v18, {s(sRd)}, v12")
            return o
        def mfmas(p):
            return [mf16(acc(j, gu, i), wf(p, j, gu), xf(p, i)) for j in range(nf) for gu in range(2) for i in (range(4) if (gu == 0 or not OPT("SNAKE", 1)) else range(3, -1, -1))]
        gemm_loop(A, ph, f"gu_loop{tag}", tag, R, SLOT, NST, 4, mfmas, reads, (lambda: xdma(0x20000)) if tag == "A" else wdma, addr_upd, hook, slot0=S0)
        A.label(f"gu_epi{tag}")
        if tag == "B": A("s_barrier")
        EW = tag == "B" and OPT("EWD", 0)
        if EW:
            srd(A, 12, 6, WS_WD, 7*MB)
            A("s_lshr_b32 s28, s2, 5")
            A("s_lshl_b32 s28, s28, 1")
            A("s_lshr_b32 s29, s31, 1")
            A("s_add_u32 s28, s28, s29")
            A(f"s_mul_i32 s28, s28, {3584*128}")
            A("s_bfe_u32 s29, s2, 0x10002")
            A(f"s_mul_i32 s29, s29, {1792*128}")
            A("s_add_u32 s28, s28, s29")
            A("s_and_b32 s29, s31, 1")
            A("s_lshl_b32 s29, s29, 12")
            A(f"s_add_u32 {s(sGo)}, s28, s29")
            A(f"s_lshl_b32 {s(sM)}, s31, 12")
            A(f"s_add_u32 {s(sM)}, {s(sM)}, 16384")
        ewslot = [0]
        def ew():
            if EW and ewslot[0] < 4:
                A(f"s_mov_b32 {s(sWr)}, {ewslot[0]*32768}")
                emit(A, xdma(8192, 0, 's[12:15]')); ewslot[0] += 1
        A(f"s_load_dwordx2 s[44:45], s[0:1], {KA_OUT}")
        A(f"s_load_dwordx2 s[46:47], s[0:1], {KA_DBG}")
        STR = 232
        CSR = 200
        A("s_lshl_b32 s28, s31, 10")
        A(f"s_add_u32 s28, s28, {SL}")
        A("v_lshlrev_b32 v14, 4, v5")
        A("v_add_u32 v14, s28, v14")
        for i in range(4):
            A(f"ds_read_b128 {v(STR+4*i,4)}, v14 offset:{i*256}")
        SGR = 184
        A("s_lshl_b32 s28, s31, 9")
        A(f"s_add_u32 s28, s28, {SL+5120}")
        A("v_lshlrev_b32 v14, 3, v5")
        A("v_add_u32 v14, s28, v14")
        for i in range(4):
            A(f"ds_read_b64 {v(SGR+2*i,2)}, v14 offset:{i*128}")
        A("v_lshlrev_b32 v9, 4, v2")
        A("s_lshl_b32 s28, s37, 6")
        A(f"s_add_u32 s28, s28, {SL+4096}")
        A("v_add_u32 v14, s28, v9")
        A("s_lshl_b32 s28, s39, 6")
        A(f"s_add_u32 s28, s28, {SL+4096}")
        A("v_add_u32 v15, s28, v9")
        for j in range(nf):
            for gu in range(2):
                ar, imm = (15, 0) if (nf == 3 and j == 2) else (14, j * 64)
                A(f"ds_read_b128 {v(CSR+(j*2+gu)*4,4)}, {v(ar)} offset:{imm+gu*448}")
        A("s_mul_i32 s28, s22, 7")
        A("s_add_u32 s29, s28, s37")
        A("s_lshr_b32 s29, s29, 1")
        A("s_lshl_b32 s29, s29, 17")
        A("s_lshl_b32 s33, s21, 4")
        A("s_lshl_b32 s36, s31, 2")
        A("s_add_u32 s33, s33, s36")
        A("s_lshl_b32 s33, s33, 10")
        A("s_add_u32 s56, s29, s33")
        A("s_add_u32 s57, s56, 0x20000")
        A("s_add_u32 s29, s28, s39")
        A("s_and_b32 s36, s29, 1")
        A("s_lshl_b32 s36, s36, 3")
        A("s_lshr_b32 s29, s29, 1")
        A("s_lshl_b32 s29, s29, 17")
        A("s_add_u32 s58, s29, s33")
        A("s_add_u32 s58, s58, s36")
        T = SET[0]
        tix = 0
        A("s_waitcnt lgkmcnt(0)")
        if tag == "A": A("s_barrier")
        for jp in range(2):
            js = [2*jp, 2*jp+1] if 2*jp+1 < nf else [2*jp]
            for i in range(4):
                dst = T + 4 * (tix % 8); tix += 1
                c1 = v(STR+4*i+2, 2)
                nm_ = v(STR+4*i, 2)
                for j in js:
                    for gu in range(2):
                        a_ = acc(j, gu, i)
                        for h in range(2): A(f"v_pk_fma_f32 {v(a_+2*h,2)}, {v(CSR+(j*2+gu)*4+2*h,2)}, {nm_}, {v(a_+2*h,2)}")
                for j in js:
                    g_ = acc(j, 0, i)
                    for h in range(2): A(f"v_pk_mul_f32 {v(g_+2*h,2)}, {v(g_+2*h,2)}, {c1}")
                for j in js:
                    g_ = acc(j, 0, i)
                    for r in range(4): A(f"v_exp_f32 {v(g_+r)}, {v(g_+r)}")
                if len(js) == 1: A("s_nop 0")
                for j in js:
                    g_ = acc(j, 0, i)
                    for h in range(2): A(f"v_pk_fma_f32 {v(g_+2*h,2)}, {v(g_+2*h,2)}, {v(SGR+2*i,2)}, {v(SGR+2*i,2)}")
                for j in js:
                    g_ = acc(j, 0, i)
                    for r in range(4): A(f"v_rcp_f32 {v(g_+r)}, {v(g_+r)}")
                if len(js) == 1: A("s_nop 0")
                for j in js:
                    g_, u_ = acc(j, 0, i), acc(j, 1, i)
                    for h in range(2): A(f"v_pk_mul_f32 {v(u_+2*h,2)}, {v(u_+2*h,2)}, {v(g_+2*h,2)}")
                for jj, j in enumerate(js):
                    u_ = acc(j, 1, i)
                    for h in range(2):
                        A(f"v_cvt_pk_bf16_f32 {v(dst+2*jj+h)}, {v(u_+2*h)}, {v(u_+2*h+1)}")
                if len(js) == 2:
                    A(f"buffer_store_dwordx4 {v(dst,4)}, v6, s[52:55], {s(56+jp)} offen offset:{i*1024}{STF}")
                    ew()
                else:
                    A(f"buffer_store_dwordx2 {v(dst,2)}, v6, s[52:55], s58 offen offset:{i*1024}{STF}")
    A("s_cmp_ge_u32 s20, 4")
    A("s_cbranch_scc1 gu_B")
    body(4, "A")
    A("s_branch gu_end")
    A.label("gu_B")
    body(3, "B")
    A.label("gu_end")
    pub_prep(A, ph, 21, 22)


def ph_down2(A):
    ph = 5
    R, SLOT, NST = OPT("DR", 5), 32768, 28
    PSC = OPT("D2SC", 0)
    if OPT("PAR", 0):
        A("s_and_b32 s21, s2, 1")
        A("s_lshl_b32 s21, s21, 3")
        A("s_and_b32 s28, s2, 2")
        A("s_lshl_b32 s28, s28, 1")
        A("s_add_u32 s21, s21, s28")
    else:
        A("s_and_b32 s21, s2, 3")
        A("s_lshl_b32 s21, s21, 2")
    A("s_bfe_u32 s28, s2, 0x20003")
    A("s_add_u32 s21, s21, s28")
    A("s_lshr_b32 s22, s2, 5")
    A("s_bfe_u32 s26, s2, 0x10002")
    A("s_and_b32 s32, s20, 1")
    A("s_lshr_b32 s33, s20, 1")
    if PSC:
        A("s_add_u32 s39, s21, s22")
        A("s_and_b32 s39, s39, 3")
        A(f"s_mul_i32 s39, s39, {PSC//4}")
    srd(A, 12, 6, WS_WD, 7*MB)
    srd(A, 8, 6, WS_HACT, 2048*3584*2)
    wd = lambda: xdma(8192, PSC, 's[12:15]')
    xd = lambda: xdma(0x40000, PSC)
    srd(A, 52, 46, 0, 256)
    A("v_mov_b32 v20, 0")
    A("buffer_load_dwordx2 v[248:249], v20, s[52:55], 0 offen sc1")
    A("s_cmp_lt_u32 s20, 4")
    A("s_cbranch_scc1 d2_A0")
    WE = OPT("WE_D", 5)
    if OPT("EWD", 0):
        assert R == 5 and not PSC
        fill_ring(A, R, SLOT, wd, 4, 5)
    else:
        A("s_lshl_b32 s28, s22, 1")
        A("s_lshr_b32 s29, s31, 1")
        A("s_add_u32 s28, s28, s29")
        A(f"s_mul_i32 s28, s28, {3584*128}")
        A(f"s_mul_i32 s29, s26, {1792*128}")
        A("s_add_u32 s28, s28, s29")
        A("s_and_b32 s29, s31, 1")
        A("s_lshl_b32 s29, s29, 12")
        A(f"s_add_u32 {s(sGo)}, s28, s29")
        if PSC: rot_init(A, 8192, PSC)
        A(f"s_lshl_b32 {s(sM)}, s31, 12")
        A(f"s_add_u32 {s(sM)}, {s(sM)}, 16384")
        WE = OPT("WE_D", 5)
        fill_ring(A, R, SLOT, wd, 0, WE)
    A("s_branch d2_C0")
    A.label("d2_A0")
    A("s_mul_i32 s28, s26, 56")
    A("s_lshr_b32 s29, s31, 1")
    A("s_add_u32 s28, s28, s29")
    A("s_lshl_b32 s28, s28, 7")
    A("s_lshl_b32 s29, s21, 3")
    A("s_add_u32 s28, s28, s29")
    A("s_and_b32 s29, s31, 1")
    A("s_lshl_b32 s29, s29, 2")
    A("s_add_u32 s28, s28, s29")
    A(f"s_lshl_b32 {s(sGo)}, s28, 10")
    if PSC: rot_init(A, 0x40000, PSC)
    A(f"s_lshl_b32 {s(sM)}, s31, 12")
    A.label("d2_C0")
    ACC = 32
    def acc(f, i): return ACC + (i * 2 + f) * 4
    SET = [64, 112]
    def xf(p, kk, i): return SET[p] + (kk * 4 + i) * 4
    def wf(p, kk, f): return SET[p] + 32 + (kk * 2 + f) * 4
    RES = 240
    A("s_lshl_b32 s34, s22, 2")
    A("s_add_u32 s34, s34, s33")
    A("s_lshl_b32 s34, s34, 7")
    A("s_lshl_b32 s35, s21, 3")
    A("s_lshl_b32 s36, s32, 2")
    A("s_add_u32 s35, s35, s36")
    A("s_lshl_b32 s36, s26, 1")
    A("s_add_u32 s35, s35, s36")
    A("s_add_u32 s34, s34, s35")
    A("s_lshl_b32 s34, s34, 10")
    A("s_lshl_b32 s35, s35, 15")
    A("s_lshl_b32 s36, s22, 8")
    A("s_add_u32 s35, s35, s36")
    A("s_lshl_b32 s36, s33, 6")
    A("s_add_u32 s35, s35, s36")
    A("s_add_u32 s36, s35, 32768")
    srd(A, 16, 6, WS_H, 4*MB)
    srd(A, 48, 44, 0, 4*MB)
    A("v_lshlrev_b32 v9, 11, v5")
    A("v_and_b32 v15, 1, v2")
    A("v_lshl_add_u32 v9, v15, 5, v9")
    A("v_lshrrev_b32 v15, 1, v2")
    A("v_lshl_add_u32 v9, v15, 4, v9")
    A("s_lshl_b32 s28, s32, 12")
    A("s_lshl_b32 s29, s26, 11")
    A("s_add_u32 s3, s28, s29")
    A("v_add_u32 v10, s3, v6")
    A("s_xor_b32 s3, s3, 2048")
    A("v_add_u32 v15, s3, v6")
    A("v_lshl_add_u32 v11, v2, 2, v3")
    A("v_lshlrev_b32 v11, 7, v11")
    A("v_lshl_add_u32 v11, v4, 3, v11")
    A("s_lshr_b32 s28, s33, 1")
    A("s_lshl_b32 s28, s28, 13")
    A("s_add_u32 s28, s28, 16384")
    A("v_add_u32 v11, s28, v11")
    A("v_bfe_u32 v12, v1, 3, 2")
    A("s_and_b32 s29, s33, 1")
    A("s_lshl_b32 s29, s29, 1")
    A("v_xor_b32 v13, s29, v12")
    A("v_lshl_add_u32 v13, v13, 5, v11")
    A("v_xor_b32 v14, 32, v13")
    for i in range(16): A(f"v_mov_b32 {v(acc(0,2)+i)}, 0")
    A("s_lshr_b32 s40, s21, 1")
    A("s_lshl_b32 s41, s26, 7")
    stamp(A, ph, 0)
    if OPT("XTAG", 3) == 3: wait_flags(A, 4, 40, 32)
    else: wait_flags(A, 4, 40, 16, soff=41)
    stamp(A, ph, 1)
    for i in range(2):
        A(f"buffer_load_dwordx4 {v(RES+4*i,4)}, v6, s[16:19], s34 offen offset:{i*1024}{LDF}")
    def accinit():
        for i in range(2):
            for f in range(2):
                for h in range(2):
                    src = RES + 4*i + 2*f + h
                    A(f"v_lshlrev_b32 {v(acc(f,i)+2*h)}, 16, {v(src)}")
                    A(f"v_and_b32 {v(acc(f,i)+2*h+1)}, 0xffff0000, {v(src)}")
        if OPT("XTAG", 3) == 2:
            for q in (163, 167, 170, 171): A(f"v_mov_b32 {v(q)}, v248")
            srd(A, 52, 6, WS_XB, 9*MB)
            A("s_lshl_b32 s28, s2, 3")
            A("s_add_u32 s28, s28, s20")
            A("s_xor_b32 s29, s28, 32")
            A("s_lshl_b32 s40, s28, 12")
            A("s_lshl_b32 s41, s29, 12")
        if OPT("XTAG", 3) == 3:
            srd(A, 52, 6, WS_O, 9*MB)
            A("s_and_b32 s28, s21, 1")
            A("s_lshl_b32 s28, s28, 4")
            A("s_lshl_b32 s29, s26, 3")
            A("s_add_u32 s28, s28, s29")
            A("s_add_u32 s28, s28, s22")
            A("s_lshr_b32 s29, s21, 1")
            A("s_lshl_b32 s40, s28, 17")
            A("s_lshl_b32 s3, s29, 14")
            A("s_add_u32 s40, s40, s3")
            A("s_lshl_b32 s3, s20, 11")
            A("s_add_u32 s40, s40, s3")
            A("s_xor_b32 s41, s40, 0x100000")
            A("s_lshr_b32 s42, s28, 1")
            A("s_lshl_b32 s42, s42, 14")
            A("s_lshl_b32 s3, s29, 11")
            A("s_add_u32 s42, s42, s3")
            A("s_and_b32 s3, s28, 1")
            A("s_lshl_b32 s3, s3, 10")
            A("s_add_u32 s42, s42, s3")
            A("s_lshl_b32 s3, s20, 7")
            A("s_add_u32 s42, s42, s3")
            A("s_xor_b32 s43, s42, 0x10000")
            A(f"s_add_u32 s42, s42, {WS_ST - WS_O}")
            A(f"s_add_u32 s43, s43, {WS_ST - WS_O}")
            A("v_mov_b32 v20, 0")
            return
        A("s_movk_i32 s42, 0xfff")
        A("v_mov_b32 v244, v248")
        A("v_lshrrev_b32 v245, 12, v248")
        A("v_alignbit_b32 v246, v249, v248, 24")
        A("v_lshrrev_b32 v247, 4, v249")
    def reads(p):
        out = []
        for kk in range(2):
            for f in range(2):
                for t in range(2):
                    out.append([f"ds_read_b64_tr_b16 {v(wf(p,kk,f)+2*t,2)}, {v(17+f)} offset:{kk*4096+t*2048}"])
            for i in range(4):
                out.append([f"ds_read_b128 {v(xf(p,kk,i),4)}, {v(16 if i < 2 else 19)} offset:{kk*8192+(i&1)*1024}"])
        return out
    def addr_upd():
        return [f"v_add_u32 v16, {s(sRd)}, v10", f"v_add_u32 v17, {s(sRd)}, v13", f"v_add_u32 v18, {s(sRd)}, v14", f"v_add_u32 v19, {s(sRd)}, v15"]
    def mfmas(p):
        return [mf16(acc(f, i), wf(p, kk, f), xf(p, kk, i)) for ii in (2, 0) for kk in range(2) for f in range(2) for i in (ii, ii + 1)]
    DST = [160, 161, 162, 164, 165, 166, 168, 169]
    send = []
    if OPT("XTAG", 3) == 2:
        send = ["s_nop 4"]
        for q in range(8):
            send.append(f"v_cvt_pk_bf16_f32 {v(DST[q])}, {v(acc(0,2)+2*q)}, {v(acc(0,2)+2*q+1)}")
            if q in (2, 5, 7): send.append(f"buffer_store_dwordx4 {v(160+4*(q//3),4)}, v6, s[52:55], s40 offen offset:{(q//3)*1024} sc1")
    if OPT("XTAG", 3) == 3:
        send = ["s_nop 4"]
        for q in range(8):
            send.append(f"v_cvt_pk_bf16_f32 {v(160+q)}, {v(acc(0,2)+2*q)}, {v(acc(0,2)+2*q+1)}")
            if q in (3, 7): send.append(f"buffer_store_dwordx4 {v(160+q-3,4)}, v6, s[52:55], s40 offen offset:{(q//4)*1024} sc1")
    hookS = {1: send, 'lastpos': 11} if send else {}
    A("s_cmp_ge_u32 s20, 4")
    A("s_cbranch_scc1 d2_B")
    fill_ring(A, R, SLOT, xd, bar=True)
    A(f"s_waitcnt vmcnt({4*R})")
    accinit()
    gemm_loop(A, ph, "d2_loopA", "A", R, SLOT, NST, 4, mfmas, reads, xd, addr_upd,
              {5: code_touch_list(A, "d2_epi", 251, 252), ('x', 4): 1, ('x', 3): 1, ('x', 2): 1, **hookS})
    A("s_branch d2_epi")
    A.label("d2_B")
    fill_rest(A, R, SLOT, wd, WE)
    A(f"s_waitcnt vmcnt({4*(R-WE)})")
    accinit()
    gemm_loop(A, ph, "d2_loopB", "B", R, SLOT, NST, 4, mfmas, reads, wd, addr_upd, hookS)
    A.label("d2_epi")
    if OPT("XTAG", 3) == 3:
        A(f"s_mov_b32 s28, {SPIN_MAX}")
        A("s_waitcnt vmcnt(0)")
        if OPT("XDBG", 0): stamp(A, ph, 0)
        A("s_mov_b64 exec, 1")
        A("buffer_store_dwordx2 v[248:249], v20, s[52:55], s42 offen sc1")
        A.label("d2_poll")
        A("buffer_load_dwordx2 v[22:23], v20, s[52:55], s43 offen sc1")
        A("s_waitcnt vmcnt(0)")
        A("v_cmp_ne_u64 vcc, v[248:249], v[22:23]")
        A("s_nop 1")
        A("s_cmp_eq_u64 vcc, 0")
        A("s_cbranch_scc1 d2_got")
        A("s_sleep 1")
        A("s_sub_u32 s28, s28, 1")
        A("s_cmp_lg_u32 s28, 0")
        A("s_cbranch_scc1 d2_poll")
        A.label("d2_got")
        A("s_mov_b64 exec, -1")
        if OPT("XDBG", 0): stamp(A, ph, 1)
        for j in range(2):
            A(f"buffer_load_dwordx4 {v(64+4*j,4)}, v6, s[52:55], s41 offen offset:{j*1024} sc1")
        T = 112
        for i in range(2):
            A("s_waitcnt vmcnt(1)")
            for q in range(4):
                A(f"v_lshlrev_b32 {v(84+2*q)}, 16, {v(64+4*i+q)}")
                A(f"v_and_b32 {v(85+2*q)}, 0xffff0000, {v(64+4*i+q)}")
            for q in range(4):
                A(f"v_pk_add_f32 {v(ACC+8*i+2*q,2)}, {v(ACC+8*i+2*q,2)}, {v(84+2*q,2)}")
            for q in range(4):
                A(f"v_cvt_pk_bf16_f32 {v(T+4*i+q)}, {v(ACC+8*i+2*q)}, {v(ACC+8*i+2*q+1)}")
            A("s_nop 1")
            A(f"v_permlane16_swap_b32 {v(T+4*i)}, {v(T+4*i+2)}")
            A(f"v_permlane16_swap_b32 {v(T+4*i+1)}, {v(T+4*i+3)}")
            A("s_nop 1")
            A(f"buffer_store_dwordx4 {v(T+4*i,4)}, v9, s[48:51], {s(35+i)} offen{OUTF}")
        if PROF:
            A("s_waitcnt vmcnt(0)")
            stamp(A, ph, 4)
        return
    if OPT("XTAG", 3) == 2:
        A(f"s_mov_b32 s28, {SPIN_MAX}")
        if OPT("XW", 1): A("s_waitcnt vmcnt(0)")
        if OPT("XDBG", 0): stamp(A, ph, 0)
        A.label("d2_poll")
        for j in range(3):
            A(f"buffer_load_dwordx4 {v(64+4*j,4)}, v6, s[52:55], s41 offen offset:{j*1024} sc1")
        A("s_waitcnt vmcnt(0)")
        A("v_xor_b32 v80, v248, v67")
        A("v_xor_b32 v81, v248, v71")
        A("v_xor_b32 v82, v248, v75")
        A("v_or3_b32 v80, v80, v81, v82")
        A("v_cmp_ne_u32 vcc, 0, v80")
        A("s_nop 1")
        A("s_cmp_eq_u64 vcc, 0")
        A("s_cbranch_scc1 d2_got")
        A(f"s_sleep {OPT('XSLEEP', 1)}")
        A("s_sub_u32 s28, s28, 1")
        A("s_cmp_lg_u32 s28, 0")
        A("s_cbranch_scc1 d2_poll")
        A.label("d2_got")
        if OPT("XDBG", 0): stamp(A, ph, 1)
        T = 112
        for i in range(2):
            for q in range(4):
                src = DST[4*i+q] - 96
                A(f"v_lshlrev_b32 {v(84+2*q)}, 16, {v(src)}")
                A(f"v_and_b32 {v(85+2*q)}, 0xffff0000, {v(src)}")
            for q in range(4):
                A(f"v_pk_add_f32 {v(ACC+8*i+2*q,2)}, {v(ACC+8*i+2*q,2)}, {v(84+2*q,2)}")
            for q in range(4):
                A(f"v_cvt_pk_bf16_f32 {v(T+4*i+q)}, {v(ACC+8*i+2*q)}, {v(ACC+8*i+2*q+1)}")
            A("s_nop 1")
            A(f"v_permlane16_swap_b32 {v(T+4*i)}, {v(T+4*i+2)}")
            A(f"v_permlane16_swap_b32 {v(T+4*i+1)}, {v(T+4*i+3)}")
            A("s_nop 1")
            A(f"buffer_store_dwordx4 {v(T+4*i,4)}, v9, s[48:51], {s(35+i)} offen{OUTF}")
        if PROF:
            A("s_waitcnt vmcnt(0)")
            stamp(A, ph, 4)
        return
    srd(A, 8, 6, WS_Q if OPT('XBQ', 0) else WS_XB, 9*MB)
    A("s_lshl_b32 s28, s2, 3")
    A("s_add_u32 s28, s28, s20")
    A("s_xor_b32 s29, s28, 32")
    A("s_lshl_b32 s40, s28, 12")
    A("s_lshl_b32 s41, s29, 12")
    XTAG = OPT("XTAG", 3)
    if XTAG:
        for j in range(4):
            for r in range(4):
                A(f"v_bfi_b32 {v(acc(0,2)+4*j+r)}, s42, {v(244+r)}, {v(acc(0,2)+4*j+r)}")
            A(f"buffer_store_dwordx4 {v(acc(0,2)+4*j,4)}, v6, s[8:11], s40 offen offset:{j*1024} sc1")
        A(f"s_mov_b32 s28, {SPIN_MAX}")
        if OPT("XW", 1): A("s_waitcnt vmcnt(0)")
        if OPT("XDBG", 0): stamp(A, ph, 0)
        A.label("d2_poll")
        for j in range(4):
            A(f"buffer_load_dwordx4 {v(64+4*j,4)}, v6, s[8:11], s41 offen offset:{j*1024} sc1")
        for j in range(4):
            A(f"s_waitcnt vmcnt({3-j})")
            for r in range(4):
                A(f"v_xor_b32 {v(80+4*j+r)}, {v(244+r)}, {v(64+4*j+r)}")
            A(f"v_or3_b32 {v(80+4*j)}, {v(80+4*j)}, {v(81+4*j)}, {v(82+4*j)}")
            if j: A(f"v_or3_b32 {v(80+4*j)}, {v(80+4*j)}, {v(83+4*j)}, {v(76+4*j)}")
            else: A(f"v_or_b32 {v(80)}, {v(80)}, {v(83)}")
        A("v_and_b32 v92, s42, v92")
        A("v_cmp_ne_u32 vcc, 0, v92")
        A("s_nop 1")
        A("s_cmp_eq_u64 vcc, 0")
        A("s_cbranch_scc1 d2_got")
        A("s_sleep 1")
        A("s_sub_u32 s28, s28, 1")
        A("s_cmp_lg_u32 s28, 0")
        A("s_cbranch_scc1 d2_poll")
        A.label("d2_got")
        if OPT("XDBG", 0): stamp(A, ph, 1)
    else:
        for j in range(4):
            A(f"buffer_store_dwordx4 {v(acc(0,2)+4*j,4)}, v6, s[8:11], s40 offen offset:{j*1024} sc1")
        A(f"s_lshl_b32 s42, s28, {OPT('XFS', 7)}")
        A(f"s_add_u32 s42, s42, {8*MB}")
        A(f"s_lshl_b32 s43, s29, {OPT('XFS', 7)}")
        A(f"s_add_u32 s43, s43, {8*MB}")
        A("v_mov_b32 v20, 0")
        A(f"s_mov_b32 s28, {SPIN_MAX}")
        A("s_waitcnt vmcnt(0)")
        if OPT("XDBG", 0): stamp(A, ph, 0)
        A("s_mov_b64 exec, 1")
        A("buffer_store_dwordx2 v[248:249], v20, s[8:11], s42 offen sc1")
        A.label("d2_poll")
        A("buffer_load_dwordx2 v[22:23], v20, s[8:11], s43 offen sc1")
        A("s_waitcnt vmcnt(0)")
        A("v_cmp_ne_u64 vcc, v[248:249], v[22:23]")
        A("s_nop 1")
        A("s_cmp_eq_u64 vcc, 0")
        A("s_cbranch_scc1 d2_got")
        if OPT("XSLEEP", 1): A(f"s_sleep {OPT('XSLEEP', 1)}")
        A("s_sub_u32 s28, s28, 1")
        A("s_cmp_lg_u32 s28, 0")
        A("s_cbranch_scc1 d2_poll")
        A.label("d2_got")
        A("s_mov_b64 exec, -1")
        if OPT("XDBG", 0): stamp(A, ph, 1)
        for j in range(4):
            A(f"buffer_load_dwordx4 {v(64+4*j,4)}, v6, s[8:11], s41 offen offset:{j*1024} sc1")
    T = 112
    for i in range(2):
        if not XTAG: A(f"s_waitcnt vmcnt({2 - 2*i + i})")
        for q in range(4):
            A(f"v_pk_add_f32 {v(ACC+8*i+2*q,2)}, {v(ACC+8*i+2*q,2)}, {v(64+8*i+2*q,2)}")
        for f in range(2):
            for h in range(2):
                A(f"v_cvt_pk_bf16_f32 {v(T+4*i+2*f+h)}, {v(acc(f,i)+2*h)}, {v(acc(f,i)+2*h+1)}")
        A("s_nop 1")
        A(f"v_permlane16_swap_b32 {v(T+4*i)}, {v(T+4*i+2)}")
        A(f"v_permlane16_swap_b32 {v(T+4*i+1)}, {v(T+4*i+3)}")
        A("s_nop 1")
        A(f"buffer_store_dwordx4 {v(T+4*i,4)}, v9, s[48:51], {s(35+i)} offen{OUTF}")
    if PROF:
        A("s_waitcnt vmcnt(0)")
        stamp(A, ph, 4)


def ph_down3(A):
    ph = 5
    R, SLOT = OPT("DR", 5), 32768
    N0 = OPT("N0", 26)
    T = R + (R % 2)
    if OPT("PAR", 0):
        A("s_and_b32 s21, s2, 1")
        A("s_lshl_b32 s21, s21, 3")
        A("s_and_b32 s28, s2, 2")
        A("s_lshl_b32 s28, s28, 1")
        A("s_add_u32 s21, s21, s28")
    else:
        A("s_and_b32 s21, s2, 3")
        A("s_lshl_b32 s21, s21, 2")
    A("s_bfe_u32 s28, s2, 0x20003")
    A("s_add_u32 s21, s21, s28")
    A("s_lshr_b32 s22, s2, 5")
    A("s_bfe_u32 s26, s2, 0x10002")
    A("s_and_b32 s32, s20, 1")
    A("s_lshr_b32 s33, s20, 1")
    srd(A, 12, 6, WS_WD, 7*MB)
    srd(A, 8, 6, WS_HACT, 2048*3584*2)
    wd = lambda: xdma(8192, 0, 's[12:15]')
    xd = lambda: xdma(0x40000, 0)
    A("s_cmp_lt_u32 s20, 4")
    A("s_cbranch_scc1 d3_A0")
    A("s_lshl_b32 s28, s22, 1")
    A("s_lshr_b32 s29, s31, 1")
    A("s_add_u32 s28, s28, s29")
    A(f"s_mul_i32 s28, s28, {3584*128}")
    A(f"s_mul_i32 s29, s26, {N0*64*128}")
    A("s_add_u32 s28, s28, s29")
    A("s_and_b32 s29, s31, 1")
    A("s_lshl_b32 s29, s29, 12")
    A(f"s_add_u32 {s(sGo)}, s28, s29")
    A(f"s_lshl_b32 {s(sM)}, s31, 12")
    A(f"s_add_u32 {s(sM)}, {s(sM)}, 16384")
    srd(A, 52, 46, 0, 256)
    A("v_mov_b32 v20, 0")
    A("buffer_load_dwordx2 v[248:249], v20, s[52:55], 0 offen sc1")
    fill_ring(A, R, SLOT, wd)
    A("s_branch d3_C0")
    A.label("d3_A0")
    A(f"s_mul_i32 s28, s26, {2*N0}")
    A("s_lshr_b32 s29, s31, 1")
    A("s_add_u32 s28, s28, s29")
    A("s_lshl_b32 s28, s28, 7")
    A("s_lshl_b32 s29, s21, 3")
    A("s_add_u32 s28, s28, s29")
    A("s_and_b32 s29, s31, 1")
    A("s_lshl_b32 s29, s29, 2")
    A("s_add_u32 s28, s28, s29")
    A(f"s_lshl_b32 {s(sGo)}, s28, 10")
    A(f"s_lshl_b32 {s(sM)}, s31, 12")
    A.label("d3_C0")
    ACC = 32
    def acc(f, i): return ACC + (i * 2 + f) * 4
    SET = [64, 112]
    def xf(p, kk, i): return SET[p] + (kk * 4 + i) * 4
    def wf(p, kk, f): return SET[p] + 32 + (kk * 2 + f) * 4
    RES = 224
    A("s_lshl_b32 s34, s22, 2")
    A("s_add_u32 s34, s34, s33")
    A("s_lshl_b32 s34, s34, 7")
    A("s_lshl_b32 s35, s21, 3")
    A("s_lshl_b32 s36, s32, 2")
    A("s_add_u32 s35, s35, s36")
    A("s_add_u32 s34, s34, s35")
    A("s_lshl_b32 s34, s34, 10")
    A("s_lshl_b32 s35, s35, 15")
    A("s_lshl_b32 s36, s22, 8")
    A("s_add_u32 s35, s35, s36")
    A("s_lshl_b32 s36, s33, 6")
    A("s_add_u32 s35, s35, s36")
    A("s_add_u32 s36, s35, 32768")
    A("s_add_u32 s37, s36, 32768")
    A("s_add_u32 s38, s37, 32768")
    srd(A, 16, 6, WS_H, 4*MB)
    A("s_cmp_eq_u32 s26, 0")
    A(f"s_cselect_b32 s18, 0, {4*MB}")
    A(f"s_cselect_b32 s39, {(N0-T)//2}, {(56-N0-T)//2}")
    srd(A, 48, 44, 0, 4*MB)
    A("v_lshlrev_b32 v9, 11, v5")
    A("v_and_b32 v15, 1, v2")
    A("v_lshl_add_u32 v9, v15, 5, v9")
    A("v_lshrrev_b32 v15, 1, v2")
    A("v_lshl_add_u32 v9, v15, 4, v9")
    A("s_lshl_b32 s28, s32, 12")
    A("v_add_u32 v10, s28, v6")
    A("v_lshl_add_u32 v11, v2, 2, v3")
    A("v_lshlrev_b32 v11, 7, v11")
    A("v_lshl_add_u32 v11, v4, 3, v11")
    A("s_lshr_b32 s28, s33, 1")
    A("s_lshl_b32 s28, s28, 13")
    A("s_add_u32 s28, s28, 16384")
    A("v_add_u32 v11, s28, v11")
    A("v_bfe_u32 v12, v1, 3, 2")
    A("s_and_b32 s29, s33, 1")
    A("s_lshl_b32 s29, s29, 1")
    A("v_xor_b32 v13, s29, v12")
    A("v_lshl_add_u32 v13, v13, 5, v11")
    A("v_xor_b32 v14, 32, v13")
    A("s_lshr_b32 s28, s2, 3")
    A("s_lshl_b32 s28, s28, 2")
    A("s_and_b32 s29, s2, 3")
    A("s_add_u32 s28, s28, s29")
    A("s_lshl_b32 s28, s28, 3")
    A("s_add_u32 s28, s28, s20")
    A("s_lshl_b32 s41, s28, 13")
    A("s_add_u32 s42, s41, 4096")
    A("s_lshl_b32 s43, s28, 7")
    A(f"s_add_u32 s43, s43, {8*MB}")
    A("s_lshr_b32 s40, s21, 1")
    stamp(A, ph, 0)
    wait_flags(A, 4, 40, 32)
    stamp(A, ph, 1)
    for i in range(4):
        A(f"buffer_load_dwordx4 {v(RES+4*i,4)}, v6, s[16:19], s34 offen offset:{i*1024}{LDF}")
    def accinit():
        for i in range(4):
            for f in range(2):
                for h in range(2):
                    src = RES + 4*i + 2*f + h
                    A(f"v_lshlrev_b32 {v(acc(f,i)+2*h)}, 16, {v(src)}")
                    A(f"v_and_b32 {v(acc(f,i)+2*h+1)}, 0xffff0000, {v(src)}")
    def reads(p):
        out = []
        for kk in range(2):
            for f in range(2):
                for t in range(2):
                    out.append([f"ds_read_b64_tr_b16 {v(wf(p,kk,f)+2*t,2)}, {v(17+f)} offset:{kk*4096+t*2048}"])
            for i in range(4):
                out.append([f"ds_read_b128 {v(xf(p,kk,i),4)}, v16 offset:{kk*8192+i*1024}"])
        return out
    def addr_upd():
        return [f"v_add_u32 v16, {s(sRd)}, v10", f"v_add_u32 v17, {s(sRd)}, v13", f"v_add_u32 v18, {s(sRd)}, v14"]
    def mfmas(p):
        return [mf16(acc(f, i), wf(p, kk, f), xf(p, kk, i)) for kk in range(2) for f in range(2) for i in range(4)]
    A("s_cmp_ge_u32 s20, 4")
    A("s_cbranch_scc1 d3_B")
    fill_ring(A, R, SLOT, xd, bar=True)
    A(f"s_waitcnt vmcnt({4*R})")
    accinit()
    gemm_loop(A, ph, "d3_loopA", "A", R, SLOT, 28, 4, mfmas, reads, xd, addr_upd, cnt_sgpr=39)
    A("s_branch d3_epi")
    A.label("d3_B")
    fill_ring(A, R, SLOT, None, bar=True)
    A("s_waitcnt vmcnt(0)")
    accinit()
    gemm_loop(A, ph, "d3_loopB", "B", R, SLOT, 28, 4, mfmas, reads, wd, addr_upd, cnt_sgpr=39)
    A.label("d3_epi")
    srd(A, 8, 6, WS_Q, 9*MB)
    A("v_mov_b32 v20, 0")
    A("s_cmp_lg_u32 s26, 0")
    A("s_cbranch_scc1 d3_recv")
    for j in range(8):
        A(f"buffer_store_dwordx4 {v(ACC+4*j,4)}, v6, s[8:11], {s(41 + j//4)} offen offset:{(j%4)*1024} sc1")
    A("s_waitcnt vmcnt(0)")
    A("s_mov_b64 exec, 1")
    A("buffer_store_dwordx2 v[248:249], v20, s[8:11], s43 offen sc1")
    A("s_mov_b64 exec, -1")
    A("s_branch d3_end")
    A.label("d3_recv")
    A(f"s_mov_b32 s28, {SPIN_MAX}")
    A("s_mov_b64 exec, 1")
    A.label("d3_poll")
    A("buffer_load_dwordx2 v[22:23], v20, s[8:11], s43 offen sc1")
    A("s_waitcnt vmcnt(0)")
    A("v_cmp_ne_u64 vcc, v[248:249], v[22:23]")
    A("s_nop 1")
    A("s_cmp_eq_u64 vcc, 0")
    A("s_cbranch_scc1 d3_got")
    A("s_sleep 1")
    A("s_sub_u32 s28, s28, 1")
    A("s_cmp_lg_u32 s28, 0")
    A("s_cbranch_scc1 d3_poll")
    A.label("d3_got")
    A("s_mov_b64 exec, -1")
    for j in range(8):
        A(f"buffer_load_dwordx4 {v(64+4*j,4)}, v6, s[8:11], {s(41 + j//4)} offen offset:{(j%4)*1024} sc1")
    TT = 112
    for i in range(4):
        A(f"s_waitcnt vmcnt({6 - 2*i + i})")
        for q in range(4):
            A(f"v_pk_add_f32 {v(ACC+8*i+2*q,2)}, {v(ACC+8*i+2*q,2)}, {v(64+8*i+2*q,2)}")
        for f in range(2):
            for h in range(2):
                A(f"v_cvt_pk_bf16_f32 {v(TT+4*i+2*f+h)}, {v(acc(f,i)+2*h)}, {v(acc(f,i)+2*h+1)}")
        A("s_nop 1")
        A(f"v_permlane16_swap_b32 {v(TT+4*i)}, {v(TT+4*i+2)}")
        A(f"v_permlane16_swap_b32 {v(TT+4*i+1)}, {v(TT+4*i+3)}")
        A("s_nop 1")
        A(f"buffer_store_dwordx4 {v(TT+4*i,4)}, v9, s[48:51], {s(35+i)} offen{OUTF}")
    A.label("d3_end")
    if PROF:
        A("s_waitcnt vmcnt(0)")
        stamp(A, ph, 4)
```

```python
import sys, math, os, struct
from asmlib import *

MB = 1 << 20
WS_XN, WS_Q, WS_K, WS_VT, WS_O, WS_H, WS_ST, WS_CS, WS_FL, WS_HACT = 0, 4*MB, 8*MB, 12*MB, 16*MB, 20*MB, 24*MB, 25*MB, 26*MB, 32*MB
if int(os.environ.get('HACT0', '1')): WS_HACT = 0
WS_DBG = 48*MB
WS_RS = 27*MB
WS_XB = 72*MB
WS_WD = 64*MB
KA_X, KA_WQKV, KA_WO, KA_BX, KA_WG, KA_WU, KA_WD, KA_OUT, KA_DBG, KA_WS = 0, 8, 16, 24, 32, 40, 48, 56, 64, 72
LOG2E = math.log2(math.e)
QSCALE = LOG2E / math.sqrt(32.0)
def f32(x): return hex(struct.unpack("<I", struct.pack("<f", x))[0])
def OPT(name, default): return int(os.environ.get(name, str(default)))
def SOPT(name, default): return os.environ.get(name, default)
PROF = OPT("PROF", 0)
STF = " sc1"
LDF = SOPT("LDF", " sc1")
OUTF = SOPT("OUTF", "")
NAME = "sequential_preLN__mha_block__glu_gated_glu__prompt_kernel"

sNON = 62
def stamp(A, ph, i):
    if not PROF: return
    A("s_memrealtime s[64:65]")
    A("s_waitcnt lgkmcnt(0)")
    A(f"s_mov_b32 {s(66+ph*6+i)}, s64")
def cyc(A, ph, end):
    if not PROF: return
    A("s_memtime s[64:65]")
    A("s_waitcnt lgkmcnt(0)")
    if not end: A(f"s_mov_b32 {s(66+ph*6+5)}, s64")
    else: A(f"s_sub_u32 {s(66+ph*6+5)}, s64, {s(66+ph*6+5)}")
def stamp_flush(A):
    if not PROF: return
    if PROF == 2:
        A(f"s_load_dwordx2 s[4:5], s[0:1], {KA_DBG}")
        A("s_waitcnt lgkmcnt(0)")
        srd(A, 8, 4, 0, 256)
        A(f"s_cmp_lg_u32 s2, {OPT('DBGWG', 0)}")
        A("s_cbranch_scc1 the_end")
        A("s_cmp_lg_u32 s20, 0")
        A("s_cbranch_scc1 the_end")
        A("s_mov_b64 exec, 1")
        A("v_mov_b32 v0, 0")
        sel = [(0,3),(0,4),(1,1),(1,2),(1,3),(2,2),(2,3),(3,2),(3,3),(4,2),(4,3),(5,2),(5,3),(5,4)]
        for i, (ph, j) in enumerate(sel):
            A(f"s_sub_u32 s3, {s(66+ph*6+j)}, s66")
            A(f"v_mov_b32 {v(1+i)}, s3")
            A(f"buffer_store_dword {v(1+i)}, v0, s[8:11], 0 offen offset:{8+4*i}")
        return
    A("s_mov_b64 exec, 1")
    srd(A, 8, 6, WS_DBG, 16*MB)
    A("s_lshl_b32 s3, s2, 3")
    A("s_add_u32 s3, s3, s20")
    A("s_lshl_b32 s3, s3, 8")
    A("v_mov_b32 v0, 0")
    for i in range(36):
        A(f"v_mov_b32 {v(1+i)}, {s(66+i)}")
    for i in range(36):
        A(f"buffer_store_dword {v(1+i)}, v0, s[8:11], s3 offen offset:{4*i}")

def mf16(d, A_, B_, c=None):
    c = v(d, 4) if c is None else c
    return f"v_mfma_f32_16x16x32_bf16 {v(d,4)}, {v(A_,4)}, {v(B_,4)}, {c}"
def mf32(d, A_, B_, c=None):
    c = v(d, 16) if c is None else c
    return f"v_mfma_f32_32x32x16_bf16 {v(d,16)}, {v(A_,4)}, {v(B_,4)}, {c}"
def reduce_rows16_32(A, xs, ts):
    for op in ("v_permlane16_swap_b32", "v_permlane32_swap_b32"):
        for x, t in zip(xs, ts): A(f"v_mov_b32 {v(t)}, {v(x)}")
        A("s_nop 1")
        for x, t in zip(xs, ts): A(f"{op} {v(t)}, {v(x)}")
        A("s_nop 1")
        for x, t in zip(xs, ts): A(f"v_add_f32 {v(x)}, {v(x)}, {v(t)}")
def lane_decomp(A):
    A("v_and_b32 v1, 63, v0")
    A("v_lshrrev_b32 v2, 4, v1")
    A("v_bfe_u32 v3, v1, 2, 2")
    A("v_and_b32 v4, 3, v1")
    A("v_and_b32 v5, 15, v1")
    A("v_lshlrev_b32 v6, 4, v1")
def emit(A, L):
    for i in L:
        if isinstance(i, list): emit(A, i)
        else: A(i)

SPIN_MAX = 1 << 18
def pub_prep(A, ph, sg, sj):
    A(f"s_lshl_b32 s3, {s(sg)}, 8")
    A(f"s_lshl_b32 s28, {s(sj)}, 3")
    A("s_add_u32 s3, s3, s28")
    A(f"s_add_u32 s3, s3, {ph*4096}")
    A("v_mov_b32 v250, s3")
    if OPT("PUBFIRST", 1) and ph > 0:
        A("s_waitcnt vmcnt(0)")
        stamp(A, ph, 4)
        publish(A, force=True)
def publish(A, force=False):
    if OPT("PUBFIRST", 1) and not force: return
    srd(A, 56, 6, WS_FL, 6 * 4096)
    A("s_barrier")
    skip = A.newlabel("pub_skip")
    A("s_cmp_lg_u32 s20, 0")
    A(f"s_cbranch_scc1 {skip}")
    A("s_mov_b64 exec, 1")
    A("buffer_store_dwordx2 v[248:249], v250, s[56:59], 0 offen sc1")
    A("s_mov_b64 exec, -1")
    A.label(skip)

def wait_flags(A, ph, sg, n, also_all=None, soff=None):
    skip = A.newlabel("wf_skip"); loop = A.newlabel("wf_loop"); done = A.newlabel("wf_done")
    A("s_cmp_lg_u32 s20, 0")
    A(f"s_cbranch_scc1 {skip}")
    srd(A, 56, 6, WS_FL, 6 * 4096)
    A(f"s_lshl_b32 s3, {s(sg)}, 8")
    A(f"s_add_u32 s3, s3, {ph*4096}")
    if soff is not None: A(f"s_add_u32 s3, s3, {s(soff)}")
    A(f"v_and_b32 v22, {n-1}, v0")
    A("v_lshlrev_b32 v22, 3, v22")
    A("v_lshlrev_b32 v23, 3, v0")
    if also_all is not None: A(f"s_mov_b32 s29, {also_all*4096}")
    A(f"s_mov_b32 s28, {SPIN_MAX}")
    PP = OPT("PPOLL", 0)
    if also_all is not None:
        l2 = A.newlabel("wf_all")
        A.label(l2)
        for j in range(4):
            A(f"buffer_load_dwordx2 {v(24+2*j,2)}, v23, s[56:59], s29 offen offset:{j*512} sc1")
        A("buffer_load_dwordx2 v[252:253], v22, s[56:59], s3 offen sc1")
        A("s_waitcnt vmcnt(1)")
        A(f"v_cmp_ne_u64 vcc, {s(sNON,2)}, v[24:25]")
        for j in range(1, 4):
            A(f"v_cmp_ne_u64 s[60:61], {s(sNON,2)}, {v(24+2*j,2)}")
            A("s_nop 1")
            A("s_or_b64 vcc, vcc, s[60:61]")
        A("s_sub_u32 s28, s28, 1")
        A("s_cmp_eq_u32 s28, 0")
        A(f"s_cbranch_scc1 {skip}")
        A("s_cmp_eq_u64 vcc, 0")
        A(f"s_cbranch_scc0 {l2}")
    else:
        A("buffer_load_dwordx2 v[252:253], v22, s[56:59], s3 offen sc1")
    if PP:
        A(f"s_sleep {PP}")
        A.label(loop)
        for a_, b_ in ((252, 254), (254, 252)):
            A(f"buffer_load_dwordx2 {v(b_,2)}, v22, s[56:59], s3 offen sc1")
            A("s_waitcnt vmcnt(1)")
            A(f"v_cmp_ne_u64 vcc, {s(sNON,2)}, {v(a_,2)}")
            A("s_nop 1")
            A("s_cmp_eq_u64 vcc, 0")
            A(f"s_cbranch_scc1 {done}")
        A("s_sub_u32 s28, s28, 1")
        A("s_cmp_lg_u32 s28, 0")
        A(f"s_cbranch_scc1 {loop}")
        A.label(done)
    else:
        A.label(loop)
        A("s_waitcnt vmcnt(0)")
        A(f"v_cmp_ne_u64 vcc, {s(sNON,2)}, v[252:253]")
        A("s_nop 1")
        A("s_cmp_eq_u64 vcc, 0")
        A(f"s_cbranch_scc1 {skip}")
        A(f"s_sleep {OPT('SLEEP', 1)}")
        A("buffer_load_dwordx2 v[252:253], v22, s[56:59], s3 offen sc1")
        A("s_sub_u32 s28, s28, 1")
        A("s_cmp_lg_u32 s28, 0")
        A(f"s_cbranch_scc1 {loop}")
    A.label(skip)
    A("s_barrier")

sRd, sWr, sGo, sCnt, sM = 23, 24, 25, 27, 30
def ring_advance(slot, R):
    return [f"s_mov_b32 {s(sWr)}, {s(sRd)}",
            f"s_add_u32 {s(sRd)}, {s(sRd)}, {slot}",
            f"s_cmp_eq_u32 {s(sRd)}, {slot*R}",
            f"s_cselect_b32 {s(sRd)}, 0, {s(sRd)}"]

def adv(d, SC=0):
    if not SC: return [f"s_add_u32 {s(sGo)}, {s(sGo)}, {hex(d)}"]
    return ["s_add_u32 s38, s38, 1",
            "s_add_u32 s3, s38, s39",
            f"s_and_b32 s3, s3, {SC-1}",
            f"s_andn2_b32 {s(sGo)}, s38, {SC-1}",
            f"s_or_b32 s3, s3, {s(sGo)}",
            f"s_mul_i32 s3, s3, {hex(d)}",
            f"s_add_u32 {s(sGo)}, s3, s37"]
def rot_init(A, d, SC):
    A(f"s_mov_b32 s37, {s(sGo)}")
    A("s_mov_b32 s38, -1")
    emit(A, adv(d, SC))

def xdma(dX, SC=0, srd_='s[8:11]'):
    g = [[f"s_add_u32 m0, {s(sWr)}, {s(sM)}", "s_nop 0",
          f"buffer_load_dwordx4 v6, {srd_}, {s(sGo)} offen{LDF} lds"]]
    for j in range(1, 4):
        g.append([f"buffer_load_dwordx4 v6, {srd_}, {s(sGo)} offen offset:{j*1024}{LDF} lds"])
    g[-1] += adv(dX, SC)
    return g

def fill_ring(A, R, SLOT, dma, lo=0, hi=None, bar=False, slot0=0):
    for st in range(lo, R if hi is None else hi):
        if dma is not None:
            A(f"s_mov_b32 {s(sWr)}, {((st+slot0)%R)*SLOT}")
            emit(A, dma())
        if bar and st < R - 1: A("s_barrier")

def fill_rest(A, R, SLOT, dma, done):
    st = done
    for b in range(R - 1):
        A("s_barrier")
        if st < R:
            A(f"s_mov_b32 {s(sWr)}, {st*SLOT}")
            emit(A, dma()); st += 1
    assert st == R

def gemm_loop(A, ph, label, role, R, SLOT, NST, ndma, mfmas, reads, dma_groups, addr_upd, tail_hook=None, cnt_sgpr=None, top_hook=None, slot0=0):
    T = R + (R % 2) if OPT("TAIL", 1) else 0
    A(f"s_mov_b32 {s(sRd)}, {slot0*SLOT}")
    emit(A, addr_upd())
    A(f"s_waitcnt vmcnt({ndma*(R-1)})")
    A("s_barrier")
    stamp(A, ph, 2); cyc(A, ph, 0)
    emit(A, reads(0))
    emit(A, ring_advance(SLOT, R))
    emit(A, addr_upd())
    A(f"s_mov_b32 {s(sCnt)}, {(NST-T)//2 if cnt_sgpr is None else s(cnt_sgpr)}")
    PRE = OPT("PRE_" + str(ph), OPT("PRE", 0))
    BK = OPT("BK", 1)
    def snake(M):
        return M
    def stage(p, dma, nout, last, hook=None, extra=0, loopend=False, inloop=False):
        M = mfmas(p); Rd = reads(1 - p); D = dma_groups() if dma else []
        if hook: D = D + [hook]
        nm = len(M)
        if last:
            A("s_waitcnt lgkmcnt(0)")
            if (tail_hook or {}).get('endbar'): A("s_barrier")
            if hook:
                h0 = (tail_hook or {}).get('lastpos', 0)
                emit(A, interleave(M, [[x] for x in hook], h0, nm))
            else:
                emit(A, M)
            return
        book = ring_advance(SLOT, R) + addr_upd()
        cnt = [f"s_sub_u32 {s(sCnt)}, {s(sCnt)}, 1", f"s_cmp_lg_u32 {s(sCnt)}, 0"] if loopend else []
        if role == "A":
            pre = min(PRE, nm // 2)
            if pre:
                A("s_waitcnt lgkmcnt(0)")
                emit(A, M[:pre])
                A(f"s_waitcnt vmcnt({ndma*nout+extra})")
            else:
                A(f"s_waitcnt vmcnt({ndma*nout+extra}) lgkmcnt(0)")
            A("s_barrier")
            if inloop and p == 0 and top_hook: emit(A, top_hook)
            Mr = M[pre:]; nr = len(Mr)
            if BK and dma:
                m0set = D[0][0]; D = [D[0][2:]] + D[1:]
                emit(A, interleave(Mr, Rd, 0, max(1, nr - 2) if not OPT("RAN", 0) else max(1, (OPT("RAN", 0) * nr) // 12)))
                A(m0set)
                emit(A, book)
                emit(A, D)
                emit(A, cnt)
            else:
                emit(A, interleave(Mr, Rd, 0, max(1, nr - 2) if dma else max(1, (2 * nr) // 3)))
                emit(A, D)
                emit(A, book); emit(A, cnt)
        else:
            A(f"s_waitcnt vmcnt({ndma*nout+extra}) lgkmcnt(0)")
            A("s_barrier")
            if inloop and p == 0 and top_hook: emit(A, top_hook)
            emit(A, D)
            if BK:
                h = max(1, (OPT("RBN", 8) * nm) // 12)
                emit(A, interleave(M[:h], Rd))
                emit(A, interleave(M[h:], [[x] for x in book[:2]] + [book[2:4]] + [[x] for x in book[4:]] + ([cnt] if cnt else []), 0, max(1, nm - h - 1)))
            else:
                emit(A, interleave(M, Rd, 0, max(1, (2 * nm) // 3)))
                emit(A, book); emit(A, cnt)
    A.raw(".p2align 6")
    A.label(label)
    for p in range(2): stage(p, True, R - 2, False, loopend=(p == 1), inloop=True)
    A(f"s_cbranch_scc1 {label}")
    for st in range(NST - T, NST):
        stage(st % 2, st + R < NST, min(R - 2, NST - 2 - st), st == NST - 1, (tail_hook or {}).get(NST - st), (tail_hook or {}).get(('x', NST - st), 0))
    if not T: A("s_waitcnt lgkmcnt(0)")
    A("s_nop 7")
    if OPT("ENDBAR", 0) or (ph == 1 and OPT("RAW", 0)): A("s_barrier")
    cyc(A, ph, 1); stamp(A, ph, 3)

def code_touch(A, vd=26):
    if not OPT("CT", 0): return
    l = A.newlabel("ct")
    A("s_getpc_b64 s[56:57]")
    A.label(l)
    A(f"s_sub_u32 s56, s56, {l}-{NAME}")
    A("s_subb_u32 s57, s57, 0")
    A(f"s_mov_b32 s58, code_end-{NAME}")
    A("s_mov_b32 s59, 0x20000")
    A("v_lshlrev_b32 v20, 7, v1")
    A("s_lshl_b32 s28, s31, 13")
    A(f"buffer_load_dword {v(vd)}, v20, s[56:59], s28 offen")

def code_touch_list(A, frm, vd, va):
    l = A.newlabel("ct")
    return ["s_getpc_b64 s[56:57]", f"{l}:",
            f"s_add_u32 s56, s56, {frm}-{l}", "s_addc_u32 s57, s57, 0",
            "s_and_b32 s56, s56, 0xffffff80",
            f"s_mov_b32 s58, code_end-{frm}", "s_mov_b32 s59, 0x20000",
            f"v_lshlrev_b32 {v(va)}, 7, v1", "s_lshl_b32 s28, s31, 13",
            f"buffer_load_dword {v(vd)}, {v(va)}, s[56:59], s28 offen"]

def w_swz_voff(A, dst, rowstride):
    A(f"v_lshrrev_b32 {v(dst)}, 3, v1")
    A(f"v_mul_u32_u24 {v(dst)}, {rowstride}, {v(dst)}")
    A("v_and_b32 v20, 7, v1")
    A("v_lshlrev_b32 v21, 1, v2")
    A("v_xor_b32 v20, v20, v21")
    A(f"v_lshl_add_u32 {v(dst)}, v20, 4, {v(dst)}")

def ph_ln_qkv(A):
    R, SLOT, NST = 4, 40960, 16
    A(f"s_load_dwordx4 s[40:43], s[0:1], {KA_X}")
    A(f"s_load_dwordx4 s[4:7], s[0:1], {KA_DBG}")
    A("s_memrealtime s[62:63]")
    A("v_lshrrev_b32 v1, 6, v0")
    A("s_nop 0")
    A("v_readfirstlane_b32 s20, v1")
    lane_decomp(A)
    A("s_and_b32 s21, s2, 1")
    A("s_lshl_b32 s21, s21, 3")
    A("s_bfe_u32 s28, s2, 0x30003")
    A("s_add_u32 s21, s21, s28")
    A("s_bfe_u32 s22, s2, 0x20001")
    A("s_lshl_b32 s22, s22, 2")
    A("s_lshr_b32 s28, s2, 6")
    A("s_add_u32 s22, s22, s28")
    A("s_and_b32 s31, s20, 3")
    QSC = OPT("QSC", 8)
    A("s_and_b32 s39, s21, 3")
    A(f"s_mul_i32 s39, s39, {QSC//4}")
    A("s_cmp_ge_u32 s20, 4")
    A("s_cbranch_scc1 p0_B")
    A("v_and_b32 v7, 7, v1")
    A("v_bfe_u32 v8, v1, 3, 2")
    A("v_lshrrev_b32 v9, 5, v1")
    A("v_lshlrev_b32 v10, 11, v7")
    A("v_lshl_add_u32 v10, v9, 6, v10")
    A("v_lshl_add_u32 v10, v8, 3, v10")
    A("s_lshl_b32 s3, s2, 14")
    A("s_lshl_b32 s28, s20, 9")
    A("s_add_u32 s3, s3, s28")
    A("s_waitcnt lgkmcnt(0)")
    if PROF: A("s_mov_b32 s66, s62")
    srd(A, 8, 40, 0, 4*MB)
    for i in range(4):
        A(f"buffer_load_dwordx2 {v(32+4*i,2)}, v10, s[8:11], s3 offen offset:{i*128}")
        A(f"buffer_load_dwordx2 {v(34+4*i,2)}, v10, s[8:11], s3 offen offset:{i*128+32}")
    srd(A, 16, 4, 0, 256)
    A("s_or_b32 s28, s2, s20")
    A("s_cmp_lg_u32 s28, 0")
    A("s_cbranch_scc1 p0_nopub")
    A("s_or_b32 s62, s62, 1")
    A("v_mov_b32 v20, s62")
    A("v_mov_b32 v21, s63")
    A("v_mov_b32 v22, 0")
    A("s_mov_b64 exec, 1")
    A("buffer_store_dwordx2 v[20:21], v22, s[16:19], 0 offen sc1")
    A("s_mov_b64 exec, -1")
    A("s_waitcnt vmcnt(0)")
    A.label("p0_nopub")
    srd(A, 12, 6, WS_XN, 4*MB)
    A("v_lshlrev_b32 v11, 17, v9")
    A("v_lshl_add_u32 v11, v7, 4, v11")
    A("v_lshl_add_u32 v11, v8, 8, v11")
    A("s_lshr_b32 s32, s2, 1")
    A("s_lshl_b32 s32, s32, 10")
    A("s_and_b32 s33, s2, 1")
    A("s_lshl_b32 s33, s33, 7")
    A("s_add_u32 s32, s32, s33")
    A("s_lshl_b32 s33, s20, 20")
    A("s_add_u32 s32, s32, s33")
    A("s_add_u32 s33, s32, 0x40000")
    A("s_add_u32 s34, s32, 0x80000")
    A("s_add_u32 s35, s32, 0xc0000")
    A("v_mov_b32 v24, 0")
    A("v_mov_b32 v25, 0")
    U = 64
    for j in range(16):
        if j % 2 == 0: A(f"s_waitcnt vmcnt({7 - j//2})")
        A(f"v_lshlrev_b32 {v(U+2*j)}, 16, {v(32+j)}")
        A(f"v_and_b32 {v(U+1+2*j)}, 0xffff0000, {v(32+j)}")
        A(f"v_add_f32 v24, v24, {v(U+2*j)}")
        A(f"v_fmac_f32 v25, {v(U+2*j)}, {v(U+2*j)}")
        A(f"v_add_f32 v24, v24, {v(U+1+2*j)}")
        A(f"v_fmac_f32 v25, {v(U+1+2*j)}, {v(U+1+2*j)}")
    A("v_mov_b32 v22, 0")
    A("buffer_load_dwordx2 v[28:29], v22, s[16:19], 0 offen sc1")
    A("v_add_f32_dpp v24, v24, v24 row_ror:8 row_mask:0xf bank_mask:0xf")
    A("v_add_f32_dpp v25, v25, v25 row_ror:8 row_mask:0xf bank_mask:0xf")
    reduce_rows16_32(A, [24, 25], [26, 27])
    A("v_lshlrev_b32 v26, 5, v7")
    A("s_lshl_b32 s28, s20, 3")
    A("v_add_u32 v27, s28, v26")
    A("ds_write_b64 v27, v[24:25]")
    A("s_waitcnt lgkmcnt(0)")
    A("s_barrier")
    A("ds_read_b128 v[100:103], v26")
    A("ds_read_b128 v[104:107], v26 offset:16")
    A("s_waitcnt lgkmcnt(0)")
    A("v_pk_add_f32 v[24:25], v[100:101], v[102:103]")
    A("v_pk_add_f32 v[26:27], v[104:105], v[106:107]")
    A("v_pk_add_f32 v[24:25], v[24:25], v[26:27]")
    A(f"v_mul_f32 v24, {f32(1/1024)}, v24")
    A(f"v_mul_f32 v25, {f32(1/1024)}, v25")
    A("v_fma_f32 v25, -v24, v24, v25")
    A("v_max_f32 v25, 0, v25")
    A(f"v_add_f32 v25, {f32(1e-5)}, v25")
    A("v_rsq_f32 v25, v25")
    A("s_nop 0")
    A("v_mul_f32 v24, v24, v25")
    for j in range(16):
        A(f"v_fma_f32 {v(U+2*j)}, {v(U+2*j)}, v25, -v24")
        A(f"v_fma_f32 {v(U+1+2*j)}, {v(U+1+2*j)}, v25, -v24")
        A(f"v_cvt_pk_bf16_f32 {v(32+j)}, {v(U+2*j)}, {v(U+1+2*j)}")
        if j % 4 == 3:
            A(f"buffer_store_dwordx4 {v(32+j-3,4)}, v11, s[12:15], {s(32+j//4)} offen{STF}")
    stamp(A, 0, 3)
    A("s_lshr_b32 s32, s2, 4")
    A("s_and_b32 s33, s2, 15")
    pub_prep(A, 0, 32, 33)
    A(f"s_mov_b32 s28, {SPIN_MAX}")
    A.label("p0_nonce")
    A("s_waitcnt vmcnt(0)")
    A("v_readfirstlane_b32 s62, v28")
    A("v_readfirstlane_b32 s63, v29")
    A("s_nop 1")
    A("s_cmp_lg_u32 s62, 0")
    A("s_cbranch_scc1 p0_gotnonce")
    A("buffer_load_dwordx2 v[28:29], v22, s[16:19], 0 offen sc1")
    A("s_sub_u32 s28, s28, 1")
    A("s_cmp_lg_u32 s28, 0")
    A("s_cbranch_scc1 p0_nonce")
    A.label("p0_gotnonce")
    A("v_mov_b32 v248, s62")
    A("v_mov_b32 v249, s63")
    stamp(A, 0, 4)
    publish(A, force=True)
    A("v_mov_b32 v12, 0")
    A("s_lshr_b32 s28, s31, 1")
    A("s_lshl_b32 s28, s28, 7")
    A("s_lshl_b32 s29, s21, 3")
    A("s_add_u32 s28, s28, s29")
    A("s_and_b32 s29, s31, 1")
    A("s_lshl_b32 s29, s29, 2")
    A("s_add_u32 s28, s28, s29")
    A(f"s_lshl_b32 {s(sGo)}, s28, 10")
    if QSC: rot_init(A, 0x40000, QSC)
    A(f"s_lshl_b32 {s(sM)}, s31, 12")
    A("s_branch p1_common")
    A.label("p0_B")
    code_touch(A)
    w_swz_voff(A, 7, 6144)
    A(f"v_add_u32 v8, {8*6144-1024}, v7")
    A("v_add_u32 v9, 2048, v7")
    A("v_add_u32 v10, 2048, v8")
    A("v_add_u32 v11, 4096, v7")
    A("v_add_u32 v12, 4096, v8")
    A(f"s_mul_i32 s28, s31, {16*6144}")
    A("s_lshl_b32 s29, s22, 7")
    A(f"s_add_u32 {s(sGo)}, s28, s29")
    if QSC: rot_init(A, 64*6144, QSC)
    A(f"s_lshl_b32 {s(sM)}, s31, 11")
    A(f"s_add_u32 {s(sM)}, {s(sM)}, 16384")
    A("v_and_b32 v13, 31, v1")
    A("v_mul_u32_u24 v13, 6144, v13")
    A("v_lshrrev_b32 v14, 5, v1")
    A("v_lshl_add_u32 v15, v14, 11, v13")
    A("v_lshl_add_u32 v13, v14, 30, v13")
    A("v_add_u32 v13, 4096, v13")
    A("s_and_b32 s28, s21, 7")
    A("s_lshl_b32 s28, s28, 2")
    A("s_add_u32 s28, s28, s31")
    A(f"s_mul_i32 s28, s28, {32*6144}")
    A("s_add_u32 s28, s28, s29")
    A("s_waitcnt lgkmcnt(0)")
    if PROF: A("s_mov_b32 s66, s62")
    srd(A, 12, 42, 0, 6*MB)
    def wdma():
        g = []
        for seg in range(3):
            g.append([f"s_add_u32 m0, {s(sWr)}, {s(sM)}" if seg == 0 else "s_add_u32 m0, m0, 8192", "s_nop 0",
                      f"buffer_load_dwordx4 {v(7+2*seg)}, s[12:15], {s(sGo)} offen lds"])
            g.append([f"buffer_load_dwordx4 {v(8+2*seg)}, s[12:15], {s(sGo)} offen offset:1024 lds"])
        g[-1] += adv(64*6144, QSC)
        return g
    TLBW = OPT("TLBW", 0)
    if TLBW:
        sh = TLBW
        per = 1 << (21 - sh)
        A(f"s_load_dwordx2 s[44:45], s[0:1], {KA_WO}")
        A(f"s_load_dwordx4 s[48:51], s[0:1], {KA_WG}")
        A(f"s_load_dwordx4 s[52:55], s[0:1], {KA_WD}")
        A("v_lshlrev_b32 v26, 21, v1")
        A("s_lshr_b32 s33, s2, 3")
        A(f"s_and_b32 s33, s33, {per-1}")
        A(f"s_lshl_b32 s33, s33, {sh}")
        A("s_waitcnt lgkmcnt(0)")
        for wv, lst in ((0, [(6, 81*MB)]), (1, [(54, 4*MB), (44, 2*MB)]), (2, [(48, 7*MB), (50, 7*MB)]), (3, [(52, 7*MB)])):
            l = A.newlabel("tw")
            A(f"s_cmp_lg_u32 s31, {wv}")
            A(f"s_cbranch_scc1 {l}")
            for b_, sz in lst:
                srd(A, 56, b_, 0, sz)
                A("buffer_load_dword v27, v26, s[56:59], s33 offen sc1")
            A.label(l)
    P0M = OPT("P0M", 7)
    def touches():
        A("buffer_load_dword v24, v15, s[12:15], s28 offen")
        A("buffer_load_dword v25, v13, s[12:15], s28 offen")
    if P0M == 0:
        touches()
        fill_ring(A, R, SLOT, wdma, 0, 2)
        A("s_barrier")
        fill_ring(A, R, SLOT, wdma, 2, 4)
        A("s_barrier")
    elif P0M == 1:
        A("s_barrier")
        touches()
        fill_ring(A, R, SLOT, wdma, 0, 2)
        A("s_barrier")
        fill_ring(A, R, SLOT, wdma, 2, 4)
    elif P0M == 2:
        fill_ring(A, R, SLOT, wdma, 0, 2)
        A("s_barrier")
        touches()
        fill_ring(A, R, SLOT, wdma, 2, 4)
        A("s_barrier")
        A("s_waitcnt vmcnt(0)")
    elif P0M == 4:
        A("s_barrier")
        fill_ring(A, R, SLOT, wdma, 0, 2)
        A("s_barrier")
        fill_ring(A, R, SLOT, wdma, 2, 4)
    elif P0M == 5:
        fill_ring(A, R, SLOT, wdma, 0, 4)
        A("s_barrier")
        A("s_barrier")
    elif P0M == 6:
        fill_ring(A, R, SLOT, wdma, 0, 2)
        A("s_barrier")
        A("s_barrier")
        fill_ring(A, R, SLOT, wdma, 2, 4)
    elif P0M in (7, 8, 9):
        def ctouch():
            A("v_lshlrev_b32 v15, 7, v1")
            A("v_cmp_gt_u32 vcc, 48, v1")
            A("v_mov_b32 v13, 0x7fffffff")
            A("s_lshl_b32 s28, s2, 2")
            A("s_add_u32 s28, s28, s31")
            A("v_cndmask_b32 v15, v13, v15, vcc")
            A("s_mul_i32 s28, s28, 6144")
            A("buffer_load_dword v24, v15, s[12:15], s28 offen")
        if P0M == 7:
            ctouch()
            fill_ring(A, R, SLOT, wdma, 0, 2)
            A("s_barrier"); A("s_barrier")
            fill_ring(A, R, SLOT, wdma, 2, 4)
        elif P0M == 8:
            ctouch()
            A("s_waitcnt vmcnt(0)")
            A("s_barrier")
            fill_ring(A, R, SLOT, wdma, 0, 2)
            A("s_barrier")
            fill_ring(A, R, SLOT, wdma, 2, 4)
        else:
            ctouch()
            A("s_barrier"); A("s_barrier")
            fill_ring(A, R, SLOT, wdma, 0, 4)
    elif P0M == 3:
        fill_ring(A, R, SLOT, wdma, 0, 2)
        A("s_barrier")
        fill_ring(A, R, SLOT, wdma, 2, 4)
        A("s_barrier")

    A.label("p1_common")
    ACC = 64
    def acc(f, i): return ACC + (f * 4 + i) * 4
    SET = [112, 168]
    def xf(p, kk, i): return SET[p] + (kk * 4 + i) * 4
    def wf(p, kk, f): return SET[p] + 32 + (kk * 3 + f) * 4
    srd(A, 8, 6, WS_XN, 4*MB)
    srd(A, 12, 42, 0, 6*MB)
    srd(A, 16, 6, WS_Q, 12*MB)
    A("s_and_b32 s28, s20, 1")
    A("s_lshl_b32 s28, s28, 12")
    A("v_add_u32 v32, s28, v6")
    A("v_lshl_add_u32 v33, v2, 2, v3")
    A("v_lshlrev_b32 v33, 7, v33")
    A("v_lshl_add_u32 v33, v4, 3, v33")
    A("v_add_u32 v33, 16384, v33")
    A("v_bfe_u32 v34, v1, 3, 2")
    A("s_lshr_b32 s28, s20, 1")
    A("s_and_b32 s29, s28, 1")
    A("s_lshl_b32 s29, s29, 1")
    A("s_lshr_b32 s32, s28, 1")
    A("s_lshl_b32 s32, s32, 13")
    A("v_xor_b32 v35, s29, v34")
    A("v_lshl_add_u32 v35, v35, 5, v33")
    A("v_add_u32 v35, s32, v35")
    A("v_xor_b32 v36, 32, v35")
    A("v_xor_b32 v37, s28, v34")
    A("v_lshl_add_u32 v37, v37, 5, v33")
    A("v_add_u32 v37, 16384, v37")
    for i in range(48): A(f"v_mov_b32 {v(ACC+i)}, 0")
    stamp(A, 1, 0)
    wait_flags(A, 0, 21, 16)
    stamp(A, 1, 1)
    def reads(p):
        out = []
        for kk in range(2):
            for f in range(3):
                for t in range(2):
                    out.append([f"ds_read_b64_tr_b16 {v(wf(p,kk,f)+2*t,2)}, {v(17+f)} offset:{kk*4096+t*2048}"])
            for i in range(4):
                out.append([f"ds_read_b128 {v(xf(p,kk,i),4)}, v16 offset:{kk*8192+i*1024}"])
        return out
    def addr_upd():
        return [f"v_add_u32 v16, {s(sRd)}, v32", f"v_add_u32 v17, {s(sRd)}, v35",
                f"v_add_u32 v18, {s(sRd)}, v36", f"v_add_u32 v19, {s(sRd)}, v37"]
    def mfmas(p):
        M = []
        for kk in range(2):
            for f in range(3):
                for i in (range(4) if (f % 2 == 0 or not OPT("SNAKE", 1)) else range(3, -1, -1)):
                    if f < 2: M.append(mf16(acc(f, i), wf(p, kk, f), xf(p, kk, i)))
                    else:     M.append(mf16(acc(f, i), xf(p, kk, i), wf(p, kk, f)))
        return M
    A("s_cmp_ge_u32 s20, 4")
    A("s_cbranch_scc1 qkv_B")
    fill_ring(A, R, SLOT, lambda: xdma(0x40000, QSC), bar=True)
    gemm_loop(A, 1, "qkv_loopA", "A", R, SLOT, NST, 4, mfmas, reads, lambda: xdma(0x40000, QSC), addr_upd,
              {4: code_touch_list(A, "qkv_epi", 251, 252), ('x', 3): 1, ('x', 2): 1} if OPT("CTQ", 1) else None)
    A("s_branch qkv_epi")
    A.label("qkv_B")
    fill_ring(A, R, SLOT, None, bar=True)
    gemm_loop(A, 1, "qkv_loopB", "B", R, SLOT, NST, 6, mfmas, reads, wdma, addr_upd)
    A.label("qkv_epi")
    A(f"s_load_dwordx2 s[40:41], s[0:1], {KA_WO}")
    A(f"s_load_dwordx4 s[44:47], s[0:1], {KA_WG}")
    A(f"s_load_dwordx2 s[42:43], s[0:1], {KA_WD}")
    A("v_lshlrev_b32 v9, 9, v2")
    A("v_lshrrev_b32 v7, 3, v5")
    A("v_lshl_add_u32 v7, v7, 8, v9")
    A("v_and_b32 v8, 7, v5")
    A("v_lshl_add_u32 v7, v8, 4, v7")
    A("v_lshl_add_u32 v8, v5, 4, v9")
    A("s_lshr_b32 s28, s20, 1")
    A("s_and_b32 s29, s28, 1")
    A("s_lshr_b32 s32, s28, 1")
    A("s_and_b32 s33, s20, 1")
    A("s_lshl_b32 s34, s21, 2")
    A("s_lshl_b32 s33, s33, 1")
    A("s_add_u32 s34, s34, s33")
    A("s_lshl_b32 s34, s34, 11")
    A("s_lshl_b32 s35, s22, 1")
    A("s_add_u32 s36, s35, s29")
    A("s_lshl_b32 s36, s36, 17")
    A("s_add_u32 s36, s36, s34")
    A("s_lshl_b32 s37, s32, 22")
    A("s_add_u32 s36, s36, s37")
    A("s_add_u32 s38, s35, s32")
    A("s_lshl_b32 s38, s38, 17")
    A("s_add_u32 s38, s38, s34")
    A("s_lshl_b32 s37, s29, 8")
    A("s_add_u32 s38, s38, s37")
    A(f"s_add_u32 s38, s38, {8*MB}")
    A("s_cmp_eq_u32 s32, 0")
    A(f"s_cselect_b32 s39, {f32(QSCALE)}, 1.0")
    A("v_mov_b32 v20, s39")
    A("v_mov_b32 v21, s39")
    T = 128
    for pr in range(2):
        for ii in range(2):
            for h in range(2):
                A(f"v_cvt_pk_bf16_f32 {v(T+4*pr+2*ii+h)}, {v(acc(2,2*pr+ii)+2*h)}, {v(acc(2,2*pr+ii)+2*h+1)}")
        A(f"buffer_store_dwordx4 {v(T+4*pr,4)}, v8, s[16:19], s38 offen offset:{pr*2048}{STF}")
    T = 112
    for i in range(4):
        for f in range(2):
            for h in range(2):
                if OPT("NOPK", 1):
                    A(f"v_mul_f32 {v(acc(f,i)+2*h)}, {v(acc(f,i)+2*h)}, v20")
                    A(f"v_mul_f32 {v(acc(f,i)+2*h+1)}, {v(acc(f,i)+2*h+1)}, v20")
                else:
                    A(f"v_pk_mul_f32 {v(acc(f,i)+2*h,2)}, {v(acc(f,i)+2*h,2)}, v[20:21]")
        for f in range(2):
            for h in range(2):
                A(f"v_cvt_pk_bf16_f32 {v(T+4*i+2*f+h)}, {v(acc(f,i)+2*h)}, {v(acc(f,i)+2*h+1)}")
        A(f"buffer_store_dwordx4 {v(T+4*i,4)}, v7, s[16:19], s36 offen offset:{(i>>1)*2048+(i&1)*128}{STF}")
    pub_prep(A, 1, 22, 21)
    A("s_waitcnt lgkmcnt(0)")

def ph_attn(A):
    R, SLOT = 3, 32768
    WL = R * SLOT
    Q, NEGM, S0, S1, P, KF, VF, O, L, ONES = 8, 32, 48, 64, 80, 88, 96, 104, 120, 124
    S_ = [S0, S1]
    if OPT("PAR", 0):
        A("s_bfe_u32 s21, s2, 0x20001")
        A("s_lshl_b32 s21, s21, 3")
        A("s_lshr_b32 s28, s2, 5")
        A("s_add_u32 s21, s21, s28")
        A("s_and_b32 s22, s2, 1")
        A("s_lshl_b32 s22, s22, 2")
        A("s_bfe_u32 s28, s2, 0x20003")
        A("s_add_u32 s22, s22, s28")
    else:
        A("s_and_b32 s21, s2, 7")
        A("s_lshl_b32 s21, s21, 2")
        A("s_bfe_u32 s28, s2, 0x20003")
        A("s_add_u32 s21, s21, s28")
        A("s_lshr_b32 s22, s2, 5")
    A("s_lshr_b32 s32, s2, 1")
    A("s_and_b32 s33, s2, 1")
    sCo, sCM = 26, 29
    A("s_cmp_ge_u32 s32, 56")
    A("s_cselect_b32 s48, s46, s44")
    A("s_cselect_b32 s49, s47, s45")
    A("s_cselect_b32 s34, 56, 0")
    A("s_sub_u32 s34, s32, s34")
    A("s_mov_b32 s51, 0x20000")
    A("s_lshl_b32 s34, s34, 7")
    A(f"s_mul_i32 s35, s33, {512*7168}")
    A("s_add_u32 s34, s34, s35")
    A(f"s_add_u32 s35, s35, {512*7168}")
    A("s_cmp_lt_u32 s2, 224")
    A("s_cselect_b32 s50, s35, 0")
    A(f"s_mul_i32 s35, s31, {16*7168}")
    A(f"s_add_u32 {s(sCo)}, s34, s35")
    w_swz_voff(A, 7, 7168)
    A(f"v_add_u32 v129, {8*7168-1024}, v7")
    srd(A, 52, 40, 0, 2*MB)
    srd(A, 44, 42, 0, 7*MB)
    A("s_lshl_b32 s35, s2, 2")
    A("s_add_u32 s35, s35, s31")
    A("v_lshlrev_b32 v8, 7, v1")
    A("v_mov_b32 v9, 0x7fffffff")
    A("s_lshl_b32 s34, s35, 11")
    A("v_add_u32 v130, s34, v8")
    A("v_cmp_gt_u32 vcc, 16, v1")
    A("s_lshl_b32 s60, s35, 10")
    A("s_nop 0")
    A("v_cndmask_b32 v130, v9, v130, vcc")
    A("s_and_b32 s34, s35, 1")
    A("s_lshl_b32 s34, s34, 3")
    A("v_lshrrev_b32 v8, 3, v1")
    A("v_add_u32 v8, s34, v8")
    A(f"v_mul_u32_u24 v8, {3584*128}, v8")
    A("s_bfe_u32 s34, s35, 0x20002")
    A("s_lshl_b32 s34, s34, 1")
    A("v_and_b32 v9, 7, v1")
    A("v_xor_b32 v9, s34, v9")
    A("v_lshl_add_u32 v131, v9, 4, v8")
    A("s_lshr_b32 s61, s35, 1")
    A("s_lshl_b32 s61, s61, 7")
    A(f"s_sub_u32 s61, s61, {512*128}")
    CP = 140
    def cp_load():
        return [f"buffer_load_dwordx4 {v(CP,4)}, v6, s[44:47], s60 offen", f"s_add_u32 s60, s60, {MB}"]
    def cp_store():
        return [f"s_cmp_lt_u32 s61, {3584*128}", f"s_cselect_b32 s58, {7*MB}, 0",
                f"buffer_store_dwordx4 {v(CP,4)}, v131, s[56:59], s61 offen{STF}", f"s_add_u32 s61, s61, {512*128}"]
    def cs_dma(j):
        if j == 0:
            return [f"s_mov_b32 m0, {s(sCM)}", f"s_add_u32 {s(sCM)}, {s(sCM)}, 8192",
                    f"buffer_load_dwordx4 v7, s[48:51], {s(sCo)} offen lds"]
        return [f"buffer_load_dwordx4 v129, s[48:51], {s(sCo)} offen offset:1024 lds",
                f"s_add_u32 {s(sCo)}, {s(sCo)}, {64*7168}"]
    A("s_lshl_b32 s28, s21, 17")
    A("s_add_u32 s4, s6, s28")
    A("s_addc_u32 s5, s7, 0")
    srd(A, 8, 4, WS_K, 131072)
    srd(A, 12, 4, WS_VT, 131072)
    srd(A, 16, 4, WS_Q, 131072)
    srd(A, 36, 6, WS_O, 4*MB)
    A(f"s_lshl_b32 {s(sGo)}, s31, 12")
    A(f"s_lshl_b32 {s(sM)}, s31, 12")
    A("v_lshrrev_b32 v16, 2, v1")
    A("v_xor_b32 v16, v16, v2")
    A("v_and_b32 v16, 1, v16")
    A("v_cmp_eq_u32 vcc, 0, v16")
    A("v_mov_b32 v17, 0x3f803f80")
    A("s_nop 1")
    for i in range(4): A(f"v_cndmask_b32 {v(ONES+i)}, 0, v17, vcc")
    for i in range(16): A(f"v_mov_b32 {v(O+i)}, 0")
    for i in range(4): A(f"v_mov_b32 {v(L+i)}, 0")
    for i in range(4): A(f"v_mov_b32 {v(P+4+i)}, 0")
    for i in range(4): A(f"v_mov_b32 {v(VF+4+i)}, 0")
    A("v_mov_b32 v16, v6")
    A(f"v_add_u32 v17, {SLOT}, v6")
    A(f"s_mov_b32 {s(sRd)}, {SLOT}")
    A("s_lshr_b32 s34, s21, 1")
    A("s_lshl_b32 s35, s22, 3")
    A("s_add_u32 s35, s35, s20")
    A("s_lshl_b32 s35, s35, 11")
    if not OPT("PUBFIRST", 1):
        A("s_waitcnt vmcnt(0)")
        stamp(A, 1, 4)
    publish(A)
    stamp(A, 2, 0)
    wait_flags(A, 1, 34, 16)
    stamp(A, 2, 1)
    def kv(j):
        o = []
        if j % 4 == 0: o = [f"s_add_u32 m0, {s(sWr)}, {16384 if j >= 4 else 0}", "s_nop 0"]
        o += [f"buffer_load_dwordx4 v6, {'s[8:11]' if j < 4 else 's[12:15]'}, {s(sGo)} offen offset:{(j&3)*1024}{LDF} lds"]
        if j == 7:
            o += [f"s_add_u32 {s(sGo)}, {s(sGo)}, 16384",
                  f"s_add_u32 {s(sWr)}, {s(sWr)}, {SLOT}",
                  f"s_cmp_ge_u32 {s(sWr)}, {SLOT*R}",
                  f"s_cselect_b32 {s(sWr)}, {s(sM)}, {s(sWr)}"]
        return o
    srd(A, 56, 6, WS_WD, 7*MB)
    if OPT("NOSIDE", 0):
        A("s_mov_b32 s50, 0"); A("s_mov_b32 s46, 0"); A("s_mov_b32 s54, 0"); A("s_mov_b32 s61, 0x10000000")
    A(f"s_mov_b32 {s(sWr)}, {s(sM)}")
    A(f"s_lshl_b32 {s(sCM)}, s31, 11")
    A(f"s_add_u32 {s(sCM)}, {s(sCM)}, {WL}")
    def kread(t, j, dst=None):
        a_ = 16 if t < 8 else 17
        return f"ds_read_b128 {v(KF+4*j if dst is None else dst,4)}, {v(a_)} offset:{(t%8)*2048+j*1024}"
    def vread(t, j):
        a_ = 16 if t < 8 else 17
        return f"ds_read_b128 {v(VF+4*j,4)}, {v(a_)} offset:{16384+(t%8)*2048+j*1024}"
    qld = [f"buffer_load_dwordx4 {v(Q,4)}, v6, s[16:19], s35 offen{LDF}",
           f"buffer_load_dwordx4 {v(Q+4,4)}, v6, s[16:19], s35 offen offset:1024{LDF}"]
    if OPT("ATQ", 1):
        A("s_cmp_eq_u32 s20, 0")
        A("s_cbranch_scc1 at_W0")
        emit(A, qld)
        A("s_cmp_ge_u32 s20, 4")
        A("s_cbranch_scc1 at_B0")
        for j in range(4): emit(A, kv(j))
        A("s_waitcnt vmcnt(4)")
        A("s_branch at_C0")
        A.label("at_B0")
        for j in range(4, 7): emit(A, kv(j))
        emit(A, kv(7)[:1])
        A("s_waitcnt vmcnt(4)")
        A("s_branch at_C0")
        A.label("at_W0")
        for j in range(4): emit(A, kv(j))
        emit(A, qld)
        A("s_waitcnt vmcnt(0)")
        A.label("at_C0")
        emit(A, kv(7)[1:])
        A("s_barrier")
        stamp(A, 2, 2); cyc(A, 2, 0)
        A(kread(0, 0, S1)); A(kread(0, 1, S1+4))
        A(kread(1, 0)); A(kread(1, 1))
        A("s_waitcnt lgkmcnt(2)")
    else:
        A("s_cmp_ge_u32 s20, 4")
        A("s_cbranch_scc1 at_B0")
        for j in range(4): emit(A, kv(j))
        A("s_branch at_C0")
        A.label("at_B0")
        for j in range(4, 7): emit(A, kv(j))
        emit(A, kv(7)[:1])
        A.label("at_C0")
        A(f"buffer_load_dwordx4 {v(Q,4)}, v6, s[16:19], s35 offen{LDF}")
        A(f"buffer_load_dwordx4 {v(Q+4,4)}, v6, s[16:19], s35 offen offset:1024{LDF}")
        emit(A, kv(7)[1:])
        A("s_waitcnt vmcnt(0)")
        A("s_barrier")
        stamp(A, 2, 2); cyc(A, 2, 0)
        def kread(t, j, dst=None):
            a_ = 16 if t < 8 else 17
            return f"ds_read_b128 {v(KF+4*j if dst is None else dst,4)}, {v(a_)} offset:{(t%8)*2048+j*1024}"
        def vread(t, j):
            a_ = 16 if t < 8 else 17
            return f"ds_read_b128 {v(VF+4*j,4)}, {v(a_)} offset:{16384+(t%8)*2048+j*1024}"
        A(kread(0, 0, S1)); A(kread(0, 1, S1+4))
        A(kread(1, 0)); A(kread(1, 1)); A(vread(0, 0))
        A("s_cmp_ge_u32 s20, 4")
        A("s_cbranch_scc1 at_C1")
        for j in range(4): emit(A, kv(j))
        A("buffer_load_dword v128, v130, s[52:55], 0 offen")
        emit(A, cs_dma(0)); emit(A, cs_dma(1))
        if OPT("CT", 0) >= 2:
            A("s_branch at_C2")
        A.label("at_C1")
        if OPT("CT", 0) >= 2:
            code_touch(A, 128)
            srd(A, 56, 6, WS_WD, 7*MB)
            A.label("at_C2")
        A("s_waitcnt lgkmcnt(3)")
    A(mf32(S0, S1, Q, "0"))
    A(mf32(S0, S1+4, Q+4))
    A("s_nop 15")
    A("s_nop 3")
    A(f"v_max3_f32 v18, {v(S0)}, {v(S0+1)}, {v(S0+2)}")
    for i in range(3, 15, 2): A(f"v_max3_f32 v18, v18, {v(S0+i)}, {v(S0+i+1)}")
    A(f"v_max_f32 v18, v18, {v(S0+15)}")
    A("v_mov_b32 v19, v18")
    A("s_nop 1")
    A("v_permlane32_swap_b32 v19, v18")
    A("s_nop 1")
    A("v_max_f32 v18, v18, v19")
    for i in range(16): A(f"v_sub_f32 {v(NEGM+i)}, 0, v18")
    for i in range(16): A(f"v_sub_f32 {v(S0+i)}, {v(S0+i)}, v18")
    A(f"s_mov_b32 {s(sCnt)}, 8")
    if OPT("ATQ", 1):
        A("s_waitcnt vmcnt(0)")
        A("s_barrier")
        A(vread(0, 0))
        A("s_cmp_ge_u32 s20, 4")
        A("s_cbranch_scc1 at_C1")
        for j in range(4): emit(A, kv(j))
        A("buffer_load_dword v128, v130, s[52:55], 0 offen")
        emit(A, cs_dma(0)); emit(A, cs_dma(1))
        A.label("at_C1")
    else:
        A("s_waitcnt lgkmcnt(0)")
    def cs_p1(CSW):
        A("v_lshrrev_b32 v18, 2, v1")
        A("v_lshlrev_b32 v18, 7, v18")
        A("v_lshl_add_u32 v18, v4, 3, v18")
        A("v_bfe_u32 v19, v1, 3, 2")
        A("v_xor_b32 v19, s31, v19")
        A("v_lshl_add_u32 v18, v19, 5, v18")
        A("s_lshr_b32 s29, s20, 2")
        A("s_lshl_b32 s34, s29, 15")
        A(f"s_add_u32 s34, s34, {WL}")
        A("v_add_u32 v18, s34, v18")
        for ks in range(8):
            for t in range(2):
                A(f"ds_read_b64_tr_b16 {v(CSW+4*ks+2*t,2)}, v18 offset:{ks*4096+t*2048}")
        for i in range(4): A(f"v_mov_b32 {v(132+i)}, 0x3f803f80")
    def cs_p2(CSW):
        A("s_waitcnt lgkmcnt(0)")
        for ks in range(8):
            A(mf16(136, CSW+4*ks, 132, "0" if ks == 0 else None))
    def cs_p3(srdr):
        srd(A, srdr, 6, WS_CS, 4*7168*4)
        A("s_lshl_b32 s33, s33, 1")
        A("s_add_u32 s33, s33, s29")
        A(f"s_mul_i32 s33, s33, {7168*4}")
        A("s_lshl_b32 s34, s32, 8")
        A("s_add_u32 s33, s33, s34")
        A("s_lshl_b32 s34, s31, 6")
        A("s_add_u32 s33, s33, s34")
        A("v_cmp_ne_u32 vcc, 0, v5")
        A("v_mov_b32 v19, 0x7fffffff")
        A("s_cmp_lt_u32 s2, 224")
        A(f"s_cselect_b32 {s(srdr+2)}, {4*7168*4}, 0")
        A("v_cndmask_b32 v19, v1, v19, vcc")
        A(f"buffer_store_dwordx4 v[136:139], v19, {s(srdr,4)}, s33 offen{STF}")
    def loop(role):
        A.raw(".p2align 6")
        A.label(f"attn_loop{role}")
        for t in range(8):
            c, n = S_[t % 2], S_[1 - t % 2]
            E = lambda i: f"v_exp_f32 {v(c+i)}, {v(c+i)}"
            C = lambda i: f"v_cvt_pk_bf16_f32 {v(P+i)}, {v(c+2*i)}, {v(c+2*i+1)}"
            X = {6: (kv(0), kv(1)), 7: (kv(2), kv(3)), 0: (kv(4), kv(5)), 1: (kv(6), kv(7)),
                 2: (["s_waitcnt vmcnt(10)"] + cp_store(), cp_load()), 3: (cs_dma(0), cs_dma(1)), 4: ([], []), 5: ([], [])}[t]
            if role == "B":
                X = ([], [])
                if OPT("WOL2", 2) and t == 7:
                    X = ([f"s_cmp_lg_u32 {s(sCnt)}, {OPT('WOL2', 2)}", "s_cbranch_scc1 at_nt", "buffer_load_dword v251, v252, s[52:55], s60 offen", "at_nt:"], [])
                if OPT("CTA", 0) and t == 7: X = (["buffer_load_dword v251, v252, s[56:59], s60 offen"], [])
            FAIR = OPT("FAIR", 0)
            if t == 6:
                if role == "A": A("s_waitcnt vmcnt(4)")
                A("s_barrier")
            elif FAIR == 1 and t == 2:
                A("s_barrier")
            elif FAIR == 2 and t % 2 == 0:
                A("s_barrier")
            if FAIR == 1: A(f"s_setprio {3 - (t + 2) % 4}")
            if FAIR == 3 and t % 2 == 0: A(f"s_setprio {3 - ((t + 2) % 8) // 2}")
            A("s_waitcnt lgkmcnt(2)")
            A(mf32(n, KF, Q, v(NEGM, 16)))
            A(kread(t + 2, 0))
            emit(A, [E(0), E(1), E(2)])
            A(mf32(O, VF+4, P+4))
            A(vread(t, 1))
            emit(A, X[0])
            emit(A, [E(3), E(4), E(5), E(6)])
            A("s_waitcnt lgkmcnt(2)")
            A(mf32(n, KF+4, Q+4))
            A(kread(t + 2, 1))
            emit(A, [E(7), C(0), C(1), C(2), C(3), E(8)])
            A(mf16(L, ONES, P+4))
            emit(A, [E(9), E(10)])
            A(mf32(O, VF, P))
            A(vread(t + 1, 0))
            emit(A, X[1])
            emit(A, [E(11), E(12), E(13), E(14)])
            A(mf16(L, ONES, P))
            if t == 7:
                A(f"s_add_u32 {s(sRd)}, {s(sRd)}, {SLOT}")
                A(f"s_cmp_eq_u32 {s(sRd)}, {SLOT*R}")
                A(f"s_cselect_b32 {s(sRd)}, 0, {s(sRd)}")
                A("v_mov_b32 v16, v17")
                A(f"v_add_u32 v17, {s(sRd)}, v6")
                A(f"s_sub_u32 {s(sCnt)}, {s(sCnt)}, 1")
                A(f"s_cmp_lg_u32 {s(sCnt)}, 0")
            emit(A, [E(15), C(4), C(5), C(6), C(7)])
        A(f"s_cbranch_scc1 attn_loop{role}")
    A("s_cmp_ge_u32 s20, 4")
    A("s_cbranch_scc1 attn_preB")
    loop("A")
    A("s_branch attn_post")
    A.label("attn_preB")
    if OPT("WOL2", 2):
        A("v_lshrrev_b32 v252, 3, v1")
        A("v_lshlrev_b32 v252, 11, v252")
        A("v_and_b32 v251, 7, v1")
        A("v_lshl_add_u32 v252, v251, 7, v252")
        A("s_lshr_b32 s60, s2, 3")
        A("s_lshl_b32 s60, s60, 2")
        A("s_add_u32 s60, s60, s31")
        A("s_lshl_b32 s60, s60, 14")
        A("s_bfe_u32 s28, s2, 0x10002")
        A("s_lshl_b32 s28, s28, 10")
        A("s_add_u32 s60, s60, s28")
    if OPT("CSPF", 0):
        A(f"s_load_dwordx4 s[52:55], s[0:1], {KA_WG}")
        A("v_lshlrev_b32 v18, 7, v1")
        A("v_cmp_gt_u32 vcc, 56, v1")
        A("v_mov_b32 v19, 0x7fffffff")
        A("s_lshl_b32 s28, s2, 2")
        A("s_add_u32 s28, s28, s31")
        A("v_cndmask_b32 v18, v19, v18, vcc")
        A("s_mul_i32 s28, s28, 7168")
        A("s_waitcnt lgkmcnt(0)")
        srd(A, 56, 54, 0, 7*MB)
        srd(A, 52, 52, 0, 7*MB)
        A("buffer_load_dword v250, v18, s[52:55], s28 offen")
        A("buffer_load_dword v251, v18, s[56:59], s28 offen")
    if OPT("CTA", 0):
        emit(A, code_touch_list(A, "attn_post", 251, 252)[:-1])
        A("s_mov_b32 s60, s28")
    loop("B")
    A.label("attn_post")
    if OPT("FAIR", 0): A("s_setprio 0")
    A("s_waitcnt lgkmcnt(0)")
    A("s_nop 0")
    A(mf32(O, VF+4, P+4))
    A(mf16(L, ONES, P+4))
    cyc(A, 2, 1); stamp(A, 2, 3)
    if OPT("CSA", 1):
        A("s_nop 10")
        A(f"v_add_f32 v18, |{v(O)}|, {v(L)}")
        for i in range(1, 16): A(f"v_add_f32 v18, |{v(O+i)}|, v18")
        A(f"v_mov_b32 v19, {f32(2.0**120)}")
        A("v_cmp_nlt_f32 vcc, v18, v19")
        A("s_nop 1")
        A("s_cmp_eq_u64 vcc, 0")
        A("s_cbranch_scc0 attn_slow")
    else:
        A("s_waitcnt vmcnt(0)")
        A("s_barrier")
        cs_p1(S0)
        A(f"v_add_f32 v18, |{v(O)}|, {v(L)}")
        for i in range(1, 16): A(f"v_add_f32 v18, |{v(O+i)}|, v18")
        A(f"v_mov_b32 v19, {f32(2.0**120)}")
        A("v_cmp_nlt_f32 vcc, v18, v19")
        cs_p2(S0)
        A("s_cmp_eq_u64 vcc, 0")
        A("s_cbranch_scc0 attn_slow")
    A.label("attn_fin")
    A(f"s_load_dwordx2 s[44:45], s[0:1], {KA_X}")
    A(f"v_rcp_f32 v18, {v(L)}")
    A("s_nop 0")
    for i in range(16): A(f"v_mul_f32 {v(O+i)}, {v(O+i)}, v18")
    for pc in range(2):
        for hh in range(2):
            run = pc + 2 * hh
            for j in range(2):
                A(f"v_cvt_pk_bf16_f32 {v(P+4*pc+2*hh+j)}, {v(O+4*run+2*j)}, {v(O+4*run+2*j+1)}")
    A("v_bfe_u32 v18, v1, 3, 1")
    A("v_lshlrev_b32 v18, 10, v18")
    A("v_bfe_u32 v19, v1, 4, 1")
    A("v_lshl_add_u32 v18, v19, 7, v18")
    A("v_and_b32 v19, 7, v1")
    A("v_lshl_add_u32 v18, v19, 4, v18")
    A("v_lshrrev_b32 v19, 5, v1")
    A("v_lshl_add_u32 v18, v19, 8, v18")
    A("s_lshl_b32 s28, s21, 17")
    A("s_add_u32 s28, s28, s35")
    A(f"buffer_store_dwordx4 {v(P,4)}, v18, s[36:39], s28 offen{STF}")
    A(f"buffer_store_dwordx4 {v(P+4,4)}, v18, s[36:39], s28 offen offset:512{STF}")
    if OPT("CSA", 1):
        A("s_cmp_ge_u32 s20, 4")
        A("s_cbranch_scc1 attn_nocs")
        A("v_lshrrev_b32 v18, 2, v1")
        A("v_lshlrev_b32 v18, 7, v18")
        A("v_lshl_add_u32 v18, v4, 3, v18")
        A("v_bfe_u32 v19, v1, 3, 2")
        A("v_xor_b32 v19, s31, v19")
        A("v_lshl_add_u32 v18, v19, 5, v18")
        A(f"v_add_u32 v18, {WL}, v18")
        for ks in range(16):
            for t in range(2):
                A(f"ds_read_b64_tr_b16 {v(144+4*ks+2*t,2)}, v18 offset:{ks*4096+t*2048}")
        for i in range(4): A(f"v_mov_b32 {v(132+i)}, 0x3f803f80")
        srd(A, 48, 6, WS_CS, 4*7168*4)
        A(f"s_mul_i32 s33, s33, {2*7168*4}")
        A("s_lshl_b32 s34, s32, 8")
        A("s_add_u32 s33, s33, s34")
        A("s_lshl_b32 s34, s31, 6")
        A("s_add_u32 s33, s33, s34")
        A(f"s_add_u32 s34, s33, {7168*4}")
        A("v_cmp_ne_u32 vcc, 0, v5")
        A("v_mov_b32 v19, 0x7fffffff")
        A("s_cmp_lt_u32 s2, 224")
        A(f"s_cselect_b32 s50, {4*7168*4}, 0")
        A("v_cndmask_b32 v19, v1, v19, vcc")
        A("s_waitcnt lgkmcnt(0)")
        for ks in range(8):
            for hh in range(2):
                A(mf16(136 + 72*hh, 144 + 4*(8*hh+ks), 132, "0" if ks == 0 else None))
        A("s_nop 7")
        A(f"buffer_store_dwordx4 v[136:139], v19, s[48:51], s33 offen{STF}")
        A(f"buffer_store_dwordx4 v[208:211], v19, s[48:51], s34 offen{STF}")
        A.label("attn_nocs")
    else:
        cs_p3(48)
    pub_prep(A, 2, 22, 21)
    A("s_waitcnt lgkmcnt(0)")
    def slow():
        A.label("attn_slow")
        A("v_mov_b32 v18, 0xff800000")
        A("s_mov_b32 s28, 0")
        A.label("attn_slow1")
        A(f"buffer_load_dwordx4 {v(KF,4)}, v6, s[8:11], s28 offen{LDF}")
        A(f"buffer_load_dwordx4 {v(KF+4,4)}, v6, s[8:11], s28 offen offset:1024{LDF}")
        A("s_waitcnt vmcnt(0)")
        A("s_nop 15")
        A(mf32(S0, KF, Q, "0"))
        A(mf32(S0, KF+4, Q+4))
        A("s_nop 15")
        A("s_nop 3")
        for i in range(0, 16, 2): A(f"v_max3_f32 v18, v18, {v(S0+i)}, {v(S0+i+1)}")
        A("s_add_u32 s28, s28, 2048")
        A("s_cmp_lt_u32 s28, 131072")
        A("s_cbranch_scc1 attn_slow1")
        A("v_mov_b32 v19, v18")
        A("s_nop 1")
        A("v_permlane32_swap_b32 v19, v18")
        A("s_nop 1")
        A("v_max_f32 v18, v18, v19")
        for i in range(16): A(f"v_sub_f32 {v(NEGM+i)}, 0, v18")
        for i in range(16): A(f"v_mov_b32 {v(O+i)}, 0")
        for i in range(4): A(f"v_mov_b32 {v(L+i)}, 0")
        A("s_mov_b32 s28, 0")
        A.label("attn_slow2")
        A(f"buffer_load_dwordx4 {v(KF,4)}, v6, s[8:11], s28 offen{LDF}")
        A(f"buffer_load_dwordx4 {v(KF+4,4)}, v6, s[8:11], s28 offen offset:1024{LDF}")
        A(f"buffer_load_dwordx4 {v(VF,4)}, v6, s[12:15], s28 offen{LDF}")
        A(f"buffer_load_dwordx4 {v(VF+4,4)}, v6, s[12:15], s28 offen offset:1024{LDF}")
        A("s_waitcnt vmcnt(0)")
        A(mf32(S0, KF, Q, v(NEGM, 16)))
        A(mf32(S0, KF+4, Q+4))
        A("s_nop 15")
        A("s_nop 3")
        for i in range(16): A(f"v_exp_f32 {v(S0+i)}, {v(S0+i)}")
        A("s_nop 0")
        for i in range(8): A(f"v_cvt_pk_bf16_f32 {v(P+i)}, {v(S0+2*i)}, {v(S0+2*i+1)}")
        A("s_nop 1")
        A(mf32(O, VF, P))
        A(mf32(O, VF+4, P+4))
        A(mf16(L, ONES, P))
        A(mf16(L, ONES, P+4))
        A("s_nop 15")
        A("s_add_u32 s28, s28, 2048")
        A("s_cmp_lt_u32 s28, 131072")
        A("s_cbranch_scc1 attn_slow2")
        A("s_nop 15")
        A("s_branch attn_fin")
    return slow

HEADER = open("sequential_preLN__mha_block__glu_gated_glu__prompt.s.ref").read().split("; Override launch")[0]

def build(path):
    from mk2 import ph_proj, ph_gu, ph_down2, ph_down3
    A = Asm()
    A.raw(f".globl {NAME}"); A.raw(".p2align 8"); A.raw(f".type {NAME},@function"); A.label(NAME)
    A("s_cmp_ge_u32 s2, 256")
    A("s_cbranch_scc1 the_end")
    if OPT("RAW", 0):
        from mk3 import ph_qkv_raw
        hooks = ph_qkv_raw(A)
    else:
        ph_ln_qkv(A); hooks = None
    slow = ph_attn(A)
    ph_proj(A, 3, True)
    ph_gu(A)
    if OPT("SPLITK", 1) == 2: ph_down3(A)
    elif OPT("SPLITK", 1) == 1: ph_down2(A)
    else: ph_proj(A, 5, False)
    stamp_flush(A)
    A.label("the_end")
    A("s_endpgm")
    slow()
    A.label("code_end")
    out = HEADER
    out += "; @launch grid=(256,1,1) block=(512,1,1) lds=163840\n"
    out += '.amdgcn_target "amdgcn-amd-amdhsa--gfx950"\n.text\n'
    out += A.text()
    out += '.section .rodata,"a"\n'
    out += kernel_desc(NAME, 256, 102 if PROF else 64)
    open(path, "w").write(out)

if __name__ == "__main__":
    build(sys.argv[1] if len(sys.argv) > 1 else "sequential_preLN__mha_block__glu_gated_glu__prompt.s")
```

```python
from mk import *

class L(list):
    def __call__(self, x): self.append(x)
def gu_wdma(slot=None):
    m0 = f"s_add_u32 m0, {s(sWr)}, {s(sM)}" if slot is None else f"s_add_u32 m0, {s(sM)}, {slot*30720}"
    return [[m0, "s_mov_b64 exec, s[60:61]",
             f"buffer_load_dwordx4 v7, s[12:15], {s(sGo)} offen lds",
             f"buffer_load_dwordx4 v8, s[12:15], {s(sGo)} offen offset:896 lds",
             f"s_add_u32 m0, m0, 7168", "s_nop 0",
             f"buffer_load_dwordx4 v7, s[40:43], {s(sGo)} offen lds",
             f"buffer_load_dwordx4 v8, s[40:43], {s(sGo)} offen offset:896 lds",
             "s_mov_b64 exec, -1",
             f"s_add_u32 {s(sGo)}, {s(sGo)}, {32*7168}"]]
def gu_wsetup():
    A = L()
    srd(A, 12, 44, 0, 7*MB)
    srd(A, 40, 46, 0, 7*MB)
    A("v_mul_u32_u24 v7, 4682, v1")
    A("v_lshrrev_b32 v7, 16, v7")
    A("v_mul_u32_u24 v8, 14, v7")
    A("v_sub_u32 v8, v1, v8")
    A("v_mul_u32_u24 v7, 7168, v7")
    A("v_lshl_add_u32 v7, v8, 4, v7")
    A(f"v_add_u32 v8, {4*7168-896}, v7")
    A("s_mov_b32 s60, -1")
    A("s_mov_b32 s61, 0x00ffffff")
    A("s_bfe_u32 s29, s2, 0x20001")
    A("s_lshl_b32 s29, s29, 3")
    A("s_lshr_b32 s28, s2, 5")
    A("s_add_u32 s29, s29, s28")
    A(f"s_mul_i32 s28, s31, {8*7168}")
    A("s_mul_i32 s29, s29, 224")
    A(f"s_add_u32 {s(sGo)}, s28, s29")
    A(f"s_mul_i32 {s(sM)}, s31, 1792")
    A(f"s_add_u32 {s(sM)}, {s(sM)}, 16384")
    return list(A)

def ph_proj(A, ph, is_wo):
    name = "wo" if is_wo else "dn"
    K = 1024 if is_wo else 3584
    ws_x = WS_O if is_wo else WS_HACT
    wp = 40 if is_wo else 42
    R, SLOT, NST = 6, 24576, K // 64
    STATS_LDS = 153600
    if OPT("PAR", 0):
        A("s_and_b32 s21, s2, 1")
        A("s_lshl_b32 s21, s21, 3")
        A("s_and_b32 s28, s2, 2")
        A("s_lshl_b32 s28, s28, 1")
        A("s_add_u32 s21, s21, s28")
    else:
        A("s_and_b32 s21, s2, 3")
        A("s_lshl_b32 s21, s21, 2")
    A("s_bfe_u32 s28, s2, 0x20003")
    A("s_add_u32 s21, s21, s28")
    A("s_bfe_u32 s22, s2, 0x10002")
    A("s_lshl_b32 s22, s22, 3")
    A("s_lshr_b32 s28, s2, 5")
    A("s_add_u32 s22, s22, s28")
    PSC = OPT("WSC", 0) if is_wo else OPT("DSC", 4)
    PG = min(4, OPT("PG", 4))
    if PSC:
        A("s_add_u32 s39, s21, s22")
        A(f"s_and_b32 s39, s39, {PG-1}")
        A(f"s_mul_i32 s39, s39, {PSC//PG}")
    def wdma():
        if not is_wo:
            return [[f"s_add_u32 m0, {s(sWr)}, {s(sM)}", "s_nop 0",
                     f"buffer_load_dwordx4 v6, s[12:15], {s(sGo)} offen{LDF} lds"],
                    [f"buffer_load_dwordx4 v6, s[12:15], {s(sGo)} offen offset:1024{LDF} lds",
                     ] + adv(8192, PSC)]
        return [[f"s_add_u32 m0, {s(sWr)}, {s(sM)}", "s_nop 0",
                 f"buffer_load_dwordx4 v7, s[12:15], {s(sGo)} offen lds"],
                [f"buffer_load_dwordx4 v8, s[12:15], {s(sGo)} offen offset:1024 lds",
                 ] + adv(64*2048, PSC)]
    DX = 0x40000
    EZ = OPT("EZ", 0) and is_wo
    ACC = 152 if EZ else 32
    def acc(f, i): return ACC + (i * 2 + f) * 4
    SET = [168, 200] if EZ else [48, 80]
    def xf(p, kk, i): return SET[p] + (kk * 2 + i) * 4
    def wf(p, kk, f): return SET[p] + 16 + (kk * 2 + f) * 4
    RES = 240
    NRES = 4 if is_wo else 2
    A("s_lshr_b32 s33, s20, 2")
    A("s_lshl_b32 s34, s22, 1")
    A("s_add_u32 s34, s34, s33")
    A("s_lshl_b32 s34, s34, 7")
    A("s_lshl_b32 s35, s21, 3")
    A("s_add_u32 s34, s34, s35")
    A("s_lshl_b32 s35, s31, 1")
    A("s_add_u32 s34, s34, s35")
    A("s_lshl_b32 s34, s34, 10")
    A("s_lshl_b32 s35, s21, 18")
    A("s_lshl_b32 s36, s31, 16")
    A("s_add_u32 s35, s35, s36")
    A("s_lshl_b32 s36, s22, 7")
    A("s_add_u32 s35, s35, s36")
    A("s_lshl_b32 s36, s33, 6")
    A("s_add_u32 s35, s35, s36")
    A("s_add_u32 s36, s35, 32768")
    srd(A, 16, 6, WS_H, 4*MB)
    srd(A, 48, 44, 0, 4*MB)
    if is_wo:
        srd(A, 12, wp, 0, K*2048)
    else:
        A(f"s_mul_i32 s28, s22, {3584*128}")
        A("s_add_u32 s4, s6, s28")
        A("s_addc_u32 s5, s7, 0")
        srd(A, 12, 4, WS_WD, 3584*128)
    srd(A, 8, 6, ws_x, 2048*K*2)
    if is_wo: A(f"s_load_dwordx4 s[44:47], s[0:1], {KA_WG}")
    def resload():
        if is_wo:
            for i in range(2):
                A(f"buffer_load_dwordx4 {v(RES+4*i,4)}, v9, s[48:51], {s(35+i)} offen")
        else:
            for i in range(2):
                A(f"buffer_load_dwordx4 {v(RES+4*i,4)}, v6, s[16:19], s34 offen offset:{i*1024}{LDF}")
    A("v_lshlrev_b32 v9, 11, v5")
    A("v_and_b32 v15, 1, v2")
    A("v_lshl_add_u32 v9, v15, 5, v9")
    A("v_lshrrev_b32 v15, 1, v2")
    A("v_lshl_add_u32 v9, v15, 4, v9")
    A("s_lshl_b32 s28, s31, 11")
    A("v_add_u32 v10, s28, v6")
    A("v_lshl_add_u32 v11, v2, 2, v3")
    A("v_lshlrev_b32 v11, 7, v11")
    A("v_lshl_add_u32 v11, v4, 3, v11")
    A("v_add_u32 v11, 16384, v11")
    A("v_bfe_u32 v12, v1, 3, 2")
    A("s_lshl_b32 s29, s33, 1")
    A("v_xor_b32 v13, s29, v12")
    A("v_lshl_add_u32 v13, v13, 5, v11")
    A("v_xor_b32 v14, 32, v13")
    A("s_lshr_b32 s32, s21, 1")
    A("s_cmp_lt_u32 s20, 4")
    A(f"s_cbranch_scc1 {name}_A0")
    if is_wo:
        w_swz_voff(A, 7, 2048)
        A(f"v_add_u32 v8, {8*2048-1024}, v7")
        A("s_lshl_b32 s28, s31, 15")
        A("s_lshl_b32 s29, s22, 7")
        A(f"s_add_u32 {s(sGo)}, s28, s29")
    else:
        A(f"s_lshl_b32 {s(sGo)}, s31, 11")
    if PSC: rot_init(A, 64*2048 if is_wo else 8192, PSC)
    A(f"s_lshl_b32 {s(sM)}, s31, 11")
    A(f"s_add_u32 {s(sM)}, {s(sM)}, 16384")
    if not OPT("PUBFIRST", 1):
        A("s_waitcnt vmcnt(0)")
        stamp(A, ph - 1, 4)
    publish(A)
    WE = OPT("WE_W", 6)
    resload()
    fill_ring(A, R, SLOT, wdma, 0, WE)
    A(f"s_branch {name}_C0")
    A.label(f"{name}_A0")
    A("s_lshr_b32 s28, s31, 1")
    A("s_lshl_b32 s28, s28, 7")
    A("s_lshl_b32 s29, s21, 3")
    A("s_add_u32 s28, s28, s29")
    A("s_and_b32 s29, s31, 1")
    A("s_lshl_b32 s29, s29, 2")
    A("s_add_u32 s28, s28, s29")
    A(f"s_lshl_b32 {s(sGo)}, s28, 10")
    if PSC: rot_init(A, DX, PSC)
    A(f"s_lshl_b32 {s(sM)}, s31, 12")
    if not OPT("PUBFIRST", 1):
        A("s_waitcnt vmcnt(0)")
        stamp(A, ph - 1, 4)
    publish(A)
    resload()
    A.label(f"{name}_C0")
    if EZ:
        l = A.newlabel("ez")
        A("s_cmp_eq_u32 s20, 0")
        A(f"s_cbranch_scc1 {l}")
        for i in range(32, 152): A(f"v_mov_b32 {v(i)}, 0")
        A.label(l)
    stamp(A, ph, 0)
    wait_flags(A, ph - 1, 32, 32, also_all=2 if EZ else None)
    stamp(A, ph, 1)
    def accinit():
        if is_wo:
            for i in range(2):
                A(f"v_permlane16_swap_b32 {v(RES+4*i)}, {v(RES+4*i+2)}")
                A(f"v_permlane16_swap_b32 {v(RES+4*i+1)}, {v(RES+4*i+3)}")
            A("s_nop 1")
        for i in range(2):
            for f in range(2):
                for h in range(2):
                    src = RES + 4*i + 2*f + h
                    A(f"v_lshlrev_b32 {v(acc(f,i)+2*h)}, 16, {v(src)}")
                    A(f"v_and_b32 {v(acc(f,i)+2*h+1)}, 0xffff0000, {v(src)}")
    def reads(p):
        out = []
        for kk in range(2):
            for f in range(2):
                for t in range(2):
                    out.append([f"ds_read_b64_tr_b16 {v(wf(p,kk,f)+2*t,2)}, {v(17+f)} offset:{kk*4096+t*2048}"])
            for i in range(2):
                out.append([f"ds_read_b128 {v(xf(p,kk,i),4)}, v16 offset:{kk*8192+i*1024}"])
        return out
    def addr_upd():
        return [f"v_add_u32 v16, {s(sRd)}, v10", f"v_add_u32 v17, {s(sRd)}, v13", f"v_add_u32 v18, {s(sRd)}, v14"]
    def mfmas(p):
        return [mf16(acc(f, i), wf(p, kk, f), xf(p, kk, i)) for kk in range(2) for f in range(2) for i in ((0, 1) if (f == 0 or not OPT("SNAKE", 1)) else (1, 0))]
    A("s_cmp_ge_u32 s20, 4")
    A(f"s_cbranch_scc1 {name}_B")
    fill_ring(A, R, SLOT, lambda: xdma(DX, PSC), bar=True)
    if EZ:
        l = A.newlabel("ez")
        A("s_cmp_lg_u32 s20, 0")
        A(f"s_cbranch_scc1 {l}")
        for i in range(32, 152): A(f"v_mov_b32 {v(i)}, 0")
        A.label(l)
    A(f"s_waitcnt vmcnt({4*R})")
    accinit()
    gemm_loop(A, ph, f"{name}_loopA", "A", R, SLOT, NST, 4, mfmas, reads, lambda: xdma(DX, PSC), addr_upd,
              {6: code_touch_list(A, f"{name}_epi", 251, 252), ('x', 5): 1, ('x', 4): 1, ('x', 3): 1, ('x', 2): 1} if OPT("CTW", 1) else None)
    A(f"s_branch {name}_epi")
    A.label(f"{name}_B")
    fill_rest(A, R, SLOT, wdma, WE)
    A(f"s_waitcnt vmcnt({2*R})")
    accinit()
    hb = None
    if is_wo and OPT("EGW", 0):
        hb = {6: gu_wsetup() + gu_wdma(3)[0], 5: gu_wdma(4)[0], 3: gu_wdma(0)[0], 2: gu_wdma(1)[0],
              ('x', 5): 4, ('x', 4): 8, ('x', 3): 8, ('x', 2): 12}
    gemm_loop(A, ph, f"{name}_loopB", "B", R, SLOT, NST, 2, mfmas, reads, wdma, addr_upd, hb)
    A.label(f"{name}_epi")
    T = 232 if EZ else 112
    for i in range(2):
        for f in range(2):
            for h in range(2):
                A(f"v_cvt_pk_bf16_f32 {v(T+4*i+2*f+h)}, {v(acc(f,i)+2*h)}, {v(acc(f,i)+2*h+1)}")
    if is_wo:
        for i in range(2):
            A(f"buffer_store_dwordx4 {v(T+4*i,4)}, v6, s[16:19], s34 offen offset:{i*1024}{STF}")
        for i in range(2):
            sm, sq = 20 + 2*i, 21 + 2*i
            b = acc(0, i)
            A(f"v_add_f32 {v(sm)}, {v(b)}, {v(b+1)}")
            A(f"v_mul_f32 {v(sq)}, {v(b)}, {v(b)}")
            A(f"v_fmac_f32 {v(sq)}, {v(b+1)}, {v(b+1)}")
            for j in range(2, 8):
                A(f"v_add_f32 {v(sm)}, {v(sm)}, {v(b+j)}")
                A(f"v_fmac_f32 {v(sq)}, {v(b+j)}, {v(b+j)}")
        reduce_rows16_32(A, [20, 21, 22, 23], [24, 25, 26, 27])
        A("s_lshl_b32 s28, s31, 9")
        A("s_lshl_b32 s29, s33, 3")
        A("s_add_u32 s28, s28, s29")
        A(f"s_add_u32 s28, s28, {STATS_LDS}")
        A("v_lshlrev_b32 v24, 4, v5")
        A("v_add_u32 v24, s28, v24")
        A("ds_write_b64 v24, v[20:21]")
        A("ds_write_b64 v24, v[22:23] offset:256")
        A("s_waitcnt lgkmcnt(0)")
        A("s_barrier")
        A("s_cmp_ge_u32 s20, 2")
        A(f"s_cbranch_scc1 {name}_end2")
        A("v_lshlrev_b32 v24, 4, v0")
        A(f"v_add_u32 v24, {STATS_LDS}, v24")
        A("ds_read_b128 v[20:23], v24")
        srd(A, 8, 6, WS_ST, 2048*128)
        A("v_lshlrev_b32 v24, 3, v0")
        A("s_lshl_b32 s28, s21, 10")
        A("s_lshl_b32 s29, s22, 14")
        A("s_add_u32 s28, s28, s29")
        A("s_waitcnt lgkmcnt(0)")
        A("v_add_f32 v20, v20, v22")
        A("v_add_f32 v21, v21, v23")
        A(f"buffer_store_dwordx2 v[20:21], v24, s[8:11], s28 offen{STF}")
        A.label(f"{name}_end2")
        A("s_and_b32 s38, s21, 1")
        A("s_lshl_b32 s38, s38, 4")
        A("s_add_u32 s38, s38, s22")
        pub_prep(A, ph, 32, 38)
    else:
        A("s_nop 1")
        for i in range(2):
            A(f"v_permlane16_swap_b32 {v(T+4*i)}, {v(T+4*i+2)}")
            A(f"v_permlane16_swap_b32 {v(T+4*i+1)}, {v(T+4*i+3)}")
        A("s_nop 1")
        for i in range(2):
            A(f"buffer_store_dwordx4 {v(T+4*i,4)}, v9, s[48:51], {s(35+i)} offen{OUTF}")
        if PROF:
            A("s_waitcnt vmcnt(0)")
            stamp(A, ph, 4)

def ph_gu(A):
    ph = 4
    R, SLOT, NST = 5, 30720, 32
    SL = R * SLOT
    A("s_and_b32 s21, s2, 1")
    A("s_lshl_b32 s21, s21, 2")
    A("s_bfe_u32 s28, s2, 0x20003")
    A("s_add_u32 s21, s21, s28")
    A("s_bfe_u32 s22, s2, 0x20001")
    A("s_lshl_b32 s22, s22, 3")
    A("s_lshr_b32 s28, s2, 5")
    A("s_add_u32 s22, s22, s28")
    wdma = gu_wdma
    EGW = OPT("EGW", 0)
    S0 = 3 if EGW else 0
    WE = R
    srd(A, 12, 44, 0, 7*MB)
    srd(A, 40, 46, 0, 7*MB)
    srd(A, 8, 6, WS_H, 4*MB)
    A("s_cmp_lt_u32 s20, 4")
    A("s_cbranch_scc1 gu_A0")
    if EGW:
        emit(A, gu_wdma(2))
    else:
        emit(A, gu_wsetup())
        fill_ring(A, R, SLOT, wdma)
    A("s_branch gu_C0")
    A.label("gu_A0")
    A("s_lshl_b32 s28, s21, 4")
    A("s_lshl_b32 s29, s31, 2")
    A("s_add_u32 s28, s28, s29")
    A(f"s_lshl_b32 {s(sGo)}, s28, 10")
    A(f"s_lshl_b32 {s(sM)}, s31, 12")
    if not OPT("EZ", 0):
        for i in range(32, 152): A(f"v_mov_b32 {v(i)}, 0")
    if not OPT("PUBFIRST", 1):
        A("s_waitcnt vmcnt(0)")
        stamp(A, 3, 4)
    publish(A)
    A.label("gu_C0")
    srd(A, 44, 6, WS_ST, 2048*128)
    srd(A, 48, 6, WS_CS, 4*7168*4)
    srd(A, 52, 6, WS_HACT, 2048*3584*2)
    A("s_and_b32 s36, s22, 1")
    A("s_cmp_eq_u32 s36, 1")
    A("s_cselect_b32 s37, 3, 0")
    A("s_cselect_b32 s38, 1, 4")
    A("s_cselect_b32 s39, 0, 6")
    A("s_cmp_ge_u32 s20, 4")
    A("s_cselect_b32 s37, s38, s37")
    A("s_lshl_b32 s28, s31, 12")
    A("v_add_u32 v10, s28, v6")
    A("v_lshl_add_u32 v11, v2, 2, v3")
    A("v_mul_u32_u24 v11, 224, v11")
    A("v_lshl_add_u32 v11, v4, 3, v11")
    A("v_add_u32 v11, 16384, v11")
    A("s_lshl_b32 s28, s39, 5")
    A("v_add_u32 v12, s28, v11")
    A("s_lshl_b32 s28, s37, 5")
    A("v_add_u32 v11, s28, v11")
    A("v_and_b32 v13, 255, v0")
    A("v_lshlrev_b32 v14, 3, v13")
    A("s_lshl_b32 s32, s21, 11")
    A("v_lshlrev_b32 v15, 2, v13")
    A(f"v_add_u32 v9, {(3584-112)*4}, v15")
    A("v_cmp_gt_u32 vcc, 112, v13")
    A("v_mov_b32 v19, 0x7fffffff")
    A("s_mul_i32 s33, s22, 448")
    A("v_cndmask_b32 v15, v9, v15, vcc")
    A("v_cmp_gt_u32 vcc, 224, v13")
    A("s_nop 1")
    A("v_cndmask_b32 v15, v19, v15, vcc")
    if not OPT("EZ", 0):
        A("s_cmp_lt_u32 s20, 4")
        A("s_cbranch_scc1 gu_Z")
        for i in range(32, 120): A(f"v_mov_b32 {v(i)}, 0")
        A.label("gu_Z")
    stamp(A, ph, 0)
    wait_flags(A, 3, 21, 32, also_all=None if OPT("EZ", 0) else 2)
    for i in range(24, 32): A(f"v_mov_b32 {v(i)}, 0")
    stamp(A, ph, 1)
    def body(nf, tag):
        def wsrc(j):
            if nf == 3 and j == 2: return 18, 0
            return 17, j * 32
        ACC = 24
        def acc(j, gu, i): return ACC + ((j * 2 + gu) * 4 + i) * 4
        NS = 16 + nf * 8
        SET = [ACC + nf * 32, ACC + nf * 32 + NS]
        def xf(p, i): return SET[p] + i * 4
        def wf(p, j, gu): return SET[p] + 16 + (j * 2 + gu) * 4
        if tag == "A":
            fill_ring(A, R, SLOT, lambda: xdma(0x20000), bar=True, slot0=S0)
        else:
            fill_rest(A, R, SLOT, wdma, WE)
        hook = None
        if tag == "A" and OPT("CTG", 1):
            hook = {5: code_touch_list(A, "gu_epiA", 251, 252), ('x', 4): 1, ('x', 3): 1, ('x', 2): 1}
            if OPT("EDW", 1):
                assert not EGW
                H = L()
                srd(H, 12, 6, WS_WD, 7*MB)
                for x in ["s_lshr_b32 s28, s2, 5", "s_lshl_b32 s28, s28, 1", "s_lshr_b32 s29, s31, 1", "s_add_u32 s28, s28, s29",
                          f"s_mul_i32 s28, s28, {3584*128}", "s_bfe_u32 s29, s2, 0x10002", f"s_mul_i32 s29, s29, {1792*128}",
                          "s_add_u32 s28, s28, s29", "s_and_b32 s29, s31, 1", "s_lshl_b32 s29, s29, 12", f"s_add_u32 {s(sGo)}, s28, s29",
                          f"s_lshl_b32 {s(sM)}, s31, 12"]: H(x)
                def wg(k):
                    g = xdma(8192, 0, 's[12:15]')
                    g[0][0] = f"s_add_u32 m0, {s(sM)}, {81920 + k*16384}"
                    return sum(g, [])
                hook.update({4: list(H) + wg(0) + wg(1), 3: wg(2), 2: wg(3), ('x', 3): 9, ('x', 2): 13})
        if tag == "B":
            def ld16():
                o = []
                for j in range(16):
                    o += [f"buffer_load_dwordx2 {v(200+2*j,2)}, v14, s[44:47], s32 offen{LDF}", "s_add_u32 s32, s32, 16384"]
                return o
            def red16():
                o = []
                for j in range(1, 8):
                    for q in (200, 201, 216, 217):
                        o.append(f"v_add_f32 {v(q)}, {v(q)}, {v(q+2*j)}")
                return o
            h1 = ld16()
            for j in range(4):
                h1 += [f"buffer_load_dword {v(232+j)}, v15, s[48:51], s33 offen{LDF}", f"s_add_u32 s33, s33, {7168*4}"]
            hook = ["s_waitcnt vmcnt(0)"] + red16()
            hook += ["v_add_f32 v200, v200, v216", "v_add_f32 v201, v201, v217",
                "v_add_f32 v232, v232, v233", "v_add_f32 v234, v234, v235", "v_add_f32 v232, v232, v234",
                f"v_mul_f32 v200, {f32(-1/1024)}, v200", f"v_mul_f32 v201, {f32(1/1024)}, v201",
                "v_fma_f32 v201, -v200, v200, v201", "v_max_f32 v201, 0, v201", f"v_add_f32 v201, {f32(1e-5)}, v201",
                "v_rsq_f32 v202, v201", "v_sqrt_f32 v204, v201", "v_mov_b32 v201, v200",
                f"v_mul_f32 v202, {f32(-LOG2E)}, v202", "v_mov_b32 v205, v204", "v_mov_b32 v203, v202",
                "v_lshlrev_b32 v14, 4, v13", f"v_add_u32 v14, {SL}, v14", "ds_write_b128 v14, v[200:203]",
                "v_lshlrev_b32 v14, 3, v13", f"v_add_u32 v14, {SL+5120}, v14", "ds_write_b64 v14, v[204:205]",
                "v_lshlrev_b32 v15, 2, v13", f"v_add_u32 v15, {SL+4096}, v15", "ds_write_b32 v15, v232"]
            hook = {5: h1, 3: hook, ('x', 4): 20, ('x', 3): 20}
        def reads(p):
            out = []
            for i in range(4):
                out.append([f"ds_read_b128 {v(xf(p,i),4)}, v16 offset:{i*1024}"])
            for j in range(nf):
                ar, imm = wsrc(j)
                for gu in range(2):
                    for t in range(2):
                        out.append([f"ds_read_b64_tr_b16 {v(wf(p,j,gu)+2*t,2)}, {v(ar)} offset:{imm+gu*7168+t*3584}"])
            return out
        def addr_upd():
            o = [f"v_add_u32 v16, {s(sRd)}, v10", f"v_add_u32 v17, {s(sRd)}, v11"]
            if nf == 3: o.append(f"v_add_u32 v18, {s(sRd)}, v12")
            return o
        def mfmas(p):
            return [mf16(acc(j, gu, i), wf(p, j, gu), xf(p, i)) for j in range(nf) for gu in range(2) for i in (range(4) if (gu == 0 or not OPT("SNAKE", 1)) else range(3, -1, -1))]
        gemm_loop(A, ph, f"gu_loop{tag}", tag, R, SLOT, NST, 4, mfmas, reads, (lambda: xdma(0x20000)) if tag == "A" else wdma, addr_upd, hook, slot0=S0)
        A.label(f"gu_epi{tag}")
        if tag == "B": A("s_barrier")
        EW = tag == "B" and OPT("EWD", 0)
        if EW:
            srd(A, 12, 6, WS_WD, 7*MB)
            A("s_lshr_b32 s28, s2, 5")
            A("s_lshl_b32 s28, s28, 1")
            A("s_lshr_b32 s29, s31, 1")
            A("s_add_u32 s28, s28, s29")
            A(f"s_mul_i32 s28, s28, {3584*128}")
            A("s_bfe_u32 s29, s2, 0x10002")
            A(f"s_mul_i32 s29, s29, {1792*128}")
            A("s_add_u32 s28, s28, s29")
            A("s_and_b32 s29, s31, 1")
            A("s_lshl_b32 s29, s29, 12")
            A(f"s_add_u32 {s(sGo)}, s28, s29")
            A(f"s_lshl_b32 {s(sM)}, s31, 12")
            A(f"s_add_u32 {s(sM)}, {s(sM)}, 16384")
        ewslot = [0]
        def ew():
            if EW and ewslot[0] < 4:
                A(f"s_mov_b32 {s(sWr)}, {ewslot[0]*32768}")
                emit(A, xdma(8192, 0, 's[12:15]')); ewslot[0] += 1
        A(f"s_load_dwordx2 s[44:45], s[0:1], {KA_OUT}")
        A(f"s_load_dwordx2 s[46:47], s[0:1], {KA_DBG}")
        STR = 232
        CSR = 200
        A("s_lshl_b32 s28, s31, 10")
        A(f"s_add_u32 s28, s28, {SL}")
        A("v_lshlrev_b32 v14, 4, v5")
        A("v_add_u32 v14, s28, v14")
        for i in range(4):
            A(f"ds_read_b128 {v(STR+4*i,4)}, v14 offset:{i*256}")
        SGR = 184
        A("s_lshl_b32 s28, s31, 9")
        A(f"s_add_u32 s28, s28, {SL+5120}")
        A("v_lshlrev_b32 v14, 3, v5")
        A("v_add_u32 v14, s28, v14")
        for i in range(4):
            A(f"ds_read_b64 {v(SGR+2*i,2)}, v14 offset:{i*128}")
        A("v_lshlrev_b32 v9, 4, v2")
        A("s_lshl_b32 s28, s37, 6")
        A(f"s_add_u32 s28, s28, {SL+4096}")
        A("v_add_u32 v14, s28, v9")
        A("s_lshl_b32 s28, s39, 6")
        A(f"s_add_u32 s28, s28, {SL+4096}")
        A("v_add_u32 v15, s28, v9")
        for j in range(nf):
            for gu in range(2):
                ar, imm = (15, 0) if (nf == 3 and j == 2) else (14, j * 64)
                A(f"ds_read_b128 {v(CSR+(j*2+gu)*4,4)}, {v(ar)} offset:{imm+gu*448}")
        A("s_mul_i32 s28, s22, 7")
        A("s_add_u32 s29, s28, s37")
        A("s_lshr_b32 s29, s29, 1")
        A("s_lshl_b32 s29, s29, 17")
        A("s_lshl_b32 s33, s21, 4")
        A("s_lshl_b32 s36, s31, 2")
        A("s_add_u32 s33, s33, s36")
        A("s_lshl_b32 s33, s33, 10")
        A("s_add_u32 s56, s29, s33")
        A("s_add_u32 s57, s56, 0x20000")
        A("s_add_u32 s29, s28, s39")
        A("s_and_b32 s36, s29, 1")
        A("s_lshl_b32 s36, s36, 3")
        A("s_lshr_b32 s29, s29, 1")
        A("s_lshl_b32 s29, s29, 17")
        A("s_add_u32 s58, s29, s33")
        A("s_add_u32 s58, s58, s36")
        T = SET[0]
        tix = 0
        A("s_waitcnt lgkmcnt(0)")
        if tag == "A": A("s_barrier")
        for jp in range(2):
            js = [2*jp, 2*jp+1] if 2*jp+1 < nf else [2*jp]
            for i in range(4):
                dst = T + 4 * (tix % 8); tix += 1
                c1 = v(STR+4*i+2, 2)
                nm_ = v(STR+4*i, 2)
                for j in js:
                    for gu in range(2):
                        a_ = acc(j, gu, i)
                        for h in range(2): A(f"v_pk_fma_f32 {v(a_+2*h,2)}, {v(CSR+(j*2+gu)*4+2*h,2)}, {nm_}, {v(a_+2*h,2)}")
                for j in js:
                    g_ = acc(j, 0, i)
                    for h in range(2): A(f"v_pk_mul_f32 {v(g_+2*h,2)}, {v(g_+2*h,2)}, {c1}")
                for j in js:
                    g_ = acc(j, 0, i)
                    for r in range(4): A(f"v_exp_f32 {v(g_+r)}, {v(g_+r)}")
                if len(js) == 1: A("s_nop 0")
                for j in js:
                    g_ = acc(j, 0, i)
                    for h in range(2): A(f"v_pk_fma_f32 {v(g_+2*h,2)}, {v(g_+2*h,2)}, {v(SGR+2*i,2)}, {v(SGR+2*i,2)}")
                for j in js:
                    g_ = acc(j, 0, i)
                    for r in range(4): A(f"v_rcp_f32 {v(g_+r)}, {v(g_+r)}")
                if len(js) == 1: A("s_nop 0")
                for j in js:
                    g_, u_ = acc(j, 0, i), acc(j, 1, i)
                    for h in range(2): A(f"v_pk_mul_f32 {v(u_+2*h,2)}, {v(u_+2*h,2)}, {v(g_+2*h,2)}")
                for jj, j in enumerate(js):
                    u_ = acc(j, 1, i)
                    for h in range(2):
                        A(f"v_cvt_pk_bf16_f32 {v(dst+2*jj+h)}, {v(u_+2*h)}, {v(u_+2*h+1)}")
                if len(js) == 2:
                    A(f"buffer_store_dwordx4 {v(dst,4)}, v6, s[52:55], {s(56+jp)} offen offset:{i*1024}{STF}")
                    ew()
                else:
                    A(f"buffer_store_dwordx2 {v(dst,2)}, v6, s[52:55], s58 offen offset:{i*1024}{STF}")
    A("s_cmp_ge_u32 s20, 4")
    A("s_cbranch_scc1 gu_B")
    body(4, "A")
    A("s_branch gu_end")
    A.label("gu_B")
    body(3, "B")
    A.label("gu_end")
    pub_prep(A, ph, 21, 22)


def ph_down2(A):
    ph = 5
    EDW = OPT("EDW", 1)
    R, SLOT, NST = OPT("DR", 5), (16384 if EDW else 32768), 28
    WB = 81920 if EDW else 16384
    PSC = OPT("D2SC", 0)
    if OPT("PAR", 0):
        A("s_and_b32 s21, s2, 1")
        A("s_lshl_b32 s21, s21, 3")
        A("s_and_b32 s28, s2, 2")
        A("s_lshl_b32 s28, s28, 1")
        A("s_add_u32 s21, s21, s28")
    else:
        A("s_and_b32 s21, s2, 3")
        A("s_lshl_b32 s21, s21, 2")
    A("s_bfe_u32 s28, s2, 0x20003")
    A("s_add_u32 s21, s21, s28")
    A("s_lshr_b32 s22, s2, 5")
    A("s_bfe_u32 s26, s2, 0x10002")
    A("s_and_b32 s32, s20, 1")
    A("s_lshr_b32 s33, s20, 1")
    if PSC:
        A("s_add_u32 s39, s21, s22")
        A("s_and_b32 s39, s39, 3")
        A(f"s_mul_i32 s39, s39, {PSC//4}")
    srd(A, 12, 6, WS_WD, 7*MB)
    srd(A, 8, 6, WS_HACT, 2048*3584*2)
    wd = lambda: xdma(8192, PSC, 's[12:15]')
    xd = lambda: xdma(0x40000, PSC)
    srd(A, 52, 46, 0, 256)
    A("v_mov_b32 v20, 0")
    A("buffer_load_dwordx2 v[248:249], v20, s[52:55], 0 offen sc1")
    A("s_cmp_lt_u32 s20, 4")
    A("s_cbranch_scc1 d2_A0")
    WE = OPT("WE_D", 5)
    if OPT("EWD", 0):
        assert R == 5 and not PSC
        fill_ring(A, R, SLOT, wd, 4, 5)
    else:
        A("s_lshl_b32 s28, s22, 1")
        A("s_lshr_b32 s29, s31, 1")
        A("s_add_u32 s28, s28, s29")
        A(f"s_mul_i32 s28, s28, {3584*128}")
        A(f"s_mul_i32 s29, s26, {1792*128}")
        A("s_add_u32 s28, s28, s29")
        A("s_and_b32 s29, s31, 1")
        A("s_lshl_b32 s29, s29, 12")
        A(f"s_add_u32 {s(sGo)}, s28, s29")
        if PSC: rot_init(A, 8192, PSC)
        A(f"s_lshl_b32 {s(sM)}, s31, 12")
        A(f"s_add_u32 {s(sM)}, {s(sM)}, {WB}")
        WE = OPT("WE_D", 5)
        if EDW:
            A(f"s_add_u32 {s(sGo)}, {s(sGo)}, {4*8192}")
            fill_ring(A, R, SLOT, wd, 4, 5)
        else:
            fill_ring(A, R, SLOT, wd, 0, WE)
    A("s_branch d2_C0")
    A.label("d2_A0")
    A("s_mul_i32 s28, s26, 56")
    A("s_lshr_b32 s29, s31, 1")
    A("s_add_u32 s28, s28, s29")
    A("s_lshl_b32 s28, s28, 7")
    A("s_lshl_b32 s29, s21, 3")
    A("s_add_u32 s28, s28, s29")
    A("s_and_b32 s29, s31, 1")
    A("s_lshl_b32 s29, s29, 2")
    A("s_add_u32 s28, s28, s29")
    A(f"s_lshl_b32 {s(sGo)}, s28, 10")
    if PSC: rot_init(A, 0x40000, PSC)
    A(f"s_lshl_b32 {s(sM)}, s31, 12")
    A.label("d2_C0")
    ACC = 32
    def acc(f, i): return ACC + (i * 2 + f) * 4
    SET = [64, 112]
    def xf(p, kk, i): return SET[p] + (kk * 4 + i) * 4
    def wf(p, kk, f): return SET[p] + 32 + (kk * 2 + f) * 4
    RES = 240
    A("s_lshl_b32 s34, s22, 2")
    A("s_add_u32 s34, s34, s33")
    A("s_lshl_b32 s34, s34, 7")
    A("s_lshl_b32 s35, s21, 3")
    A("s_lshl_b32 s36, s32, 2")
    A("s_add_u32 s35, s35, s36")
    A("s_lshl_b32 s36, s26, 1")
    A("s_add_u32 s35, s35, s36")
    A("s_add_u32 s34, s34, s35")
    A("s_lshl_b32 s34, s34, 10")
    A("s_lshl_b32 s35, s35, 15")
    A("s_lshl_b32 s36, s22, 8")
    A("s_add_u32 s35, s35, s36")
    A("s_lshl_b32 s36, s33, 6")
    A("s_add_u32 s35, s35, s36")
    A("s_add_u32 s36, s35, 32768")
    srd(A, 16, 6, WS_H, 4*MB)
    srd(A, 48, 44, 0, 4*MB)
    A("v_lshlrev_b32 v9, 11, v5")
    A("v_and_b32 v15, 1, v2")
    A("v_lshl_add_u32 v9, v15, 5, v9")
    A("v_lshrrev_b32 v15, 1, v2")
    A("v_lshl_add_u32 v9, v15, 4, v9")
    A("s_lshl_b32 s28, s32, 12")
    A("s_lshl_b32 s29, s26, 11")
    A("s_add_u32 s3, s28, s29")
    A("v_add_u32 v10, s3, v6")
    A("s_xor_b32 s3, s3, 2048")
    A("v_add_u32 v15, s3, v6")
    A("v_lshl_add_u32 v11, v2, 2, v3")
    A("v_lshlrev_b32 v11, 7, v11")
    A("v_lshl_add_u32 v11, v4, 3, v11")
    A("s_lshr_b32 s28, s33, 1")
    A("s_lshl_b32 s28, s28, 13")
    A(f"s_add_u32 s28, s28, {WB}")
    A("v_add_u32 v11, s28, v11")
    A("v_bfe_u32 v12, v1, 3, 2")
    A("s_and_b32 s29, s33, 1")
    A("s_lshl_b32 s29, s29, 1")
    A("v_xor_b32 v13, s29, v12")
    A("v_lshl_add_u32 v13, v13, 5, v11")
    A("v_xor_b32 v14, 32, v13")
    for i in range(16): A(f"v_mov_b32 {v(acc(0,2)+i)}, 0")
    A("s_lshr_b32 s40, s21, 1")
    A("s_lshl_b32 s41, s26, 7")
    stamp(A, ph, 0)
    if OPT("XTAG", 3) == 3: wait_flags(A, 4, 40, 32)
    else: wait_flags(A, 4, 40, 16, soff=41)
    stamp(A, ph, 1)
    for i in range(2):
        A(f"buffer_load_dwordx4 {v(RES+4*i,4)}, v6, s[16:19], s34 offen offset:{i*1024}{LDF}")
    def accinit():
        for i in range(2):
            for f in range(2):
                for h in range(2):
                    src = RES + 4*i + 2*f + h
                    A(f"v_lshlrev_b32 {v(acc(f,i)+2*h)}, 16, {v(src)}")
                    A(f"v_and_b32 {v(acc(f,i)+2*h+1)}, 0xffff0000, {v(src)}")
        if OPT("XTAG", 3) == 2:
            for q in (163, 167, 170, 171): A(f"v_mov_b32 {v(q)}, v248")
            srd(A, 52, 6, WS_XB, 9*MB)
            A("s_lshl_b32 s28, s2, 3")
            A("s_add_u32 s28, s28, s20")
            A("s_xor_b32 s29, s28, 32")
            A("s_lshl_b32 s40, s28, 12")
            A("s_lshl_b32 s41, s29, 12")
        if OPT("XTAG", 3) == 3:
            srd(A, 52, 6, WS_O, 9*MB)
            A("s_and_b32 s28, s21, 1")
            A("s_lshl_b32 s28, s28, 4")
            A("s_lshl_b32 s29, s26, 3")
            A("s_add_u32 s28, s28, s29")
            A("s_add_u32 s28, s28, s22")
            A("s_lshr_b32 s29, s21, 1")
            A("s_lshl_b32 s40, s28, 17")
            A("s_lshl_b32 s3, s29, 14")
            A("s_add_u32 s40, s40, s3")
            A("s_lshl_b32 s3, s20, 11")
            A("s_add_u32 s40, s40, s3")
            A("s_xor_b32 s41, s40, 0x100000")
            A("s_lshr_b32 s42, s28, 1")
            A("s_lshl_b32 s42, s42, 14")
            A("s_lshl_b32 s3, s29, 11")
            A("s_add_u32 s42, s42, s3")
            A("s_and_b32 s3, s28, 1")
            A("s_lshl_b32 s3, s3, 10")
            A("s_add_u32 s42, s42, s3")
            A("s_lshl_b32 s3, s20, 7")
            A("s_add_u32 s42, s42, s3")
            A("s_xor_b32 s43, s42, 0x10000")
            A(f"s_add_u32 s42, s42, {WS_ST - WS_O}")
            A(f"s_add_u32 s43, s43, {WS_ST - WS_O}")
            A("v_mov_b32 v20, 0")
            return
        A("s_movk_i32 s42, 0xfff")
        A("v_mov_b32 v244, v248")
        A("v_lshrrev_b32 v245, 12, v248")
        A("v_alignbit_b32 v246, v249, v248, 24")
        A("v_lshrrev_b32 v247, 4, v249")
    def reads(p):
        out = []
        for kk in range(2):
            for f in range(2):
                for t in range(2):
                    out.append([f"ds_read_b64_tr_b16 {v(wf(p,kk,f)+2*t,2)}, {v(17+f)} offset:{kk*4096+t*2048}"])
            for i in range(4):
                out.append([f"ds_read_b128 {v(xf(p,kk,i),4)}, {v(16 if i < 2 else 19)} offset:{kk*8192+(i&1)*1024}"])
        return out
    def addr_upd():
        return [f"v_add_u32 v16, {s(sRd)}, v10", f"v_add_u32 v17, {s(sRd)}, v13", f"v_add_u32 v18, {s(sRd)}, v14", f"v_add_u32 v19, {s(sRd)}, v15"]
    def mfmas(p):
        return [mf16(acc(f, i), wf(p, kk, f), xf(p, kk, i)) for ii in (2, 0) for kk in range(2) for f in range(2) for i in (ii, ii + 1)]
    DST = [160, 161, 162, 164, 165, 166, 168, 169]
    send = []
    if OPT("XTAG", 3) == 2:
        send = ["s_nop 4"]
        for q in range(8):
            send.append(f"v_cvt_pk_bf16_f32 {v(DST[q])}, {v(acc(0,2)+2*q)}, {v(acc(0,2)+2*q+1)}")
            if q in (2, 5, 7): send.append(f"buffer_store_dwordx4 {v(160+4*(q//3),4)}, v6, s[52:55], s40 offen offset:{(q//3)*1024} sc1")
    if OPT("XTAG", 3) == 3:
        send = ["s_nop 4"]
        for q in range(8):
            send.append(f"v_cvt_pk_bf16_f32 {v(160+q)}, {v(acc(0,2)+2*q)}, {v(acc(0,2)+2*q+1)}")
            if q in (3, 7): send.append(f"buffer_store_dwordx4 {v(160+q-3,4)}, v6, s[52:55], s40 offen offset:{(q//4)*1024} sc1")
    hookS = {1: send, 'lastpos': 11} if send else {}
    A("s_cmp_ge_u32 s20, 4")
    A("s_cbranch_scc1 d2_B")
    fill_ring(A, R, SLOT, xd, bar=True)
    A(f"s_waitcnt vmcnt({4*R})")
    accinit()
    gemm_loop(A, ph, "d2_loopA", "A", R, SLOT, NST, 4, mfmas, reads, xd, addr_upd,
              {5: code_touch_list(A, "d2_epi", 251, 252), ('x', 4): 1, ('x', 3): 1, ('x', 2): 1, **hookS})
    A("s_branch d2_epi")
    A.label("d2_B")
    fill_rest(A, R, SLOT, wd, WE)
    A(f"s_waitcnt vmcnt({4*(R-WE)})")
    accinit()
    gemm_loop(A, ph, "d2_loopB", "B", R, SLOT, NST, 4, mfmas, reads, wd, addr_upd, hookS)
    A.label("d2_epi")
    if OPT("XTAG", 3) == 3:
        A(f"s_mov_b32 s28, {SPIN_MAX}")
        A("s_waitcnt vmcnt(0)")
        if OPT("XDBG", 0): stamp(A, ph, 0)
        A("s_mov_b64 exec, 1")
        A("buffer_store_dwordx2 v[248:249], v20, s[52:55], s42 offen sc1")
        A.label("d2_poll")
        A("buffer_load_dwordx2 v[22:23], v20, s[52:55], s43 offen sc1")
        A("s_waitcnt vmcnt(0)")
        A("v_cmp_ne_u64 vcc, v[248:249], v[22:23]")
        A("s_nop 1")
        A("s_cmp_eq_u64 vcc, 0")
        A("s_cbranch_scc1 d2_got")
        A("s_sleep 1")
        A("s_sub_u32 s28, s28, 1")
        A("s_cmp_lg_u32 s28, 0")
        A("s_cbranch_scc1 d2_poll")
        A.label("d2_got")
        A("s_mov_b64 exec, -1")
        if OPT("XDBG", 0): stamp(A, ph, 1)
        for j in range(2):
            A(f"buffer_load_dwordx4 {v(64+4*j,4)}, v6, s[52:55], s41 offen offset:{j*1024} sc1")
        T = 112
        for i in range(2):
            A("s_waitcnt vmcnt(1)")
            for q in range(4):
                A(f"v_lshlrev_b32 {v(84+2*q)}, 16, {v(64+4*i+q)}")
                A(f"v_and_b32 {v(85+2*q)}, 0xffff0000, {v(64+4*i+q)}")
            for q in range(4):
                A(f"v_pk_add_f32 {v(ACC+8*i+2*q,2)}, {v(ACC+8*i+2*q,2)}, {v(84+2*q,2)}")
            for q in range(4):
                A(f"v_cvt_pk_bf16_f32 {v(T+4*i+q)}, {v(ACC+8*i+2*q)}, {v(ACC+8*i+2*q+1)}")
            A("s_nop 1")
            A(f"v_permlane16_swap_b32 {v(T+4*i)}, {v(T+4*i+2)}")
            A(f"v_permlane16_swap_b32 {v(T+4*i+1)}, {v(T+4*i+3)}")
            A("s_nop 1")
            A(f"buffer_store_dwordx4 {v(T+4*i,4)}, v9, s[48:51], {s(35+i)} offen{OUTF}")
        if PROF:
            A("s_waitcnt vmcnt(0)")
            stamp(A, ph, 4)
        return
    if OPT("XTAG", 3) == 2:
        A(f"s_mov_b32 s28, {SPIN_MAX}")
        if OPT("XW", 1): A("s_waitcnt vmcnt(0)")
        if OPT("XDBG", 0): stamp(A, ph, 0)
        A.label("d2_poll")
        for j in range(3):
            A(f"buffer_load_dwordx4 {v(64+4*j,4)}, v6, s[52:55], s41 offen offset:{j*1024} sc1")
        A("s_waitcnt vmcnt(0)")
        A("v_xor_b32 v80, v248, v67")
        A("v_xor_b32 v81, v248, v71")
        A("v_xor_b32 v82, v248, v75")
        A("v_or3_b32 v80, v80, v81, v82")
        A("v_cmp_ne_u32 vcc, 0, v80")
        A("s_nop 1")
        A("s_cmp_eq_u64 vcc, 0")
        A("s_cbranch_scc1 d2_got")
        A(f"s_sleep {OPT('XSLEEP', 1)}")
        A("s_sub_u32 s28, s28, 1")
        A("s_cmp_lg_u32 s28, 0")
        A("s_cbranch_scc1 d2_poll")
        A.label("d2_got")
        if OPT("XDBG", 0): stamp(A, ph, 1)
        T = 112
        for i in range(2):
            for q in range(4):
                src = DST[4*i+q] - 96
                A(f"v_lshlrev_b32 {v(84+2*q)}, 16, {v(src)}")
                A(f"v_and_b32 {v(85+2*q)}, 0xffff0000, {v(src)}")
            for q in range(4):
                A(f"v_pk_add_f32 {v(ACC+8*i+2*q,2)}, {v(ACC+8*i+2*q,2)}, {v(84+2*q,2)}")
            for q in range(4):
                A(f"v_cvt_pk_bf16_f32 {v(T+4*i+q)}, {v(ACC+8*i+2*q)}, {v(ACC+8*i+2*q+1)}")
            A("s_nop 1")
            A(f"v_permlane16_swap_b32 {v(T+4*i)}, {v(T+4*i+2)}")
            A(f"v_permlane16_swap_b32 {v(T+4*i+1)}, {v(T+4*i+3)}")
            A("s_nop 1")
            A(f"buffer_store_dwordx4 {v(T+4*i,4)}, v9, s[48:51], {s(35+i)} offen{OUTF}")
        if PROF:
            A("s_waitcnt vmcnt(0)")
            stamp(A, ph, 4)
        return
    srd(A, 8, 6, WS_Q if OPT('XBQ', 0) else WS_XB, 9*MB)
    A("s_lshl_b32 s28, s2, 3")
    A("s_add_u32 s28, s28, s20")
    A("s_xor_b32 s29, s28, 32")
    A("s_lshl_b32 s40, s28, 12")
    A("s_lshl_b32 s41, s29, 12")
    XTAG = OPT("XTAG", 3)
    if XTAG:
        for j in range(4):
            for r in range(4):
                A(f"v_bfi_b32 {v(acc(0,2)+4*j+r)}, s42, {v(244+r)}, {v(acc(0,2)+4*j+r)}")
            A(f"buffer_store_dwordx4 {v(acc(0,2)+4*j,4)}, v6, s[8:11], s40 offen offset:{j*1024} sc1")
        A(f"s_mov_b32 s28, {SPIN_MAX}")
        if OPT("XW", 1): A("s_waitcnt vmcnt(0)")
        if OPT("XDBG", 0): stamp(A, ph, 0)
        A.label("d2_poll")
        for j in range(4):
            A(f"buffer_load_dwordx4 {v(64+4*j,4)}, v6, s[8:11], s41 offen offset:{j*1024} sc1")
        for j in range(4):
            A(f"s_waitcnt vmcnt({3-j})")
            for r in range(4):
                A(f"v_xor_b32 {v(80+4*j+r)}, {v(244+r)}, {v(64+4*j+r)}")
            A(f"v_or3_b32 {v(80+4*j)}, {v(80+4*j)}, {v(81+4*j)}, {v(82+4*j)}")
            if j: A(f"v_or3_b32 {v(80+4*j)}, {v(80+4*j)}, {v(83+4*j)}, {v(76+4*j)}")
            else: A(f"v_or_b32 {v(80)}, {v(80)}, {v(83)}")
        A("v_and_b32 v92, s42, v92")
        A("v_cmp_ne_u32 vcc, 0, v92")
        A("s_nop 1")
        A("s_cmp_eq_u64 vcc, 0")
        A("s_cbranch_scc1 d2_got")
        A("s_sleep 1")
        A("s_sub_u32 s28, s28, 1")
        A("s_cmp_lg_u32 s28, 0")
        A("s_cbranch_scc1 d2_poll")
        A.label("d2_got")
        if OPT("XDBG", 0): stamp(A, ph, 1)
    else:
        for j in range(4):
            A(f"buffer_store_dwordx4 {v(acc(0,2)+4*j,4)}, v6, s[8:11], s40 offen offset:{j*1024} sc1")
        A(f"s_lshl_b32 s42, s28, {OPT('XFS', 7)}")
        A(f"s_add_u32 s42, s42, {8*MB}")
        A(f"s_lshl_b32 s43, s29, {OPT('XFS', 7)}")
        A(f"s_add_u32 s43, s43, {8*MB}")
        A("v_mov_b32 v20, 0")
        A(f"s_mov_b32 s28, {SPIN_MAX}")
        A("s_waitcnt vmcnt(0)")
        if OPT("XDBG", 0): stamp(A, ph, 0)
        A("s_mov_b64 exec, 1")
        A("buffer_store_dwordx2 v[248:249], v20, s[8:11], s42 offen sc1")
        A.label("d2_poll")
        A("buffer_load_dwordx2 v[22:23], v20, s[8:11], s43 offen sc1")
        A("s_waitcnt vmcnt(0)")
        A("v_cmp_ne_u64 vcc, v[248:249], v[22:23]")
        A("s_nop 1")
        A("s_cmp_eq_u64 vcc, 0")
        A("s_cbranch_scc1 d2_got")
        if OPT("XSLEEP", 1): A(f"s_sleep {OPT('XSLEEP', 1)}")
        A("s_sub_u32 s28, s28, 1")
        A("s_cmp_lg_u32 s28, 0")
        A("s_cbranch_scc1 d2_poll")
        A.label("d2_got")
        A("s_mov_b64 exec, -1")
        if OPT("XDBG", 0): stamp(A, ph, 1)
        for j in range(4):
            A(f"buffer_load_dwordx4 {v(64+4*j,4)}, v6, s[8:11], s41 offen offset:{j*1024} sc1")
    T = 112
    for i in range(2):
        if not XTAG: A(f"s_waitcnt vmcnt({2 - 2*i + i})")
        for q in range(4):
            A(f"v_pk_add_f32 {v(ACC+8*i+2*q,2)}, {v(ACC+8*i+2*q,2)}, {v(64+8*i+2*q,2)}")
        for f in range(2):
            for h in range(2):
                A(f"v_cvt_pk_bf16_f32 {v(T+4*i+2*f+h)}, {v(acc(f,i)+2*h)}, {v(acc(f,i)+2*h+1)}")
        A("s_nop 1")
        A(f"v_permlane16_swap_b32 {v(T+4*i)}, {v(T+4*i+2)}")
        A(f"v_permlane16_swap_b32 {v(T+4*i+1)}, {v(T+4*i+3)}")
        A("s_nop 1")
        A(f"buffer_store_dwordx4 {v(T+4*i,4)}, v9, s[48:51], {s(35+i)} offen{OUTF}")
    if PROF:
        A("s_waitcnt vmcnt(0)")
        stamp(A, ph, 4)


def ph_down3(A):
    ph = 5
    R, SLOT = OPT("DR", 5), 32768
    N0 = OPT("N0", 26)
    T = R + (R % 2)
    if OPT("PAR", 0):
        A("s_and_b32 s21, s2, 1")
        A("s_lshl_b32 s21, s21, 3")
        A("s_and_b32 s28, s2, 2")
        A("s_lshl_b32 s28, s28, 1")
        A("s_add_u32 s21, s21, s28")
    else:
        A("s_and_b32 s21, s2, 3")
        A("s_lshl_b32 s21, s21, 2")
    A("s_bfe_u32 s28, s2, 0x20003")
    A("s_add_u32 s21, s21, s28")
    A("s_lshr_b32 s22, s2, 5")
    A("s_bfe_u32 s26, s2, 0x10002")
    A("s_and_b32 s32, s20, 1")
    A("s_lshr_b32 s33, s20, 1")
    srd(A, 12, 6, WS_WD, 7*MB)
    srd(A, 8, 6, WS_HACT, 2048*3584*2)
    wd = lambda: xdma(8192, 0, 's[12:15]')
    xd = lambda: xdma(0x40000, 0)
    A("s_cmp_lt_u32 s20, 4")
    A("s_cbranch_scc1 d3_A0")
    A("s_lshl_b32 s28, s22, 1")
    A("s_lshr_b32 s29, s31, 1")
    A("s_add_u32 s28, s28, s29")
    A(f"s_mul_i32 s28, s28, {3584*128}")
    A(f"s_mul_i32 s29, s26, {N0*64*128}")
    A("s_add_u32 s28, s28, s29")
    A("s_and_b32 s29, s31, 1")
    A("s_lshl_b32 s29, s29, 12")
    A(f"s_add_u32 {s(sGo)}, s28, s29")
    A(f"s_lshl_b32 {s(sM)}, s31, 12")
    A(f"s_add_u32 {s(sM)}, {s(sM)}, 16384")
    srd(A, 52, 46, 0, 256)
    A("v_mov_b32 v20, 0")
    A("buffer_load_dwordx2 v[248:249], v20, s[52:55], 0 offen sc1")
    fill_ring(A, R, SLOT, wd)
    A("s_branch d3_C0")
    A.label("d3_A0")
    A(f"s_mul_i32 s28, s26, {2*N0}")
    A("s_lshr_b32 s29, s31, 1")
    A("s_add_u32 s28, s28, s29")
    A("s_lshl_b32 s28, s28, 7")
    A("s_lshl_b32 s29, s21, 3")
    A("s_add_u32 s28, s28, s29")
    A("s_and_b32 s29, s31, 1")
    A("s_lshl_b32 s29, s29, 2")
    A("s_add_u32 s28, s28, s29")
    A(f"s_lshl_b32 {s(sGo)}, s28, 10")
    A(f"s_lshl_b32 {s(sM)}, s31, 12")
    A.label("d3_C0")
    ACC = 32
    def acc(f, i): return ACC + (i * 2 + f) * 4
    SET = [64, 112]
    def xf(p, kk, i): return SET[p] + (kk * 4 + i) * 4
    def wf(p, kk, f): return SET[p] + 32 + (kk * 2 + f) * 4
    RES = 224
    A("s_lshl_b32 s34, s22, 2")
    A("s_add_u32 s34, s34, s33")
    A("s_lshl_b32 s34, s34, 7")
    A("s_lshl_b32 s35, s21, 3")
    A("s_lshl_b32 s36, s32, 2")
    A("s_add_u32 s35, s35, s36")
    A("s_add_u32 s34, s34, s35")
    A("s_lshl_b32 s34, s34, 10")
    A("s_lshl_b32 s35, s35, 15")
    A("s_lshl_b32 s36, s22, 8")
    A("s_add_u32 s35, s35, s36")
    A("s_lshl_b32 s36, s33, 6")
    A("s_add_u32 s35, s35, s36")
    A("s_add_u32 s36, s35, 32768")
    A("s_add_u32 s37, s36, 32768")
    A("s_add_u32 s38, s37, 32768")
    srd(A, 16, 6, WS_H, 4*MB)
    A("s_cmp_eq_u32 s26, 0")
    A(f"s_cselect_b32 s18, 0, {4*MB}")
    A(f"s_cselect_b32 s39, {(N0-T)//2}, {(56-N0-T)//2}")
    srd(A, 48, 44, 0, 4*MB)
    A("v_lshlrev_b32 v9, 11, v5")
    A("v_and_b32 v15, 1, v2")
    A("v_lshl_add_u32 v9, v15, 5, v9")
    A("v_lshrrev_b32 v15, 1, v2")
    A("v_lshl_add_u32 v9, v15, 4, v9")
    A("s_lshl_b32 s28, s32, 12")
    A("v_add_u32 v10, s28, v6")
    A("v_lshl_add_u32 v11, v2, 2, v3")
    A("v_lshlrev_b32 v11, 7, v11")
    A("v_lshl_add_u32 v11, v4, 3, v11")
    A("s_lshr_b32 s28, s33, 1")
    A("s_lshl_b32 s28, s28, 13")
    A("s_add_u32 s28, s28, 16384")
    A("v_add_u32 v11, s28, v11")
    A("v_bfe_u32 v12, v1, 3, 2")
    A("s_and_b32 s29, s33, 1")
    A("s_lshl_b32 s29, s29, 1")
    A("v_xor_b32 v13, s29, v12")
    A("v_lshl_add_u32 v13, v13, 5, v11")
    A("v_xor_b32 v14, 32, v13")
    A("s_lshr_b32 s28, s2, 3")
    A("s_lshl_b32 s28, s28, 2")
    A("s_and_b32 s29, s2, 3")
    A("s_add_u32 s28, s28, s29")
    A("s_lshl_b32 s28, s28, 3")
    A("s_add_u32 s28, s28, s20")
    A("s_lshl_b32 s41, s28, 13")
    A("s_add_u32 s42, s41, 4096")
    A("s_lshl_b32 s43, s28, 7")
    A(f"s_add_u32 s43, s43, {8*MB}")
    A("s_lshr_b32 s40, s21, 1")
    stamp(A, ph, 0)
    wait_flags(A, 4, 40, 32)
    stamp(A, ph, 1)
    for i in range(4):
        A(f"buffer_load_dwordx4 {v(RES+4*i,4)}, v6, s[16:19], s34 offen offset:{i*1024}{LDF}")
    def accinit():
        for i in range(4):
            for f in range(2):
                for h in range(2):
                    src = RES + 4*i + 2*f + h
                    A(f"v_lshlrev_b32 {v(acc(f,i)+2*h)}, 16, {v(src)}")
                    A(f"v_and_b32 {v(acc(f,i)+2*h+1)}, 0xffff0000, {v(src)}")
    def reads(p):
        out = []
        for kk in range(2):
            for f in range(2):
                for t in range(2):
                    out.append([f"ds_read_b64_tr_b16 {v(wf(p,kk,f)+2*t,2)}, {v(17+f)} offset:{kk*4096+t*2048}"])
            for i in range(4):
                out.append([f"ds_read_b128 {v(xf(p,kk,i),4)}, v16 offset:{kk*8192+i*1024}"])
        return out
    def addr_upd():
        return [f"v_add_u32 v16, {s(sRd)}, v10", f"v_add_u32 v17, {s(sRd)}, v13", f"v_add_u32 v18, {s(sRd)}, v14"]
    def mfmas(p):
        return [mf16(acc(f, i), wf(p, kk, f), xf(p, kk, i)) for kk in range(2) for f in range(2) for i in range(4)]
    A("s_cmp_ge_u32 s20, 4")
    A("s_cbranch_scc1 d3_B")
    fill_ring(A, R, SLOT, xd, bar=True)
    A(f"s_waitcnt vmcnt({4*R})")
    accinit()
    gemm_loop(A, ph, "d3_loopA", "A", R, SLOT, 28, 4, mfmas, reads, xd, addr_upd, cnt_sgpr=39)
    A("s_branch d3_epi")
    A.label("d3_B")
    fill_ring(A, R, SLOT, None, bar=True)
    A("s_waitcnt vmcnt(0)")
    accinit()
    gemm_loop(A, ph, "d3_loopB", "B", R, SLOT, 28, 4, mfmas, reads, wd, addr_upd, cnt_sgpr=39)
    A.label("d3_epi")
    srd(A, 8, 6, WS_Q, 9*MB)
    A("v_mov_b32 v20, 0")
    A("s_cmp_lg_u32 s26, 0")
    A("s_cbranch_scc1 d3_recv")
    for j in range(8):
        A(f"buffer_store_dwordx4 {v(ACC+4*j,4)}, v6, s[8:11], {s(41 + j//4)} offen offset:{(j%4)*1024} sc1")
    A("s_waitcnt vmcnt(0)")
    A("s_mov_b64 exec, 1")
    A("buffer_store_dwordx2 v[248:249], v20, s[8:11], s43 offen sc1")
    A("s_mov_b64 exec, -1")
    A("s_branch d3_end")
    A.label("d3_recv")
    A(f"s_mov_b32 s28, {SPIN_MAX}")
    A("s_mov_b64 exec, 1")
    A.label("d3_poll")
    A("buffer_load_dwordx2 v[22:23], v20, s[8:11], s43 offen sc1")
    A("s_waitcnt vmcnt(0)")
    A("v_cmp_ne_u64 vcc, v[248:249], v[22:23]")
    A("s_nop 1")
    A("s_cmp_eq_u64 vcc, 0")
    A("s_cbranch_scc1 d3_got")
    A("s_sleep 1")
    A("s_sub_u32 s28, s28, 1")
    A("s_cmp_lg_u32 s28, 0")
    A("s_cbranch_scc1 d3_poll")
    A.label("d3_got")
    A("s_mov_b64 exec, -1")
    for j in range(8):
        A(f"buffer_load_dwordx4 {v(64+4*j,4)}, v6, s[8:11], {s(41 + j//4)} offen offset:{(j%4)*1024} sc1")
    TT = 112
    for i in range(4):
        A(f"s_waitcnt vmcnt({6 - 2*i + i})")
        for q in range(4):
            A(f"v_pk_add_f32 {v(ACC+8*i+2*q,2)}, {v(ACC+8*i+2*q,2)}, {v(64+8*i+2*q,2)}")
        for f in range(2):
            for h in range(2):
                A(f"v_cvt_pk_bf16_f32 {v(TT+4*i+2*f+h)}, {v(acc(f,i)+2*h)}, {v(acc(f,i)+2*h+1)}")
        A("s_nop 1")
        A(f"v_permlane16_swap_b32 {v(TT+4*i)}, {v(TT+4*i+2)}")
        A(f"v_permlane16_swap_b32 {v(TT+4*i+1)}, {v(TT+4*i+3)}")
        A("s_nop 1")
        A(f"buffer_store_dwordx4 {v(TT+4*i,4)}, v9, s[48:51], {s(35+i)} offen{OUTF}")
    A.label("d3_end")
    if PROF:
        A("s_waitcnt vmcnt(0)")
        stamp(A, ph, 4)
```
